```python
import torch

def _softmax(x, axis=-1):
    return torch.softmax(x, dim=axis)
def _gelu(x):
    return torch.nn.functional.gelu(x, approximate="tanh")
def _silu(x):
    return torch.nn.functional.silu(x)
def _sigmoid(x):
    return torch.sigmoid(x)
def _layernorm(x, axis=-1, eps=1e-5):
    m = x.mean(dim=axis, keepdim=True)
    v = x.var(dim=axis, keepdim=True, unbiased=False)
    return (x - m) / torch.sqrt(v + eps)
def _scatter_add(tgt, idx, src, axis=0):
    return tgt.clone().index_add_(axis, idx, src)
def _segment_sum(src, seg, n):
    out = torch.zeros((n,) + src.shape[1:], dtype=src.dtype)
    return out.index_add_(0, seg, src)
def _pad(x, pw):
    flat = tuple(v for pair in reversed(pw) for v in pair)
    return torch.nn.functional.pad(x, flat)

kernel_name = 'standalone__sliding_block_cached__decode'

def setup_inputs():

    _w = (lambda a: (lambda t: t.to(torch.bfloat16) if t.is_floating_point() else t)(torch.as_tensor(a)))
    B, Sq, D = 4, 1, 512
    Hq, Hkv, Sk, Dh = 32, 8, 4096, 128
    assert Hq % Hkv == 0, (Hq, Hkv)
    return {
        "x": _w((lambda *s: torch.randn(*s, dtype=torch.bfloat16) * 0.8)(B, Sq, D)),
        "k_cache": _w((lambda *s: torch.randn(*s, dtype=torch.bfloat16) * 0.8)(B, Hkv, Sk, Dh)),
        "v_cache": _w((lambda *s: torch.randn(*s, dtype=torch.bfloat16) * 0.05)(B, Hkv, Sk, Dh)),
        "wq": _w((lambda *s: torch.randn(*s, dtype=torch.bfloat16) * 0.8)(D, Hq * Dh) * (D ** -0.5)),
        "wo": _w((lambda *s: torch.randn(*s, dtype=torch.bfloat16) * 0.05)(Hq * Dh, D) * ((Hq * Dh) ** -0.5)),
    }

def reference(x, k_cache, v_cache, wq, wo):
    B, Sq, D = x.shape
    Hq, Dh = 32, 128
    Hkv, Sk = k_cache.shape[1], k_cache.shape[2]
    W = min(4096, max(256, Sk // 4))
    rep = Hq // Hkv
    q = (lambda x, *d: x.permute(*d))((x @ wq).reshape(B, Sq, Hq, Dh), 0, 2, 1, 3)
    k = (lambda x, n, axis: torch.repeat_interleave(x, n, dim=axis))(k_cache[:, :, Sk - W:, :], rep, axis=1)
    v = (lambda x, n, axis: torch.repeat_interleave(x, n, dim=axis))(v_cache[:, :, Sk - W:, :], rep, axis=1)
    scores = torch.einsum("bhqd,bhkd->bhqk", q, k) * (Dh ** -0.5)
    p = _softmax(scores, axis=-1)
    o = torch.einsum("bhqk,bhkd->bhqd", p, v)
    return (lambda x, *d: x.permute(*d))(o, 0, 2, 1, 3).reshape(B, Sq, Hq * Dh) @ wo
```

```python
KNAME = "standalone__sliding_block_cached__decode_kernel"
class A:
    def __init__(self):
        self.L = []
    def __call__(self, s):
        for line in s.strip("\n").split("\n"):
            self.L.append("    " + line.strip() if not line.strip().endswith(":") else line.strip())
    def raw(self, s): self.L.append(s)
    def text(self): return "\n".join(self.L) + "\n"

def header(launch_lines, extra_comments=""):
    s = open("standalone__sliding_block_cached__decode.s.ref").read().split("\n")
    out = []
    for l in s:
        if l.startswith("; Override"): break
        out.append(l)
    out.append(extra_comments.rstrip("\n")) if extra_comments else None
    out += launch_lines
    out.append('.amdgcn_target "amdgcn-amd-amdhsa--gfx950"')
    out.append(".text")
    return "\n".join(out) + "\n"

def kernel_begin(name):
    return f".globl {name}\n.p2align 8\n.type {name},@function\n{name}:\n"

def descriptor(name, vgpr, sgpr, accum=None, extra=""):
    if accum is None: accum = (vgpr + 3) // 4 * 4
    return f""".amdhsa_kernel {name}
  .amdhsa_next_free_vgpr {vgpr}
  .amdhsa_next_free_sgpr {sgpr}
  .amdhsa_accum_offset {accum}
  .amdhsa_group_segment_fixed_size 0
  .amdhsa_kernarg_size 64
  .amdhsa_user_sgpr_count 2
  .amdhsa_user_sgpr_kernarg_segment_ptr 1
  .amdhsa_system_sgpr_workgroup_id_x 1
{extra}.end_amdhsa_kernel
"""
RODATA = '.section .rodata,"a"\n.p2align 6\n'
```

```python
import re, sys
REG = re.compile(r'\b([vsa])(\d+)\b|\b([vsa])\[(\d+):(\d+)\]|\b(vcc|exec|m0|scc)\b')
def regs(tok):
    out = set()
    for m in REG.finditer(tok):
        if m.group(1): out.add(m.group(1) + m.group(2))
        elif m.group(3):
            for i in range(int(m.group(4)), int(m.group(5)) + 1): out.add(m.group(3) + str(i))
        else: out.add(m.group(6))
    return out
TRANS = ("v_exp_f32", "v_log_f32", "v_rcp_f32", "v_rsq_f32", "v_sqrt_f32", "v_sin_f32", "v_cos_f32")
def parse(line):
    l = line.split(";")[0].strip()
    if not l or l.endswith(":") or l.startswith("."): return None
    p = l.split(None, 1)
    mn = p[0]; ops = [o.strip() for o in p[1].split(",")] if len(p) > 1 else []
    d = set(); s = set()
    base = re.sub(r"_(e32|e64|dpp|sdwa)$", "", mn)
    if mn.startswith("s_"):
        if mn.startswith(("s_cmp", "s_cbranch", "s_branch", "s_waitcnt", "s_nop", "s_barrier", "s_sleep", "s_endpgm", "s_setprio", "s_bitcmp")):
            for o in ops: s |= regs(o)
        else:
            if ops: d |= regs(ops[0])
            for o in ops[1:]: s |= regs(o)
            if "saveexec" in mn: d.add("exec"); s.add("exec")
    elif mn.startswith("v_cmp"):
        d |= regs(ops[0])
        for o in ops[1:]: s |= regs(o)
        if mn.startswith("v_cmpx"): d.add("exec")
    elif mn.startswith(("v_permlane16_swap", "v_permlane32_swap")):
        d |= regs(ops[0]) | regs(ops[1]); s |= regs(ops[0]) | regs(ops[1])
    elif mn.startswith("v_"):
        d |= regs(ops[0])
        rest = ops[1:]
        if base in ("v_add_co_u32", "v_addc_co_u32", "v_sub_co_u32"):
            d |= regs(ops[1]); rest = ops[2:]
        for o in rest: s |= regs(o)
        if base in ("v_fmac_f32", "v_dot2c_f32_bf16") or "dpp" in mn or "row_" in l or "quad_perm" in l: s |= regs(ops[0])
        if base == "v_cndmask_b32" and len(ops) == 3: s.add("vcc")
    elif mn.startswith("ds_"):
        if mn.startswith(("ds_read", "ds_bpermute", "ds_permute", "ds_swizzle")):
            d |= regs(ops[0])
            for o in ops[1:]: s |= regs(o.split(" offset")[0])
        else:
            for o in ops: s |= regs(o.split(" offset")[0])
    elif mn.startswith(("buffer_", "global_")):
        lds = bool(re.search(r"\blds\b", l)) or "load_lds" in mn
        if "load" in mn and not lds:
            d |= regs(ops[0])
            for o in ops[1:]: s |= regs(o)
        else:
            for o in ops: s |= regs(o)
        if lds: s.add("m0")
    else:
        print("haz: unknown", l)
    return dict(mn=mn, base=base, d=d, s=s, line=l)
def states(ins):
    if ins["mn"] == "s_nop":
        n = int(ins["line"].split()[1], 0); return n + 1
    return 1
def check(text, name=""):
    I = []
    for ln, line in enumerate(text.split("\n"), 1):
        p = parse(line)
        l = line.split(";")[0].strip()
        if p: p["ln"] = ln; I.append(p)
        elif l.endswith(":"): I.append(dict(mn="label", base="label", d=set(), s=set(), line=l, ln=ln))
    errs = []
    def isvalu(i): return i["mn"].startswith("v_") and not i["mn"].startswith("v_mfma")
    def ismfma(i): return i["mn"].startswith("v_mfma")
    def isvmem(i): return i["mn"].startswith(("buffer_", "global_"))
    def isds(i): return i["mn"].startswith("ds_")
    for i, a in enumerate(I):
        if a["mn"] == "label": continue
        dist = 0
        for j in range(i + 1, min(i + 24, len(I))):
            b = I[j]
            if b["mn"] == "label": continue
            need = 0; why = ""
            vd = {r for r in a["d"] if r[0] in "va" and r != "vcc"}
            sd = {r for r in a["d"] if (r[0] == "s" and r != "scc") or r == "vcc"}
            if ismfma(a):
                passes = 8 if "32x32" in a["mn"] else (2 if "4x4x4" in a["mn"] else 4)
                n_rw = {2: 5, 4: 8, 8: 12}[passes]
                if ismfma(b):
                    ops = [o.strip() for o in b["line"].split(None, 1)[1].split(",")]
                    ab = regs(ops[1]) | regs(ops[2]); c = regs(ops[3])
                    if ab & vd: need, why = n_rw, "mfma D->mfma A/B"
                    elif c & vd and c != vd: need, why = {2: 4, 4: 6, 8: 10}[passes], "mfma D->mfma C partial"
                    elif (b["d"] & vd) and c != vd and not (c & vd): need, why = n_rw, "mfma D->mfma D WAW"
                elif (isvalu(b) and ((b["s"] | b["d"]) & vd)) or ((isvmem(b) or isds(b)) and ((b["s"] | b["d"]) & vd)):
                    need, why = n_rw, "mfma D->valu/mem"
                ops = [o.strip() for o in a["line"].split(None, 1)[1].split(",")]
                c = regs(ops[3])
                if isvalu(b) and (b["d"] & c) and need < {2: 1, 4: 3, 8: 7}[passes]:
                    need, why = {2: 1, 4: 3, 8: 7}[passes], "mfma C WAR"
            elif isvalu(a):
                if ismfma(b) and (b["s"] & vd): need, why = 2, "valu->mfma"
                if b["mn"].startswith("v_permlane") and (b["s"] & vd): need, why = 2, "valu->permlane"
                if isvalu(b) and ("dpp" in b["mn"] or "row_" in b["line"] or "quad_perm" in b["line"]) and (b["s"] & vd): need, why = max(need, 2), "valu->dpp"
                if b["base"] in ("v_readfirstlane_b32", "v_readlane_b32") and (b["s"] & vd): need, why = max(need, 1), "valu->readlane"
                if a["base"] in TRANS and isvalu(b) and b["base"] not in TRANS and (b["s"] & vd): need, why = max(need, 1), "trans->valu"
                if a["base"] in TRANS and ismfma(b) and (b["s"] & vd): need, why = max(need, 2), "trans->mfma"
                if sd:
                    if isvmem(b) and (b["s"] & sd): need, why = max(need, 5), "valu sgpr->vmem"
                    if isvalu(b) and (b["s"] & sd): need, why = max(need, 2), "valu sgpr->valu const"
                    if b["base"] in ("v_readlane_b32", "v_writelane_b32") and (b["s"] & sd): need, why = max(need, 4), "valu sgpr->lanesel"
                if "exec" in a["d"]:
                    if ismfma(b): need, why = max(need, 4), "valu exec->mfma"
                    if b["mn"].startswith("v_permlane") or b["base"].startswith("v_read"): need, why = max(need, 4), "cmpx->permlane"
            elif a["mn"].startswith("s_") and "m0" in a["d"]:
                if "m0" in b["s"] and isvmem(b): need, why = 1, "m0->lds dma"
            if isvmem(a) and "store" in a["mn"] and ("x4" in a["mn"] or "x3" in a["mn"]):
                ops = [o.strip() for o in a["line"].split(None, 1)[1].split(",")]
                data = regs(ops[0]) if a["mn"].startswith("buffer") else regs(ops[1])
                if b["d"] & data and not isvmem(b) and not isds(b): need, why = max(need, 2), "store data WAR"
            if need > dist:
                errs.append(f"{name}: line {a['ln']} '{a['line']}' -> line {b['ln']} '{b['line']}': need {need} have {dist} ({why})")
            dist += states(b)
            if b["mn"] in ("s_branch", "s_endpgm"): break
    return errs
if __name__ == "__main__":
    e = check(open(sys.argv[1]).read(), sys.argv[1])
    print("\n".join(e) if e else "no hazards found")
```

```python
import sys
sys.path.insert(0, "my")
from ag import *
import haz

QX = 0x1000
OW = 0x20000
OX = 0x100000
ST = 0x200000
WS_BYTES = 268435456
QRED = 0
QL = QRED + 1024
PL = QL + 1280
SL = PL + 1024
OL = SL + 128
XL = 4352; WQ = XL + 4096; KL = WQ + 16384; VL = KL + 32768; WO = VL + 32768
LDS_BYTES = WO + 16384
assert OL + 768 <= XL
CSC = 0.08838834764831845 * 1.4426950408889634
import struct
def f32(x): return "0x%08x" % struct.unpack("<I", struct.pack("<f", x))[0]

class V:
    def __init__(s): s.n = 0; s.names = {}
    def __call__(s, name, cnt=1, align=1):
        s.n = (s.n + align - 1) // align * align
        r = s.n; s.n += cnt; s.names[name] = r; s.hi = max(getattr(s, 'hi', 0), s.n)
        return r
    def mark(s): return s.n
    def release(s, m): s.n = m
def rng(r, n): return f"v[{r}:{r+n-1}]"

def gen(stamp=False, nt_kv="", nt_w="", v1cnt=6, spin=200000):
    a = A(); va = V()
    v_tid = va("tid"); l = va("lane"); t0 = va("t0"); t1 = va("t1"); t2 = va("t2"); t3 = va("t3")
    vX = va("vX"); vWQ = va("vWQ"); vK = va("vK", 4); vV = va("vV"); vWO = va("vWO")
    nst = [0]
    def ST_(label):
        if stamp:
            i = nst[0]; nst[0] += 1
            assert i < 15
            a(f"s_memrealtime s[{60+2*i}:{61+2*i}]   ; stamp {i} {label}")
    a(f"""
s_cmp_ge_u32 s2, 256
s_cbranch_scc1 L_end
s_load_dwordx2 s[8:9], s[0:1], 0
s_load_dwordx2 s[20:21], s[0:1], 24
s_load_dwordx2 s[12:13], s[0:1], 8
s_load_dwordx2 s[16:17], s[0:1], 16
s_load_dwordx2 s[24:25], s[0:1], 32
s_load_dwordx2 s[32:33], s[0:1], 40
s_load_dwordx2 s[28:29], s[0:1], 56
""")
    ST_("entry")
    a(f"""
v_lshrrev_b32 v{t0}, 6, v0
v_and_b32 v{l}, 63, v0
s_and_b32 s4, s2, 7
v_readfirstlane_b32 s3, v{t0}       ; w = wave
s_lshr_b32 s5, s2, 3                ; r
s_lshr_b32 s6, s5, 3                ; b
s_and_b32 s7, s5, 7                 ; c
s_mov_b32 s10, 4096
s_mov_b32 s11, 0x20000
s_mov_b32 s22, 4194304
s_mov_b32 s23, 0x20000
s_mov_b32 s14, 33554432
s_mov_b32 s15, 0x20000
s_mov_b32 s18, 33554432
s_mov_b32 s19, 0x20000
s_mov_b32 s26, 4194304
s_mov_b32 s27, 0x20000
s_mov_b32 s30, {WS_BYTES}
s_mov_b32 s31, 0x20000
s_mov_b32 s34, 4096
s_mov_b32 s35, 0x20000
; x voffset: (l>>4)*1024 + ((l&15) ^ (4*(l>>4)))*16
v_lshrrev_b32 v{t0}, 4, v{l}           ; l>>4
v_and_b32 v{t1}, 15, v{l}              ; l&15
v_lshlrev_b32 v{t2}, 2, v{t0}
v_xor_b32 v{t2}, v{t1}, v{t2}
v_lshlrev_b32 v{t2}, 4, v{t2}
v_lshl_add_u32 v{vX}, v{t0}, 10, v{t2}
; K voffsets: (l>>4)*256 + ((l&15)^(l>>4))*16  ^ (64*i)
v_xor_b32 v{t2}, v{t1}, v{t0}
v_lshlrev_b32 v{t2}, 4, v{t2}
v_lshl_add_u32 v{vK}, v{t0}, 8, v{t2}
v_xor_b32 v{vK+1}, 64, v{vK}
v_xor_b32 v{vK+2}, 0x80, v{vK}
v_xor_b32 v{vK+3}, 0xc0, v{vK}
v_bfe_u32 v{t2}, v{l}, 1, 2
v_bfe_u32 v{t3}, v{l}, 3, 2
v_lshl_or_b32 v{t2}, v{t3}, 3, v{t2}
v_bfe_u32 v{t3}, v{l}, 5, 1
v_lshl_or_b32 v{t2}, v{t3}, 2, v{t2}
v_lshlrev_b32 v{t2}, 13, v{t2}
v_and_b32 v{t3}, 1, v{l}
v_lshl_or_b32 v{vWQ}, v{t3}, 4, v{t2}
s_lshl_b32 s36, s3, 8               ; x soff = w*256
s_lshl_b32 s37, s4, 10
s_lshl_b32 s38, s5, 5
s_add_u32 s37, s37, s38
s_lshl_b32 s38, s3, 20
s_add_u32 s37, s37, s38
s_lshl_b32 s39, s6, 3
s_add_u32 s39, s39, s4
s_lshl_b32 s39, s39, 20
s_lshl_b32 s38, s7, 15
s_add_u32 s39, s39, s38
s_add_u32 s39, s39, 786432
s_lshl_b32 s38, s3, 13
s_add_u32 s40, s39, s38
s_lshl_b32 s41, s3, 10
s_add_u32 s41, s41, {XL}
s_lshl_b32 s42, s3, 12              ; w*4096
s_lshl_b32 s43, s3, 13              ; w*8192
s_add_u32 s90, s42, {WQ}
s_add_u32 s91, s43, {KL}
s_add_u32 s92, s43, {VL}
s_add_u32 s93, s42, {WO}
s_mov_b32 m0, s41
s_waitcnt lgkmcnt(0)
""")
    ST_("karg")
    a(f"buffer_load_dwordx4 v{vX}, s[8:11], s36 offen lds")
    a(f"s_mov_b32 m0, s90")
    for i in range(4):
        if i: a(f"s_add_u32 s37, s37, {(1<<18) - 1024}")
        else: a("s_nop 0")
        a(f"buffer_load_dwordx4 v{vWQ}, s[20:23], s37 offen offset:{i*1024}{nt_w} lds")
    a(f"s_mov_b32 m0, s91")
    a("s_load_dword s44, s[28:29], 0        ; epoch")
    for i in range(8):
        if i == 4:
            a("s_add_u32 m0, m0, 4096\ns_add_u32 s40, s40, 4096")
        a(f"buffer_load_dwordx4 v{vK+i%4}, s[12:15], s40 offen offset:{(i%4)*1024}{nt_kv} lds")
    ST_("issued1")
    g = va("g"); n16 = va("n16"); n4 = va("n4")
    vXr = va("vXr"); vWQr = va("vWQr"); vKr = va("vKr", 4); vVr = va("vVr", 2); vWOr = va("vWOr", 2)
    a(f"""
v_lshrrev_b32 v{g}, 4, v{l}            ; g = l>>4
v_and_b32 v{n16}, 15, v{l}             ; n = l&15
v_and_b32 v{n4}, 3, v{l}               ; n&3 == l&3
; V voffset: (l>>2)*256 + ((l&3) ^ (((l>>4)&1)<<1))*16
v_lshrrev_b32 v{t0}, 2, v{l}
v_and_b32 v{t1}, 1, v{g}
v_lshlrev_b32 v{t1}, 1, v{t1}          ; (g&1)<<1
v_xor_b32 v{t2}, v{n4}, v{t1}
v_lshlrev_b32 v{t2}, 4, v{t2}
v_lshl_add_u32 v{vV}, v{t0}, 8, v{t2}
v_lshrrev_b32 v{t3}, 5, v{l}
v_lshlrev_b32 v{t3}, 1, v{t3}
v_xor_b32 v{t2}, v{n4}, v{t3}
v_lshlrev_b32 v{t2}, 4, v{t2}
v_lshl_add_u32 v{vWO}, v{t0}, 10, v{t2}
v_lshlrev_b32 v{t2}, 2, v{n4}
v_xor_b32 v{t2}, v{g}, v{t2}
v_lshlrev_b32 v{t2}, 4, v{t2}
v_lshl_add_u32 v{t2}, v{n4}, 8, v{t2}
v_add_u32 v{vXr}, s41, v{t2}
v_lshlrev_b32 v{t2}, 3, v{l}
v_add_u32 v{vWQr}, s90, v{t2}
v_xor_b32 v{t2}, v{g}, v{n16}
v_lshlrev_b32 v{t2}, 4, v{t2}
v_lshl_add_u32 v{t2}, v{n16}, 8, v{t2}
v_add_u32 v{vKr}, s91, v{t2}
v_xor_b32 v{vKr+1}, 64, v{vKr}
v_xor_b32 v{vKr+2}, 0x80, v{vKr}
v_xor_b32 v{vKr+3}, 0xc0, v{vKr}
v_bfe_u32 v{t0}, v{l}, 2, 2            ; r
v_lshl_add_u32 v{t2}, v{g}, 2, v{t0}   ; 4g+r
v_lshlrev_b32 v{t2}, 6, v{t2}
v_lshl_add_u32 v{t2}, v{n4}, 3, v{t2}  ; + c*8
v_and_b32 v{t1}, 1, v{g}
v_lshl_add_u32 v{t2}, v{t1}, 5, v{t2}  ; t'=0: (g&1)*32
v_add_u32 v{vVr}, s92, v{t2}
v_xor_b32 v{vVr+1}, 32, v{vVr}
v_lshl_add_u32 v{t2}, v{g}, 3, v{t0}
v_lshlrev_b32 v{t2}, 6, v{t2}
v_lshl_add_u32 v{t2}, v{n4}, 3, v{t2}
v_lshl_add_u32 v{t2}, v{t1}, 5, v{t2}
v_add_u32 v{vWOr}, s93, v{t2}
v_xor_b32 v{vWOr+1}, 32, v{vWOr}
s_lshl_b32 s38, s3, 6
s_add_u32 s45, s39, s38
s_lshr_b32 s46, s5, 2               ; r/4
s_lshl_b32 s47, s4, 3
s_add_u32 s47, s47, s46             ; p = g*8 + r/4
s_lshl_b32 s48, s47, 16             ; j0*1024 = p*64*1024
s_and_b32 s49, s5, 3                ; cg
s_lshl_b32 s38, s49, 8
s_add_u32 s48, s48, s38
s_lshl_b32 s38, s3, 6
s_add_u32 s48, s48, s38
""")
    vXs = va("vXs", 3)
    a(f"v_xor_b32 v{vXs}, 64, v{vXr}\nv_xor_b32 v{vXs+1}, 0x80, v{vXr}\nv_xor_b32 v{vXs+2}, 0xc0, v{vXr}")
    A32 = va("A32", 32, 4); B16 = va("B16", 16, 4); C32 = va("C32", 32, 4)
    xb = A32; wa = A32 + 16; acc = va("acc", 4, 4)
    a("s_waitcnt vmcnt(8)")
    ST_("wq landed")
    for s in range(4):
        xa = vXr if s == 0 else vXs + s - 1
        a(f"ds_read_b128 {rng(xb+4*s,4)}, v{xa}")
        a(f"ds_read_b64_tr_b16 {rng(wa+4*s,2)}, v{vWQr} offset:{s*1024}")
        a(f"ds_read_b64_tr_b16 {rng(wa+4*s+2,2)}, v{vWQr} offset:{s*1024 + 512}")
    for s in range(4):
        a(f"s_waitcnt lgkmcnt({3*(3-s)})")
        c = "0" if s == 0 else rng(acc,4)
        a(f"v_mfma_f32_16x16x32_bf16 {rng(acc,4)}, {rng(wa+4*s,4)}, {rng(xb+4*s,4)}, {c}")
    a(f"""
v_lshlrev_b32 v{t2}, 6, v{n4}
v_lshl_add_u32 v{t2}, v{g}, 4, v{t2}
s_lshl_b32 s38, s3, 8
v_add_u32 v{t2}, s38, v{t2}
s_mov_b32 s50, 0x000f000f
s_mov_b32 s51, 0x000f000f
v_and_b32 v{t0}, 7, v{l}
v_lshlrev_b32 v{t1}, 3, v{t0}
s_lshl_b32 s38, s3, 6
v_add_u32 v{t1}, s38, v{t1}
s_mov_b64 exec, s[50:51]
ds_write_b128 v{t2}, {rng(acc,4)} offset:{QRED}
s_mov_b64 exec, -1
s_waitcnt lgkmcnt(0)
s_barrier
""")
    qp = va("qp", 8, 2)
    for w2 in range(4):
        a(f"ds_read_b64 {rng(qp+2*w2,2)}, v{t1} offset:{QRED + w2*256}")
    a(f"""
s_mul_i32 s52, s44, 1664525
s_add_u32 s52, s52, 1013904223      ; tag
s_lshl_b32 s38, s4, 2
s_add_u32 s38, s38, s3
s_lshl_b32 s38, s38, 11
s_lshl_b32 s53, s5, 6
s_add_u32 s38, s38, s53
s_add_u32 s38, s38, {QX}
v_lshlrev_b32 v{t2}, 3, v{t0}
v_add_u32 v{t2}, s38, v{t2}
v_cmp_gt_u32 vcc, 8, v{l}
v_mov_b32 v{t3}, 0x7ffffff0
s_nop 0
v_cndmask_b32 v{t2}, v{t3}, v{t2}, vcc
s_waitcnt lgkmcnt(0)
v_add_f32 v{qp}, v{qp}, v{qp+2}
v_add_f32 v{qp+1}, v{qp+1}, v{qp+3}
v_add_f32 v{qp+4}, v{qp+4}, v{qp+6}
v_add_f32 v{qp+5}, v{qp+5}, v{qp+7}
v_add_f32 v{qp}, v{qp}, v{qp+4}
v_add_f32 v{qp+1}, v{qp+1}, v{qp+5}
v_cvt_pk_bf16_f32 v{qp}, v{qp}, v{qp+1}
v_mov_b32 v{qp+1}, s52
buffer_store_dwordx2 {rng(qp,2)}, v{t2}, s[28:31], 0 offen sc1
""")
    ST_("q published")
    a(f"s_mov_b32 m0, s92")
    def vload(i):
        if i % 4 == 0 and i: a("s_add_u32 m0, m0, 4096")
        if i: a(f"s_add_u32 s45, s45, {4096 - 1024 if i % 4 else 4096 + 3072}")
        else: a("s_nop 0")
        a(f"buffer_load_dwordx4 v{vV}, s[16:19], s45 offen offset:{(i%4)*1024}{nt_kv} lds")
    for i in range(v1cnt): vload(i)
    vG = va("vG"); gq = va("gq", 2, 2)
    a(f"""
s_lshl_b32 s38, s4, 2
s_add_u32 s38, s38, s6
s_lshl_b32 s38, s38, 11
s_lshl_b32 s53, s3, 9
s_add_u32 s38, s38, s53
s_add_u32 s54, s38, {QX}
v_lshlrev_b32 v{vG}, 3, v{l}
s_waitcnt vmcnt({1 + v1cnt})
""")
    ST_("K landed")
    a(f"buffer_load_dwordx2 {rng(gq,2)}, v{vG}, s[28:31], s54 offen sc1")
    for i in range(v1cnt, 8): vload(i)
    a(f"s_mov_b32 m0, s93")
    for i in range(4):
        if i: a(f"s_add_u32 s48, s48, {16384 - 1024}")
        else: a("s_nop 0")
        a(f"buffer_load_dwordx4 v{vWO}, s[24:27], s48 offen offset:{i*1024}{nt_w} lds")
    ka = A32
    for t in range(2):
        for s in range(4):
            a(f"ds_read_b128 {rng(ka+16*t+4*s,4)}, v{vKr+s} offset:{t*4096}")
    nafter = (8 - v1cnt) + 4
    a(f"""
s_mov_b32 s55, {spin}
s_waitcnt vmcnt({nafter})
L_qchk:
v_cmp_ne_u32 vcc, s52, v{gq+1}
s_cbranch_vccz L_qok
s_sub_u32 s55, s55, 1
s_cbranch_scc1 L_qok
s_sleep 1
buffer_load_dwordx2 {rng(gq,2)}, v{vG}, s[28:31], s54 offen sc1
s_waitcnt vmcnt(0)
s_branch L_qchk
L_qok:
""")
    ST_("q gathered")
    qb = B16
    a(f"""
v_lshlrev_b32 v{t2}, 2, v{l}
s_mul_i32 s38, s3, 320
v_add_u32 v{t2}, s38, v{t2}
ds_write_b32 v{t2}, v{gq} offset:{QL}
v_mul_u32_u24 v{t3}, 320, v{n4}
v_lshl_add_u32 v{t3}, v{g}, 4, v{t3}
s_waitcnt lgkmcnt(0)
s_barrier
""")
    for s in range(4):
        a(f"ds_read_b128 {rng(qb+4*s,4)}, v{t3} offset:{QL + s*64}")
    sc = C32
    for s in range(4):
        a(f"s_waitcnt lgkmcnt({3-s})")
        for t in range(2):
            c = "0" if s == 0 else rng(sc+4*t,4)
            a(f"v_mfma_f32_16x16x32_bf16 {rng(sc+4*t,4)}, {rng(ka+16*t+4*s,4)}, {rng(qb+4*s,4)}, {c}")
    m = va("m"); mt = va("mt"); ls = va("ls"); pk = va("pk", 4, 4); st2 = va("st2", 2, 2)
    a(f"""
v_lshlrev_b32 v{t2}, 6, v{n4}
v_lshl_add_u32 v{t2}, v{g}, 4, v{t2}
s_lshl_b32 s38, s3, 8
v_add_u32 v{t0}, s38, v{t2}
v_lshlrev_b32 v{t1}, 5, v{n4}
s_lshl_b32 s38, s3, 3
v_add_u32 v{t3}, s38, v{t1}
s_mov_b32 s56, {f32(CSC)}
s_nop 1
v_max3_f32 v{m}, v{sc}, v{sc+1}, v{sc+2}
v_max3_f32 v{m}, v{m}, v{sc+3}, v{sc+4}
v_max3_f32 v{m}, v{m}, v{sc+5}, v{sc+6}
v_max_f32 v{m}, v{m}, v{sc+7}
v_mov_b32 v{mt}, v{m}
s_nop 1
v_permlane16_swap_b32 v{m}, v{mt}
s_nop 0
v_max_f32 v{m}, v{m}, v{mt}
v_mov_b32 v{mt}, v{m}
s_nop 1
v_permlane32_swap_b32 v{m}, v{mt}
s_nop 0
v_max_f32 v{m}, v{m}, v{mt}
v_mul_f32 v{m}, s56, v{m}
""")
    for i in range(8):
        a(f"v_fma_f32 v{sc+i}, v{sc+i}, s56, -v{m}")
    for i in range(8):
        a(f"v_exp_f32 v{sc+i}, v{sc+i}")
    a(f"""
s_nop 0
v_add_f32 v{ls}, v{sc}, v{sc+1}
v_add_f32 v{mt}, v{sc+2}, v{sc+3}
v_cvt_pk_bf16_f32 v{pk}, v{sc}, v{sc+1}
v_cvt_pk_bf16_f32 v{pk+1}, v{sc+2}, v{sc+3}
v_add_f32 v{ls}, v{ls}, v{mt}
v_add_f32 v{mt}, v{sc+4}, v{sc+5}
v_cvt_pk_bf16_f32 v{pk+2}, v{sc+4}, v{sc+5}
v_add_f32 v{ls}, v{ls}, v{mt}
v_add_f32 v{mt}, v{sc+6}, v{sc+7}
v_cvt_pk_bf16_f32 v{pk+3}, v{sc+6}, v{sc+7}
v_add_f32 v{ls}, v{ls}, v{mt}
s_mov_b64 exec, s[50:51]
ds_write_b128 v{t0}, {rng(pk,4)} offset:{PL}
s_mov_b64 exec, -1
v_mov_b32 v{mt}, v{ls}
s_nop 1
v_permlane16_swap_b32 v{ls}, v{mt}
s_nop 0
v_add_f32 v{ls}, v{ls}, v{mt}
v_mov_b32 v{mt}, v{ls}
s_nop 1
v_permlane32_swap_b32 v{ls}, v{mt}
s_nop 0
v_add_f32 v{st2+1}, v{ls}, v{mt}
v_mov_b32 v{st2}, v{m}
s_mov_b64 exec, s[50:51]
ds_write_b64 v{t3}, {rng(st2,2)} offset:{SL}
s_mov_b64 exec, -1
s_waitcnt lgkmcnt(0)
s_barrier
""")
    ST_("P written")
    pb = B16; sv = va("sv", 8, 4); vaop = A32
    for ks in range(4):
        a(f"ds_read_b128 {rng(pb+4*ks,4)}, v{t2} offset:{PL + ks*256}")
    a(f"ds_read_b128 {rng(sv,4)}, v{t1} offset:{SL}")
    a(f"ds_read_b128 {rng(sv+4,4)}, v{t1} offset:{SL+16}")
    a("s_waitcnt vmcnt(4)")
    ST_("V landed")
    def vread(ks):
        for tp in range(2):
            for e in range(2):
                a(f"ds_read_b64_tr_b16 {rng(vaop+8*ks+4*tp+2*e,2)}, v{vVr+tp} offset:{ks*2048 + e*1024}")
    D = C32
    def pv(ks):
        for tp in range(2):
            a(f"v_mfma_f32_16x16x32_bf16 {rng(D+8*ks+4*tp,4)}, {rng(vaop+8*ks+4*tp,4)}, {rng(pb+4*ks,4)}, 0")
    vread(0); vread(1)
    M = va("M"); ff = va("ff", 4); L = va("L")
    a(f"""
s_waitcnt lgkmcnt(8)
v_max3_f32 v{M}, v{sv}, v{sv+2}, v{sv+4}
v_max_f32 v{M}, v{M}, v{sv+6}
""")
    vread(2)
    a(f"""
v_sub_f32 v{ff}, v{sv}, v{M}
v_sub_f32 v{ff+1}, v{sv+2}, v{M}
v_sub_f32 v{ff+2}, v{sv+4}, v{M}
v_sub_f32 v{ff+3}, v{sv+6}, v{M}
s_waitcnt lgkmcnt(8)
""")
    pv(0)
    vread(3)
    a(f"""
v_exp_f32 v{ff}, v{ff}
v_exp_f32 v{ff+1}, v{ff+1}
v_exp_f32 v{ff+2}, v{ff+2}
v_exp_f32 v{ff+3}, v{ff+3}
s_waitcnt lgkmcnt(8)
""")
    pv(1)
    a(f"""
v_mul_f32 v{L}, v{ff}, v{sv+1}
v_fmac_f32 v{L}, v{ff+1}, v{sv+3}
s_waitcnt lgkmcnt(4)
""")
    pv(2)
    a(f"""
v_fmac_f32 v{L}, v{ff+2}, v{sv+5}
v_fmac_f32 v{L}, v{ff+3}, v{sv+7}
s_waitcnt lgkmcnt(0)
""")
    pv(3)
    R = va("R"); lse = va("lse"); og = va("og", 8, 4)
    a(f"""
v_rcp_f32 v{R}, v{L}
v_log_f32 v{lse}, v{L}
s_nop 0
v_mul_f32 v{ff}, v{ff}, v{R}
v_mul_f32 v{ff+1}, v{ff+1}, v{R}
v_mul_f32 v{ff+2}, v{ff+2}, v{R}
v_mul_f32 v{ff+3}, v{ff+3}, v{R}
v_add_f32 v{lse}, v{lse}, v{M}
s_lshl_b32 s38, s6, 5
s_lshl_b32 s53, s4, 2
s_add_u32 s38, s38, s53
s_lshl_b32 s38, s38, 3
s_add_u32 s38, s38, s7
s_lshl_b32 s38, s38, 9              ; *32*16
s_lshl_b32 s53, s3, 7               ; 8w*16
s_add_u32 s38, s38, s53
s_add_u32 s57, s38, {OW}
v_lshlrev_b32 v{t0}, 12, v{n16}       ; n*8*512
v_lshl_add_u32 v{t0}, v{g}, 4, v{t0}
v_cmp_gt_u32 vcc, 4, v{n16}
v_mov_b32 v{t3}, 0x7ffffff0
s_nop 0
v_cndmask_b32 v{t0}, v{t3}, v{t0}, vcc
""")
    o = va("o", 8, 4)
    for tp in range(2):
        for r in range(4):
            a(f"v_mul_f32 v{o+4*tp+r}, v{ff}, v{D+4*tp+r}")
    for ks in range(1, 4):
        for tp in range(2):
            for r in range(4):
                a(f"v_fmac_f32 v{o+4*tp+r}, v{ff+ks}, v{D+8*ks+4*tp+r}")
    for tp in range(2):
        a(f"""v_cvt_pk_bf16_f32 v{og+4*tp}, v{o+4*tp}, v{o+4*tp+1}
v_cvt_pk_bf16_f32 v{og+4*tp+1}, v{o+4*tp+2}, v{o+4*tp+3}
v_mov_b32 v{og+4*tp+2}, v{lse}
v_mov_b32 v{og+4*tp+3}, s52
buffer_store_dwordx4 {rng(og+4*tp,4)}, v{t0}, s[28:31], s57 offen offset:{tp*64} sc1""")
    ST_("o published")
    gg = B16
    a(f"""
s_lshl_b32 s38, s3, 5
s_lshl_b32 s53, s4, 2
s_add_u32 s38, s38, s53
s_add_u32 s38, s38, s6
s_lshl_b32 s38, s38, 12             ; *8*512
s_and_b32 s53, s46, 1
s_lshl_b32 s53, s53, 8
s_add_u32 s38, s38, s53
s_add_u32 s58, s38, {OW}
v_lshlrev_b32 v{t1}, 9, v{g}          ; cs*512
v_lshl_add_u32 v{t1}, v{n16}, 4, v{t1}
s_mov_b32 s55, {spin}
buffer_load_dwordx4 {rng(gg,4)}, v{t1}, s[28:31], s58 offen sc1
buffer_load_dwordx4 {rng(gg+4,4)}, v{t1}, s[28:31], s58 offen offset:2048 sc1
s_waitcnt vmcnt(4)
""")
    wb = A32
    for s in range(2):
        for tp in range(2):
            for hh in range(2):
                a(f"ds_read_b64_tr_b16 {rng(wb+8*s+4*tp+2*hh,2)}, v{vWOr+tp} offset:{s*2048 + hh*256}")
    a(f"""
s_waitcnt vmcnt(0)
L_ochk:
v_cmp_ne_u32 vcc, s52, v{gg+3}
v_cmp_ne_u32 s[38:39], s52, v{gg+7}
s_or_b64 vcc, vcc, s[38:39]
s_cbranch_vccz L_ook
s_sub_u32 s55, s55, 1
s_cbranch_scc1 L_ook
buffer_load_dwordx4 {rng(gg,4)}, v{t1}, s[28:31], s58 offen sc1
buffer_load_dwordx4 {rng(gg+4,4)}, v{t1}, s[28:31], s58 offen offset:2048 sc1
s_waitcnt vmcnt(0)
s_branch L_ochk
L_ook:
""")
    ST_("o gathered")
    e0 = va("e0"); e1 = va("e1"); u = A32 + 16; S = va("S"); oo = A32 + 24; ot = A32 + 28
    a(f"""
v_max_f32 v{M}, v{gg+2}, v{gg+6}
v_mov_b32 v{mt}, v{M}
v_lshlrev_b32 v{u}, 16, v{gg}
v_and_b32 v{u+1}, 0xffff0000, v{gg}
v_permlane16_swap_b32 v{M}, v{mt}
v_lshlrev_b32 v{u+2}, 16, v{gg+1}
v_max_f32 v{M}, v{M}, v{mt}
v_mov_b32 v{mt}, v{M}
v_and_b32 v{u+3}, 0xffff0000, v{gg+1}
v_lshlrev_b32 v{u+4}, 16, v{gg+4}
v_permlane32_swap_b32 v{M}, v{mt}
v_and_b32 v{u+5}, 0xffff0000, v{gg+4}
v_max_f32 v{M}, v{M}, v{mt}
v_lshlrev_b32 v{u+6}, 16, v{gg+5}
v_sub_f32 v{e0}, v{gg+2}, v{M}
v_sub_f32 v{e1}, v{gg+6}, v{M}
v_exp_f32 v{e0}, v{e0}
v_exp_f32 v{e1}, v{e1}
v_and_b32 v{u+7}, 0xffff0000, v{gg+5}
v_add_f32 v{S}, v{e0}, v{e1}
""")
    for r in range(4): a(f"v_mul_f32 v{oo+r}, v{e0}, v{u+r}")
    for r in range(4): a(f"v_fmac_f32 v{oo+r}, v{e1}, v{u+4+r}")
    for (perm) in ("v_permlane16_swap_b32", "v_permlane32_swap_b32"):
        a(f"v_mov_b32 v{mt}, v{S}")
        for r in range(4): a(f"v_mov_b32 v{ot+r}, v{oo+r}")
        a(f"{perm} v{S}, v{mt}")
        for r in range(4): a(f"{perm} v{oo+r}, v{ot+r}")
        a(f"v_add_f32 v{S}, v{S}, v{mt}")
        for r in range(4): a(f"v_add_f32 v{oo+r}, v{oo+r}, v{ot+r}")
    ob = B16 + 8; opk = va("opk", 2, 2)
    a(f"""
v_rcp_f32 v{S}, v{S}
s_mul_i32 s38, s3, 192
v_lshlrev_b32 v{t0}, 3, v{n16}
v_add_u32 v{t0}, s38, v{t0}
v_mul_f32 v{oo}, v{oo}, v{S}
v_mul_f32 v{oo+1}, v{oo+1}, v{S}
v_mul_f32 v{oo+2}, v{oo+2}, v{S}
v_mul_f32 v{oo+3}, v{oo+3}, v{S}
v_cvt_pk_bf16_f32 v{opk}, v{oo}, v{oo+1}
v_cvt_pk_bf16_f32 v{opk+1}, v{oo+2}, v{oo+3}
v_mul_u32_u24 v{t3}, 192, v{n4}
v_lshl_add_u32 v{t3}, v{g}, 4, v{t3}
s_mov_b64 exec, 0xffff
ds_write_b64 v{t0}, {rng(opk,2)} offset:{OL}
s_mov_b64 exec, -1
s_waitcnt lgkmcnt(0)
s_barrier
ds_read_b128 {rng(ob,4)}, v{t3} offset:{OL}
ds_read_b128 {rng(ob+4,4)}, v{t3} offset:{OL+64}
s_lshl_b32 s38, s49, 6
s_add_u32 s38, s38, s47
s_lshl_b32 s59, s38, 11
s_lshl_b32 s53, s3, 7
s_add_u32 s38, s59, s53
s_add_u32 s57, s38, {OX}
v_lshlrev_b32 v{t0}, 9, v{n16}
v_lshl_add_u32 v{t0}, v{g}, 4, v{t0}
v_cmp_gt_u32 vcc, 4, v{n16}
v_mov_b32 v{t1}, 0x7ffffff0
s_mov_b32 s36, 0x07060503
v_cndmask_b32 v{t0}, v{t1}, v{t0}, vcc
""")
    y = C32; yg = C32 + 8
    for s in range(2):
        a(f"s_waitcnt lgkmcnt({1-s})")
        for tp in range(2):
            c = "0" if s == 0 else rng(y+4*tp,4)
            a(f"v_mfma_f32_16x16x32_bf16 {rng(y+4*tp,4)}, {rng(wb+8*s+4*tp,4)}, {rng(ob+4*s,4)}, {c}")
    a(f"""
s_mov_b32 s37, 0x07060502
s_mov_b32 s40, 0x07060501
s_nop 5
""")
    for tp in range(2):
        a(f"""v_perm_b32 v{yg+4*tp}, v{y+4*tp}, v{y+4*tp+3}, s36
v_perm_b32 v{yg+4*tp+1}, v{y+4*tp+1}, v{y+4*tp+3}, s37
v_perm_b32 v{yg+4*tp+2}, v{y+4*tp+2}, v{y+4*tp+3}, s40
v_mov_b32 v{yg+4*tp+3}, s52
buffer_store_dwordx4 {rng(yg+4*tp,4)}, v{t0}, s[28:31], s57 offen offset:{tp*64} sc1""")
    ST_("out partial published")
    fg = C32 + 16; z = C32 + 24; zt = va("zt", 4)
    a(f"""
s_cmp_lg_u32 s3, 0
s_cbranch_scc1 L_fin
s_lshl_b32 s38, s49, 17             ; cg*64*2048
s_lshl_b32 s53, s47, 5              ; 2i*16
s_add_u32 s38, s38, s53
s_add_u32 s58, s38, {OX}
s_add_u32 s59, s58, 65536
v_lshrrev_b32 v{t1}, 1, v{l}
v_lshlrev_b32 v{t1}, 11, v{t1}
v_and_b32 v{t2}, 1, v{l}
v_lshl_or_b32 v{t1}, v{t2}, 4, v{t1}
s_mov_b32 s55, {spin}
L_fpoll:
buffer_load_dwordx4 {rng(fg,4)}, v{t1}, s[28:31], s58 offen sc1
buffer_load_dwordx4 {rng(fg+4,4)}, v{t1}, s[28:31], s59 offen sc1
s_waitcnt vmcnt(0)
v_cmp_ne_u32 vcc, s52, v{fg+3}
v_cmp_ne_u32 s[38:39], s52, v{fg+7}
s_or_b64 vcc, vcc, s[38:39]
s_cbranch_vccz L_fok
s_sub_u32 s55, s55, 1
s_cbranch_scc0 L_fpoll
L_fok:
""")
    ST_("final gathered")
    a(f"""
s_mov_b32 s36, 0x04000c0c
s_mov_b32 s37, 0x0706000c
v_perm_b32 v{z+3}, v{fg}, v{fg+1}, s36
v_perm_b32 v{z+7}, v{fg+4}, v{fg+5}, s36
v_perm_b32 v{z+3}, v{z+3}, v{fg+2}, s37
v_perm_b32 v{z+7}, v{z+7}, v{fg+6}, s37
v_add_f32 v{z}, v{fg}, v{fg+4}
v_add_f32 v{z+1}, v{fg+1}, v{fg+5}
v_add_f32 v{z+2}, v{fg+2}, v{fg+6}
v_add_f32 v{z+3}, v{z+3}, v{z+7}
""")
    for dpp in ("quad_perm:[2,3,0,1]", "row_half_mirror", "row_mirror"):
        pass
    a("s_nop 1")
    for ctl in ("quad_perm:[2,3,0,1]", "row_ror:4", "row_ror:8"):
        for r in range(4):
            a(f"v_add_f32_dpp v{z+r}, v{z+r}, v{z+r} {ctl} row_mask:0xf bank_mask:0xf")
    for perm in ("v_permlane16_swap_b32", "v_permlane32_swap_b32"):
        for r in range(4): a(f"v_mov_b32 v{zt+r}, v{z+r}")
        for r in range(4): a(f"{perm} v{z+r}, v{zt+r}")
        for r in range(4): a(f"v_add_f32 v{z+r}, v{z+r}, v{zt+r}")
    a(f"""
v_cvt_pk_bf16_f32 v{z}, v{z}, v{z+1}
v_cvt_pk_bf16_f32 v{z+1}, v{z+2}, v{z+3}
; out offset: (b*512 + cg*128 + (i%16)*8 + 4*(l&1))*2, b = i/16 ; lanes >= 2 OOB
s_lshr_b32 s38, s47, 4
s_lshl_b32 s38, s38, 10
s_lshl_b32 s53, s49, 8
s_add_u32 s38, s38, s53
s_and_b32 s53, s47, 15
s_lshl_b32 s53, s53, 4
s_add_u32 s38, s38, s53
v_lshlrev_b32 v{t2}, 3, v{l}
v_add_u32 v{t2}, s38, v{t2}
v_cmp_gt_u32 vcc, 2, v{l}
v_mov_b32 v{t3}, 0x7ffffff0
s_nop 0
v_cndmask_b32 v{t2}, v{t3}, v{t2}, vcc
buffer_store_dwordx2 {rng(z,2)}, v{t2}, s[32:35], 0 offen
s_cmp_lg_u32 s2, 0
s_cbranch_scc1 L_fin
v_mov_b32 v{t0}, s52
v_mov_b32 v{t1}, 0
s_mov_b64 exec, 1
buffer_store_dword v{t0}, v{t1}, s[28:31], 0 offen sc1
s_mov_b64 exec, -1
L_fin:
""")
    if stamp:
        ST_("end")
        n = nst[0]
        a(f"""
s_waitcnt lgkmcnt(0) vmcnt(0)
s_lshl_b32 s4, s2, 2
s_add_u32 s4, s4, s3
s_lshl_b32 s4, s4, 6
s_add_u32 s4, s4, {ST}
v_mov_b32 v{t1}, 0
s_mov_b64 exec, 1
""")
        for i in range(n):
            a(f"v_mov_b32 v{t0}, s{60+2*i}\nbuffer_store_dword v{t0}, v{t1}, s[28:31], s4 offen offset:{4*i}\ns_nop 0")
    a("L_end:\ns_endpgm")
    body = a.text()
    nv = va.hi
    s = header([f"; @launch grid=(256,1,1) block=(256,1,1) lds={LDS_BYTES}"]) + kernel_begin(KNAME) + body + RODATA + descriptor(KNAME, nv, 96)
    errs = haz.check(body)
    for e in errs: print("HAZ", e)
    return s, nv, nst[0]
if __name__ == "__main__":
    out = sys.argv[1] if len(sys.argv) > 1 else "a1.s"
    kw = {}
    for x in sys.argv[2:]:
        k, v = x.split("=")
        kw[k] = (v == "1") if k == "stamp" else (int(v) if v.isdigit() else (" " + v if v else ""))
    s, nv, ns = gen(**kw)
    open(out, "w").write(s)
    print("vgprs", nv, "stamps", ns, "lds", LDS_BYTES)
```

```python
import sys
sys.path.insert(0, "my")
from ag import *
import haz

QX = 0x1000
OW = 0x20000
OX = 0x100000
ST = 0x200000
WS_BYTES = 268435456
QRED = 0
QL = QRED + 1024
PL = QL + 1280
SL = PL + 1024
OL = SL + 128
XL = 4352; WQ = XL + 4096; KL = WQ + 16384; VL = KL + 32768; WO = VL + 32768
LDS_BYTES = WO + 16384
assert OL + 768 <= XL
CSC = 0.08838834764831845 * 1.4426950408889634
import struct
def f32(x): return "0x%08x" % struct.unpack("<I", struct.pack("<f", x))[0]

class V:
    def __init__(s): s.n = 0; s.names = {}
    def __call__(s, name, cnt=1, align=1):
        s.n = (s.n + align - 1) // align * align
        r = s.n; s.n += cnt; s.names[name] = r; s.hi = max(getattr(s, 'hi', 0), s.n)
        return r
    def mark(s): return s.n
    def release(s, m): s.n = m
def rng(r, n): return f"v[{r}:{r+n-1}]"

def gen(stamp=False, nt_kv="", nt_w="", v1cnt=6, spin=200000, amp=-1, ampk=10, ampref=0):
    if amp >= 0: stamp = True
    a = A(); va = V()
    v_tid = va("tid"); l = va("lane"); t0 = va("t0"); t1 = va("t1"); t2 = va("t2"); t3 = va("t3")
    vX = va("vX"); vWQ = va("vWQ"); vK = va("vK", 4); vV = va("vV"); vWO = va("vWO")
    nst = [0]
    def ST_(label):
        if stamp:
            i = nst[0]; nst[0] += 1
            assert i < 15
            a(f"s_memrealtime s[{60+2*i}:{61+2*i}]   ; stamp {i} {label}")
    a(f"""
s_cmp_ge_u32 s2, 256
s_cbranch_scc1 L_end
s_load_dwordx2 s[8:9], s[0:1], 0
s_load_dwordx2 s[20:21], s[0:1], 24
s_load_dwordx2 s[12:13], s[0:1], 8
s_load_dwordx2 s[16:17], s[0:1], 16
s_load_dwordx2 s[24:25], s[0:1], 32
s_load_dwordx2 s[32:33], s[0:1], 40
s_load_dwordx2 s[28:29], s[0:1], 56
""")
    ST_("entry")
    a(f"""
v_lshrrev_b32 v{t0}, 6, v0
v_and_b32 v{l}, 63, v0
s_and_b32 s4, s2, 7
v_readfirstlane_b32 s3, v{t0}       ; w = wave
s_lshr_b32 s5, s2, 3                ; r
s_lshr_b32 s6, s5, 3                ; b
s_and_b32 s7, s5, 7                 ; c
s_mov_b32 s10, 4096
s_mov_b32 s11, 0x20000
s_mov_b32 s22, 4194304
s_mov_b32 s23, 0x20000
s_mov_b32 s14, 33554432
s_mov_b32 s15, 0x20000
s_mov_b32 s18, 33554432
s_mov_b32 s19, 0x20000
s_mov_b32 s26, 4194304
s_mov_b32 s27, 0x20000
s_mov_b32 s30, {WS_BYTES}
s_mov_b32 s31, 0x20000
s_mov_b32 s34, 4096
s_mov_b32 s35, 0x20000
; x voffset: (l>>4)*1024 + ((l&15) ^ (4*(l>>4)))*16
v_lshrrev_b32 v{t0}, 4, v{l}           ; l>>4
v_and_b32 v{t1}, 15, v{l}              ; l&15
v_lshlrev_b32 v{t2}, 2, v{t0}
v_xor_b32 v{t2}, v{t1}, v{t2}
v_lshlrev_b32 v{t2}, 4, v{t2}
v_lshl_add_u32 v{vX}, v{t0}, 10, v{t2}
; K voffsets: (l>>4)*256 + ((l&15)^(l>>4))*16  ^ (64*i)
v_xor_b32 v{t2}, v{t1}, v{t0}
v_lshlrev_b32 v{t2}, 4, v{t2}
v_lshl_add_u32 v{vK}, v{t0}, 8, v{t2}
v_xor_b32 v{vK+1}, 64, v{vK}
v_xor_b32 v{vK+2}, 0x80, v{vK}
v_xor_b32 v{vK+3}, 0xc0, v{vK}
v_bfe_u32 v{t2}, v{l}, 1, 2
v_bfe_u32 v{t3}, v{l}, 3, 2
v_lshl_or_b32 v{t2}, v{t3}, 3, v{t2}
v_bfe_u32 v{t3}, v{l}, 5, 1
v_lshl_or_b32 v{t2}, v{t3}, 2, v{t2}
v_lshlrev_b32 v{t2}, 13, v{t2}
v_and_b32 v{t3}, 1, v{l}
v_lshl_or_b32 v{vWQ}, v{t3}, 4, v{t2}
s_lshl_b32 s36, s3, 8               ; x soff = w*256
s_lshl_b32 s37, s4, 10
s_lshl_b32 s38, s5, 5
s_add_u32 s37, s37, s38
s_lshl_b32 s38, s3, 20
s_add_u32 s37, s37, s38
s_lshl_b32 s39, s6, 3
s_add_u32 s39, s39, s4
s_lshl_b32 s39, s39, 20
s_lshl_b32 s38, s7, 15
s_add_u32 s39, s39, s38
s_add_u32 s39, s39, 786432
s_lshl_b32 s38, s3, 13
s_add_u32 s40, s39, s38
s_lshl_b32 s41, s3, 10
s_add_u32 s41, s41, {XL}
s_lshl_b32 s42, s3, 12              ; w*4096
s_lshl_b32 s43, s3, 13              ; w*8192
s_add_u32 s90, s42, {WQ}
s_add_u32 s91, s43, {KL}
s_add_u32 s92, s43, {VL}
s_add_u32 s93, s42, {WO}
s_mov_b32 m0, s41
s_waitcnt lgkmcnt(0)
""")
    ST_("karg")
    if amp >= 0:
        a(f"""s_waitcnt lgkmcnt(0)
s_lshl_b32 s38, s2, 2
s_add_u32 s38, s38, {ST}
v_mov_b32 v{t0}, s60
v_mov_b32 v{t1}, 0
s_mov_b64 exec, 1
buffer_store_dword v{t0}, v{t1}, s[28:31], s38 offen sc1
s_mov_b64 exec, -1""")
    a(f"buffer_load_dwordx4 v{vX}, s[8:11], s36 offen lds")
    a(f"s_mov_b32 m0, s90")
    for i in range(4):
        if i: a(f"s_add_u32 s37, s37, {(1<<18) - 1024}")
        else: a("s_nop 0")
        a(f"buffer_load_dwordx4 v{vWQ}, s[20:23], s37 offen offset:{i*1024}{nt_w} lds")
    a(f"s_mov_b32 m0, s91")
    a("s_load_dword s44, s[28:29], 0        ; epoch")
    for i in range(8):
        if i == 4:
            a("s_add_u32 m0, m0, 4096\ns_add_u32 s40, s40, 4096")
        a(f"buffer_load_dwordx4 v{vK+i%4}, s[12:15], s40 offen offset:{(i%4)*1024}{nt_kv} lds")
    ST_("issued1")
    g = va("g"); n16 = va("n16"); n4 = va("n4")
    vXr = va("vXr"); vWQr = va("vWQr"); vKr = va("vKr", 4); vVr = va("vVr", 2); vWOr = va("vWOr", 2)
    a(f"""
v_lshrrev_b32 v{g}, 4, v{l}            ; g = l>>4
v_and_b32 v{n16}, 15, v{l}             ; n = l&15
v_and_b32 v{n4}, 3, v{l}               ; n&3 == l&3
; V voffset: (l>>2)*256 + ((l&3) ^ (((l>>4)&1)<<1))*16
v_lshrrev_b32 v{t0}, 2, v{l}
v_and_b32 v{t1}, 1, v{g}
v_lshlrev_b32 v{t1}, 1, v{t1}          ; (g&1)<<1
v_xor_b32 v{t2}, v{n4}, v{t1}
v_lshlrev_b32 v{t2}, 4, v{t2}
v_lshl_add_u32 v{vV}, v{t0}, 8, v{t2}
v_lshrrev_b32 v{t3}, 5, v{l}
v_lshlrev_b32 v{t3}, 1, v{t3}
v_xor_b32 v{t2}, v{n4}, v{t3}
v_lshlrev_b32 v{t2}, 4, v{t2}
v_lshl_add_u32 v{vWO}, v{t0}, 10, v{t2}
v_lshlrev_b32 v{t2}, 2, v{n4}
v_xor_b32 v{t2}, v{g}, v{t2}
v_lshlrev_b32 v{t2}, 4, v{t2}
v_lshl_add_u32 v{t2}, v{n4}, 8, v{t2}
v_add_u32 v{vXr}, s41, v{t2}
v_lshlrev_b32 v{t2}, 3, v{l}
v_add_u32 v{vWQr}, s90, v{t2}
v_xor_b32 v{t2}, v{g}, v{n16}
v_lshlrev_b32 v{t2}, 4, v{t2}
v_lshl_add_u32 v{t2}, v{n16}, 8, v{t2}
v_add_u32 v{vKr}, s91, v{t2}
v_xor_b32 v{vKr+1}, 64, v{vKr}
v_xor_b32 v{vKr+2}, 0x80, v{vKr}
v_xor_b32 v{vKr+3}, 0xc0, v{vKr}
v_bfe_u32 v{t0}, v{l}, 2, 2            ; r
v_lshl_add_u32 v{t2}, v{g}, 2, v{t0}   ; 4g+r
v_lshlrev_b32 v{t2}, 6, v{t2}
v_lshl_add_u32 v{t2}, v{n4}, 3, v{t2}  ; + c*8
v_and_b32 v{t1}, 1, v{g}
v_lshl_add_u32 v{t2}, v{t1}, 5, v{t2}  ; t'=0: (g&1)*32
v_add_u32 v{vVr}, s92, v{t2}
v_xor_b32 v{vVr+1}, 32, v{vVr}
v_lshl_add_u32 v{t2}, v{g}, 3, v{t0}
v_lshlrev_b32 v{t2}, 6, v{t2}
v_lshl_add_u32 v{t2}, v{n4}, 3, v{t2}
v_lshl_add_u32 v{t2}, v{t1}, 5, v{t2}
v_add_u32 v{vWOr}, s93, v{t2}
v_xor_b32 v{vWOr+1}, 32, v{vWOr}
s_lshl_b32 s38, s3, 6
s_add_u32 s45, s39, s38
s_lshr_b32 s46, s5, 2               ; r/4
s_lshl_b32 s47, s4, 3
s_add_u32 s47, s47, s46             ; p = g*8 + r/4
s_lshl_b32 s48, s47, 16             ; j0*1024 = p*64*1024
s_and_b32 s49, s5, 3                ; cg
s_lshl_b32 s38, s49, 8
s_add_u32 s48, s48, s38
s_lshl_b32 s38, s3, 6
s_add_u32 s48, s48, s38
""")
    vXs = va("vXs", 3)
    a(f"v_xor_b32 v{vXs}, 64, v{vXr}\nv_xor_b32 v{vXs+1}, 0x80, v{vXr}\nv_xor_b32 v{vXs+2}, 0xc0, v{vXr}")
    A32 = va("A32", 32, 4); B16 = va("B16", 16, 4); C32 = va("C32", 32, 4)
    xb = A32; wa = A32 + 16; acc = va("acc", 4, 4)
    a("s_waitcnt vmcnt(8)")
    ST_("wq landed")
    for s in range(4):
        xa = vXr if s == 0 else vXs + s - 1
        a(f"ds_read_b128 {rng(xb+4*s,4)}, v{xa}")
        a(f"ds_read_b64_tr_b16 {rng(wa+4*s,2)}, v{vWQr} offset:{s*1024}")
        a(f"ds_read_b64_tr_b16 {rng(wa+4*s+2,2)}, v{vWQr} offset:{s*1024 + 512}")
    for s in range(4):
        a(f"s_waitcnt lgkmcnt({3*(3-s)})")
        c = "0" if s == 0 else rng(acc,4)
        a(f"v_mfma_f32_16x16x32_bf16 {rng(acc,4)}, {rng(wa+4*s,4)}, {rng(xb+4*s,4)}, {c}")
    a(f"""
v_lshlrev_b32 v{t2}, 6, v{n4}
v_lshl_add_u32 v{t2}, v{g}, 4, v{t2}
s_lshl_b32 s38, s3, 8
v_add_u32 v{t2}, s38, v{t2}
s_mov_b32 s50, 0x000f000f
s_mov_b32 s51, 0x000f000f
v_and_b32 v{t0}, 7, v{l}
v_lshlrev_b32 v{t1}, 3, v{t0}
s_lshl_b32 s38, s3, 6
v_add_u32 v{t1}, s38, v{t1}
s_mov_b64 exec, s[50:51]
ds_write_b128 v{t2}, {rng(acc,4)} offset:{QRED}
s_mov_b64 exec, -1
s_waitcnt lgkmcnt(0)
s_barrier
""")
    qp = va("qp", 8, 2)
    for w2 in range(4):
        a(f"ds_read_b64 {rng(qp+2*w2,2)}, v{t1} offset:{QRED + w2*256}")
    a(f"""
s_mul_i32 s52, s44, 1664525
s_add_u32 s52, s52, 1013904223      ; tag
s_lshl_b32 s38, s4, 2
s_add_u32 s38, s38, s3
s_lshl_b32 s38, s38, 11
s_lshl_b32 s53, s5, 6
s_add_u32 s38, s38, s53
s_add_u32 s38, s38, {QX}
v_lshlrev_b32 v{t2}, 3, v{t0}
v_add_u32 v{t2}, s38, v{t2}
v_cmp_gt_u32 vcc, 8, v{l}
v_mov_b32 v{t3}, 0x7ffffff0
s_nop 0
v_cndmask_b32 v{t2}, v{t3}, v{t2}, vcc
s_waitcnt lgkmcnt(0)
v_add_f32 v{qp}, v{qp}, v{qp+2}
v_add_f32 v{qp+1}, v{qp+1}, v{qp+3}
v_add_f32 v{qp+4}, v{qp+4}, v{qp+6}
v_add_f32 v{qp+5}, v{qp+5}, v{qp+7}
v_add_f32 v{qp}, v{qp}, v{qp+4}
v_add_f32 v{qp+1}, v{qp+1}, v{qp+5}
v_cvt_pk_bf16_f32 v{qp}, v{qp}, v{qp+1}
v_mov_b32 v{qp+1}, s52
buffer_store_dwordx2 {rng(qp,2)}, v{t2}, s[28:31], 0 offen sc1
""")
    ST_("q published")
    a(f"s_mov_b32 m0, s92")
    def vload(i):
        if i % 4 == 0 and i: a("s_add_u32 m0, m0, 4096")
        if i: a(f"s_add_u32 s45, s45, {4096 - 1024 if i % 4 else 4096 + 3072}")
        else: a("s_nop 0")
        a(f"buffer_load_dwordx4 v{vV}, s[16:19], s45 offen offset:{(i%4)*1024}{nt_kv} lds")
    for i in range(v1cnt): vload(i)
    vG = va("vG"); gq = va("gq", 2, 2)
    a(f"""
s_lshl_b32 s38, s4, 2
s_add_u32 s38, s38, s6
s_lshl_b32 s38, s38, 11
s_lshl_b32 s53, s3, 9
s_add_u32 s38, s38, s53
s_add_u32 s54, s38, {QX}
v_lshlrev_b32 v{vG}, 3, v{l}
s_waitcnt vmcnt({1 + v1cnt})
""")
    ST_("K landed")
    a(f"buffer_load_dwordx2 {rng(gq,2)}, v{vG}, s[28:31], s54 offen sc1")
    for i in range(v1cnt, 8): vload(i)
    a(f"s_mov_b32 m0, s93")
    for i in range(4):
        if i: a(f"s_add_u32 s48, s48, {16384 - 1024}")
        else: a("s_nop 0")
        a(f"buffer_load_dwordx4 v{vWO}, s[24:27], s48 offen offset:{i*1024}{nt_w} lds")
    ka = A32
    for t in range(2):
        for s in range(4):
            a(f"ds_read_b128 {rng(ka+16*t+4*s,4)}, v{vKr+s} offset:{t*4096}")
    nafter = (8 - v1cnt) + 4
    a(f"""
s_mov_b32 s55, {spin}
s_waitcnt vmcnt({nafter})
L_qchk:
v_cmp_ne_u32 vcc, s52, v{gq+1}
s_cbranch_vccz L_qok
s_sub_u32 s55, s55, 1
s_cbranch_scc1 L_qok
s_sleep 1
buffer_load_dwordx2 {rng(gq,2)}, v{vG}, s[28:31], s54 offen sc1
s_waitcnt vmcnt(0)
s_branch L_qchk
L_qok:
""")
    ST_("q gathered")
    qb = B16
    a(f"""
v_lshlrev_b32 v{t2}, 2, v{l}
s_mul_i32 s38, s3, 320
v_add_u32 v{t2}, s38, v{t2}
ds_write_b32 v{t2}, v{gq} offset:{QL}
v_mul_u32_u24 v{t3}, 320, v{n4}
v_lshl_add_u32 v{t3}, v{g}, 4, v{t3}
s_waitcnt lgkmcnt(0)
s_barrier
""")
    for s in range(4):
        a(f"ds_read_b128 {rng(qb+4*s,4)}, v{t3} offset:{QL + s*64}")
    sc = C32
    for s in range(4):
        a(f"s_waitcnt lgkmcnt({3-s})")
        for t in range(2):
            c = "0" if s == 0 else rng(sc+4*t,4)
            a(f"v_mfma_f32_16x16x32_bf16 {rng(sc+4*t,4)}, {rng(ka+16*t+4*s,4)}, {rng(qb+4*s,4)}, {c}")
    m = va("m"); mt = va("mt"); ls = va("ls"); pk = va("pk", 4, 4); st2 = va("st2", 2, 2)
    a(f"""
v_lshlrev_b32 v{t2}, 6, v{n4}
v_lshl_add_u32 v{t2}, v{g}, 4, v{t2}
s_lshl_b32 s38, s3, 8
v_add_u32 v{t0}, s38, v{t2}
v_lshlrev_b32 v{t1}, 5, v{n4}
s_lshl_b32 s38, s3, 3
v_add_u32 v{t3}, s38, v{t1}
s_mov_b32 s56, {f32(CSC)}
s_nop 1
v_max3_f32 v{m}, v{sc}, v{sc+1}, v{sc+2}
v_max3_f32 v{m}, v{m}, v{sc+3}, v{sc+4}
v_max3_f32 v{m}, v{m}, v{sc+5}, v{sc+6}
v_max_f32 v{m}, v{m}, v{sc+7}
v_mov_b32 v{mt}, v{m}
s_nop 1
v_permlane16_swap_b32 v{m}, v{mt}
s_nop 0
v_max_f32 v{m}, v{m}, v{mt}
v_mov_b32 v{mt}, v{m}
s_nop 1
v_permlane32_swap_b32 v{m}, v{mt}
s_nop 0
v_max_f32 v{m}, v{m}, v{mt}
v_mul_f32 v{m}, s56, v{m}
""")
    for i in range(8):
        a(f"v_fma_f32 v{sc+i}, v{sc+i}, s56, -v{m}")
    for i in range(8):
        a(f"v_exp_f32 v{sc+i}, v{sc+i}")
    a(f"""
s_nop 0
v_add_f32 v{ls}, v{sc}, v{sc+1}
v_add_f32 v{mt}, v{sc+2}, v{sc+3}
v_cvt_pk_bf16_f32 v{pk}, v{sc}, v{sc+1}
v_cvt_pk_bf16_f32 v{pk+1}, v{sc+2}, v{sc+3}
v_add_f32 v{ls}, v{ls}, v{mt}
v_add_f32 v{mt}, v{sc+4}, v{sc+5}
v_cvt_pk_bf16_f32 v{pk+2}, v{sc+4}, v{sc+5}
v_add_f32 v{ls}, v{ls}, v{mt}
v_add_f32 v{mt}, v{sc+6}, v{sc+7}
v_cvt_pk_bf16_f32 v{pk+3}, v{sc+6}, v{sc+7}
v_add_f32 v{ls}, v{ls}, v{mt}
s_mov_b64 exec, s[50:51]
ds_write_b128 v{t0}, {rng(pk,4)} offset:{PL}
s_mov_b64 exec, -1
v_mov_b32 v{mt}, v{ls}
s_nop 1
v_permlane16_swap_b32 v{ls}, v{mt}
s_nop 0
v_add_f32 v{ls}, v{ls}, v{mt}
v_mov_b32 v{mt}, v{ls}
s_nop 1
v_permlane32_swap_b32 v{ls}, v{mt}
s_nop 0
v_add_f32 v{st2+1}, v{ls}, v{mt}
v_mov_b32 v{st2}, v{m}
s_mov_b64 exec, s[50:51]
ds_write_b64 v{t3}, {rng(st2,2)} offset:{SL}
s_mov_b64 exec, -1
s_waitcnt lgkmcnt(0)
s_barrier
""")
    ST_("P written")
    pb = B16; sv = va("sv", 8, 4); vaop = A32
    for ks in range(4):
        a(f"ds_read_b128 {rng(pb+4*ks,4)}, v{t2} offset:{PL + ks*256}")
    a(f"ds_read_b128 {rng(sv,4)}, v{t1} offset:{SL}")
    a(f"ds_read_b128 {rng(sv+4,4)}, v{t1} offset:{SL+16}")
    a("s_waitcnt vmcnt(4)")
    ST_("V landed")
    def vread(ks):
        for tp in range(2):
            for e in range(2):
                a(f"ds_read_b64_tr_b16 {rng(vaop+8*ks+4*tp+2*e,2)}, v{vVr+tp} offset:{ks*2048 + e*1024}")
    D = C32
    def pv(ks):
        for tp in range(2):
            a(f"v_mfma_f32_16x16x32_bf16 {rng(D+8*ks+4*tp,4)}, {rng(vaop+8*ks+4*tp,4)}, {rng(pb+4*ks,4)}, 0")
    vread(0); vread(1)
    M = va("M"); ff = va("ff", 4); L = va("L")
    a(f"""
s_waitcnt lgkmcnt(8)
v_max3_f32 v{M}, v{sv}, v{sv+2}, v{sv+4}
v_max_f32 v{M}, v{M}, v{sv+6}
""")
    vread(2)
    a(f"""
v_sub_f32 v{ff}, v{sv}, v{M}
v_sub_f32 v{ff+1}, v{sv+2}, v{M}
v_sub_f32 v{ff+2}, v{sv+4}, v{M}
v_sub_f32 v{ff+3}, v{sv+6}, v{M}
s_waitcnt lgkmcnt(8)
""")
    pv(0)
    vread(3)
    a(f"""
v_exp_f32 v{ff}, v{ff}
v_exp_f32 v{ff+1}, v{ff+1}
v_exp_f32 v{ff+2}, v{ff+2}
v_exp_f32 v{ff+3}, v{ff+3}
s_waitcnt lgkmcnt(8)
""")
    pv(1)
    a(f"""
v_mul_f32 v{L}, v{ff}, v{sv+1}
v_fmac_f32 v{L}, v{ff+1}, v{sv+3}
s_waitcnt lgkmcnt(4)
""")
    pv(2)
    a(f"""
v_fmac_f32 v{L}, v{ff+2}, v{sv+5}
v_fmac_f32 v{L}, v{ff+3}, v{sv+7}
s_waitcnt lgkmcnt(0)
""")
    pv(3)
    R = va("R"); lse = va("lse"); og = va("og", 8, 4)
    a(f"""
v_rcp_f32 v{R}, v{L}
v_log_f32 v{lse}, v{L}
s_nop 0
v_mul_f32 v{ff}, v{ff}, v{R}
v_mul_f32 v{ff+1}, v{ff+1}, v{R}
v_mul_f32 v{ff+2}, v{ff+2}, v{R}
v_mul_f32 v{ff+3}, v{ff+3}, v{R}
v_add_f32 v{lse}, v{lse}, v{M}
s_lshl_b32 s38, s6, 5
s_lshl_b32 s53, s4, 2
s_add_u32 s38, s38, s53
s_lshl_b32 s38, s38, 3
s_add_u32 s38, s38, s7
s_lshl_b32 s38, s38, 9              ; *32*16
s_lshl_b32 s53, s3, 7               ; 8w*16
s_add_u32 s38, s38, s53
s_add_u32 s57, s38, {OW}
v_lshlrev_b32 v{t0}, 12, v{n16}       ; n*8*512
v_lshl_add_u32 v{t0}, v{g}, 4, v{t0}
v_cmp_gt_u32 vcc, 4, v{n16}
v_mov_b32 v{t3}, 0x7ffffff0
s_nop 0
v_cndmask_b32 v{t0}, v{t3}, v{t0}, vcc
""")
    o = va("o", 8, 4)
    for tp in range(2):
        for r in range(4):
            a(f"v_mul_f32 v{o+4*tp+r}, v{ff}, v{D+4*tp+r}")
    for ks in range(1, 4):
        for tp in range(2):
            for r in range(4):
                a(f"v_fmac_f32 v{o+4*tp+r}, v{ff+ks}, v{D+8*ks+4*tp+r}")
    for tp in range(2):
        a(f"""v_cvt_pk_bf16_f32 v{og+4*tp}, v{o+4*tp}, v{o+4*tp+1}
v_cvt_pk_bf16_f32 v{og+4*tp+1}, v{o+4*tp+2}, v{o+4*tp+3}
v_mov_b32 v{og+4*tp+2}, v{lse}
v_mov_b32 v{og+4*tp+3}, s52
buffer_store_dwordx4 {rng(og+4*tp,4)}, v{t0}, s[28:31], s57 offen offset:{tp*64} sc1""")
    ST_("o published")
    gg = B16
    a(f"""
s_lshl_b32 s38, s3, 5
s_lshl_b32 s53, s4, 2
s_add_u32 s38, s38, s53
s_add_u32 s38, s38, s6
s_lshl_b32 s38, s38, 12             ; *8*512
s_and_b32 s53, s46, 1
s_lshl_b32 s53, s53, 8
s_add_u32 s38, s38, s53
s_add_u32 s58, s38, {OW}
v_lshlrev_b32 v{t1}, 9, v{g}          ; cs*512
v_lshl_add_u32 v{t1}, v{n16}, 4, v{t1}
s_mov_b32 s55, {spin}
buffer_load_dwordx4 {rng(gg,4)}, v{t1}, s[28:31], s58 offen sc1
buffer_load_dwordx4 {rng(gg+4,4)}, v{t1}, s[28:31], s58 offen offset:2048 sc1
s_waitcnt vmcnt(4)
""")
    wb = A32
    for s in range(2):
        for tp in range(2):
            for hh in range(2):
                a(f"ds_read_b64_tr_b16 {rng(wb+8*s+4*tp+2*hh,2)}, v{vWOr+tp} offset:{s*2048 + hh*256}")
    a(f"""
s_waitcnt vmcnt(0)
L_ochk:
v_cmp_ne_u32 vcc, s52, v{gg+3}
v_cmp_ne_u32 s[38:39], s52, v{gg+7}
s_or_b64 vcc, vcc, s[38:39]
s_cbranch_vccz L_ook
s_sub_u32 s55, s55, 1
s_cbranch_scc1 L_ook
buffer_load_dwordx4 {rng(gg,4)}, v{t1}, s[28:31], s58 offen sc1
buffer_load_dwordx4 {rng(gg+4,4)}, v{t1}, s[28:31], s58 offen offset:2048 sc1
s_waitcnt vmcnt(0)
s_branch L_ochk
L_ook:
""")
    ST_("o gathered")
    e0 = va("e0"); e1 = va("e1"); u = A32 + 16; S = va("S"); oo = A32 + 24; ot = A32 + 28
    a(f"""
v_max_f32 v{M}, v{gg+2}, v{gg+6}
v_mov_b32 v{mt}, v{M}
v_lshlrev_b32 v{u}, 16, v{gg}
v_and_b32 v{u+1}, 0xffff0000, v{gg}
v_permlane16_swap_b32 v{M}, v{mt}
v_lshlrev_b32 v{u+2}, 16, v{gg+1}
v_max_f32 v{M}, v{M}, v{mt}
v_mov_b32 v{mt}, v{M}
v_and_b32 v{u+3}, 0xffff0000, v{gg+1}
v_lshlrev_b32 v{u+4}, 16, v{gg+4}
v_permlane32_swap_b32 v{M}, v{mt}
v_and_b32 v{u+5}, 0xffff0000, v{gg+4}
v_max_f32 v{M}, v{M}, v{mt}
v_lshlrev_b32 v{u+6}, 16, v{gg+5}
v_sub_f32 v{e0}, v{gg+2}, v{M}
v_sub_f32 v{e1}, v{gg+6}, v{M}
v_exp_f32 v{e0}, v{e0}
v_exp_f32 v{e1}, v{e1}
v_and_b32 v{u+7}, 0xffff0000, v{gg+5}
v_add_f32 v{S}, v{e0}, v{e1}
""")
    for r in range(4): a(f"v_mul_f32 v{oo+r}, v{e0}, v{u+r}")
    for r in range(4): a(f"v_fmac_f32 v{oo+r}, v{e1}, v{u+4+r}")
    for (perm) in ("v_permlane16_swap_b32", "v_permlane32_swap_b32"):
        a(f"v_mov_b32 v{mt}, v{S}")
        for r in range(4): a(f"v_mov_b32 v{ot+r}, v{oo+r}")
        a(f"{perm} v{S}, v{mt}")
        for r in range(4): a(f"{perm} v{oo+r}, v{ot+r}")
        a(f"v_add_f32 v{S}, v{S}, v{mt}")
        for r in range(4): a(f"v_add_f32 v{oo+r}, v{oo+r}, v{ot+r}")
    ob = B16 + 8; opk = va("opk", 2, 2)
    a(f"""
v_rcp_f32 v{S}, v{S}
s_mul_i32 s38, s3, 192
v_lshlrev_b32 v{t0}, 3, v{n16}
v_add_u32 v{t0}, s38, v{t0}
v_mul_f32 v{oo}, v{oo}, v{S}
v_mul_f32 v{oo+1}, v{oo+1}, v{S}
v_mul_f32 v{oo+2}, v{oo+2}, v{S}
v_mul_f32 v{oo+3}, v{oo+3}, v{S}
v_cvt_pk_bf16_f32 v{opk}, v{oo}, v{oo+1}
v_cvt_pk_bf16_f32 v{opk+1}, v{oo+2}, v{oo+3}
v_mul_u32_u24 v{t3}, 192, v{n4}
v_lshl_add_u32 v{t3}, v{g}, 4, v{t3}
s_mov_b64 exec, 0xffff
ds_write_b64 v{t0}, {rng(opk,2)} offset:{OL}
s_mov_b64 exec, -1
s_waitcnt lgkmcnt(0)
s_barrier
ds_read_b128 {rng(ob,4)}, v{t3} offset:{OL}
ds_read_b128 {rng(ob+4,4)}, v{t3} offset:{OL+64}
s_lshl_b32 s38, s49, 6
s_add_u32 s38, s38, s47
s_lshl_b32 s59, s38, 11
s_lshl_b32 s53, s3, 7
s_add_u32 s38, s59, s53
s_add_u32 s57, s38, {OX}
v_lshlrev_b32 v{t0}, 9, v{n16}
v_lshl_add_u32 v{t0}, v{g}, 4, v{t0}
v_cmp_gt_u32 vcc, 4, v{n16}
v_mov_b32 v{t1}, 0x7ffffff0
s_mov_b32 s36, 0x07060503
v_cndmask_b32 v{t0}, v{t1}, v{t0}, vcc
""")
    y = C32; yg = C32 + 8
    for s in range(2):
        a(f"s_waitcnt lgkmcnt({1-s})")
        for tp in range(2):
            c = "0" if s == 0 else rng(y+4*tp,4)
            a(f"v_mfma_f32_16x16x32_bf16 {rng(y+4*tp,4)}, {rng(wb+8*s+4*tp,4)}, {rng(ob+4*s,4)}, {c}")
    a(f"""
s_mov_b32 s37, 0x07060502
s_mov_b32 s40, 0x07060501
s_nop 5
""")
    for tp in range(2):
        a(f"""v_perm_b32 v{yg+4*tp}, v{y+4*tp}, v{y+4*tp+3}, s36
v_perm_b32 v{yg+4*tp+1}, v{y+4*tp+1}, v{y+4*tp+3}, s37
v_perm_b32 v{yg+4*tp+2}, v{y+4*tp+2}, v{y+4*tp+3}, s40
v_mov_b32 v{yg+4*tp+3}, s52
buffer_store_dwordx4 {rng(yg+4*tp,4)}, v{t0}, s[28:31], s57 offen offset:{tp*64} sc1""")
    ST_("out partial published")
    fg = C32 + 16; z = C32 + 24; zt = va("zt", 4)
    a(f"""
s_cmp_lg_u32 s3, 0
s_cbranch_scc1 L_fin
s_lshl_b32 s38, s49, 17             ; cg*64*2048
s_lshl_b32 s53, s47, 5              ; 2i*16
s_add_u32 s38, s38, s53
s_add_u32 s58, s38, {OX}
s_add_u32 s59, s58, 65536
v_lshrrev_b32 v{t1}, 1, v{l}
v_lshlrev_b32 v{t1}, 11, v{t1}
v_and_b32 v{t2}, 1, v{l}
v_lshl_or_b32 v{t1}, v{t2}, 4, v{t1}
s_mov_b32 s55, {spin}
L_fpoll:
buffer_load_dwordx4 {rng(fg,4)}, v{t1}, s[28:31], s58 offen sc1
buffer_load_dwordx4 {rng(fg+4,4)}, v{t1}, s[28:31], s59 offen sc1
s_waitcnt vmcnt(0)
v_cmp_ne_u32 vcc, s52, v{fg+3}
v_cmp_ne_u32 s[38:39], s52, v{fg+7}
s_or_b64 vcc, vcc, s[38:39]
s_cbranch_vccz L_fok
s_sub_u32 s55, s55, 1
s_cbranch_scc0 L_fpoll
L_fok:
""")
    ST_("final gathered")
    a(f"""
s_mov_b32 s36, 0x04000c0c
s_mov_b32 s37, 0x0706000c
v_perm_b32 v{z+3}, v{fg}, v{fg+1}, s36
v_perm_b32 v{z+7}, v{fg+4}, v{fg+5}, s36
v_perm_b32 v{z+3}, v{z+3}, v{fg+2}, s37
v_perm_b32 v{z+7}, v{z+7}, v{fg+6}, s37
v_add_f32 v{z}, v{fg}, v{fg+4}
v_add_f32 v{z+1}, v{fg+1}, v{fg+5}
v_add_f32 v{z+2}, v{fg+2}, v{fg+6}
v_add_f32 v{z+3}, v{z+3}, v{z+7}
""")
    for dpp in ("quad_perm:[2,3,0,1]", "row_half_mirror", "row_mirror"):
        pass
    a("s_nop 1")
    for ctl in ("quad_perm:[2,3,0,1]", "row_ror:4", "row_ror:8"):
        for r in range(4):
            a(f"v_add_f32_dpp v{z+r}, v{z+r}, v{z+r} {ctl} row_mask:0xf bank_mask:0xf")
    for perm in ("v_permlane16_swap_b32", "v_permlane32_swap_b32"):
        for r in range(4): a(f"v_mov_b32 v{zt+r}, v{z+r}")
        for r in range(4): a(f"{perm} v{z+r}, v{zt+r}")
        for r in range(4): a(f"v_add_f32 v{z+r}, v{z+r}, v{zt+r}")
    a(f"""
v_cvt_pk_bf16_f32 v{z}, v{z}, v{z+1}
v_cvt_pk_bf16_f32 v{z+1}, v{z+2}, v{z+3}
; out offset: (b*512 + cg*128 + (i%16)*8 + 4*(l&1))*2, b = i/16 ; lanes >= 2 OOB
s_lshr_b32 s38, s47, 4
s_lshl_b32 s38, s38, 10
s_lshl_b32 s53, s49, 8
s_add_u32 s38, s38, s53
s_and_b32 s53, s47, 15
s_lshl_b32 s53, s53, 4
s_add_u32 s38, s38, s53
v_lshlrev_b32 v{t2}, 3, v{l}
v_add_u32 v{t2}, s38, v{t2}
v_cmp_gt_u32 vcc, 2, v{l}
v_mov_b32 v{t3}, 0x7ffffff0
s_nop 0
v_cndmask_b32 v{t2}, v{t3}, v{t2}, vcc
buffer_store_dwordx2 {rng(z,2)}, v{t2}, s[32:35], 0 offen
s_cmp_lg_u32 s2, 0
s_cbranch_scc1 L_fin
v_mov_b32 v{t0}, s52
v_mov_b32 v{t1}, 0
s_mov_b64 exec, 1
buffer_store_dword v{t0}, v{t1}, s[28:31], 0 offen sc1
s_mov_b64 exec, -1
L_fin:
""")
    if amp >= 0:
        ST_("end")
        e = nst[0] - 1
        a(f"""
s_cmp_lg_u32 s2, 0
s_cbranch_scc1 L_end
s_cmp_lg_u32 s3, 0
s_cbranch_scc1 L_end
v_lshlrev_b32 v{t1}, 4, v{l}
buffer_load_dwordx4 {rng(C32,4)}, v{t1}, s[28:31], {'s38'} offen sc1
""".replace("{'s38'}", "s38") if False else f"""
s_waitcnt lgkmcnt(0)
s_cmp_lg_u32 s2, 0
s_cbranch_scc1 L_end
s_cmp_lg_u32 s3, 0
s_cbranch_scc1 L_end
s_mov_b32 s38, {ST}
v_lshlrev_b32 v{t1}, 4, v{l}
buffer_load_dwordx4 {rng(C32,4)}, v{t1}, s[28:31], s38 offen sc1
s_waitcnt vmcnt(0)
v_subrev_u32 v{C32}, s60, v{C32}
v_subrev_u32 v{C32+1}, s60, v{C32+1}
v_subrev_u32 v{C32+2}, s60, v{C32+2}
v_subrev_u32 v{C32+3}, s60, v{C32+3}
v_min_i32 v{C32}, v{C32}, v{C32+1}
v_min_i32 v{C32+2}, v{C32+2}, v{C32+3}
v_min_i32 v{C32}, v{C32}, v{C32+2}
s_nop 1
v_min_i32_dpp v{C32}, v{C32}, v{C32} row_ror:1 row_mask:0xf bank_mask:0xf
s_nop 1
v_min_i32_dpp v{C32}, v{C32}, v{C32} row_ror:2 row_mask:0xf bank_mask:0xf
s_nop 1
v_min_i32_dpp v{C32}, v{C32}, v{C32} row_ror:4 row_mask:0xf bank_mask:0xf
s_nop 1
v_min_i32_dpp v{C32}, v{C32}, v{C32} row_ror:8 row_mask:0xf bank_mask:0xf
s_nop 1
v_readlane_b32 s36, v{C32}, 0
v_readlane_b32 s37, v{C32}, 16
v_readlane_b32 s38, v{C32}, 32
v_readlane_b32 s39, v{C32}, 48
s_nop 3
s_min_i32 s36, s36, s37
s_min_i32 s38, s38, s39
s_min_i32 s36, s36, s38
s_sub_u32 s37, s{60+2*amp}, s60
""")
        if ampref == 1: a("s_sub_u32 s37, s37, s36")
        if ampref == 2: a("s_sub_u32 s37, 0, s36")
        a(f"""
s_mul_i32 s37, s37, {ampk}
s_add_u32 s37, s37, s{60+2*e}
L_amp:
s_memrealtime s[40:41]
s_waitcnt lgkmcnt(0)
s_cmp_lt_u32 s40, s37
s_cbranch_scc1 L_amp
""")
    elif stamp:
        ST_("end")
        n = nst[0]
        a(f"""
s_waitcnt lgkmcnt(0) vmcnt(0)
s_lshl_b32 s4, s2, 2
s_add_u32 s4, s4, s3
s_lshl_b32 s4, s4, 6
s_add_u32 s4, s4, {ST}
v_mov_b32 v{t1}, 0
s_mov_b64 exec, 1
""")
        for i in range(n):
            a(f"v_mov_b32 v{t0}, s{60+2*i}\nbuffer_store_dword v{t0}, v{t1}, s[28:31], s4 offen offset:{4*i}\ns_nop 0")
    a("L_end:\ns_endpgm")
    body = a.text()
    nv = va.hi
    s = header([f"; @launch grid=(256,1,1) block=(256,1,1) lds={LDS_BYTES}"]) + kernel_begin(KNAME) + body + RODATA + descriptor(KNAME, nv, 96)
    errs = haz.check(body)
    for e in errs: print("HAZ", e)
    return s, nv, nst[0]
if __name__ == "__main__":
    out = sys.argv[1] if len(sys.argv) > 1 else "a1.s"
    kw = {}
    for x in sys.argv[2:]:
        k, v = x.split("=")
        kw[k] = (v == "1") if k == "stamp" else (int(v) if v.isdigit() else (" " + v if v else ""))
    s, nv, ns = gen(**kw)
    open(out, "w").write(s)
    print("vgprs", nv, "stamps", ns, "lds", LDS_BYTES)
```

```python
import sys
sys.path.insert(0, "my")
from ag import *
import haz

QX = 0x1000
OW = 0x20000
OX = 0x100000
ST = 0x200000
WS_BYTES = 268435456
QRED = 0
QL = QRED + 1024
PL = QL + 1280
SL = PL + 1024
OL = SL + 128
XL = 4352; WQ = XL + 4096; KL = WQ + 16384; VL = KL + 32768; WO = VL + 32768
LDS_BYTES = WO + 16384
assert OL + 768 <= XL
CSC = 0.08838834764831845 * 1.4426950408889634
import struct
def f32(x): return "0x%08x" % struct.unpack("<I", struct.pack("<f", x))[0]

class V:
    def __init__(s): s.n = 0; s.names = {}
    def __call__(s, name, cnt=1, align=1):
        s.n = (s.n + align - 1) // align * align
        r = s.n; s.n += cnt; s.names[name] = r; s.hi = max(getattr(s, 'hi', 0), s.n)
        return r
    def mark(s): return s.n
    def release(s, m): s.n = m
def rng(r, n): return f"v[{r}:{r+n-1}]"

def gen(stamp=False, nt_kv="", nt_w="", v1cnt=6, spin=200000, amp=-1, ampk=10, ampref=0, probe=""):
    if amp >= 0: stamp = True
    a = A(); va = V()
    v_tid = va("tid"); l = va("lane"); t0 = va("t0"); t1 = va("t1"); t2 = va("t2"); t3 = va("t3")
    vX = va("vX"); vWQ = va("vWQ"); vK = va("vK", 4); vV = va("vV"); vWO = va("vWO")
    nst = [0]
    def ST_(label):
        if stamp:
            i = nst[0]; nst[0] += 1
            assert i < 15
            a(f"s_memrealtime s[{60+2*i}:{61+2*i}]   ; stamp {i} {label}")
    a(f"""
s_cmp_ge_u32 s2, 256
s_cbranch_scc1 L_end
s_load_dwordx2 s[8:9], s[0:1], 0
s_load_dwordx2 s[20:21], s[0:1], 24
s_load_dwordx2 s[12:13], s[0:1], 8
s_load_dwordx2 s[16:17], s[0:1], 16
s_load_dwordx2 s[24:25], s[0:1], 32
s_load_dwordx2 s[32:33], s[0:1], 40
s_load_dwordx2 s[28:29], s[0:1], 56
""")
    ST_("entry")
    a(f"""
v_lshrrev_b32 v{t0}, 6, v0
v_and_b32 v{l}, 63, v0
s_and_b32 s4, s2, 7
v_readfirstlane_b32 s3, v{t0}       ; w = wave
s_lshr_b32 s5, s2, 3                ; r
s_lshr_b32 s6, s5, 3                ; b
s_and_b32 s7, s5, 7                 ; c
s_mov_b32 s10, 4096
s_mov_b32 s11, 0x20000
s_mov_b32 s22, 4194304
s_mov_b32 s23, 0x20000
s_mov_b32 s14, 33554432
s_mov_b32 s15, 0x20000
s_mov_b32 s18, 33554432
s_mov_b32 s19, 0x20000
s_mov_b32 s26, 4194304
s_mov_b32 s27, 0x20000
s_mov_b32 s30, {WS_BYTES}
s_mov_b32 s31, 0x20000
s_mov_b32 s34, 4096
s_mov_b32 s35, 0x20000
; x voffset: (l>>4)*1024 + ((l&15) ^ (4*(l>>4)))*16
v_lshrrev_b32 v{t0}, 4, v{l}           ; l>>4
v_and_b32 v{t1}, 15, v{l}              ; l&15
v_lshlrev_b32 v{t2}, 2, v{t0}
v_xor_b32 v{t2}, v{t1}, v{t2}
v_lshlrev_b32 v{t2}, 4, v{t2}
v_lshl_add_u32 v{vX}, v{t0}, 10, v{t2}
; K voffsets: (l>>4)*256 + ((l&15)^(l>>4))*16  ^ (64*i)
v_xor_b32 v{t2}, v{t1}, v{t0}
v_lshlrev_b32 v{t2}, 4, v{t2}
v_lshl_add_u32 v{vK}, v{t0}, 8, v{t2}
v_xor_b32 v{vK+1}, 64, v{vK}
v_xor_b32 v{vK+2}, 0x80, v{vK}
v_xor_b32 v{vK+3}, 0xc0, v{vK}
v_bfe_u32 v{t2}, v{l}, 1, 2
v_bfe_u32 v{t3}, v{l}, 3, 2
v_lshl_or_b32 v{t2}, v{t3}, 3, v{t2}
v_bfe_u32 v{t3}, v{l}, 5, 1
v_lshl_or_b32 v{t2}, v{t3}, 2, v{t2}
v_lshlrev_b32 v{t2}, 13, v{t2}
v_and_b32 v{t3}, 1, v{l}
v_lshl_or_b32 v{vWQ}, v{t3}, 4, v{t2}
s_lshl_b32 s36, s3, 8               ; x soff = w*256
s_lshl_b32 s37, s4, 10
s_lshl_b32 s38, s5, 5
s_add_u32 s37, s37, s38
s_lshl_b32 s38, s3, 20
s_add_u32 s37, s37, s38
s_lshl_b32 s39, s6, 3
s_add_u32 s39, s39, s4
s_lshl_b32 s39, s39, 20
s_lshl_b32 s38, s7, 15
s_add_u32 s39, s39, s38
s_add_u32 s39, s39, 786432
s_lshl_b32 s38, s3, 13
s_add_u32 s40, s39, s38
s_lshl_b32 s41, s3, 10
s_add_u32 s41, s41, {XL}
s_lshl_b32 s42, s3, 12              ; w*4096
s_lshl_b32 s43, s3, 13              ; w*8192
s_add_u32 s90, s42, {WQ}
s_add_u32 s91, s43, {KL}
s_add_u32 s92, s43, {VL}
s_add_u32 s93, s42, {WO}
s_mov_b32 m0, s41
s_waitcnt lgkmcnt(0)
""")
    ST_("karg")
    if amp >= 0:
        a(f"""s_waitcnt lgkmcnt(0)
s_lshl_b32 s38, s2, 2
s_add_u32 s38, s38, {ST}
v_mov_b32 v{t0}, s60
v_mov_b32 v{t1}, 0
s_mov_b64 exec, 1
buffer_store_dword v{t0}, v{t1}, s[28:31], s38 offen sc1
s_mov_b64 exec, -1""")
    a(f"buffer_load_dwordx4 v{vX}, s[8:11], s36 offen lds")
    a(f"s_mov_b32 m0, s90")
    for i in range(4):
        if i: a(f"s_add_u32 s37, s37, {(1<<18) - 1024}")
        else: a("s_nop 0")
        a(f"buffer_load_dwordx4 v{vWQ}, s[20:23], s37 offen offset:{i*1024}{nt_w} lds")
    a(f"s_mov_b32 m0, s91")
    a("s_load_dword s44, s[28:29], 0        ; epoch")
    for i in range(8):
        if i == 4:
            a("s_add_u32 m0, m0, 4096\ns_add_u32 s40, s40, 4096")
        a(f"buffer_load_dwordx4 v{vK+i%4}, s[12:15], s40 offen offset:{(i%4)*1024}{nt_kv} lds")
    ST_("issued1")
    g = va("g"); n16 = va("n16"); n4 = va("n4")
    vXr = va("vXr"); vWQr = va("vWQr"); vKr = va("vKr", 4); vVr = va("vVr", 2); vWOr = va("vWOr", 2)
    a(f"""
v_lshrrev_b32 v{g}, 4, v{l}            ; g = l>>4
v_and_b32 v{n16}, 15, v{l}             ; n = l&15
v_and_b32 v{n4}, 3, v{l}               ; n&3 == l&3
; V voffset: (l>>2)*256 + ((l&3) ^ (((l>>4)&1)<<1))*16
v_lshrrev_b32 v{t0}, 2, v{l}
v_and_b32 v{t1}, 1, v{g}
v_lshlrev_b32 v{t1}, 1, v{t1}          ; (g&1)<<1
v_xor_b32 v{t2}, v{n4}, v{t1}
v_lshlrev_b32 v{t2}, 4, v{t2}
v_lshl_add_u32 v{vV}, v{t0}, 8, v{t2}
v_lshrrev_b32 v{t3}, 5, v{l}
v_lshlrev_b32 v{t3}, 1, v{t3}
v_xor_b32 v{t2}, v{n4}, v{t3}
v_lshlrev_b32 v{t2}, 4, v{t2}
v_lshl_add_u32 v{vWO}, v{t0}, 10, v{t2}
v_lshlrev_b32 v{t2}, 2, v{n4}
v_xor_b32 v{t2}, v{g}, v{t2}
v_lshlrev_b32 v{t2}, 4, v{t2}
v_lshl_add_u32 v{t2}, v{n4}, 8, v{t2}
v_add_u32 v{vXr}, s41, v{t2}
v_lshlrev_b32 v{t2}, 3, v{l}
v_add_u32 v{vWQr}, s90, v{t2}
v_xor_b32 v{t2}, v{g}, v{n16}
v_lshlrev_b32 v{t2}, 4, v{t2}
v_lshl_add_u32 v{t2}, v{n16}, 8, v{t2}
v_add_u32 v{vKr}, s91, v{t2}
v_xor_b32 v{vKr+1}, 64, v{vKr}
v_xor_b32 v{vKr+2}, 0x80, v{vKr}
v_xor_b32 v{vKr+3}, 0xc0, v{vKr}
v_bfe_u32 v{t0}, v{l}, 2, 2            ; r
v_lshl_add_u32 v{t2}, v{g}, 2, v{t0}   ; 4g+r
v_lshlrev_b32 v{t2}, 6, v{t2}
v_lshl_add_u32 v{t2}, v{n4}, 3, v{t2}  ; + c*8
v_and_b32 v{t1}, 1, v{g}
v_lshl_add_u32 v{t2}, v{t1}, 5, v{t2}  ; t'=0: (g&1)*32
v_add_u32 v{vVr}, s92, v{t2}
v_xor_b32 v{vVr+1}, 32, v{vVr}
v_lshl_add_u32 v{t2}, v{g}, 3, v{t0}
v_lshlrev_b32 v{t2}, 6, v{t2}
v_lshl_add_u32 v{t2}, v{n4}, 3, v{t2}
v_lshl_add_u32 v{t2}, v{t1}, 5, v{t2}
v_add_u32 v{vWOr}, s93, v{t2}
v_xor_b32 v{vWOr+1}, 32, v{vWOr}
s_lshl_b32 s38, s3, 6
s_add_u32 s45, s39, s38
s_lshr_b32 s46, s5, 2               ; r/4
s_lshl_b32 s47, s4, 3
s_add_u32 s47, s47, s46             ; p = g*8 + r/4
s_lshl_b32 s48, s47, 16             ; j0*1024 = p*64*1024
s_and_b32 s49, s5, 3                ; cg
s_lshl_b32 s38, s49, 8
s_add_u32 s48, s48, s38
s_lshl_b32 s38, s3, 6
s_add_u32 s48, s48, s38
""")
    vXs = va("vXs", 3)
    a(f"v_xor_b32 v{vXs}, 64, v{vXr}\nv_xor_b32 v{vXs+1}, 0x80, v{vXr}\nv_xor_b32 v{vXs+2}, 0xc0, v{vXr}")
    A32 = va("A32", 32, 4); B16 = va("B16", 16, 4); C32 = va("C32", 32, 4)
    xb = A32; wa = A32 + 16; acc = va("acc", 4, 4)
    a("s_waitcnt vmcnt(8)")
    ST_("wq landed")
    for s in range(4):
        xa = vXr if s == 0 else vXs + s - 1
        a(f"ds_read_b128 {rng(xb+4*s,4)}, v{xa}")
        a(f"ds_read_b64_tr_b16 {rng(wa+4*s,2)}, v{vWQr} offset:{s*1024}")
        a(f"ds_read_b64_tr_b16 {rng(wa+4*s+2,2)}, v{vWQr} offset:{s*1024 + 512}")
    for s in range(4):
        a(f"s_waitcnt lgkmcnt({3*(3-s)})")
        c = "0" if s == 0 else rng(acc,4)
        a(f"v_mfma_f32_16x16x32_bf16 {rng(acc,4)}, {rng(wa+4*s,4)}, {rng(xb+4*s,4)}, {c}")
    a(f"""
v_lshlrev_b32 v{t2}, 6, v{n4}
v_lshl_add_u32 v{t2}, v{g}, 4, v{t2}
s_lshl_b32 s38, s3, 8
v_add_u32 v{t2}, s38, v{t2}
s_mov_b32 s50, 0x000f000f
s_mov_b32 s51, 0x000f000f
v_and_b32 v{t0}, 7, v{l}
v_lshlrev_b32 v{t1}, 3, v{t0}
s_lshl_b32 s38, s3, 6
v_add_u32 v{t1}, s38, v{t1}
s_mov_b64 exec, s[50:51]
ds_write_b128 v{t2}, {rng(acc,4)} offset:{QRED}
s_mov_b64 exec, -1
s_waitcnt lgkmcnt(0)
s_barrier
""")
    qp = va("qp", 8, 2)
    for w2 in range(4):
        a(f"ds_read_b64 {rng(qp+2*w2,2)}, v{t1} offset:{QRED + w2*256}")
    a(f"""
s_mul_i32 s52, s44, 1664525
s_add_u32 s52, s52, 1013904223      ; tag
s_lshl_b32 s38, s4, 2
s_add_u32 s38, s38, s3
s_lshl_b32 s38, s38, 11
s_lshl_b32 s53, s5, 6
s_add_u32 s38, s38, s53
s_add_u32 s38, s38, {QX}
v_lshlrev_b32 v{t2}, 3, v{t0}
v_add_u32 v{t2}, s38, v{t2}
v_cmp_gt_u32 vcc, 8, v{l}
v_mov_b32 v{t3}, 0x7ffffff0
s_nop 0
v_cndmask_b32 v{t2}, v{t3}, v{t2}, vcc
s_waitcnt lgkmcnt(0)
v_add_f32 v{qp}, v{qp}, v{qp+2}
v_add_f32 v{qp+1}, v{qp+1}, v{qp+3}
v_add_f32 v{qp+4}, v{qp+4}, v{qp+6}
v_add_f32 v{qp+5}, v{qp+5}, v{qp+7}
v_add_f32 v{qp}, v{qp}, v{qp+4}
v_add_f32 v{qp+1}, v{qp+1}, v{qp+5}
v_cvt_pk_bf16_f32 v{qp}, v{qp}, v{qp+1}
v_mov_b32 v{qp+1}, s52
buffer_store_dwordx2 {rng(qp,2)}, v{t2}, s[28:31], 0 offen sc1
""")
    ST_("q published")
    a(f"s_mov_b32 m0, s92")
    def vload(i):
        if i % 4 == 0 and i: a("s_add_u32 m0, m0, 4096")
        if i: a(f"s_add_u32 s45, s45, {4096 - 1024 if i % 4 else 4096 + 3072}")
        else: a("s_nop 0")
        a(f"buffer_load_dwordx4 v{vV}, s[16:19], s45 offen offset:{(i%4)*1024}{nt_kv} lds")
    for i in range(v1cnt): vload(i)
    vG = va("vG"); gq = va("gq", 2, 2)
    a(f"""
s_lshl_b32 s38, s4, 2
s_add_u32 s38, s38, s6
s_lshl_b32 s38, s38, 11
s_lshl_b32 s53, s3, 9
s_add_u32 s38, s38, s53
s_add_u32 s54, s38, {QX}
v_lshlrev_b32 v{vG}, 3, v{l}
s_waitcnt vmcnt({1 + v1cnt})
""")
    ST_("K landed")
    a(f"buffer_load_dwordx2 {rng(gq,2)}, v{vG}, s[28:31], s54 offen sc1")
    for i in range(v1cnt, 8): vload(i)
    a(f"s_mov_b32 m0, s93")
    for i in range(4):
        if i: a(f"s_add_u32 s48, s48, {16384 - 1024}")
        else: a("s_nop 0")
        a(f"buffer_load_dwordx4 v{vWO}, s[24:27], s48 offen offset:{i*1024}{nt_w} lds")
    ka = A32
    for t in range(2):
        for s in range(4):
            a(f"ds_read_b128 {rng(ka+16*t+4*s,4)}, v{vKr+s} offset:{t*4096}")
    nafter = (8 - v1cnt) + 4
    a(f"""
s_mov_b32 s55, {spin}
s_waitcnt vmcnt({nafter})
L_qchk:
v_cmp_ne_u32 vcc, s52, v{gq+1}
s_cbranch_vccz L_qok
s_sub_u32 s55, s55, 1
s_cbranch_scc1 L_qok
s_sleep 1
buffer_load_dwordx2 {rng(gq,2)}, v{vG}, s[28:31], s54 offen sc1
s_waitcnt vmcnt(0)
s_branch L_qchk
L_qok:
""")
    ST_("q gathered")
    qb = B16
    a(f"""
v_lshlrev_b32 v{t2}, 2, v{l}
s_mul_i32 s38, s3, 320
v_add_u32 v{t2}, s38, v{t2}
ds_write_b32 v{t2}, v{gq} offset:{QL}
v_mul_u32_u24 v{t3}, 320, v{n4}
v_lshl_add_u32 v{t3}, v{g}, 4, v{t3}
s_waitcnt lgkmcnt(0)
s_barrier
""")
    for s in range(4):
        a(f"ds_read_b128 {rng(qb+4*s,4)}, v{t3} offset:{QL + s*64}")
    sc = C32
    for s in range(4):
        a(f"s_waitcnt lgkmcnt({3-s})")
        for t in range(2):
            c = "0" if s == 0 else rng(sc+4*t,4)
            a(f"v_mfma_f32_16x16x32_bf16 {rng(sc+4*t,4)}, {rng(ka+16*t+4*s,4)}, {rng(qb+4*s,4)}, {c}")
    m = va("m"); mt = va("mt"); ls = va("ls"); pk = va("pk", 4, 4); st2 = va("st2", 2, 2)
    a(f"""
v_lshlrev_b32 v{t2}, 6, v{n4}
v_lshl_add_u32 v{t2}, v{g}, 4, v{t2}
s_lshl_b32 s38, s3, 8
v_add_u32 v{t0}, s38, v{t2}
v_lshlrev_b32 v{t1}, 5, v{n4}
s_lshl_b32 s38, s3, 3
v_add_u32 v{t3}, s38, v{t1}
s_mov_b32 s56, {f32(CSC)}
s_nop 1
v_max3_f32 v{m}, v{sc}, v{sc+1}, v{sc+2}
v_max3_f32 v{m}, v{m}, v{sc+3}, v{sc+4}
v_max3_f32 v{m}, v{m}, v{sc+5}, v{sc+6}
v_max_f32 v{m}, v{m}, v{sc+7}
v_mov_b32 v{mt}, v{m}
s_nop 1
v_permlane16_swap_b32 v{m}, v{mt}
s_nop 0
v_max_f32 v{m}, v{m}, v{mt}
v_mov_b32 v{mt}, v{m}
s_nop 1
v_permlane32_swap_b32 v{m}, v{mt}
s_nop 0
v_max_f32 v{m}, v{m}, v{mt}
v_mul_f32 v{m}, s56, v{m}
""")
    for i in range(8):
        a(f"v_fma_f32 v{sc+i}, v{sc+i}, s56, -v{m}")
    for i in range(8):
        a(f"v_exp_f32 v{sc+i}, v{sc+i}")
    a(f"""
s_nop 0
v_add_f32 v{ls}, v{sc}, v{sc+1}
v_add_f32 v{mt}, v{sc+2}, v{sc+3}
v_cvt_pk_bf16_f32 v{pk}, v{sc}, v{sc+1}
v_cvt_pk_bf16_f32 v{pk+1}, v{sc+2}, v{sc+3}
v_add_f32 v{ls}, v{ls}, v{mt}
v_add_f32 v{mt}, v{sc+4}, v{sc+5}
v_cvt_pk_bf16_f32 v{pk+2}, v{sc+4}, v{sc+5}
v_add_f32 v{ls}, v{ls}, v{mt}
v_add_f32 v{mt}, v{sc+6}, v{sc+7}
v_cvt_pk_bf16_f32 v{pk+3}, v{sc+6}, v{sc+7}
v_add_f32 v{ls}, v{ls}, v{mt}
s_mov_b64 exec, s[50:51]
ds_write_b128 v{t0}, {rng(pk,4)} offset:{PL}
s_mov_b64 exec, -1
v_mov_b32 v{mt}, v{ls}
s_nop 1
v_permlane16_swap_b32 v{ls}, v{mt}
s_nop 0
v_add_f32 v{ls}, v{ls}, v{mt}
v_mov_b32 v{mt}, v{ls}
s_nop 1
v_permlane32_swap_b32 v{ls}, v{mt}
s_nop 0
v_add_f32 v{st2+1}, v{ls}, v{mt}
v_mov_b32 v{st2}, v{m}
s_mov_b64 exec, s[50:51]
ds_write_b64 v{t3}, {rng(st2,2)} offset:{SL}
s_mov_b64 exec, -1
s_waitcnt lgkmcnt(0)
s_barrier
""")
    ST_("P written")
    pb = B16; sv = va("sv", 8, 4); vaop = A32
    for ks in range(4):
        a(f"ds_read_b128 {rng(pb+4*ks,4)}, v{t2} offset:{PL + ks*256}")
    a(f"ds_read_b128 {rng(sv,4)}, v{t1} offset:{SL}")
    a(f"ds_read_b128 {rng(sv+4,4)}, v{t1} offset:{SL+16}")
    a("s_waitcnt vmcnt(4)")
    ST_("V landed")
    def vread(ks):
        for tp in range(2):
            for e in range(2):
                a(f"ds_read_b64_tr_b16 {rng(vaop+8*ks+4*tp+2*e,2)}, v{vVr+tp} offset:{ks*2048 + e*1024}")
    D = C32
    def pv(ks):
        for tp in range(2):
            a(f"v_mfma_f32_16x16x32_bf16 {rng(D+8*ks+4*tp,4)}, {rng(vaop+8*ks+4*tp,4)}, {rng(pb+4*ks,4)}, 0")
    vread(0); vread(1)
    M = va("M"); ff = va("ff", 4); L = va("L")
    a(f"""
s_waitcnt lgkmcnt(8)
v_max3_f32 v{M}, v{sv}, v{sv+2}, v{sv+4}
v_max_f32 v{M}, v{M}, v{sv+6}
""")
    vread(2)
    a(f"""
v_sub_f32 v{ff}, v{sv}, v{M}
v_sub_f32 v{ff+1}, v{sv+2}, v{M}
v_sub_f32 v{ff+2}, v{sv+4}, v{M}
v_sub_f32 v{ff+3}, v{sv+6}, v{M}
s_waitcnt lgkmcnt(8)
""")
    pv(0)
    vread(3)
    a(f"""
v_exp_f32 v{ff}, v{ff}
v_exp_f32 v{ff+1}, v{ff+1}
v_exp_f32 v{ff+2}, v{ff+2}
v_exp_f32 v{ff+3}, v{ff+3}
s_waitcnt lgkmcnt(8)
""")
    pv(1)
    a(f"""
v_mul_f32 v{L}, v{ff}, v{sv+1}
v_fmac_f32 v{L}, v{ff+1}, v{sv+3}
s_waitcnt lgkmcnt(4)
""")
    pv(2)
    a(f"""
v_fmac_f32 v{L}, v{ff+2}, v{sv+5}
v_fmac_f32 v{L}, v{ff+3}, v{sv+7}
s_waitcnt lgkmcnt(0)
""")
    pv(3)
    R = va("R"); lse = va("lse"); og = va("og", 8, 4)
    a(f"""
v_rcp_f32 v{R}, v{L}
v_log_f32 v{lse}, v{L}
s_nop 0
v_mul_f32 v{ff}, v{ff}, v{R}
v_mul_f32 v{ff+1}, v{ff+1}, v{R}
v_mul_f32 v{ff+2}, v{ff+2}, v{R}
v_mul_f32 v{ff+3}, v{ff+3}, v{R}
v_add_f32 v{lse}, v{lse}, v{M}
s_lshl_b32 s38, s6, 5
s_lshl_b32 s53, s4, 2
s_add_u32 s38, s38, s53
s_lshl_b32 s38, s38, 3
s_add_u32 s38, s38, s7
s_lshl_b32 s38, s38, 9              ; *32*16
s_lshl_b32 s53, s3, 7               ; 8w*16
s_add_u32 s38, s38, s53
s_add_u32 s57, s38, {OW}
v_lshlrev_b32 v{t0}, 12, v{n16}       ; n*8*512
v_lshl_add_u32 v{t0}, v{g}, 4, v{t0}
v_cmp_gt_u32 vcc, 4, v{n16}
v_mov_b32 v{t3}, 0x7ffffff0
s_nop 0
v_cndmask_b32 v{t0}, v{t3}, v{t0}, vcc
""")
    o = va("o", 8, 4)
    for tp in range(2):
        for r in range(4):
            a(f"v_mul_f32 v{o+4*tp+r}, v{ff}, v{D+4*tp+r}")
    for ks in range(1, 4):
        for tp in range(2):
            for r in range(4):
                a(f"v_fmac_f32 v{o+4*tp+r}, v{ff+ks}, v{D+8*ks+4*tp+r}")
    for tp in range(2):
        a(f"""v_cvt_pk_bf16_f32 v{og+4*tp}, v{o+4*tp}, v{o+4*tp+1}
v_cvt_pk_bf16_f32 v{og+4*tp+1}, v{o+4*tp+2}, v{o+4*tp+3}
v_mov_b32 v{og+4*tp+2}, v{lse}
v_mov_b32 v{og+4*tp+3}, s52
buffer_store_dwordx4 {rng(og+4*tp,4)}, v{t0}, s[28:31], s57 offen offset:{tp*64} sc1""")
    ST_("o published")
    gg = B16
    a(f"""
s_lshl_b32 s38, s3, 5
s_lshl_b32 s53, s4, 2
s_add_u32 s38, s38, s53
s_add_u32 s38, s38, s6
s_lshl_b32 s38, s38, 12             ; *8*512
s_and_b32 s53, s46, 1
s_lshl_b32 s53, s53, 8
s_add_u32 s38, s38, s53
s_add_u32 s58, s38, {OW}
v_lshlrev_b32 v{t1}, 9, v{g}          ; cs*512
v_lshl_add_u32 v{t1}, v{n16}, 4, v{t1}
s_mov_b32 s55, {spin}
buffer_load_dwordx4 {rng(gg,4)}, v{t1}, s[28:31], s58 offen sc1
buffer_load_dwordx4 {rng(gg+4,4)}, v{t1}, s[28:31], s58 offen offset:2048 sc1
s_waitcnt vmcnt(4)
""")
    wb = A32
    for s in range(2):
        for tp in range(2):
            for hh in range(2):
                a(f"ds_read_b64_tr_b16 {rng(wb+8*s+4*tp+2*hh,2)}, v{vWOr+tp} offset:{s*2048 + hh*256}")
    a(f"""
s_waitcnt vmcnt(0)
L_ochk:
v_cmp_ne_u32 vcc, s52, v{gg+3}
v_cmp_ne_u32 s[38:39], s52, v{gg+7}
s_or_b64 vcc, vcc, s[38:39]
s_cbranch_vccz L_ook
s_sub_u32 s55, s55, 1
s_cbranch_scc1 L_ook
buffer_load_dwordx4 {rng(gg,4)}, v{t1}, s[28:31], s58 offen sc1
buffer_load_dwordx4 {rng(gg+4,4)}, v{t1}, s[28:31], s58 offen offset:2048 sc1
s_waitcnt vmcnt(0)
s_branch L_ochk
L_ook:
""")
    ST_("o gathered")
    e0 = va("e0"); e1 = va("e1"); u = A32 + 16; S = va("S"); oo = A32 + 24; ot = A32 + 28
    a(f"""
v_max_f32 v{M}, v{gg+2}, v{gg+6}
v_mov_b32 v{mt}, v{M}
v_lshlrev_b32 v{u}, 16, v{gg}
v_and_b32 v{u+1}, 0xffff0000, v{gg}
v_permlane16_swap_b32 v{M}, v{mt}
v_lshlrev_b32 v{u+2}, 16, v{gg+1}
v_max_f32 v{M}, v{M}, v{mt}
v_mov_b32 v{mt}, v{M}
v_and_b32 v{u+3}, 0xffff0000, v{gg+1}
v_lshlrev_b32 v{u+4}, 16, v{gg+4}
v_permlane32_swap_b32 v{M}, v{mt}
v_and_b32 v{u+5}, 0xffff0000, v{gg+4}
v_max_f32 v{M}, v{M}, v{mt}
v_lshlrev_b32 v{u+6}, 16, v{gg+5}
v_sub_f32 v{e0}, v{gg+2}, v{M}
v_sub_f32 v{e1}, v{gg+6}, v{M}
v_exp_f32 v{e0}, v{e0}
v_exp_f32 v{e1}, v{e1}
v_and_b32 v{u+7}, 0xffff0000, v{gg+5}
v_add_f32 v{S}, v{e0}, v{e1}
""")
    for r in range(4): a(f"v_mul_f32 v{oo+r}, v{e0}, v{u+r}")
    for r in range(4): a(f"v_fmac_f32 v{oo+r}, v{e1}, v{u+4+r}")
    for (perm) in ("v_permlane16_swap_b32", "v_permlane32_swap_b32"):
        a(f"v_mov_b32 v{mt}, v{S}")
        for r in range(4): a(f"v_mov_b32 v{ot+r}, v{oo+r}")
        a(f"{perm} v{S}, v{mt}")
        for r in range(4): a(f"{perm} v{oo+r}, v{ot+r}")
        a(f"v_add_f32 v{S}, v{S}, v{mt}")
        for r in range(4): a(f"v_add_f32 v{oo+r}, v{oo+r}, v{ot+r}")
    ob = B16 + 8; opk = va("opk", 2, 2)
    a(f"""
v_rcp_f32 v{S}, v{S}
s_mul_i32 s38, s3, 192
v_lshlrev_b32 v{t0}, 3, v{n16}
v_add_u32 v{t0}, s38, v{t0}
v_mul_f32 v{oo}, v{oo}, v{S}
v_mul_f32 v{oo+1}, v{oo+1}, v{S}
v_mul_f32 v{oo+2}, v{oo+2}, v{S}
v_mul_f32 v{oo+3}, v{oo+3}, v{S}
v_cvt_pk_bf16_f32 v{opk}, v{oo}, v{oo+1}
v_cvt_pk_bf16_f32 v{opk+1}, v{oo+2}, v{oo+3}
v_mul_u32_u24 v{t3}, 192, v{n4}
v_lshl_add_u32 v{t3}, v{g}, 4, v{t3}
s_mov_b64 exec, 0xffff
ds_write_b64 v{t0}, {rng(opk,2)} offset:{OL}
s_mov_b64 exec, -1
s_waitcnt lgkmcnt(0)
s_barrier
ds_read_b128 {rng(ob,4)}, v{t3} offset:{OL}
ds_read_b128 {rng(ob+4,4)}, v{t3} offset:{OL+64}
s_lshl_b32 s38, s49, 6
s_add_u32 s38, s38, s47
s_lshl_b32 s59, s38, 11
s_lshl_b32 s53, s3, 7
s_add_u32 s38, s59, s53
s_add_u32 s57, s38, {OX}
v_lshlrev_b32 v{t0}, 9, v{n16}
v_lshl_add_u32 v{t0}, v{g}, 4, v{t0}
v_cmp_gt_u32 vcc, 4, v{n16}
v_mov_b32 v{t1}, 0x7ffffff0
s_mov_b32 s36, 0x07060503
v_cndmask_b32 v{t0}, v{t1}, v{t0}, vcc
""")
    y = C32; yg = C32 + 8
    for s in range(2):
        a(f"s_waitcnt lgkmcnt({1-s})")
        for tp in range(2):
            c = "0" if s == 0 else rng(y+4*tp,4)
            a(f"v_mfma_f32_16x16x32_bf16 {rng(y+4*tp,4)}, {rng(wb+8*s+4*tp,4)}, {rng(ob+4*s,4)}, {c}")
    a(f"""
s_mov_b32 s37, 0x07060502
s_mov_b32 s40, 0x07060501
s_nop 5
""")
    for tp in range(2):
        a(f"""v_perm_b32 v{yg+4*tp}, v{y+4*tp}, v{y+4*tp+3}, s36
v_perm_b32 v{yg+4*tp+1}, v{y+4*tp+1}, v{y+4*tp+3}, s37
v_perm_b32 v{yg+4*tp+2}, v{y+4*tp+2}, v{y+4*tp+3}, s40
v_mov_b32 v{yg+4*tp+3}, s52
buffer_store_dwordx4 {rng(yg+4*tp,4)}, v{t0}, s[28:31], s57 offen offset:{tp*64} sc1""")
    ST_("out partial published")
    fg = C32 + 16; z = C32 + 24; zt = va("zt", 4)
    a(f"""
s_cmp_lg_u32 s3, 0
s_cbranch_scc1 L_fin
s_lshl_b32 s38, s49, 17             ; cg*64*2048
s_lshl_b32 s53, s47, 5              ; 2i*16
s_add_u32 s38, s38, s53
s_add_u32 s58, s38, {OX}
s_add_u32 s59, s58, 65536
v_lshrrev_b32 v{t1}, 1, v{l}
v_lshlrev_b32 v{t1}, 11, v{t1}
v_and_b32 v{t2}, 1, v{l}
v_lshl_or_b32 v{t1}, v{t2}, 4, v{t1}
s_mov_b32 s55, {spin}
L_fpoll:
buffer_load_dwordx4 {rng(fg,4)}, v{t1}, s[28:31], s58 offen sc1
buffer_load_dwordx4 {rng(fg+4,4)}, v{t1}, s[28:31], s59 offen sc1
s_waitcnt vmcnt(0)
v_cmp_ne_u32 vcc, s52, v{fg+3}
v_cmp_ne_u32 s[38:39], s52, v{fg+7}
s_or_b64 vcc, vcc, s[38:39]
s_cbranch_vccz L_fok
s_sub_u32 s55, s55, 1
s_cbranch_scc0 L_fpoll
L_fok:
""")
    ST_("final gathered")
    a(f"""
s_mov_b32 s36, 0x04000c0c
s_mov_b32 s37, 0x0706000c
v_perm_b32 v{z+3}, v{fg}, v{fg+1}, s36
v_perm_b32 v{z+7}, v{fg+4}, v{fg+5}, s36
v_perm_b32 v{z+3}, v{z+3}, v{fg+2}, s37
v_perm_b32 v{z+7}, v{z+7}, v{fg+6}, s37
v_add_f32 v{z}, v{fg}, v{fg+4}
v_add_f32 v{z+1}, v{fg+1}, v{fg+5}
v_add_f32 v{z+2}, v{fg+2}, v{fg+6}
v_add_f32 v{z+3}, v{z+3}, v{z+7}
""")
    for dpp in ("quad_perm:[2,3,0,1]", "row_half_mirror", "row_mirror"):
        pass
    a("s_nop 1")
    for ctl in ("quad_perm:[2,3,0,1]", "row_ror:4", "row_ror:8"):
        for r in range(4):
            a(f"v_add_f32_dpp v{z+r}, v{z+r}, v{z+r} {ctl} row_mask:0xf bank_mask:0xf")
    for perm in ("v_permlane16_swap_b32", "v_permlane32_swap_b32"):
        for r in range(4): a(f"v_mov_b32 v{zt+r}, v{z+r}")
        for r in range(4): a(f"{perm} v{z+r}, v{zt+r}")
        for r in range(4): a(f"v_add_f32 v{z+r}, v{z+r}, v{zt+r}")
    a(f"""
v_cvt_pk_bf16_f32 v{z}, v{z}, v{z+1}
v_cvt_pk_bf16_f32 v{z+1}, v{z+2}, v{z+3}
; out offset: (b*512 + cg*128 + (i%16)*8 + 4*(l&1))*2, b = i/16 ; lanes >= 2 OOB
s_lshr_b32 s38, s47, 4
s_lshl_b32 s38, s38, 10
s_lshl_b32 s53, s49, 8
s_add_u32 s38, s38, s53
s_and_b32 s53, s47, 15
s_lshl_b32 s53, s53, 4
s_add_u32 s38, s38, s53
v_lshlrev_b32 v{t2}, 3, v{l}
v_add_u32 v{t2}, s38, v{t2}
v_cmp_gt_u32 vcc, 2, v{l}
v_mov_b32 v{t3}, 0x7ffffff0
s_nop 0
v_cndmask_b32 v{t2}, v{t3}, v{t2}, vcc
buffer_store_dwordx2 {rng(z,2)}, v{t2}, s[32:35], 0 offen
s_cmp_lg_u32 s2, 0
s_cbranch_scc1 L_fin
v_mov_b32 v{t0}, s52
v_mov_b32 v{t1}, 0
s_mov_b64 exec, 1
buffer_store_dword v{t0}, v{t1}, s[28:31], 0 offen sc1
s_mov_b64 exec, -1
L_fin:
""")
    if amp >= 0:
        ST_("end")
        e = nst[0] - 1
        a(f"""
s_cmp_lg_u32 s2, 0
s_cbranch_scc1 L_end
s_cmp_lg_u32 s3, 0
s_cbranch_scc1 L_end
v_lshlrev_b32 v{t1}, 4, v{l}
buffer_load_dwordx4 {rng(C32,4)}, v{t1}, s[28:31], {'s38'} offen sc1
""".replace("{'s38'}", "s38") if False else f"""
s_waitcnt lgkmcnt(0)
s_cmp_lg_u32 s2, 0
s_cbranch_scc1 L_end
s_cmp_lg_u32 s3, 0
s_cbranch_scc1 L_end
s_mov_b32 s38, {ST}
v_lshlrev_b32 v{t1}, 4, v{l}
buffer_load_dwordx4 {rng(C32,4)}, v{t1}, s[28:31], s38 offen sc1
s_waitcnt vmcnt(0)
v_subrev_u32 v{C32}, s60, v{C32}
v_subrev_u32 v{C32+1}, s60, v{C32+1}
v_subrev_u32 v{C32+2}, s60, v{C32+2}
v_subrev_u32 v{C32+3}, s60, v{C32+3}
v_min_i32 v{C32}, v{C32}, v{C32+1}
v_min_i32 v{C32+2}, v{C32+2}, v{C32+3}
v_min_i32 v{C32}, v{C32}, v{C32+2}
s_nop 1
v_min_i32_dpp v{C32}, v{C32}, v{C32} row_ror:1 row_mask:0xf bank_mask:0xf
s_nop 1
v_min_i32_dpp v{C32}, v{C32}, v{C32} row_ror:2 row_mask:0xf bank_mask:0xf
s_nop 1
v_min_i32_dpp v{C32}, v{C32}, v{C32} row_ror:4 row_mask:0xf bank_mask:0xf
s_nop 1
v_min_i32_dpp v{C32}, v{C32}, v{C32} row_ror:8 row_mask:0xf bank_mask:0xf
s_nop 1
v_readlane_b32 s36, v{C32}, 0
v_readlane_b32 s37, v{C32}, 16
v_readlane_b32 s38, v{C32}, 32
v_readlane_b32 s39, v{C32}, 48
s_nop 3
s_min_i32 s36, s36, s37
s_min_i32 s38, s38, s39
s_min_i32 s36, s36, s38
s_sub_u32 s37, s{60+2*amp}, s60
""")
        probe_ = probe.strip()
        if probe_:
            a("s_memrealtime s[42:43]\ns_waitcnt lgkmcnt(0)")
            if probe_ == "nop512":
                for i in range(512): a("s_nop 0")
            elif probe_ == "nop2048":
                for i in range(2048): a("s_nop 0")
            elif probe_ == "loop512":
                a("s_mov_b32 s38, 32\nL_pl:")
                for i in range(14): a("s_nop 0")
                a("s_sub_u32 s38, s38, 1\ns_cmp_lg_u32 s38, 0\ns_cbranch_scc1 L_pl")
            elif probe_ == "freshpage":
                a(f"s_mov_b32 s38, {128<<20}\nv_mov_b32 v{t1}, 0\nbuffer_load_dword v{t0}, v{t1}, s[28:31], s38 offen\ns_waitcnt vmcnt(0)")
            elif probe_ == "coldline":
                a(f"s_mov_b32 s38, {640<<10}\nv_mov_b32 v{t1}, 0\nbuffer_load_dword v{t0}, v{t1}, s[12:15], s38 offen\ns_waitcnt vmcnt(0)")
            elif probe_ == "kfar":
                a(f"s_mov_b32 s38, {(31<<20)}\nv_mov_b32 v{t1}, 0\nbuffer_load_dword v{t0}, v{t1}, s[12:15], s38 offen\ns_waitcnt vmcnt(0)")
            elif probe_ == "empty":
                pass
            a("s_memrealtime s[44:45]\ns_waitcnt lgkmcnt(0)\ns_sub_u32 s37, s44, s42\ns_mov_b32 s%d, s44" % (60+2*e))
        if ampref == 1: a("s_sub_u32 s37, s37, s36")
        if ampref == 2: a("s_sub_u32 s37, 0, s36")
        a(f"""
s_mul_i32 s37, s37, {ampk}
s_add_u32 s37, s37, s{60+2*e}
L_amp:
s_memrealtime s[40:41]
s_waitcnt lgkmcnt(0)
s_cmp_lt_u32 s40, s37
s_cbranch_scc1 L_amp
""")
    elif stamp:
        ST_("end")
        n = nst[0]
        a(f"""
s_waitcnt lgkmcnt(0) vmcnt(0)
s_lshl_b32 s4, s2, 2
s_add_u32 s4, s4, s3
s_lshl_b32 s4, s4, 6
s_add_u32 s4, s4, {ST}
v_mov_b32 v{t1}, 0
s_mov_b64 exec, 1
""")
        for i in range(n):
            a(f"v_mov_b32 v{t0}, s{60+2*i}\nbuffer_store_dword v{t0}, v{t1}, s[28:31], s4 offen offset:{4*i}\ns_nop 0")
    a("L_end:\ns_endpgm")
    body = a.text()
    nv = va.hi
    s = header([f"; @launch grid=(256,1,1) block=(256,1,1) lds={LDS_BYTES}"]) + kernel_begin(KNAME) + body + RODATA + descriptor(KNAME, nv, 96)
    errs = haz.check(body)
    for e in errs: print("HAZ", e)
    return s, nv, nst[0]
if __name__ == "__main__":
    out = sys.argv[1] if len(sys.argv) > 1 else "a1.s"
    kw = {}
    for x in sys.argv[2:]:
        k, v = x.split("=")
        kw[k] = (v == "1") if k == "stamp" else (int(v) if v.isdigit() else (" " + v if v else ""))
    s, nv, ns = gen(**kw)
    open(out, "w").write(s)
    print("vgprs", nv, "stamps", ns, "lds", LDS_BYTES)
```

```python
import sys
sys.path.insert(0, "my")
from ag import *
import haz

QX = 0x1000
OW = 0x20000
OX = 0x100000
ST = 0x200000
WS_BYTES = 268435456
QRED = 0
QL = QRED + 1024
PL = QL + 1280
SL = PL + 1024
OL = SL + 128
XL = 4352; WQ = XL + 4096; KL = WQ + 16384; VL = KL + 32768; WO = VL + 32768
LDS_BYTES = WO + 16384
assert OL + 768 <= XL
CSC = 0.08838834764831845 * 1.4426950408889634
import struct
def f32(x): return "0x%08x" % struct.unpack("<I", struct.pack("<f", x))[0]

class V:
    def __init__(s): s.n = 0; s.names = {}
    def __call__(s, name, cnt=1, align=1):
        s.n = (s.n + align - 1) // align * align
        r = s.n; s.n += cnt; s.names[name] = r; s.hi = max(getattr(s, 'hi', 0), s.n)
        return r
    def mark(s): return s.n
    def release(s, m): s.n = m
def rng(r, n): return f"v[{r}:{r+n-1}]"

def gen(stamp=False, nt_kv="", nt_w="", v1cnt=6, spin=200000, amp=-1, ampk=10, ampref=0, probe=""):
    if amp >= 0: stamp = True
    a = A(); va = V()
    v_tid = va("tid"); l = va("lane"); t0 = va("t0"); t1 = va("t1"); t2 = va("t2"); t3 = va("t3")
    vX = va("vX"); vWQ = va("vWQ"); vK = va("vK", 4); vV = va("vV"); vWO = va("vWO")
    nst = [0]
    def ST_(label):
        if stamp:
            i = nst[0]; nst[0] += 1
            assert i < 15
            a(f"s_memrealtime s[{60+2*i}:{61+2*i}]   ; stamp {i} {label}")
    a(f"""
s_cmp_ge_u32 s2, 256
s_cbranch_scc1 L_end
s_load_dwordx2 s[8:9], s[0:1], 0
s_load_dwordx2 s[20:21], s[0:1], 24
s_load_dwordx2 s[12:13], s[0:1], 8
s_load_dwordx2 s[16:17], s[0:1], 16
s_load_dwordx2 s[24:25], s[0:1], 32
s_load_dwordx2 s[32:33], s[0:1], 40
s_load_dwordx2 s[28:29], s[0:1], 56
""")
    ST_("entry")
    a(f"""
v_lshrrev_b32 v{t0}, 6, v0
v_and_b32 v{l}, 63, v0
s_and_b32 s4, s2, 7
v_readfirstlane_b32 s3, v{t0}       ; w = wave
s_lshr_b32 s5, s2, 3                ; r
s_lshr_b32 s6, s5, 3                ; b
s_and_b32 s7, s5, 7                 ; c
s_mov_b32 s10, 4096
s_mov_b32 s11, 0x20000
s_mov_b32 s22, 4194304
s_mov_b32 s23, 0x20000
s_mov_b32 s14, 33554432
s_mov_b32 s15, 0x20000
s_mov_b32 s18, 33554432
s_mov_b32 s19, 0x20000
s_mov_b32 s26, 4194304
s_mov_b32 s27, 0x20000
s_mov_b32 s30, {WS_BYTES}
s_mov_b32 s31, 0x20000
s_mov_b32 s34, 4096
s_mov_b32 s35, 0x20000
; x voffset: (l>>4)*1024 + ((l&15) ^ (4*(l>>4)))*16
v_lshrrev_b32 v{t0}, 4, v{l}           ; l>>4
v_and_b32 v{t1}, 15, v{l}              ; l&15
v_lshlrev_b32 v{t2}, 2, v{t0}
v_xor_b32 v{t2}, v{t1}, v{t2}
v_lshlrev_b32 v{t2}, 4, v{t2}
v_lshl_add_u32 v{vX}, v{t0}, 10, v{t2}
; K voffsets: (l>>4)*256 + ((l&15)^(l>>4))*16  ^ (64*i)
v_xor_b32 v{t2}, v{t1}, v{t0}
v_lshlrev_b32 v{t2}, 4, v{t2}
v_lshl_add_u32 v{vK}, v{t0}, 8, v{t2}
v_xor_b32 v{vK+1}, 64, v{vK}
v_xor_b32 v{vK+2}, 0x80, v{vK}
v_xor_b32 v{vK+3}, 0xc0, v{vK}
v_bfe_u32 v{t2}, v{l}, 1, 2
v_bfe_u32 v{t3}, v{l}, 3, 2
v_lshl_or_b32 v{t2}, v{t3}, 3, v{t2}
v_bfe_u32 v{t3}, v{l}, 5, 1
v_lshl_or_b32 v{t2}, v{t3}, 2, v{t2}
v_lshlrev_b32 v{t2}, 13, v{t2}
v_and_b32 v{t3}, 1, v{l}
v_lshl_or_b32 v{vWQ}, v{t3}, 4, v{t2}
s_lshl_b32 s36, s3, 8               ; x soff = w*256
s_lshl_b32 s37, s4, 10
s_lshl_b32 s38, s5, 5
s_add_u32 s37, s37, s38
s_lshl_b32 s38, s3, 20
s_add_u32 s37, s37, s38
s_lshl_b32 s39, s6, 3
s_add_u32 s39, s39, s4
s_lshl_b32 s39, s39, 20
s_lshl_b32 s38, s7, 15
s_add_u32 s39, s39, s38
s_add_u32 s39, s39, 786432
s_lshl_b32 s38, s3, 13
s_add_u32 s40, s39, s38
s_lshl_b32 s41, s3, 10
s_add_u32 s41, s41, {XL}
s_lshl_b32 s42, s3, 12              ; w*4096
s_lshl_b32 s43, s3, 13              ; w*8192
s_add_u32 s90, s42, {WQ}
s_add_u32 s91, s43, {KL}
s_add_u32 s92, s43, {VL}
s_add_u32 s93, s42, {WO}
s_mov_b32 m0, s41
s_waitcnt lgkmcnt(0)
""")
    ST_("karg")
    if amp >= 0:
        a(f"""s_waitcnt lgkmcnt(0)
s_lshl_b32 s38, s2, 2
s_add_u32 s38, s38, {ST}
v_mov_b32 v{t0}, s60
v_mov_b32 v{t1}, 0
s_mov_b64 exec, 1
buffer_store_dword v{t0}, v{t1}, s[28:31], s38 offen sc1
s_mov_b64 exec, -1""")
    a(f"buffer_load_dwordx4 v{vX}, s[8:11], s36 offen lds")
    a(f"s_mov_b32 m0, s90")
    for i in range(4):
        if i: a(f"s_add_u32 s37, s37, {(1<<18) - 1024}")
        else: a("s_nop 0")
        a(f"buffer_load_dwordx4 v{vWQ}, s[20:23], s37 offen offset:{i*1024}{nt_w} lds")
    a(f"s_mov_b32 m0, s91")
    a("s_load_dword s44, s[28:29], 0        ; epoch")
    for i in range(8):
        if i == 4:
            a("s_add_u32 m0, m0, 4096\ns_add_u32 s40, s40, 4096")
        a(f"buffer_load_dwordx4 v{vK+i%4}, s[12:15], s40 offen offset:{(i%4)*1024}{nt_kv} lds")
    ST_("issued1")
    g = va("g"); n16 = va("n16"); n4 = va("n4")
    vXr = va("vXr"); vWQr = va("vWQr"); vKr = va("vKr", 4); vVr = va("vVr", 2); vWOr = va("vWOr", 2)
    a(f"""
v_lshrrev_b32 v{g}, 4, v{l}            ; g = l>>4
v_and_b32 v{n16}, 15, v{l}             ; n = l&15
v_and_b32 v{n4}, 3, v{l}               ; n&3 == l&3
; V voffset: (l>>2)*256 + ((l&3) ^ (((l>>4)&1)<<1))*16
v_lshrrev_b32 v{t0}, 2, v{l}
v_and_b32 v{t1}, 1, v{g}
v_lshlrev_b32 v{t1}, 1, v{t1}          ; (g&1)<<1
v_xor_b32 v{t2}, v{n4}, v{t1}
v_lshlrev_b32 v{t2}, 4, v{t2}
v_lshl_add_u32 v{vV}, v{t0}, 8, v{t2}
v_lshrrev_b32 v{t3}, 5, v{l}
v_lshlrev_b32 v{t3}, 1, v{t3}
v_xor_b32 v{t2}, v{n4}, v{t3}
v_lshlrev_b32 v{t2}, 4, v{t2}
v_lshl_add_u32 v{vWO}, v{t0}, 10, v{t2}
v_lshlrev_b32 v{t2}, 2, v{n4}
v_xor_b32 v{t2}, v{g}, v{t2}
v_lshlrev_b32 v{t2}, 4, v{t2}
v_lshl_add_u32 v{t2}, v{n4}, 8, v{t2}
v_add_u32 v{vXr}, s41, v{t2}
v_lshlrev_b32 v{t2}, 3, v{l}
v_add_u32 v{vWQr}, s90, v{t2}
v_xor_b32 v{t2}, v{g}, v{n16}
v_lshlrev_b32 v{t2}, 4, v{t2}
v_lshl_add_u32 v{t2}, v{n16}, 8, v{t2}
v_add_u32 v{vKr}, s91, v{t2}
v_xor_b32 v{vKr+1}, 64, v{vKr}
v_xor_b32 v{vKr+2}, 0x80, v{vKr}
v_xor_b32 v{vKr+3}, 0xc0, v{vKr}
v_bfe_u32 v{t0}, v{l}, 2, 2            ; r
v_lshl_add_u32 v{t2}, v{g}, 2, v{t0}   ; 4g+r
v_lshlrev_b32 v{t2}, 6, v{t2}
v_lshl_add_u32 v{t2}, v{n4}, 3, v{t2}  ; + c*8
v_and_b32 v{t1}, 1, v{g}
v_lshl_add_u32 v{t2}, v{t1}, 5, v{t2}  ; t'=0: (g&1)*32
v_add_u32 v{vVr}, s92, v{t2}
v_xor_b32 v{vVr+1}, 32, v{vVr}
v_lshl_add_u32 v{t2}, v{g}, 3, v{t0}
v_lshlrev_b32 v{t2}, 6, v{t2}
v_lshl_add_u32 v{t2}, v{n4}, 3, v{t2}
v_lshl_add_u32 v{t2}, v{t1}, 5, v{t2}
v_add_u32 v{vWOr}, s93, v{t2}
v_xor_b32 v{vWOr+1}, 32, v{vWOr}
s_lshl_b32 s38, s3, 6
s_add_u32 s45, s39, s38
s_lshr_b32 s46, s5, 2               ; r/4
s_lshl_b32 s47, s4, 3
s_add_u32 s47, s47, s46             ; p = g*8 + r/4
s_lshl_b32 s48, s47, 16             ; j0*1024 = p*64*1024
s_and_b32 s49, s5, 3                ; cg
s_lshl_b32 s38, s49, 8
s_add_u32 s48, s48, s38
s_lshl_b32 s38, s3, 6
s_add_u32 s48, s48, s38
""")
    vXs = va("vXs", 3)
    a(f"v_xor_b32 v{vXs}, 64, v{vXr}\nv_xor_b32 v{vXs+1}, 0x80, v{vXr}\nv_xor_b32 v{vXs+2}, 0xc0, v{vXr}")
    A32 = va("A32", 32, 4); B16 = va("B16", 16, 4); C32 = va("C32", 32, 4)
    xb = A32; wa = A32 + 16; acc = va("acc", 4, 4)
    a("s_waitcnt vmcnt(8)")
    ST_("wq landed")
    for s in range(4):
        xa = vXr if s == 0 else vXs + s - 1
        a(f"ds_read_b128 {rng(xb+4*s,4)}, v{xa}")
        a(f"ds_read_b64_tr_b16 {rng(wa+4*s,2)}, v{vWQr} offset:{s*1024}")
        a(f"ds_read_b64_tr_b16 {rng(wa+4*s+2,2)}, v{vWQr} offset:{s*1024 + 512}")
    for s in range(4):
        a(f"s_waitcnt lgkmcnt({3*(3-s)})")
        c = "0" if s == 0 else rng(acc,4)
        a(f"v_mfma_f32_16x16x32_bf16 {rng(acc,4)}, {rng(wa+4*s,4)}, {rng(xb+4*s,4)}, {c}")
    a(f"""
v_lshlrev_b32 v{t2}, 6, v{n4}
v_lshl_add_u32 v{t2}, v{g}, 4, v{t2}
s_lshl_b32 s38, s3, 8
v_add_u32 v{t2}, s38, v{t2}
s_mov_b32 s50, 0x000f000f
s_mov_b32 s51, 0x000f000f
v_and_b32 v{t0}, 7, v{l}
v_lshlrev_b32 v{t1}, 3, v{t0}
s_lshl_b32 s38, s3, 6
v_add_u32 v{t1}, s38, v{t1}
s_mov_b64 exec, s[50:51]
ds_write_b128 v{t2}, {rng(acc,4)} offset:{QRED}
s_mov_b64 exec, -1
s_waitcnt lgkmcnt(0)
s_barrier
""")
    qp = va("qp", 8, 2)
    for w2 in range(4):
        a(f"ds_read_b64 {rng(qp+2*w2,2)}, v{t1} offset:{QRED + w2*256}")
    a(f"""
s_mul_i32 s52, s44, 1664525
s_add_u32 s52, s52, 1013904223      ; tag
s_lshl_b32 s38, s4, 2
s_add_u32 s38, s38, s3
s_lshl_b32 s38, s38, 11
s_lshl_b32 s53, s5, 6
s_add_u32 s38, s38, s53
s_add_u32 s38, s38, {QX}
v_lshlrev_b32 v{t2}, 3, v{t0}
v_add_u32 v{t2}, s38, v{t2}
v_cmp_gt_u32 vcc, 8, v{l}
v_mov_b32 v{t3}, 0x7ffffff0
s_nop 0
v_cndmask_b32 v{t2}, v{t3}, v{t2}, vcc
s_waitcnt lgkmcnt(0)
v_add_f32 v{qp}, v{qp}, v{qp+2}
v_add_f32 v{qp+1}, v{qp+1}, v{qp+3}
v_add_f32 v{qp+4}, v{qp+4}, v{qp+6}
v_add_f32 v{qp+5}, v{qp+5}, v{qp+7}
v_add_f32 v{qp}, v{qp}, v{qp+4}
v_add_f32 v{qp+1}, v{qp+1}, v{qp+5}
v_cvt_pk_bf16_f32 v{qp}, v{qp}, v{qp+1}
v_mov_b32 v{qp+1}, s52
buffer_store_dwordx2 {rng(qp,2)}, v{t2}, s[28:31], 0 offen sc1
""")
    ST_("q published")
    a(f"s_mov_b32 m0, s92")
    def vload(i):
        if i % 4 == 0 and i: a("s_add_u32 m0, m0, 4096")
        if i: a(f"s_add_u32 s45, s45, {4096 - 1024 if i % 4 else 4096 + 3072}")
        else: a("s_nop 0")
        a(f"buffer_load_dwordx4 v{vV}, s[16:19], s45 offen offset:{(i%4)*1024}{nt_kv} lds")
    for i in range(v1cnt): vload(i)
    vG = va("vG"); gq = va("gq", 2, 2)
    a(f"""
s_lshl_b32 s38, s4, 2
s_add_u32 s38, s38, s6
s_lshl_b32 s38, s38, 11
s_lshl_b32 s53, s3, 9
s_add_u32 s38, s38, s53
s_add_u32 s54, s38, {QX}
v_lshlrev_b32 v{vG}, 3, v{l}
s_waitcnt vmcnt({1 + v1cnt})
""")
    ST_("K landed")
    a(f"buffer_load_dwordx2 {rng(gq,2)}, v{vG}, s[28:31], s54 offen sc1")
    for i in range(v1cnt, 8): vload(i)
    a(f"s_mov_b32 m0, s93")
    for i in range(4):
        if i: a(f"s_add_u32 s48, s48, {16384 - 1024}")
        else: a("s_nop 0")
        a(f"buffer_load_dwordx4 v{vWO}, s[24:27], s48 offen offset:{i*1024}{nt_w} lds")
    ka = A32
    for t in range(2):
        for s in range(4):
            a(f"ds_read_b128 {rng(ka+16*t+4*s,4)}, v{vKr+s} offset:{t*4096}")
    nafter = (8 - v1cnt) + 4
    a(f"""
s_mov_b32 s55, {spin}
s_waitcnt vmcnt({nafter})
L_qchk:
v_cmp_ne_u32 vcc, s52, v{gq+1}
s_cbranch_vccz L_qok
s_sub_u32 s55, s55, 1
s_cbranch_scc1 L_qok
s_sleep 1
buffer_load_dwordx2 {rng(gq,2)}, v{vG}, s[28:31], s54 offen sc1
s_waitcnt vmcnt(0)
s_branch L_qchk
L_qok:
""")
    ST_("q gathered")
    qb = B16
    a(f"""
v_lshlrev_b32 v{t2}, 2, v{l}
s_mul_i32 s38, s3, 320
v_add_u32 v{t2}, s38, v{t2}
ds_write_b32 v{t2}, v{gq} offset:{QL}
v_mul_u32_u24 v{t3}, 320, v{n4}
v_lshl_add_u32 v{t3}, v{g}, 4, v{t3}
s_waitcnt lgkmcnt(0)
s_barrier
""")
    for s in range(4):
        a(f"ds_read_b128 {rng(qb+4*s,4)}, v{t3} offset:{QL + s*64}")
    sc = C32
    for s in range(4):
        a(f"s_waitcnt lgkmcnt({3-s})")
        for t in range(2):
            c = "0" if s == 0 else rng(sc+4*t,4)
            a(f"v_mfma_f32_16x16x32_bf16 {rng(sc+4*t,4)}, {rng(ka+16*t+4*s,4)}, {rng(qb+4*s,4)}, {c}")
    m = va("m"); mt = va("mt"); ls = va("ls"); pk = va("pk", 4, 4); st2 = va("st2", 2, 2)
    a(f"""
v_lshlrev_b32 v{t2}, 6, v{n4}
v_lshl_add_u32 v{t2}, v{g}, 4, v{t2}
s_lshl_b32 s38, s3, 8
v_add_u32 v{t0}, s38, v{t2}
v_lshlrev_b32 v{t1}, 5, v{n4}
s_lshl_b32 s38, s3, 3
v_add_u32 v{t3}, s38, v{t1}
s_mov_b32 s56, {f32(CSC)}
s_nop 1
v_max3_f32 v{m}, v{sc}, v{sc+1}, v{sc+2}
v_max3_f32 v{m}, v{m}, v{sc+3}, v{sc+4}
v_max3_f32 v{m}, v{m}, v{sc+5}, v{sc+6}
v_max_f32 v{m}, v{m}, v{sc+7}
v_mov_b32 v{mt}, v{m}
s_nop 1
v_permlane16_swap_b32 v{m}, v{mt}
s_nop 0
v_max_f32 v{m}, v{m}, v{mt}
v_mov_b32 v{mt}, v{m}
s_nop 1
v_permlane32_swap_b32 v{m}, v{mt}
s_nop 0
v_max_f32 v{m}, v{m}, v{mt}
v_mul_f32 v{m}, s56, v{m}
""")
    for i in range(8):
        a(f"v_fma_f32 v{sc+i}, v{sc+i}, s56, -v{m}")
    for i in range(8):
        a(f"v_exp_f32 v{sc+i}, v{sc+i}")
    a(f"""
s_nop 0
v_add_f32 v{ls}, v{sc}, v{sc+1}
v_add_f32 v{mt}, v{sc+2}, v{sc+3}
v_cvt_pk_bf16_f32 v{pk}, v{sc}, v{sc+1}
v_cvt_pk_bf16_f32 v{pk+1}, v{sc+2}, v{sc+3}
v_add_f32 v{ls}, v{ls}, v{mt}
v_add_f32 v{mt}, v{sc+4}, v{sc+5}
v_cvt_pk_bf16_f32 v{pk+2}, v{sc+4}, v{sc+5}
v_add_f32 v{ls}, v{ls}, v{mt}
v_add_f32 v{mt}, v{sc+6}, v{sc+7}
v_cvt_pk_bf16_f32 v{pk+3}, v{sc+6}, v{sc+7}
v_add_f32 v{ls}, v{ls}, v{mt}
s_mov_b64 exec, s[50:51]
ds_write_b128 v{t0}, {rng(pk,4)} offset:{PL}
s_mov_b64 exec, -1
v_mov_b32 v{mt}, v{ls}
s_nop 1
v_permlane16_swap_b32 v{ls}, v{mt}
s_nop 0
v_add_f32 v{ls}, v{ls}, v{mt}
v_mov_b32 v{mt}, v{ls}
s_nop 1
v_permlane32_swap_b32 v{ls}, v{mt}
s_nop 0
v_add_f32 v{st2+1}, v{ls}, v{mt}
v_mov_b32 v{st2}, v{m}
s_mov_b64 exec, s[50:51]
ds_write_b64 v{t3}, {rng(st2,2)} offset:{SL}
s_mov_b64 exec, -1
s_waitcnt lgkmcnt(0)
s_barrier
""")
    ST_("P written")
    pb = B16; sv = va("sv", 8, 4); vaop = A32
    for ks in range(4):
        a(f"ds_read_b128 {rng(pb+4*ks,4)}, v{t2} offset:{PL + ks*256}")
    a(f"ds_read_b128 {rng(sv,4)}, v{t1} offset:{SL}")
    a(f"ds_read_b128 {rng(sv+4,4)}, v{t1} offset:{SL+16}")
    a("s_waitcnt vmcnt(4)")
    ST_("V landed")
    def vread(ks):
        for tp in range(2):
            for e in range(2):
                a(f"ds_read_b64_tr_b16 {rng(vaop+8*ks+4*tp+2*e,2)}, v{vVr+tp} offset:{ks*2048 + e*1024}")
    D = C32
    def pv(ks):
        for tp in range(2):
            a(f"v_mfma_f32_16x16x32_bf16 {rng(D+8*ks+4*tp,4)}, {rng(vaop+8*ks+4*tp,4)}, {rng(pb+4*ks,4)}, 0")
    vread(0); vread(1)
    M = va("M"); ff = va("ff", 4); L = va("L")
    a(f"""
s_waitcnt lgkmcnt(8)
v_max3_f32 v{M}, v{sv}, v{sv+2}, v{sv+4}
v_max_f32 v{M}, v{M}, v{sv+6}
""")
    vread(2)
    a(f"""
v_sub_f32 v{ff}, v{sv}, v{M}
v_sub_f32 v{ff+1}, v{sv+2}, v{M}
v_sub_f32 v{ff+2}, v{sv+4}, v{M}
v_sub_f32 v{ff+3}, v{sv+6}, v{M}
s_waitcnt lgkmcnt(8)
""")
    pv(0)
    vread(3)
    a(f"""
v_exp_f32 v{ff}, v{ff}
v_exp_f32 v{ff+1}, v{ff+1}
v_exp_f32 v{ff+2}, v{ff+2}
v_exp_f32 v{ff+3}, v{ff+3}
s_waitcnt lgkmcnt(8)
""")
    pv(1)
    a(f"""
v_mul_f32 v{L}, v{ff}, v{sv+1}
v_fmac_f32 v{L}, v{ff+1}, v{sv+3}
s_waitcnt lgkmcnt(4)
""")
    pv(2)
    a(f"""
v_fmac_f32 v{L}, v{ff+2}, v{sv+5}
v_fmac_f32 v{L}, v{ff+3}, v{sv+7}
s_waitcnt lgkmcnt(0)
""")
    pv(3)
    R = va("R"); lse = va("lse"); og = va("og", 8, 4)
    a(f"""
v_rcp_f32 v{R}, v{L}
v_log_f32 v{lse}, v{L}
s_nop 0
v_mul_f32 v{ff}, v{ff}, v{R}
v_mul_f32 v{ff+1}, v{ff+1}, v{R}
v_mul_f32 v{ff+2}, v{ff+2}, v{R}
v_mul_f32 v{ff+3}, v{ff+3}, v{R}
v_add_f32 v{lse}, v{lse}, v{M}
s_lshl_b32 s38, s6, 5
s_lshl_b32 s53, s4, 2
s_add_u32 s38, s38, s53
s_lshl_b32 s38, s38, 3
s_add_u32 s38, s38, s7
s_lshl_b32 s38, s38, 9              ; *32*16
s_lshl_b32 s53, s3, 7               ; 8w*16
s_add_u32 s38, s38, s53
s_add_u32 s57, s38, {OW}
v_lshlrev_b32 v{t0}, 12, v{n16}       ; n*8*512
v_lshl_add_u32 v{t0}, v{g}, 4, v{t0}
v_cmp_gt_u32 vcc, 4, v{n16}
v_mov_b32 v{t3}, 0x7ffffff0
s_nop 0
v_cndmask_b32 v{t0}, v{t3}, v{t0}, vcc
""")
    o = va("o", 8, 4)
    for tp in range(2):
        for r in range(4):
            a(f"v_mul_f32 v{o+4*tp+r}, v{ff}, v{D+4*tp+r}")
    for ks in range(1, 4):
        for tp in range(2):
            for r in range(4):
                a(f"v_fmac_f32 v{o+4*tp+r}, v{ff+ks}, v{D+8*ks+4*tp+r}")
    for tp in range(2):
        a(f"""v_cvt_pk_bf16_f32 v{og+4*tp}, v{o+4*tp}, v{o+4*tp+1}
v_cvt_pk_bf16_f32 v{og+4*tp+1}, v{o+4*tp+2}, v{o+4*tp+3}
v_mov_b32 v{og+4*tp+2}, v{lse}
v_mov_b32 v{og+4*tp+3}, s52
buffer_store_dwordx4 {rng(og+4*tp,4)}, v{t0}, s[28:31], s57 offen offset:{tp*64} sc1""")
    ST_("o published")
    gg = B16
    a(f"""
s_lshl_b32 s38, s3, 5
s_lshl_b32 s53, s4, 2
s_add_u32 s38, s38, s53
s_add_u32 s38, s38, s6
s_lshl_b32 s38, s38, 12             ; *8*512
s_and_b32 s53, s46, 1
s_lshl_b32 s53, s53, 8
s_add_u32 s38, s38, s53
s_add_u32 s58, s38, {OW}
v_lshlrev_b32 v{t1}, 9, v{g}          ; cs*512
v_lshl_add_u32 v{t1}, v{n16}, 4, v{t1}
s_mov_b32 s55, {spin}
buffer_load_dwordx4 {rng(gg,4)}, v{t1}, s[28:31], s58 offen sc1
buffer_load_dwordx4 {rng(gg+4,4)}, v{t1}, s[28:31], s58 offen offset:2048 sc1
s_waitcnt vmcnt(4)
""")
    wb = A32
    for s in range(2):
        for tp in range(2):
            for hh in range(2):
                a(f"ds_read_b64_tr_b16 {rng(wb+8*s+4*tp+2*hh,2)}, v{vWOr+tp} offset:{s*2048 + hh*256}")
    a(f"""
s_waitcnt vmcnt(0)
L_ochk:
v_cmp_ne_u32 vcc, s52, v{gg+3}
v_cmp_ne_u32 s[38:39], s52, v{gg+7}
s_or_b64 vcc, vcc, s[38:39]
s_cbranch_vccz L_ook
s_sub_u32 s55, s55, 1
s_cbranch_scc1 L_ook
buffer_load_dwordx4 {rng(gg,4)}, v{t1}, s[28:31], s58 offen sc1
buffer_load_dwordx4 {rng(gg+4,4)}, v{t1}, s[28:31], s58 offen offset:2048 sc1
s_waitcnt vmcnt(0)
s_branch L_ochk
L_ook:
""")
    ST_("o gathered")
    e0 = va("e0"); e1 = va("e1"); u = A32 + 16; S = va("S"); oo = A32 + 24; ot = A32 + 28
    a(f"""
v_max_f32 v{M}, v{gg+2}, v{gg+6}
v_mov_b32 v{mt}, v{M}
v_lshlrev_b32 v{u}, 16, v{gg}
v_and_b32 v{u+1}, 0xffff0000, v{gg}
v_permlane16_swap_b32 v{M}, v{mt}
v_lshlrev_b32 v{u+2}, 16, v{gg+1}
v_max_f32 v{M}, v{M}, v{mt}
v_mov_b32 v{mt}, v{M}
v_and_b32 v{u+3}, 0xffff0000, v{gg+1}
v_lshlrev_b32 v{u+4}, 16, v{gg+4}
v_permlane32_swap_b32 v{M}, v{mt}
v_and_b32 v{u+5}, 0xffff0000, v{gg+4}
v_max_f32 v{M}, v{M}, v{mt}
v_lshlrev_b32 v{u+6}, 16, v{gg+5}
v_sub_f32 v{e0}, v{gg+2}, v{M}
v_sub_f32 v{e1}, v{gg+6}, v{M}
v_exp_f32 v{e0}, v{e0}
v_exp_f32 v{e1}, v{e1}
v_and_b32 v{u+7}, 0xffff0000, v{gg+5}
v_add_f32 v{S}, v{e0}, v{e1}
""")
    for r in range(4): a(f"v_mul_f32 v{oo+r}, v{e0}, v{u+r}")
    for r in range(4): a(f"v_fmac_f32 v{oo+r}, v{e1}, v{u+4+r}")
    for (perm) in ("v_permlane16_swap_b32", "v_permlane32_swap_b32"):
        a(f"v_mov_b32 v{mt}, v{S}")
        for r in range(4): a(f"v_mov_b32 v{ot+r}, v{oo+r}")
        a(f"{perm} v{S}, v{mt}")
        for r in range(4): a(f"{perm} v{oo+r}, v{ot+r}")
        a(f"v_add_f32 v{S}, v{S}, v{mt}")
        for r in range(4): a(f"v_add_f32 v{oo+r}, v{oo+r}, v{ot+r}")
    ob = B16 + 8; opk = va("opk", 2, 2)
    a(f"""
v_rcp_f32 v{S}, v{S}
s_mul_i32 s38, s3, 192
v_lshlrev_b32 v{t0}, 3, v{n16}
v_add_u32 v{t0}, s38, v{t0}
v_mul_f32 v{oo}, v{oo}, v{S}
v_mul_f32 v{oo+1}, v{oo+1}, v{S}
v_mul_f32 v{oo+2}, v{oo+2}, v{S}
v_mul_f32 v{oo+3}, v{oo+3}, v{S}
v_cvt_pk_bf16_f32 v{opk}, v{oo}, v{oo+1}
v_cvt_pk_bf16_f32 v{opk+1}, v{oo+2}, v{oo+3}
v_mul_u32_u24 v{t3}, 192, v{n4}
v_lshl_add_u32 v{t3}, v{g}, 4, v{t3}
s_mov_b64 exec, 0xffff
ds_write_b64 v{t0}, {rng(opk,2)} offset:{OL}
s_mov_b64 exec, -1
s_waitcnt lgkmcnt(0)
s_barrier
ds_read_b128 {rng(ob,4)}, v{t3} offset:{OL}
ds_read_b128 {rng(ob+4,4)}, v{t3} offset:{OL+64}
s_lshl_b32 s38, s49, 6
s_add_u32 s38, s38, s47
s_lshl_b32 s59, s38, 11
s_lshl_b32 s53, s3, 7
s_add_u32 s38, s59, s53
s_add_u32 s57, s38, {OX}
v_lshlrev_b32 v{t0}, 9, v{n16}
v_lshl_add_u32 v{t0}, v{g}, 4, v{t0}
v_cmp_gt_u32 vcc, 4, v{n16}
v_mov_b32 v{t1}, 0x7ffffff0
s_mov_b32 s36, 0x07060503
v_cndmask_b32 v{t0}, v{t1}, v{t0}, vcc
""")
    y = C32; yg = C32 + 8
    for s in range(2):
        a(f"s_waitcnt lgkmcnt({1-s})")
        for tp in range(2):
            c = "0" if s == 0 else rng(y+4*tp,4)
            a(f"v_mfma_f32_16x16x32_bf16 {rng(y+4*tp,4)}, {rng(wb+8*s+4*tp,4)}, {rng(ob+4*s,4)}, {c}")
    a(f"""
s_mov_b32 s37, 0x07060502
s_mov_b32 s40, 0x07060501
s_nop 5
""")
    for tp in range(2):
        a(f"""v_perm_b32 v{yg+4*tp}, v{y+4*tp}, v{y+4*tp+3}, s36
v_perm_b32 v{yg+4*tp+1}, v{y+4*tp+1}, v{y+4*tp+3}, s37
v_perm_b32 v{yg+4*tp+2}, v{y+4*tp+2}, v{y+4*tp+3}, s40
v_mov_b32 v{yg+4*tp+3}, s52
buffer_store_dwordx4 {rng(yg+4*tp,4)}, v{t0}, s[28:31], s57 offen offset:{tp*64} sc1""")
    ST_("out partial published")
    fg = C32 + 16; z = C32 + 24; zt = va("zt", 4)
    a(f"""
s_cmp_lg_u32 s3, 0
s_cbranch_scc1 L_fin
s_lshl_b32 s38, s49, 17             ; cg*64*2048
s_lshl_b32 s53, s47, 5              ; 2i*16
s_add_u32 s38, s38, s53
s_add_u32 s58, s38, {OX}
s_add_u32 s59, s58, 65536
v_lshrrev_b32 v{t1}, 1, v{l}
v_lshlrev_b32 v{t1}, 11, v{t1}
v_and_b32 v{t2}, 1, v{l}
v_lshl_or_b32 v{t1}, v{t2}, 4, v{t1}
s_mov_b32 s55, {spin}
L_fpoll:
buffer_load_dwordx4 {rng(fg,4)}, v{t1}, s[28:31], s58 offen sc1
buffer_load_dwordx4 {rng(fg+4,4)}, v{t1}, s[28:31], s59 offen sc1
s_waitcnt vmcnt(0)
v_cmp_ne_u32 vcc, s52, v{fg+3}
v_cmp_ne_u32 s[38:39], s52, v{fg+7}
s_or_b64 vcc, vcc, s[38:39]
s_cbranch_vccz L_fok
s_sub_u32 s55, s55, 1
s_cbranch_scc0 L_fpoll
L_fok:
""")
    ST_("final gathered")
    a(f"""
s_mov_b32 s36, 0x04000c0c
s_mov_b32 s37, 0x0706000c
v_perm_b32 v{z+3}, v{fg}, v{fg+1}, s36
v_perm_b32 v{z+7}, v{fg+4}, v{fg+5}, s36
v_perm_b32 v{z+3}, v{z+3}, v{fg+2}, s37
v_perm_b32 v{z+7}, v{z+7}, v{fg+6}, s37
v_add_f32 v{z}, v{fg}, v{fg+4}
v_add_f32 v{z+1}, v{fg+1}, v{fg+5}
v_add_f32 v{z+2}, v{fg+2}, v{fg+6}
v_add_f32 v{z+3}, v{z+3}, v{z+7}
""")
    for dpp in ("quad_perm:[2,3,0,1]", "row_half_mirror", "row_mirror"):
        pass
    a("s_nop 1")
    for ctl in ("quad_perm:[2,3,0,1]", "row_ror:4", "row_ror:8"):
        for r in range(4):
            a(f"v_add_f32_dpp v{z+r}, v{z+r}, v{z+r} {ctl} row_mask:0xf bank_mask:0xf")
    for perm in ("v_permlane16_swap_b32", "v_permlane32_swap_b32"):
        for r in range(4): a(f"v_mov_b32 v{zt+r}, v{z+r}")
        for r in range(4): a(f"{perm} v{z+r}, v{zt+r}")
        for r in range(4): a(f"v_add_f32 v{z+r}, v{z+r}, v{zt+r}")
    a(f"""
v_cvt_pk_bf16_f32 v{z}, v{z}, v{z+1}
v_cvt_pk_bf16_f32 v{z+1}, v{z+2}, v{z+3}
; out offset: (b*512 + cg*128 + (i%16)*8 + 4*(l&1))*2, b = i/16 ; lanes >= 2 OOB
s_lshr_b32 s38, s47, 4
s_lshl_b32 s38, s38, 10
s_lshl_b32 s53, s49, 8
s_add_u32 s38, s38, s53
s_and_b32 s53, s47, 15
s_lshl_b32 s53, s53, 4
s_add_u32 s38, s38, s53
v_lshlrev_b32 v{t2}, 3, v{l}
v_add_u32 v{t2}, s38, v{t2}
v_cmp_gt_u32 vcc, 2, v{l}
v_mov_b32 v{t3}, 0x7ffffff0
s_nop 0
v_cndmask_b32 v{t2}, v{t3}, v{t2}, vcc
buffer_store_dwordx2 {rng(z,2)}, v{t2}, s[32:35], 0 offen
s_cmp_lg_u32 s2, 0
s_cbranch_scc1 L_fin
v_mov_b32 v{t0}, s52
v_mov_b32 v{t1}, 0
s_mov_b64 exec, 1
buffer_store_dword v{t0}, v{t1}, s[28:31], 0 offen sc1
s_mov_b64 exec, -1
L_fin:
""")
    if amp >= 0:
        ST_("end")
        e = nst[0] - 1
        a(f"""
s_cmp_lg_u32 s2, 0
s_cbranch_scc1 L_end
s_cmp_lg_u32 s3, 0
s_cbranch_scc1 L_end
v_lshlrev_b32 v{t1}, 4, v{l}
buffer_load_dwordx4 {rng(C32,4)}, v{t1}, s[28:31], {'s38'} offen sc1
""".replace("{'s38'}", "s38") if False else f"""
s_waitcnt lgkmcnt(0)
s_cmp_lg_u32 s2, 0
s_cbranch_scc1 L_end
s_cmp_lg_u32 s3, 0
s_cbranch_scc1 L_end
s_mov_b32 s38, {ST}
v_lshlrev_b32 v{t1}, 4, v{l}
buffer_load_dwordx4 {rng(C32,4)}, v{t1}, s[28:31], s38 offen sc1
s_waitcnt vmcnt(0)
v_subrev_u32 v{C32}, s60, v{C32}
v_subrev_u32 v{C32+1}, s60, v{C32+1}
v_subrev_u32 v{C32+2}, s60, v{C32+2}
v_subrev_u32 v{C32+3}, s60, v{C32+3}
v_min_i32 v{C32}, v{C32}, v{C32+1}
v_min_i32 v{C32+2}, v{C32+2}, v{C32+3}
v_min_i32 v{C32}, v{C32}, v{C32+2}
s_nop 1
v_min_i32_dpp v{C32}, v{C32}, v{C32} row_ror:1 row_mask:0xf bank_mask:0xf
s_nop 1
v_min_i32_dpp v{C32}, v{C32}, v{C32} row_ror:2 row_mask:0xf bank_mask:0xf
s_nop 1
v_min_i32_dpp v{C32}, v{C32}, v{C32} row_ror:4 row_mask:0xf bank_mask:0xf
s_nop 1
v_min_i32_dpp v{C32}, v{C32}, v{C32} row_ror:8 row_mask:0xf bank_mask:0xf
s_nop 1
v_readlane_b32 s36, v{C32}, 0
v_readlane_b32 s37, v{C32}, 16
v_readlane_b32 s38, v{C32}, 32
v_readlane_b32 s39, v{C32}, 48
s_nop 3
s_min_i32 s36, s36, s37
s_min_i32 s38, s38, s39
s_min_i32 s36, s36, s38
s_sub_u32 s37, s{60+2*amp}, s60
""")
        probe_ = probe.strip()
        if probe_:
            a("s_memrealtime s[42:43]\ns_waitcnt lgkmcnt(0)")
            if probe_ == "nop512":
                for i in range(512): a("s_nop 0")
            elif probe_ == "nop2048":
                for i in range(2048): a("s_nop 0")
            elif probe_ == "loop512":
                a("s_mov_b32 s38, 32\nL_pl:")
                for i in range(14): a("s_nop 0")
                a("s_sub_u32 s38, s38, 1\ns_cmp_lg_u32 s38, 0\ns_cbranch_scc1 L_pl")
            elif probe_ == "big512":
                for i in range(512): a("s_mov_b32 s46, 0x12345678")
            elif probe_ == "bigloop512":
                a("s_mov_b32 s38, 32\nL_pl:")
                for i in range(14): a("s_mov_b32 s46, 0x12345678")
                a("s_sub_u32 s38, s38, 1\ns_cmp_lg_u32 s38, 0\ns_cbranch_scc1 L_pl")
            elif probe_ == "valu512":
                for i in range(512): a(f"v_add3_u32 v{100+i%8}, v90, v91, v92")
            elif probe_ == "valuloop512":
                a("s_mov_b32 s38, 32\nL_pl:")
                for i in range(16): a(f"v_add3_u32 v{100+i%8}, v90, v91, v92")
                a("s_sub_u32 s38, s38, 1\ns_cmp_lg_u32 s38, 0\ns_cbranch_scc1 L_pl")
            elif probe_ == "jumps":
                for i in range(32):
                    a(f"s_branch L_j{i}")
                    for k in range(63): a("s_nop 0")
                    a(f"L_j{i}:")
            elif probe_ == "clk":
                a("s_memtime s[46:47]\ns_waitcnt lgkmcnt(0)\nL_ck:\ns_memtime s[48:49]\ns_waitcnt lgkmcnt(0)\ns_sub_u32 s50, s48, s46\ns_cmp_lt_u32 s50, 4000\ns_cbranch_scc1 L_ck")
            elif probe_ == "freshpage":
                a(f"s_mov_b32 s38, {128<<20}\nv_mov_b32 v{t1}, 0\nbuffer_load_dword v{t0}, v{t1}, s[28:31], s38 offen\ns_waitcnt vmcnt(0)")
            elif probe_ == "coldline":
                a(f"s_mov_b32 s38, {640<<10}\nv_mov_b32 v{t1}, 0\nbuffer_load_dword v{t0}, v{t1}, s[12:15], s38 offen\ns_waitcnt vmcnt(0)")
            elif probe_ == "kfar":
                a(f"s_mov_b32 s38, {(31<<20)}\nv_mov_b32 v{t1}, 0\nbuffer_load_dword v{t0}, v{t1}, s[12:15], s38 offen\ns_waitcnt vmcnt(0)")
            elif probe_ == "empty":
                pass
            a("s_memrealtime s[44:45]\ns_waitcnt lgkmcnt(0)\ns_sub_u32 s37, s44, s42\ns_mov_b32 s%d, s44" % (60+2*e))
        if ampref == 1: a("s_sub_u32 s37, s37, s36")
        if ampref == 2: a("s_sub_u32 s37, 0, s36")
        a(f"""
s_mul_i32 s37, s37, {ampk}
s_add_u32 s37, s37, s{60+2*e}
L_amp:
s_memrealtime s[40:41]
s_waitcnt lgkmcnt(0)
s_cmp_lt_u32 s40, s37
s_cbranch_scc1 L_amp
""")
    elif stamp:
        ST_("end")
        n = nst[0]
        a(f"""
s_waitcnt lgkmcnt(0) vmcnt(0)
s_lshl_b32 s4, s2, 2
s_add_u32 s4, s4, s3
s_lshl_b32 s4, s4, 6
s_add_u32 s4, s4, {ST}
v_mov_b32 v{t1}, 0
s_mov_b64 exec, 1
""")
        for i in range(n):
            a(f"v_mov_b32 v{t0}, s{60+2*i}\nbuffer_store_dword v{t0}, v{t1}, s[28:31], s4 offen offset:{4*i}\ns_nop 0")
    a("L_end:\ns_endpgm")
    body = a.text()
    nv = va.hi
    s = header([f"; @launch grid=(256,1,1) block=(256,1,1) lds={LDS_BYTES}"]) + kernel_begin(KNAME) + body + RODATA + descriptor(KNAME, nv, 96)
    errs = haz.check(body)
    for e in errs: print("HAZ", e)
    return s, nv, nst[0]
if __name__ == "__main__":
    out = sys.argv[1] if len(sys.argv) > 1 else "a1.s"
    kw = {}
    for x in sys.argv[2:]:
        k, v = x.split("=")
        kw[k] = (v == "1") if k == "stamp" else (int(v) if v.isdigit() else (" " + v if v else ""))
    s, nv, ns = gen(**kw)
    open(out, "w").write(s)
    print("vgprs", nv, "stamps", ns, "lds", LDS_BYTES)
```

```python
import sys
sys.path.insert(0, "my")
from ag import *
import haz

QX = 0x1000
OW = 0x20000
OX = 0x100000
ST = 0x200000
WS_BYTES = 268435456
QRED = 0
QL = QRED + 1024
PL = QL + 1280
SL = PL + 1024
OL = SL + 128
XL = 4352; WQ = XL + 4096; KL = WQ + 16384; VL = KL + 32768; WO = VL + 32768
LDS_BYTES = WO + 16384
assert OL + 768 <= XL
CSC = 0.08838834764831845 * 1.4426950408889634
import struct
def f32(x): return "0x%08x" % struct.unpack("<I", struct.pack("<f", x))[0]

class V:
    def __init__(s): s.n = 0; s.names = {}
    def __call__(s, name, cnt=1, align=1):
        s.n = (s.n + align - 1) // align * align
        r = s.n; s.n += cnt; s.names[name] = r; s.hi = max(getattr(s, 'hi', 0), s.n)
        return r
    def mark(s): return s.n
    def release(s, m): s.n = m
def rng(r, n): return f"v[{r}:{r+n-1}]"

def gen(stamp=False, nt_kv="", nt_w="", v1cnt=6, spin=200000, amp=-1, ampk=10, ampref=0, probe=""):
    if amp >= 0: stamp = True
    a = A(); va = V()
    v_tid = va("tid"); l = va("lane"); t0 = va("t0"); t1 = va("t1"); t2 = va("t2"); t3 = va("t3")
    vX = va("vX"); vWQ = va("vWQ"); vK = va("vK", 4); vV = va("vV"); vWO = va("vWO")
    nst = [0]
    def ST_(label):
        if stamp:
            i = nst[0]; nst[0] += 1
            assert i < 15
            a(f"s_memrealtime s[{60+2*i}:{61+2*i}]   ; stamp {i} {label}")
    a(f"""
s_cmp_ge_u32 s2, 256
s_cbranch_scc1 L_end
s_load_dwordx2 s[8:9], s[0:1], 0
s_load_dwordx2 s[20:21], s[0:1], 24
s_load_dwordx2 s[12:13], s[0:1], 8
s_load_dwordx2 s[16:17], s[0:1], 16
s_load_dwordx2 s[24:25], s[0:1], 32
s_load_dwordx2 s[32:33], s[0:1], 40
s_load_dwordx2 s[28:29], s[0:1], 56
""")
    ST_("entry")
    a(f"""
v_lshrrev_b32 v{t0}, 6, v0
v_and_b32 v{l}, 63, v0
s_and_b32 s4, s2, 7
v_readfirstlane_b32 s3, v{t0}       ; w = wave
s_lshr_b32 s5, s2, 3                ; r
s_lshr_b32 s6, s5, 3                ; b
s_and_b32 s7, s5, 7                 ; c
s_mov_b32 s10, 4096
s_mov_b32 s11, 0x20000
s_mov_b32 s22, 4194304
s_mov_b32 s23, 0x20000
s_mov_b32 s14, 33554432
s_mov_b32 s15, 0x20000
s_mov_b32 s18, 33554432
s_mov_b32 s19, 0x20000
s_mov_b32 s26, 4194304
s_mov_b32 s27, 0x20000
s_mov_b32 s30, {WS_BYTES}
s_mov_b32 s31, 0x20000
s_mov_b32 s34, 4096
s_mov_b32 s35, 0x20000
; x voffset: (l>>4)*1024 + ((l&15) ^ (4*(l>>4)))*16
v_lshrrev_b32 v{t0}, 4, v{l}           ; l>>4
v_and_b32 v{t1}, 15, v{l}              ; l&15
v_lshlrev_b32 v{t2}, 2, v{t0}
v_xor_b32 v{t2}, v{t1}, v{t2}
v_lshlrev_b32 v{t2}, 4, v{t2}
v_lshl_add_u32 v{vX}, v{t0}, 10, v{t2}
; K voffsets: (l>>4)*256 + ((l&15)^(l>>4))*16  ^ (64*i)
v_xor_b32 v{t2}, v{t1}, v{t0}
v_lshlrev_b32 v{t2}, 4, v{t2}
v_lshl_add_u32 v{vK}, v{t0}, 8, v{t2}
v_xor_b32 v{vK+1}, 64, v{vK}
v_xor_b32 v{vK+2}, 0x80, v{vK}
v_xor_b32 v{vK+3}, 0xc0, v{vK}
v_bfe_u32 v{t2}, v{l}, 1, 2
v_bfe_u32 v{t3}, v{l}, 3, 2
v_lshl_or_b32 v{t2}, v{t3}, 3, v{t2}
v_bfe_u32 v{t3}, v{l}, 5, 1
v_lshl_or_b32 v{t2}, v{t3}, 2, v{t2}
v_lshlrev_b32 v{t2}, 13, v{t2}
v_and_b32 v{t3}, 1, v{l}
v_lshl_or_b32 v{vWQ}, v{t3}, 4, v{t2}
s_lshl_b32 s36, s3, 8               ; x soff = w*256
s_lshl_b32 s37, s4, 10
s_lshl_b32 s38, s5, 5
s_add_u32 s37, s37, s38
s_lshl_b32 s38, s3, 20
s_add_u32 s37, s37, s38
s_lshl_b32 s39, s6, 3
s_add_u32 s39, s39, s4
s_lshl_b32 s39, s39, 20
s_lshl_b32 s38, s7, 15
s_add_u32 s39, s39, s38
s_add_u32 s39, s39, 786432
s_lshl_b32 s38, s3, 13
s_add_u32 s40, s39, s38
s_lshl_b32 s41, s3, 10
s_add_u32 s41, s41, {XL}
s_lshl_b32 s42, s3, 12              ; w*4096
s_lshl_b32 s43, s3, 13              ; w*8192
s_add_u32 s90, s42, {WQ}
s_add_u32 s91, s43, {KL}
s_add_u32 s92, s43, {VL}
s_add_u32 s93, s42, {WO}
s_mov_b32 m0, s41
s_waitcnt lgkmcnt(0)
""")
    ST_("karg")
    if amp >= 0:
        a(f"""s_waitcnt lgkmcnt(0)
s_lshl_b32 s38, s2, 2
s_add_u32 s38, s38, {ST}
v_mov_b32 v{t0}, s60
v_mov_b32 v{t1}, 0
s_mov_b64 exec, 1
buffer_store_dword v{t0}, v{t1}, s[28:31], s38 offen sc1
s_mov_b64 exec, -1""")
    a(f"buffer_load_dwordx4 v{vX}, s[8:11], s36 offen lds")
    a(f"s_mov_b32 m0, s90")
    for i in range(4):
        if i: a(f"s_add_u32 s37, s37, {(1<<18) - 1024}")
        else: a("s_nop 0")
        a(f"buffer_load_dwordx4 v{vWQ}, s[20:23], s37 offen offset:{i*1024}{nt_w} lds")
    a(f"s_mov_b32 m0, s91")
    a("s_load_dword s44, s[28:29], 0        ; epoch")
    for i in range(8):
        if i == 4:
            a("s_add_u32 m0, m0, 4096\ns_add_u32 s40, s40, 4096")
        a(f"buffer_load_dwordx4 v{vK+i%4}, s[12:15], s40 offen offset:{(i%4)*1024}{nt_kv} lds")
    ST_("issued1")
    g = va("g"); n16 = va("n16"); n4 = va("n4")
    vXr = va("vXr"); vWQr = va("vWQr"); vKr = va("vKr", 4); vVr = va("vVr", 2); vWOr = va("vWOr", 2)
    a(f"""
v_lshrrev_b32 v{g}, 4, v{l}            ; g = l>>4
v_and_b32 v{n16}, 15, v{l}             ; n = l&15
v_and_b32 v{n4}, 3, v{l}               ; n&3 == l&3
; V voffset: (l>>2)*256 + ((l&3) ^ (((l>>4)&1)<<1))*16
v_lshrrev_b32 v{t0}, 2, v{l}
v_and_b32 v{t1}, 1, v{g}
v_lshlrev_b32 v{t1}, 1, v{t1}          ; (g&1)<<1
v_xor_b32 v{t2}, v{n4}, v{t1}
v_lshlrev_b32 v{t2}, 4, v{t2}
v_lshl_add_u32 v{vV}, v{t0}, 8, v{t2}
v_lshrrev_b32 v{t3}, 5, v{l}
v_lshlrev_b32 v{t3}, 1, v{t3}
v_xor_b32 v{t2}, v{n4}, v{t3}
v_lshlrev_b32 v{t2}, 4, v{t2}
v_lshl_add_u32 v{vWO}, v{t0}, 10, v{t2}
v_lshlrev_b32 v{t2}, 2, v{n4}
v_xor_b32 v{t2}, v{g}, v{t2}
v_lshlrev_b32 v{t2}, 4, v{t2}
v_lshl_add_u32 v{t2}, v{n4}, 8, v{t2}
v_add_u32 v{vXr}, s41, v{t2}
v_lshlrev_b32 v{t2}, 3, v{l}
v_add_u32 v{vWQr}, s90, v{t2}
v_xor_b32 v{t2}, v{g}, v{n16}
v_lshlrev_b32 v{t2}, 4, v{t2}
v_lshl_add_u32 v{t2}, v{n16}, 8, v{t2}
v_add_u32 v{vKr}, s91, v{t2}
v_xor_b32 v{vKr+1}, 64, v{vKr}
v_xor_b32 v{vKr+2}, 0x80, v{vKr}
v_xor_b32 v{vKr+3}, 0xc0, v{vKr}
v_bfe_u32 v{t0}, v{l}, 2, 2            ; r
v_lshl_add_u32 v{t2}, v{g}, 2, v{t0}   ; 4g+r
v_lshlrev_b32 v{t2}, 6, v{t2}
v_lshl_add_u32 v{t2}, v{n4}, 3, v{t2}  ; + c*8
v_and_b32 v{t1}, 1, v{g}
v_lshl_add_u32 v{t2}, v{t1}, 5, v{t2}  ; t'=0: (g&1)*32
v_add_u32 v{vVr}, s92, v{t2}
v_xor_b32 v{vVr+1}, 32, v{vVr}
v_lshl_add_u32 v{t2}, v{g}, 3, v{t0}
v_lshlrev_b32 v{t2}, 6, v{t2}
v_lshl_add_u32 v{t2}, v{n4}, 3, v{t2}
v_lshl_add_u32 v{t2}, v{t1}, 5, v{t2}
v_add_u32 v{vWOr}, s93, v{t2}
v_xor_b32 v{vWOr+1}, 32, v{vWOr}
s_lshl_b32 s38, s3, 6
s_add_u32 s45, s39, s38
s_lshr_b32 s46, s5, 2               ; r/4
s_lshl_b32 s47, s4, 3
s_add_u32 s47, s47, s46             ; p = g*8 + r/4
s_lshl_b32 s48, s47, 16             ; j0*1024 = p*64*1024
s_and_b32 s49, s5, 3                ; cg
s_lshl_b32 s38, s49, 8
s_add_u32 s48, s48, s38
s_lshl_b32 s38, s3, 6
s_add_u32 s48, s48, s38
""")
    vXs = va("vXs", 3)
    a(f"v_xor_b32 v{vXs}, 64, v{vXr}\nv_xor_b32 v{vXs+1}, 0x80, v{vXr}\nv_xor_b32 v{vXs+2}, 0xc0, v{vXr}")
    A32 = va("A32", 32, 4); B16 = va("B16", 16, 4); C32 = va("C32", 32, 4)
    xb = A32; wa = A32 + 16; acc = va("acc", 4, 4)
    a("s_waitcnt vmcnt(8)")
    ST_("wq landed")
    for s in range(4):
        xa = vXr if s == 0 else vXs + s - 1
        a(f"ds_read_b128 {rng(xb+4*s,4)}, v{xa}")
        a(f"ds_read_b64_tr_b16 {rng(wa+4*s,2)}, v{vWQr} offset:{s*1024}")
        a(f"ds_read_b64_tr_b16 {rng(wa+4*s+2,2)}, v{vWQr} offset:{s*1024 + 512}")
    for s in range(4):
        a(f"s_waitcnt lgkmcnt({3*(3-s)})")
        c = "0" if s == 0 else rng(acc,4)
        a(f"v_mfma_f32_16x16x32_bf16 {rng(acc,4)}, {rng(wa+4*s,4)}, {rng(xb+4*s,4)}, {c}")
    a(f"""
v_lshlrev_b32 v{t2}, 6, v{n4}
v_lshl_add_u32 v{t2}, v{g}, 4, v{t2}
s_lshl_b32 s38, s3, 8
v_add_u32 v{t2}, s38, v{t2}
s_mov_b32 s50, 0x000f000f
s_mov_b32 s51, 0x000f000f
v_and_b32 v{t0}, 7, v{l}
v_lshlrev_b32 v{t1}, 3, v{t0}
s_lshl_b32 s38, s3, 6
v_add_u32 v{t1}, s38, v{t1}
s_mov_b64 exec, s[50:51]
ds_write_b128 v{t2}, {rng(acc,4)} offset:{QRED}
s_mov_b64 exec, -1
s_waitcnt lgkmcnt(0)
s_barrier
""")
    qp = va("qp", 8, 2)
    for w2 in range(4):
        a(f"ds_read_b64 {rng(qp+2*w2,2)}, v{t1} offset:{QRED + w2*256}")
    a(f"""
s_mul_i32 s52, s44, 1664525
s_add_u32 s52, s52, 1013904223      ; tag
s_lshl_b32 s38, s4, 2
s_add_u32 s38, s38, s3
s_lshl_b32 s38, s38, 11
s_lshl_b32 s53, s5, 6
s_add_u32 s38, s38, s53
s_add_u32 s38, s38, {QX}
v_lshlrev_b32 v{t2}, 3, v{t0}
v_add_u32 v{t2}, s38, v{t2}
v_cmp_gt_u32 vcc, 8, v{l}
v_mov_b32 v{t3}, 0x7ffffff0
s_nop 0
v_cndmask_b32 v{t2}, v{t3}, v{t2}, vcc
s_waitcnt lgkmcnt(0)
v_add_f32 v{qp}, v{qp}, v{qp+2}
v_add_f32 v{qp+1}, v{qp+1}, v{qp+3}
v_add_f32 v{qp+4}, v{qp+4}, v{qp+6}
v_add_f32 v{qp+5}, v{qp+5}, v{qp+7}
v_add_f32 v{qp}, v{qp}, v{qp+4}
v_add_f32 v{qp+1}, v{qp+1}, v{qp+5}
v_cvt_pk_bf16_f32 v{qp}, v{qp}, v{qp+1}
v_mov_b32 v{qp+1}, s52
buffer_store_dwordx2 {rng(qp,2)}, v{t2}, s[28:31], 0 offen sc1
""")
    ST_("q published")
    a(f"s_mov_b32 m0, s92")
    def vload(i):
        if i % 4 == 0 and i: a("s_add_u32 m0, m0, 4096")
        if i: a(f"s_add_u32 s45, s45, {4096 - 1024 if i % 4 else 4096 + 3072}")
        else: a("s_nop 0")
        a(f"buffer_load_dwordx4 v{vV}, s[16:19], s45 offen offset:{(i%4)*1024}{nt_kv} lds")
    for i in range(v1cnt): vload(i)
    vG = va("vG"); gq = va("gq", 2, 2)
    a(f"""
s_lshl_b32 s38, s4, 2
s_add_u32 s38, s38, s6
s_lshl_b32 s38, s38, 11
s_lshl_b32 s53, s3, 9
s_add_u32 s38, s38, s53
s_add_u32 s54, s38, {QX}
v_lshlrev_b32 v{vG}, 3, v{l}
s_waitcnt vmcnt({1 + v1cnt})
""")
    ST_("K landed")
    a(f"buffer_load_dwordx2 {rng(gq,2)}, v{vG}, s[28:31], s54 offen sc1")
    for i in range(v1cnt, 8): vload(i)
    a(f"s_mov_b32 m0, s93")
    for i in range(4):
        if i: a(f"s_add_u32 s48, s48, {16384 - 1024}")
        else: a("s_nop 0")
        a(f"buffer_load_dwordx4 v{vWO}, s[24:27], s48 offen offset:{i*1024}{nt_w} lds")
    ka = A32
    for t in range(2):
        for s in range(4):
            a(f"ds_read_b128 {rng(ka+16*t+4*s,4)}, v{vKr+s} offset:{t*4096}")
    nafter = (8 - v1cnt) + 4
    a(f"""
s_mov_b32 s55, {spin}
s_waitcnt vmcnt({nafter})
L_qchk:
v_cmp_ne_u32 vcc, s52, v{gq+1}
s_cbranch_vccz L_qok
s_sub_u32 s55, s55, 1
s_cbranch_scc1 L_qok
s_sleep 1
buffer_load_dwordx2 {rng(gq,2)}, v{vG}, s[28:31], s54 offen sc1
s_waitcnt vmcnt(0)
s_branch L_qchk
L_qok:
""")
    ST_("q gathered")
    qb = B16
    a(f"""
v_lshlrev_b32 v{t2}, 2, v{l}
s_mul_i32 s38, s3, 320
v_add_u32 v{t2}, s38, v{t2}
ds_write_b32 v{t2}, v{gq} offset:{QL}
v_mul_u32_u24 v{t3}, 320, v{n4}
v_lshl_add_u32 v{t3}, v{g}, 4, v{t3}
s_waitcnt lgkmcnt(0)
s_barrier
""")
    for s in range(4):
        a(f"ds_read_b128 {rng(qb+4*s,4)}, v{t3} offset:{QL + s*64}")
    sc = C32
    for s in range(4):
        a(f"s_waitcnt lgkmcnt({3-s})")
        for t in range(2):
            c = "0" if s == 0 else rng(sc+4*t,4)
            a(f"v_mfma_f32_16x16x32_bf16 {rng(sc+4*t,4)}, {rng(ka+16*t+4*s,4)}, {rng(qb+4*s,4)}, {c}")
    m = va("m"); mt = va("mt"); ls = va("ls"); pk = va("pk", 4, 4); st2 = va("st2", 2, 2)
    a(f"""
v_lshlrev_b32 v{t2}, 6, v{n4}
v_lshl_add_u32 v{t2}, v{g}, 4, v{t2}
s_lshl_b32 s38, s3, 8
v_add_u32 v{t0}, s38, v{t2}
v_lshlrev_b32 v{t1}, 5, v{n4}
s_lshl_b32 s38, s3, 3
v_add_u32 v{t3}, s38, v{t1}
s_mov_b32 s56, {f32(CSC)}
s_nop 1
v_max3_f32 v{m}, v{sc}, v{sc+1}, v{sc+2}
v_max3_f32 v{m}, v{m}, v{sc+3}, v{sc+4}
v_max3_f32 v{m}, v{m}, v{sc+5}, v{sc+6}
v_max_f32 v{m}, v{m}, v{sc+7}
v_mov_b32 v{mt}, v{m}
s_nop 1
v_permlane16_swap_b32 v{m}, v{mt}
s_nop 0
v_max_f32 v{m}, v{m}, v{mt}
v_mov_b32 v{mt}, v{m}
s_nop 1
v_permlane32_swap_b32 v{m}, v{mt}
s_nop 0
v_max_f32 v{m}, v{m}, v{mt}
v_mul_f32 v{m}, s56, v{m}
""")
    for i in range(8):
        a(f"v_fma_f32 v{sc+i}, v{sc+i}, s56, -v{m}")
    for i in range(8):
        a(f"v_exp_f32 v{sc+i}, v{sc+i}")
    a(f"""
s_nop 0
v_add_f32 v{ls}, v{sc}, v{sc+1}
v_add_f32 v{mt}, v{sc+2}, v{sc+3}
v_cvt_pk_bf16_f32 v{pk}, v{sc}, v{sc+1}
v_cvt_pk_bf16_f32 v{pk+1}, v{sc+2}, v{sc+3}
v_add_f32 v{ls}, v{ls}, v{mt}
v_add_f32 v{mt}, v{sc+4}, v{sc+5}
v_cvt_pk_bf16_f32 v{pk+2}, v{sc+4}, v{sc+5}
v_add_f32 v{ls}, v{ls}, v{mt}
v_add_f32 v{mt}, v{sc+6}, v{sc+7}
v_cvt_pk_bf16_f32 v{pk+3}, v{sc+6}, v{sc+7}
v_add_f32 v{ls}, v{ls}, v{mt}
s_mov_b64 exec, s[50:51]
ds_write_b128 v{t0}, {rng(pk,4)} offset:{PL}
s_mov_b64 exec, -1
v_mov_b32 v{mt}, v{ls}
s_nop 1
v_permlane16_swap_b32 v{ls}, v{mt}
s_nop 0
v_add_f32 v{ls}, v{ls}, v{mt}
v_mov_b32 v{mt}, v{ls}
s_nop 1
v_permlane32_swap_b32 v{ls}, v{mt}
s_nop 0
v_add_f32 v{st2+1}, v{ls}, v{mt}
v_mov_b32 v{st2}, v{m}
s_mov_b64 exec, s[50:51]
ds_write_b64 v{t3}, {rng(st2,2)} offset:{SL}
s_mov_b64 exec, -1
s_waitcnt lgkmcnt(0)
s_barrier
""")
    ST_("P written")
    pb = B16; sv = va("sv", 8, 4); vaop = A32
    for ks in range(4):
        a(f"ds_read_b128 {rng(pb+4*ks,4)}, v{t2} offset:{PL + ks*256}")
    a(f"ds_read_b128 {rng(sv,4)}, v{t1} offset:{SL}")
    a(f"ds_read_b128 {rng(sv+4,4)}, v{t1} offset:{SL+16}")
    a("s_waitcnt vmcnt(4)")
    ST_("V landed")
    def vread(ks):
        for tp in range(2):
            for e in range(2):
                a(f"ds_read_b64_tr_b16 {rng(vaop+8*ks+4*tp+2*e,2)}, v{vVr+tp} offset:{ks*2048 + e*1024}")
    D = C32
    def pv(ks):
        for tp in range(2):
            a(f"v_mfma_f32_16x16x32_bf16 {rng(D+8*ks+4*tp,4)}, {rng(vaop+8*ks+4*tp,4)}, {rng(pb+4*ks,4)}, 0")
    vread(0); vread(1)
    M = va("M"); ff = va("ff", 4); L = va("L")
    a(f"""
s_waitcnt lgkmcnt(8)
v_max3_f32 v{M}, v{sv}, v{sv+2}, v{sv+4}
v_max_f32 v{M}, v{M}, v{sv+6}
""")
    vread(2)
    a(f"""
v_sub_f32 v{ff}, v{sv}, v{M}
v_sub_f32 v{ff+1}, v{sv+2}, v{M}
v_sub_f32 v{ff+2}, v{sv+4}, v{M}
v_sub_f32 v{ff+3}, v{sv+6}, v{M}
s_waitcnt lgkmcnt(8)
""")
    pv(0)
    vread(3)
    a(f"""
v_exp_f32 v{ff}, v{ff}
v_exp_f32 v{ff+1}, v{ff+1}
v_exp_f32 v{ff+2}, v{ff+2}
v_exp_f32 v{ff+3}, v{ff+3}
s_waitcnt lgkmcnt(8)
""")
    pv(1)
    a(f"""
v_mul_f32 v{L}, v{ff}, v{sv+1}
v_fmac_f32 v{L}, v{ff+1}, v{sv+3}
s_waitcnt lgkmcnt(4)
""")
    pv(2)
    a(f"""
v_fmac_f32 v{L}, v{ff+2}, v{sv+5}
v_fmac_f32 v{L}, v{ff+3}, v{sv+7}
s_waitcnt lgkmcnt(0)
""")
    pv(3)
    R = va("R"); lse = va("lse"); og = va("og", 8, 4)
    a(f"""
v_rcp_f32 v{R}, v{L}
v_log_f32 v{lse}, v{L}
s_nop 0
v_mul_f32 v{ff}, v{ff}, v{R}
v_mul_f32 v{ff+1}, v{ff+1}, v{R}
v_mul_f32 v{ff+2}, v{ff+2}, v{R}
v_mul_f32 v{ff+3}, v{ff+3}, v{R}
v_add_f32 v{lse}, v{lse}, v{M}
s_lshl_b32 s38, s6, 5
s_lshl_b32 s53, s4, 2
s_add_u32 s38, s38, s53
s_lshl_b32 s38, s38, 3
s_add_u32 s38, s38, s7
s_lshl_b32 s38, s38, 9              ; *32*16
s_lshl_b32 s53, s3, 7               ; 8w*16
s_add_u32 s38, s38, s53
s_add_u32 s57, s38, {OW}
v_lshlrev_b32 v{t0}, 12, v{n16}       ; n*8*512
v_lshl_add_u32 v{t0}, v{g}, 4, v{t0}
v_cmp_gt_u32 vcc, 4, v{n16}
v_mov_b32 v{t3}, 0x7ffffff0
s_nop 0
v_cndmask_b32 v{t0}, v{t3}, v{t0}, vcc
""")
    o = va("o", 8, 4)
    for tp in range(2):
        for r in range(4):
            a(f"v_mul_f32 v{o+4*tp+r}, v{ff}, v{D+4*tp+r}")
    for ks in range(1, 4):
        for tp in range(2):
            for r in range(4):
                a(f"v_fmac_f32 v{o+4*tp+r}, v{ff+ks}, v{D+8*ks+4*tp+r}")
    for tp in range(2):
        a(f"""v_cvt_pk_bf16_f32 v{og+4*tp}, v{o+4*tp}, v{o+4*tp+1}
v_cvt_pk_bf16_f32 v{og+4*tp+1}, v{o+4*tp+2}, v{o+4*tp+3}
v_mov_b32 v{og+4*tp+2}, v{lse}
v_mov_b32 v{og+4*tp+3}, s52
buffer_store_dwordx4 {rng(og+4*tp,4)}, v{t0}, s[28:31], s57 offen offset:{tp*64} sc1""")
    ST_("o published")
    gg = B16
    a(f"""
s_lshl_b32 s38, s3, 5
s_lshl_b32 s53, s4, 2
s_add_u32 s38, s38, s53
s_add_u32 s38, s38, s6
s_lshl_b32 s38, s38, 12             ; *8*512
s_and_b32 s53, s46, 1
s_lshl_b32 s53, s53, 8
s_add_u32 s38, s38, s53
s_add_u32 s58, s38, {OW}
v_lshlrev_b32 v{t1}, 9, v{g}          ; cs*512
v_lshl_add_u32 v{t1}, v{n16}, 4, v{t1}
s_mov_b32 s55, {spin}
buffer_load_dwordx4 {rng(gg,4)}, v{t1}, s[28:31], s58 offen sc1
buffer_load_dwordx4 {rng(gg+4,4)}, v{t1}, s[28:31], s58 offen offset:2048 sc1
s_waitcnt vmcnt(4)
""")
    wb = A32
    for s in range(2):
        for tp in range(2):
            for hh in range(2):
                a(f"ds_read_b64_tr_b16 {rng(wb+8*s+4*tp+2*hh,2)}, v{vWOr+tp} offset:{s*2048 + hh*256}")
    a(f"""
s_waitcnt vmcnt(0)
L_ochk:
v_cmp_ne_u32 vcc, s52, v{gg+3}
v_cmp_ne_u32 s[38:39], s52, v{gg+7}
s_or_b64 vcc, vcc, s[38:39]
s_cbranch_vccz L_ook
s_sub_u32 s55, s55, 1
s_cbranch_scc1 L_ook
buffer_load_dwordx4 {rng(gg,4)}, v{t1}, s[28:31], s58 offen sc1
buffer_load_dwordx4 {rng(gg+4,4)}, v{t1}, s[28:31], s58 offen offset:2048 sc1
s_waitcnt vmcnt(0)
s_branch L_ochk
L_ook:
""")
    ST_("o gathered")
    e0 = va("e0"); e1 = va("e1"); u = A32 + 16; S = va("S"); oo = A32 + 24; ot = A32 + 28
    a(f"""
v_max_f32 v{M}, v{gg+2}, v{gg+6}
v_mov_b32 v{mt}, v{M}
v_lshlrev_b32 v{u}, 16, v{gg}
v_and_b32 v{u+1}, 0xffff0000, v{gg}
v_permlane16_swap_b32 v{M}, v{mt}
v_lshlrev_b32 v{u+2}, 16, v{gg+1}
v_max_f32 v{M}, v{M}, v{mt}
v_mov_b32 v{mt}, v{M}
v_and_b32 v{u+3}, 0xffff0000, v{gg+1}
v_lshlrev_b32 v{u+4}, 16, v{gg+4}
v_permlane32_swap_b32 v{M}, v{mt}
v_and_b32 v{u+5}, 0xffff0000, v{gg+4}
v_max_f32 v{M}, v{M}, v{mt}
v_lshlrev_b32 v{u+6}, 16, v{gg+5}
v_sub_f32 v{e0}, v{gg+2}, v{M}
v_sub_f32 v{e1}, v{gg+6}, v{M}
v_exp_f32 v{e0}, v{e0}
v_exp_f32 v{e1}, v{e1}
v_and_b32 v{u+7}, 0xffff0000, v{gg+5}
v_add_f32 v{S}, v{e0}, v{e1}
""")
    for r in range(4): a(f"v_mul_f32 v{oo+r}, v{e0}, v{u+r}")
    for r in range(4): a(f"v_fmac_f32 v{oo+r}, v{e1}, v{u+4+r}")
    for (perm) in ("v_permlane16_swap_b32", "v_permlane32_swap_b32"):
        a(f"v_mov_b32 v{mt}, v{S}")
        for r in range(4): a(f"v_mov_b32 v{ot+r}, v{oo+r}")
        a(f"{perm} v{S}, v{mt}")
        for r in range(4): a(f"{perm} v{oo+r}, v{ot+r}")
        a(f"v_add_f32 v{S}, v{S}, v{mt}")
        for r in range(4): a(f"v_add_f32 v{oo+r}, v{oo+r}, v{ot+r}")
    ob = B16 + 8; opk = va("opk", 2, 2)
    a(f"""
v_rcp_f32 v{S}, v{S}
s_mul_i32 s38, s3, 192
v_lshlrev_b32 v{t0}, 3, v{n16}
v_add_u32 v{t0}, s38, v{t0}
v_mul_f32 v{oo}, v{oo}, v{S}
v_mul_f32 v{oo+1}, v{oo+1}, v{S}
v_mul_f32 v{oo+2}, v{oo+2}, v{S}
v_mul_f32 v{oo+3}, v{oo+3}, v{S}
v_cvt_pk_bf16_f32 v{opk}, v{oo}, v{oo+1}
v_cvt_pk_bf16_f32 v{opk+1}, v{oo+2}, v{oo+3}
v_mul_u32_u24 v{t3}, 192, v{n4}
v_lshl_add_u32 v{t3}, v{g}, 4, v{t3}
s_mov_b64 exec, 0xffff
ds_write_b64 v{t0}, {rng(opk,2)} offset:{OL}
s_mov_b64 exec, -1
s_waitcnt lgkmcnt(0)
s_barrier
ds_read_b128 {rng(ob,4)}, v{t3} offset:{OL}
ds_read_b128 {rng(ob+4,4)}, v{t3} offset:{OL+64}
s_lshl_b32 s38, s49, 6
s_add_u32 s38, s38, s47
s_lshl_b32 s59, s38, 11
s_lshl_b32 s53, s3, 7
s_add_u32 s38, s59, s53
s_add_u32 s57, s38, {OX}
v_lshlrev_b32 v{t0}, 9, v{n16}
v_lshl_add_u32 v{t0}, v{g}, 4, v{t0}
v_cmp_gt_u32 vcc, 4, v{n16}
v_mov_b32 v{t1}, 0x7ffffff0
s_mov_b32 s36, 0x07060503
v_cndmask_b32 v{t0}, v{t1}, v{t0}, vcc
""")
    y = C32; yg = C32 + 8
    for s in range(2):
        a(f"s_waitcnt lgkmcnt({1-s})")
        for tp in range(2):
            c = "0" if s == 0 else rng(y+4*tp,4)
            a(f"v_mfma_f32_16x16x32_bf16 {rng(y+4*tp,4)}, {rng(wb+8*s+4*tp,4)}, {rng(ob+4*s,4)}, {c}")
    a(f"""
s_mov_b32 s37, 0x07060502
s_mov_b32 s40, 0x07060501
s_nop 5
""")
    for tp in range(2):
        a(f"""v_perm_b32 v{yg+4*tp}, v{y+4*tp}, v{y+4*tp+3}, s36
v_perm_b32 v{yg+4*tp+1}, v{y+4*tp+1}, v{y+4*tp+3}, s37
v_perm_b32 v{yg+4*tp+2}, v{y+4*tp+2}, v{y+4*tp+3}, s40
v_mov_b32 v{yg+4*tp+3}, s52
buffer_store_dwordx4 {rng(yg+4*tp,4)}, v{t0}, s[28:31], s57 offen offset:{tp*64} sc1""")
    ST_("out partial published")
    fg = C32 + 16; z = C32 + 24; zt = va("zt", 4)
    a(f"""
s_cmp_lg_u32 s3, 0
s_cbranch_scc1 L_fin
s_lshl_b32 s38, s49, 17             ; cg*64*2048
s_lshl_b32 s53, s47, 5              ; 2i*16
s_add_u32 s38, s38, s53
s_add_u32 s58, s38, {OX}
s_add_u32 s59, s58, 65536
v_lshrrev_b32 v{t1}, 1, v{l}
v_lshlrev_b32 v{t1}, 11, v{t1}
v_and_b32 v{t2}, 1, v{l}
v_lshl_or_b32 v{t1}, v{t2}, 4, v{t1}
s_mov_b32 s55, {spin}
L_fpoll:
buffer_load_dwordx4 {rng(fg,4)}, v{t1}, s[28:31], s58 offen sc1
buffer_load_dwordx4 {rng(fg+4,4)}, v{t1}, s[28:31], s59 offen sc1
s_waitcnt vmcnt(0)
v_cmp_ne_u32 vcc, s52, v{fg+3}
v_cmp_ne_u32 s[38:39], s52, v{fg+7}
s_or_b64 vcc, vcc, s[38:39]
s_cbranch_vccz L_fok
s_sub_u32 s55, s55, 1
s_cbranch_scc0 L_fpoll
L_fok:
""")
    ST_("final gathered")
    a(f"""
s_mov_b32 s36, 0x04000c0c
s_mov_b32 s37, 0x0706000c
v_perm_b32 v{z+3}, v{fg}, v{fg+1}, s36
v_perm_b32 v{z+7}, v{fg+4}, v{fg+5}, s36
v_perm_b32 v{z+3}, v{z+3}, v{fg+2}, s37
v_perm_b32 v{z+7}, v{z+7}, v{fg+6}, s37
v_add_f32 v{z}, v{fg}, v{fg+4}
v_add_f32 v{z+1}, v{fg+1}, v{fg+5}
v_add_f32 v{z+2}, v{fg+2}, v{fg+6}
v_add_f32 v{z+3}, v{z+3}, v{z+7}
""")
    for dpp in ("quad_perm:[2,3,0,1]", "row_half_mirror", "row_mirror"):
        pass
    a("s_nop 1")
    for ctl in ("quad_perm:[2,3,0,1]", "row_ror:4", "row_ror:8"):
        for r in range(4):
            a(f"v_add_f32_dpp v{z+r}, v{z+r}, v{z+r} {ctl} row_mask:0xf bank_mask:0xf")
    for perm in ("v_permlane16_swap_b32", "v_permlane32_swap_b32"):
        for r in range(4): a(f"v_mov_b32 v{zt+r}, v{z+r}")
        for r in range(4): a(f"{perm} v{z+r}, v{zt+r}")
        for r in range(4): a(f"v_add_f32 v{z+r}, v{z+r}, v{zt+r}")
    a(f"""
v_cvt_pk_bf16_f32 v{z}, v{z}, v{z+1}
v_cvt_pk_bf16_f32 v{z+1}, v{z+2}, v{z+3}
; out offset: (b*512 + cg*128 + (i%16)*8 + 4*(l&1))*2, b = i/16 ; lanes >= 2 OOB
s_lshr_b32 s38, s47, 4
s_lshl_b32 s38, s38, 10
s_lshl_b32 s53, s49, 8
s_add_u32 s38, s38, s53
s_and_b32 s53, s47, 15
s_lshl_b32 s53, s53, 4
s_add_u32 s38, s38, s53
v_lshlrev_b32 v{t2}, 3, v{l}
v_add_u32 v{t2}, s38, v{t2}
v_cmp_gt_u32 vcc, 2, v{l}
v_mov_b32 v{t3}, 0x7ffffff0
s_nop 0
v_cndmask_b32 v{t2}, v{t3}, v{t2}, vcc
buffer_store_dwordx2 {rng(z,2)}, v{t2}, s[32:35], 0 offen
s_cmp_lg_u32 s2, 0
s_cbranch_scc1 L_fin
v_mov_b32 v{t0}, s52
v_mov_b32 v{t1}, 0
s_mov_b64 exec, 1
buffer_store_dword v{t0}, v{t1}, s[28:31], 0 offen sc1
s_mov_b64 exec, -1
L_fin:
""")
    if amp >= 0:
        ST_("end")
        e = nst[0] - 1
        a(f"""
s_cmp_lg_u32 s2, 0
s_cbranch_scc1 L_end
s_cmp_lg_u32 s3, 0
s_cbranch_scc1 L_end
v_lshlrev_b32 v{t1}, 4, v{l}
buffer_load_dwordx4 {rng(C32,4)}, v{t1}, s[28:31], {'s38'} offen sc1
""".replace("{'s38'}", "s38") if False else f"""
s_waitcnt lgkmcnt(0)
s_cmp_lg_u32 s2, 0
s_cbranch_scc1 L_end
s_cmp_lg_u32 s3, 0
s_cbranch_scc1 L_end
s_mov_b32 s38, {ST}
v_lshlrev_b32 v{t1}, 4, v{l}
buffer_load_dwordx4 {rng(C32,4)}, v{t1}, s[28:31], s38 offen sc1
s_waitcnt vmcnt(0)
v_subrev_u32 v{C32}, s60, v{C32}
v_subrev_u32 v{C32+1}, s60, v{C32+1}
v_subrev_u32 v{C32+2}, s60, v{C32+2}
v_subrev_u32 v{C32+3}, s60, v{C32+3}
v_min_i32 v{C32}, v{C32}, v{C32+1}
v_min_i32 v{C32+2}, v{C32+2}, v{C32+3}
v_min_i32 v{C32}, v{C32}, v{C32+2}
s_nop 1
v_min_i32_dpp v{C32}, v{C32}, v{C32} row_ror:1 row_mask:0xf bank_mask:0xf
s_nop 1
v_min_i32_dpp v{C32}, v{C32}, v{C32} row_ror:2 row_mask:0xf bank_mask:0xf
s_nop 1
v_min_i32_dpp v{C32}, v{C32}, v{C32} row_ror:4 row_mask:0xf bank_mask:0xf
s_nop 1
v_min_i32_dpp v{C32}, v{C32}, v{C32} row_ror:8 row_mask:0xf bank_mask:0xf
s_nop 1
v_readlane_b32 s36, v{C32}, 0
v_readlane_b32 s37, v{C32}, 16
v_readlane_b32 s38, v{C32}, 32
v_readlane_b32 s39, v{C32}, 48
s_nop 3
s_min_i32 s36, s36, s37
s_min_i32 s38, s38, s39
s_min_i32 s36, s36, s38
s_sub_u32 s37, s{60+2*amp}, s60
""")
        probe_ = probe.strip()
        if probe_:
            a("s_memrealtime s[42:43]\ns_waitcnt lgkmcnt(0)")
            if probe_ == "nop512":
                for i in range(512): a("s_nop 0")
            elif probe_ == "nop2048":
                for i in range(2048): a("s_nop 0")
            elif probe_ == "loop512":
                a("s_mov_b32 s38, 32\nL_pl:")
                for i in range(14): a("s_nop 0")
                a("s_sub_u32 s38, s38, 1\ns_cmp_lg_u32 s38, 0\ns_cbranch_scc1 L_pl")
            elif probe_ == "big512":
                for i in range(512): a("s_mov_b32 s46, 0x12345678")
            elif probe_ == "bigloop512":
                a("s_mov_b32 s38, 32\nL_pl:")
                for i in range(14): a("s_mov_b32 s46, 0x12345678")
                a("s_sub_u32 s38, s38, 1\ns_cmp_lg_u32 s38, 0\ns_cbranch_scc1 L_pl")
            elif probe_ == "valu512":
                for i in range(512): a(f"v_add3_u32 v{100+i%8}, v90, v91, v92")
            elif probe_ == "valuloop512":
                a("s_mov_b32 s38, 32\nL_pl:")
                for i in range(16): a(f"v_add3_u32 v{100+i%8}, v90, v91, v92")
                a("s_sub_u32 s38, s38, 1\ns_cmp_lg_u32 s38, 0\ns_cbranch_scc1 L_pl")
            elif probe_ == "jumps":
                for i in range(32):
                    a(f"s_branch L_j{i}")
                    for k in range(63): a("s_nop 0")
                    a(f"L_j{i}:")
            elif probe_ == "clk":
                a("s_memtime s[46:47]\ns_waitcnt lgkmcnt(0)\nL_ck:\ns_memtime s[48:49]\ns_waitcnt lgkmcnt(0)\ns_sub_u32 s50, s48, s46\ns_cmp_lt_u32 s50, 4000\ns_cbranch_scc1 L_ck")
            elif probe_ == "brnt":
                a("s_mov_b32 s38, 16\nL_pl:")
                for i in range(16): a("s_cbranch_execz L_end")
                a("s_sub_u32 s38, s38, 1\ns_cmp_lg_u32 s38, 0\ns_cbranch_scc1 L_pl")
            elif probe_ == "salu":
                a("s_mov_b32 s38, 16\nL_pl:")
                for i in range(16): a("s_mov_b32 s46, s47")
                a("s_sub_u32 s38, s38, 1\ns_cmp_lg_u32 s38, 0\ns_cbranch_scc1 L_pl")
            elif probe_ == "hop128":
                a("s_mov_b64 exec, 0")
                for i in range(32):
                    a(f"s_cbranch_execz L_j{i}")
                    for k in range(31): a("s_nop 0")
                    a(f"L_j{i}:")
                a("s_mov_b64 exec, -1")
            elif probe_ == "hop64":
                a("s_mov_b64 exec, 0")
                for i in range(32):
                    a(f"s_cbranch_execz L_j{i}")
                    for k in range(15): a("s_nop 0")
                    a(f"L_j{i}:")
                a("s_mov_b64 exec, -1")
            elif probe_ == "barrier":
                pass
            elif probe_ == "ldsrt":
                a(f"v_mov_b32 v{t1}, 0\ns_mov_b32 s38, 16\nL_pl:\nds_read_b32 v{t0}, v{t1}\ns_waitcnt lgkmcnt(0)\ns_sub_u32 s38, s38, 1\ns_cmp_lg_u32 s38, 0\ns_cbranch_scc1 L_pl")
            elif probe_ == "mfmachain":
                a("s_mov_b32 s38, 16\nL_pl:")
                a("v_mfma_f32_16x16x32_bf16 v[100:103], v[104:107], v[108:111], 0\ns_nop 7\nv_mov_b32 v104, v100\ns_nop 1")
                a("s_sub_u32 s38, s38, 1\ns_cmp_lg_u32 s38, 0\ns_cbranch_scc1 L_pl")
            elif probe_ == "freshpage":
                a(f"s_mov_b32 s38, {128<<20}\nv_mov_b32 v{t1}, 0\nbuffer_load_dword v{t0}, v{t1}, s[28:31], s38 offen\ns_waitcnt vmcnt(0)")
            elif probe_ == "coldline":
                a(f"s_mov_b32 s38, {640<<10}\nv_mov_b32 v{t1}, 0\nbuffer_load_dword v{t0}, v{t1}, s[12:15], s38 offen\ns_waitcnt vmcnt(0)")
            elif probe_ == "kfar":
                a(f"s_mov_b32 s38, {(31<<20)}\nv_mov_b32 v{t1}, 0\nbuffer_load_dword v{t0}, v{t1}, s[12:15], s38 offen\ns_waitcnt vmcnt(0)")
            elif probe_ == "empty":
                pass
            a("s_memrealtime s[44:45]\ns_waitcnt lgkmcnt(0)\ns_sub_u32 s37, s44, s42\ns_mov_b32 s%d, s44" % (60+2*e))
        if ampref == 1: a("s_sub_u32 s37, s37, s36")
        if ampref == 2: a("s_sub_u32 s37, 0, s36")
        a(f"""
s_mul_i32 s37, s37, {ampk}
s_add_u32 s37, s37, s{60+2*e}
L_amp:
s_memrealtime s[40:41]
s_waitcnt lgkmcnt(0)
s_cmp_lt_u32 s40, s37
s_cbranch_scc1 L_amp
""")
    elif stamp:
        ST_("end")
        n = nst[0]
        a(f"""
s_waitcnt lgkmcnt(0) vmcnt(0)
s_lshl_b32 s4, s2, 2
s_add_u32 s4, s4, s3
s_lshl_b32 s4, s4, 6
s_add_u32 s4, s4, {ST}
v_mov_b32 v{t1}, 0
s_mov_b64 exec, 1
""")
        for i in range(n):
            a(f"v_mov_b32 v{t0}, s{60+2*i}\nbuffer_store_dword v{t0}, v{t1}, s[28:31], s4 offen offset:{4*i}\ns_nop 0")
    a("L_end:\ns_endpgm")
    body = a.text()
    nv = va.hi
    s = header([f"; @launch grid=(256,1,1) block=(256,1,1) lds={LDS_BYTES}"]) + kernel_begin(KNAME) + body + RODATA + descriptor(KNAME, nv, 96)
    errs = haz.check(body)
    for e in errs: print("HAZ", e)
    return s, nv, nst[0]
if __name__ == "__main__":
    out = sys.argv[1] if len(sys.argv) > 1 else "a1.s"
    kw = {}
    for x in sys.argv[2:]:
        k, v = x.split("=")
        kw[k] = (v == "1") if k == "stamp" else (int(v) if v.isdigit() else (" " + v if v else ""))
    s, nv, ns = gen(**kw)
    open(out, "w").write(s)
    print("vgprs", nv, "stamps", ns, "lds", LDS_BYTES)
```

```python
import sys, struct
sys.path.insert(0, "my")
from ag import *
import haz, hops

QF = 0x10000
OF = 0x80000
OX = 0x100000
SOFF = 0x200000
ST = 0x400000
WS_BYTES = 268435456
QL = 0
PL = QL + 1280
SL = PL + 1024
OL = SL + 64
XL = 3328; WQ = XL + 1024; KL = WQ + 16384; VL = KL + 32768; WO = VL + 32768
LDS_BYTES = WO + 16384
assert OL + 768 <= XL and XL % 256 == 0 and WQ % 256 == 0
CSC = 0.08838834764831845 * 1.4426950408889634
def f32(x): return "0x%08x" % struct.unpack("<I", struct.pack("<f", x))[0]
class V:
    def __init__(s, n=0): s.n = n; s.hi = n
    def __call__(s, cnt=1, align=1):
        s.n = (s.n + align - 1) // align * align
        r = s.n; s.n += cnt; s.hi = max(s.hi, s.n)
        return r
def rng(r, n): return f"v[{r}:{r+n-1}]"
OOB = "0x7ffffff0"

def gen(stamp=False, nt=" nt", nv1=2, kg=4, spin=100000, nf=64, amp=-1, ampk=10, ampref=0, warm=True, pt=True, ptx=True, nparts=4):
    if amp >= 0: stamp = True
    a = A(); va = V(1); sa = V(36)
    l = va(); t0 = va(); t1 = va(); t2 = va(); t3 = va()
    nst = [0]; stn = []
    def ST_(label):
        if stamp:
            i = nst[0]; nst[0] += 1; stn.append(label)
            assert i < 15
            a(f"s_memrealtime s[{72+2*i}:{73+2*i}]   ; stamp {i} {label}")
    W, G, R, B, C = "s3", "s4", "s5", "s6", "s7"
    sT = sa(); sT2 = sa()
    sX = sa(); sWQ = sa(); sK = sa(); sWin = sa()
    mWQ = sa(); mK = sa(); mV = sa(); mWO = sa()
    sEp = sa(); sTag = sa()
    vX = va(); vWQ = va(2); vK = va(4)
    a(f"""
s_cmp_ge_u32 s2, 256
s_cbranch_scc1 L_end
s_load_dwordx2 s[20:21], s[0:1], 24
s_load_dwordx2 s[8:9], s[0:1], 0
s_load_dwordx2 s[12:13], s[0:1], 8
s_load_dwordx2 s[28:29], s[0:1], 56
s_load_dwordx2 s[16:17], s[0:1], 16
s_load_dwordx2 s[24:25], s[0:1], 32
s_load_dwordx2 s[32:33], s[0:1], 40
""")
    ST_("entry")
    a(f"""
v_lshrrev_b32 v{t0}, 6, v0
v_and_b32 v{l}, 63, v0
s_and_b32 {G}, s2, 7
v_readfirstlane_b32 {W}, v{t0}
s_lshr_b32 {R}, s2, 3
s_lshr_b32 {B}, {R}, 3
s_and_b32 {C}, {R}, 7
s_mov_b32 s23, 0x20000
s_mov_b32 s22, 0x400000
s_mov_b32 s11, s23
s_movk_i32 s10, 0x1000
s_mov_b32 s15, s23
s_mov_b32 s14, 0x2000000
s_mov_b32 s31, s23
s_mov_b32 s30, {WS_BYTES}
v_lshrrev_b32 v{t0}, 4, v{l}
v_and_b32 v{t1}, 7, v{l}
v_lshlrev_b32 v{t2}, 1, v{t0}
v_and_b32 v{t2}, 2, v{t2}
v_xor_b32 v{t2}, v{t1}, v{t2}
v_lshlrev_b32 v{t2}, 4, v{t2}
v_lshrrev_b32 v{t3}, 3, v{l}
v_lshl_add_u32 v{vWQ}, v{t3}, 13, v{t2}
v_xor_b32 v{vWQ+1}, 64, v{vWQ}
; x voffset: (l>>4)*1024 + ((l&15) ^ (4*(l>>4)))*16
v_and_b32 v{t1}, 15, v{l}
v_lshlrev_b32 v{t2}, 2, v{t0}
v_xor_b32 v{t2}, v{t1}, v{t2}
v_lshlrev_b32 v{t2}, 4, v{t2}
v_lshl_add_u32 v{vX}, v{t0}, 10, v{t2}
; K voffsets: (l>>4)*256 + ((l&15)^(l>>4))*16  ^ (64*i)
v_xor_b32 v{t2}, v{t1}, v{t0}
v_lshlrev_b32 v{t2}, 4, v{t2}
v_lshl_add_u32 v{vK}, v{t0}, 8, v{t2}
v_xor_b32 v{vK+1}, 64, v{vK}
v_xor_b32 v{vK+2}, 0x80, v{vK}
v_xor_b32 v{vK+3}, 0xc0, v{vK}
s_lshl_b32 s{sWQ}, {B}, 2
s_add_u32 s{sWQ}, s{sWQ}, {W}
s_lshl_b32 s{sWQ}, s{sWQ}, 18
s_lshl_b32 s{sT}, {G}, 3
s_add_u32 s{sT}, s{sT}, {C}
s_lshl_b32 s{sT}, s{sT}, 7
s_add_u32 s{sWQ}, s{sWQ}, s{sT}
s_lshl_b32 s{sX}, {B}, 8
s_lshl_b32 s{sWin}, {B}, 3
s_add_u32 s{sWin}, s{sWin}, {G}
s_lshl_b32 s{sWin}, s{sWin}, 5
s_add_u32 s{sWin}, s{sWin}, {C}
s_add_u32 s{sWin}, s{sWin}, 24
s_lshl_b32 s{sWin}, s{sWin}, 15
s_lshl_b32 s{sT}, {W}, 13
s_add_u32 s{sK}, s{sWin}, s{sT}
s_add_u32 s{mK}, s{sT}, {KL}
s_add_u32 s{mV}, s{sT}, {VL}
s_lshl_b32 s{sT}, {W}, 12
s_add_u32 s{mWQ}, s{sT}, {WQ}
s_add_u32 s{mWO}, s{sT}, {WO}
s_mov_b32 m0, s{mWQ}
s_waitcnt lgkmcnt(0)
""")
    for i in range(4):
        if i: a(f"s_add_u32 s{sWQ}, s{sWQ}, {65536 - 1024}")
        a(f"buffer_load_dwordx4 v{vWQ + (i & 1)}, s[20:23], s{sWQ} offen offset:{i*1024}{nt} lds")
    a(f"s_movk_i32 m0, {XL}\ns_load_dword s{sEp}, s[28:29], 0")
    a(f"buffer_load_dwordx4 v{vX}, s[8:11], s{sX} offen lds")
    vPT = va(); sQB = sa(); sOB = sa()
    npt = 0
    a(f"s_mov_b32 m0, s{mK}\ns_nop 0")
    for i in range(8):
        if i == 4: a(f"s_add_u32 m0, m0, 4096\ns_add_u32 s{sK}, s{sK}, 4096")
        a(f"buffer_load_dwordx4 v{vK+i%4}, s[12:15], s{sK} offen offset:{(i%4)*1024}{nt} lds")
    a(f"""
s_lshl_b32 s{sQB}, {G}, 4
s_add_u32 s{sQB}, s{sQB}, {B}
s_lshl_b32 s{sQB}, s{sQB}, 11
s_lshl_b32 s{sT}, {C}, 8
s_add_u32 s{sQB}, s{sQB}, s{sT}
s_add_u32 s{sQB}, s{sQB}, {QF}
s_lshl_b32 s{sOB}, {B}, 3
s_add_u32 s{sOB}, s{sOB}, {G}
s_lshl_b32 s{sOB}, s{sOB}, 5
s_add_u32 s{sOB}, s{sOB}, {C}
s_lshl_b32 s{sOB}, s{sOB}, 9
s_add_u32 s{sOB}, s{sOB}, {OF}
""")
    if pt:
        npt = 1
        a(f"""
s_mul_i32 s{sT}, {W}, 6
v_add_u32 v{t3}, s{sT}, v{l}
v_lshrrev_b32 v{t0}, 1, v{t3}
v_lshlrev_b32 v{t0}, 13, v{t0}
v_and_b32 v{t1}, 1, v{t3}
v_lshl_or_b32 v{t0}, v{t1}, 7, v{t0}
v_add_u32 v{t0}, s{sQB}, v{t0}
v_subrev_u32 v{t1}, 8, v{t3}
v_lshrrev_b32 v{t2}, 2, v{t1}
v_lshlrev_b32 v{t2}, 12, v{t2}
v_and_b32 v{t1}, 3, v{t1}
v_lshl_or_b32 v{t2}, v{t1}, 7, v{t2}
v_add_u32 v{t2}, s{sOB}, v{t2}
v_cmp_gt_u32 vcc, 8, v{t3}
v_mov_b32 v{t3}, {OOB}
s_nop 0
v_cndmask_b32 v{t0}, v{t2}, v{t0}, vcc
v_cmp_gt_u32 vcc, 6, v{l}
s_nop 1
v_cndmask_b32 v{t0}, v{t3}, v{t0}, vcc
buffer_load_dword v{vPT}, v{t0}, s[28:31], 0 offen
""")
    ST_("issued K")
    vV = va(); sV = sa()
    g = va(); n16 = va(); n4 = va()
    a(f"""
s_mov_b32 s19, s23
s_mov_b32 s18, s14
v_lshrrev_b32 v{g}, 4, v{l}
v_and_b32 v{n16}, 15, v{l}
v_and_b32 v{n4}, 3, v{l}
; V voffset: (l>>2)*256 + ((l&3) ^ (((l>>4)&1)<<1))*16
v_lshrrev_b32 v{t0}, 2, v{l}
v_lshlrev_b32 v{t1}, 1, v{g}
v_and_b32 v{t1}, 2, v{t1}
v_xor_b32 v{t2}, v{n4}, v{t1}
v_lshlrev_b32 v{t2}, 4, v{t2}
v_lshl_add_u32 v{vV}, v{t0}, 8, v{t2}
s_lshl_b32 s{sT}, {W}, 6
s_add_u32 s{sV}, s{sWin}, s{sT}
s_mov_b32 m0, s{mV}
""")
    def vload(i):
        if i % 4 == 0 and i: a("s_add_u32 m0, m0, 4096")
        if i: a(f"s_add_u32 s{sV}, s{sV}, {4096 - 1024 if i % 4 else 4096 + 3072}")
        else: a("s_nop 0")
        a(f"buffer_load_dwordx4 v{vV}, s[16:19], s{sV} offen offset:{(i%4)*1024}{nt} lds")
    for i in range(nv1): vload(i)
    if warm:
        a("s_mov_b64 exec, 0")
        for p in range(1, nparts):
            a(f"s_cmp_eq_u32 {W}, {p}\ns_cbranch_scc1 HOP_P{p}")
        a("s_branch HOP_P0\nL_warm_done:\ns_mov_b64 exec, -1")
    ST_("warm done")
    a("; WARM_START")
    vWO = va(); sWO = sa(); sP = sa(); sCG = sa(); sR4 = sa()
    vXr = va(4); vWQr = va(); vKr = va(4); vVr = va(2); vWOr = va(2)
    vQst = va(); vG = va(); sG = sa(); vQLw = va(); vQLr = va()
    vPw = va(); vPr = va(); vSw = va(); vSr = va()
    vOst = va(); sOst = sa(); vOG = va(); sOG = sa(); vOLw = va(); vOLr = va()
    vYst = va(); sYst = sa(); vFG = va(); sFG = sa(); vOut = va()
    sCsc = sa(); sP0 = sa(); sP1 = sa(); sP2 = sa(); sU0 = sa(); sU1 = sa(); sM4 = sa(2, 2); sCnt = sa()
    a(f"""
s_mov_b32 s27, s23
s_mov_b32 s26, s22
s_mov_b32 s35, s23
s_movk_i32 s34, 0x1000
; p = g*8 + r/4 ; cg = r&3
s_lshr_b32 s{sR4}, {R}, 2
s_lshl_b32 s{sP}, {G}, 3
s_add_u32 s{sP}, s{sP}, s{sR4}
s_and_b32 s{sCG}, {R}, 3
s_lshl_b32 s{sWO}, s{sP}, 8
s_add_u32 s{sWO}, s{sWO}, s{sCG}
s_lshl_b32 s{sWO}, s{sWO}, 2
s_add_u32 s{sWO}, s{sWO}, {W}
s_lshl_b32 s{sWO}, s{sWO}, 6
v_lshrrev_b32 v{t0}, 2, v{l}
v_lshrrev_b32 v{t3}, 5, v{l}
v_lshlrev_b32 v{t3}, 1, v{t3}
v_xor_b32 v{t2}, v{n4}, v{t3}
v_lshlrev_b32 v{t2}, 4, v{t2}
v_lshl_add_u32 v{vWO}, v{t0}, 10, v{t2}
v_lshlrev_b32 v{t2}, 2, v{n4}
v_xor_b32 v{t2}, v{g}, v{t2}
v_lshlrev_b32 v{t2}, 4, v{t2}
v_lshl_add_u32 v{t2}, v{n4}, 8, v{t2}
v_add_u32 v{vXr}, {XL}, v{t2}
v_xor_b32 v{vXr+1}, 64, v{vXr}
v_xor_b32 v{vXr+2}, 0x80, v{vXr}
v_xor_b32 v{vXr+3}, 0xc0, v{vXr}
v_bfe_u32 v{t0}, v{l}, 2, 2
v_lshl_add_u32 v{t2}, v{g}, 3, v{t0}
v_lshlrev_b32 v{t2}, 7, v{t2}
v_lshl_add_u32 v{t2}, v{n4}, 3, v{t2}
v_lshrrev_b32 v{t3}, 1, v{t0}
v_and_b32 v{t1}, 1, v{g}
v_lshl_or_b32 v{t3}, v{t1}, 1, v{t3}
v_xor_b32 v{t3}, {W}, v{t3}
v_lshl_add_u32 v{t2}, v{t3}, 5, v{t2}
v_add_u32 v{vWQr}, {WQ}, v{t2}
v_xor_b32 v{t2}, v{g}, v{n16}
v_lshlrev_b32 v{t2}, 4, v{t2}
v_lshl_add_u32 v{t2}, v{n16}, 8, v{t2}
v_add_u32 v{vKr}, s{mK}, v{t2}
v_xor_b32 v{vKr+1}, 64, v{vKr}
v_xor_b32 v{vKr+2}, 0x80, v{vKr}
v_xor_b32 v{vKr+3}, 0xc0, v{vKr}
v_lshl_add_u32 v{t2}, v{g}, 2, v{t0}
v_lshlrev_b32 v{t2}, 6, v{t2}
v_lshl_add_u32 v{t2}, v{n4}, 3, v{t2}
v_lshl_add_u32 v{t2}, v{t1}, 5, v{t2}
v_add_u32 v{vVr}, s{mV}, v{t2}
v_xor_b32 v{vVr+1}, 32, v{vVr}
v_lshl_add_u32 v{t2}, v{g}, 3, v{t0}
v_lshlrev_b32 v{t2}, 6, v{t2}
v_lshl_add_u32 v{t2}, v{n4}, 3, v{t2}
v_lshl_add_u32 v{t2}, v{t1}, 5, v{t2}
v_add_u32 v{vWOr}, s{mWO}, v{t2}
v_xor_b32 v{vWOr+1}, 32, v{vWOr}
v_cmp_gt_u32 vcc, 4, v{n16}
v_mov_b32 v{t3}, {OOB}
s_lshl_b32 s{sT}, {W}, 6
v_lshlrev_b32 v{t2}, 4, v{g}
v_add_u32 v{t0}, s{sT}, v{t2}
v_lshl_add_u32 v{t0}, v{n16}, 13, v{t0}
v_cndmask_b32 v{vQst}, v{t3}, v{t0}, vcc
s_lshl_b32 s{sT}, {W}, 7
v_add_u32 v{t2}, s{sT}, v{t2}
v_lshl_add_u32 v{t0}, v{n16}, 12, v{t2}
v_cndmask_b32 v{vOst}, v{t3}, v{t0}, vcc
v_lshl_add_u32 v{t0}, v{n16}, 9, v{t2}
v_cndmask_b32 v{vYst}, v{t3}, v{t0}, vcc
v_lshrrev_b32 v{t0}, 5, v{l}
v_and_b32 v{t1}, 31, v{l}
v_lshlrev_b32 v{t2}, 4, v{t1}
v_lshl_add_u32 v{vG}, v{t0}, 12, v{t2}
s_lshl_b32 s{sG}, {G}, 2
s_add_u32 s{sG}, s{sG}, {B}
s_lshl_b32 s{sG}, s{sG}, 4
s_add_u32 s{sG}, s{sG}, {W}
s_lshl_b32 s{sG}, s{sG}, 9
s_add_u32 s{sG}, s{sG}, {QF}
s_mul_i32 s{sT}, {W}, 320
v_lshlrev_b32 v{t2}, 3, v{t1}
v_lshl_add_u32 v{t2}, v{t0}, 2, v{t2}
v_add_u32 v{vQLw}, s{sT}, v{t2}
v_mul_u32_u24 v{t2}, 320, v{n4}
v_lshl_add_u32 v{vQLr}, v{g}, 4, v{t2}
v_lshlrev_b32 v{t2}, 6, v{n4}
v_lshl_add_u32 v{vPr}, v{g}, 4, v{t2}
s_lshl_b32 s{sT}, {W}, 8
v_add_u32 v{vPw}, s{sT}, v{vPr}
v_lshlrev_b32 v{vSr}, 4, v{n4}
s_lshl_b32 s{sT}, {W}, 2
v_add_u32 v{vSw}, s{sT}, v{vSr}
v_lshlrev_b32 v{t2}, 9, v{g}
v_lshl_add_u32 v{vOG}, v{n16}, 4, v{t2}
s_lshl_b32 s{sOG}, {W}, 3
s_add_u32 s{sOG}, s{sOG}, {G}
s_lshl_b32 s{sOG}, s{sOG}, 2
s_add_u32 s{sOG}, s{sOG}, {B}
s_lshl_b32 s{sOG}, s{sOG}, 4
s_and_b32 s{sT}, s{sR4}, 1
s_add_u32 s{sOG}, s{sOG}, s{sT}
s_lshl_b32 s{sOG}, s{sOG}, 8
s_add_u32 s{sOG}, s{sOG}, {OF}
s_mul_i32 s{sT}, {W}, 192
v_lshlrev_b32 v{t2}, 3, v{n16}
v_lshl_add_u32 v{t2}, v{g}, 1, v{t2}
v_add_u32 v{vOLw}, s{sT}, v{t2}
v_mul_u32_u24 v{t2}, 192, v{n4}
v_lshl_add_u32 v{vOLr}, v{g}, 4, v{t2}
s_lshl_b32 s{sYst}, s{sCG}, 6
s_add_u32 s{sYst}, s{sYst}, s{sP}
s_lshl_b32 s{sYst}, s{sYst}, 11
s_add_u32 s{sYst}, s{sYst}, {OX}
v_lshrrev_b32 v{t0}, 1, v{l}
v_and_b32 v{t1}, 1, v{l}
v_lshlrev_b32 v{t2}, 4, v{t1}
v_lshl_add_u32 v{vFG}, v{t0}, 11, v{t2}
s_lshl_b32 s{sFG}, s{sCG}, 12
s_add_u32 s{sFG}, s{sFG}, s{sP}
s_lshl_b32 s{sFG}, s{sFG}, 5
s_add_u32 s{sFG}, s{sFG}, {OX}
s_lshr_b32 s{sT}, s{sP}, 4
s_lshl_b32 s{sT}, s{sT}, 2
s_add_u32 s{sT}, s{sT}, s{sCG}
s_lshl_b32 s{sT}, s{sT}, 4
s_and_b32 s{sT2}, s{sP}, 15
s_add_u32 s{sT}, s{sT}, s{sT2}
s_lshl_b32 s{sT}, s{sT}, 4
v_lshlrev_b32 v{t2}, 3, v{t1}
v_lshl_add_u32 v{t2}, v{g}, 1, v{t2}
v_add_u32 v{t2}, s{sT}, v{t2}
v_cmp_gt_u32 vcc, 2, v{n16}
s_mov_b32 s{sCsc}, {f32(CSC)}
s_mov_b32 s{sP0}, 0x07060503
v_cndmask_b32 v{vOut}, v{t3}, v{t2}, vcc
s_mov_b32 s{sP1}, 0x07060502
s_mov_b32 s{sP2}, 0x07060501
s_mov_b32 s{sU0}, 0x04000c0c
s_mov_b32 s{sU1}, 0x0706000c
s_mov_b32 s{sM4}, 0x000f000f
s_mov_b32 s{sM4+1}, 0x000f000f
s_waitcnt lgkmcnt(0)
s_mul_i32 s{sTag}, s{sEp}, 1664525
s_add_u32 s{sTag}, s{sTag}, 1013904223
""")
    ST_("addr done")
    A32 = va(32, 4); B16 = va(16, 4); C32 = va(32, 4); E8 = va(8, 4); F8 = va(8, 4)
    ones = va(4, 4)
    a(f"""
v_mov_b32 v{ones}, 0x3f803f80
v_mov_b32 v{ones+1}, 0x3f803f80
v_mov_b32 v{ones+2}, 0x3f803f80
v_mov_b32 v{ones+3}, 0x3f803f80
v_mov_b32 v{E8+3}, s{sTag}
""")
    xb = A32; wa = A32 + 16; acc = C32
    a(f"s_waitcnt vmcnt({8 + npt + nv1})\ns_barrier")
    ST_("wq landed")
    for s in range(4):
        a(f"ds_read_b128 {rng(xb+4*s,4)}, v{vXr+s}")
        a(f"ds_read_b64_tr_b16 {rng(wa+4*s,2)}, v{vWQr} offset:{s*4096}")
        a(f"ds_read_b64_tr_b16 {rng(wa+4*s+2,2)}, v{vWQr} offset:{s*4096 + 512}")
    for s in range(4):
        a(f"s_waitcnt lgkmcnt({3*(3-s)})")
        c = "0" if s == 0 else rng(acc,4)
        a(f"v_mfma_f32_16x16x32_bf16 {rng(acc,4)}, {rng(wa+4*s,4)}, {rng(xb+4*s,4)}, {c}")
    a(f"""
s_add_u32 s{sT}, s{sQB}, {SOFF}
s_mov_b32 s{sCnt}, {spin}
s_nop 5
v_perm_b32 v{E8}, v{acc}, v{acc+3}, s{sP0}
v_perm_b32 v{E8+1}, v{acc+1}, v{acc+3}, s{sP1}
v_perm_b32 v{E8+2}, v{acc+2}, v{acc+3}, s{sP2}
s_nop 0
buffer_store_dwordx4 {rng(E8,4)}, v{vQst}, s[28:31], s{sQB} offen
buffer_store_dwordx4 {rng(E8,4)}, v{vQst}, s[28:31], s{sT} offen sc1
""")
    ST_("q published")
    gq = F8
    a(f"s_waitcnt vmcnt({8 - kg + npt + nv1 + 2})")
    ST_("K part landed")
    a(f"buffer_load_dwordx4 {rng(gq,4)}, v{vG}, s[28:31], s{sG} offen sc1")
    a(f"buffer_load_dwordx4 {rng(gq+4,4)}, v{vG}, s[28:31], s{sG} offen offset:2048 sc1")
    for i in range(nv1, 8): vload(i)
    a(f"s_mov_b32 m0, s{mWO}")
    for i in range(4):
        if i: a(f"s_add_u32 s{sWO}, s{sWO}, {16384 - 1024}")
        else: a("s_nop 0")
        a(f"buffer_load_dwordx4 v{vWO}, s[24:27], s{sWO} offen offset:{i*1024}{nt} lds")
    nafter = (8 - nv1) + 4
    ka = A32
    a(f"s_waitcnt vmcnt({min(63, npt + nv1 + 2 + 2 + nafter)})")
    for t in range(2):
        for s in range(4):
            a(f"ds_read_b128 {rng(ka+16*t+4*s,4)}, v{vKr+s} offset:{t*4096}")
    def poll(name, regs, vaddr, soff, first_wait, offs, both=True):
        a(f"s_waitcnt vmcnt({first_wait})\nL_{name}chk:")
        for i, r in enumerate(regs):
            if i == 0: a(f"v_cmp_ne_u32 vcc, s{sTag}, v{r+3}")
            else: a(f"v_cmp_ne_u32 s[{sa_tmp}:{sa_tmp+1}], s{sTag}, v{r+3}\ns_or_b64 vcc, vcc, s[{sa_tmp}:{sa_tmp+1}]")
        a(f"s_cbranch_vccz L_{name}ok\ns_sub_u32 s{sCnt}, s{sCnt}, 1\ns_cbranch_scc1 L_{name}ok")
        if both:
            a(f"s_cmp_gt_u32 s{sCnt}, {spin - nf}\ns_cbranch_scc1 L_{name}re\ns_xor_b32 s{soff}, s{soff}, {SOFF}\nL_{name}re:")
        for r, o in zip(regs, offs):
            if isinstance(o, str): a(f"buffer_load_dwordx4 {rng(r,4)}, v{vaddr}, s[28:31], {o} offen sc1")
            else: a(f"buffer_load_dwordx4 {rng(r,4)}, v{vaddr}, s[28:31], s{soff} offen offset:{o} sc1")
        a(f"s_waitcnt vmcnt(0)\ns_branch L_{name}chk\nL_{name}ok:")
    sa_tmp = sa(2, 2)
    poll("q", [gq, gq+4], vG, sG, nafter, [0, 2048])
    ST_("q gathered")
    u = E8; qb = B16
    a(f"""
v_perm_b32 v{u}, v{gq}, v{gq+1}, s{sU0}
v_perm_b32 v{u+1}, v{gq+4}, v{gq+5}, s{sU0}
v_add_f32 v{u+4}, v{gq}, v{gq+4}
v_perm_b32 v{u}, v{u}, v{gq+2}, s{sU1}
v_perm_b32 v{u+1}, v{u+1}, v{gq+6}, s{sU1}
v_add_f32 v{u+5}, v{gq+1}, v{gq+5}
v_add_f32 v{u+6}, v{gq+2}, v{gq+6}
v_add_f32 v{u+7}, v{u}, v{u+1}
s_nop 0
v_permlane32_swap_b32 v{u+4}, v{u+6}
v_permlane32_swap_b32 v{u+5}, v{u+7}
s_nop 0
v_add_f32 v{u+4}, v{u+4}, v{u+6}
v_add_f32 v{u+5}, v{u+5}, v{u+7}
v_cvt_pk_bf16_f32 v{u}, v{u+4}, v{u+5}
ds_write_b32 v{vQLw}, v{u} offset:{QL}
s_waitcnt lgkmcnt(0)
s_barrier
""")
    for s in range(4):
        a(f"ds_read_b128 {rng(qb+4*s,4)}, v{vQLr} offset:{QL + s*64}")
    sc = C32
    for s in range(4):
        a(f"s_waitcnt lgkmcnt({3-s})")
        for t in range(2):
            c = "0" if s == 0 else rng(sc+4*t,4)
            a(f"v_mfma_f32_16x16x32_bf16 {rng(sc+4*t,4)}, {rng(ka+16*t+4*s,4)}, {rng(qb+4*s,4)}, {c}")
    m = va(); mt = va(); pk = E8
    a(f"""
s_nop 6
v_max3_f32 v{m}, v{sc}, v{sc+1}, v{sc+2}
v_max3_f32 v{mt}, v{sc+3}, v{sc+4}, v{sc+5}
v_max3_f32 v{m}, v{m}, v{sc+6}, v{sc+7}
v_max_f32 v{m}, v{m}, v{mt}
v_mov_b32 v{mt}, v{m}
s_nop 1
v_permlane16_swap_b32 v{m}, v{mt}
s_nop 0
v_max_f32 v{m}, v{m}, v{mt}
v_mov_b32 v{mt}, v{m}
s_nop 1
v_permlane32_swap_b32 v{m}, v{mt}
s_nop 0
v_max_f32 v{m}, v{m}, v{mt}
v_mul_f32 v{m}, s{sCsc}, v{m}
""")
    for i in range(8):
        a(f"v_fma_f32 v{sc+i}, v{sc+i}, s{sCsc}, -v{m}")
    for i in range(8):
        a(f"v_exp_f32 v{sc+i}, v{sc+i}")
    a(f"""
s_mov_b64 exec, s[{sM4}:{sM4+1}]
ds_write_b32 v{vSw}, v{m} offset:{SL}
v_cvt_pk_bf16_f32 v{pk}, v{sc}, v{sc+1}
v_cvt_pk_bf16_f32 v{pk+1}, v{sc+2}, v{sc+3}
v_cvt_pk_bf16_f32 v{pk+2}, v{sc+4}, v{sc+5}
v_cvt_pk_bf16_f32 v{pk+3}, v{sc+6}, v{sc+7}
ds_write_b128 v{vPw}, {rng(pk,4)} offset:{PL}
s_mov_b64 exec, -1
s_waitcnt lgkmcnt(0)
s_barrier
""")
    ST_("P written")
    pb = B16; sv = F8; vaop = A32; D = C32
    lk = va(16, 4)
    a(f"ds_read_b128 {rng(sv,4)}, v{vSr} offset:{SL}")
    for ks in range(4):
        a(f"ds_read_b128 {rng(pb+4*ks,4)}, v{vPr} offset:{PL + ks*256}")
    M = va(); ff = va(4, 2); L = va(); Rr = va(); lse = va()
    a(f"""
s_waitcnt lgkmcnt(4)
v_max3_f32 v{M}, v{sv}, v{sv+1}, v{sv+2}
v_max_f32 v{M}, v{M}, v{sv+3}
v_sub_f32 v{ff}, v{sv}, v{M}
v_sub_f32 v{ff+1}, v{sv+1}, v{M}
v_sub_f32 v{ff+2}, v{sv+2}, v{M}
v_sub_f32 v{ff+3}, v{sv+3}, v{M}
""")
    for ks in range(4):
        a(f"s_waitcnt lgkmcnt({3-ks})")
        a(f"v_mfma_f32_16x16x32_bf16 {rng(lk+4*ks,4)}, {rng(ones,4)}, {rng(pb+4*ks,4)}, 0")
        a(f"v_exp_f32 v{ff+ks}, v{ff+ks}")
    a(f"""
s_nop 4
v_mul_f32 v{L}, v{ff}, v{lk}
v_fmac_f32 v{L}, v{ff+1}, v{lk+4}
v_fmac_f32 v{L}, v{ff+2}, v{lk+8}
s_nop 0
v_fmac_f32 v{L}, v{ff+3}, v{lk+12}
v_rcp_f32 v{Rr}, v{L}
v_log_f32 v{lse}, v{L}
s_add_u32 s{sT}, s{sOB}, {SOFF}
v_mul_f32 v{ff}, v{ff}, v{Rr}
v_mul_f32 v{ff+1}, v{ff+1}, v{Rr}
v_mul_f32 v{ff+2}, v{ff+2}, v{Rr}
v_mul_f32 v{ff+3}, v{ff+3}, v{Rr}
v_add_f32 v{E8+2}, v{lse}, v{M}
v_add_f32 v{E8+6}, v{lse}, v{M}
v_mov_b32 v{E8+3}, s{sTag}
v_mov_b32 v{E8+7}, s{sTag}
s_mov_b32 s{sCnt}, {spin}
s_waitcnt vmcnt(4)
""")
    ST_("V landed")
    def vread(ks):
        for tp in range(2):
            for e in range(2):
                a(f"ds_read_b64_tr_b16 {rng(vaop+8*ks+4*tp+2*e,2)}, v{vVr+tp} offset:{ks*2048 + e*1024}")
    def pv(ks):
        for tp in range(2):
            a(f"v_mfma_f32_16x16x32_bf16 {rng(D+8*ks+4*tp,4)}, {rng(vaop+8*ks+4*tp,4)}, {rng(pb+4*ks,4)}, 0")
    vread(0); vread(1); vread(2)
    a("s_waitcnt lgkmcnt(8)"); pv(0); vread(3)
    a("s_waitcnt lgkmcnt(8)"); pv(1)
    a("s_waitcnt lgkmcnt(4)"); pv(2)
    a("s_waitcnt lgkmcnt(0)"); pv(3)
    o = F8
    def fidx(ks):
        base = ff + (ks & ~1); sel = ks & 1
        return f"v[{base}:{base+1}]", sel
    for ks in range(4):
        fr, sel = fidx(ks)
        if ks == 3: a("s_nop 1")
        for tp in range(2):
            for h in range(2):
                dst = rng(o+4*tp+2*h, 2); src = rng(D+8*ks+4*tp+2*h, 2)
                if ks == 0: a(f"v_pk_mul_f32 {dst}, {src}, {fr} op_sel:[0,{sel}] op_sel_hi:[1,{sel}]")
                else: a(f"v_pk_fma_f32 {dst}, {src}, {fr}, {dst} op_sel:[0,{sel},0] op_sel_hi:[1,{sel},1]")
    og = E8
    a(f"""
v_cvt_pk_bf16_f32 v{og}, v{o}, v{o+1}
v_cvt_pk_bf16_f32 v{og+1}, v{o+2}, v{o+3}
v_cvt_pk_bf16_f32 v{og+4}, v{o+4}, v{o+5}
v_cvt_pk_bf16_f32 v{og+5}, v{o+6}, v{o+7}
buffer_store_dwordx4 {rng(og,4)}, v{vOst}, s[28:31], s{sOB} offen
buffer_store_dwordx4 {rng(og+4,4)}, v{vOst}, s[28:31], s{sOB} offen offset:64
""")
    ST_("o published")
    gg = B16; wb = A32
    a(f"""
buffer_load_dwordx4 {rng(gg,4)}, v{vOG}, s[28:31], s{sOG} offen sc1
buffer_load_dwordx4 {rng(gg+4,4)}, v{vOG}, s[28:31], s{sOG} offen offset:2048 sc1
buffer_store_dwordx4 {rng(og,4)}, v{vOst}, s[28:31], s{sT} offen sc1
buffer_store_dwordx4 {rng(og+4,4)}, v{vOst}, s[28:31], s{sT} offen offset:64 sc1
s_waitcnt vmcnt(6)
""")
    for s in range(2):
        for tp in range(2):
            for hh in range(2):
                a(f"ds_read_b64_tr_b16 {rng(wb+8*s+4*tp+2*hh,2)}, v{vWOr+tp} offset:{s*2048 + hh*256}")
    poll("o", [gg, gg+4], vOG, sOG, 2, [0, 2048])
    ST_("o gathered")
    e0 = va(); e1 = va(); u = A32 + 16; S = va(); oo = A32 + 24
    a(f"""
v_max_f32 v{M}, v{gg+2}, v{gg+6}
v_mov_b32 v{mt}, v{M}
v_lshlrev_b32 v{u}, 16, v{gg}
v_and_b32 v{u+1}, 0xffff0000, v{gg}
v_permlane16_swap_b32 v{M}, v{mt}
v_lshlrev_b32 v{u+2}, 16, v{gg+1}
v_max_f32 v{M}, v{M}, v{mt}
v_mov_b32 v{mt}, v{M}
v_and_b32 v{u+3}, 0xffff0000, v{gg+1}
v_lshlrev_b32 v{u+4}, 16, v{gg+4}
v_permlane32_swap_b32 v{M}, v{mt}
v_and_b32 v{u+5}, 0xffff0000, v{gg+4}
v_max_f32 v{M}, v{M}, v{mt}
v_lshlrev_b32 v{u+6}, 16, v{gg+5}
v_sub_f32 v{e0}, v{gg+2}, v{M}
v_sub_f32 v{e1}, v{gg+6}, v{M}
v_exp_f32 v{e0}, v{e0}
v_exp_f32 v{e1}, v{e1}
v_and_b32 v{u+7}, 0xffff0000, v{gg+5}
v_add_f32 v{S}, v{e0}, v{e1}
v_mul_f32 v{oo}, v{e0}, v{u}
v_mul_f32 v{oo+1}, v{e0}, v{u+1}
v_mov_b32 v{mt}, v{S}
v_mul_f32 v{oo+2}, v{e0}, v{u+2}
v_mul_f32 v{oo+3}, v{e0}, v{u+3}
v_permlane16_swap_b32 v{S}, v{mt}
v_fmac_f32 v{oo}, v{e1}, v{u+4}
v_fmac_f32 v{oo+1}, v{e1}, v{u+5}
v_add_f32 v{S}, v{S}, v{mt}
v_fmac_f32 v{oo+2}, v{e1}, v{u+6}
v_fmac_f32 v{oo+3}, v{e1}, v{u+7}
v_mov_b32 v{mt}, v{S}
v_permlane16_swap_b32 v{oo}, v{oo+1}
s_nop 0
v_permlane16_swap_b32 v{oo+2}, v{oo+3}
v_permlane32_swap_b32 v{S}, v{mt}
v_add_f32 v{oo}, v{oo}, v{oo+1}
v_add_f32 v{oo+2}, v{oo+2}, v{oo+3}
v_add_f32 v{S}, v{S}, v{mt}
s_nop 0
v_permlane32_swap_b32 v{oo}, v{oo+2}
v_rcp_f32 v{S}, v{S}
v_add_f32 v{oo}, v{oo}, v{oo+2}
v_mul_f32 v{oo}, v{oo}, v{S}
v_cvt_pk_bf16_f32 v{oo}, v{oo}, v{oo}
ds_write_b16 v{vOLw}, v{oo} offset:{OL}
s_waitcnt lgkmcnt(0)
s_barrier
""")
    ob = B16 + 8; y = C32; yg = E8
    a(f"""
ds_read_b128 {rng(ob,4)}, v{vOLr} offset:{OL}
ds_read_b128 {rng(ob+4,4)}, v{vOLr} offset:{OL+64}
s_add_u32 s{sYst}, s{sYst}, {SOFF}
s_add_u32 s{sFG}, s{sFG}, {SOFF}
s_add_u32 s{sT2}, s{sFG}, 65536
s_mov_b32 s{sCnt}, {spin}
""")
    for s in range(2):
        a(f"s_waitcnt lgkmcnt({1-s})")
        for tp in range(2):
            c = "0" if s == 0 else rng(y+4*tp,4)
            a(f"v_mfma_f32_16x16x32_bf16 {rng(y+4*tp,4)}, {rng(wb+8*s+4*tp,4)}, {rng(ob+4*s,4)}, {c}")
    a("s_nop 6")
    for tp in range(2):
        a(f"""v_perm_b32 v{yg+4*tp}, v{y+4*tp}, v{y+4*tp+3}, s{sP0}
v_perm_b32 v{yg+4*tp+1}, v{y+4*tp+1}, v{y+4*tp+3}, s{sP1}
v_perm_b32 v{yg+4*tp+2}, v{y+4*tp+2}, v{y+4*tp+3}, s{sP2}
s_nop 0
buffer_store_dwordx4 {rng(yg+4*tp,4)}, v{vYst}, s[28:31], s{sYst} offen offset:{tp*64} sc1""")
    ST_("y published")
    fg = C32 + 16; z = C32 + 24
    a(f"""
s_cmp_lg_u32 {W}, 0
s_cbranch_scc1 L_fin
L_fpoll:
buffer_load_dwordx4 {rng(fg,4)}, v{vFG}, s[28:31], s{sFG} offen sc1
buffer_load_dwordx4 {rng(fg+4,4)}, v{vFG}, s[28:31], s{sT2} offen sc1
s_waitcnt vmcnt(0)
v_cmp_ne_u32 vcc, s{sTag}, v{fg+3}
v_cmp_ne_u32 s[{sa_tmp}:{sa_tmp+1}], s{sTag}, v{fg+7}
s_or_b64 vcc, vcc, s[{sa_tmp}:{sa_tmp+1}]
s_cbranch_vccz L_fok
s_sub_u32 s{sCnt}, s{sCnt}, 1
s_cbranch_scc0 L_fpoll
L_fok:
""")
    ST_("final gathered")
    a(f"""
v_perm_b32 v{z+3}, v{fg}, v{fg+1}, s{sU0}
v_perm_b32 v{z+7}, v{fg+4}, v{fg+5}, s{sU0}
v_add_f32 v{z}, v{fg}, v{fg+4}
v_perm_b32 v{z+3}, v{z+3}, v{fg+2}, s{sU1}
v_perm_b32 v{z+7}, v{z+7}, v{fg+6}, s{sU1}
v_add_f32 v{z+1}, v{fg+1}, v{fg+5}
v_add_f32 v{z+2}, v{fg+2}, v{fg+6}
v_add_f32 v{z+3}, v{z+3}, v{z+7}
""")
    for ctl in ("quad_perm:[2,3,0,1]", "row_ror:4", "row_ror:8"):
        for r in range(4):
            a(f"v_add_f32_dpp v{z+r}, v{z+r}, v{z+r} {ctl} row_mask:0xf bank_mask:0xf")
    a(f"""
s_nop 0
v_permlane16_swap_b32 v{z}, v{z+1}
v_permlane16_swap_b32 v{z+2}, v{z+3}
s_nop 0
v_add_f32 v{z}, v{z}, v{z+1}
v_add_f32 v{z+2}, v{z+2}, v{z+3}
s_nop 1
v_permlane32_swap_b32 v{z}, v{z+2}
s_nop 0
v_add_f32 v{z}, v{z}, v{z+2}
v_cvt_pk_bf16_f32 v{z}, v{z}, v{z}
buffer_store_short v{z}, v{vOut}, s[32:35], 0 offen
s_cmp_lg_u32 s2, 0
s_cbranch_scc1 L_fin
v_mov_b32 v{t0}, s{sTag}
v_mov_b32 v{t1}, 0
s_mov_b64 exec, 1
buffer_store_dword v{t0}, v{t1}, s[28:31], 0 offen sc1
s_mov_b64 exec, -1
L_fin:
""")
    a("; WARM_END")
    if amp >= 0:
        ST_("end")
        e = nst[0] - 1
        a(f"""
s_waitcnt lgkmcnt(0)
s_lshl_b32 s{sT}, s2, 2
s_add_u32 s{sT}, s{sT}, {ST}
v_mov_b32 v{t0}, s72
v_mov_b32 v{t1}, 0
s_mov_b64 exec, 1
buffer_store_dword v{t0}, v{t1}, s[28:31], s{sT} offen sc1
s_mov_b64 exec, -1
s_cmp_lg_u32 s2, 0
s_cbranch_scc1 L_end
s_cmp_lg_u32 {W}, 0
s_cbranch_scc1 L_end
s_sub_u32 s37, s{72+2*amp}, s72
s_mul_i32 s37, s37, {ampk}
s_add_u32 s37, s37, s{72+2*e}
L_amp:
s_memrealtime s[40:41]
s_waitcnt lgkmcnt(0)
s_cmp_lt_u32 s40, s37
s_cbranch_scc1 L_amp
""")
    elif stamp:
        ST_("end")
        n = nst[0]
        a(f"""
s_waitcnt lgkmcnt(0) vmcnt(0)
s_lshl_b32 s4, s2, 2
s_add_u32 s4, s4, s3
s_lshl_b32 s4, s4, 6
s_add_u32 s4, s4, {ST}
v_mov_b32 v{t1}, 0
s_mov_b64 exec, 1
""")
        for i in range(n):
            a(f"v_mov_b32 v{t0}, s{72+2*i}\nbuffer_store_dword v{t0}, v{t1}, s[28:31], s4 offen offset:{4*i}\ns_nop 0")
    a("L_end:\ns_endpgm")
    lines = a.L
    nh = 0
    if warm:
        lines, nh, have = hops.insert(lines, nparts)
        assert have == nparts, (have, nparts)
    body = "\n".join(lines) + "\n"
    assert sa.hi <= 72, sa.hi
    s = header([f"; @launch grid=(256,1,1) block=(256,1,1) lds={LDS_BYTES}"]) + kernel_begin(KNAME) + body + RODATA + descriptor(KNAME, va.hi, 102 if stamp else sa.hi)
    errs = haz.check(body)
    for e in errs: print("HAZ", e)
    return s, va.hi, sa.hi, nh
if __name__ == "__main__":
    out = sys.argv[1]
    kw = {}
    for x in sys.argv[2:]:
        k, v = x.split("=")
        if k in ("stamp", "warm", "pt"): kw[k] = (v == "1")
        elif k == "nt": kw[k] = (" " + v if v else "")
        else: kw[k] = int(v)
    s, nv, ns, nh = gen(**kw)
    open(out, "w").write(s)
    print("vgprs", nv, "sgprs", ns, "hops", nh, "lds", LDS_BYTES)
```

```python
import sys, struct
sys.path.insert(0, "my")
from ag import *
import haz, hops

QF = 0x10000
OF = 0x80000
OX = 0x100000
SOFF = 0x200000
ST = 0x400000
WS_BYTES = 268435456
QL = 0
PL = QL + 1280
SL = PL + 1024
OL = SL + 64
FL = 3136
JK = FL + 160
XL = 3840; WQ = XL + 1024; KL = WQ + 16384; VL = KL + 32768; WO = VL + 32768
LDS_BYTES = WO + 16384
assert OL + 768 <= FL and JK + 416 <= XL and XL % 256 == 0 and WQ % 256 == 0
F_Q, F_P, F_O, F_GI, F_QI, F_GOK, F_OI, F_YI, F_GO, F_K, F_V, F_W = 0, 16, 32, 48, 64, 80, 96, 112, 128, 132, 136, 140
CSC = 0.08838834764831845 * 1.4426950408889634
def f32(x): return "0x%08x" % struct.unpack("<I", struct.pack("<f", x))[0]
class V:
    def __init__(s, n=0): s.n = n; s.hi = n
    def __call__(s, cnt=1, align=1):
        s.n = (s.n + align - 1) // align * align
        r = s.n; s.n += cnt; s.hi = max(s.hi, s.n)
        return r
def rng(r, n): return f"v[{r}:{r+n-1}]"
OOB = "0x7ffffff0"

def gen(stamp=False, nt=" nt", hold=0, kx=32, nmid=32, lgo=60, holdwo=False, rot=True, rotq=True, fd=1, wthr=2000, N=24, spin=100000, nf=64, amp=-1, ampk=10, warm=True, pt=True, nparts=4, prio=True, step=2):
    if amp >= 0: stamp = True
    a = A(); va = V(1); sa = V(36)
    l = va(); t0 = va(); t1 = va(); t2 = va(); t3 = va()
    nst = [0]; stn = []
    SB = 72
    def ST_(label):
        if stamp:
            i = nst[0]; nst[0] += 1; stn.append(label)
            assert i < 15
            a(f"s_memrealtime s[{SB+2*i}:{SB+1+2*i}]   ; stamp {i} {label}")
    W, G, R, B, C = "s3", "s4", "s5", "s6", "s7"
    sT = sa(); sT2 = sa(); sWin = sa()
    a(f"""
s_cmp_ge_u32 s2, 256
s_cbranch_scc1 L_end
s_load_dwordx2 s[20:21], s[0:1], 24
s_load_dwordx2 s[8:9], s[0:1], 0
s_load_dwordx2 s[12:13], s[0:1], 8
s_load_dwordx2 s[28:29], s[0:1], 56
s_load_dwordx2 s[16:17], s[0:1], 16
s_load_dwordx2 s[24:25], s[0:1], 32
s_load_dwordx2 s[32:33], s[0:1], 40
""")
    ST_("entry")
    a(f"""
v_lshrrev_b32 v{t0}, 6, v0
v_and_b32 v{l}, 63, v0
s_and_b32 {G}, s2, 7
v_readfirstlane_b32 {W}, v{t0}
s_lshr_b32 {R}, s2, 3
s_lshr_b32 {B}, {R}, 3
s_and_b32 {C}, {R}, 7
s_mov_b32 s23, 0x20000
v_lshrrev_b32 v{t0}, 4, v{l}
v_and_b32 v{t1}, 15, v{l}
s_cmp_lt_u32 {W}, 4
s_cbranch_scc1 L_compute
""")
    lv = V(va.n); ls = V(sa.n)
    vWQ = lv(2); vX = lv(); vK = lv(4); vV = lv(2); vWO = lv(2); vLF = lv(); vOne = lv()
    sWQ = ls(); sX = ls(); sK = ls(); sWO = ls(); lT = ls(); sWQb0 = ls()
    if prio: a("s_setprio 2")
    a(f"""
s_mov_b32 s22, 0x400000
v_and_b32 v{t2}, 7, v{l}
v_lshlrev_b32 v{t3}, 1, v{t0}
v_and_b32 v{vX}, 2, v{t3}
v_xor_b32 v{t2}, v{t2}, v{vX}
v_lshlrev_b32 v{t2}, 4, v{t2}
v_lshrrev_b32 v{vX}, 3, v{l}
v_lshl_add_u32 v{vWQ}, v{vX}, 13, v{t2}
v_xor_b32 v{vWQ+1}, 64, v{vWQ}
s_lshl_b32 s{sWQb0}, {G}, 3
s_add_u32 s{sWQb0}, s{sWQb0}, {C}
s_lshl_b32 s{sWQb0}, s{sWQb0}, 7
s_lshl_b32 s{lT}, {B}, 20
s_add_u32 s{sWQb0}, s{sWQb0}, s{lT}
s_mov_b32 s11, s23
s_movk_i32 s10, 0x1000
s_mov_b32 s15, s23
s_mov_b32 s14, 0x2000000
; x voffset: (l>>4)*1024 + ((l&15) ^ (4*(l>>4)))*16
v_lshlrev_b32 v{t2}, 2, v{t0}
v_xor_b32 v{t2}, v{t1}, v{t2}
v_lshlrev_b32 v{t2}, 4, v{t2}
v_lshl_add_u32 v{vX}, v{t0}, 10, v{t2}
s_lshl_b32 s{sX}, {B}, 8
s_waitcnt lgkmcnt(0)
""")
    seq = []
    sRho = ls(); sJ = ls(); sWQb = sWQb0
    for i in range(16):
        pre = []
        if i % 4 == 0:
            j_ = i // 4
            if rotq:
                pre += [f"s_add_u32 s{sJ}, {B}, {j_}", f"s_and_b32 s{sJ}, s{sJ}, 3", f"s_lshl_b32 s{lT}, s{sJ}, 18", f"s_add_u32 s{sWQ}, s{sWQb}, s{lT}",
                        f"s_lshl_b32 s{lT}, s{sJ}, 12", f"s_add_u32 m0, s{lT}, {WQ}"]
            else:
                pre += [f"s_add_u32 s{sWQ}, s{sWQb}, {j_ << 18}", f"s_mov_b32 m0, {WQ + j_*4096}"]
            pre.append("s_nop 0")
        else:
            pre.append(f"s_add_u32 s{sWQ}, s{sWQ}, {65536 - 1024}")
        seq.append((pre, f"buffer_load_dwordx4 v{vWQ + (i & 1)}, s[20:23], s{sWQ} offen offset:{(i%4)*1024}{nt} lds"))
    seq.append(([f"s_movk_i32 m0, {XL}", "s_nop 0"], f"buffer_load_dwordx4 v{vX}, s[8:11], s{sX} offen lds"))
    kpre = f"""; K voffsets: (l>>4)*256 + ((l&15)^(l>>4))*16  ^ (64*i)
v_xor_b32 v{t2}, v{t1}, v{t0}
v_lshlrev_b32 v{t2}, 4, v{t2}
v_lshl_add_u32 v{vK}, v{t0}, 8, v{t2}
v_xor_b32 v{vK+1}, 64, v{vK}
v_xor_b32 v{vK+2}, 0x80, v{vK}
v_xor_b32 v{vK+3}, 0xc0, v{vK}
; flag address vgpr: lane0 -> FL, else JK + 4*l
v_lshlrev_b32 v{t2}, 2, v{l}
v_add_u32 v{t2}, {JK}, v{t2}
v_cmp_eq_u32 vcc, 0, v{l}
v_mov_b32 v{vLF}, {FL}
v_mov_b32 v{vOne}, 1
v_cndmask_b32 v{vLF}, v{t2}, v{vLF}, vcc
; window base = (b*8+g)<<20 + 3072*256 + c*32768
s_lshl_b32 s{sWin}, {B}, 3
s_add_u32 s{sWin}, s{sWin}, {G}
s_lshl_b32 s{sWin}, s{sWin}, 5
s_add_u32 s{sWin}, s{sWin}, {C}
s_add_u32 s{sWin}, s{sWin}, 24
s_lshl_b32 s{sWin}, s{sWin}, 15
; rho*4096 : rho = (g + 2b) & 7
s_lshl_b32 s{sRho}, {B}, 1
s_add_u32 s{sRho}, s{sRho}, {G}
s_and_b32 s{sRho}, s{sRho}, {7 if rot else 0}
s_lshl_b32 s{sRho}, s{sRho}, 12""".split("\n")
    def grp(j_, ldsbase):
        return [f"s_add_u32 s{sJ}, s{sRho}, {j_*4096}", f"s_and_b32 s{sJ}, s{sJ}, 0x7fff", f"s_add_u32 m0, s{sJ}, {ldsbase}", f"s_add_u32 s{sK}, s{sWin}, s{sJ}"]
    for i in range(32):
        pre = list(kpre) if i == 0 else []
        if i % 4 == 0: pre += grp(i // 4, KL)
        seq.append((pre, f"buffer_load_dwordx4 v{vK+i%4}, s[12:15], s{sK} offen offset:{(i%4)*1024}{nt} lds"))
    vpre = f"""s_mov_b32 s19, s23
s_mov_b32 s18, s14
; V voffset: (l>>4)*256 + ((l&15) ^ ((l>>4)<<1))*16 ; odd: ^128 ; WO: (l>>4)*1024 + same piece
v_xor_b32 v{t2}, v{t1}, v{t3}
v_lshlrev_b32 v{t2}, 4, v{t2}
v_lshl_add_u32 v{vV}, v{t0}, 8, v{t2}
v_xor_b32 v{vV+1}, 0x80, v{vV}
v_lshl_add_u32 v{vWO}, v{t0}, 10, v{t2}
v_xor_b32 v{vWO+1}, 0x80, v{vWO}
s_mov_b32 s27, s23
s_mov_b32 s26, s22
; WO soff = p<<16 + cg*256 ; p = g*8 + r/4 ; cg = r&3
s_lshr_b32 s{lT}, {R}, 2
s_lshl_b32 s{sWO}, {G}, 3
s_add_u32 s{sWO}, s{sWO}, s{lT}
s_lshl_b32 s{sWO}, s{sWO}, 8
s_and_b32 s{lT}, {R}, 3
s_add_u32 s{sWO}, s{sWO}, s{lT}
s_lshl_b32 s{sWO}, s{sWO}, 8""".split("\n")
    for i in range(32):
        pre = list(vpre) if i == 0 else []
        if i % 4 == 0: pre += grp(i // 4, VL)
        seq.append((pre, f"buffer_load_dwordx4 v{vV+(i&1)}, s[16:19], s{sK} offen offset:{(i%4)*1024}{nt} lds"))
    for i in range(16):
        pre = []
        if i == 0: pre += [f"s_mov_b32 m0, {WO}", "s_nop 0"]
        elif i % 4 == 0: pre.append("s_add_u32 m0, m0, 4096")
        if i: pre.append(f"s_add_u32 s{sWO}, s{sWO}, {4096 - 1024 if i % 4 else 4096 + 3072}")
        seq.append((pre, f"buffer_load_dwordx4 v{vWO+((i>>1)&1)}, s[24:27], s{sWO} offen offset:{(i%4)*1024}{nt} lds"))
    T = len(seq); assert T == 97
    def emit(k):
        pre, ld = seq[k]
        for p in pre: a(p)
        a(ld)
    for k in range(17): emit(k)
    ST_("L: wq issued")
    pre17, ld17 = seq[17]
    for p in pre17: a(p)
    if hold: a(f"s_waitcnt vmcnt({17 - hold})")
    a(ld17)
    n0 = 17 + kx
    for k in range(18, n0): emit(k)
    lfl = lv(4, 4)
    a(f"v_mov_b32 v{t2}, {FL}")
    a(f"s_waitcnt vmcnt({n0 - 17})\ns_barrier")
    ST_("L: wq landed")
    def lwait(name, off):
        a(f"""L_{name}:
ds_read_b128 v[{lfl}:{lfl+3}], v{t2} offset:{off}
s_waitcnt lgkmcnt(0)
v_and_b32 v{lfl}, v{lfl}, v{lfl+1}
v_and_b32 v{lfl+2}, v{lfl+2}, v{lfl+3}
v_and_b32 v{lfl}, v{lfl}, v{lfl+2}
v_cmp_eq_u32 vcc, 0, v{lfl}
s_cbranch_vccnz L_{name}""")
    vFA = lv()
    a(f"v_mov_b32 v{vFA}, {FL}")
    def lwait(name, off):
        a(f"""L_{name}:
ds_read_b128 v[{lfl}:{lfl+3}], v{vFA} offset:{off}
s_waitcnt lgkmcnt(0)
v_and_b32 v{lfl}, v{lfl}, v{lfl+1}
v_and_b32 v{lfl+2}, v{lfl+2}, v{lfl+3}
v_and_b32 v{lfl}, v{lfl}, v{lfl+2}
v_cmp_eq_u32 vcc, 0, v{lfl}
s_cbranch_vccnz L_{name}""")
    lwait("qi", F_QI)
    n1 = 49 + nmid
    for k in range(n0, n1): emit(k)
    assert lgo >= 49 and lgo <= n1
    a(f"s_waitcnt vmcnt({n1 - lgo})")
    a(f"ds_write_b32 v{vLF}, v{vOne} offset:{F_GO}")
    a(f"ds_write_b32 v{vLF}, v{vOne} offset:{F_K}")
    lwait("gi", F_GI)
    for k in range(n1, 81): emit(k)
    if holdwo: lwait("gok", F_GOK)
    for k in range(81, T): emit(k)
    for cnt, f in ((81, F_V), (97, F_W)):
        a(f"s_waitcnt vmcnt({T - cnt})\nds_write_b32 v{vLF}, v{vOne} offset:{f}")
    ST_("L: all landed")
    if stamp: a("s_branch L_fin")
    else: a("s_endpgm")
    a("L_compute:")
    g = va(); n16 = va(); n4 = va()
    sQB = sa(); sOB = sa(); sEp = sa(); sTag = sa(); vPT = va()
    a(f"""
s_mov_b32 s31, s23
s_mov_b32 s30, {WS_BYTES}
s_mov_b32 s35, s23
s_movk_i32 s34, 0x1000
s_lshl_b32 s{sQB}, {G}, 4
s_add_u32 s{sQB}, s{sQB}, {B}
s_lshl_b32 s{sQB}, s{sQB}, 11
s_lshl_b32 s{sT}, {C}, 8
s_add_u32 s{sQB}, s{sQB}, s{sT}
s_add_u32 s{sQB}, s{sQB}, {QF}
s_lshl_b32 s{sOB}, {B}, 3
s_add_u32 s{sOB}, s{sOB}, {G}
s_lshl_b32 s{sOB}, s{sOB}, 5
s_add_u32 s{sOB}, s{sOB}, {C}
s_lshl_b32 s{sOB}, s{sOB}, 9
s_add_u32 s{sOB}, s{sOB}, {OF}
""")
    if pt:
        a(f"""
s_mul_i32 s{sT}, {W}, 6
v_add_u32 v{t3}, s{sT}, v{l}
v_lshrrev_b32 v{t0}, 1, v{t3}
v_lshlrev_b32 v{t0}, 13, v{t0}
v_and_b32 v{t1}, 1, v{t3}
v_lshl_or_b32 v{t0}, v{t1}, 7, v{t0}
v_add_u32 v{t0}, s{sQB}, v{t0}
v_subrev_u32 v{t1}, 8, v{t3}
v_lshrrev_b32 v{t2}, 2, v{t1}
v_lshlrev_b32 v{t2}, 12, v{t2}
v_and_b32 v{t1}, 3, v{t1}
v_lshl_or_b32 v{t2}, v{t1}, 7, v{t2}
v_add_u32 v{t2}, s{sOB}, v{t2}
v_cmp_gt_u32 vcc, 8, v{t3}
v_mov_b32 v{t3}, {OOB}
s_nop 0
v_cndmask_b32 v{t0}, v{t2}, v{t0}, vcc
v_cmp_gt_u32 vcc, 6, v{l}
s_waitcnt lgkmcnt(0)
s_load_dword s{sEp}, s[28:29], 0
v_cndmask_b32 v{t0}, v{t3}, v{t0}, vcc
buffer_load_dword v{vPT}, v{t0}, s[28:31], 0 offen
""")
    else:
        a(f"s_waitcnt lgkmcnt(0)\ns_load_dword s{sEp}, s[28:29], 0")
    if warm:
        a("s_mov_b64 exec, 0")
        for p in range(1, nparts):
            a(f"s_cmp_eq_u32 {W}, {p}\ns_cbranch_scc1 HOP_P{p}")
        a("s_branch HOP_P0\nL_warm_done:\ns_mov_b64 exec, -1")
    a("; WARM_START")
    sP = sa(); sCG = sa(); sR4 = sa()
    vXr = va(4); vWQr = va(); vKr = va(4); vVr = va(2); vWOr = va(2)
    vQst = va(); vG = va(); sG = sa(); vQLw = va(); vQLr = va()
    vPw = va(); vPr = va(); vSw = va(); vSr = va()
    vOst = va(); vOG = va(); sOG = sa(); vOLw = va(); vOLr = va()
    vYst = va(); sYst = sa(); vFG = va(); sFG = sa(); vOut = va()
    vFw = va(); vFr = va(); vOne_c = va()
    sCsc = sa(); sP0 = sa(); sP1 = sa(); sP2 = sa(); sU0 = sa(); sU1 = sa(); sM4 = sa(2, 2); sCnt = sa()
    a(f"""
v_lshrrev_b32 v{g}, 4, v{l}
v_and_b32 v{n16}, 15, v{l}
v_and_b32 v{n4}, 3, v{l}
v_lshlrev_b32 v{t2}, 2, v{l}
v_mov_b32 v{t3}, 0
ds_write_b32 v{t2}, v{t3} offset:{FL}
v_add_u32 v{t2}, {JK}, v{t2}
s_lshl_b32 s{sT}, {W}, 2
s_add_u32 s{sT}, s{sT}, {FL}
v_mov_b32 v{vFw}, s{sT}
v_cmp_eq_u32 vcc, 0, v{l}
v_mov_b32 v{vFr}, {FL}
v_mov_b32 v{vOne_c}, 1
v_cndmask_b32 v{vFw}, v{t2}, v{vFw}, vcc
; p = g*8 + r/4 ; cg = r&3
s_lshr_b32 s{sR4}, {R}, 2
s_lshl_b32 s{sP}, {G}, 3
s_add_u32 s{sP}, s{sP}, s{sR4}
s_and_b32 s{sCG}, {R}, 3
v_lshlrev_b32 v{t2}, 2, v{n4}
v_xor_b32 v{t2}, v{g}, v{t2}
v_lshlrev_b32 v{t2}, 4, v{t2}
v_lshl_add_u32 v{t2}, v{n4}, 8, v{t2}
v_add_u32 v{vXr}, {XL}, v{t2}
v_xor_b32 v{vXr+1}, 64, v{vXr}
v_xor_b32 v{vXr+2}, 0x80, v{vXr}
v_xor_b32 v{vXr+3}, 0xc0, v{vXr}
v_bfe_u32 v{t0}, v{l}, 2, 2
v_lshl_add_u32 v{t2}, v{g}, 3, v{t0}
v_lshlrev_b32 v{t2}, 7, v{t2}
v_lshl_add_u32 v{t2}, v{n4}, 3, v{t2}
v_lshrrev_b32 v{t3}, 1, v{t0}
v_and_b32 v{t1}, 1, v{g}
v_lshl_or_b32 v{t3}, v{t1}, 1, v{t3}
v_xor_b32 v{t3}, {W}, v{t3}
v_lshl_add_u32 v{t2}, v{t3}, 5, v{t2}
v_add_u32 v{vWQr}, {WQ}, v{t2}
s_lshl_b32 s{sT}, {W}, 13
s_add_u32 s{sT}, s{sT}, {KL}
v_xor_b32 v{t2}, v{g}, v{n16}
v_lshlrev_b32 v{t2}, 4, v{t2}
v_lshl_add_u32 v{t2}, v{n16}, 8, v{t2}
v_add_u32 v{vKr}, s{sT}, v{t2}
v_xor_b32 v{vKr+1}, 64, v{vKr}
v_xor_b32 v{vKr+2}, 0x80, v{vKr}
v_xor_b32 v{vKr+3}, 0xc0, v{vKr}
v_lshl_add_u32 v{t2}, v{g}, 2, v{t0}
v_lshlrev_b32 v{t2}, 8, v{t2}
v_lshl_add_u32 v{t2}, v{n4}, 3, v{t2}
v_lshl_or_b32 v{t3}, v{t1}, 2, v{t0}
s_lshl_b32 s{sT}, {W}, 1
v_xor_b32 v{t3}, s{sT}, v{t3}
v_lshl_add_u32 v{t2}, v{t3}, 5, v{t2}
v_add_u32 v{vVr}, {VL}, v{t2}
v_xor_b32 v{vVr+1}, 32, v{vVr}
v_lshl_add_u32 v{t2}, v{g}, 3, v{t0}
v_lshlrev_b32 v{t2}, 8, v{t2}
v_lshl_add_u32 v{t2}, v{n4}, 3, v{t2}
v_lshl_add_u32 v{t2}, v{t3}, 5, v{t2}
v_add_u32 v{vWOr}, {WO}, v{t2}
v_xor_b32 v{vWOr+1}, 32, v{vWOr}
v_cmp_gt_u32 vcc, 4, v{n16}
v_mov_b32 v{t3}, {OOB}
s_lshl_b32 s{sT}, {W}, 6
v_lshlrev_b32 v{t2}, 4, v{g}
v_add_u32 v{t0}, s{sT}, v{t2}
v_lshl_add_u32 v{t0}, v{n16}, 13, v{t0}
v_cndmask_b32 v{vQst}, v{t3}, v{t0}, vcc
s_lshl_b32 s{sT}, {W}, 7
v_add_u32 v{t2}, s{sT}, v{t2}
v_lshl_add_u32 v{t0}, v{n16}, 12, v{t2}
v_cndmask_b32 v{vOst}, v{t3}, v{t0}, vcc
v_lshl_add_u32 v{t0}, v{n16}, 9, v{t2}
v_cndmask_b32 v{vYst}, v{t3}, v{t0}, vcc
v_lshrrev_b32 v{t0}, 5, v{l}
v_and_b32 v{t1}, 31, v{l}
v_lshlrev_b32 v{t2}, 4, v{t1}
v_lshl_add_u32 v{vG}, v{t0}, 12, v{t2}
s_lshl_b32 s{sG}, {G}, 2
s_add_u32 s{sG}, s{sG}, {B}
s_lshl_b32 s{sG}, s{sG}, 4
s_add_u32 s{sG}, s{sG}, {W}
s_lshl_b32 s{sG}, s{sG}, 9
s_add_u32 s{sG}, s{sG}, {QF}
s_mul_i32 s{sT}, {W}, 320
v_lshlrev_b32 v{t2}, 3, v{t1}
v_lshl_add_u32 v{t2}, v{t0}, 2, v{t2}
v_add_u32 v{vQLw}, s{sT}, v{t2}
v_mul_u32_u24 v{t2}, 320, v{n4}
v_lshl_add_u32 v{vQLr}, v{g}, 4, v{t2}
v_lshlrev_b32 v{t2}, 6, v{n4}
v_lshl_add_u32 v{vPr}, v{g}, 4, v{t2}
s_lshl_b32 s{sT}, {W}, 8
v_add_u32 v{vPw}, s{sT}, v{vPr}
v_lshlrev_b32 v{vSr}, 4, v{n4}
s_lshl_b32 s{sT}, {W}, 2
v_add_u32 v{vSw}, s{sT}, v{vSr}
v_lshlrev_b32 v{t2}, 9, v{g}
v_lshl_add_u32 v{vOG}, v{n16}, 4, v{t2}
s_lshl_b32 s{sOG}, {W}, 3
s_add_u32 s{sOG}, s{sOG}, {G}
s_lshl_b32 s{sOG}, s{sOG}, 2
s_add_u32 s{sOG}, s{sOG}, {B}
s_lshl_b32 s{sOG}, s{sOG}, 4
s_and_b32 s{sT}, s{sR4}, 1
s_add_u32 s{sOG}, s{sOG}, s{sT}
s_lshl_b32 s{sOG}, s{sOG}, 8
s_add_u32 s{sOG}, s{sOG}, {OF}
s_mul_i32 s{sT}, {W}, 192
v_lshlrev_b32 v{t2}, 3, v{n16}
v_lshl_add_u32 v{t2}, v{g}, 1, v{t2}
v_add_u32 v{vOLw}, s{sT}, v{t2}
v_mul_u32_u24 v{t2}, 192, v{n4}
v_lshl_add_u32 v{vOLr}, v{g}, 4, v{t2}
s_lshl_b32 s{sYst}, s{sCG}, 6
s_add_u32 s{sYst}, s{sYst}, s{sP}
s_lshl_b32 s{sYst}, s{sYst}, 11
s_add_u32 s{sYst}, s{sYst}, {OX + SOFF}
v_lshrrev_b32 v{t0}, 1, v{l}
v_and_b32 v{t1}, 1, v{l}
v_lshlrev_b32 v{t2}, 4, v{t1}
v_lshl_add_u32 v{vFG}, v{t0}, 11, v{t2}
s_lshl_b32 s{sFG}, s{sCG}, 12
s_add_u32 s{sFG}, s{sFG}, s{sP}
s_lshl_b32 s{sFG}, s{sFG}, 5
s_add_u32 s{sFG}, s{sFG}, {OX + SOFF}
s_lshr_b32 s{sT}, s{sP}, 4
s_lshl_b32 s{sT}, s{sT}, 2
s_add_u32 s{sT}, s{sT}, s{sCG}
s_lshl_b32 s{sT}, s{sT}, 4
s_and_b32 s{sT2}, s{sP}, 15
s_add_u32 s{sT}, s{sT}, s{sT2}
s_lshl_b32 s{sT}, s{sT}, 4
v_lshlrev_b32 v{t2}, 3, v{t1}
v_lshl_add_u32 v{t2}, v{g}, 1, v{t2}
v_add_u32 v{t2}, s{sT}, v{t2}
v_cmp_gt_u32 vcc, 2, v{n16}
s_mov_b32 s{sCsc}, {f32(CSC)}
s_mov_b32 s{sP0}, 0x07060503
v_cndmask_b32 v{vOut}, v{t3}, v{t2}, vcc
s_mov_b32 s{sP1}, 0x07060502
s_mov_b32 s{sP2}, 0x07060501
s_mov_b32 s{sU0}, 0x04000c0c
s_mov_b32 s{sU1}, 0x0706000c
s_mov_b32 s{sM4}, 0x000f000f
s_mov_b32 s{sM4+1}, 0x000f000f
s_waitcnt lgkmcnt(0)
s_mul_i32 s{sTag}, s{sEp}, 1664525
s_add_u32 s{sTag}, s{sTag}, 1013904223
""")
    A32 = va(32, 4); B16 = va(16, 4); C32 = va(32, 4); E8 = va(8, 4); F8 = va(8, 4)
    ones = va(4, 4); fl = va(4, 4); fl1 = va(); QS4 = va(4, 4); OS8 = va(8, 4); sQS = sa(); sOS = sa(); sWcN = sa.n
    a(f"""
v_mov_b32 v{ones}, 0x3f803f80
v_mov_b32 v{ones+1}, 0x3f803f80
v_mov_b32 v{ones+2}, 0x3f803f80
v_mov_b32 v{ones+3}, 0x3f803f80
v_mov_b32 v{QS4+3}, s{sTag}
v_mov_b32 v{OS8+3}, s{sTag}
v_mov_b32 v{OS8+7}, s{sTag}
v_mov_b32 v{E8+3}, s{sTag}
v_mov_b32 v{E8+7}, s{sTag}
s_add_u32 s{sQS}, s{sQB}, {SOFF}
s_add_u32 s{sOS}, s{sOB}, {SOFF}
s_mov_b32 s{sCnt}, {spin}
s_movk_i32 s{sWcN}, {wthr}
""")
    ST_("addr done")
    lab = [0]
    def setflag(off): a(f"ds_write_b32 v{vFw}, v{vOne_c} offset:{off}")
    colder = []
    sWc = sa()
    stage = {"flush": []}
    def waitflags(group=None, single=None):
        lab[0] += 1; L = f"L_wf{lab[0]}"
        a(f"{L}:")
        if group is not None: a(f"ds_read_b128 {rng(fl,4)}, v{vFr} offset:{group}")
        if single is not None: a(f"ds_read_b32 v{fl1}, v{vFr} offset:{single}")
        a("s_sub_u32 s%d, s%d, 1" % (sWc, sWc))
        a(f"s_cbranch_scc1 {L}f")
        a("s_waitcnt lgkmcnt(0)")
        if group is not None:
            a(f"v_and_b32 v{fl}, v{fl}, v{fl+1}\nv_and_b32 v{fl+2}, v{fl+2}, v{fl+3}")
            if single is not None: a(f"v_and_b32 v{fl}, v{fl}, v{fl1}")
            a(f"v_and_b32 v{fl}, v{fl}, v{fl+2}")
            r = fl
        else: r = fl1
        a(f"v_cmp_eq_u32 vcc, 0, v{r}\ns_cbranch_vccnz {L}")
        colder.append([f"{L}f:"] + list(stage["flush"]) + [f"s_movk_i32 s{sWc}, {wthr}", "s_waitcnt lgkmcnt(0)", f"s_branch {L}"])
    QFL = [f"buffer_store_dwordx4 {rng(QS4,4)}, v{vQst}, s[28:31], s{sQS} offen sc1"]
    OFL = [f"buffer_store_dwordx4 {rng(OS8,4)}, v{vOst}, s[28:31], s{sOS} offen sc1", f"buffer_store_dwordx4 {rng(OS8+4,4)}, v{vOst}, s[28:31], s{sOS} offen offset:64 sc1"]
    assert sWc == sWcN
    xb = A32; wa = A32 + 16; acc = C32
    a("s_waitcnt lgkmcnt(0)\ns_barrier")
    for s in range(4):
        a(f"ds_read_b128 {rng(xb+4*s,4)}, v{vXr+s}")
        a(f"ds_read_b64_tr_b16 {rng(wa+4*s,2)}, v{vWQr} offset:{s*4096}")
        a(f"ds_read_b64_tr_b16 {rng(wa+4*s+2,2)}, v{vWQr} offset:{s*4096 + 512}")
    for s in range(4):
        a(f"s_waitcnt lgkmcnt({3*(3-s)})")
        c = "0" if s == 0 else rng(acc,4)
        a(f"v_mfma_f32_16x16x32_bf16 {rng(acc,4)}, {rng(wa+4*s,4)}, {rng(xb+4*s,4)}, {c}")
    a(f"""
s_nop 7
v_perm_b32 v{QS4}, v{acc}, v{acc+3}, s{sP0}
v_perm_b32 v{QS4+1}, v{acc+1}, v{acc+3}, s{sP1}
v_perm_b32 v{QS4+2}, v{acc+2}, v{acc+3}, s{sP2}
buffer_store_dwordx4 {rng(QS4,4)}, v{vQst}, s[28:31], s{sQB} offen
""")
    setflag(F_QI)
    stage["flush"] = QFL
    ST_("q published")
    gq = F8
    waitflags(single=F_GO)
    ST_("GO")
    a(f"buffer_load_dwordx4 {rng(gq,4)}, v{vG}, s[28:31], s{sG} offen sc1")
    a(f"buffer_load_dwordx4 {rng(gq+4,4)}, v{vG}, s[28:31], s{sG} offen offset:2048 sc1")
    setflag(F_GI)
    sa_tmp = sa(2, 2)
    cold = []
    def poll(name, regs, vaddr, soff, first_wait, offs, flush):
        a(f"s_waitcnt vmcnt({first_wait})\nL_{name}chk:")
        for i, r in enumerate(regs):
            if i == 0: a(f"v_cmp_ne_u32 vcc, s{sTag}, v{r+3}")
            else: a(f"v_cmp_ne_u32 s[{sa_tmp}:{sa_tmp+1}], s{sTag}, v{r+3}\ns_or_b64 vcc, vcc, s[{sa_tmp}:{sa_tmp+1}]")
        a(f"s_cbranch_vccnz L_{name}retry\nL_{name}ok:")
        c = [f"L_{name}retry:", f"s_sub_u32 s{sCnt}, s{sCnt}, 1", f"s_cbranch_scc1 L_{name}ok",
             f"s_cmp_gt_u32 s{sCnt}, {spin - nf}", f"s_cbranch_scc1 L_{name}re",
             f"s_cmp_lg_u32 s{sCnt}, {spin - nf}", f"s_cbranch_scc1 L_{name}tg"] + flush + [f"L_{name}tg:", f"s_xor_b32 s{soff}, s{soff}, {SOFF}", f"L_{name}re:"]
        for r, o in zip(regs, offs):
            c.append(f"buffer_load_dwordx4 {rng(r,4)}, v{vaddr}, s[28:31], s{soff} offen offset:{o} sc1")
        c += ["s_waitcnt vmcnt(0)", f"s_branch L_{name}chk"]
        cold.append((name, c))
    poll("q", [gq, gq+4], vG, sG, 0, [0, 2048], QFL)
    setflag(F_GOK)
    ST_("q gathered")
    u = E8; qb = B16; ka = A32
    a(f"""
v_perm_b32 v{u}, v{gq}, v{gq+1}, s{sU0}
v_perm_b32 v{u+1}, v{gq+4}, v{gq+5}, s{sU0}
v_add_f32 v{u+4}, v{gq}, v{gq+4}
v_perm_b32 v{u}, v{u}, v{gq+2}, s{sU1}
v_perm_b32 v{u+1}, v{u+1}, v{gq+6}, s{sU1}
v_add_f32 v{u+5}, v{gq+1}, v{gq+5}
v_add_f32 v{u+6}, v{gq+2}, v{gq+6}
v_add_f32 v{u+7}, v{u}, v{u+1}
s_nop 0
v_permlane32_swap_b32 v{u+4}, v{u+6}
v_permlane32_swap_b32 v{u+5}, v{u+7}
s_nop 0
v_add_f32 v{u+4}, v{u+4}, v{u+6}
v_add_f32 v{u+5}, v{u+5}, v{u+7}
v_cvt_pk_bf16_f32 v{u}, v{u+4}, v{u+5}
ds_write_b32 v{vQLw}, v{u} offset:{QL}
""")
    setflag(F_Q)
    waitflags(group=F_Q, single=F_K)
    for s in range(4):
        a(f"ds_read_b128 {rng(qb+4*s,4)}, v{vQLr} offset:{QL + s*64}")
        for t in range(2):
            a(f"ds_read_b128 {rng(ka+16*t+4*s,4)}, v{vKr+s} offset:{t*4096}")
    sc = C32
    for s in range(4):
        a(f"s_waitcnt lgkmcnt({3*(3-s)})")
        for t in range(2):
            c = "0" if s == 0 else rng(sc+4*t,4)
            a(f"v_mfma_f32_16x16x32_bf16 {rng(sc+4*t,4)}, {rng(ka+16*t+4*s,4)}, {rng(qb+4*s,4)}, {c}")
    m = va(); mt = va(); pk = E8
    a(f"""
s_nop 6
v_max3_f32 v{m}, v{sc}, v{sc+1}, v{sc+2}
v_max3_f32 v{mt}, v{sc+3}, v{sc+4}, v{sc+5}
v_max3_f32 v{m}, v{m}, v{sc+6}, v{sc+7}
v_max_f32 v{m}, v{m}, v{mt}
v_mov_b32 v{mt}, v{m}
s_nop 1
v_permlane16_swap_b32 v{m}, v{mt}
s_nop 0
v_max_f32 v{m}, v{m}, v{mt}
v_mov_b32 v{mt}, v{m}
s_nop 1
v_permlane32_swap_b32 v{m}, v{mt}
s_nop 0
v_max_f32 v{m}, v{m}, v{mt}
v_mul_f32 v{m}, s{sCsc}, v{m}
""")
    for i in range(8):
        a(f"v_fma_f32 v{sc+i}, v{sc+i}, s{sCsc}, -v{m}")
    for i in range(8):
        a(f"v_exp_f32 v{sc+i}, v{sc+i}")
    a(f"""
s_mov_b64 exec, s[{sM4}:{sM4+1}]
ds_write_b32 v{vSw}, v{m} offset:{SL}
v_cvt_pk_bf16_f32 v{pk}, v{sc}, v{sc+1}
v_cvt_pk_bf16_f32 v{pk+1}, v{sc+2}, v{sc+3}
v_cvt_pk_bf16_f32 v{pk+2}, v{sc+4}, v{sc+5}
v_cvt_pk_bf16_f32 v{pk+3}, v{sc+6}, v{sc+7}
ds_write_b128 v{vPw}, {rng(pk,4)} offset:{PL}
s_mov_b64 exec, -1
""")
    setflag(F_P)
    waitflags(group=F_P)
    ST_("P written")
    pb = B16; sv = F8; vaop = A32; D = C32
    lk = va(16, 4)
    a(f"ds_read_b128 {rng(sv,4)}, v{vSr} offset:{SL}")
    for ks in range(4):
        a(f"ds_read_b128 {rng(pb+4*ks,4)}, v{vPr} offset:{PL + ks*256}")
    M = va(); ff = va(4, 2); L = va(); Rr = va(); lse = va()
    a(f"""
s_waitcnt lgkmcnt(4)
v_max3_f32 v{M}, v{sv}, v{sv+1}, v{sv+2}
v_max_f32 v{M}, v{M}, v{sv+3}
v_sub_f32 v{ff}, v{sv}, v{M}
v_sub_f32 v{ff+1}, v{sv+1}, v{M}
v_sub_f32 v{ff+2}, v{sv+2}, v{M}
v_sub_f32 v{ff+3}, v{sv+3}, v{M}
""")
    for ks in range(4):
        a(f"s_waitcnt lgkmcnt({3-ks})")
        a(f"v_mfma_f32_16x16x32_bf16 {rng(lk+4*ks,4)}, {rng(ones,4)}, {rng(pb+4*ks,4)}, 0")
        a(f"v_exp_f32 v{ff+ks}, v{ff+ks}")
    a(f"""
s_nop 4
v_mul_f32 v{L}, v{ff}, v{lk}
v_fmac_f32 v{L}, v{ff+1}, v{lk+4}
v_fmac_f32 v{L}, v{ff+2}, v{lk+8}
s_nop 0
v_fmac_f32 v{L}, v{ff+3}, v{lk+12}
v_rcp_f32 v{Rr}, v{L}
v_log_f32 v{lse}, v{L}
s_nop 0
v_mul_f32 v{ff}, v{ff}, v{Rr}
v_mul_f32 v{ff+1}, v{ff+1}, v{Rr}
v_mul_f32 v{ff+2}, v{ff+2}, v{Rr}
v_mul_f32 v{ff+3}, v{ff+3}, v{Rr}
v_add_f32 v{OS8+2}, v{lse}, v{M}
v_add_f32 v{OS8+6}, v{lse}, v{M}
s_mov_b32 s{sCnt}, {spin}
""")
    waitflags(single=F_V)
    ST_("V landed")
    def vread(ks):
        for tp in range(2):
            for e in range(2):
                a(f"ds_read_b64_tr_b16 {rng(vaop+8*ks+4*tp+2*e,2)}, v{vVr+tp} offset:{ks*8192 + e*4096}")
    def pv(ks):
        for tp in range(2):
            a(f"v_mfma_f32_16x16x32_bf16 {rng(D+8*ks+4*tp,4)}, {rng(vaop+8*ks+4*tp,4)}, {rng(pb+4*ks,4)}, 0")
    vread(0); vread(1); vread(2)
    a("s_waitcnt lgkmcnt(8)"); pv(0); vread(3)
    a("s_waitcnt lgkmcnt(8)"); pv(1)
    a("s_waitcnt lgkmcnt(4)"); pv(2)
    a("s_waitcnt lgkmcnt(0)"); pv(3)
    o = F8
    for ks in range(4):
        base = ff + (ks & ~1); sel = ks & 1; fr = f"v[{base}:{base+1}]"
        for tp in range(2):
            for h in range(2):
                dst = rng(o+4*tp+2*h, 2); src = rng(D+8*ks+4*tp+2*h, 2)
                if ks == 0: a(f"v_pk_mul_f32 {dst}, {src}, {fr} op_sel:[0,{sel}] op_sel_hi:[1,{sel}]")
                else: a(f"v_pk_fma_f32 {dst}, {src}, {fr}, {dst} op_sel:[0,{sel},0] op_sel_hi:[1,{sel},1]")
    og = OS8
    a(f"""
v_cvt_pk_bf16_f32 v{og}, v{o}, v{o+1}
v_cvt_pk_bf16_f32 v{og+1}, v{o+2}, v{o+3}
v_cvt_pk_bf16_f32 v{og+4}, v{o+4}, v{o+5}
v_cvt_pk_bf16_f32 v{og+5}, v{o+6}, v{o+7}
buffer_store_dwordx4 {rng(og,4)}, v{vOst}, s[28:31], s{sOB} offen
buffer_store_dwordx4 {rng(og+4,4)}, v{vOst}, s[28:31], s{sOB} offen offset:64
""")
    setflag(F_OI)
    stage["flush"] = QFL + OFL
    ST_("o published")
    gg = B16; wb = A32
    waitflags(group=F_OI)
    a(f"""
buffer_load_dwordx4 {rng(gg,4)}, v{vOG}, s[28:31], s{sOG} offen sc1
buffer_load_dwordx4 {rng(gg+4,4)}, v{vOG}, s[28:31], s{sOG} offen offset:2048 sc1
""")
    waitflags(single=F_W)
    for s in range(2):
        for tp in range(2):
            for hh in range(2):
                a(f"ds_read_b64_tr_b16 {rng(wb+8*s+4*tp+2*hh,2)}, v{vWOr+tp} offset:{s*8192 + hh*1024}")
    poll("o", [gg, gg+4], vOG, sOG, 0, [0, 2048], QFL + OFL)
    ST_("o gathered")
    e0 = va(); e1 = va(); u = A32 + 16; S = va(); oo = A32 + 24
    a(f"""
v_max_f32 v{M}, v{gg+2}, v{gg+6}
v_mov_b32 v{mt}, v{M}
v_lshlrev_b32 v{u}, 16, v{gg}
v_and_b32 v{u+1}, 0xffff0000, v{gg}
v_permlane16_swap_b32 v{M}, v{mt}
v_lshlrev_b32 v{u+2}, 16, v{gg+1}
v_max_f32 v{M}, v{M}, v{mt}
v_mov_b32 v{mt}, v{M}
v_and_b32 v{u+3}, 0xffff0000, v{gg+1}
v_lshlrev_b32 v{u+4}, 16, v{gg+4}
v_permlane32_swap_b32 v{M}, v{mt}
v_and_b32 v{u+5}, 0xffff0000, v{gg+4}
v_max_f32 v{M}, v{M}, v{mt}
v_lshlrev_b32 v{u+6}, 16, v{gg+5}
v_sub_f32 v{e0}, v{gg+2}, v{M}
v_sub_f32 v{e1}, v{gg+6}, v{M}
v_exp_f32 v{e0}, v{e0}
v_exp_f32 v{e1}, v{e1}
v_and_b32 v{u+7}, 0xffff0000, v{gg+5}
v_add_f32 v{S}, v{e0}, v{e1}
v_mul_f32 v{oo}, v{e0}, v{u}
v_mul_f32 v{oo+1}, v{e0}, v{u+1}
v_mov_b32 v{mt}, v{S}
v_mul_f32 v{oo+2}, v{e0}, v{u+2}
v_mul_f32 v{oo+3}, v{e0}, v{u+3}
v_permlane16_swap_b32 v{S}, v{mt}
v_fmac_f32 v{oo}, v{e1}, v{u+4}
v_fmac_f32 v{oo+1}, v{e1}, v{u+5}
v_add_f32 v{S}, v{S}, v{mt}
v_fmac_f32 v{oo+2}, v{e1}, v{u+6}
v_fmac_f32 v{oo+3}, v{e1}, v{u+7}
v_mov_b32 v{mt}, v{S}
v_permlane16_swap_b32 v{oo}, v{oo+1}
s_nop 0
v_permlane16_swap_b32 v{oo+2}, v{oo+3}
v_permlane32_swap_b32 v{S}, v{mt}
v_add_f32 v{oo}, v{oo}, v{oo+1}
v_add_f32 v{oo+2}, v{oo+2}, v{oo+3}
v_add_f32 v{S}, v{S}, v{mt}
s_nop 0
v_permlane32_swap_b32 v{oo}, v{oo+2}
v_rcp_f32 v{S}, v{S}
v_add_f32 v{oo}, v{oo}, v{oo+2}
v_mul_f32 v{oo}, v{oo}, v{S}
v_cvt_pk_bf16_f32 v{oo}, v{oo}, v{oo}
ds_write_b16 v{vOLw}, v{oo} offset:{OL}
""")
    setflag(F_O)
    a(f"s_add_u32 s{sT2}, s{sFG}, 65536\ns_mov_b32 s{sCnt}, {spin}")
    waitflags(group=F_O)
    ob = B16 + 8; y = C32; yg = E8
    a(f"""
ds_read_b128 {rng(ob,4)}, v{vOLr} offset:{OL}
ds_read_b128 {rng(ob+4,4)}, v{vOLr} offset:{OL+64}
""")
    for s in range(2):
        a(f"s_waitcnt lgkmcnt({1-s})")
        for tp in range(2):
            c = "0" if s == 0 else rng(y+4*tp,4)
            a(f"v_mfma_f32_16x16x32_bf16 {rng(y+4*tp,4)}, {rng(wb+8*s+4*tp,4)}, {rng(ob+4*s,4)}, {c}")
    a(f"v_mov_b32 v{E8+3}, s{sTag}\nv_mov_b32 v{E8+7}, s{sTag}\ns_nop 4")
    for tp in range(2):
        a(f"""v_perm_b32 v{yg+4*tp}, v{y+4*tp}, v{y+4*tp+3}, s{sP0}
v_perm_b32 v{yg+4*tp+1}, v{y+4*tp+1}, v{y+4*tp+3}, s{sP1}
v_perm_b32 v{yg+4*tp+2}, v{y+4*tp+2}, v{y+4*tp+3}, s{sP2}
buffer_store_dwordx4 {rng(yg+4*tp,4)}, v{vYst}, s[28:31], s{sYst} offen offset:{tp*64} sc1""")
    setflag(F_YI)
    ST_("y published")
    waitflags(group=F_YI)
    for x_ in QFL + OFL: a(x_)
    z = C32 + 24
    fgs = [A32 + 8*d for d in range(fd)]
    fg = C32 + 16
    a(f"s_cmp_lg_u32 {W}, 0\ns_cbranch_scc1 L_fin")
    def fload(r):
        a(f"buffer_load_dwordx4 {rng(r,4)}, v{vFG}, s[28:31], s{sFG} offen sc1")
        a(f"buffer_load_dwordx4 {rng(r+4,4)}, v{vFG}, s[28:31], s{sT2} offen sc1")
    for d in range(fd - 1): fload(fgs[d])
    a("L_fpoll:")
    for d in range(fd):
        fload(fgs[(d + fd - 1) % fd])
        r = fgs[d]
        a(f"""s_waitcnt vmcnt({2*(fd-1)})
v_cmp_ne_u32 vcc, s{sTag}, v{r+3}
v_cmp_ne_u32 s[{sa_tmp}:{sa_tmp+1}], s{sTag}, v{r+7}
s_or_b64 vcc, vcc, s[{sa_tmp}:{sa_tmp+1}]
s_cbranch_vccz L_fok{d}""")
    a(f"s_sub_u32 s{sCnt}, s{sCnt}, 1\ns_cbranch_scc0 L_fpoll\ns_branch L_fok0")
    for d in range(fd - 1, -1, -1):
        a(f"L_fok{d}:")
        for q in range(8): a(f"v_mov_b32 v{fg+q}, v{fgs[d]+q}")
        if d: a("s_branch L_fok")
    a("L_fok:")
    ST_("final gathered")
    a(f"""
v_perm_b32 v{z+3}, v{fg}, v{fg+1}, s{sU0}
v_perm_b32 v{z+7}, v{fg+4}, v{fg+5}, s{sU0}
v_add_f32 v{z}, v{fg}, v{fg+4}
v_perm_b32 v{z+3}, v{z+3}, v{fg+2}, s{sU1}
v_perm_b32 v{z+7}, v{z+7}, v{fg+6}, s{sU1}
v_add_f32 v{z+1}, v{fg+1}, v{fg+5}
v_add_f32 v{z+2}, v{fg+2}, v{fg+6}
v_add_f32 v{z+3}, v{z+3}, v{z+7}
""")
    for ctl in ("quad_perm:[2,3,0,1]", "row_ror:4", "row_ror:8"):
        for r in range(4):
            a(f"v_add_f32_dpp v{z+r}, v{z+r}, v{z+r} {ctl} row_mask:0xf bank_mask:0xf")
    a(f"""
s_nop 0
v_permlane16_swap_b32 v{z}, v{z+1}
v_permlane16_swap_b32 v{z+2}, v{z+3}
s_nop 0
v_add_f32 v{z}, v{z}, v{z+1}
v_add_f32 v{z+2}, v{z+2}, v{z+3}
s_nop 1
v_permlane32_swap_b32 v{z}, v{z+2}
s_nop 0
v_add_f32 v{z}, v{z}, v{z+2}
v_cvt_pk_bf16_f32 v{z}, v{z}, v{z}
buffer_store_short v{z}, v{vOut}, s[32:35], 0 offen
s_cmp_lg_u32 s2, 0
s_cbranch_scc1 L_fin
v_mov_b32 v{t0}, s{sTag}
v_mov_b32 v{t1}, 0
s_mov_b64 exec, 1
buffer_store_dword v{t0}, v{t1}, s[28:31], 0 offen sc1
s_mov_b64 exec, -1
L_fin:
""")
    a("s_branch L_tail" if stamp else "s_endpgm")
    for name, c in cold:
        for x_ in c: a(x_)
    a("; WARM_END")
    for c in colder:
        for x_ in c: a(x_)
    a("L_tail:")
    if stamp:
        a(f"s_mov_b32 s31, 0x20000\ns_mov_b32 s30, {WS_BYTES}")
    if amp >= 0:
        ST_("end")
        e = nst[0] - 1
        a(f"""
s_waitcnt lgkmcnt(0)
s_cmp_lg_u32 s2, 0
s_cbranch_scc1 L_end
s_cmp_lg_u32 {W}, {0 if amp < 100 else 4}
s_cbranch_scc1 L_end
s_sub_u32 s37, s{SB+2*(amp%100)}, s{SB}
s_mul_i32 s37, s37, {ampk}
s_add_u32 s37, s37, s{SB+2*e}
L_amp:
s_memrealtime s[40:41]
s_waitcnt lgkmcnt(0)
s_cmp_lt_u32 s40, s37
s_cbranch_scc1 L_amp
""")
    elif stamp:
        ST_("end")
        n = nst[0]
        a(f"""
s_waitcnt lgkmcnt(0) vmcnt(0)
s_mul_i32 s4, s2, 8
s_add_u32 s4, s4, s3
s_lshl_b32 s4, s4, 6
s_add_u32 s4, s4, {ST}
v_mov_b32 v{t1}, 0
s_mov_b64 exec, 1
""")
        for i in range(n):
            a(f"v_mov_b32 v{t0}, s{SB+2*i}\nbuffer_store_dword v{t0}, v{t1}, s[28:31], s4 offen offset:{4*i}\ns_nop 0")
    a("L_end:\ns_endpgm")
    lines = a.L
    nh = 0
    if warm:
        lines, nh, have = hops.insert(lines, nparts)
        assert have == nparts, (have, nparts)
    body = "\n".join(lines) + "\n"
    assert sa.hi <= SB and ls.hi <= SB, (sa.hi, ls.hi)
    nv = max(va.hi, lv.hi)
    s = header([f"; @launch grid=(256,1,1) block=(320,1,1) lds={LDS_BYTES}"]) + kernel_begin(KNAME) + body + RODATA + descriptor(KNAME, nv, 102 if stamp else max(sa.hi, ls.hi))
    errs = haz.check(body)
    for e in errs: print("HAZ", e)
    return s, nv, sa.hi, nh, stn
if __name__ == "__main__":
    out = sys.argv[1]
    kw = {}
    for x in sys.argv[2:]:
        k, v = x.split("=")
        if k in ("stamp", "warm", "pt", "prio", "holdwo", "rot", "rotq"): kw[k] = (v == "1")
        elif k == "nt": kw[k] = (" " + v if v else "")
        else: kw[k] = int(v)
    s, nv, ns, nh, stn = gen(**kw)
    open(out, "w").write(s)
    print("vgprs", nv, "sgprs", ns, "hops", nh, "lds", LDS_BYTES, stn)
```

```python
import sys, struct
sys.path.insert(0, "my")
from ag import *
import haz, hops

QF = 0x10000
OF = 0x80000
OX = 0x100000
SOFF = 0x200000
ST = 0x400000
WS_BYTES = 268435456
QL = 0
PL = QL + 1280
SL = PL + 1024
OL = SL + 64
FL = 3136
JK = FL + 160
XL = 3840; WQ = XL + 1024; KL = WQ + 16384; VL = KL + 32768; WO = VL + 32768
LDS_BYTES = WO + 16384
assert OL + 768 <= FL and JK + 416 <= XL and XL % 256 == 0 and WQ % 256 == 0
F_Q, F_P, F_O, F_GI, F_QI, F_GOK, F_OI, F_YI, F_GO, F_K, F_V, F_W = 0, 16, 32, 48, 64, 80, 96, 112, 128, 132, 136, 140
CSC = 0.08838834764831845 * 1.4426950408889634
def f32(x): return "0x%08x" % struct.unpack("<I", struct.pack("<f", x))[0]
class V:
    def __init__(s, n=0): s.n = n; s.hi = n
    def __call__(s, cnt=1, align=1):
        s.n = (s.n + align - 1) // align * align
        r = s.n; s.n += cnt; s.hi = max(s.hi, s.n)
        return r
def rng(r, n): return f"v[{r}:{r+n-1}]"
OOB = "0x7ffffff0"

def gen(stamp=False, nt=" nt", hold=0, kx=32, nmid=32, lgo=60, holdwo=False, rot=True, rotq=True, fd=1, wthr=2000, N=24, spin=100000, nf=64, amp=-1, ampk=10, ampglob=0, warm=True, pt=True, nparts=4, prio=True, step=2):
    if amp >= 0: stamp = True
    a = A(); va = V(1); sa = V(36)
    l = va(); t0 = va(); t1 = va(); t2 = va(); t3 = va()
    nst = [0]; stn = []
    SB = 72
    def ST_(label):
        if stamp:
            i = nst[0]; nst[0] += 1; stn.append(label)
            assert i < 15
            a(f"s_memrealtime s[{SB+2*i}:{SB+1+2*i}]   ; stamp {i} {label}")
    W, G, R, B, C = "s3", "s4", "s5", "s6", "s7"
    sT = sa(); sT2 = sa(); sWin = sa()
    a(f"""
s_cmp_ge_u32 s2, 256
s_cbranch_scc1 L_end
s_load_dwordx2 s[20:21], s[0:1], 24
s_load_dwordx2 s[8:9], s[0:1], 0
s_load_dwordx2 s[12:13], s[0:1], 8
s_load_dwordx2 s[28:29], s[0:1], 56
s_load_dwordx2 s[16:17], s[0:1], 16
s_load_dwordx2 s[24:25], s[0:1], 32
s_load_dwordx2 s[32:33], s[0:1], 40
""")
    ST_("entry")
    a(f"""
v_lshrrev_b32 v{t0}, 6, v0
v_and_b32 v{l}, 63, v0
s_and_b32 {G}, s2, 7
v_readfirstlane_b32 {W}, v{t0}
s_lshr_b32 {R}, s2, 3
s_lshr_b32 {B}, {R}, 3
s_and_b32 {C}, {R}, 7
s_mov_b32 s23, 0x20000
v_lshrrev_b32 v{t0}, 4, v{l}
v_and_b32 v{t1}, 15, v{l}
s_cmp_lt_u32 {W}, 4
s_cbranch_scc1 L_compute
""")
    lv = V(va.n); ls = V(sa.n)
    vWQ = lv(2); vX = lv(); vK = lv(4); vV = lv(2); vWO = lv(2); vLF = lv(); vOne = lv()
    sWQ = ls(); sX = ls(); sK = ls(); sWO = ls(); lT = ls(); sWQb0 = ls()
    if prio: a("s_setprio 2")
    a(f"""
s_mov_b32 s22, 0x400000
v_and_b32 v{t2}, 7, v{l}
v_lshlrev_b32 v{t3}, 1, v{t0}
v_and_b32 v{vX}, 2, v{t3}
v_xor_b32 v{t2}, v{t2}, v{vX}
v_lshlrev_b32 v{t2}, 4, v{t2}
v_lshrrev_b32 v{vX}, 3, v{l}
v_lshl_add_u32 v{vWQ}, v{vX}, 13, v{t2}
v_xor_b32 v{vWQ+1}, 64, v{vWQ}
s_lshl_b32 s{sWQb0}, {G}, 3
s_add_u32 s{sWQb0}, s{sWQb0}, {C}
s_lshl_b32 s{sWQb0}, s{sWQb0}, 7
s_lshl_b32 s{lT}, {B}, 20
s_add_u32 s{sWQb0}, s{sWQb0}, s{lT}
s_mov_b32 s11, s23
s_movk_i32 s10, 0x1000
s_mov_b32 s15, s23
s_mov_b32 s14, 0x2000000
; x voffset: (l>>4)*1024 + ((l&15) ^ (4*(l>>4)))*16
v_lshlrev_b32 v{t2}, 2, v{t0}
v_xor_b32 v{t2}, v{t1}, v{t2}
v_lshlrev_b32 v{t2}, 4, v{t2}
v_lshl_add_u32 v{vX}, v{t0}, 10, v{t2}
s_lshl_b32 s{sX}, {B}, 8
s_waitcnt lgkmcnt(0)
""")
    seq = []
    sRho = ls(); sJ = ls(); sWQb = sWQb0
    for i in range(16):
        pre = []
        if i % 4 == 0:
            j_ = i // 4
            if rotq:
                pre += [f"s_add_u32 s{sJ}, {B}, {j_}", f"s_and_b32 s{sJ}, s{sJ}, 3", f"s_lshl_b32 s{lT}, s{sJ}, 18", f"s_add_u32 s{sWQ}, s{sWQb}, s{lT}",
                        f"s_lshl_b32 s{lT}, s{sJ}, 12", f"s_add_u32 m0, s{lT}, {WQ}"]
            else:
                pre += [f"s_add_u32 s{sWQ}, s{sWQb}, {j_ << 18}", f"s_mov_b32 m0, {WQ + j_*4096}"]
            pre.append("s_nop 0")
        else:
            pre.append(f"s_add_u32 s{sWQ}, s{sWQ}, {65536 - 1024}")
        seq.append((pre, f"buffer_load_dwordx4 v{vWQ + (i & 1)}, s[20:23], s{sWQ} offen offset:{(i%4)*1024}{nt} lds"))
    seq.append(([f"s_movk_i32 m0, {XL}", "s_nop 0"], f"buffer_load_dwordx4 v{vX}, s[8:11], s{sX} offen lds"))
    kpre = f"""; K voffsets: (l>>4)*256 + ((l&15)^(l>>4))*16  ^ (64*i)
v_xor_b32 v{t2}, v{t1}, v{t0}
v_lshlrev_b32 v{t2}, 4, v{t2}
v_lshl_add_u32 v{vK}, v{t0}, 8, v{t2}
v_xor_b32 v{vK+1}, 64, v{vK}
v_xor_b32 v{vK+2}, 0x80, v{vK}
v_xor_b32 v{vK+3}, 0xc0, v{vK}
; flag address vgpr: lane0 -> FL, else JK + 4*l
v_lshlrev_b32 v{t2}, 2, v{l}
v_add_u32 v{t2}, {JK}, v{t2}
v_cmp_eq_u32 vcc, 0, v{l}
v_mov_b32 v{vLF}, {FL}
v_mov_b32 v{vOne}, 1
v_cndmask_b32 v{vLF}, v{t2}, v{vLF}, vcc
; window base = (b*8+g)<<20 + 3072*256 + c*32768
s_lshl_b32 s{sWin}, {B}, 3
s_add_u32 s{sWin}, s{sWin}, {G}
s_lshl_b32 s{sWin}, s{sWin}, 5
s_add_u32 s{sWin}, s{sWin}, {C}
s_add_u32 s{sWin}, s{sWin}, 24
s_lshl_b32 s{sWin}, s{sWin}, 15
; rho*4096 : rho = (g + 2b) & 7
s_lshl_b32 s{sRho}, {B}, 1
s_add_u32 s{sRho}, s{sRho}, {G}
s_and_b32 s{sRho}, s{sRho}, {7 if rot else 0}
s_lshl_b32 s{sRho}, s{sRho}, 12""".split("\n")
    def grp(j_, ldsbase):
        return [f"s_add_u32 s{sJ}, s{sRho}, {j_*4096}", f"s_and_b32 s{sJ}, s{sJ}, 0x7fff", f"s_add_u32 m0, s{sJ}, {ldsbase}", f"s_add_u32 s{sK}, s{sWin}, s{sJ}"]
    for i in range(32):
        pre = list(kpre) if i == 0 else []
        if i % 4 == 0: pre += grp(i // 4, KL)
        seq.append((pre, f"buffer_load_dwordx4 v{vK+i%4}, s[12:15], s{sK} offen offset:{(i%4)*1024}{nt} lds"))
    vpre = f"""s_mov_b32 s19, s23
s_mov_b32 s18, s14
; V voffset: (l>>4)*256 + ((l&15) ^ ((l>>4)<<1))*16 ; odd: ^128 ; WO: (l>>4)*1024 + same piece
v_xor_b32 v{t2}, v{t1}, v{t3}
v_lshlrev_b32 v{t2}, 4, v{t2}
v_lshl_add_u32 v{vV}, v{t0}, 8, v{t2}
v_xor_b32 v{vV+1}, 0x80, v{vV}
v_lshl_add_u32 v{vWO}, v{t0}, 10, v{t2}
v_xor_b32 v{vWO+1}, 0x80, v{vWO}
s_mov_b32 s27, s23
s_mov_b32 s26, s22
; WO soff = p<<16 + cg*256 ; p = g*8 + r/4 ; cg = r&3
s_lshr_b32 s{lT}, {R}, 2
s_lshl_b32 s{sWO}, {G}, 3
s_add_u32 s{sWO}, s{sWO}, s{lT}
s_lshl_b32 s{sWO}, s{sWO}, 8
s_and_b32 s{lT}, {R}, 3
s_add_u32 s{sWO}, s{sWO}, s{lT}
s_lshl_b32 s{sWO}, s{sWO}, 8""".split("\n")
    for i in range(32):
        pre = list(vpre) if i == 0 else []
        if i % 4 == 0: pre += grp(i // 4, VL)
        seq.append((pre, f"buffer_load_dwordx4 v{vV+(i&1)}, s[16:19], s{sK} offen offset:{(i%4)*1024}{nt} lds"))
    for i in range(16):
        pre = []
        if i == 0: pre += [f"s_mov_b32 m0, {WO}", "s_nop 0"]
        elif i % 4 == 0: pre.append("s_add_u32 m0, m0, 4096")
        if i: pre.append(f"s_add_u32 s{sWO}, s{sWO}, {4096 - 1024 if i % 4 else 4096 + 3072}")
        seq.append((pre, f"buffer_load_dwordx4 v{vWO+((i>>1)&1)}, s[24:27], s{sWO} offen offset:{(i%4)*1024}{nt} lds"))
    T = len(seq); assert T == 97
    def emit(k):
        pre, ld = seq[k]
        for p in pre: a(p)
        a(ld)
    for k in range(17): emit(k)
    ST_("L: wq issued")
    pre17, ld17 = seq[17]
    for p in pre17: a(p)
    if hold: a(f"s_waitcnt vmcnt({17 - hold})")
    a(ld17)
    n0 = 17 + kx
    for k in range(18, n0): emit(k)
    lfl = lv(4, 4)
    a(f"v_mov_b32 v{t2}, {FL}")
    a(f"s_waitcnt vmcnt({n0 - 17})\ns_barrier")
    ST_("L: wq landed")
    def lwait(name, off):
        a(f"""L_{name}:
ds_read_b128 v[{lfl}:{lfl+3}], v{t2} offset:{off}
s_waitcnt lgkmcnt(0)
v_and_b32 v{lfl}, v{lfl}, v{lfl+1}
v_and_b32 v{lfl+2}, v{lfl+2}, v{lfl+3}
v_and_b32 v{lfl}, v{lfl}, v{lfl+2}
v_cmp_eq_u32 vcc, 0, v{lfl}
s_cbranch_vccnz L_{name}""")
    vFA = lv()
    a(f"v_mov_b32 v{vFA}, {FL}")
    def lwait(name, off):
        a(f"""L_{name}:
ds_read_b128 v[{lfl}:{lfl+3}], v{vFA} offset:{off}
s_waitcnt lgkmcnt(0)
v_and_b32 v{lfl}, v{lfl}, v{lfl+1}
v_and_b32 v{lfl+2}, v{lfl+2}, v{lfl+3}
v_and_b32 v{lfl}, v{lfl}, v{lfl+2}
v_cmp_eq_u32 vcc, 0, v{lfl}
s_cbranch_vccnz L_{name}""")
    lwait("qi", F_QI)
    n1 = 49 + nmid
    for k in range(n0, n1): emit(k)
    assert lgo >= 49 and lgo <= n1
    a(f"s_waitcnt vmcnt({n1 - lgo})")
    a(f"ds_write_b32 v{vLF}, v{vOne} offset:{F_GO}")
    a(f"ds_write_b32 v{vLF}, v{vOne} offset:{F_K}")
    lwait("gi", F_GI)
    for k in range(n1, 81): emit(k)
    if holdwo: lwait("gok", F_GOK)
    for k in range(81, T): emit(k)
    for cnt, f in ((81, F_V), (97, F_W)):
        a(f"s_waitcnt vmcnt({T - cnt})\nds_write_b32 v{vLF}, v{vOne} offset:{f}")
    ST_("L: all landed")
    if stamp: a("s_branch L_fin")
    else: a("s_endpgm")
    a("L_compute:")
    g = va(); n16 = va(); n4 = va()
    sQB = sa(); sOB = sa(); sEp = sa(); sTag = sa(); vPT = va()
    a(f"""
s_mov_b32 s31, s23
s_mov_b32 s30, {WS_BYTES}
s_mov_b32 s35, s23
s_movk_i32 s34, 0x1000
s_lshl_b32 s{sQB}, {G}, 4
s_add_u32 s{sQB}, s{sQB}, {B}
s_lshl_b32 s{sQB}, s{sQB}, 11
s_lshl_b32 s{sT}, {C}, 8
s_add_u32 s{sQB}, s{sQB}, s{sT}
s_add_u32 s{sQB}, s{sQB}, {QF}
s_lshl_b32 s{sOB}, {B}, 3
s_add_u32 s{sOB}, s{sOB}, {G}
s_lshl_b32 s{sOB}, s{sOB}, 5
s_add_u32 s{sOB}, s{sOB}, {C}
s_lshl_b32 s{sOB}, s{sOB}, 9
s_add_u32 s{sOB}, s{sOB}, {OF}
""")
    if pt:
        a(f"""
s_mul_i32 s{sT}, {W}, 6
v_add_u32 v{t3}, s{sT}, v{l}
v_lshrrev_b32 v{t0}, 1, v{t3}
v_lshlrev_b32 v{t0}, 13, v{t0}
v_and_b32 v{t1}, 1, v{t3}
v_lshl_or_b32 v{t0}, v{t1}, 7, v{t0}
v_add_u32 v{t0}, s{sQB}, v{t0}
v_subrev_u32 v{t1}, 8, v{t3}
v_lshrrev_b32 v{t2}, 2, v{t1}
v_lshlrev_b32 v{t2}, 12, v{t2}
v_and_b32 v{t1}, 3, v{t1}
v_lshl_or_b32 v{t2}, v{t1}, 7, v{t2}
v_add_u32 v{t2}, s{sOB}, v{t2}
v_cmp_gt_u32 vcc, 8, v{t3}
v_mov_b32 v{t3}, {OOB}
s_nop 0
v_cndmask_b32 v{t0}, v{t2}, v{t0}, vcc
v_cmp_gt_u32 vcc, 6, v{l}
s_waitcnt lgkmcnt(0)
s_load_dword s{sEp}, s[28:29], 0
v_cndmask_b32 v{t0}, v{t3}, v{t0}, vcc
buffer_load_dword v{vPT}, v{t0}, s[28:31], 0 offen
""")
    else:
        a(f"s_waitcnt lgkmcnt(0)\ns_load_dword s{sEp}, s[28:29], 0")
    if warm:
        a("s_mov_b64 exec, 0")
        for p in range(1, nparts):
            a(f"s_cmp_eq_u32 {W}, {p}\ns_cbranch_scc1 HOP_P{p}")
        a("s_branch HOP_P0\nL_warm_done:\ns_mov_b64 exec, -1")
    a("; WARM_START")
    sP = sa(); sCG = sa(); sR4 = sa()
    vXr = va(4); vWQr = va(); vKr = va(4); vVr = va(2); vWOr = va(2)
    vQst = va(); vG = va(); sG = sa(); vQLw = va(); vQLr = va()
    vPw = va(); vPr = va(); vSw = va(); vSr = va()
    vOst = va(); vOG = va(); sOG = sa(); vOLw = va(); vOLr = va()
    vYst = va(); sYst = sa(); vFG = va(); sFG = sa(); vOut = va()
    vFw = va(); vFr = va(); vOne_c = va()
    sCsc = sa(); sP0 = sa(); sP1 = sa(); sP2 = sa(); sU0 = sa(); sU1 = sa(); sM4 = sa(2, 2); sCnt = sa()
    a(f"""
v_lshrrev_b32 v{g}, 4, v{l}
v_and_b32 v{n16}, 15, v{l}
v_and_b32 v{n4}, 3, v{l}
v_lshlrev_b32 v{t2}, 2, v{l}
v_mov_b32 v{t3}, 0
ds_write_b32 v{t2}, v{t3} offset:{FL}
v_add_u32 v{t2}, {JK}, v{t2}
s_lshl_b32 s{sT}, {W}, 2
s_add_u32 s{sT}, s{sT}, {FL}
v_mov_b32 v{vFw}, s{sT}
v_cmp_eq_u32 vcc, 0, v{l}
v_mov_b32 v{vFr}, {FL}
v_mov_b32 v{vOne_c}, 1
v_cndmask_b32 v{vFw}, v{t2}, v{vFw}, vcc
; p = g*8 + r/4 ; cg = r&3
s_lshr_b32 s{sR4}, {R}, 2
s_lshl_b32 s{sP}, {G}, 3
s_add_u32 s{sP}, s{sP}, s{sR4}
s_and_b32 s{sCG}, {R}, 3
v_lshlrev_b32 v{t2}, 2, v{n4}
v_xor_b32 v{t2}, v{g}, v{t2}
v_lshlrev_b32 v{t2}, 4, v{t2}
v_lshl_add_u32 v{t2}, v{n4}, 8, v{t2}
v_add_u32 v{vXr}, {XL}, v{t2}
v_xor_b32 v{vXr+1}, 64, v{vXr}
v_xor_b32 v{vXr+2}, 0x80, v{vXr}
v_xor_b32 v{vXr+3}, 0xc0, v{vXr}
v_bfe_u32 v{t0}, v{l}, 2, 2
v_lshl_add_u32 v{t2}, v{g}, 3, v{t0}
v_lshlrev_b32 v{t2}, 7, v{t2}
v_lshl_add_u32 v{t2}, v{n4}, 3, v{t2}
v_lshrrev_b32 v{t3}, 1, v{t0}
v_and_b32 v{t1}, 1, v{g}
v_lshl_or_b32 v{t3}, v{t1}, 1, v{t3}
v_xor_b32 v{t3}, {W}, v{t3}
v_lshl_add_u32 v{t2}, v{t3}, 5, v{t2}
v_add_u32 v{vWQr}, {WQ}, v{t2}
s_lshl_b32 s{sT}, {W}, 13
s_add_u32 s{sT}, s{sT}, {KL}
v_xor_b32 v{t2}, v{g}, v{n16}
v_lshlrev_b32 v{t2}, 4, v{t2}
v_lshl_add_u32 v{t2}, v{n16}, 8, v{t2}
v_add_u32 v{vKr}, s{sT}, v{t2}
v_xor_b32 v{vKr+1}, 64, v{vKr}
v_xor_b32 v{vKr+2}, 0x80, v{vKr}
v_xor_b32 v{vKr+3}, 0xc0, v{vKr}
v_lshl_add_u32 v{t2}, v{g}, 2, v{t0}
v_lshlrev_b32 v{t2}, 8, v{t2}
v_lshl_add_u32 v{t2}, v{n4}, 3, v{t2}
v_lshl_or_b32 v{t3}, v{t1}, 2, v{t0}
s_lshl_b32 s{sT}, {W}, 1
v_xor_b32 v{t3}, s{sT}, v{t3}
v_lshl_add_u32 v{t2}, v{t3}, 5, v{t2}
v_add_u32 v{vVr}, {VL}, v{t2}
v_xor_b32 v{vVr+1}, 32, v{vVr}
v_lshl_add_u32 v{t2}, v{g}, 3, v{t0}
v_lshlrev_b32 v{t2}, 8, v{t2}
v_lshl_add_u32 v{t2}, v{n4}, 3, v{t2}
v_lshl_add_u32 v{t2}, v{t3}, 5, v{t2}
v_add_u32 v{vWOr}, {WO}, v{t2}
v_xor_b32 v{vWOr+1}, 32, v{vWOr}
v_cmp_gt_u32 vcc, 4, v{n16}
v_mov_b32 v{t3}, {OOB}
s_lshl_b32 s{sT}, {W}, 6
v_lshlrev_b32 v{t2}, 4, v{g}
v_add_u32 v{t0}, s{sT}, v{t2}
v_lshl_add_u32 v{t0}, v{n16}, 13, v{t0}
v_cndmask_b32 v{vQst}, v{t3}, v{t0}, vcc
s_lshl_b32 s{sT}, {W}, 7
v_add_u32 v{t2}, s{sT}, v{t2}
v_lshl_add_u32 v{t0}, v{n16}, 12, v{t2}
v_cndmask_b32 v{vOst}, v{t3}, v{t0}, vcc
v_lshl_add_u32 v{t0}, v{n16}, 9, v{t2}
v_cndmask_b32 v{vYst}, v{t3}, v{t0}, vcc
v_lshrrev_b32 v{t0}, 5, v{l}
v_and_b32 v{t1}, 31, v{l}
v_lshlrev_b32 v{t2}, 4, v{t1}
v_lshl_add_u32 v{vG}, v{t0}, 12, v{t2}
s_lshl_b32 s{sG}, {G}, 2
s_add_u32 s{sG}, s{sG}, {B}
s_lshl_b32 s{sG}, s{sG}, 4
s_add_u32 s{sG}, s{sG}, {W}
s_lshl_b32 s{sG}, s{sG}, 9
s_add_u32 s{sG}, s{sG}, {QF}
s_mul_i32 s{sT}, {W}, 320
v_lshlrev_b32 v{t2}, 3, v{t1}
v_lshl_add_u32 v{t2}, v{t0}, 2, v{t2}
v_add_u32 v{vQLw}, s{sT}, v{t2}
v_mul_u32_u24 v{t2}, 320, v{n4}
v_lshl_add_u32 v{vQLr}, v{g}, 4, v{t2}
v_lshlrev_b32 v{t2}, 6, v{n4}
v_lshl_add_u32 v{vPr}, v{g}, 4, v{t2}
s_lshl_b32 s{sT}, {W}, 8
v_add_u32 v{vPw}, s{sT}, v{vPr}
v_lshlrev_b32 v{vSr}, 4, v{n4}
s_lshl_b32 s{sT}, {W}, 2
v_add_u32 v{vSw}, s{sT}, v{vSr}
v_lshlrev_b32 v{t2}, 9, v{g}
v_lshl_add_u32 v{vOG}, v{n16}, 4, v{t2}
s_lshl_b32 s{sOG}, {W}, 3
s_add_u32 s{sOG}, s{sOG}, {G}
s_lshl_b32 s{sOG}, s{sOG}, 2
s_add_u32 s{sOG}, s{sOG}, {B}
s_lshl_b32 s{sOG}, s{sOG}, 4
s_and_b32 s{sT}, s{sR4}, 1
s_add_u32 s{sOG}, s{sOG}, s{sT}
s_lshl_b32 s{sOG}, s{sOG}, 8
s_add_u32 s{sOG}, s{sOG}, {OF}
s_mul_i32 s{sT}, {W}, 192
v_lshlrev_b32 v{t2}, 3, v{n16}
v_lshl_add_u32 v{t2}, v{g}, 1, v{t2}
v_add_u32 v{vOLw}, s{sT}, v{t2}
v_mul_u32_u24 v{t2}, 192, v{n4}
v_lshl_add_u32 v{vOLr}, v{g}, 4, v{t2}
s_lshl_b32 s{sYst}, s{sCG}, 6
s_add_u32 s{sYst}, s{sYst}, s{sP}
s_lshl_b32 s{sYst}, s{sYst}, 11
s_add_u32 s{sYst}, s{sYst}, {OX + SOFF}
v_lshrrev_b32 v{t0}, 1, v{l}
v_and_b32 v{t1}, 1, v{l}
v_lshlrev_b32 v{t2}, 4, v{t1}
v_lshl_add_u32 v{vFG}, v{t0}, 11, v{t2}
s_lshl_b32 s{sFG}, s{sCG}, 12
s_add_u32 s{sFG}, s{sFG}, s{sP}
s_lshl_b32 s{sFG}, s{sFG}, 5
s_add_u32 s{sFG}, s{sFG}, {OX + SOFF}
s_lshr_b32 s{sT}, s{sP}, 4
s_lshl_b32 s{sT}, s{sT}, 2
s_add_u32 s{sT}, s{sT}, s{sCG}
s_lshl_b32 s{sT}, s{sT}, 4
s_and_b32 s{sT2}, s{sP}, 15
s_add_u32 s{sT}, s{sT}, s{sT2}
s_lshl_b32 s{sT}, s{sT}, 4
v_lshlrev_b32 v{t2}, 3, v{t1}
v_lshl_add_u32 v{t2}, v{g}, 1, v{t2}
v_add_u32 v{t2}, s{sT}, v{t2}
v_cmp_gt_u32 vcc, 2, v{n16}
s_mov_b32 s{sCsc}, {f32(CSC)}
s_mov_b32 s{sP0}, 0x07060503
v_cndmask_b32 v{vOut}, v{t3}, v{t2}, vcc
s_mov_b32 s{sP1}, 0x07060502
s_mov_b32 s{sP2}, 0x07060501
s_mov_b32 s{sU0}, 0x04000c0c
s_mov_b32 s{sU1}, 0x0706000c
s_mov_b32 s{sM4}, 0x000f000f
s_mov_b32 s{sM4+1}, 0x000f000f
s_waitcnt lgkmcnt(0)
s_mul_i32 s{sTag}, s{sEp}, 1664525
s_add_u32 s{sTag}, s{sTag}, 1013904223
""")
    A32 = va(32, 4); B16 = va(16, 4); C32 = va(32, 4); E8 = va(8, 4); F8 = va(8, 4)
    ones = va(4, 4); fl = va(4, 4); fl1 = va(); QS4 = va(4, 4); OS8 = va(8, 4); sQS = sa(); sOS = sa(); sWcN = sa.n
    a(f"""
v_mov_b32 v{ones}, 0x3f803f80
v_mov_b32 v{ones+1}, 0x3f803f80
v_mov_b32 v{ones+2}, 0x3f803f80
v_mov_b32 v{ones+3}, 0x3f803f80
v_mov_b32 v{QS4+3}, s{sTag}
v_mov_b32 v{OS8+3}, s{sTag}
v_mov_b32 v{OS8+7}, s{sTag}
v_mov_b32 v{E8+3}, s{sTag}
v_mov_b32 v{E8+7}, s{sTag}
s_add_u32 s{sQS}, s{sQB}, {SOFF}
s_add_u32 s{sOS}, s{sOB}, {SOFF}
s_mov_b32 s{sCnt}, {spin}
s_movk_i32 s{sWcN}, {wthr}
""")
    ST_("addr done")
    lab = [0]
    def setflag(off): a(f"ds_write_b32 v{vFw}, v{vOne_c} offset:{off}")
    colder = []
    sWc = sa()
    stage = {"flush": []}
    def waitflags(group=None, single=None):
        lab[0] += 1; L = f"L_wf{lab[0]}"
        a(f"{L}:")
        if group is not None: a(f"ds_read_b128 {rng(fl,4)}, v{vFr} offset:{group}")
        if single is not None: a(f"ds_read_b32 v{fl1}, v{vFr} offset:{single}")
        a("s_sub_u32 s%d, s%d, 1" % (sWc, sWc))
        a(f"s_cbranch_scc1 {L}f")
        a("s_waitcnt lgkmcnt(0)")
        if group is not None:
            a(f"v_and_b32 v{fl}, v{fl}, v{fl+1}\nv_and_b32 v{fl+2}, v{fl+2}, v{fl+3}")
            if single is not None: a(f"v_and_b32 v{fl}, v{fl}, v{fl1}")
            a(f"v_and_b32 v{fl}, v{fl}, v{fl+2}")
            r = fl
        else: r = fl1
        a(f"v_cmp_eq_u32 vcc, 0, v{r}\ns_cbranch_vccnz {L}")
        colder.append([f"{L}f:"] + list(stage["flush"]) + [f"s_movk_i32 s{sWc}, {wthr}", "s_waitcnt lgkmcnt(0)", f"s_branch {L}"])
    QFL = [f"buffer_store_dwordx4 {rng(QS4,4)}, v{vQst}, s[28:31], s{sQS} offen sc1"]
    OFL = [f"buffer_store_dwordx4 {rng(OS8,4)}, v{vOst}, s[28:31], s{sOS} offen sc1", f"buffer_store_dwordx4 {rng(OS8+4,4)}, v{vOst}, s[28:31], s{sOS} offen offset:64 sc1"]
    assert sWc == sWcN
    xb = A32; wa = A32 + 16; acc = C32
    a("s_waitcnt lgkmcnt(0)\ns_barrier")
    for s in range(4):
        a(f"ds_read_b128 {rng(xb+4*s,4)}, v{vXr+s}")
        a(f"ds_read_b64_tr_b16 {rng(wa+4*s,2)}, v{vWQr} offset:{s*4096}")
        a(f"ds_read_b64_tr_b16 {rng(wa+4*s+2,2)}, v{vWQr} offset:{s*4096 + 512}")
    for s in range(4):
        a(f"s_waitcnt lgkmcnt({3*(3-s)})")
        c = "0" if s == 0 else rng(acc,4)
        a(f"v_mfma_f32_16x16x32_bf16 {rng(acc,4)}, {rng(wa+4*s,4)}, {rng(xb+4*s,4)}, {c}")
    a(f"""
s_nop 7
v_perm_b32 v{QS4}, v{acc}, v{acc+3}, s{sP0}
v_perm_b32 v{QS4+1}, v{acc+1}, v{acc+3}, s{sP1}
v_perm_b32 v{QS4+2}, v{acc+2}, v{acc+3}, s{sP2}
buffer_store_dwordx4 {rng(QS4,4)}, v{vQst}, s[28:31], s{sQB} offen
""")
    setflag(F_QI)
    stage["flush"] = QFL
    ST_("q published")
    gq = F8
    waitflags(single=F_GO)
    ST_("GO")
    a(f"buffer_load_dwordx4 {rng(gq,4)}, v{vG}, s[28:31], s{sG} offen sc1")
    a(f"buffer_load_dwordx4 {rng(gq+4,4)}, v{vG}, s[28:31], s{sG} offen offset:2048 sc1")
    setflag(F_GI)
    sa_tmp = sa(2, 2)
    cold = []
    def poll(name, regs, vaddr, soff, first_wait, offs, flush):
        a(f"s_waitcnt vmcnt({first_wait})\nL_{name}chk:")
        for i, r in enumerate(regs):
            if i == 0: a(f"v_cmp_ne_u32 vcc, s{sTag}, v{r+3}")
            else: a(f"v_cmp_ne_u32 s[{sa_tmp}:{sa_tmp+1}], s{sTag}, v{r+3}\ns_or_b64 vcc, vcc, s[{sa_tmp}:{sa_tmp+1}]")
        a(f"s_cbranch_vccnz L_{name}retry\nL_{name}ok:")
        c = [f"L_{name}retry:", f"s_sub_u32 s{sCnt}, s{sCnt}, 1", f"s_cbranch_scc1 L_{name}ok",
             f"s_cmp_gt_u32 s{sCnt}, {spin - nf}", f"s_cbranch_scc1 L_{name}re",
             f"s_cmp_lg_u32 s{sCnt}, {spin - nf}", f"s_cbranch_scc1 L_{name}tg"] + flush + [f"L_{name}tg:", f"s_xor_b32 s{soff}, s{soff}, {SOFF}", f"L_{name}re:"]
        for r, o in zip(regs, offs):
            c.append(f"buffer_load_dwordx4 {rng(r,4)}, v{vaddr}, s[28:31], s{soff} offen offset:{o} sc1")
        c += ["s_waitcnt vmcnt(0)", f"s_branch L_{name}chk"]
        cold.append((name, c))
    poll("q", [gq, gq+4], vG, sG, 0, [0, 2048], QFL)
    setflag(F_GOK)
    ST_("q gathered")
    u = E8; qb = B16; ka = A32
    a(f"""
v_perm_b32 v{u}, v{gq}, v{gq+1}, s{sU0}
v_perm_b32 v{u+1}, v{gq+4}, v{gq+5}, s{sU0}
v_add_f32 v{u+4}, v{gq}, v{gq+4}
v_perm_b32 v{u}, v{u}, v{gq+2}, s{sU1}
v_perm_b32 v{u+1}, v{u+1}, v{gq+6}, s{sU1}
v_add_f32 v{u+5}, v{gq+1}, v{gq+5}
v_add_f32 v{u+6}, v{gq+2}, v{gq+6}
v_add_f32 v{u+7}, v{u}, v{u+1}
s_nop 0
v_permlane32_swap_b32 v{u+4}, v{u+6}
v_permlane32_swap_b32 v{u+5}, v{u+7}
s_nop 0
v_add_f32 v{u+4}, v{u+4}, v{u+6}
v_add_f32 v{u+5}, v{u+5}, v{u+7}
v_cvt_pk_bf16_f32 v{u}, v{u+4}, v{u+5}
ds_write_b32 v{vQLw}, v{u} offset:{QL}
""")
    setflag(F_Q)
    waitflags(group=F_Q, single=F_K)
    for s in range(4):
        a(f"ds_read_b128 {rng(qb+4*s,4)}, v{vQLr} offset:{QL + s*64}")
        for t in range(2):
            a(f"ds_read_b128 {rng(ka+16*t+4*s,4)}, v{vKr+s} offset:{t*4096}")
    sc = C32
    for s in range(4):
        a(f"s_waitcnt lgkmcnt({3*(3-s)})")
        for t in range(2):
            c = "0" if s == 0 else rng(sc+4*t,4)
            a(f"v_mfma_f32_16x16x32_bf16 {rng(sc+4*t,4)}, {rng(ka+16*t+4*s,4)}, {rng(qb+4*s,4)}, {c}")
    m = va(); mt = va(); pk = E8
    a(f"""
s_nop 6
v_max3_f32 v{m}, v{sc}, v{sc+1}, v{sc+2}
v_max3_f32 v{mt}, v{sc+3}, v{sc+4}, v{sc+5}
v_max3_f32 v{m}, v{m}, v{sc+6}, v{sc+7}
v_max_f32 v{m}, v{m}, v{mt}
v_mov_b32 v{mt}, v{m}
s_nop 1
v_permlane16_swap_b32 v{m}, v{mt}
s_nop 0
v_max_f32 v{m}, v{m}, v{mt}
v_mov_b32 v{mt}, v{m}
s_nop 1
v_permlane32_swap_b32 v{m}, v{mt}
s_nop 0
v_max_f32 v{m}, v{m}, v{mt}
v_mul_f32 v{m}, s{sCsc}, v{m}
""")
    for i in range(8):
        a(f"v_fma_f32 v{sc+i}, v{sc+i}, s{sCsc}, -v{m}")
    for i in range(8):
        a(f"v_exp_f32 v{sc+i}, v{sc+i}")
    a(f"""
s_mov_b64 exec, s[{sM4}:{sM4+1}]
ds_write_b32 v{vSw}, v{m} offset:{SL}
v_cvt_pk_bf16_f32 v{pk}, v{sc}, v{sc+1}
v_cvt_pk_bf16_f32 v{pk+1}, v{sc+2}, v{sc+3}
v_cvt_pk_bf16_f32 v{pk+2}, v{sc+4}, v{sc+5}
v_cvt_pk_bf16_f32 v{pk+3}, v{sc+6}, v{sc+7}
ds_write_b128 v{vPw}, {rng(pk,4)} offset:{PL}
s_mov_b64 exec, -1
""")
    setflag(F_P)
    waitflags(group=F_P)
    ST_("P written")
    pb = B16; sv = F8; vaop = A32; D = C32
    lk = va(16, 4)
    a(f"ds_read_b128 {rng(sv,4)}, v{vSr} offset:{SL}")
    for ks in range(4):
        a(f"ds_read_b128 {rng(pb+4*ks,4)}, v{vPr} offset:{PL + ks*256}")
    M = va(); ff = va(4, 2); L = va(); Rr = va(); lse = va()
    a(f"""
s_waitcnt lgkmcnt(4)
v_max3_f32 v{M}, v{sv}, v{sv+1}, v{sv+2}
v_max_f32 v{M}, v{M}, v{sv+3}
v_sub_f32 v{ff}, v{sv}, v{M}
v_sub_f32 v{ff+1}, v{sv+1}, v{M}
v_sub_f32 v{ff+2}, v{sv+2}, v{M}
v_sub_f32 v{ff+3}, v{sv+3}, v{M}
""")
    for ks in range(4):
        a(f"s_waitcnt lgkmcnt({3-ks})")
        a(f"v_mfma_f32_16x16x32_bf16 {rng(lk+4*ks,4)}, {rng(ones,4)}, {rng(pb+4*ks,4)}, 0")
        a(f"v_exp_f32 v{ff+ks}, v{ff+ks}")
    a(f"""
s_nop 4
v_mul_f32 v{L}, v{ff}, v{lk}
v_fmac_f32 v{L}, v{ff+1}, v{lk+4}
v_fmac_f32 v{L}, v{ff+2}, v{lk+8}
s_nop 0
v_fmac_f32 v{L}, v{ff+3}, v{lk+12}
v_rcp_f32 v{Rr}, v{L}
v_log_f32 v{lse}, v{L}
s_nop 0
v_mul_f32 v{ff}, v{ff}, v{Rr}
v_mul_f32 v{ff+1}, v{ff+1}, v{Rr}
v_mul_f32 v{ff+2}, v{ff+2}, v{Rr}
v_mul_f32 v{ff+3}, v{ff+3}, v{Rr}
v_add_f32 v{OS8+2}, v{lse}, v{M}
v_add_f32 v{OS8+6}, v{lse}, v{M}
s_mov_b32 s{sCnt}, {spin}
""")
    waitflags(single=F_V)
    ST_("V landed")
    def vread(ks):
        for tp in range(2):
            for e in range(2):
                a(f"ds_read_b64_tr_b16 {rng(vaop+8*ks+4*tp+2*e,2)}, v{vVr+tp} offset:{ks*8192 + e*4096}")
    def pv(ks):
        for tp in range(2):
            a(f"v_mfma_f32_16x16x32_bf16 {rng(D+8*ks+4*tp,4)}, {rng(vaop+8*ks+4*tp,4)}, {rng(pb+4*ks,4)}, 0")
    vread(0); vread(1); vread(2)
    a("s_waitcnt lgkmcnt(8)"); pv(0); vread(3)
    a("s_waitcnt lgkmcnt(8)"); pv(1)
    a("s_waitcnt lgkmcnt(4)"); pv(2)
    a("s_waitcnt lgkmcnt(0)"); pv(3)
    o = F8
    for ks in range(4):
        base = ff + (ks & ~1); sel = ks & 1; fr = f"v[{base}:{base+1}]"
        for tp in range(2):
            for h in range(2):
                dst = rng(o+4*tp+2*h, 2); src = rng(D+8*ks+4*tp+2*h, 2)
                if ks == 0: a(f"v_pk_mul_f32 {dst}, {src}, {fr} op_sel:[0,{sel}] op_sel_hi:[1,{sel}]")
                else: a(f"v_pk_fma_f32 {dst}, {src}, {fr}, {dst} op_sel:[0,{sel},0] op_sel_hi:[1,{sel},1]")
    og = OS8
    a(f"""
v_cvt_pk_bf16_f32 v{og}, v{o}, v{o+1}
v_cvt_pk_bf16_f32 v{og+1}, v{o+2}, v{o+3}
v_cvt_pk_bf16_f32 v{og+4}, v{o+4}, v{o+5}
v_cvt_pk_bf16_f32 v{og+5}, v{o+6}, v{o+7}
buffer_store_dwordx4 {rng(og,4)}, v{vOst}, s[28:31], s{sOB} offen
buffer_store_dwordx4 {rng(og+4,4)}, v{vOst}, s[28:31], s{sOB} offen offset:64
""")
    setflag(F_OI)
    stage["flush"] = QFL + OFL
    ST_("o published")
    gg = B16; wb = A32
    waitflags(group=F_OI)
    a(f"""
buffer_load_dwordx4 {rng(gg,4)}, v{vOG}, s[28:31], s{sOG} offen sc1
buffer_load_dwordx4 {rng(gg+4,4)}, v{vOG}, s[28:31], s{sOG} offen offset:2048 sc1
""")
    waitflags(single=F_W)
    for s in range(2):
        for tp in range(2):
            for hh in range(2):
                a(f"ds_read_b64_tr_b16 {rng(wb+8*s+4*tp+2*hh,2)}, v{vWOr+tp} offset:{s*8192 + hh*1024}")
    poll("o", [gg, gg+4], vOG, sOG, 0, [0, 2048], QFL + OFL)
    ST_("o gathered")
    e0 = va(); e1 = va(); u = A32 + 16; S = va(); oo = A32 + 24
    a(f"""
v_max_f32 v{M}, v{gg+2}, v{gg+6}
v_mov_b32 v{mt}, v{M}
v_lshlrev_b32 v{u}, 16, v{gg}
v_and_b32 v{u+1}, 0xffff0000, v{gg}
v_permlane16_swap_b32 v{M}, v{mt}
v_lshlrev_b32 v{u+2}, 16, v{gg+1}
v_max_f32 v{M}, v{M}, v{mt}
v_mov_b32 v{mt}, v{M}
v_and_b32 v{u+3}, 0xffff0000, v{gg+1}
v_lshlrev_b32 v{u+4}, 16, v{gg+4}
v_permlane32_swap_b32 v{M}, v{mt}
v_and_b32 v{u+5}, 0xffff0000, v{gg+4}
v_max_f32 v{M}, v{M}, v{mt}
v_lshlrev_b32 v{u+6}, 16, v{gg+5}
v_sub_f32 v{e0}, v{gg+2}, v{M}
v_sub_f32 v{e1}, v{gg+6}, v{M}
v_exp_f32 v{e0}, v{e0}
v_exp_f32 v{e1}, v{e1}
v_and_b32 v{u+7}, 0xffff0000, v{gg+5}
v_add_f32 v{S}, v{e0}, v{e1}
v_mul_f32 v{oo}, v{e0}, v{u}
v_mul_f32 v{oo+1}, v{e0}, v{u+1}
v_mov_b32 v{mt}, v{S}
v_mul_f32 v{oo+2}, v{e0}, v{u+2}
v_mul_f32 v{oo+3}, v{e0}, v{u+3}
v_permlane16_swap_b32 v{S}, v{mt}
v_fmac_f32 v{oo}, v{e1}, v{u+4}
v_fmac_f32 v{oo+1}, v{e1}, v{u+5}
v_add_f32 v{S}, v{S}, v{mt}
v_fmac_f32 v{oo+2}, v{e1}, v{u+6}
v_fmac_f32 v{oo+3}, v{e1}, v{u+7}
v_mov_b32 v{mt}, v{S}
v_permlane16_swap_b32 v{oo}, v{oo+1}
s_nop 0
v_permlane16_swap_b32 v{oo+2}, v{oo+3}
v_permlane32_swap_b32 v{S}, v{mt}
v_add_f32 v{oo}, v{oo}, v{oo+1}
v_add_f32 v{oo+2}, v{oo+2}, v{oo+3}
v_add_f32 v{S}, v{S}, v{mt}
s_nop 0
v_permlane32_swap_b32 v{oo}, v{oo+2}
v_rcp_f32 v{S}, v{S}
v_add_f32 v{oo}, v{oo}, v{oo+2}
v_mul_f32 v{oo}, v{oo}, v{S}
v_cvt_pk_bf16_f32 v{oo}, v{oo}, v{oo}
ds_write_b16 v{vOLw}, v{oo} offset:{OL}
""")
    setflag(F_O)
    a(f"s_add_u32 s{sT2}, s{sFG}, 65536\ns_mov_b32 s{sCnt}, {spin}")
    waitflags(group=F_O)
    ob = B16 + 8; y = C32; yg = E8
    a(f"""
ds_read_b128 {rng(ob,4)}, v{vOLr} offset:{OL}
ds_read_b128 {rng(ob+4,4)}, v{vOLr} offset:{OL+64}
""")
    for s in range(2):
        a(f"s_waitcnt lgkmcnt({1-s})")
        for tp in range(2):
            c = "0" if s == 0 else rng(y+4*tp,4)
            a(f"v_mfma_f32_16x16x32_bf16 {rng(y+4*tp,4)}, {rng(wb+8*s+4*tp,4)}, {rng(ob+4*s,4)}, {c}")
    a(f"v_mov_b32 v{E8+3}, s{sTag}\nv_mov_b32 v{E8+7}, s{sTag}\ns_nop 4")
    for tp in range(2):
        a(f"""v_perm_b32 v{yg+4*tp}, v{y+4*tp}, v{y+4*tp+3}, s{sP0}
v_perm_b32 v{yg+4*tp+1}, v{y+4*tp+1}, v{y+4*tp+3}, s{sP1}
v_perm_b32 v{yg+4*tp+2}, v{y+4*tp+2}, v{y+4*tp+3}, s{sP2}
buffer_store_dwordx4 {rng(yg+4*tp,4)}, v{vYst}, s[28:31], s{sYst} offen offset:{tp*64} sc1""")
    setflag(F_YI)
    ST_("y published")
    waitflags(group=F_YI)
    for x_ in QFL + OFL: a(x_)
    z = C32 + 24
    fgs = [A32 + 8*d for d in range(fd)]
    fg = C32 + 16
    a(f"s_cmp_lg_u32 {W}, 0\ns_cbranch_scc1 L_fin")
    def fload(r):
        a(f"buffer_load_dwordx4 {rng(r,4)}, v{vFG}, s[28:31], s{sFG} offen sc1")
        a(f"buffer_load_dwordx4 {rng(r+4,4)}, v{vFG}, s[28:31], s{sT2} offen sc1")
    for d in range(fd - 1): fload(fgs[d])
    a("L_fpoll:")
    for d in range(fd):
        fload(fgs[(d + fd - 1) % fd])
        r = fgs[d]
        a(f"""s_waitcnt vmcnt({2*(fd-1)})
v_cmp_ne_u32 vcc, s{sTag}, v{r+3}
v_cmp_ne_u32 s[{sa_tmp}:{sa_tmp+1}], s{sTag}, v{r+7}
s_or_b64 vcc, vcc, s[{sa_tmp}:{sa_tmp+1}]
s_cbranch_vccz L_fok{d}""")
    a(f"s_sub_u32 s{sCnt}, s{sCnt}, 1\ns_cbranch_scc0 L_fpoll\ns_branch L_fok0")
    for d in range(fd - 1, -1, -1):
        a(f"L_fok{d}:")
        for q in range(8): a(f"v_mov_b32 v{fg+q}, v{fgs[d]+q}")
        if d: a("s_branch L_fok")
    a("L_fok:")
    ST_("final gathered")
    a(f"""
v_perm_b32 v{z+3}, v{fg}, v{fg+1}, s{sU0}
v_perm_b32 v{z+7}, v{fg+4}, v{fg+5}, s{sU0}
v_add_f32 v{z}, v{fg}, v{fg+4}
v_perm_b32 v{z+3}, v{z+3}, v{fg+2}, s{sU1}
v_perm_b32 v{z+7}, v{z+7}, v{fg+6}, s{sU1}
v_add_f32 v{z+1}, v{fg+1}, v{fg+5}
v_add_f32 v{z+2}, v{fg+2}, v{fg+6}
v_add_f32 v{z+3}, v{z+3}, v{z+7}
""")
    for ctl in ("quad_perm:[2,3,0,1]", "row_ror:4", "row_ror:8"):
        for r in range(4):
            a(f"v_add_f32_dpp v{z+r}, v{z+r}, v{z+r} {ctl} row_mask:0xf bank_mask:0xf")
    a(f"""
s_nop 0
v_permlane16_swap_b32 v{z}, v{z+1}
v_permlane16_swap_b32 v{z+2}, v{z+3}
s_nop 0
v_add_f32 v{z}, v{z}, v{z+1}
v_add_f32 v{z+2}, v{z+2}, v{z+3}
s_nop 1
v_permlane32_swap_b32 v{z}, v{z+2}
s_nop 0
v_add_f32 v{z}, v{z}, v{z+2}
v_cvt_pk_bf16_f32 v{z}, v{z}, v{z}
buffer_store_short v{z}, v{vOut}, s[32:35], 0 offen
s_cmp_lg_u32 s2, 0
s_cbranch_scc1 L_fin
v_mov_b32 v{t0}, s{sTag}
v_mov_b32 v{t1}, 0
s_mov_b64 exec, 1
buffer_store_dword v{t0}, v{t1}, s[28:31], 0 offen sc1
s_mov_b64 exec, -1
L_fin:
""")
    a("s_branch L_tail" if stamp else "s_endpgm")
    for name, c in cold:
        for x_ in c: a(x_)
    a("; WARM_END")
    for c in colder:
        for x_ in c: a(x_)
    a("L_tail:")
    if stamp:
        a(f"s_mov_b32 s31, 0x20000\ns_mov_b32 s30, {WS_BYTES}")
    if amp >= 0:
        ST_("end")
        e = nst[0] - 1
        a(f"""
s_waitcnt lgkmcnt(0)
s_cmp_lg_u32 {W}, 0
s_cbranch_scc1 L_end
""")
        if ampglob:
            a(f"""
s_lshl_b32 s37, s2, 3
s_add_u32 s37, s37, {ST}
v_mov_b32 v{C32}, s{SB}
v_mov_b32 v{C32+1}, s{sTag}
v_mov_b32 v{t1}, 0
s_mov_b64 exec, 1
buffer_store_dwordx2 v[{C32}:{C32+1}], v{t1}, s[28:31], s37 offen sc1
s_mov_b64 exec, -1
""")
        a(f"""
s_cmp_lg_u32 s2, 0
s_cbranch_scc1 L_end
""")
        if ampglob:
            a(f"""
s_mov_b32 s37, {ST}
v_lshlrev_b32 v{t1}, 5, v{l}
L_ag:
buffer_load_dwordx4 v[{C32}:{C32+3}], v{t1}, s[28:31], s37 offen sc1
buffer_load_dwordx4 v[{C32+4}:{C32+7}], v{t1}, s[28:31], s37 offen offset:16 sc1
s_waitcnt vmcnt(0)
v_cmp_ne_u32 vcc, s{sTag}, v{C32+1}
v_cmp_ne_u32 s[40:41], s{sTag}, v{C32+3}
s_or_b64 vcc, vcc, s[40:41]
v_cmp_ne_u32 s[40:41], s{sTag}, v{C32+5}
s_or_b64 vcc, vcc, s[40:41]
v_cmp_ne_u32 s[40:41], s{sTag}, v{C32+7}
s_or_b64 vcc, vcc, s[40:41]
s_cbranch_vccnz L_ag
v_subrev_u32 v{C32}, s{SB}, v{C32}
v_subrev_u32 v{C32+2}, s{SB}, v{C32+2}
v_subrev_u32 v{C32+4}, s{SB}, v{C32+4}
v_subrev_u32 v{C32+6}, s{SB}, v{C32+6}
v_min_i32 v{C32}, v{C32}, v{C32+2}
v_min_i32 v{C32+4}, v{C32+4}, v{C32+6}
v_min_i32 v{C32}, v{C32}, v{C32+4}
s_nop 1
v_min_i32_dpp v{C32}, v{C32}, v{C32} row_ror:1 row_mask:0xf bank_mask:0xf
s_nop 1
v_min_i32_dpp v{C32}, v{C32}, v{C32} row_ror:2 row_mask:0xf bank_mask:0xf
s_nop 1
v_min_i32_dpp v{C32}, v{C32}, v{C32} row_ror:4 row_mask:0xf bank_mask:0xf
s_nop 1
v_min_i32_dpp v{C32}, v{C32}, v{C32} row_ror:8 row_mask:0xf bank_mask:0xf
s_nop 1
v_readlane_b32 s36, v{C32}, 0
v_readlane_b32 s37, v{C32}, 16
v_readlane_b32 s38, v{C32}, 32
v_readlane_b32 s39, v{C32}, 48
s_nop 3
s_min_i32 s36, s36, s37
s_min_i32 s38, s38, s39
s_min_i32 s36, s36, s38
s_sub_u32 s37, s{SB+2*amp}, s{SB}
s_sub_u32 s37, s37, s36
s_memrealtime s[40:41]
s_waitcnt lgkmcnt(0)
s_mul_i32 s37, s37, {ampk}
s_add_u32 s37, s37, s40
""")
        else:
            a(f"""
s_sub_u32 s37, s{SB+2*amp}, s{SB}
s_mul_i32 s37, s37, {ampk}
s_add_u32 s37, s37, s{SB+2*e}
""")
        a(f"""
L_amp:
s_memrealtime s[40:41]
s_waitcnt lgkmcnt(0)
s_cmp_lt_u32 s40, s37
s_cbranch_scc1 L_amp
""")
    elif stamp:
        ST_("end")
        n = nst[0]
        a(f"""
s_waitcnt lgkmcnt(0) vmcnt(0)
s_mul_i32 s4, s2, 8
s_add_u32 s4, s4, s3
s_lshl_b32 s4, s4, 6
s_add_u32 s4, s4, {ST}
v_mov_b32 v{t1}, 0
s_mov_b64 exec, 1
""")
        for i in range(n):
            a(f"v_mov_b32 v{t0}, s{SB+2*i}\nbuffer_store_dword v{t0}, v{t1}, s[28:31], s4 offen offset:{4*i}\ns_nop 0")
    a("L_end:\ns_endpgm")
    lines = a.L
    nh = 0
    if warm:
        lines, nh, have = hops.insert(lines, nparts)
        assert have == nparts, (have, nparts)
    body = "\n".join(lines) + "\n"
    assert sa.hi <= SB and ls.hi <= SB, (sa.hi, ls.hi)
    nv = max(va.hi, lv.hi)
    s = header([f"; @launch grid=(256,1,1) block=(320,1,1) lds={LDS_BYTES}"]) + kernel_begin(KNAME) + body + RODATA + descriptor(KNAME, nv, 102 if stamp else max(sa.hi, ls.hi))
    errs = haz.check(body)
    for e in errs: print("HAZ", e)
    return s, nv, sa.hi, nh, stn
if __name__ == "__main__":
    out = sys.argv[1]
    kw = {}
    for x in sys.argv[2:]:
        k, v = x.split("=")
        if k in ("stamp", "warm", "pt", "prio", "holdwo", "rot", "rotq"): kw[k] = (v == "1")
        elif k == "nt": kw[k] = (" " + v if v else "")
        else: kw[k] = int(v)
    s, nv, ns, nh, stn = gen(**kw)
    open(out, "w").write(s)
    print("vgprs", nv, "sgprs", ns, "hops", nh, "lds", LDS_BYTES, stn)
```

```python
import sys, struct
sys.path.insert(0, "my")
from ag import *
import haz, hops

QF = 0x10000
OF = 0x80000
OX = 0x100000
SOFF = 0x200000
ST = 0x400000
WS_BYTES = 268435456
QL = 0
PL = QL + 1280
SL = PL + 1024
OL = SL + 64
FL = 3136
JK = FL + 160
XL = 3840; WQ = XL + 1024; KL = WQ + 16384; VL = KL + 32768; WO = VL + 32768
LDS_BYTES = WO + 16384
assert OL + 768 <= FL and JK + 416 <= XL and XL % 256 == 0 and WQ % 256 == 0
F_Q, F_P, F_O, F_GI, F_QI, F_GOK, F_OI, F_YI, F_GO, F_K, F_V, F_W = 0, 16, 32, 48, 64, 80, 96, 112, 128, 132, 136, 140
CSC = 0.08838834764831845 * 1.4426950408889634
def f32(x): return "0x%08x" % struct.unpack("<I", struct.pack("<f", x))[0]
class V:
    def __init__(s, n=0): s.n = n; s.hi = n
    def __call__(s, cnt=1, align=1):
        s.n = (s.n + align - 1) // align * align
        r = s.n; s.n += cnt; s.hi = max(s.hi, s.n)
        return r
def rng(r, n): return f"v[{r}:{r+n-1}]"
OOB = "0x7ffffff0"

def gen(stamp=False, nt=" nt", hold=0, kx=32, nmid=32, lgo=60, holdwo=False, rot=True, rotq=True, fd=1, wthr=2000, n3=0, n2=0, N=24, spin=100000, nf=64, amp=-1, ampk=10, ampglob=0, warm=True, pt=1, nparts=4, prio=True, step=2):
    if amp >= 0: stamp = True
    a = A(); va = V(1); sa = V(36)
    l = va(); t0 = va(); t1 = va(); t2 = va(); t3 = va()
    nst = [0]; stn = []
    SB = 72
    def ST_(label):
        if stamp and (stamp != 2 or label in ('entry', 'end')):
            i = nst[0]; nst[0] += 1; stn.append(label)
            assert i < 15
            a(f"s_memrealtime s[{SB+2*i}:{SB+1+2*i}]")
    W, G, R, B, C = "s3", "s4", "s5", "s6", "s7"
    sT = sa(); sT2 = sa(); sWin = sa()
    a(f"""
s_cmp_ge_u32 s2, 256
s_cbranch_scc1 L_end
s_load_dwordx2 s[20:21], s[0:1], 24
s_load_dwordx2 s[8:9], s[0:1], 0
s_load_dwordx2 s[12:13], s[0:1], 8
s_load_dwordx2 s[28:29], s[0:1], 56
s_load_dwordx2 s[16:17], s[0:1], 16
s_load_dwordx2 s[24:25], s[0:1], 32
s_load_dwordx2 s[32:33], s[0:1], 40
""")
    ST_("entry")
    a(f"""
v_lshrrev_b32 v{t0}, 6, v0
v_and_b32 v{l}, 63, v0
s_and_b32 {G}, s2, 7
v_readfirstlane_b32 {W}, v{t0}
s_lshr_b32 {R}, s2, 3
s_lshr_b32 {B}, {R}, 3
s_and_b32 {C}, {R}, 7
s_mov_b32 s23, 0x20000
v_lshrrev_b32 v{t0}, 4, v{l}
v_and_b32 v{t1}, 15, v{l}
s_cmp_lt_u32 {W}, 4
s_cbranch_scc1 L_compute
""")
    lv = V(va.n); ls = V(sa.n)
    vWQ = lv(2); vX = lv(); vK = lv(4); vV = lv(2); vWO = lv(2); vLF = lv(); vOne = lv()
    sWQ = ls(); sX = ls(); sK = ls(); sWO = ls(); lT = ls(); sWQb0 = ls()
    if prio: a("s_setprio 2")
    a(f"""
s_mov_b32 s22, 0x400000
v_and_b32 v{t2}, 7, v{l}
v_lshlrev_b32 v{t3}, 1, v{t0}
v_and_b32 v{vX}, 2, v{t3}
v_xor_b32 v{t2}, v{t2}, v{vX}
v_lshlrev_b32 v{t2}, 4, v{t2}
v_lshrrev_b32 v{vX}, 3, v{l}
v_lshl_add_u32 v{vWQ}, v{vX}, 13, v{t2}
v_xor_b32 v{vWQ+1}, 64, v{vWQ}
s_lshl_b32 s{sWQb0}, {G}, 3
s_add_u32 s{sWQb0}, s{sWQb0}, {C}
s_lshl_b32 s{sWQb0}, s{sWQb0}, 7
s_lshl_b32 s{lT}, {B}, 20
s_add_u32 s{sWQb0}, s{sWQb0}, s{lT}
s_mov_b32 s11, s23
s_movk_i32 s10, 0x1000
s_mov_b32 s15, s23
s_mov_b32 s14, 0x2000000
; x voffset: (l>>4)*1024 + ((l&15) ^ (4*(l>>4)))*16
v_lshlrev_b32 v{t2}, 2, v{t0}
v_xor_b32 v{t2}, v{t1}, v{t2}
v_lshlrev_b32 v{t2}, 4, v{t2}
v_lshl_add_u32 v{vX}, v{t0}, 10, v{t2}
s_lshl_b32 s{sX}, {B}, 8
s_waitcnt lgkmcnt(0)
""")
    seq = []
    sRho = ls(); sJ = ls(); sWQb = sWQb0
    for i in range(16):
        pre = []
        if i % 4 == 0:
            j_ = i // 4
            if rotq:
                pre += [f"s_add_u32 s{sJ}, {B}, {j_}", f"s_and_b32 s{sJ}, s{sJ}, 3", f"s_lshl_b32 s{lT}, s{sJ}, 18", f"s_add_u32 s{sWQ}, s{sWQb}, s{lT}",
                        f"s_lshl_b32 s{lT}, s{sJ}, 12", f"s_add_u32 m0, s{lT}, {WQ}"]
            else:
                pre += [f"s_add_u32 s{sWQ}, s{sWQb}, {j_ << 18}", f"s_mov_b32 m0, {WQ + j_*4096}"]
            pre.append("s_nop 0")
        else:
            pre.append(f"s_add_u32 s{sWQ}, s{sWQ}, {65536 - 1024}")
        seq.append((pre, f"buffer_load_dwordx4 v{vWQ + (i & 1)}, s[20:23], s{sWQ} offen offset:{(i%4)*1024}{nt} lds"))
    seq.append(([f"s_movk_i32 m0, {XL}", "s_nop 0"], f"buffer_load_dwordx4 v{vX}, s[8:11], s{sX} offen lds"))
    kpre = f"""; K voffsets: (l>>4)*256 + ((l&15)^(l>>4))*16  ^ (64*i)
v_xor_b32 v{t2}, v{t1}, v{t0}
v_lshlrev_b32 v{t2}, 4, v{t2}
v_lshl_add_u32 v{vK}, v{t0}, 8, v{t2}
v_xor_b32 v{vK+1}, 64, v{vK}
v_xor_b32 v{vK+2}, 0x80, v{vK}
v_xor_b32 v{vK+3}, 0xc0, v{vK}
; flag address vgpr: lane0 -> FL, else JK + 4*l
v_lshlrev_b32 v{t2}, 2, v{l}
v_add_u32 v{t2}, {JK}, v{t2}
v_cmp_eq_u32 vcc, 0, v{l}
v_mov_b32 v{vLF}, {FL}
v_mov_b32 v{vOne}, 1
v_cndmask_b32 v{vLF}, v{t2}, v{vLF}, vcc
; window base = (b*8+g)<<20 + 3072*256 + c*32768
s_lshl_b32 s{sWin}, {B}, 3
s_add_u32 s{sWin}, s{sWin}, {G}
s_lshl_b32 s{sWin}, s{sWin}, 5
s_add_u32 s{sWin}, s{sWin}, {C}
s_add_u32 s{sWin}, s{sWin}, 24
s_lshl_b32 s{sWin}, s{sWin}, 15
; rho*4096 : rho = (g + 2b) & 7
s_lshl_b32 s{sRho}, {B}, 1
s_add_u32 s{sRho}, s{sRho}, {G}
s_and_b32 s{sRho}, s{sRho}, {7 if rot else 0}
s_lshl_b32 s{sRho}, s{sRho}, 12""".split("\n")
    def grp(j_, ldsbase):
        return [f"s_add_u32 s{sJ}, s{sRho}, {j_*4096}", f"s_and_b32 s{sJ}, s{sJ}, 0x7fff", f"s_add_u32 m0, s{sJ}, {ldsbase}", f"s_add_u32 s{sK}, s{sWin}, s{sJ}"]
    for i in range(32):
        pre = list(kpre) if i == 0 else []
        if i % 4 == 0: pre += grp(i // 4, KL)
        seq.append((pre, f"buffer_load_dwordx4 v{vK+i%4}, s[12:15], s{sK} offen offset:{(i%4)*1024}{nt} lds"))
    vpre = f"""s_mov_b32 s19, s23
s_mov_b32 s18, s14
; V voffset: (l>>4)*256 + ((l&15) ^ ((l>>4)<<1))*16 ; odd: ^128 ; WO: (l>>4)*1024 + same piece
v_xor_b32 v{t2}, v{t1}, v{t3}
v_lshlrev_b32 v{t2}, 4, v{t2}
v_lshl_add_u32 v{vV}, v{t0}, 8, v{t2}
v_xor_b32 v{vV+1}, 0x80, v{vV}
v_lshl_add_u32 v{vWO}, v{t0}, 10, v{t2}
v_xor_b32 v{vWO+1}, 0x80, v{vWO}
s_mov_b32 s27, s23
s_mov_b32 s26, s22
; WO soff = p<<16 + cg*256 ; p = g*8 + r/4 ; cg = r&3
s_lshr_b32 s{lT}, {R}, 2
s_lshl_b32 s{sWO}, {G}, 3
s_add_u32 s{sWO}, s{sWO}, s{lT}
s_lshl_b32 s{sWO}, s{sWO}, 8
s_and_b32 s{lT}, {R}, 3
s_add_u32 s{sWO}, s{sWO}, s{lT}
s_lshl_b32 s{sWO}, s{sWO}, 8""".split("\n")
    for i in range(32):
        pre = list(vpre) if i == 0 else []
        if i % 4 == 0: pre += grp(i // 4, VL)
        seq.append((pre, f"buffer_load_dwordx4 v{vV+(i&1)}, s[16:19], s{sK} offen offset:{(i%4)*1024}{nt} lds"))
    for i in range(16):
        pre = []
        if i == 0: pre += [f"s_mov_b32 m0, {WO}", "s_nop 0"]
        elif i % 4 == 0: pre.append("s_add_u32 m0, m0, 4096")
        if i: pre.append(f"s_add_u32 s{sWO}, s{sWO}, {4096 - 1024 if i % 4 else 4096 + 3072}")
        seq.append((pre, f"buffer_load_dwordx4 v{vWO+((i>>1)&1)}, s[24:27], s{sWO} offen offset:{(i%4)*1024}{nt} lds"))
    T = len(seq); assert T == 97
    def emit(k):
        pre, ld = seq[k]
        for p in pre: a(p)
        a(ld)
    for k in range(17): emit(k)
    ST_("L: wq issued")
    pre17, ld17 = seq[17]
    for p in pre17: a(p)
    if hold: a(f"s_waitcnt vmcnt({17 - hold})")
    a(ld17)
    n0 = 17 + kx
    for k in range(18, n0): emit(k)
    lfl = lv(4, 4)
    a(f"v_mov_b32 v{t2}, {FL}")
    a(f"s_waitcnt vmcnt({n0 - 17})\ns_barrier")
    ST_("L: wq landed")
    def lwait(name, off):
        a(f"""L_{name}:
ds_read_b128 v[{lfl}:{lfl+3}], v{t2} offset:{off}
s_waitcnt lgkmcnt(0)
v_and_b32 v{lfl}, v{lfl}, v{lfl+1}
v_and_b32 v{lfl+2}, v{lfl+2}, v{lfl+3}
v_and_b32 v{lfl}, v{lfl}, v{lfl+2}
v_cmp_eq_u32 vcc, 0, v{lfl}
s_cbranch_vccnz L_{name}""")
    vFA = lv()
    a(f"v_mov_b32 v{vFA}, {FL}")
    def lwait(name, off):
        a(f"""L_{name}:
ds_read_b128 v[{lfl}:{lfl+3}], v{vFA} offset:{off}
s_waitcnt lgkmcnt(0)
v_and_b32 v{lfl}, v{lfl}, v{lfl+1}
v_and_b32 v{lfl+2}, v{lfl+2}, v{lfl+3}
v_and_b32 v{lfl}, v{lfl}, v{lfl+2}
v_cmp_eq_u32 vcc, 0, v{lfl}
s_cbranch_vccnz L_{name}""")
    lwait("qi", F_QI)
    n1 = 49 + nmid
    for k in range(n0, n1):
        if n2: a(f"s_waitcnt vmcnt({n2 - 1})")
        emit(k)
    assert lgo >= 49 and lgo <= n1 and n1 <= T
    a(f"s_waitcnt vmcnt({n1 - lgo})")
    a(f"ds_write_b32 v{vLF}, v{vOne} offset:{F_GO}")
    a(f"ds_write_b32 v{vLF}, v{vOne} offset:{F_K}")
    lwait("gi", F_GI)
    for k in range(n1, T):
        if k == 81 and holdwo: lwait("gok", F_GOK)
        if n3: a(f"s_waitcnt vmcnt({n3 - 1})")
        emit(k)
    for cnt, f in ((81, F_V), (97, F_W)):
        a(f"s_waitcnt vmcnt({T - cnt})\nds_write_b32 v{vLF}, v{vOne} offset:{f}")
    ST_("L: all landed")
    if stamp: a("s_branch L_fin")
    else: a("s_endpgm")
    a("L_compute:")
    g = va(); n16 = va(); n4 = va()
    sQB = sa(); sOB = sa(); sEp = sa(); sTag = sa(); vPT = va()
    a(f"""
s_mov_b32 s31, s23
s_mov_b32 s30, {WS_BYTES}
s_mov_b32 s35, s23
s_movk_i32 s34, 0x1000
s_lshl_b32 s{sQB}, {G}, 4
s_add_u32 s{sQB}, s{sQB}, {B}
s_lshl_b32 s{sQB}, s{sQB}, 11
s_lshl_b32 s{sT}, {C}, 8
s_add_u32 s{sQB}, s{sQB}, s{sT}
s_add_u32 s{sQB}, s{sQB}, {QF}
s_lshl_b32 s{sOB}, {B}, 3
s_add_u32 s{sOB}, s{sOB}, {G}
s_lshl_b32 s{sOB}, s{sOB}, 5
s_add_u32 s{sOB}, s{sOB}, {C}
s_lshl_b32 s{sOB}, s{sOB}, 9
s_add_u32 s{sOB}, s{sOB}, {OF}
""")
    vPTa = va()
    if pt in (1, 3, 7):
        a(f"""
s_mul_i32 s{sT}, {W}, 6
v_add_u32 v{t3}, s{sT}, v{l}
v_lshrrev_b32 v{t0}, 1, v{t3}
v_lshlrev_b32 v{t0}, 13, v{t0}
v_and_b32 v{t1}, 1, v{t3}
v_lshl_or_b32 v{t0}, v{t1}, 7, v{t0}
v_add_u32 v{t0}, s{sQB}, v{t0}
v_subrev_u32 v{t1}, 8, v{t3}
v_lshrrev_b32 v{t2}, 2, v{t1}
v_lshlrev_b32 v{t2}, 12, v{t2}
v_and_b32 v{t1}, 3, v{t1}
v_lshl_or_b32 v{t2}, v{t1}, 7, v{t2}
v_add_u32 v{t2}, s{sOB}, v{t2}
v_cmp_gt_u32 vcc, 8, v{t3}
v_mov_b32 v{t3}, {OOB}
s_nop 0
v_cndmask_b32 v{t0}, v{t2}, v{t0}, vcc
v_cmp_gt_u32 vcc, 6, v{l}
s_waitcnt lgkmcnt(0)
s_load_dword s{sEp}, s[28:29], 0
v_cndmask_b32 v{vPTa}, v{t3}, v{t0}, vcc
""")
        if pt != 7: a(f"buffer_load_dword v{vPT}, v{vPTa}, s[28:31], 0 offen{' nt' if pt == 3 else ''}")
    else:
        a(f"s_waitcnt lgkmcnt(0)\ns_load_dword s{sEp}, s[28:29], 0")
        if pt in (10, 11):
            sD = sa(); sO1 = sa(); sO2 = sa()
            a(f"s_lshl_b32 s{sT}, {W}, 13\ns_add_u32 s{sO1}, s{sQB}, s{sT}\ns_lshl_b32 s{sT}, {W}, 12\ns_add_u32 s{sO2}, s{sOB}, s{sT}")
            stp = 64 if pt == 10 else 128
            ypt = [f"s_load_dword s{sD}, s[28:29], s{sO1} offset:{o}" for o in range(0, 256, stp)] + [f"s_load_dword s{sD}, s[28:29], s{sO2} offset:{o}" for o in range(0, 512, stp)]
        if pt in (8, 9):
            sD = sa(); sO1 = sa()
            a(f"s_lshl_b32 s{sT}, {W}, 13\ns_add_u32 s{sO1}, s{sQB}, s{sT}")
            for o in range(0, 256, 64): a(f"s_load_dword s{sD}, s[28:29], s{sO1} offset:{o}")
            a(f"s_lshl_b32 s{sT}, {W}, 12\ns_add_u32 s{sO1}, s{sOB}, s{sT}")
            for o in range(0, 512, 64): a(f"s_load_dword s{sD}, s[28:29], s{sO1} offset:{o}")
            if pt == 9:
                a(f"""s_and_b32 s{sO1}, {R}, 3
s_lshl_b32 s{sO1}, s{sO1}, 6
s_lshl_b32 s{sT}, {G}, 3
s_add_u32 s{sO1}, s{sO1}, s{sT}
s_lshr_b32 s{sT}, {R}, 2
s_add_u32 s{sO1}, s{sO1}, s{sT}
s_lshl_b32 s{sO1}, s{sO1}, 2
s_add_u32 s{sO1}, s{sO1}, {W}
s_lshl_b32 s{sO1}, s{sO1}, 9
s_add_u32 s{sO1}, s{sO1}, {OX + SOFF}""")
                ypt = [f"s_load_dword s{sD}, s[28:29], s{sO1} offset:{o}" for o in range(0, 512, 64)]
        if pt in (2, 4, 6):
            a(f"""
s_lshl_b32 s{sT}, {W}, 12
s_add_u32 s{sT}, s{sT}, s{sOB}
v_lshlrev_b32 v{t0}, 7, v{l}
v_add_u32 v{t0}, s{sT}, v{t0}
v_cmp_gt_u32 vcc, 4, v{l}
v_mov_b32 v{t3}, {OOB}
s_nop 0
v_cndmask_b32 v{vPTa}, v{t3}, v{t0}, vcc
""")
    if warm:
        a("s_mov_b64 exec, 0")
        for p in range(1, nparts):
            a(f"s_cmp_eq_u32 {W}, {p}\ns_cbranch_scc1 HOP_P{p}")
        a("s_branch HOP_P0\nL_warm_done:\ns_mov_b64 exec, -1")
    a("; WARM_START")
    sP = sa(); sCG = sa(); sR4 = sa()
    vXr = va(4); vWQr = va(); vKr = va(4); vVr = va(2); vWOr = va(2)
    vQst = va(); vG = va(); sG = sa(); vQLw = va(); vQLr = va()
    vPw = va(); vPr = va(); vSw = va(); vSr = va()
    vOst = va(); vOG = va(); sOG = sa(); vOLw = va(); vOLr = va()
    vYst = va(); sYst = sa(); vFG = va(); sFG = sa(); vOut = va()
    vFw = va(); vFr = va(); vOne_c = va()
    sCsc = sa(); sP0 = sa(); sP1 = sa(); sP2 = sa(); sU0 = sa(); sU1 = sa(); sM4 = sa(2, 2); sCnt = sa()
    a(f"""
v_lshrrev_b32 v{g}, 4, v{l}
v_and_b32 v{n16}, 15, v{l}
v_and_b32 v{n4}, 3, v{l}
v_lshlrev_b32 v{t2}, 2, v{l}
v_mov_b32 v{t3}, 0
ds_write_b32 v{t2}, v{t3} offset:{FL}
v_add_u32 v{t2}, {JK}, v{t2}
s_lshl_b32 s{sT}, {W}, 2
s_add_u32 s{sT}, s{sT}, {FL}
v_mov_b32 v{vFw}, s{sT}
v_cmp_eq_u32 vcc, 0, v{l}
v_mov_b32 v{vFr}, {FL}
v_mov_b32 v{vOne_c}, 1
v_cndmask_b32 v{vFw}, v{t2}, v{vFw}, vcc
; p = g*8 + r/4 ; cg = r&3
s_lshr_b32 s{sR4}, {R}, 2
s_lshl_b32 s{sP}, {G}, 3
s_add_u32 s{sP}, s{sP}, s{sR4}
s_and_b32 s{sCG}, {R}, 3
v_lshlrev_b32 v{t2}, 2, v{n4}
v_xor_b32 v{t2}, v{g}, v{t2}
v_lshlrev_b32 v{t2}, 4, v{t2}
v_lshl_add_u32 v{t2}, v{n4}, 8, v{t2}
v_add_u32 v{vXr}, {XL}, v{t2}
v_xor_b32 v{vXr+1}, 64, v{vXr}
v_xor_b32 v{vXr+2}, 0x80, v{vXr}
v_xor_b32 v{vXr+3}, 0xc0, v{vXr}
v_bfe_u32 v{t0}, v{l}, 2, 2
v_lshl_add_u32 v{t2}, v{g}, 3, v{t0}
v_lshlrev_b32 v{t2}, 7, v{t2}
v_lshl_add_u32 v{t2}, v{n4}, 3, v{t2}
v_lshrrev_b32 v{t3}, 1, v{t0}
v_and_b32 v{t1}, 1, v{g}
v_lshl_or_b32 v{t3}, v{t1}, 1, v{t3}
v_xor_b32 v{t3}, {W}, v{t3}
v_lshl_add_u32 v{t2}, v{t3}, 5, v{t2}
v_add_u32 v{vWQr}, {WQ}, v{t2}
s_lshl_b32 s{sT}, {W}, 13
s_add_u32 s{sT}, s{sT}, {KL}
v_xor_b32 v{t2}, v{g}, v{n16}
v_lshlrev_b32 v{t2}, 4, v{t2}
v_lshl_add_u32 v{t2}, v{n16}, 8, v{t2}
v_add_u32 v{vKr}, s{sT}, v{t2}
v_xor_b32 v{vKr+1}, 64, v{vKr}
v_xor_b32 v{vKr+2}, 0x80, v{vKr}
v_xor_b32 v{vKr+3}, 0xc0, v{vKr}
v_lshl_add_u32 v{t2}, v{g}, 2, v{t0}
v_lshlrev_b32 v{t2}, 8, v{t2}
v_lshl_add_u32 v{t2}, v{n4}, 3, v{t2}
v_lshl_or_b32 v{t3}, v{t1}, 2, v{t0}
s_lshl_b32 s{sT}, {W}, 1
v_xor_b32 v{t3}, s{sT}, v{t3}
v_lshl_add_u32 v{t2}, v{t3}, 5, v{t2}
v_add_u32 v{vVr}, {VL}, v{t2}
v_xor_b32 v{vVr+1}, 32, v{vVr}
v_lshl_add_u32 v{t2}, v{g}, 3, v{t0}
v_lshlrev_b32 v{t2}, 8, v{t2}
v_lshl_add_u32 v{t2}, v{n4}, 3, v{t2}
v_lshl_add_u32 v{t2}, v{t3}, 5, v{t2}
v_add_u32 v{vWOr}, {WO}, v{t2}
v_xor_b32 v{vWOr+1}, 32, v{vWOr}
v_cmp_gt_u32 vcc, 4, v{n16}
v_mov_b32 v{t3}, {OOB}
s_lshl_b32 s{sT}, {W}, 6
v_lshlrev_b32 v{t2}, 4, v{g}
v_add_u32 v{t0}, s{sT}, v{t2}
v_lshl_add_u32 v{t0}, v{n16}, 13, v{t0}
v_cndmask_b32 v{vQst}, v{t3}, v{t0}, vcc
s_lshl_b32 s{sT}, {W}, 7
v_add_u32 v{t2}, s{sT}, v{t2}
v_lshl_add_u32 v{t0}, v{n16}, 12, v{t2}
v_cndmask_b32 v{vOst}, v{t3}, v{t0}, vcc
v_lshl_add_u32 v{t0}, v{n16}, 9, v{t2}
v_cndmask_b32 v{vYst}, v{t3}, v{t0}, vcc
v_lshrrev_b32 v{t0}, 5, v{l}
v_and_b32 v{t1}, 31, v{l}
v_lshlrev_b32 v{t2}, 4, v{t1}
v_lshl_add_u32 v{vG}, v{t0}, 12, v{t2}
s_lshl_b32 s{sG}, {G}, 2
s_add_u32 s{sG}, s{sG}, {B}
s_lshl_b32 s{sG}, s{sG}, 4
s_add_u32 s{sG}, s{sG}, {W}
s_lshl_b32 s{sG}, s{sG}, 9
s_add_u32 s{sG}, s{sG}, {QF}
s_mul_i32 s{sT}, {W}, 320
v_lshlrev_b32 v{t2}, 3, v{t1}
v_lshl_add_u32 v{t2}, v{t0}, 2, v{t2}
v_add_u32 v{vQLw}, s{sT}, v{t2}
v_mul_u32_u24 v{t2}, 320, v{n4}
v_lshl_add_u32 v{vQLr}, v{g}, 4, v{t2}
v_lshlrev_b32 v{t2}, 6, v{n4}
v_lshl_add_u32 v{vPr}, v{g}, 4, v{t2}
s_lshl_b32 s{sT}, {W}, 8
v_add_u32 v{vPw}, s{sT}, v{vPr}
v_lshlrev_b32 v{vSr}, 4, v{n4}
s_lshl_b32 s{sT}, {W}, 2
v_add_u32 v{vSw}, s{sT}, v{vSr}
v_lshlrev_b32 v{t2}, 9, v{g}
v_lshl_add_u32 v{vOG}, v{n16}, 4, v{t2}
s_lshl_b32 s{sOG}, {W}, 3
s_add_u32 s{sOG}, s{sOG}, {G}
s_lshl_b32 s{sOG}, s{sOG}, 2
s_add_u32 s{sOG}, s{sOG}, {B}
s_lshl_b32 s{sOG}, s{sOG}, 4
s_and_b32 s{sT}, s{sR4}, 1
s_add_u32 s{sOG}, s{sOG}, s{sT}
s_lshl_b32 s{sOG}, s{sOG}, 8
s_add_u32 s{sOG}, s{sOG}, {OF}
s_mul_i32 s{sT}, {W}, 192
v_lshlrev_b32 v{t2}, 3, v{n16}
v_lshl_add_u32 v{t2}, v{g}, 1, v{t2}
v_add_u32 v{vOLw}, s{sT}, v{t2}
v_mul_u32_u24 v{t2}, 192, v{n4}
v_lshl_add_u32 v{vOLr}, v{g}, 4, v{t2}
s_lshl_b32 s{sYst}, s{sCG}, 6
s_add_u32 s{sYst}, s{sYst}, s{sP}
s_lshl_b32 s{sYst}, s{sYst}, 11
s_add_u32 s{sYst}, s{sYst}, {OX + SOFF}
v_lshrrev_b32 v{t0}, 1, v{l}
v_and_b32 v{t1}, 1, v{l}
v_lshlrev_b32 v{t2}, 4, v{t1}
v_lshl_add_u32 v{vFG}, v{t0}, 11, v{t2}
s_lshl_b32 s{sFG}, s{sCG}, 12
s_add_u32 s{sFG}, s{sFG}, s{sP}
s_lshl_b32 s{sFG}, s{sFG}, 5
s_add_u32 s{sFG}, s{sFG}, {OX + SOFF}
s_lshr_b32 s{sT}, s{sP}, 4
s_lshl_b32 s{sT}, s{sT}, 2
s_add_u32 s{sT}, s{sT}, s{sCG}
s_lshl_b32 s{sT}, s{sT}, 4
s_and_b32 s{sT2}, s{sP}, 15
s_add_u32 s{sT}, s{sT}, s{sT2}
s_lshl_b32 s{sT}, s{sT}, 4
v_lshlrev_b32 v{t2}, 3, v{t1}
v_lshl_add_u32 v{t2}, v{g}, 1, v{t2}
v_add_u32 v{t2}, s{sT}, v{t2}
v_cmp_gt_u32 vcc, 2, v{n16}
s_mov_b32 s{sCsc}, {f32(CSC)}
s_mov_b32 s{sP0}, 0x07060503
v_cndmask_b32 v{vOut}, v{t3}, v{t2}, vcc
s_mov_b32 s{sP1}, 0x07060502
s_mov_b32 s{sP2}, 0x07060501
s_mov_b32 s{sU0}, 0x04000c0c
s_mov_b32 s{sU1}, 0x0706000c
s_mov_b32 s{sM4}, 0x000f000f
s_mov_b32 s{sM4+1}, 0x000f000f
s_waitcnt lgkmcnt(0)
s_mul_i32 s{sTag}, s{sEp}, 1664525
s_add_u32 s{sTag}, s{sTag}, 1013904223
""")
    A32 = va(32, 4); B16 = va(16, 4); C32 = va(32, 4); E8 = va(8, 4); F8 = va(8, 4)
    ones = va(4, 4); fl = va(4, 4); fl1 = va(); QS4 = va(4, 4); OS8 = va(8, 4); sQS = sa(); sOS = sa(); sWcN = sa.n
    a(f"""
v_mov_b32 v{ones}, 0x3f803f80
v_mov_b32 v{ones+1}, 0x3f803f80
v_mov_b32 v{ones+2}, 0x3f803f80
v_mov_b32 v{ones+3}, 0x3f803f80
v_mov_b32 v{QS4+3}, s{sTag}
v_mov_b32 v{OS8+3}, s{sTag}
v_mov_b32 v{OS8+7}, s{sTag}
v_mov_b32 v{E8+3}, s{sTag}
v_mov_b32 v{E8+7}, s{sTag}
s_add_u32 s{sQS}, s{sQB}, {SOFF}
s_add_u32 s{sOS}, s{sOB}, {SOFF}
s_mov_b32 s{sCnt}, {spin}
s_movk_i32 s{sWcN}, {wthr}
""")
    if pt == 7: a(f"buffer_load_dword v{vPT}, v{vPTa}, s[28:31], 0 offen")
    ST_("addr done")
    lab = [0]
    def setflag(off): a(f"ds_write_b32 v{vFw}, v{vOne_c} offset:{off}")
    colder = []
    sWc = sa()
    stage = {"flush": []}
    def waitflags(group=None, single=None):
        lab[0] += 1; L = f"L_wf{lab[0]}"
        a(f"{L}:")
        if group is not None: a(f"ds_read_b128 {rng(fl,4)}, v{vFr} offset:{group}")
        if single is not None: a(f"ds_read_b32 v{fl1}, v{vFr} offset:{single}")
        a("s_sub_u32 s%d, s%d, 1" % (sWc, sWc))
        a(f"s_cbranch_scc1 {L}f")
        a("s_waitcnt lgkmcnt(0)")
        if group is not None:
            a(f"v_and_b32 v{fl}, v{fl}, v{fl+1}\nv_and_b32 v{fl+2}, v{fl+2}, v{fl+3}")
            if single is not None: a(f"v_and_b32 v{fl}, v{fl}, v{fl1}")
            a(f"v_and_b32 v{fl}, v{fl}, v{fl+2}")
            r = fl
        else: r = fl1
        a(f"v_cmp_eq_u32 vcc, 0, v{r}\ns_cbranch_vccnz {L}")
        colder.append([f"{L}f:"] + list(stage["flush"]) + [f"s_movk_i32 s{sWc}, {wthr}", "s_waitcnt lgkmcnt(0)", f"s_branch {L}"])
    QFL = [f"buffer_store_dwordx4 {rng(QS4,4)}, v{vQst}, s[28:31], s{sQS} offen sc1"]
    OFL = [f"buffer_store_dwordx4 {rng(OS8,4)}, v{vOst}, s[28:31], s{sOS} offen sc1", f"buffer_store_dwordx4 {rng(OS8+4,4)}, v{vOst}, s[28:31], s{sOS} offen offset:64 sc1"]
    assert sWc == sWcN
    xb = A32; wa = A32 + 16; acc = C32
    a("s_waitcnt lgkmcnt(0)\ns_barrier")
    for s in range(4):
        a(f"ds_read_b128 {rng(xb+4*s,4)}, v{vXr+s}")
        a(f"ds_read_b64_tr_b16 {rng(wa+4*s,2)}, v{vWQr} offset:{s*4096}")
        a(f"ds_read_b64_tr_b16 {rng(wa+4*s+2,2)}, v{vWQr} offset:{s*4096 + 512}")
    for s in range(4):
        a(f"s_waitcnt lgkmcnt({3*(3-s)})")
        c = "0" if s == 0 else rng(acc,4)
        a(f"v_mfma_f32_16x16x32_bf16 {rng(acc,4)}, {rng(wa+4*s,4)}, {rng(xb+4*s,4)}, {c}")
    a(f"""
s_nop 7
v_perm_b32 v{QS4}, v{acc}, v{acc+3}, s{sP0}
v_perm_b32 v{QS4+1}, v{acc+1}, v{acc+3}, s{sP1}
v_perm_b32 v{QS4+2}, v{acc+2}, v{acc+3}, s{sP2}
buffer_store_dwordx4 {rng(QS4,4)}, v{vQst}, s[28:31], s{sQB} offen
""")
    setflag(F_QI)
    stage["flush"] = QFL
    if pt in (9, 10, 11):
        for x_ in ypt: a(x_)
    if pt in (2, 6): a(f"buffer_load_dword v{vPT}, v{vPTa}, s[28:31], 0 offen" + (" nt" if pt == 2 else ""))
    ST_("q published")
    gq = F8
    waitflags(single=F_GO)
    ST_("GO")
    a(f"buffer_load_dwordx4 {rng(gq,4)}, v{vG}, s[28:31], s{sG} offen sc1")
    a(f"buffer_load_dwordx4 {rng(gq+4,4)}, v{vG}, s[28:31], s{sG} offen offset:2048 sc1")
    if pt == 4: a(f"buffer_load_dword v{vPT}, v{vPTa}, s[28:31], 0 offen nt")
    setflag(F_GI)
    sa_tmp = sa(2, 2)
    cold = []
    def poll(name, regs, vaddr, soff, first_wait, offs, flush):
        a(f"s_waitcnt vmcnt({first_wait})\nL_{name}chk:")
        for i, r in enumerate(regs):
            if i == 0: a(f"v_cmp_ne_u32 vcc, s{sTag}, v{r+3}")
            else: a(f"v_cmp_ne_u32 s[{sa_tmp}:{sa_tmp+1}], s{sTag}, v{r+3}\ns_or_b64 vcc, vcc, s[{sa_tmp}:{sa_tmp+1}]")
        a(f"s_cbranch_vccnz L_{name}retry\nL_{name}ok:")
        c = [f"L_{name}retry:", f"s_sub_u32 s{sCnt}, s{sCnt}, 1", f"s_cbranch_scc1 L_{name}ok",
             f"s_cmp_gt_u32 s{sCnt}, {spin - nf}", f"s_cbranch_scc1 L_{name}re",
             f"s_cmp_lg_u32 s{sCnt}, {spin - nf}", f"s_cbranch_scc1 L_{name}tg"] + flush + [f"L_{name}tg:", f"s_xor_b32 s{soff}, s{soff}, {SOFF}", f"L_{name}re:"]
        for r, o in zip(regs, offs):
            c.append(f"buffer_load_dwordx4 {rng(r,4)}, v{vaddr}, s[28:31], s{soff} offen offset:{o} sc1")
        c += ["s_waitcnt vmcnt(0)", f"s_branch L_{name}chk"]
        cold.append((name, c))
    poll("q", [gq, gq+4], vG, sG, 1 if pt == 4 else 0, [0, 2048], QFL)
    setflag(F_GOK)
    ST_("q gathered")
    u = E8; qb = B16; ka = A32
    a(f"""
v_perm_b32 v{u}, v{gq}, v{gq+1}, s{sU0}
v_perm_b32 v{u+1}, v{gq+4}, v{gq+5}, s{sU0}
v_add_f32 v{u+4}, v{gq}, v{gq+4}
v_perm_b32 v{u}, v{u}, v{gq+2}, s{sU1}
v_perm_b32 v{u+1}, v{u+1}, v{gq+6}, s{sU1}
v_add_f32 v{u+5}, v{gq+1}, v{gq+5}
v_add_f32 v{u+6}, v{gq+2}, v{gq+6}
v_add_f32 v{u+7}, v{u}, v{u+1}
s_nop 0
v_permlane32_swap_b32 v{u+4}, v{u+6}
v_permlane32_swap_b32 v{u+5}, v{u+7}
s_nop 0
v_add_f32 v{u+4}, v{u+4}, v{u+6}
v_add_f32 v{u+5}, v{u+5}, v{u+7}
v_cvt_pk_bf16_f32 v{u}, v{u+4}, v{u+5}
ds_write_b32 v{vQLw}, v{u} offset:{QL}
""")
    setflag(F_Q)
    waitflags(group=F_Q, single=F_K)
    for s in range(4):
        a(f"ds_read_b128 {rng(qb+4*s,4)}, v{vQLr} offset:{QL + s*64}")
        for t in range(2):
            a(f"ds_read_b128 {rng(ka+16*t+4*s,4)}, v{vKr+s} offset:{t*4096}")
    sc = C32
    for s in range(4):
        a(f"s_waitcnt lgkmcnt({3*(3-s)})")
        for t in range(2):
            c = "0" if s == 0 else rng(sc+4*t,4)
            a(f"v_mfma_f32_16x16x32_bf16 {rng(sc+4*t,4)}, {rng(ka+16*t+4*s,4)}, {rng(qb+4*s,4)}, {c}")
    m = va(); mt = va(); pk = E8
    a(f"""
s_nop 6
v_max3_f32 v{m}, v{sc}, v{sc+1}, v{sc+2}
v_max3_f32 v{mt}, v{sc+3}, v{sc+4}, v{sc+5}
v_max3_f32 v{m}, v{m}, v{sc+6}, v{sc+7}
v_max_f32 v{m}, v{m}, v{mt}
v_mov_b32 v{mt}, v{m}
s_nop 1
v_permlane16_swap_b32 v{m}, v{mt}
s_nop 0
v_max_f32 v{m}, v{m}, v{mt}
v_mov_b32 v{mt}, v{m}
s_nop 1
v_permlane32_swap_b32 v{m}, v{mt}
s_nop 0
v_max_f32 v{m}, v{m}, v{mt}
v_mul_f32 v{m}, s{sCsc}, v{m}
""")
    for i in range(8):
        a(f"v_fma_f32 v{sc+i}, v{sc+i}, s{sCsc}, -v{m}")
    for i in range(8):
        a(f"v_exp_f32 v{sc+i}, v{sc+i}")
    a(f"""
s_mov_b64 exec, s[{sM4}:{sM4+1}]
ds_write_b32 v{vSw}, v{m} offset:{SL}
v_cvt_pk_bf16_f32 v{pk}, v{sc}, v{sc+1}
v_cvt_pk_bf16_f32 v{pk+1}, v{sc+2}, v{sc+3}
v_cvt_pk_bf16_f32 v{pk+2}, v{sc+4}, v{sc+5}
v_cvt_pk_bf16_f32 v{pk+3}, v{sc+6}, v{sc+7}
ds_write_b128 v{vPw}, {rng(pk,4)} offset:{PL}
s_mov_b64 exec, -1
""")
    setflag(F_P)
    waitflags(group=F_P)
    ST_("P written")
    pb = B16; sv = F8; vaop = A32; D = C32
    lk = va(16, 4)
    a(f"ds_read_b128 {rng(sv,4)}, v{vSr} offset:{SL}")
    for ks in range(4):
        a(f"ds_read_b128 {rng(pb+4*ks,4)}, v{vPr} offset:{PL + ks*256}")
    M = va(); ff = va(4, 2); L = va(); Rr = va(); lse = va()
    a(f"""
s_waitcnt lgkmcnt(4)
v_max3_f32 v{M}, v{sv}, v{sv+1}, v{sv+2}
v_max_f32 v{M}, v{M}, v{sv+3}
v_sub_f32 v{ff}, v{sv}, v{M}
v_sub_f32 v{ff+1}, v{sv+1}, v{M}
v_sub_f32 v{ff+2}, v{sv+2}, v{M}
v_sub_f32 v{ff+3}, v{sv+3}, v{M}
""")
    for ks in range(4):
        a(f"s_waitcnt lgkmcnt({3-ks})")
        a(f"v_mfma_f32_16x16x32_bf16 {rng(lk+4*ks,4)}, {rng(ones,4)}, {rng(pb+4*ks,4)}, 0")
        a(f"v_exp_f32 v{ff+ks}, v{ff+ks}")
    a(f"""
s_nop 4
v_mul_f32 v{L}, v{ff}, v{lk}
v_fmac_f32 v{L}, v{ff+1}, v{lk+4}
v_fmac_f32 v{L}, v{ff+2}, v{lk+8}
s_nop 0
v_fmac_f32 v{L}, v{ff+3}, v{lk+12}
v_rcp_f32 v{Rr}, v{L}
v_log_f32 v{lse}, v{L}
s_nop 0
v_mul_f32 v{ff}, v{ff}, v{Rr}
v_mul_f32 v{ff+1}, v{ff+1}, v{Rr}
v_mul_f32 v{ff+2}, v{ff+2}, v{Rr}
v_mul_f32 v{ff+3}, v{ff+3}, v{Rr}
v_add_f32 v{OS8+2}, v{lse}, v{M}
v_add_f32 v{OS8+6}, v{lse}, v{M}
s_mov_b32 s{sCnt}, {spin}
""")
    waitflags(single=F_V)
    ST_("V landed")
    def vread(ks):
        for tp in range(2):
            for e in range(2):
                a(f"ds_read_b64_tr_b16 {rng(vaop+8*ks+4*tp+2*e,2)}, v{vVr+tp} offset:{ks*8192 + e*4096}")
    def pv(ks):
        for tp in range(2):
            a(f"v_mfma_f32_16x16x32_bf16 {rng(D+8*ks+4*tp,4)}, {rng(vaop+8*ks+4*tp,4)}, {rng(pb+4*ks,4)}, 0")
    vread(0); vread(1); vread(2)
    a("s_waitcnt lgkmcnt(8)"); pv(0); vread(3)
    a("s_waitcnt lgkmcnt(8)"); pv(1)
    a("s_waitcnt lgkmcnt(4)"); pv(2)
    a("s_waitcnt lgkmcnt(0)"); pv(3)
    o = F8
    for ks in range(4):
        base = ff + (ks & ~1); sel = ks & 1; fr = f"v[{base}:{base+1}]"
        for tp in range(2):
            for h in range(2):
                dst = rng(o+4*tp+2*h, 2); src = rng(D+8*ks+4*tp+2*h, 2)
                if ks == 0: a(f"v_pk_mul_f32 {dst}, {src}, {fr} op_sel:[0,{sel}] op_sel_hi:[1,{sel}]")
                else: a(f"v_pk_fma_f32 {dst}, {src}, {fr}, {dst} op_sel:[0,{sel},0] op_sel_hi:[1,{sel},1]")
    og = OS8
    a(f"""
v_cvt_pk_bf16_f32 v{og}, v{o}, v{o+1}
v_cvt_pk_bf16_f32 v{og+1}, v{o+2}, v{o+3}
v_cvt_pk_bf16_f32 v{og+4}, v{o+4}, v{o+5}
v_cvt_pk_bf16_f32 v{og+5}, v{o+6}, v{o+7}
buffer_store_dwordx4 {rng(og,4)}, v{vOst}, s[28:31], s{sOB} offen
buffer_store_dwordx4 {rng(og+4,4)}, v{vOst}, s[28:31], s{sOB} offen offset:64
""")
    setflag(F_OI)
    stage["flush"] = QFL + OFL
    ST_("o published")
    gg = B16; wb = A32
    waitflags(group=F_OI)
    a(f"""
buffer_load_dwordx4 {rng(gg,4)}, v{vOG}, s[28:31], s{sOG} offen sc1
buffer_load_dwordx4 {rng(gg+4,4)}, v{vOG}, s[28:31], s{sOG} offen offset:2048 sc1
""")
    waitflags(single=F_W)
    for s in range(2):
        for tp in range(2):
            for hh in range(2):
                a(f"ds_read_b64_tr_b16 {rng(wb+8*s+4*tp+2*hh,2)}, v{vWOr+tp} offset:{s*8192 + hh*1024}")
    poll("o", [gg, gg+4], vOG, sOG, 0, [0, 2048], QFL + OFL)
    ST_("o gathered")
    e0 = va(); e1 = va(); u = A32 + 16; S = va(); oo = A32 + 24
    a(f"""
v_max_f32 v{M}, v{gg+2}, v{gg+6}
v_mov_b32 v{mt}, v{M}
v_lshlrev_b32 v{u}, 16, v{gg}
v_and_b32 v{u+1}, 0xffff0000, v{gg}
v_permlane16_swap_b32 v{M}, v{mt}
v_lshlrev_b32 v{u+2}, 16, v{gg+1}
v_max_f32 v{M}, v{M}, v{mt}
v_mov_b32 v{mt}, v{M}
v_and_b32 v{u+3}, 0xffff0000, v{gg+1}
v_lshlrev_b32 v{u+4}, 16, v{gg+4}
v_permlane32_swap_b32 v{M}, v{mt}
v_and_b32 v{u+5}, 0xffff0000, v{gg+4}
v_max_f32 v{M}, v{M}, v{mt}
v_lshlrev_b32 v{u+6}, 16, v{gg+5}
v_sub_f32 v{e0}, v{gg+2}, v{M}
v_sub_f32 v{e1}, v{gg+6}, v{M}
v_exp_f32 v{e0}, v{e0}
v_exp_f32 v{e1}, v{e1}
v_and_b32 v{u+7}, 0xffff0000, v{gg+5}
v_add_f32 v{S}, v{e0}, v{e1}
v_mul_f32 v{oo}, v{e0}, v{u}
v_mul_f32 v{oo+1}, v{e0}, v{u+1}
v_mov_b32 v{mt}, v{S}
v_mul_f32 v{oo+2}, v{e0}, v{u+2}
v_mul_f32 v{oo+3}, v{e0}, v{u+3}
v_permlane16_swap_b32 v{S}, v{mt}
v_fmac_f32 v{oo}, v{e1}, v{u+4}
v_fmac_f32 v{oo+1}, v{e1}, v{u+5}
v_add_f32 v{S}, v{S}, v{mt}
v_fmac_f32 v{oo+2}, v{e1}, v{u+6}
v_fmac_f32 v{oo+3}, v{e1}, v{u+7}
v_mov_b32 v{mt}, v{S}
v_permlane16_swap_b32 v{oo}, v{oo+1}
s_nop 0
v_permlane16_swap_b32 v{oo+2}, v{oo+3}
v_permlane32_swap_b32 v{S}, v{mt}
v_add_f32 v{oo}, v{oo}, v{oo+1}
v_add_f32 v{oo+2}, v{oo+2}, v{oo+3}
v_add_f32 v{S}, v{S}, v{mt}
s_nop 0
v_permlane32_swap_b32 v{oo}, v{oo+2}
v_rcp_f32 v{S}, v{S}
v_add_f32 v{oo}, v{oo}, v{oo+2}
v_mul_f32 v{oo}, v{oo}, v{S}
v_cvt_pk_bf16_f32 v{oo}, v{oo}, v{oo}
ds_write_b16 v{vOLw}, v{oo} offset:{OL}
""")
    setflag(F_O)
    a(f"s_add_u32 s{sT2}, s{sFG}, 65536\ns_mov_b32 s{sCnt}, {spin}")
    waitflags(group=F_O)
    ob = B16 + 8; y = C32; yg = E8
    a(f"""
ds_read_b128 {rng(ob,4)}, v{vOLr} offset:{OL}
ds_read_b128 {rng(ob+4,4)}, v{vOLr} offset:{OL+64}
""")
    for s in range(2):
        a(f"s_waitcnt lgkmcnt({1-s})")
        for tp in range(2):
            c = "0" if s == 0 else rng(y+4*tp,4)
            a(f"v_mfma_f32_16x16x32_bf16 {rng(y+4*tp,4)}, {rng(wb+8*s+4*tp,4)}, {rng(ob+4*s,4)}, {c}")
    a(f"v_mov_b32 v{E8+3}, s{sTag}\nv_mov_b32 v{E8+7}, s{sTag}\ns_nop 4")
    for tp in range(2):
        a(f"""v_perm_b32 v{yg+4*tp}, v{y+4*tp}, v{y+4*tp+3}, s{sP0}
v_perm_b32 v{yg+4*tp+1}, v{y+4*tp+1}, v{y+4*tp+3}, s{sP1}
v_perm_b32 v{yg+4*tp+2}, v{y+4*tp+2}, v{y+4*tp+3}, s{sP2}
buffer_store_dwordx4 {rng(yg+4*tp,4)}, v{vYst}, s[28:31], s{sYst} offen offset:{tp*64} sc1""")
    setflag(F_YI)
    ST_("y published")
    waitflags(group=F_YI)
    for x_ in QFL + OFL: a(x_)
    z = C32 + 24
    fgs = [A32 + 8*d for d in range(fd)]
    fg = C32 + 16
    a(f"s_cmp_lg_u32 {W}, 0\ns_cbranch_scc1 L_fin")
    def fload(r):
        a(f"buffer_load_dwordx4 {rng(r,4)}, v{vFG}, s[28:31], s{sFG} offen sc1")
        a(f"buffer_load_dwordx4 {rng(r+4,4)}, v{vFG}, s[28:31], s{sT2} offen sc1")
    for d in range(fd - 1): fload(fgs[d])
    a("L_fpoll:")
    for d in range(fd):
        fload(fgs[(d + fd - 1) % fd])
        r = fgs[d]
        a(f"""s_waitcnt vmcnt({2*(fd-1)})
v_cmp_ne_u32 vcc, s{sTag}, v{r+3}
v_cmp_ne_u32 s[{sa_tmp}:{sa_tmp+1}], s{sTag}, v{r+7}
s_or_b64 vcc, vcc, s[{sa_tmp}:{sa_tmp+1}]
s_cbranch_vccz L_fok{d}""")
    a(f"s_sub_u32 s{sCnt}, s{sCnt}, 1\ns_cbranch_scc0 L_fpoll\ns_branch L_fok0")
    for d in range(fd - 1, -1, -1):
        a(f"L_fok{d}:")
        for q in range(8): a(f"v_mov_b32 v{fg+q}, v{fgs[d]+q}")
        if d: a("s_branch L_fok")
    a("L_fok:")
    ST_("final gathered")
    a(f"""
v_perm_b32 v{z+3}, v{fg}, v{fg+1}, s{sU0}
v_perm_b32 v{z+7}, v{fg+4}, v{fg+5}, s{sU0}
v_add_f32 v{z}, v{fg}, v{fg+4}
v_perm_b32 v{z+3}, v{z+3}, v{fg+2}, s{sU1}
v_perm_b32 v{z+7}, v{z+7}, v{fg+6}, s{sU1}
v_add_f32 v{z+1}, v{fg+1}, v{fg+5}
v_add_f32 v{z+2}, v{fg+2}, v{fg+6}
v_add_f32 v{z+3}, v{z+3}, v{z+7}
""")
    for ctl in ("quad_perm:[2,3,0,1]", "row_ror:4", "row_ror:8"):
        for r in range(4):
            a(f"v_add_f32_dpp v{z+r}, v{z+r}, v{z+r} {ctl} row_mask:0xf bank_mask:0xf")
    a(f"""
s_nop 0
v_permlane16_swap_b32 v{z}, v{z+1}
v_permlane16_swap_b32 v{z+2}, v{z+3}
s_nop 0
v_add_f32 v{z}, v{z}, v{z+1}
v_add_f32 v{z+2}, v{z+2}, v{z+3}
s_nop 1
v_permlane32_swap_b32 v{z}, v{z+2}
s_nop 0
v_add_f32 v{z}, v{z}, v{z+2}
v_cvt_pk_bf16_f32 v{z}, v{z}, v{z}
buffer_store_short v{z}, v{vOut}, s[32:35], 0 offen
s_cmp_lg_u32 s2, 0
s_cbranch_scc1 L_fin
v_mov_b32 v{t0}, s{sTag}
v_mov_b32 v{t1}, 0
s_mov_b64 exec, 1
buffer_store_dword v{t0}, v{t1}, s[28:31], 0 offen sc1
s_mov_b64 exec, -1
L_fin:
""")
    a("s_branch L_tail" if stamp else "s_endpgm")
    for name, c in cold:
        for x_ in c: a(x_)
    a("; WARM_END")
    for c in colder:
        for x_ in c: a(x_)
    a("L_tail:")
    if stamp:
        a(f"s_mov_b32 s31, 0x20000\ns_mov_b32 s30, {WS_BYTES}")
    if amp >= 0:
        ST_("end")
        e = nst[0] - 1
        a(f"""
s_waitcnt lgkmcnt(0)
s_cmp_lg_u32 {W}, 0
s_cbranch_scc1 L_end
""")
        if ampglob:
            a(f"""
s_lshl_b32 s37, s2, 3
s_add_u32 s37, s37, {ST}
v_mov_b32 v{C32}, s{SB}
v_mov_b32 v{C32+1}, s{sTag}
v_mov_b32 v{t1}, 0
s_mov_b64 exec, 1
buffer_store_dwordx2 v[{C32}:{C32+1}], v{t1}, s[28:31], s37 offen sc1
s_mov_b64 exec, -1
""")
        a(f"""
s_cmp_lg_u32 s2, 0
s_cbranch_scc1 L_end
""")
        if ampglob:
            a(f"""
s_mov_b32 s37, {ST}
v_lshlrev_b32 v{t1}, 5, v{l}
L_ag:
buffer_load_dwordx4 v[{C32}:{C32+3}], v{t1}, s[28:31], s37 offen sc1
buffer_load_dwordx4 v[{C32+4}:{C32+7}], v{t1}, s[28:31], s37 offen offset:16 sc1
s_waitcnt vmcnt(0)
v_cmp_ne_u32 vcc, s{sTag}, v{C32+1}
v_cmp_ne_u32 s[40:41], s{sTag}, v{C32+3}
s_or_b64 vcc, vcc, s[40:41]
v_cmp_ne_u32 s[40:41], s{sTag}, v{C32+5}
s_or_b64 vcc, vcc, s[40:41]
v_cmp_ne_u32 s[40:41], s{sTag}, v{C32+7}
s_or_b64 vcc, vcc, s[40:41]
s_cbranch_vccnz L_ag
v_subrev_u32 v{C32}, s{SB}, v{C32}
v_subrev_u32 v{C32+2}, s{SB}, v{C32+2}
v_subrev_u32 v{C32+4}, s{SB}, v{C32+4}
v_subrev_u32 v{C32+6}, s{SB}, v{C32+6}
v_min_i32 v{C32}, v{C32}, v{C32+2}
v_min_i32 v{C32+4}, v{C32+4}, v{C32+6}
v_min_i32 v{C32}, v{C32}, v{C32+4}
s_nop 1
v_min_i32_dpp v{C32}, v{C32}, v{C32} row_ror:1 row_mask:0xf bank_mask:0xf
s_nop 1
v_min_i32_dpp v{C32}, v{C32}, v{C32} row_ror:2 row_mask:0xf bank_mask:0xf
s_nop 1
v_min_i32_dpp v{C32}, v{C32}, v{C32} row_ror:4 row_mask:0xf bank_mask:0xf
s_nop 1
v_min_i32_dpp v{C32}, v{C32}, v{C32} row_ror:8 row_mask:0xf bank_mask:0xf
s_nop 1
v_readlane_b32 s36, v{C32}, 0
v_readlane_b32 s37, v{C32}, 16
v_readlane_b32 s38, v{C32}, 32
v_readlane_b32 s39, v{C32}, 48
s_nop 3
s_min_i32 s36, s36, s37
s_min_i32 s38, s38, s39
s_min_i32 s36, s36, s38
s_sub_u32 s37, s{SB+2*amp}, s{SB}
s_sub_u32 s37, s37, s36
s_memrealtime s[40:41]
s_waitcnt lgkmcnt(0)
s_mul_i32 s37, s37, {ampk}
s_add_u32 s37, s37, s40
""")
        else:
            a(f"""
s_sub_u32 s37, s{SB+2*amp}, s{SB}
s_mul_i32 s37, s37, {ampk}
s_add_u32 s37, s37, s{SB+2*e}
""")
        a(f"""
L_amp:
s_memrealtime s[40:41]
s_waitcnt lgkmcnt(0)
s_cmp_lt_u32 s40, s37
s_cbranch_scc1 L_amp
""")
    elif stamp:
        ST_("end")
        n = nst[0]
        a(f"""
s_waitcnt lgkmcnt(0) vmcnt(0)
s_mul_i32 s4, s2, 8
s_add_u32 s4, s4, s3
s_lshl_b32 s4, s4, 6
s_add_u32 s4, s4, {ST}
v_mov_b32 v{t1}, 0
s_mov_b64 exec, 1
""")
        for i in range(n):
            a(f"v_mov_b32 v{t0}, s{SB+2*i}\nbuffer_store_dword v{t0}, v{t1}, s[28:31], s4 offen offset:{4*i}\ns_nop 0")
    a("L_end:\ns_endpgm")
    lines = a.L
    nh = 0
    if warm:
        lines, nh, have = hops.insert(lines, nparts)
        assert have == nparts, (have, nparts)
    body = "\n".join(lines) + "\n"
    assert sa.hi <= SB and ls.hi <= SB, (sa.hi, ls.hi)
    nv = max(va.hi, lv.hi)
    s = header([f"; @launch grid=(256,1,1) block=(320,1,1) lds={LDS_BYTES}"]) + kernel_begin(KNAME) + body + RODATA + descriptor(KNAME, nv, 102 if stamp else max(sa.hi, ls.hi))
    errs = haz.check(body)
    for e in errs: print("HAZ", e)
    return s, nv, sa.hi, nh, stn
if __name__ == "__main__":
    out = sys.argv[1]
    kw = {}
    for x in sys.argv[2:]:
        k, v = x.split("=")
        if k in ("warm", "prio", "holdwo", "rot", "rotq"): kw[k] = (v == "1")
        elif k == "nt": kw[k] = (" " + v if v else "")
        else: kw[k] = int(v)
    s, nv, ns, nh, stn = gen(**kw)
    open(out, "w").write(s)
    print("vgprs", nv, "sgprs", ns, "hops", nh, "lds", LDS_BYTES, stn)
```

```python
import sys, struct
sys.path.insert(0, "my")
from ag import *
import haz, hops

QF = 0x10000
OF = 0x80000
OX = 0x100000
SOFF = 0x200000
ST = 0x400000
WS_BYTES = 268435456
QL = 0
PL = QL + 1280
SL = PL + 1024
OL = SL + 64
FL = 3136
JK = FL + 160
XL = 3840; WQ = XL + 1024; KL = WQ + 16384; VL = KL + 32768
import os
if os.environ.get('ALIAS', '0') == '1':
    WO = WQ; LDS_BYTES = VL + 32768
else:
    WO = VL + 32768; LDS_BYTES = WO + 16384
assert OL + 768 <= FL and JK + 416 <= XL and XL % 256 == 0 and WQ % 256 == 0
F_Q, F_P, F_O, F_GI, F_QI, F_GOK, F_OI, F_YI, F_GO, F_K, F_V, F_W = 0, 16, 32, 48, 64, 80, 96, 112, 128, 132, 136, 140
CSC = 0.08838834764831845 * 1.4426950408889634
def f32(x): return "0x%08x" % struct.unpack("<I", struct.pack("<f", x))[0]
class V:
    def __init__(s, n=0): s.n = n; s.hi = n
    def __call__(s, cnt=1, align=1):
        s.n = (s.n + align - 1) // align * align
        r = s.n; s.n += cnt; s.hi = max(s.hi, s.n)
        return r
def rng(r, n): return f"v[{r}:{r+n-1}]"
OOB = "0x7ffffff0"

def gen(stamp=False, nt=" nt", hold=0, kx=32, nmid=32, lgo=60, holdwo=False, rot=True, rotq=True, fd=1, wthr=2000, n3=0, n2=0, N=24, spin=100000, nf=64, amp=-1, ampk=10, ampglob=0, warm=True, pt=1, nparts=4, prio=True, step=2):
    if amp >= 0: stamp = True
    a = A(); va = V(1); sa = V(36)
    l = va(); t0 = va(); t1 = va(); t2 = va(); t3 = va()
    nst = [0]; stn = []
    SB = 72
    def ST_(label):
        if stamp and (stamp != 2 or label in ('entry', 'end')):
            i = nst[0]; nst[0] += 1; stn.append(label)
            assert i < 15
            a(f"s_memrealtime s[{SB+2*i}:{SB+1+2*i}]")
    W, G, R, B, C = "s3", "s4", "s5", "s6", "s7"
    sT = sa(); sT2 = sa(); sWin = sa()
    a(f"""
s_cmp_ge_u32 s2, 256
s_cbranch_scc1 L_end
s_load_dwordx2 s[20:21], s[0:1], 24
s_load_dwordx2 s[8:9], s[0:1], 0
s_load_dwordx2 s[12:13], s[0:1], 8
s_load_dwordx2 s[28:29], s[0:1], 56
s_load_dwordx2 s[16:17], s[0:1], 16
s_load_dwordx2 s[24:25], s[0:1], 32
s_load_dwordx2 s[32:33], s[0:1], 40
""")
    ST_("entry")
    a(f"""
v_lshrrev_b32 v{t0}, 6, v0
v_and_b32 v{l}, 63, v0
s_and_b32 {G}, s2, 7
v_readfirstlane_b32 {W}, v{t0}
s_lshr_b32 {R}, s2, 3
s_lshr_b32 {B}, {R}, 3
s_and_b32 {C}, {R}, 7
s_mov_b32 s23, 0x20000
v_lshrrev_b32 v{t0}, 4, v{l}
v_and_b32 v{t1}, 15, v{l}
s_cmp_lt_u32 {W}, 4
s_cbranch_scc1 L_compute
""")
    lv = V(va.n); ls = V(sa.n)
    vWQ = lv(2); vX = lv(); vK = lv(4); vV = lv(2); vWO = lv(2); vLF = lv(); vOne = lv()
    sWQ = ls(); sX = ls(); sK = ls(); sWO = ls(); lT = ls(); sWQb0 = ls()
    if prio: a("s_setprio 2")
    a(f"""
s_mov_b32 s22, 0x400000
v_and_b32 v{t2}, 7, v{l}
v_lshlrev_b32 v{t3}, 1, v{t0}
v_and_b32 v{vX}, 2, v{t3}
v_xor_b32 v{t2}, v{t2}, v{vX}
v_lshlrev_b32 v{t2}, 4, v{t2}
v_lshrrev_b32 v{vX}, 3, v{l}
v_lshl_add_u32 v{vWQ}, v{vX}, 13, v{t2}
v_xor_b32 v{vWQ+1}, 64, v{vWQ}
s_lshl_b32 s{sWQb0}, {G}, 3
s_add_u32 s{sWQb0}, s{sWQb0}, {C}
s_lshl_b32 s{sWQb0}, s{sWQb0}, 7
s_lshl_b32 s{lT}, {B}, 20
s_add_u32 s{sWQb0}, s{sWQb0}, s{lT}
s_mov_b32 s11, s23
s_movk_i32 s10, 0x1000
s_mov_b32 s15, s23
s_mov_b32 s14, 0x2000000
; x voffset: (l>>4)*1024 + ((l&15) ^ (4*(l>>4)))*16
v_lshlrev_b32 v{t2}, 2, v{t0}
v_xor_b32 v{t2}, v{t1}, v{t2}
v_lshlrev_b32 v{t2}, 4, v{t2}
v_lshl_add_u32 v{vX}, v{t0}, 10, v{t2}
s_lshl_b32 s{sX}, {B}, 8
s_waitcnt lgkmcnt(0)
""")
    seq = []
    sRho = ls(); sJ = ls(); sWQb = sWQb0
    for i in range(16):
        pre = []
        if i % 4 == 0:
            j_ = i // 4
            if rotq:
                pre += [f"s_add_u32 s{sJ}, {B}, {j_}", f"s_and_b32 s{sJ}, s{sJ}, 3", f"s_lshl_b32 s{lT}, s{sJ}, 18", f"s_add_u32 s{sWQ}, s{sWQb}, s{lT}",
                        f"s_lshl_b32 s{lT}, s{sJ}, 12", f"s_add_u32 m0, s{lT}, {WQ}"]
            else:
                pre += [f"s_add_u32 s{sWQ}, s{sWQb}, {j_ << 18}", f"s_mov_b32 m0, {WQ + j_*4096}"]
            pre.append("s_nop 0")
        else:
            pre.append(f"s_add_u32 s{sWQ}, s{sWQ}, {65536 - 1024}")
        seq.append((pre, f"buffer_load_dwordx4 v{vWQ + (i & 1)}, s[20:23], s{sWQ} offen offset:{(i%4)*1024}{nt} lds"))
    seq.append(([f"s_movk_i32 m0, {XL}", "s_nop 0"], f"buffer_load_dwordx4 v{vX}, s[8:11], s{sX} offen lds"))
    kpre = f"""; K voffsets: (l>>4)*256 + ((l&15)^(l>>4))*16  ^ (64*i)
v_xor_b32 v{t2}, v{t1}, v{t0}
v_lshlrev_b32 v{t2}, 4, v{t2}
v_lshl_add_u32 v{vK}, v{t0}, 8, v{t2}
v_xor_b32 v{vK+1}, 64, v{vK}
v_xor_b32 v{vK+2}, 0x80, v{vK}
v_xor_b32 v{vK+3}, 0xc0, v{vK}
; flag address vgpr: lane0 -> FL, else JK + 4*l
v_lshlrev_b32 v{t2}, 2, v{l}
v_add_u32 v{t2}, {JK}, v{t2}
v_cmp_eq_u32 vcc, 0, v{l}
v_mov_b32 v{vLF}, {FL}
v_mov_b32 v{vOne}, 1
v_cndmask_b32 v{vLF}, v{t2}, v{vLF}, vcc
; window base = (b*8+g)<<20 + 3072*256 + c*32768
s_lshl_b32 s{sWin}, {B}, 3
s_add_u32 s{sWin}, s{sWin}, {G}
s_lshl_b32 s{sWin}, s{sWin}, 5
s_add_u32 s{sWin}, s{sWin}, {C}
s_add_u32 s{sWin}, s{sWin}, 24
s_lshl_b32 s{sWin}, s{sWin}, 15
; rho*4096 : rho = (g + 2b) & 7
s_lshl_b32 s{sRho}, {B}, 1
s_add_u32 s{sRho}, s{sRho}, {G}
s_and_b32 s{sRho}, s{sRho}, {7 if rot else 0}
s_lshl_b32 s{sRho}, s{sRho}, 12""".split("\n")
    def grp(j_, ldsbase):
        return [f"s_add_u32 s{sJ}, s{sRho}, {j_*4096}", f"s_and_b32 s{sJ}, s{sJ}, 0x7fff", f"s_add_u32 m0, s{sJ}, {ldsbase}", f"s_add_u32 s{sK}, s{sWin}, s{sJ}"]
    for i in range(32):
        pre = list(kpre) if i == 0 else []
        if i % 4 == 0: pre += grp(i // 4, KL)
        seq.append((pre, f"buffer_load_dwordx4 v{vK+i%4}, s[12:15], s{sK} offen offset:{(i%4)*1024}{nt} lds"))
    vpre = f"""s_mov_b32 s19, s23
s_mov_b32 s18, s14
; V voffset: (l>>4)*256 + ((l&15) ^ ((l>>4)<<1))*16 ; odd: ^128 ; WO: (l>>4)*1024 + same piece
v_xor_b32 v{t2}, v{t1}, v{t3}
v_lshlrev_b32 v{t2}, 4, v{t2}
v_lshl_add_u32 v{vV}, v{t0}, 8, v{t2}
v_xor_b32 v{vV+1}, 0x80, v{vV}
v_lshl_add_u32 v{vWO}, v{t0}, 10, v{t2}
v_xor_b32 v{vWO+1}, 0x80, v{vWO}
s_mov_b32 s27, s23
s_mov_b32 s26, s22
; WO soff = p<<16 + cg*256 ; p = g*8 + r/4 ; cg = r&3
s_lshr_b32 s{lT}, {R}, 2
s_lshl_b32 s{sWO}, {G}, 3
s_add_u32 s{sWO}, s{sWO}, s{lT}
s_lshl_b32 s{sWO}, s{sWO}, 8
s_and_b32 s{lT}, {R}, 3
s_add_u32 s{sWO}, s{sWO}, s{lT}
s_lshl_b32 s{sWO}, s{sWO}, 8""".split("\n")
    for i in range(32):
        pre = list(vpre) if i == 0 else []
        if i % 4 == 0: pre += grp(i // 4, VL)
        seq.append((pre, f"buffer_load_dwordx4 v{vV+(i&1)}, s[16:19], s{sK} offen offset:{(i%4)*1024}{nt} lds"))
    for i in range(16):
        pre = []
        if i == 0: pre += [f"s_mov_b32 m0, {WO}", "s_nop 0"]
        elif i % 4 == 0: pre.append("s_add_u32 m0, m0, 4096")
        if i: pre.append(f"s_add_u32 s{sWO}, s{sWO}, {4096 - 1024 if i % 4 else 4096 + 3072}")
        seq.append((pre, f"buffer_load_dwordx4 v{vWO+((i>>1)&1)}, s[24:27], s{sWO} offen offset:{(i%4)*1024}{nt} lds"))
    T = len(seq); assert T == 97
    def emit(k):
        pre, ld = seq[k]
        for p in pre: a(p)
        a(ld)
    for k in range(17): emit(k)
    ST_("L: wq issued")
    pre17, ld17 = seq[17]
    for p in pre17: a(p)
    if hold: a(f"s_waitcnt vmcnt({17 - hold})")
    a(ld17)
    n0 = 17 + kx
    for k in range(18, n0): emit(k)
    lfl = lv(4, 4)
    a(f"v_mov_b32 v{t2}, {FL}")
    a(f"s_waitcnt vmcnt({n0 - 17})\ns_barrier")
    ST_("L: wq landed")
    def lwait(name, off):
        a(f"""L_{name}:
ds_read_b128 v[{lfl}:{lfl+3}], v{t2} offset:{off}
s_waitcnt lgkmcnt(0)
v_and_b32 v{lfl}, v{lfl}, v{lfl+1}
v_and_b32 v{lfl+2}, v{lfl+2}, v{lfl+3}
v_and_b32 v{lfl}, v{lfl}, v{lfl+2}
v_cmp_eq_u32 vcc, 0, v{lfl}
s_cbranch_vccnz L_{name}""")
    vFA = lv()
    a(f"v_mov_b32 v{vFA}, {FL}")
    def lwait(name, off):
        a(f"""L_{name}:
ds_read_b128 v[{lfl}:{lfl+3}], v{vFA} offset:{off}
s_waitcnt lgkmcnt(0)
v_and_b32 v{lfl}, v{lfl}, v{lfl+1}
v_and_b32 v{lfl+2}, v{lfl+2}, v{lfl+3}
v_and_b32 v{lfl}, v{lfl}, v{lfl+2}
v_cmp_eq_u32 vcc, 0, v{lfl}
s_cbranch_vccnz L_{name}""")
    lwait("qi", F_QI)
    n1 = 49 + nmid
    for k in range(n0, n1):
        if n2: a(f"s_waitcnt vmcnt({n2 - 1})")
        emit(k)
    assert lgo >= 49 and lgo <= n1 and n1 <= T
    a(f"s_waitcnt vmcnt({n1 - lgo})")
    a(f"ds_write_b32 v{vLF}, v{vOne} offset:{F_GO}")
    a(f"ds_write_b32 v{vLF}, v{vOne} offset:{F_K}")
    lwait("gi", F_GI)
    for k in range(n1, T):
        if k == 81 and holdwo: lwait("gok", F_GOK)
        if n3: a(f"s_waitcnt vmcnt({n3 - 1})")
        emit(k)
    for cnt, f in ((81, F_V), (97, F_W)):
        a(f"s_waitcnt vmcnt({T - cnt})\nds_write_b32 v{vLF}, v{vOne} offset:{f}")
    ST_("L: all landed")
    if stamp: a("s_branch L_fin")
    else: a("s_endpgm")
    a("L_compute:")
    g = va(); n16 = va(); n4 = va()
    sQB = sa(); sOB = sa(); sEp = sa(); sTag = sa(); vPT = va()
    a(f"""
s_mov_b32 s31, s23
s_mov_b32 s30, {WS_BYTES}
s_mov_b32 s35, s23
s_movk_i32 s34, 0x1000
s_lshl_b32 s{sQB}, {G}, 4
s_add_u32 s{sQB}, s{sQB}, {B}
s_lshl_b32 s{sQB}, s{sQB}, 11
s_lshl_b32 s{sT}, {C}, 8
s_add_u32 s{sQB}, s{sQB}, s{sT}
s_add_u32 s{sQB}, s{sQB}, {QF}
s_lshl_b32 s{sOB}, {B}, 3
s_add_u32 s{sOB}, s{sOB}, {G}
s_lshl_b32 s{sOB}, s{sOB}, 5
s_add_u32 s{sOB}, s{sOB}, {C}
s_lshl_b32 s{sOB}, s{sOB}, 9
s_add_u32 s{sOB}, s{sOB}, {OF}
""")
    vPTa = va()
    if pt in (1, 3, 7):
        a(f"""
s_mul_i32 s{sT}, {W}, 6
v_add_u32 v{t3}, s{sT}, v{l}
v_lshrrev_b32 v{t0}, 1, v{t3}
v_lshlrev_b32 v{t0}, 13, v{t0}
v_and_b32 v{t1}, 1, v{t3}
v_lshl_or_b32 v{t0}, v{t1}, 7, v{t0}
v_add_u32 v{t0}, s{sQB}, v{t0}
v_subrev_u32 v{t1}, 8, v{t3}
v_lshrrev_b32 v{t2}, 2, v{t1}
v_lshlrev_b32 v{t2}, 12, v{t2}
v_and_b32 v{t1}, 3, v{t1}
v_lshl_or_b32 v{t2}, v{t1}, 7, v{t2}
v_add_u32 v{t2}, s{sOB}, v{t2}
v_cmp_gt_u32 vcc, 8, v{t3}
v_mov_b32 v{t3}, {OOB}
s_nop 0
v_cndmask_b32 v{t0}, v{t2}, v{t0}, vcc
v_cmp_gt_u32 vcc, 6, v{l}
s_waitcnt lgkmcnt(0)
s_load_dword s{sEp}, s[28:29], 0
v_cndmask_b32 v{vPTa}, v{t3}, v{t0}, vcc
""")
        if pt != 7: a(f"buffer_load_dword v{vPT}, v{vPTa}, s[28:31], 0 offen{' nt' if pt == 3 else ''}")
    else:
        a(f"s_waitcnt lgkmcnt(0)\ns_load_dword s{sEp}, s[28:29], 0")
        if pt in (10, 11):
            sD = sa(); sO1 = sa(); sO2 = sa()
            a(f"s_lshl_b32 s{sT}, {W}, 13\ns_add_u32 s{sO1}, s{sQB}, s{sT}\ns_lshl_b32 s{sT}, {W}, 12\ns_add_u32 s{sO2}, s{sOB}, s{sT}")
            stp = 64 if pt == 10 else 128
            ypt = [f"s_load_dword s{sD}, s[28:29], s{sO1} offset:{o}" for o in range(0, 256, stp)] + [f"s_load_dword s{sD}, s[28:29], s{sO2} offset:{o}" for o in range(0, 512, stp)]
        if pt in (8, 9):
            sD = sa(); sO1 = sa()
            a(f"s_lshl_b32 s{sT}, {W}, 13\ns_add_u32 s{sO1}, s{sQB}, s{sT}")
            for o in range(0, 256, 64): a(f"s_load_dword s{sD}, s[28:29], s{sO1} offset:{o}")
            a(f"s_lshl_b32 s{sT}, {W}, 12\ns_add_u32 s{sO1}, s{sOB}, s{sT}")
            for o in range(0, 512, 64): a(f"s_load_dword s{sD}, s[28:29], s{sO1} offset:{o}")
            if pt == 9:
                a(f"""s_and_b32 s{sO1}, {R}, 3
s_lshl_b32 s{sO1}, s{sO1}, 6
s_lshl_b32 s{sT}, {G}, 3
s_add_u32 s{sO1}, s{sO1}, s{sT}
s_lshr_b32 s{sT}, {R}, 2
s_add_u32 s{sO1}, s{sO1}, s{sT}
s_lshl_b32 s{sO1}, s{sO1}, 2
s_add_u32 s{sO1}, s{sO1}, {W}
s_lshl_b32 s{sO1}, s{sO1}, 9
s_add_u32 s{sO1}, s{sO1}, {OX + SOFF}""")
                ypt = [f"s_load_dword s{sD}, s[28:29], s{sO1} offset:{o}" for o in range(0, 512, 64)]
        if pt in (2, 4, 6):
            a(f"""
s_lshl_b32 s{sT}, {W}, 12
s_add_u32 s{sT}, s{sT}, s{sOB}
v_lshlrev_b32 v{t0}, 7, v{l}
v_add_u32 v{t0}, s{sT}, v{t0}
v_cmp_gt_u32 vcc, 4, v{l}
v_mov_b32 v{t3}, {OOB}
s_nop 0
v_cndmask_b32 v{vPTa}, v{t3}, v{t0}, vcc
""")
    if warm:
        a("s_mov_b64 exec, 0")
        for p in range(1, nparts):
            a(f"s_cmp_eq_u32 {W}, {p}\ns_cbranch_scc1 HOP_P{p}")
        a("s_branch HOP_P0\nL_warm_done:\ns_mov_b64 exec, -1")
    a("; WARM_START")
    sP = sa(); sCG = sa(); sR4 = sa()
    vXr = va(4); vWQr = va(); vKr = va(4); vVr = va(2); vWOr = va(2)
    vQst = va(); vG = va(); sG = sa(); vQLw = va(); vQLr = va()
    vPw = va(); vPr = va(); vSw = va(); vSr = va()
    vOst = va(); vOG = va(); sOG = sa(); vOLw = va(); vOLr = va()
    vYst = va(); sYst = sa(); vFG = va(); sFG = sa(); vOut = va()
    vFw = va(); vFr = va(); vOne_c = va()
    sCsc = sa(); sP0 = sa(); sP1 = sa(); sP2 = sa(); sU0 = sa(); sU1 = sa(); sM4 = sa(2, 2); sCnt = sa()
    a(f"""
v_lshrrev_b32 v{g}, 4, v{l}
v_and_b32 v{n16}, 15, v{l}
v_and_b32 v{n4}, 3, v{l}
v_lshlrev_b32 v{t2}, 2, v{l}
v_mov_b32 v{t3}, 0
ds_write_b32 v{t2}, v{t3} offset:{FL}
v_add_u32 v{t2}, {JK}, v{t2}
s_lshl_b32 s{sT}, {W}, 2
s_add_u32 s{sT}, s{sT}, {FL}
v_mov_b32 v{vFw}, s{sT}
v_cmp_eq_u32 vcc, 0, v{l}
v_mov_b32 v{vFr}, {FL}
v_mov_b32 v{vOne_c}, 1
v_cndmask_b32 v{vFw}, v{t2}, v{vFw}, vcc
; p = g*8 + r/4 ; cg = r&3
s_lshr_b32 s{sR4}, {R}, 2
s_lshl_b32 s{sP}, {G}, 3
s_add_u32 s{sP}, s{sP}, s{sR4}
s_and_b32 s{sCG}, {R}, 3
v_lshlrev_b32 v{t2}, 2, v{n4}
v_xor_b32 v{t2}, v{g}, v{t2}
v_lshlrev_b32 v{t2}, 4, v{t2}
v_lshl_add_u32 v{t2}, v{n4}, 8, v{t2}
v_add_u32 v{vXr}, {XL}, v{t2}
v_xor_b32 v{vXr+1}, 64, v{vXr}
v_xor_b32 v{vXr+2}, 0x80, v{vXr}
v_xor_b32 v{vXr+3}, 0xc0, v{vXr}
v_bfe_u32 v{t0}, v{l}, 2, 2
v_lshl_add_u32 v{t2}, v{g}, 3, v{t0}
v_lshlrev_b32 v{t2}, 7, v{t2}
v_lshl_add_u32 v{t2}, v{n4}, 3, v{t2}
v_lshrrev_b32 v{t3}, 1, v{t0}
v_and_b32 v{t1}, 1, v{g}
v_lshl_or_b32 v{t3}, v{t1}, 1, v{t3}
v_xor_b32 v{t3}, {W}, v{t3}
v_lshl_add_u32 v{t2}, v{t3}, 5, v{t2}
v_add_u32 v{vWQr}, {WQ}, v{t2}
s_lshl_b32 s{sT}, {W}, 13
s_add_u32 s{sT}, s{sT}, {KL}
v_xor_b32 v{t2}, v{g}, v{n16}
v_lshlrev_b32 v{t2}, 4, v{t2}
v_lshl_add_u32 v{t2}, v{n16}, 8, v{t2}
v_add_u32 v{vKr}, s{sT}, v{t2}
v_xor_b32 v{vKr+1}, 64, v{vKr}
v_xor_b32 v{vKr+2}, 0x80, v{vKr}
v_xor_b32 v{vKr+3}, 0xc0, v{vKr}
v_lshl_add_u32 v{t2}, v{g}, 2, v{t0}
v_lshlrev_b32 v{t2}, 8, v{t2}
v_lshl_add_u32 v{t2}, v{n4}, 3, v{t2}
v_lshl_or_b32 v{t3}, v{t1}, 2, v{t0}
s_lshl_b32 s{sT}, {W}, 1
v_xor_b32 v{t3}, s{sT}, v{t3}
v_lshl_add_u32 v{t2}, v{t3}, 5, v{t2}
v_add_u32 v{vVr}, {VL}, v{t2}
v_xor_b32 v{vVr+1}, 32, v{vVr}
v_lshl_add_u32 v{t2}, v{g}, 3, v{t0}
v_lshlrev_b32 v{t2}, 8, v{t2}
v_lshl_add_u32 v{t2}, v{n4}, 3, v{t2}
v_lshl_add_u32 v{t2}, v{t3}, 5, v{t2}
v_add_u32 v{vWOr}, {WO}, v{t2}
v_xor_b32 v{vWOr+1}, 32, v{vWOr}
v_cmp_gt_u32 vcc, 4, v{n16}
v_mov_b32 v{t3}, {OOB}
s_lshl_b32 s{sT}, {W}, 6
v_lshlrev_b32 v{t2}, 4, v{g}
v_add_u32 v{t0}, s{sT}, v{t2}
v_lshl_add_u32 v{t0}, v{n16}, 13, v{t0}
v_cndmask_b32 v{vQst}, v{t3}, v{t0}, vcc
s_lshl_b32 s{sT}, {W}, 7
v_add_u32 v{t2}, s{sT}, v{t2}
v_lshl_add_u32 v{t0}, v{n16}, 12, v{t2}
v_cndmask_b32 v{vOst}, v{t3}, v{t0}, vcc
v_lshl_add_u32 v{t0}, v{n16}, 9, v{t2}
v_cndmask_b32 v{vYst}, v{t3}, v{t0}, vcc
v_lshrrev_b32 v{t0}, 5, v{l}
v_and_b32 v{t1}, 31, v{l}
v_lshlrev_b32 v{t2}, 4, v{t1}
v_lshl_add_u32 v{vG}, v{t0}, 12, v{t2}
s_lshl_b32 s{sG}, {G}, 2
s_add_u32 s{sG}, s{sG}, {B}
s_lshl_b32 s{sG}, s{sG}, 4
s_add_u32 s{sG}, s{sG}, {W}
s_lshl_b32 s{sG}, s{sG}, 9
s_add_u32 s{sG}, s{sG}, {QF}
s_mul_i32 s{sT}, {W}, 320
v_lshlrev_b32 v{t2}, 3, v{t1}
v_lshl_add_u32 v{t2}, v{t0}, 2, v{t2}
v_add_u32 v{vQLw}, s{sT}, v{t2}
v_mul_u32_u24 v{t2}, 320, v{n4}
v_lshl_add_u32 v{vQLr}, v{g}, 4, v{t2}
v_lshlrev_b32 v{t2}, 6, v{n4}
v_lshl_add_u32 v{vPr}, v{g}, 4, v{t2}
s_lshl_b32 s{sT}, {W}, 8
v_add_u32 v{vPw}, s{sT}, v{vPr}
v_lshlrev_b32 v{vSr}, 4, v{n4}
s_lshl_b32 s{sT}, {W}, 2
v_add_u32 v{vSw}, s{sT}, v{vSr}
v_lshlrev_b32 v{t2}, 9, v{g}
v_lshl_add_u32 v{vOG}, v{n16}, 4, v{t2}
s_lshl_b32 s{sOG}, {W}, 3
s_add_u32 s{sOG}, s{sOG}, {G}
s_lshl_b32 s{sOG}, s{sOG}, 2
s_add_u32 s{sOG}, s{sOG}, {B}
s_lshl_b32 s{sOG}, s{sOG}, 4
s_and_b32 s{sT}, s{sR4}, 1
s_add_u32 s{sOG}, s{sOG}, s{sT}
s_lshl_b32 s{sOG}, s{sOG}, 8
s_add_u32 s{sOG}, s{sOG}, {OF}
s_mul_i32 s{sT}, {W}, 192
v_lshlrev_b32 v{t2}, 3, v{n16}
v_lshl_add_u32 v{t2}, v{g}, 1, v{t2}
v_add_u32 v{vOLw}, s{sT}, v{t2}
v_mul_u32_u24 v{t2}, 192, v{n4}
v_lshl_add_u32 v{vOLr}, v{g}, 4, v{t2}
s_lshl_b32 s{sYst}, s{sCG}, 6
s_add_u32 s{sYst}, s{sYst}, s{sP}
s_lshl_b32 s{sYst}, s{sYst}, 11
s_add_u32 s{sYst}, s{sYst}, {OX + SOFF}
v_lshrrev_b32 v{t0}, 1, v{l}
v_and_b32 v{t1}, 1, v{l}
v_lshlrev_b32 v{t2}, 4, v{t1}
v_lshl_add_u32 v{vFG}, v{t0}, 11, v{t2}
s_lshl_b32 s{sFG}, s{sCG}, 12
s_add_u32 s{sFG}, s{sFG}, s{sP}
s_lshl_b32 s{sFG}, s{sFG}, 5
s_add_u32 s{sFG}, s{sFG}, {OX + SOFF}
s_lshr_b32 s{sT}, s{sP}, 4
s_lshl_b32 s{sT}, s{sT}, 2
s_add_u32 s{sT}, s{sT}, s{sCG}
s_lshl_b32 s{sT}, s{sT}, 4
s_and_b32 s{sT2}, s{sP}, 15
s_add_u32 s{sT}, s{sT}, s{sT2}
s_lshl_b32 s{sT}, s{sT}, 4
v_lshlrev_b32 v{t2}, 3, v{t1}
v_lshl_add_u32 v{t2}, v{g}, 1, v{t2}
v_add_u32 v{t2}, s{sT}, v{t2}
v_cmp_gt_u32 vcc, 2, v{n16}
s_mov_b32 s{sCsc}, {f32(CSC)}
s_mov_b32 s{sP0}, 0x07060503
v_cndmask_b32 v{vOut}, v{t3}, v{t2}, vcc
s_mov_b32 s{sP1}, 0x07060502
s_mov_b32 s{sP2}, 0x07060501
s_mov_b32 s{sU0}, 0x04000c0c
s_mov_b32 s{sU1}, 0x0706000c
s_mov_b32 s{sM4}, 0x000f000f
s_mov_b32 s{sM4+1}, 0x000f000f
s_waitcnt lgkmcnt(0)
s_mul_i32 s{sTag}, s{sEp}, 1664525
s_add_u32 s{sTag}, s{sTag}, 1013904223
""")
    A32 = va(32, 4); B16 = va(16, 4); C32 = va(32, 4); E8 = va(8, 4); F8 = va(8, 4)
    ones = va(4, 4); fl = va(4, 4); fl1 = va(); QS4 = va(4, 4); OS8 = va(8, 4); sQS = sa(); sOS = sa(); sWcN = sa.n
    a(f"""
v_mov_b32 v{ones}, 0x3f803f80
v_mov_b32 v{ones+1}, 0x3f803f80
v_mov_b32 v{ones+2}, 0x3f803f80
v_mov_b32 v{ones+3}, 0x3f803f80
v_mov_b32 v{QS4+3}, s{sTag}
v_mov_b32 v{OS8+3}, s{sTag}
v_mov_b32 v{OS8+7}, s{sTag}
v_mov_b32 v{E8+3}, s{sTag}
v_mov_b32 v{E8+7}, s{sTag}
s_add_u32 s{sQS}, s{sQB}, {SOFF}
s_add_u32 s{sOS}, s{sOB}, {SOFF}
s_mov_b32 s{sCnt}, {spin}
s_movk_i32 s{sWcN}, {wthr}
""")
    if pt == 7: a(f"buffer_load_dword v{vPT}, v{vPTa}, s[28:31], 0 offen")
    ST_("addr done")
    lab = [0]
    def setflag(off): a(f"ds_write_b32 v{vFw}, v{vOne_c} offset:{off}")
    colder = []
    sWc = sa()
    stage = {"flush": []}
    def waitflags(group=None, single=None):
        lab[0] += 1; L = f"L_wf{lab[0]}"
        a(f"{L}:")
        if group is not None: a(f"ds_read_b128 {rng(fl,4)}, v{vFr} offset:{group}")
        if single is not None: a(f"ds_read_b32 v{fl1}, v{vFr} offset:{single}")
        a("s_sub_u32 s%d, s%d, 1" % (sWc, sWc))
        a(f"s_cbranch_scc1 {L}f")
        a("s_waitcnt lgkmcnt(0)")
        if group is not None:
            a(f"v_and_b32 v{fl}, v{fl}, v{fl+1}\nv_and_b32 v{fl+2}, v{fl+2}, v{fl+3}")
            if single is not None: a(f"v_and_b32 v{fl}, v{fl}, v{fl1}")
            a(f"v_and_b32 v{fl}, v{fl}, v{fl+2}")
            r = fl
        else: r = fl1
        a(f"v_cmp_eq_u32 vcc, 0, v{r}\ns_cbranch_vccnz {L}")
        colder.append([f"{L}f:"] + list(stage["flush"]) + [f"s_movk_i32 s{sWc}, {wthr}", "s_waitcnt lgkmcnt(0)", f"s_branch {L}"])
    QFL = [f"buffer_store_dwordx4 {rng(QS4,4)}, v{vQst}, s[28:31], s{sQS} offen sc1"]
    OFL = [f"buffer_store_dwordx4 {rng(OS8,4)}, v{vOst}, s[28:31], s{sOS} offen sc1", f"buffer_store_dwordx4 {rng(OS8+4,4)}, v{vOst}, s[28:31], s{sOS} offen offset:64 sc1"]
    assert sWc == sWcN
    xb = A32; wa = A32 + 16; acc = C32
    a("s_waitcnt lgkmcnt(0)\ns_barrier")
    for s in range(4):
        a(f"ds_read_b128 {rng(xb+4*s,4)}, v{vXr+s}")
        a(f"ds_read_b64_tr_b16 {rng(wa+4*s,2)}, v{vWQr} offset:{s*4096}")
        a(f"ds_read_b64_tr_b16 {rng(wa+4*s+2,2)}, v{vWQr} offset:{s*4096 + 512}")
    for s in range(4):
        a(f"s_waitcnt lgkmcnt({3*(3-s)})")
        c = "0" if s == 0 else rng(acc,4)
        a(f"v_mfma_f32_16x16x32_bf16 {rng(acc,4)}, {rng(wa+4*s,4)}, {rng(xb+4*s,4)}, {c}")
    a(f"""
s_nop 7
v_perm_b32 v{QS4}, v{acc}, v{acc+3}, s{sP0}
v_perm_b32 v{QS4+1}, v{acc+1}, v{acc+3}, s{sP1}
v_perm_b32 v{QS4+2}, v{acc+2}, v{acc+3}, s{sP2}
buffer_store_dwordx4 {rng(QS4,4)}, v{vQst}, s[28:31], s{sQB} offen
""")
    setflag(F_QI)
    stage["flush"] = QFL
    if pt in (9, 10, 11):
        for x_ in ypt: a(x_)
    if pt in (2, 6): a(f"buffer_load_dword v{vPT}, v{vPTa}, s[28:31], 0 offen" + (" nt" if pt == 2 else ""))
    ST_("q published")
    gq = F8
    waitflags(single=F_GO)
    ST_("GO")
    a(f"buffer_load_dwordx4 {rng(gq,4)}, v{vG}, s[28:31], s{sG} offen sc1")
    a(f"buffer_load_dwordx4 {rng(gq+4,4)}, v{vG}, s[28:31], s{sG} offen offset:2048 sc1")
    if pt == 4: a(f"buffer_load_dword v{vPT}, v{vPTa}, s[28:31], 0 offen nt")
    setflag(F_GI)
    sa_tmp = sa(2, 2)
    cold = []
    def poll(name, regs, vaddr, soff, first_wait, offs, flush):
        a(f"s_waitcnt vmcnt({first_wait})\nL_{name}chk:")
        for i, r in enumerate(regs):
            if i == 0: a(f"v_cmp_ne_u32 vcc, s{sTag}, v{r+3}")
            else: a(f"v_cmp_ne_u32 s[{sa_tmp}:{sa_tmp+1}], s{sTag}, v{r+3}\ns_or_b64 vcc, vcc, s[{sa_tmp}:{sa_tmp+1}]")
        a(f"s_cbranch_vccnz L_{name}retry\nL_{name}ok:")
        c = [f"L_{name}retry:", f"s_sub_u32 s{sCnt}, s{sCnt}, 1", f"s_cbranch_scc1 L_{name}ok",
             f"s_cmp_gt_u32 s{sCnt}, {spin - nf}", f"s_cbranch_scc1 L_{name}re",
             f"s_cmp_lg_u32 s{sCnt}, {spin - nf}", f"s_cbranch_scc1 L_{name}tg"] + flush + [f"L_{name}tg:", f"s_xor_b32 s{soff}, s{soff}, {SOFF}", f"L_{name}re:"]
        for r, o in zip(regs, offs):
            c.append(f"buffer_load_dwordx4 {rng(r,4)}, v{vaddr}, s[28:31], s{soff} offen offset:{o} sc1")
        c += ["s_waitcnt vmcnt(0)", f"s_branch L_{name}chk"]
        cold.append((name, c))
    poll("q", [gq, gq+4], vG, sG, 1 if pt == 4 else 0, [0, 2048], QFL)
    setflag(F_GOK)
    ST_("q gathered")
    u = E8; qb = B16; ka = A32
    a(f"""
v_perm_b32 v{u}, v{gq}, v{gq+1}, s{sU0}
v_perm_b32 v{u+1}, v{gq+4}, v{gq+5}, s{sU0}
v_add_f32 v{u+4}, v{gq}, v{gq+4}
v_perm_b32 v{u}, v{u}, v{gq+2}, s{sU1}
v_perm_b32 v{u+1}, v{u+1}, v{gq+6}, s{sU1}
v_add_f32 v{u+5}, v{gq+1}, v{gq+5}
v_add_f32 v{u+6}, v{gq+2}, v{gq+6}
v_add_f32 v{u+7}, v{u}, v{u+1}
s_nop 0
v_permlane32_swap_b32 v{u+4}, v{u+6}
v_permlane32_swap_b32 v{u+5}, v{u+7}
s_nop 0
v_add_f32 v{u+4}, v{u+4}, v{u+6}
v_add_f32 v{u+5}, v{u+5}, v{u+7}
v_cvt_pk_bf16_f32 v{u}, v{u+4}, v{u+5}
ds_write_b32 v{vQLw}, v{u} offset:{QL}
""")
    setflag(F_Q)
    waitflags(group=F_Q, single=F_K)
    for s in range(4):
        a(f"ds_read_b128 {rng(qb+4*s,4)}, v{vQLr} offset:{QL + s*64}")
        for t in range(2):
            a(f"ds_read_b128 {rng(ka+16*t+4*s,4)}, v{vKr+s} offset:{t*4096}")
    sc = C32
    for s in range(4):
        a(f"s_waitcnt lgkmcnt({3*(3-s)})")
        for t in range(2):
            c = "0" if s == 0 else rng(sc+4*t,4)
            a(f"v_mfma_f32_16x16x32_bf16 {rng(sc+4*t,4)}, {rng(ka+16*t+4*s,4)}, {rng(qb+4*s,4)}, {c}")
    m = va(); mt = va(); pk = E8
    a(f"""
s_nop 6
v_max3_f32 v{m}, v{sc}, v{sc+1}, v{sc+2}
v_max3_f32 v{mt}, v{sc+3}, v{sc+4}, v{sc+5}
v_max3_f32 v{m}, v{m}, v{sc+6}, v{sc+7}
v_max_f32 v{m}, v{m}, v{mt}
v_mov_b32 v{mt}, v{m}
s_nop 1
v_permlane16_swap_b32 v{m}, v{mt}
s_nop 0
v_max_f32 v{m}, v{m}, v{mt}
v_mov_b32 v{mt}, v{m}
s_nop 1
v_permlane32_swap_b32 v{m}, v{mt}
s_nop 0
v_max_f32 v{m}, v{m}, v{mt}
v_mul_f32 v{m}, s{sCsc}, v{m}
""")
    for i in range(8):
        a(f"v_fma_f32 v{sc+i}, v{sc+i}, s{sCsc}, -v{m}")
    for i in range(8):
        a(f"v_exp_f32 v{sc+i}, v{sc+i}")
    a(f"""
s_mov_b64 exec, s[{sM4}:{sM4+1}]
ds_write_b32 v{vSw}, v{m} offset:{SL}
v_cvt_pk_bf16_f32 v{pk}, v{sc}, v{sc+1}
v_cvt_pk_bf16_f32 v{pk+1}, v{sc+2}, v{sc+3}
v_cvt_pk_bf16_f32 v{pk+2}, v{sc+4}, v{sc+5}
v_cvt_pk_bf16_f32 v{pk+3}, v{sc+6}, v{sc+7}
ds_write_b128 v{vPw}, {rng(pk,4)} offset:{PL}
s_mov_b64 exec, -1
""")
    setflag(F_P)
    waitflags(group=F_P)
    ST_("P written")
    pb = B16; sv = F8; vaop = A32; D = C32
    lk = va(16, 4)
    a(f"ds_read_b128 {rng(sv,4)}, v{vSr} offset:{SL}")
    for ks in range(4):
        a(f"ds_read_b128 {rng(pb+4*ks,4)}, v{vPr} offset:{PL + ks*256}")
    M = va(); ff = va(4, 2); L = va(); Rr = va(); lse = va()
    a(f"""
s_waitcnt lgkmcnt(4)
v_max3_f32 v{M}, v{sv}, v{sv+1}, v{sv+2}
v_max_f32 v{M}, v{M}, v{sv+3}
v_sub_f32 v{ff}, v{sv}, v{M}
v_sub_f32 v{ff+1}, v{sv+1}, v{M}
v_sub_f32 v{ff+2}, v{sv+2}, v{M}
v_sub_f32 v{ff+3}, v{sv+3}, v{M}
""")
    for ks in range(4):
        a(f"s_waitcnt lgkmcnt({3-ks})")
        a(f"v_mfma_f32_16x16x32_bf16 {rng(lk+4*ks,4)}, {rng(ones,4)}, {rng(pb+4*ks,4)}, 0")
        a(f"v_exp_f32 v{ff+ks}, v{ff+ks}")
    a(f"""
s_nop 4
v_mul_f32 v{L}, v{ff}, v{lk}
v_fmac_f32 v{L}, v{ff+1}, v{lk+4}
v_fmac_f32 v{L}, v{ff+2}, v{lk+8}
s_nop 0
v_fmac_f32 v{L}, v{ff+3}, v{lk+12}
v_rcp_f32 v{Rr}, v{L}
v_log_f32 v{lse}, v{L}
s_nop 0
v_mul_f32 v{ff}, v{ff}, v{Rr}
v_mul_f32 v{ff+1}, v{ff+1}, v{Rr}
v_mul_f32 v{ff+2}, v{ff+2}, v{Rr}
v_mul_f32 v{ff+3}, v{ff+3}, v{Rr}
v_add_f32 v{OS8+2}, v{lse}, v{M}
v_add_f32 v{OS8+6}, v{lse}, v{M}
s_mov_b32 s{sCnt}, {spin}
""")
    waitflags(single=F_V)
    ST_("V landed")
    def vread(ks):
        for tp in range(2):
            for e in range(2):
                a(f"ds_read_b64_tr_b16 {rng(vaop+8*ks+4*tp+2*e,2)}, v{vVr+tp} offset:{ks*8192 + e*4096}")
    def pv(ks):
        for tp in range(2):
            a(f"v_mfma_f32_16x16x32_bf16 {rng(D+8*ks+4*tp,4)}, {rng(vaop+8*ks+4*tp,4)}, {rng(pb+4*ks,4)}, 0")
    vread(0); vread(1); vread(2)
    a("s_waitcnt lgkmcnt(8)"); pv(0); vread(3)
    a("s_waitcnt lgkmcnt(8)"); pv(1)
    a("s_waitcnt lgkmcnt(4)"); pv(2)
    a("s_waitcnt lgkmcnt(0)"); pv(3)
    o = F8
    for ks in range(4):
        base = ff + (ks & ~1); sel = ks & 1; fr = f"v[{base}:{base+1}]"
        for tp in range(2):
            for h in range(2):
                dst = rng(o+4*tp+2*h, 2); src = rng(D+8*ks+4*tp+2*h, 2)
                if ks == 0: a(f"v_pk_mul_f32 {dst}, {src}, {fr} op_sel:[0,{sel}] op_sel_hi:[1,{sel}]")
                else: a(f"v_pk_fma_f32 {dst}, {src}, {fr}, {dst} op_sel:[0,{sel},0] op_sel_hi:[1,{sel},1]")
    og = OS8
    a(f"""
v_cvt_pk_bf16_f32 v{og}, v{o}, v{o+1}
v_cvt_pk_bf16_f32 v{og+1}, v{o+2}, v{o+3}
v_cvt_pk_bf16_f32 v{og+4}, v{o+4}, v{o+5}
v_cvt_pk_bf16_f32 v{og+5}, v{o+6}, v{o+7}
buffer_store_dwordx4 {rng(og,4)}, v{vOst}, s[28:31], s{sOB} offen
buffer_store_dwordx4 {rng(og+4,4)}, v{vOst}, s[28:31], s{sOB} offen offset:64
""")
    setflag(F_OI)
    stage["flush"] = QFL + OFL
    ST_("o published")
    gg = B16; wb = A32
    waitflags(group=F_OI)
    a(f"""
buffer_load_dwordx4 {rng(gg,4)}, v{vOG}, s[28:31], s{sOG} offen sc1
buffer_load_dwordx4 {rng(gg+4,4)}, v{vOG}, s[28:31], s{sOG} offen offset:2048 sc1
""")
    waitflags(single=F_W)
    for s in range(2):
        for tp in range(2):
            for hh in range(2):
                a(f"ds_read_b64_tr_b16 {rng(wb+8*s+4*tp+2*hh,2)}, v{vWOr+tp} offset:{s*8192 + hh*1024}")
    poll("o", [gg, gg+4], vOG, sOG, 0, [0, 2048], QFL + OFL)
    ST_("o gathered")
    e0 = va(); e1 = va(); u = A32 + 16; S = va(); oo = A32 + 24
    a(f"""
v_max_f32 v{M}, v{gg+2}, v{gg+6}
v_mov_b32 v{mt}, v{M}
v_lshlrev_b32 v{u}, 16, v{gg}
v_and_b32 v{u+1}, 0xffff0000, v{gg}
v_permlane16_swap_b32 v{M}, v{mt}
v_lshlrev_b32 v{u+2}, 16, v{gg+1}
v_max_f32 v{M}, v{M}, v{mt}
v_mov_b32 v{mt}, v{M}
v_and_b32 v{u+3}, 0xffff0000, v{gg+1}
v_lshlrev_b32 v{u+4}, 16, v{gg+4}
v_permlane32_swap_b32 v{M}, v{mt}
v_and_b32 v{u+5}, 0xffff0000, v{gg+4}
v_max_f32 v{M}, v{M}, v{mt}
v_lshlrev_b32 v{u+6}, 16, v{gg+5}
v_sub_f32 v{e0}, v{gg+2}, v{M}
v_sub_f32 v{e1}, v{gg+6}, v{M}
v_exp_f32 v{e0}, v{e0}
v_exp_f32 v{e1}, v{e1}
v_and_b32 v{u+7}, 0xffff0000, v{gg+5}
v_add_f32 v{S}, v{e0}, v{e1}
v_mul_f32 v{oo}, v{e0}, v{u}
v_mul_f32 v{oo+1}, v{e0}, v{u+1}
v_mov_b32 v{mt}, v{S}
v_mul_f32 v{oo+2}, v{e0}, v{u+2}
v_mul_f32 v{oo+3}, v{e0}, v{u+3}
v_permlane16_swap_b32 v{S}, v{mt}
v_fmac_f32 v{oo}, v{e1}, v{u+4}
v_fmac_f32 v{oo+1}, v{e1}, v{u+5}
v_add_f32 v{S}, v{S}, v{mt}
v_fmac_f32 v{oo+2}, v{e1}, v{u+6}
v_fmac_f32 v{oo+3}, v{e1}, v{u+7}
v_mov_b32 v{mt}, v{S}
v_permlane16_swap_b32 v{oo}, v{oo+1}
s_nop 0
v_permlane16_swap_b32 v{oo+2}, v{oo+3}
v_permlane32_swap_b32 v{S}, v{mt}
v_add_f32 v{oo}, v{oo}, v{oo+1}
v_add_f32 v{oo+2}, v{oo+2}, v{oo+3}
v_add_f32 v{S}, v{S}, v{mt}
s_nop 0
v_permlane32_swap_b32 v{oo}, v{oo+2}
v_rcp_f32 v{S}, v{S}
v_add_f32 v{oo}, v{oo}, v{oo+2}
v_mul_f32 v{oo}, v{oo}, v{S}
v_cvt_pk_bf16_f32 v{oo}, v{oo}, v{oo}
ds_write_b16 v{vOLw}, v{oo} offset:{OL}
""")
    setflag(F_O)
    a(f"s_add_u32 s{sT2}, s{sFG}, 65536\ns_mov_b32 s{sCnt}, {spin}")
    waitflags(group=F_O)
    ob = B16 + 8; y = C32; yg = E8
    a(f"""
ds_read_b128 {rng(ob,4)}, v{vOLr} offset:{OL}
ds_read_b128 {rng(ob+4,4)}, v{vOLr} offset:{OL+64}
""")
    for s in range(2):
        a(f"s_waitcnt lgkmcnt({1-s})")
        for tp in range(2):
            c = "0" if s == 0 else rng(y+4*tp,4)
            a(f"v_mfma_f32_16x16x32_bf16 {rng(y+4*tp,4)}, {rng(wb+8*s+4*tp,4)}, {rng(ob+4*s,4)}, {c}")
    a(f"v_mov_b32 v{E8+3}, s{sTag}\nv_mov_b32 v{E8+7}, s{sTag}\ns_nop 4")
    for tp in range(2):
        a(f"""v_perm_b32 v{yg+4*tp}, v{y+4*tp}, v{y+4*tp+3}, s{sP0}
v_perm_b32 v{yg+4*tp+1}, v{y+4*tp+1}, v{y+4*tp+3}, s{sP1}
v_perm_b32 v{yg+4*tp+2}, v{y+4*tp+2}, v{y+4*tp+3}, s{sP2}
buffer_store_dwordx4 {rng(yg+4*tp,4)}, v{vYst}, s[28:31], s{sYst} offen offset:{tp*64} sc1""")
    setflag(F_YI)
    ST_("y published")
    waitflags(group=F_YI)
    for x_ in QFL + OFL: a(x_)
    z = C32 + 24
    fgs = [A32 + 8*d for d in range(fd)]
    fg = C32 + 16
    a(f"s_cmp_lg_u32 {W}, 0\ns_cbranch_scc1 L_fin")
    def fload(r):
        a(f"buffer_load_dwordx4 {rng(r,4)}, v{vFG}, s[28:31], s{sFG} offen sc1")
        a(f"buffer_load_dwordx4 {rng(r+4,4)}, v{vFG}, s[28:31], s{sT2} offen sc1")
    for d in range(fd - 1): fload(fgs[d])
    a("L_fpoll:")
    for d in range(fd):
        fload(fgs[(d + fd - 1) % fd])
        r = fgs[d]
        a(f"""s_waitcnt vmcnt({2*(fd-1)})
v_cmp_ne_u32 vcc, s{sTag}, v{r+3}
v_cmp_ne_u32 s[{sa_tmp}:{sa_tmp+1}], s{sTag}, v{r+7}
s_or_b64 vcc, vcc, s[{sa_tmp}:{sa_tmp+1}]
s_cbranch_vccz L_fok{d}""")
    a(f"s_sub_u32 s{sCnt}, s{sCnt}, 1\ns_cbranch_scc0 L_fpoll\ns_branch L_fok0")
    for d in range(fd - 1, -1, -1):
        a(f"L_fok{d}:")
        for q in range(8): a(f"v_mov_b32 v{fg+q}, v{fgs[d]+q}")
        if d: a("s_branch L_fok")
    a("L_fok:")
    ST_("final gathered")
    a(f"""
v_perm_b32 v{z+3}, v{fg}, v{fg+1}, s{sU0}
v_perm_b32 v{z+7}, v{fg+4}, v{fg+5}, s{sU0}
v_add_f32 v{z}, v{fg}, v{fg+4}
v_perm_b32 v{z+3}, v{z+3}, v{fg+2}, s{sU1}
v_perm_b32 v{z+7}, v{z+7}, v{fg+6}, s{sU1}
v_add_f32 v{z+1}, v{fg+1}, v{fg+5}
v_add_f32 v{z+2}, v{fg+2}, v{fg+6}
v_add_f32 v{z+3}, v{z+3}, v{z+7}
""")
    for ctl in ("quad_perm:[2,3,0,1]", "row_ror:4", "row_ror:8"):
        for r in range(4):
            a(f"v_add_f32_dpp v{z+r}, v{z+r}, v{z+r} {ctl} row_mask:0xf bank_mask:0xf")
    a(f"""
s_nop 0
v_permlane16_swap_b32 v{z}, v{z+1}
v_permlane16_swap_b32 v{z+2}, v{z+3}
s_nop 0
v_add_f32 v{z}, v{z}, v{z+1}
v_add_f32 v{z+2}, v{z+2}, v{z+3}
s_nop 1
v_permlane32_swap_b32 v{z}, v{z+2}
s_nop 0
v_add_f32 v{z}, v{z}, v{z+2}
v_cvt_pk_bf16_f32 v{z}, v{z}, v{z}
buffer_store_short v{z}, v{vOut}, s[32:35], 0 offen
s_cmp_lg_u32 s2, 0
s_cbranch_scc1 L_fin
v_mov_b32 v{t0}, s{sTag}
v_mov_b32 v{t1}, 0
s_mov_b64 exec, 1
buffer_store_dword v{t0}, v{t1}, s[28:31], 0 offen sc1
s_mov_b64 exec, -1
L_fin:
""")
    a("s_branch L_tail" if stamp else "s_endpgm")
    for name, c in cold:
        for x_ in c: a(x_)
    a("; WARM_END")
    for c in colder:
        for x_ in c: a(x_)
    a("L_tail:")
    if stamp:
        a(f"s_mov_b32 s31, 0x20000\ns_mov_b32 s30, {WS_BYTES}")
    if amp >= 0:
        ST_("end")
        e = nst[0] - 1
        a(f"""
s_waitcnt lgkmcnt(0)
s_cmp_lg_u32 {W}, 0
s_cbranch_scc1 L_end
""")
        if ampglob:
            a(f"""
s_lshl_b32 s37, s2, 3
s_add_u32 s37, s37, {ST}
v_mov_b32 v{C32}, s{SB}
v_mov_b32 v{C32+1}, s{sTag}
v_mov_b32 v{t1}, 0
s_mov_b64 exec, 1
buffer_store_dwordx2 v[{C32}:{C32+1}], v{t1}, s[28:31], s37 offen sc1
s_mov_b64 exec, -1
""")
        a(f"""
s_cmp_lg_u32 s2, 0
s_cbranch_scc1 L_end
""")
        if ampglob:
            a(f"""
s_mov_b32 s37, {ST}
v_lshlrev_b32 v{t1}, 5, v{l}
L_ag:
buffer_load_dwordx4 v[{C32}:{C32+3}], v{t1}, s[28:31], s37 offen sc1
buffer_load_dwordx4 v[{C32+4}:{C32+7}], v{t1}, s[28:31], s37 offen offset:16 sc1
s_waitcnt vmcnt(0)
v_cmp_ne_u32 vcc, s{sTag}, v{C32+1}
v_cmp_ne_u32 s[40:41], s{sTag}, v{C32+3}
s_or_b64 vcc, vcc, s[40:41]
v_cmp_ne_u32 s[40:41], s{sTag}, v{C32+5}
s_or_b64 vcc, vcc, s[40:41]
v_cmp_ne_u32 s[40:41], s{sTag}, v{C32+7}
s_or_b64 vcc, vcc, s[40:41]
s_cbranch_vccnz L_ag
v_subrev_u32 v{C32}, s{SB}, v{C32}
v_subrev_u32 v{C32+2}, s{SB}, v{C32+2}
v_subrev_u32 v{C32+4}, s{SB}, v{C32+4}
v_subrev_u32 v{C32+6}, s{SB}, v{C32+6}
v_min_i32 v{C32}, v{C32}, v{C32+2}
v_min_i32 v{C32+4}, v{C32+4}, v{C32+6}
v_min_i32 v{C32}, v{C32}, v{C32+4}
s_nop 1
v_min_i32_dpp v{C32}, v{C32}, v{C32} row_ror:1 row_mask:0xf bank_mask:0xf
s_nop 1
v_min_i32_dpp v{C32}, v{C32}, v{C32} row_ror:2 row_mask:0xf bank_mask:0xf
s_nop 1
v_min_i32_dpp v{C32}, v{C32}, v{C32} row_ror:4 row_mask:0xf bank_mask:0xf
s_nop 1
v_min_i32_dpp v{C32}, v{C32}, v{C32} row_ror:8 row_mask:0xf bank_mask:0xf
s_nop 1
v_readlane_b32 s36, v{C32}, 0
v_readlane_b32 s37, v{C32}, 16
v_readlane_b32 s38, v{C32}, 32
v_readlane_b32 s39, v{C32}, 48
s_nop 3
s_min_i32 s36, s36, s37
s_min_i32 s38, s38, s39
s_min_i32 s36, s36, s38
s_sub_u32 s37, s{SB+2*amp}, s{SB}
s_sub_u32 s37, s37, s36
s_memrealtime s[40:41]
s_waitcnt lgkmcnt(0)
s_mul_i32 s37, s37, {ampk}
s_add_u32 s37, s37, s40
""")
        else:
            a(f"""
s_sub_u32 s37, s{SB+2*amp}, s{SB}
s_mul_i32 s37, s37, {ampk}
s_add_u32 s37, s37, s{SB+2*e}
""")
        a(f"""
L_amp:
s_memrealtime s[40:41]
s_waitcnt lgkmcnt(0)
s_cmp_lt_u32 s40, s37
s_cbranch_scc1 L_amp
""")
    elif stamp:
        ST_("end")
        n = nst[0]
        a(f"""
s_waitcnt lgkmcnt(0) vmcnt(0)
s_mul_i32 s4, s2, 8
s_add_u32 s4, s4, s3
s_lshl_b32 s4, s4, 6
s_add_u32 s4, s4, {ST}
v_mov_b32 v{t1}, 0
s_mov_b64 exec, 1
""")
        for i in range(n):
            a(f"v_mov_b32 v{t0}, s{SB+2*i}\nbuffer_store_dword v{t0}, v{t1}, s[28:31], s4 offen offset:{4*i}\ns_nop 0")
    a("L_end:\ns_endpgm")
    lines = a.L
    nh = 0
    if warm:
        lines, nh, have = hops.insert(lines, nparts)
        assert have == nparts, (have, nparts)
    body = "\n".join(lines) + "\n"
    assert sa.hi <= SB and ls.hi <= SB, (sa.hi, ls.hi)
    nv = max(va.hi, lv.hi)
    s = header([f"; @launch grid=(256,1,1) block=(320,1,1) lds={LDS_BYTES}"]) + kernel_begin(KNAME) + body + RODATA + descriptor(KNAME, nv, 102 if stamp else max(sa.hi, ls.hi))
    errs = haz.check(body)
    for e in errs: print("HAZ", e)
    return s, nv, sa.hi, nh, stn
if __name__ == "__main__":
    out = sys.argv[1]
    kw = {}
    for x in sys.argv[2:]:
        k, v = x.split("=")
        if k in ("warm", "prio", "holdwo", "rot", "rotq"): kw[k] = (v == "1")
        elif k == "nt": kw[k] = (" " + v if v else "")
        else: kw[k] = int(v)
    s, nv, ns, nh, stn = gen(**kw)
    open(out, "w").write(s)
    print("vgprs", nv, "sgprs", ns, "hops", nh, "lds", LDS_BYTES, stn)
```

```python
import sys, struct
sys.path.insert(0, "my")
from ag import *
import haz, hops

QF = 0x10000
OF = 0x80000
OX = 0x100000
SOFF = 0x200000
ST = 0x400000
WS_BYTES = 268435456
QL = 0
PL = QL + 1280
SL = PL + 1024
OL = SL + 64
FL = 3136
JK = FL + 160
XL = 3840; WQ = XL + 1024; KL = WQ + 16384; VL = KL + 32768
import os
if os.environ.get('ALIAS', '0') == '1':
    WO = WQ; LDS_BYTES = VL + 32768
else:
    WO = VL + 32768; LDS_BYTES = WO + 16384
assert OL + 768 <= FL and JK + 416 <= XL and XL % 256 == 0 and WQ % 256 == 0
F_Q, F_P, F_O, F_GI, F_QI, F_GOK, F_OI, F_YI, F_GO, F_K, F_V, F_W = 0, 16, 32, 48, 64, 80, 96, 112, 128, 132, 136, 140
CSC = 0.08838834764831845 * 1.4426950408889634
def f32(x): return "0x%08x" % struct.unpack("<I", struct.pack("<f", x))[0]
class V:
    def __init__(s, n=0): s.n = n; s.hi = n
    def __call__(s, cnt=1, align=1):
        s.n = (s.n + align - 1) // align * align
        r = s.n; s.n += cnt; s.hi = max(s.hi, s.n)
        return r
def rng(r, n): return f"v[{r}:{r+n-1}]"
OOB = "0x7ffffff0"

def gen(stamp=False, nt=" nt", hold=0, kx=32, nmid=32, lgo=60, holdwo=False, rot=True, rotq=True, fd=1, cqx=0, xnt=False, xfirst=False, ilv=True, ycoal=True, wthr=2000, n3=0, n2=0, N=24, spin=100000, nf=64, amp=-1, ampk=10, ampglob=0, warm=True, pt=1, nparts=4, prio=True, step=2):
    if amp >= 0: stamp = True
    a = A(); va = V(1); sa = V(36)
    l = va(); t0 = va(); t1 = va(); t2 = va(); t3 = va()
    nst = [0]; stn = []
    SB = 72
    def ST_(label):
        if stamp and (stamp != 2 or label in ('entry', 'end')):
            i = nst[0]; nst[0] += 1; stn.append(label)
            assert i < 15
            a(f"s_memrealtime s[{SB+2*i}:{SB+1+2*i}]")
    W, G, R, B, C = "s3", "s4", "s5", "s6", "s7"
    sT = sa(); sT2 = sa(); sWin = sa()
    a(f"""
s_cmp_ge_u32 s2, 256
s_cbranch_scc1 L_end
s_load_dwordx2 s[20:21], s[0:1], 24
s_load_dwordx2 s[8:9], s[0:1], 0
s_load_dwordx2 s[12:13], s[0:1], 8
s_load_dwordx2 s[28:29], s[0:1], 56
s_load_dwordx2 s[16:17], s[0:1], 16
s_load_dwordx2 s[24:25], s[0:1], 32
s_load_dwordx2 s[32:33], s[0:1], 40
""")
    ST_("entry")
    a(f"""
v_lshrrev_b32 v{t0}, 6, v0
v_and_b32 v{l}, 63, v0
s_and_b32 {G}, s2, 7
v_readfirstlane_b32 {W}, v{t0}
s_lshr_b32 {R}, s2, 3
s_lshr_b32 {B}, {R}, 3
s_and_b32 {C}, {R}, 7
s_mov_b32 s23, 0x20000
v_lshrrev_b32 v{t0}, 4, v{l}
v_and_b32 v{t1}, 15, v{l}
""")
    if stamp: a(f"s_mov_b32 s31, s23\ns_mov_b32 s30, {WS_BYTES}\ns_mov_b32 s35, s23\ns_movk_i32 s34, 0x1000")
    a(f"""
s_cmp_lt_u32 {W}, 4
s_cbranch_scc1 L_compute
""")
    lv = V(va.n); ls = V(sa.n)
    vWQ = lv(2); vX = lv(); vK = lv(4); vV = lv(2); vWO = lv(2); vLF = lv(); vOne = lv()
    sWQ = ls(); sX = ls(); sK = ls(); sWO = ls(); lT = ls(); sWQb0 = ls()
    if prio: a("s_setprio 2")
    a(f"""
s_mov_b32 s22, 0x400000
v_and_b32 v{t2}, 7, v{l}
v_lshlrev_b32 v{t3}, 1, v{t0}
v_and_b32 v{vX}, 2, v{t3}
v_xor_b32 v{t2}, v{t2}, v{vX}
v_lshlrev_b32 v{t2}, 4, v{t2}
v_lshrrev_b32 v{vX}, 3, v{l}
v_lshl_add_u32 v{vWQ}, v{vX}, 13, v{t2}
v_xor_b32 v{vWQ+1}, 64, v{vWQ}
s_lshl_b32 s{sWQb0}, {G}, 3
s_xor_b32 s{lT}, {C}, {cqx}
s_add_u32 s{sWQb0}, s{sWQb0}, s{lT}
s_lshl_b32 s{sWQb0}, s{sWQb0}, 7
s_lshl_b32 s{lT}, {B}, 20
s_add_u32 s{sWQb0}, s{sWQb0}, s{lT}
s_mov_b32 s11, s23
s_movk_i32 s10, 0x1000
s_mov_b32 s15, s23
s_mov_b32 s14, 0x2000000
; x voffset: (l>>4)*1024 + ((l&15) ^ (4*(l>>4)))*16
v_lshlrev_b32 v{t2}, 2, v{t0}
v_xor_b32 v{t2}, v{t1}, v{t2}
v_lshlrev_b32 v{t2}, 4, v{t2}
v_lshl_add_u32 v{vX}, v{t0}, 10, v{t2}
s_lshl_b32 s{sX}, {B}, 8
s_waitcnt lgkmcnt(0)
""")
    seq = []
    sRho = ls(); sJ = ls(); sWQb = sWQb0
    for i in range(16):
        pre = []
        if i % 4 == 0:
            j_ = i // 4
            if rotq:
                pre += [f"s_add_u32 s{sJ}, {B}, {j_}", f"s_and_b32 s{sJ}, s{sJ}, 3", f"s_lshl_b32 s{lT}, s{sJ}, 18", f"s_add_u32 s{sWQ}, s{sWQb}, s{lT}",
                        f"s_lshl_b32 s{lT}, s{sJ}, 12", f"s_add_u32 m0, s{lT}, {WQ}"]
            else:
                pre += [f"s_add_u32 s{sWQ}, s{sWQb}, {j_ << 18}", f"s_mov_b32 m0, {WQ + j_*4096}"]
            pre.append("s_nop 0")
        else:
            pre.append(f"s_add_u32 s{sWQ}, s{sWQ}, {65536 - 1024}")
        seq.append((pre, f"buffer_load_dwordx4 v{vWQ + (i & 1)}, s[20:23], s{sWQ} offen offset:{(i%4)*1024}{nt} lds"))
    seq.append(([f"s_movk_i32 m0, {XL}", "s_nop 0"], f"buffer_load_dwordx4 v{vX}, s[8:11], s{sX} offen{' nt' if xnt else ''} lds"))
    if xfirst: seq.insert(0, seq.pop())
    kpre = f"""; K voffsets: (l>>4)*256 + ((l&15)^(l>>4))*16  ^ (64*i)
v_xor_b32 v{t2}, v{t1}, v{t0}
v_lshlrev_b32 v{t2}, 4, v{t2}
v_lshl_add_u32 v{vK}, v{t0}, 8, v{t2}
v_xor_b32 v{vK+1}, 64, v{vK}
v_xor_b32 v{vK+2}, 0x80, v{vK}
v_xor_b32 v{vK+3}, 0xc0, v{vK}
; flag address vgpr: lane0 -> FL, else JK + 4*l
v_lshlrev_b32 v{t2}, 2, v{l}
v_add_u32 v{t2}, {JK}, v{t2}
v_cmp_eq_u32 vcc, 0, v{l}
v_mov_b32 v{vLF}, {FL}
v_mov_b32 v{vOne}, 1
v_cndmask_b32 v{vLF}, v{t2}, v{vLF}, vcc
; window base = (b*8+g)<<20 + 3072*256 + c*(32768 or 4096)
s_lshl_b32 s{sWin}, {B}, 3
s_add_u32 s{sWin}, s{sWin}, {G}
s_lshl_b32 s{sWin}, s{sWin}, 5
s_add_u32 s{sWin}, s{sWin}, 24
s_lshl_b32 s{sWin}, s{sWin}, 15
s_lshl_b32 s{sJ}, {C}, {12 if ilv else 15}
s_add_u32 s{sWin}, s{sWin}, s{sJ}
; rho*4096 : rho = (g + 2b) & 7
s_lshl_b32 s{sRho}, {B}, 1
s_add_u32 s{sRho}, s{sRho}, {G}
s_and_b32 s{sRho}, s{sRho}, {7 if rot else 0}
s_lshl_b32 s{sRho}, s{sRho}, 12""".split("\n")
    def grp(j_, ldsbase):
        if ilv:
            return [f"s_add_u32 s{sJ}, s{sRho}, {j_*4096}", f"s_and_b32 s{sJ}, s{sJ}, 0x7fff", f"s_add_u32 m0, s{sJ}, {ldsbase}", f"s_lshl_b32 s{sJ}, s{sJ}, 3", f"s_add_u32 s{sK}, s{sWin}, s{sJ}"]
        return [f"s_add_u32 s{sJ}, s{sRho}, {j_*4096}", f"s_and_b32 s{sJ}, s{sJ}, 0x7fff", f"s_add_u32 m0, s{sJ}, {ldsbase}", f"s_add_u32 s{sK}, s{sWin}, s{sJ}"]
    for i in range(32):
        pre = list(kpre) if i == 0 else []
        if i % 4 == 0: pre += grp(i // 4, KL)
        seq.append((pre, f"buffer_load_dwordx4 v{vK+i%4}, s[12:15], s{sK} offen offset:{(i%4)*1024}{nt} lds"))
    vpre = f"""s_mov_b32 s19, s23
s_mov_b32 s18, s14
; V voffset: (l>>4)*256 + ((l&15) ^ ((l>>4)<<1))*16 ; odd: ^128 ; WO: (l>>4)*1024 + same piece
v_xor_b32 v{t2}, v{t1}, v{t3}
v_lshlrev_b32 v{t2}, 4, v{t2}
v_lshl_add_u32 v{vV}, v{t0}, 8, v{t2}
v_xor_b32 v{vV+1}, 0x80, v{vV}
v_lshl_add_u32 v{vWO}, v{t0}, 10, v{t2}
v_xor_b32 v{vWO+1}, 0x80, v{vWO}
s_mov_b32 s27, s23
s_mov_b32 s26, s22
; WO soff = p<<16 + cg*256 ; p = g*8 + r/4 ; cg = r&3
s_lshr_b32 s{lT}, {R}, 2
s_lshl_b32 s{sWO}, {G}, 3
s_add_u32 s{sWO}, s{sWO}, s{lT}
s_lshl_b32 s{sWO}, s{sWO}, 8
s_and_b32 s{lT}, {R}, 3
s_add_u32 s{sWO}, s{sWO}, s{lT}
s_lshl_b32 s{sWO}, s{sWO}, 8""".split("\n")
    for i in range(32):
        pre = list(vpre) if i == 0 else []
        if i % 4 == 0: pre += grp(i // 4, VL)
        seq.append((pre, f"buffer_load_dwordx4 v{vV+(i&1)}, s[16:19], s{sK} offen offset:{(i%4)*1024}{nt} lds"))
    for i in range(16):
        pre = []
        if i == 0: pre += [f"s_mov_b32 m0, {WO}", "s_nop 0"]
        elif i % 4 == 0: pre.append("s_add_u32 m0, m0, 4096")
        if i: pre.append(f"s_add_u32 s{sWO}, s{sWO}, {4096 - 1024 if i % 4 else 4096 + 3072}")
        seq.append((pre, f"buffer_load_dwordx4 v{vWO+((i>>1)&1)}, s[24:27], s{sWO} offen offset:{(i%4)*1024}{nt} lds"))
    T = len(seq); assert T == 97
    def emit(k):
        pre, ld = seq[k]
        for p in pre: a(p)
        a(ld)
    for k in range(17): emit(k)
    ST_("L: wq issued")
    pre17, ld17 = seq[17]
    for p in pre17: a(p)
    n0 = 17 + kx
    if kx > 0:
        if hold: a(f"s_waitcnt vmcnt({17 - hold})")
        a(ld17)
        for k in range(18, n0): emit(k)
    else:
        seq[17] = ([], ld17)
    ST_("L: K issued")
    lfl = lv(4, 4)
    a(f"v_mov_b32 v{t2}, {FL}")
    a(f"s_waitcnt vmcnt({n0 - 17})\ns_barrier")
    ST_("L: wq landed")
    def lwait(name, off):
        a(f"""L_{name}:
ds_read_b128 v[{lfl}:{lfl+3}], v{t2} offset:{off}
s_waitcnt lgkmcnt(0)
v_and_b32 v{lfl}, v{lfl}, v{lfl+1}
v_and_b32 v{lfl+2}, v{lfl+2}, v{lfl+3}
v_and_b32 v{lfl}, v{lfl}, v{lfl+2}
v_cmp_eq_u32 vcc, 0, v{lfl}
s_cbranch_vccnz L_{name}""")
    vFA = lv()
    a(f"v_mov_b32 v{vFA}, {FL}")
    def lwait(name, off):
        a(f"""L_{name}:
ds_read_b128 v[{lfl}:{lfl+3}], v{vFA} offset:{off}
s_waitcnt lgkmcnt(0)
v_and_b32 v{lfl}, v{lfl}, v{lfl+1}
v_and_b32 v{lfl+2}, v{lfl+2}, v{lfl+3}
v_and_b32 v{lfl}, v{lfl}, v{lfl+2}
v_cmp_eq_u32 vcc, 0, v{lfl}
s_cbranch_vccnz L_{name}""")
    lwait("qi", F_QI)
    n1 = 49 + nmid
    for k in range(n0, n1):
        if n2: a(f"s_waitcnt vmcnt({n2 - 1})")
        emit(k)
    assert lgo <= n1 and n1 <= T
    a(f"s_waitcnt vmcnt({n1 - lgo})")
    a(f"ds_write_b32 v{vLF}, v{vOne} offset:{F_GO}")
    lwait("gi", F_GI)
    for k in range(n1, T):
        if k == 81 and holdwo: lwait("gok", F_GOK)
        if n3: a(f"s_waitcnt vmcnt({n3 - 1})")
        emit(k)
    if lgo < 49: a(f"s_waitcnt vmcnt({T - 49})\nds_write_b32 v{vLF}, v{vOne} offset:{F_K}")
    for cnt, f in ((81, F_V), (97, F_W)):
        a(f"s_waitcnt vmcnt({T - cnt})\nds_write_b32 v{vLF}, v{vOne} offset:{f}")
    ST_("L: all landed")
    if stamp: a("s_branch L_fin")
    else: a("s_endpgm")
    a("L_compute:")
    g = va(); n16 = va(); n4 = va()
    sQB = sa(); sOB = sa(); sEp = sa(); sTag = sa(); vPT = va()
    a(f"""
s_mov_b32 s31, s23
s_mov_b32 s30, {WS_BYTES}
s_mov_b32 s35, s23
s_movk_i32 s34, 0x1000
s_lshl_b32 s{sQB}, {G}, 4
s_add_u32 s{sQB}, s{sQB}, {B}
s_lshl_b32 s{sQB}, s{sQB}, 11
s_xor_b32 s{sT}, {C}, {cqx}
s_lshl_b32 s{sT}, s{sT}, 8
s_add_u32 s{sQB}, s{sQB}, s{sT}
s_add_u32 s{sQB}, s{sQB}, {QF}
s_lshl_b32 s{sOB}, {B}, 3
s_add_u32 s{sOB}, s{sOB}, {G}
s_lshl_b32 s{sOB}, s{sOB}, 5
s_add_u32 s{sOB}, s{sOB}, {C}
s_lshl_b32 s{sOB}, s{sOB}, 9
s_add_u32 s{sOB}, s{sOB}, {OF}
""")
    vPTa = va()
    if pt in (1, 3, 7):
        a(f"""
s_mul_i32 s{sT}, {W}, 6
v_add_u32 v{t3}, s{sT}, v{l}
v_lshrrev_b32 v{t0}, 1, v{t3}
v_lshlrev_b32 v{t0}, 13, v{t0}
v_and_b32 v{t1}, 1, v{t3}
v_lshl_or_b32 v{t0}, v{t1}, 7, v{t0}
v_add_u32 v{t0}, s{sQB}, v{t0}
v_subrev_u32 v{t1}, 8, v{t3}
v_lshrrev_b32 v{t2}, 2, v{t1}
v_lshlrev_b32 v{t2}, 12, v{t2}
v_and_b32 v{t1}, 3, v{t1}
v_lshl_or_b32 v{t2}, v{t1}, 7, v{t2}
v_add_u32 v{t2}, s{sOB}, v{t2}
v_cmp_gt_u32 vcc, 8, v{t3}
v_mov_b32 v{t3}, {OOB}
s_nop 0
v_cndmask_b32 v{t0}, v{t2}, v{t0}, vcc
v_cmp_gt_u32 vcc, 6, v{l}
s_waitcnt lgkmcnt(0)
s_load_dword s{sEp}, s[28:29], 0
v_cndmask_b32 v{vPTa}, v{t3}, v{t0}, vcc
""")
        if pt != 7: a(f"buffer_load_dword v{vPT}, v{vPTa}, s[28:31], 0 offen{' nt' if pt == 3 else ''}")
    else:
        a(f"s_waitcnt lgkmcnt(0)\ns_load_dword s{sEp}, s[28:29], 0")
        if pt in (10, 11):
            sD = sa(); sO1 = sa(); sO2 = sa()
            a(f"s_lshl_b32 s{sT}, {W}, 13\ns_add_u32 s{sO1}, s{sQB}, s{sT}\ns_lshl_b32 s{sT}, {W}, 12\ns_add_u32 s{sO2}, s{sOB}, s{sT}")
            stp = 64 if pt == 10 else 128
            ypt = [f"s_load_dword s{sD}, s[28:29], s{sO1} offset:{o}" for o in range(0, 256, stp)] + [f"s_load_dword s{sD}, s[28:29], s{sO2} offset:{o}" for o in range(0, 512, stp)]
        if pt in (8, 9):
            sD = sa(); sO1 = sa()
            a(f"s_lshl_b32 s{sT}, {W}, 13\ns_add_u32 s{sO1}, s{sQB}, s{sT}")
            for o in range(0, 256, 64): a(f"s_load_dword s{sD}, s[28:29], s{sO1} offset:{o}")
            a(f"s_lshl_b32 s{sT}, {W}, 12\ns_add_u32 s{sO1}, s{sOB}, s{sT}")
            for o in range(0, 512, 64): a(f"s_load_dword s{sD}, s[28:29], s{sO1} offset:{o}")
            if pt == 9:
                a(f"""s_and_b32 s{sO1}, {R}, 3
s_lshl_b32 s{sO1}, s{sO1}, 6
s_lshl_b32 s{sT}, {G}, 3
s_add_u32 s{sO1}, s{sO1}, s{sT}
s_lshr_b32 s{sT}, {R}, 2
s_add_u32 s{sO1}, s{sO1}, s{sT}
s_lshl_b32 s{sO1}, s{sO1}, 2
s_add_u32 s{sO1}, s{sO1}, {W}
s_lshl_b32 s{sO1}, s{sO1}, 9
s_add_u32 s{sO1}, s{sO1}, {OX + SOFF}""")
                ypt = [f"s_load_dword s{sD}, s[28:29], s{sO1} offset:{o}" for o in range(0, 512, 64)]
        if pt in (2, 4, 6):
            a(f"""
s_lshl_b32 s{sT}, {W}, 12
s_add_u32 s{sT}, s{sT}, s{sOB}
v_lshlrev_b32 v{t0}, 7, v{l}
v_add_u32 v{t0}, s{sT}, v{t0}
v_cmp_gt_u32 vcc, 4, v{l}
v_mov_b32 v{t3}, {OOB}
s_nop 0
v_cndmask_b32 v{vPTa}, v{t3}, v{t0}, vcc
""")
    if warm:
        a("s_mov_b64 exec, 0")
        for p in range(1, nparts):
            a(f"s_cmp_eq_u32 {W}, {p}\ns_cbranch_scc1 HOP_P{p}")
        a("s_branch HOP_P0\nL_warm_done:\ns_mov_b64 exec, -1")
    a("; WARM_START")
    sP = sa(); sCG = sa(); sR4 = sa()
    vXr = va(4); vWQr = va(); vKr = va(4); vVr = va(2); vWOr = va(2)
    vQst = va(); vG = va(); sG = sa(); vQLw = va(); vQLr = va()
    vPw = va(); vPr = va(); vSw = va(); vSr = va()
    vOst = va(); vOG = va(); sOG = sa(); vOLw = va(); vOLr = va()
    vYst = va(); sYst = sa(); vFG = va(); sFG = sa(); vOut = va()
    vFw = va(); vFr = va(); vOne_c = va()
    sCsc = sa(); sP0 = sa(); sP1 = sa(); sP2 = sa(); sU0 = sa(); sU1 = sa(); sM4 = sa(2, 2); sG1 = sa(2, 2); sCnt = sa()
    a(f"""
v_lshrrev_b32 v{g}, 4, v{l}
v_and_b32 v{n16}, 15, v{l}
v_and_b32 v{n4}, 3, v{l}
v_lshlrev_b32 v{t2}, 2, v{l}
v_mov_b32 v{t3}, 0
ds_write_b32 v{t2}, v{t3} offset:{FL}
v_add_u32 v{t2}, {JK}, v{t2}
s_lshl_b32 s{sT}, {W}, 2
s_add_u32 s{sT}, s{sT}, {FL}
v_mov_b32 v{vFw}, s{sT}
v_cmp_eq_u32 vcc, 0, v{l}
v_mov_b32 v{vFr}, {FL}
v_mov_b32 v{vOne_c}, 1
v_cndmask_b32 v{vFw}, v{t2}, v{vFw}, vcc
; p = g*8 + r/4 ; cg = r&3
s_lshr_b32 s{sR4}, {R}, 2
s_lshl_b32 s{sP}, {G}, 3
s_add_u32 s{sP}, s{sP}, s{sR4}
s_and_b32 s{sCG}, {R}, 3
v_lshlrev_b32 v{t2}, 2, v{n4}
v_xor_b32 v{t2}, v{g}, v{t2}
v_lshlrev_b32 v{t2}, 4, v{t2}
v_lshl_add_u32 v{t2}, v{n4}, 8, v{t2}
v_add_u32 v{vXr}, {XL}, v{t2}
v_xor_b32 v{vXr+1}, 64, v{vXr}
v_xor_b32 v{vXr+2}, 0x80, v{vXr}
v_xor_b32 v{vXr+3}, 0xc0, v{vXr}
v_bfe_u32 v{t0}, v{l}, 2, 2
v_lshl_add_u32 v{t2}, v{g}, 3, v{t0}
v_lshlrev_b32 v{t2}, 7, v{t2}
v_lshl_add_u32 v{t2}, v{n4}, 3, v{t2}
v_lshrrev_b32 v{t3}, 1, v{t0}
v_and_b32 v{t1}, 1, v{g}
v_lshl_or_b32 v{t3}, v{t1}, 1, v{t3}
v_xor_b32 v{t3}, {W}, v{t3}
v_lshl_add_u32 v{t2}, v{t3}, 5, v{t2}
v_add_u32 v{vWQr}, {WQ}, v{t2}
s_lshl_b32 s{sT}, {W}, 13
s_add_u32 s{sT}, s{sT}, {KL}
v_xor_b32 v{t2}, v{g}, v{n16}
v_lshlrev_b32 v{t2}, 4, v{t2}
v_lshl_add_u32 v{t2}, v{n16}, 8, v{t2}
v_add_u32 v{vKr}, s{sT}, v{t2}
v_xor_b32 v{vKr+1}, 64, v{vKr}
v_xor_b32 v{vKr+2}, 0x80, v{vKr}
v_xor_b32 v{vKr+3}, 0xc0, v{vKr}
v_lshl_add_u32 v{t2}, v{g}, 2, v{t0}
v_lshlrev_b32 v{t2}, 8, v{t2}
v_lshl_add_u32 v{t2}, v{n4}, 3, v{t2}
v_lshl_or_b32 v{t3}, v{t1}, 2, v{t0}
s_lshl_b32 s{sT}, {W}, 1
v_xor_b32 v{t3}, s{sT}, v{t3}
v_lshl_add_u32 v{t2}, v{t3}, 5, v{t2}
v_add_u32 v{vVr}, {VL}, v{t2}
v_xor_b32 v{vVr+1}, 32, v{vVr}
v_lshl_add_u32 v{t2}, v{g}, 3, v{t0}
v_lshlrev_b32 v{t2}, 8, v{t2}
v_lshl_add_u32 v{t2}, v{n4}, 3, v{t2}
v_lshl_add_u32 v{t2}, v{t3}, 5, v{t2}
v_add_u32 v{vWOr}, {WO}, v{t2}
v_xor_b32 v{vWOr+1}, 32, v{vWOr}
v_cmp_gt_u32 vcc, 4, v{n16}
v_mov_b32 v{t3}, {OOB}
s_lshl_b32 s{sT}, {W}, 6
v_lshlrev_b32 v{t2}, 4, v{g}
v_add_u32 v{t0}, s{sT}, v{t2}
v_lshl_add_u32 v{t0}, v{n16}, 13, v{t0}
v_cndmask_b32 v{vQst}, v{t3}, v{t0}, vcc
s_lshl_b32 s{sT}, {W}, 7
v_add_u32 v{t2}, s{sT}, v{t2}
v_lshl_add_u32 v{t0}, v{n16}, 12, v{t2}
v_cndmask_b32 v{vOst}, v{t3}, v{t0}, vcc
v_lshl_add_u32 v{t0}, v{n16}, 9, v{t2}
v_cndmask_b32 v{vYst}, v{t3}, v{t0}, vcc
YCOAL_ADDR
v_lshrrev_b32 v{t0}, 5, v{l}
v_and_b32 v{t1}, 31, v{l}
v_lshlrev_b32 v{t2}, 4, v{t1}
v_lshl_add_u32 v{vG}, v{t0}, 12, v{t2}
s_lshl_b32 s{sG}, {G}, 2
s_add_u32 s{sG}, s{sG}, {B}
s_lshl_b32 s{sG}, s{sG}, 4
s_add_u32 s{sG}, s{sG}, {W}
s_lshl_b32 s{sG}, s{sG}, 9
s_add_u32 s{sG}, s{sG}, {QF}
s_mul_i32 s{sT}, {W}, 320
v_lshlrev_b32 v{t2}, 3, v{t1}
v_lshl_add_u32 v{t2}, v{t0}, 2, v{t2}
v_add_u32 v{vQLw}, s{sT}, v{t2}
v_mul_u32_u24 v{t2}, 320, v{n4}
v_lshl_add_u32 v{vQLr}, v{g}, 4, v{t2}
v_lshlrev_b32 v{t2}, 6, v{n4}
v_lshl_add_u32 v{vPr}, v{g}, 4, v{t2}
s_lshl_b32 s{sT}, {W}, 8
v_add_u32 v{vPw}, s{sT}, v{vPr}
v_lshlrev_b32 v{vSr}, 4, v{n4}
s_lshl_b32 s{sT}, {W}, 2
v_add_u32 v{vSw}, s{sT}, v{vSr}
v_lshlrev_b32 v{t2}, 9, v{g}
v_lshl_add_u32 v{vOG}, v{n16}, 4, v{t2}
s_lshl_b32 s{sOG}, {W}, 3
s_add_u32 s{sOG}, s{sOG}, {G}
s_lshl_b32 s{sOG}, s{sOG}, 2
s_add_u32 s{sOG}, s{sOG}, {B}
s_lshl_b32 s{sOG}, s{sOG}, 4
s_and_b32 s{sT}, s{sR4}, 1
s_add_u32 s{sOG}, s{sOG}, s{sT}
s_lshl_b32 s{sOG}, s{sOG}, 8
s_add_u32 s{sOG}, s{sOG}, {OF}
s_mul_i32 s{sT}, {W}, 192
v_lshlrev_b32 v{t2}, 3, v{n16}
v_lshl_add_u32 v{t2}, v{g}, 1, v{t2}
v_add_u32 v{vOLw}, s{sT}, v{t2}
v_mul_u32_u24 v{t2}, 192, v{n4}
v_lshl_add_u32 v{vOLr}, v{g}, 4, v{t2}
s_lshl_b32 s{sYst}, s{sCG}, 6
s_add_u32 s{sYst}, s{sYst}, s{sP}
s_lshl_b32 s{sYst}, s{sYst}, 11
s_add_u32 s{sYst}, s{sYst}, {OX + SOFF}
v_lshrrev_b32 v{t0}, 1, v{l}
v_and_b32 v{t1}, 1, v{l}
v_lshlrev_b32 v{t2}, 4, v{t1}
v_lshl_add_u32 v{vFG}, v{t0}, 11, v{t2}
s_lshl_b32 s{sFG}, s{sCG}, 12
s_add_u32 s{sFG}, s{sFG}, s{sP}
s_lshl_b32 s{sFG}, s{sFG}, 5
s_add_u32 s{sFG}, s{sFG}, {OX + SOFF}
YCOAL_OUT
v_cmp_gt_u32 vcc, 2, v{n16}
s_mov_b32 s{sCsc}, {f32(CSC)}
s_mov_b32 s{sP0}, 0x07060503
v_cndmask_b32 v{vOut}, v{t3}, v{t2}, vcc
s_mov_b32 s{sP1}, 0x07060502
s_mov_b32 s{sP2}, 0x07060501
s_mov_b32 s{sU0}, 0x04000c0c
s_mov_b32 s{sU1}, 0x0706000c
s_mov_b32 s{sM4}, 0x000f000f
s_mov_b32 s{sM4+1}, 0x000f000f
s_waitcnt lgkmcnt(0)
s_mul_i32 s{sTag}, s{sEp}, 1664525
s_add_u32 s{sTag}, s{sTag}, 1013904223
""")
    ya = f"""; coalesced y store: lanes < 32: w*512 + l*16
s_lshl_b32 s{sT}, {W}, 9
v_lshlrev_b32 v{t0}, 4, v{l}
v_add_u32 v{t0}, s{sT}, v{t0}
v_cmp_gt_u32 s[{sM4}:{sM4+1}], 32, v{l}
v_cmp_eq_u32 s[{sG1}:{sG1+1}], 1, v{g}
s_nop 0
v_cndmask_b32 v{vYst}, v{t3}, v{t0}, s[{sM4}:{sM4+1}]""" if ycoal else ""
    yo = (f"""; out voffset: g*1024 + (cg*128 + 2p' + (l&1))*2 for lanes n16<2 ; p' = p (0..63)
s_lshl_b32 s{sT}, s{sCG}, 6
s_add_u32 s{sT}, s{sT}, s{sP}
s_lshl_b32 s{sT}, s{sT}, 2
v_lshlrev_b32 v{t2}, 1, v{t1}
v_lshl_add_u32 v{t2}, v{g}, 10, v{t2}
v_add_u32 v{t2}, s{sT}, v{t2}""" if ycoal else f"""s_lshr_b32 s{sT}, s{sP}, 4
s_lshl_b32 s{sT}, s{sT}, 2
s_add_u32 s{sT}, s{sT}, s{sCG}
s_lshl_b32 s{sT}, s{sT}, 4
s_and_b32 s{sT2}, s{sP}, 15
s_add_u32 s{sT}, s{sT}, s{sT2}
s_lshl_b32 s{sT}, s{sT}, 4
v_lshlrev_b32 v{t2}, 3, v{t1}
v_lshl_add_u32 v{t2}, v{g}, 1, v{t2}
v_add_u32 v{t2}, s{sT}, v{t2}""")
    newL = []
    for ln in a.L:
        if "YCOAL_ADDR" in ln: newL += ["    " + x for x in ya.split("\n") if x]
        elif "YCOAL_OUT" in ln: newL += ["    " + x for x in yo.split("\n")]
        else: newL.append(ln)
    a.L = newL
    A32 = va(32, 4); B16 = va(16, 4); C32 = va(32, 4); E8 = va(8, 4); F8 = va(8, 4)
    ones = va(4, 4); fl = va(4, 4); fl1 = va(); QS4 = va(4, 4); OS8 = va(8, 4); sQS = sa(); sOS = sa(); sWcN = sa.n
    a(f"""
v_mov_b32 v{ones}, 0x3f803f80
v_mov_b32 v{ones+1}, 0x3f803f80
v_mov_b32 v{ones+2}, 0x3f803f80
v_mov_b32 v{ones+3}, 0x3f803f80
v_mov_b32 v{QS4+3}, s{sTag}
v_mov_b32 v{OS8+3}, s{sTag}
v_mov_b32 v{OS8+7}, s{sTag}
v_mov_b32 v{E8+3}, s{sTag}
v_mov_b32 v{E8+7}, s{sTag}
s_add_u32 s{sQS}, s{sQB}, {SOFF}
s_add_u32 s{sOS}, s{sOB}, {SOFF}
s_mov_b32 s{sCnt}, {spin}
s_movk_i32 s{sWcN}, {wthr}
""")
    if pt == 7: a(f"buffer_load_dword v{vPT}, v{vPTa}, s[28:31], 0 offen")
    lab = [0]
    def setflag(off): a(f"ds_write_b32 v{vFw}, v{vOne_c} offset:{off}")
    colder = []
    sWc = sa()
    stage = {"flush": []}
    def waitflags(group=None, single=None):
        lab[0] += 1; L = f"L_wf{lab[0]}"
        a(f"{L}:")
        if group is not None: a(f"ds_read_b128 {rng(fl,4)}, v{vFr} offset:{group}")
        if single is not None: a(f"ds_read_b32 v{fl1}, v{vFr} offset:{single}")
        a("s_waitcnt lgkmcnt(0)")
        if group is not None:
            a(f"v_min3_u32 v{fl}, v{fl}, v{fl+1}, v{fl+2}")
            if single is not None: a(f"v_min3_u32 v{fl}, v{fl}, v{fl+3}, v{fl1}")
            else: a(f"v_min_u32 v{fl}, v{fl}, v{fl+3}")
            r = fl
        else: r = fl1
        a(f"v_cmp_eq_u32 vcc, 0, v{r}\ns_cbranch_vccz {L}d\ns_sub_u32 s{sWc}, s{sWc}, 1\ns_cbranch_scc0 {L}\ns_branch {L}f\n{L}d:")
        colder.append([f"{L}f:"] + list(stage["flush"]) + [f"s_movk_i32 s{sWc}, {wthr}", f"s_branch {L}"])
    QFL = [f"buffer_store_dwordx4 {rng(QS4,4)}, v{vQst}, s[28:31], s{sQS} offen sc1"]
    OFL = [f"buffer_store_dwordx4 {rng(OS8,4)}, v{vOst}, s[28:31], s{sOS} offen sc1", f"buffer_store_dwordx4 {rng(OS8+4,4)}, v{vOst}, s[28:31], s{sOS} offen offset:64 sc1"]
    assert sWc == sWcN
    xb = A32; wa = A32 + 16; acc = C32
    a("s_waitcnt lgkmcnt(0)\ns_barrier")
    for s in range(4):
        a(f"ds_read_b128 {rng(xb+4*s,4)}, v{vXr+s}")
        a(f"ds_read_b64_tr_b16 {rng(wa+4*s,2)}, v{vWQr} offset:{s*4096}")
        a(f"ds_read_b64_tr_b16 {rng(wa+4*s+2,2)}, v{vWQr} offset:{s*4096 + 512}")
    for s in range(4):
        a(f"s_waitcnt lgkmcnt({3*(3-s)})")
        c = "0" if s == 0 else rng(acc,4)
        a(f"v_mfma_f32_16x16x32_bf16 {rng(acc,4)}, {rng(wa+4*s,4)}, {rng(xb+4*s,4)}, {c}")
    a(f"""
s_nop 7
v_perm_b32 v{QS4}, v{acc}, v{acc+3}, s{sP0}
v_perm_b32 v{QS4+1}, v{acc+1}, v{acc+3}, s{sP1}
v_perm_b32 v{QS4+2}, v{acc+2}, v{acc+3}, s{sP2}
buffer_store_dwordx4 {rng(QS4,4)}, v{vQst}, s[28:31], s{sQB} offen
""")
    setflag(F_QI)
    stage["flush"] = QFL
    if pt in (9, 10, 11):
        for x_ in ypt: a(x_)
    if pt in (2, 6): a(f"buffer_load_dword v{vPT}, v{vPTa}, s[28:31], 0 offen" + (" nt" if pt == 2 else ""))
    ST_("q published")
    gq = F8
    waitflags(single=F_GO)
    ST_("GO")
    a(f"buffer_load_dwordx4 {rng(gq,4)}, v{vG}, s[28:31], s{sG} offen sc1")
    a(f"buffer_load_dwordx4 {rng(gq+4,4)}, v{vG}, s[28:31], s{sG} offen offset:2048 sc1")
    if pt == 4: a(f"buffer_load_dword v{vPT}, v{vPTa}, s[28:31], 0 offen nt")
    setflag(F_GI)
    ka = A32
    if lgo < 49: waitflags(single=F_K)
    for t in range(2):
        for s_ in range(4):
            a(f"ds_read_b128 {rng(ka+16*t+4*s_,4)}, v{vKr+s_} offset:{t*4096}")
    sa_tmp = sa(2, 2)
    cold = []
    def poll(name, regs, vaddr, soff, first_wait, offs, flush):
        a(f"s_waitcnt vmcnt({first_wait})\nL_{name}chk:")
        for i, r in enumerate(regs):
            if i == 0: a(f"v_cmp_ne_u32 vcc, s{sTag}, v{r+3}")
            else: a(f"v_cmp_ne_u32 s[{sa_tmp}:{sa_tmp+1}], s{sTag}, v{r+3}\ns_or_b64 vcc, vcc, s[{sa_tmp}:{sa_tmp+1}]")
        a(f"s_cbranch_vccnz L_{name}retry\nL_{name}ok:")
        c = [f"L_{name}retry:", f"s_sub_u32 s{sCnt}, s{sCnt}, 1", f"s_cbranch_scc1 L_{name}ok",
             f"s_cmp_gt_u32 s{sCnt}, {spin - nf}", f"s_cbranch_scc1 L_{name}re",
             f"s_cmp_lg_u32 s{sCnt}, {spin - nf}", f"s_cbranch_scc1 L_{name}tg"] + flush + [f"L_{name}tg:", f"s_xor_b32 s{soff}, s{soff}, {SOFF}", f"L_{name}re:"]
        for r, o in zip(regs, offs):
            c.append(f"buffer_load_dwordx4 {rng(r,4)}, v{vaddr}, s[28:31], s{soff} offen offset:{o} sc1")
        c += ["s_waitcnt vmcnt(0)", f"s_branch L_{name}chk"]
        cold.append((name, c))
    poll("q", [gq, gq+4], vG, sG, 1 if pt == 4 else 0, [0, 2048], QFL)
    if holdwo: setflag(F_GOK)
    ST_("q gathered")
    u = E8; qb = B16
    a(f"""
v_perm_b32 v{u}, v{gq}, v{gq+1}, s{sU0}
v_perm_b32 v{u+1}, v{gq+4}, v{gq+5}, s{sU0}
v_add_f32 v{u+4}, v{gq}, v{gq+4}
v_add_f32 v{u+6}, v{gq+2}, v{gq+6}
v_perm_b32 v{u}, v{u}, v{gq+2}, s{sU1}
v_perm_b32 v{u+1}, v{u+1}, v{gq+6}, s{sU1}
v_add_f32 v{u+5}, v{gq+1}, v{gq+5}
v_add_f32 v{u+7}, v{u}, v{u+1}
v_permlane32_swap_b32 v{u+4}, v{u+6}
s_nop 0
v_permlane32_swap_b32 v{u+5}, v{u+7}
v_add_f32 v{u+4}, v{u+4}, v{u+6}
v_add_f32 v{u+5}, v{u+5}, v{u+7}
v_cvt_pk_bf16_f32 v{u}, v{u+4}, v{u+5}
ds_write_b32 v{vQLw}, v{u} offset:{QL}
""")
    setflag(F_Q)
    waitflags(group=F_Q)
    for s in range(4):
        a(f"ds_read_b128 {rng(qb+4*s,4)}, v{vQLr} offset:{QL + s*64}")
    sc = C32
    for s in range(4):
        a(f"s_waitcnt lgkmcnt({3-s})")
        for t in range(2):
            c = "0" if s == 0 else rng(sc+4*t,4)
            a(f"v_mfma_f32_16x16x32_bf16 {rng(sc+4*t,4)}, {rng(ka+16*t+4*s,4)}, {rng(qb+4*s,4)}, {c}")
    m = va(2, 2); mt = va(); pk = E8
    sC2 = sa(2, 2)
    a(f"""
s_mov_b32 s{sC2}, s{sCsc}
s_mov_b32 s{sC2+1}, s{sCsc}
s_nop 4
v_max3_f32 v{m}, v{sc}, v{sc+1}, v{sc+2}
v_max3_f32 v{mt}, v{sc+3}, v{sc+4}, v{sc+5}
v_max3_f32 v{m}, v{m}, v{sc+6}, v{sc+7}
v_max_f32 v{m}, v{m}, v{mt}
v_mov_b32 v{mt}, v{m}
s_nop 1
v_permlane16_swap_b32 v{m}, v{mt}
v_max_f32 v{m}, v{m}, v{mt}
v_mov_b32 v{mt}, v{m}
s_nop 1
v_permlane32_swap_b32 v{m}, v{mt}
v_max_f32 v{m}, v{m}, v{mt}
v_mul_f32 v{m}, s{sCsc}, v{m}
""")
    for i in range(0, 8, 2):
        a(f"v_pk_fma_f32 v[{sc+i}:{sc+i+1}], v[{sc+i}:{sc+i+1}], s[{sC2}:{sC2+1}], v[{m}:{m+1}] op_sel_hi:[1,1,0] neg_lo:[0,0,1] neg_hi:[0,0,1]")
    a(f"s_mov_b64 exec, s[{sM4}:{sM4+1}]\nds_write_b32 v{vSw}, v{m} offset:{SL}\ns_mov_b64 exec, -1")
    for i in range(8):
        a(f"v_exp_f32 v{sc+i}, v{sc+i}")
        if i == 2: a(f"v_cvt_pk_bf16_f32 v{pk}, v{sc}, v{sc+1}")
        if i == 4: a(f"v_cvt_pk_bf16_f32 v{pk+1}, v{sc+2}, v{sc+3}")
        if i == 6: a(f"v_cvt_pk_bf16_f32 v{pk+2}, v{sc+4}, v{sc+5}")
    a(f"""
s_mov_b64 exec, s[{sM4}:{sM4+1}]
v_cvt_pk_bf16_f32 v{pk+3}, v{sc+6}, v{sc+7}
ds_write_b128 v{vPw}, {rng(pk,4)} offset:{PL}
s_mov_b64 exec, -1
""")
    setflag(F_P)
    a(f"s_mov_b32 s{sCnt}, {spin}")
    waitflags(group=F_P)
    ST_("P written")
    pb = B16; sv = F8; vaop = A32; D = C32
    lk = va(16, 4)
    M = va(); ff = va(4, 2); L = va(); Rr = va(); lse = va()
    a(f"ds_read_b128 {rng(sv,4)}, v{vSr} offset:{SL}")
    for ks in range(4):
        a(f"ds_read_b128 {rng(pb+4*ks,4)}, v{vPr} offset:{PL + ks*256}")
    a(f"ds_read_b32 v{fl1}, v{vFr} offset:{F_V}")
    a(f"""
s_waitcnt lgkmcnt(5)
v_max3_f32 v{M}, v{sv}, v{sv+1}, v{sv+2}
v_max_f32 v{M}, v{M}, v{sv+3}
v_sub_f32 v{ff}, v{sv}, v{M}
v_sub_f32 v{ff+1}, v{sv+1}, v{M}
v_sub_f32 v{ff+2}, v{sv+2}, v{M}
v_sub_f32 v{ff+3}, v{sv+3}, v{M}
""")
    for ks in range(4):
        a(f"s_waitcnt lgkmcnt({4-ks})")
        a(f"v_mfma_f32_16x16x32_bf16 {rng(lk+4*ks,4)}, {rng(ones,4)}, {rng(pb+4*ks,4)}, 0")
        a(f"v_exp_f32 v{ff+ks}, v{ff+ks}")
    def vread(ks):
        for tp in range(2):
            for e in range(2):
                a(f"ds_read_b64_tr_b16 {rng(vaop+8*ks+4*tp+2*e,2)}, v{vVr+tp} offset:{ks*8192 + e*4096}")
    def pv(ks):
        for tp in range(2):
            a(f"v_mfma_f32_16x16x32_bf16 {rng(D+8*ks+4*tp,4)}, {rng(vaop+8*ks+4*tp,4)}, {rng(pb+4*ks,4)}, 0")
    stats2 = f"""v_mul_f32 v{L}, v{ff}, v{lk}
v_fmac_f32 v{L}, v{ff+1}, v{lk+4}
v_fmac_f32 v{L}, v{ff+2}, v{lk+8}
v_fmac_f32 v{L}, v{ff+3}, v{lk+12}
v_rcp_f32 v{Rr}, v{L}
v_log_f32 v{lse}, v{L}
s_nop 0
v_mul_f32 v{ff}, v{ff}, v{Rr}
v_mul_f32 v{ff+1}, v{ff+1}, v{Rr}
v_mul_f32 v{ff+2}, v{ff+2}, v{Rr}
v_mul_f32 v{ff+3}, v{ff+3}, v{Rr}
v_add_f32 v{OS8+2}, v{lse}, v{M}
v_add_f32 v{OS8+6}, v{lse}, v{M}"""
    a(f"s_waitcnt lgkmcnt(0)\nv_cmp_ne_u32 vcc, 0, v{fl1}\ns_cbranch_vccnz L_vfast\ns_nop 3")
    a(stats2)
    waitflags(single=F_V)
    ST_("V landed")
    vread(0); vread(1); vread(2)
    a("s_branch L_vjoin\nL_vfast:")
    vread(0); vread(1); vread(2)
    a(stats2)
    a("L_vjoin:")
    a("s_waitcnt lgkmcnt(8)"); pv(0); vread(3)
    a("s_waitcnt lgkmcnt(8)"); pv(1)
    a("s_waitcnt lgkmcnt(4)"); pv(2)
    a("s_waitcnt lgkmcnt(0)"); pv(3)
    o = F8
    for ks in range(4):
        base = ff + (ks & ~1); sel = ks & 1; fr = f"v[{base}:{base+1}]"
        for tp in range(2):
            for h in range(2):
                dst = rng(o+4*tp+2*h, 2); src = rng(D+8*ks+4*tp+2*h, 2)
                if ks == 0: a(f"v_pk_mul_f32 {dst}, {src}, {fr} op_sel:[0,{sel}] op_sel_hi:[1,{sel}]")
                else: a(f"v_pk_fma_f32 {dst}, {src}, {fr}, {dst} op_sel:[0,{sel},0] op_sel_hi:[1,{sel},1]")
    og = OS8
    a(f"""
v_cvt_pk_bf16_f32 v{og}, v{o}, v{o+1}
v_cvt_pk_bf16_f32 v{og+1}, v{o+2}, v{o+3}
v_cvt_pk_bf16_f32 v{og+4}, v{o+4}, v{o+5}
v_cvt_pk_bf16_f32 v{og+5}, v{o+6}, v{o+7}
buffer_store_dwordx4 {rng(og,4)}, v{vOst}, s[28:31], s{sOB} offen
buffer_store_dwordx4 {rng(og+4,4)}, v{vOst}, s[28:31], s{sOB} offen offset:64
""")
    setflag(F_OI)
    stage["flush"] = QFL + OFL
    ST_("o published")
    gg = B16; wb = A32
    waitflags(group=F_OI)
    a(f"""
buffer_load_dwordx4 {rng(gg,4)}, v{vOG}, s[28:31], s{sOG} offen sc1
buffer_load_dwordx4 {rng(gg+4,4)}, v{vOG}, s[28:31], s{sOG} offen offset:2048 sc1
""")
    waitflags(single=F_W)
    for s in range(2):
        for tp in range(2):
            for hh in range(2):
                a(f"ds_read_b64_tr_b16 {rng(wb+8*s+4*tp+2*hh,2)}, v{vWOr+tp} offset:{s*8192 + hh*1024}")
    poll("o", [gg, gg+4], vOG, sOG, 0, [0, 2048], QFL + OFL)
    ST_("o gathered")
    e0 = va(); e1 = va(); u = A32 + 16; S = va(); oo = A32 + 24
    a(f"""
v_max_f32 v{M}, v{gg+2}, v{gg+6}
v_mov_b32 v{mt}, v{M}
v_lshlrev_b32 v{u}, 16, v{gg}
v_and_b32 v{u+1}, 0xffff0000, v{gg}
v_permlane16_swap_b32 v{M}, v{mt}
v_lshlrev_b32 v{u+2}, 16, v{gg+1}
v_max_f32 v{M}, v{M}, v{mt}
v_mov_b32 v{mt}, v{M}
v_and_b32 v{u+3}, 0xffff0000, v{gg+1}
v_lshlrev_b32 v{u+4}, 16, v{gg+4}
v_permlane32_swap_b32 v{M}, v{mt}
v_and_b32 v{u+5}, 0xffff0000, v{gg+4}
v_max_f32 v{M}, v{M}, v{mt}
v_lshlrev_b32 v{u+6}, 16, v{gg+5}
v_sub_f32 v{e0}, v{gg+2}, v{M}
v_sub_f32 v{e1}, v{gg+6}, v{M}
v_exp_f32 v{e0}, v{e0}
v_exp_f32 v{e1}, v{e1}
v_and_b32 v{u+7}, 0xffff0000, v{gg+5}
v_add_f32 v{S}, v{e0}, v{e1}
v_mul_f32 v{oo}, v{e0}, v{u}
v_mul_f32 v{oo+1}, v{e0}, v{u+1}
v_mov_b32 v{mt}, v{S}
v_mul_f32 v{oo+2}, v{e0}, v{u+2}
v_mul_f32 v{oo+3}, v{e0}, v{u+3}
v_permlane16_swap_b32 v{S}, v{mt}
v_fmac_f32 v{oo}, v{e1}, v{u+4}
v_fmac_f32 v{oo+1}, v{e1}, v{u+5}
v_add_f32 v{S}, v{S}, v{mt}
v_fmac_f32 v{oo+2}, v{e1}, v{u+6}
v_fmac_f32 v{oo+3}, v{e1}, v{u+7}
v_mov_b32 v{mt}, v{S}
v_permlane16_swap_b32 v{oo}, v{oo+1}
s_nop 0
v_permlane16_swap_b32 v{oo+2}, v{oo+3}
v_permlane32_swap_b32 v{S}, v{mt}
v_add_f32 v{oo}, v{oo}, v{oo+1}
v_add_f32 v{oo+2}, v{oo+2}, v{oo+3}
v_add_f32 v{S}, v{S}, v{mt}
s_nop 0
v_permlane32_swap_b32 v{oo}, v{oo+2}
v_rcp_f32 v{S}, v{S}
v_add_f32 v{oo}, v{oo}, v{oo+2}
v_mul_f32 v{oo}, v{oo}, v{S}
v_cvt_pk_bf16_f32 v{oo}, v{oo}, v{oo}
ds_write_b16 v{vOLw}, v{oo} offset:{OL}
""")
    setflag(F_O)
    a(f"s_add_u32 s{sT2}, s{sFG}, 65536\ns_mov_b32 s{sCnt}, {spin}")
    waitflags(group=F_O)
    ob = B16 + 8; y = C32; yg = E8
    a(f"""
ds_read_b128 {rng(ob,4)}, v{vOLr} offset:{OL}
ds_read_b128 {rng(ob+4,4)}, v{vOLr} offset:{OL+64}
""")
    for s in range(2):
        a(f"s_waitcnt lgkmcnt({1-s})")
        for tp in range(2):
            c = "0" if s == 0 else rng(y+4*tp,4)
            if ycoal: a(f"v_mfma_f32_16x16x32_bf16 {rng(y+4*tp,4)}, {rng(ob+4*s,4)}, {rng(wb+8*s+4*tp,4)}, {c}")
            else: a(f"v_mfma_f32_16x16x32_bf16 {rng(y+4*tp,4)}, {rng(wb+8*s+4*tp,4)}, {rng(ob+4*s,4)}, {c}")
    if ycoal:
        a(f"v_mov_b32 v{E8+3}, s{sTag}\ns_nop 6")
        for r in range(4): a(f"v_cndmask_b32 v{y+r}, v{y+r}, v{y+4+r}, s[{sG1}:{sG1+1}]")
        a(f"""v_perm_b32 v{yg}, v{y}, v{y+3}, s{sP0}
v_perm_b32 v{yg+1}, v{y+1}, v{y+3}, s{sP1}
v_perm_b32 v{yg+2}, v{y+2}, v{y+3}, s{sP2}
buffer_store_dwordx4 {rng(yg,4)}, v{vYst}, s[28:31], s{sYst} offen sc1""")
    else:
        a(f"v_mov_b32 v{E8+3}, s{sTag}\nv_mov_b32 v{E8+7}, s{sTag}\ns_nop 4")
        for tp in range(2):
            a(f"""v_perm_b32 v{yg+4*tp}, v{y+4*tp}, v{y+4*tp+3}, s{sP0}
v_perm_b32 v{yg+4*tp+1}, v{y+4*tp+1}, v{y+4*tp+3}, s{sP1}
v_perm_b32 v{yg+4*tp+2}, v{y+4*tp+2}, v{y+4*tp+3}, s{sP2}
buffer_store_dwordx4 {rng(yg+4*tp,4)}, v{vYst}, s[28:31], s{sYst} offen offset:{tp*64} sc1""")
    setflag(F_YI)
    ST_("y published")
    waitflags(group=F_YI)
    for x_ in QFL + OFL: a(x_)
    z = C32 + 24
    fg = C32 + 16
    a(f"""s_cmp_lg_u32 {W}, 0
s_cbranch_scc1 L_fin
L_fpoll:
buffer_load_dwordx4 {rng(fg,4)}, v{vFG}, s[28:31], s{sFG} offen sc1
buffer_load_dwordx4 {rng(fg+4,4)}, v{vFG}, s[28:31], s{sT2} offen sc1
s_waitcnt vmcnt(0)
v_cmp_ne_u32 vcc, s{sTag}, v{fg+3}
v_cmp_ne_u32 s[{sa_tmp}:{sa_tmp+1}], s{sTag}, v{fg+7}
s_or_b64 vcc, vcc, s[{sa_tmp}:{sa_tmp+1}]
s_cbranch_vccz L_fok
s_sub_u32 s{sCnt}, s{sCnt}, 1
s_cbranch_scc0 L_fpoll
L_fok:""")
    ST_("final gathered")
    a(f"""
v_perm_b32 v{z+3}, v{fg}, v{fg+1}, s{sU0}
v_perm_b32 v{z+7}, v{fg+4}, v{fg+5}, s{sU0}
v_add_f32 v{z}, v{fg}, v{fg+4}
v_perm_b32 v{z+3}, v{z+3}, v{fg+2}, s{sU1}
v_perm_b32 v{z+7}, v{z+7}, v{fg+6}, s{sU1}
v_add_f32 v{z+1}, v{fg+1}, v{fg+5}
v_add_f32 v{z+2}, v{fg+2}, v{fg+6}
v_add_f32 v{z+3}, v{z+3}, v{z+7}
""")
    for ctl in ("quad_perm:[2,3,0,1]", "row_ror:4", "row_ror:8"):
        for r in range(4):
            a(f"v_add_f32_dpp v{z+r}, v{z+r}, v{z+r} {ctl} row_mask:0xf bank_mask:0xf")
    a(f"""
s_nop 0
v_permlane16_swap_b32 v{z}, v{z+1}
v_permlane16_swap_b32 v{z+2}, v{z+3}
s_nop 0
v_add_f32 v{z}, v{z}, v{z+1}
v_add_f32 v{z+2}, v{z+2}, v{z+3}
s_nop 1
v_permlane32_swap_b32 v{z}, v{z+2}
s_nop 0
v_add_f32 v{z}, v{z}, v{z+2}
v_cvt_pk_bf16_f32 v{z}, v{z}, v{z}
buffer_store_short v{z}, v{vOut}, s[32:35], 0 offen
s_cmp_lg_u32 s2, 0
s_cbranch_scc1 L_fin
v_mov_b32 v{t0}, s{sTag}
v_mov_b32 v{t1}, 0
s_mov_b64 exec, 1
buffer_store_dword v{t0}, v{t1}, s[28:31], 0 offen sc1
s_mov_b64 exec, -1
L_fin:
""")
    a("s_branch L_tail" if stamp else "s_endpgm")
    for name, c in cold:
        for x_ in c: a(x_)
    a("; WARM_END")
    for c in colder:
        for x_ in c: a(x_)
    a("L_tail:")
    if stamp:
        a(f"s_mov_b32 s31, 0x20000\ns_mov_b32 s30, {WS_BYTES}")
    if amp >= 0:
        ST_("end")
        e = nst[0] - 1
        a(f"""
s_waitcnt lgkmcnt(0)
s_cmp_lg_u32 {W}, 0
s_cbranch_scc1 L_end
""")
        if ampglob:
            a(f"""
s_lshl_b32 s37, s2, 3
s_add_u32 s37, s37, {ST}
v_mov_b32 v{C32}, s{SB}
v_mov_b32 v{C32+1}, s{sTag}
v_mov_b32 v{t1}, 0
s_mov_b64 exec, 1
buffer_store_dwordx2 v[{C32}:{C32+1}], v{t1}, s[28:31], s37 offen sc1
s_mov_b64 exec, -1
""")
        a(f"""
s_cmp_lg_u32 s2, 0
s_cbranch_scc1 L_end
""")
        if ampglob:
            a(f"""
s_mov_b32 s37, {ST}
v_lshlrev_b32 v{t1}, 5, v{l}
L_ag:
buffer_load_dwordx4 v[{C32}:{C32+3}], v{t1}, s[28:31], s37 offen sc1
buffer_load_dwordx4 v[{C32+4}:{C32+7}], v{t1}, s[28:31], s37 offen offset:16 sc1
s_waitcnt vmcnt(0)
v_cmp_ne_u32 vcc, s{sTag}, v{C32+1}
v_cmp_ne_u32 s[40:41], s{sTag}, v{C32+3}
s_or_b64 vcc, vcc, s[40:41]
v_cmp_ne_u32 s[40:41], s{sTag}, v{C32+5}
s_or_b64 vcc, vcc, s[40:41]
v_cmp_ne_u32 s[40:41], s{sTag}, v{C32+7}
s_or_b64 vcc, vcc, s[40:41]
s_cbranch_vccnz L_ag
v_subrev_u32 v{C32}, s{SB}, v{C32}
v_subrev_u32 v{C32+2}, s{SB}, v{C32+2}
v_subrev_u32 v{C32+4}, s{SB}, v{C32+4}
v_subrev_u32 v{C32+6}, s{SB}, v{C32+6}
v_min_i32 v{C32}, v{C32}, v{C32+2}
v_min_i32 v{C32+4}, v{C32+4}, v{C32+6}
v_min_i32 v{C32}, v{C32}, v{C32+4}
s_nop 1
v_min_i32_dpp v{C32}, v{C32}, v{C32} row_ror:1 row_mask:0xf bank_mask:0xf
s_nop 1
v_min_i32_dpp v{C32}, v{C32}, v{C32} row_ror:2 row_mask:0xf bank_mask:0xf
s_nop 1
v_min_i32_dpp v{C32}, v{C32}, v{C32} row_ror:4 row_mask:0xf bank_mask:0xf
s_nop 1
v_min_i32_dpp v{C32}, v{C32}, v{C32} row_ror:8 row_mask:0xf bank_mask:0xf
s_nop 1
v_readlane_b32 s36, v{C32}, 0
v_readlane_b32 s37, v{C32}, 16
v_readlane_b32 s38, v{C32}, 32
v_readlane_b32 s39, v{C32}, 48
s_nop 3
s_min_i32 s36, s36, s37
s_min_i32 s38, s38, s39
s_min_i32 s36, s36, s38
s_sub_u32 s37, s{SB+2*amp}, s{SB}
s_sub_u32 s37, s37, s36
s_memrealtime s[40:41]
s_waitcnt lgkmcnt(0)
s_mul_i32 s37, s37, {ampk}
s_add_u32 s37, s37, s40
""")
        else:
            a(f"""
s_sub_u32 s37, s{SB+2*amp}, s{SB}
s_mul_i32 s37, s37, {ampk}
s_add_u32 s37, s37, s{SB+2*e}
""")
        a(f"""
L_amp:
s_memrealtime s[40:41]
s_waitcnt lgkmcnt(0)
s_cmp_lt_u32 s40, s37
s_cbranch_scc1 L_amp
""")
    elif stamp:
        ST_("end")
        n = nst[0]
        a(f"""
s_waitcnt lgkmcnt(0) vmcnt(0)
s_mul_i32 s4, s2, 8
s_add_u32 s4, s4, s3
s_lshl_b32 s4, s4, 6
s_add_u32 s4, s4, {ST}
v_mov_b32 v{t1}, 0
s_mov_b64 exec, 1
""")
        for i in range(n):
            a(f"v_mov_b32 v{t0}, s{SB+2*i}\nbuffer_store_dword v{t0}, v{t1}, s[28:31], s4 offen offset:{4*i}\ns_nop 0")
    a("L_end:\ns_endpgm")
    lines = a.L
    nh = 0
    if warm:
        lines, nh, have = hops.insert(lines, nparts)
        assert have == nparts, (have, nparts)
    body = "\n".join(lines) + "\n"
    assert sa.hi <= SB and ls.hi <= SB, (sa.hi, ls.hi)
    nv = max(va.hi, lv.hi)
    s = header([f"; @launch grid=(256,1,1) block=(320,1,1) lds={LDS_BYTES}"]) + kernel_begin(KNAME) + body + RODATA + descriptor(KNAME, nv, 102 if stamp else max(sa.hi, ls.hi))
    errs = haz.check(body)
    for e in errs: print("HAZ", e)
    return s, nv, sa.hi, nh, stn
if __name__ == "__main__":
    out = sys.argv[1]
    kw = {}
    for x in sys.argv[2:]:
        k, v = x.split("=")
        if k in ("warm", "prio", "holdwo", "rot", "rotq", "ilv", "ycoal", "xnt", "xfirst"): kw[k] = (v == "1")
        elif k == "nt": kw[k] = (" " + v if v else "")
        else: kw[k] = int(v)
    s, nv, ns, nh, stn = gen(**kw)
    open(out, "w").write(s)
    print("vgprs", nv, "sgprs", ns, "hops", nh, "lds", LDS_BYTES, stn)
```

```python
import sys, struct
sys.path.insert(0, "my")
from ag import *
import haz, hops

import os
WSB = int(os.environ.get('WSB', '0'), 0)
QF = WSB + 0x10000
OF = WSB + 0x80000
OX = WSB + 0x100000
SOFF = 0x200000
ST = 0x400000
WS_BYTES = 268435456
QL = 0
PL = QL + 1280
SL = PL + 1024
OL = SL + 64
FL = 3136
JK = FL + 160
XL = 3840; WQ = XL + 1024; KL = WQ + 16384; VL = KL + 32768
import os
if os.environ.get('ALIAS', '0') == '1':
    WO = WQ; LDS_BYTES = VL + 32768
else:
    WO = VL + 32768; LDS_BYTES = WO + 16384
assert OL + 768 <= FL and JK + 416 <= XL and XL % 256 == 0 and WQ % 256 == 0
F_Q, F_P, F_O, F_GI, F_QI, F_GOK, F_OI, F_YI, F_GO, F_K, F_V, F_W = 0, 16, 32, 48, 64, 80, 96, 112, 128, 132, 136, 140
CSC = 0.08838834764831845 * 1.4426950408889634
def f32(x): return "0x%08x" % struct.unpack("<I", struct.pack("<f", x))[0]
class V:
    def __init__(s, n=0): s.n = n; s.hi = n
    def __call__(s, cnt=1, align=1):
        s.n = (s.n + align - 1) // align * align
        r = s.n; s.n += cnt; s.hi = max(s.hi, s.n)
        return r
def rng(r, n): return f"v[{r}:{r+n-1}]"
OOB = "0x7ffffff0"

def gen(stamp=False, nt=" nt", hold=0, kx=32, nmid=32, lgo=60, holdwo=False, rot=True, rotq=True, fd=1, fsleep=0, nooi=0, n1p=0, noflush=0, sameS=0, dirty=0, cqx=0, xnt=False, xfirst=False, ilv=True, ycoal=True, wthr=2000, n3=0, n2=0, N=24, spin=100000, nf=64, amp=-1, ampk=10, ampglob=0, warm=True, pt=1, nparts=4, prio=True, step=2):
    if amp >= 0: stamp = True
    a = A(); va = V(1); sa = V(36)
    l = va(); t0 = va(); t1 = va(); t2 = va(); t3 = va()
    nst = [0]; stn = []
    SB = 74 if pt == 12 else 72
    def ST_(label):
        if stamp and (stamp != 2 or label in ('entry', 'end')):
            i = nst[0]; nst[0] += 1; stn.append(label)
            assert i < (14 if pt == 12 else 15)
            a(f"s_memrealtime s[{SB+2*i}:{SB+1+2*i}]")
    W, G, R, B, C = "s3", "s4", "s5", "s6", "s7"
    sT = sa(); sT2 = sa(); sWin = sa()
    a(f"""
s_cmp_ge_u32 s2, 256
s_cbranch_scc1 L_end
s_load_dwordx2 s[20:21], s[0:1], 24
s_load_dwordx2 s[8:9], s[0:1], 0
s_load_dwordx2 s[12:13], s[0:1], 8
s_load_dwordx2 s[28:29], s[0:1], 56
s_load_dwordx2 s[16:17], s[0:1], 16
s_load_dwordx2 s[24:25], s[0:1], 32
s_load_dwordx2 s[32:33], s[0:1], 40
""")
    ST_("entry")
    a(f"""
v_lshrrev_b32 v{t0}, 6, v0
v_and_b32 v{l}, 63, v0
s_and_b32 {G}, s2, 7
v_readfirstlane_b32 {W}, v{t0}
s_lshr_b32 {R}, s2, 3
s_lshr_b32 {B}, {R}, 3
s_and_b32 {C}, {R}, 7
s_mov_b32 s23, 0x20000
v_lshrrev_b32 v{t0}, 4, v{l}
v_and_b32 v{t1}, 15, v{l}
""")
    if stamp: a(f"s_mov_b32 s31, s23\ns_mov_b32 s30, {WS_BYTES}\ns_mov_b32 s35, s23\ns_movk_i32 s34, 0x1000")
    a(f"""
s_cmp_lt_u32 {W}, 4
s_cbranch_scc1 L_compute
""")
    lv = V(va.n); ls = V(sa.n)
    vWQ = lv(2); vX = lv(); vK = lv(4); vV = lv(2); vWO = lv(2); vLF = lv(); vOne = lv()
    sWQ = ls(); sX = ls(); sK = ls(); sWO = ls(); lT = ls(); sWQb0 = ls()
    if prio: a("s_setprio 2")
    a(f"""
s_mov_b32 s22, 0x400000
v_and_b32 v{t2}, 7, v{l}
v_lshlrev_b32 v{t3}, 1, v{t0}
v_and_b32 v{vX}, 2, v{t3}
v_xor_b32 v{t2}, v{t2}, v{vX}
v_lshlrev_b32 v{t2}, 4, v{t2}
v_lshrrev_b32 v{vX}, 3, v{l}
v_lshl_add_u32 v{vWQ}, v{vX}, 13, v{t2}
v_xor_b32 v{vWQ+1}, 64, v{vWQ}
s_lshl_b32 s{sWQb0}, {G}, 3
s_xor_b32 s{lT}, {C}, {cqx}
s_add_u32 s{sWQb0}, s{sWQb0}, s{lT}
s_lshl_b32 s{sWQb0}, s{sWQb0}, 7
s_lshl_b32 s{lT}, {B}, 20
s_add_u32 s{sWQb0}, s{sWQb0}, s{lT}
s_mov_b32 s11, s23
s_movk_i32 s10, 0x1000
s_mov_b32 s15, s23
s_mov_b32 s14, 0x2000000
; x voffset: (l>>4)*1024 + ((l&15) ^ (4*(l>>4)))*16
v_lshlrev_b32 v{t2}, 2, v{t0}
v_xor_b32 v{t2}, v{t1}, v{t2}
v_lshlrev_b32 v{t2}, 4, v{t2}
v_lshl_add_u32 v{vX}, v{t0}, 10, v{t2}
s_lshl_b32 s{sX}, {B}, 8
s_waitcnt lgkmcnt(0)
""")
    seq = []
    sRho = ls(); sJ = ls(); sWQb = sWQb0
    for i in range(16):
        pre = []
        if i % 4 == 0:
            j_ = i // 4
            if rotq:
                pre += [f"s_add_u32 s{sJ}, {B}, {j_}", f"s_and_b32 s{sJ}, s{sJ}, 3", f"s_lshl_b32 s{lT}, s{sJ}, 18", f"s_add_u32 s{sWQ}, s{sWQb}, s{lT}",
                        f"s_lshl_b32 s{lT}, s{sJ}, 12", f"s_add_u32 m0, s{lT}, {WQ}"]
            else:
                pre += [f"s_add_u32 s{sWQ}, s{sWQb}, {j_ << 18}", f"s_mov_b32 m0, {WQ + j_*4096}"]
            pre.append("s_nop 0")
        else:
            pre.append(f"s_add_u32 s{sWQ}, s{sWQ}, {65536 - 1024}")
        seq.append((pre, f"buffer_load_dwordx4 v{vWQ + (i & 1)}, s[20:23], s{sWQ} offen offset:{(i%4)*1024}{nt} lds"))
    seq.append(([f"s_movk_i32 m0, {XL}", "s_nop 0"], f"buffer_load_dwordx4 v{vX}, s[8:11], s{sX} offen{' nt' if xnt else ''} lds"))
    if xfirst: seq.insert(0, seq.pop())
    kpre = f"""; K voffsets: (l>>4)*256 + ((l&15)^(l>>4))*16  ^ (64*i)
v_xor_b32 v{t2}, v{t1}, v{t0}
v_lshlrev_b32 v{t2}, 4, v{t2}
v_lshl_add_u32 v{vK}, v{t0}, 8, v{t2}
v_xor_b32 v{vK+1}, 64, v{vK}
v_xor_b32 v{vK+2}, 0x80, v{vK}
v_xor_b32 v{vK+3}, 0xc0, v{vK}
; flag address vgpr: lane0 -> FL, else JK + 4*l
v_lshlrev_b32 v{t2}, 2, v{l}
v_add_u32 v{t2}, {JK}, v{t2}
v_cmp_eq_u32 vcc, 0, v{l}
v_mov_b32 v{vLF}, {FL}
v_mov_b32 v{vOne}, 1
v_cndmask_b32 v{vLF}, v{t2}, v{vLF}, vcc
; window base = (b*8+g)<<20 + 3072*256 + c*(32768 or 4096)
s_lshl_b32 s{sWin}, {B}, 3
s_add_u32 s{sWin}, s{sWin}, {G}
s_lshl_b32 s{sWin}, s{sWin}, 5
s_add_u32 s{sWin}, s{sWin}, 24
s_lshl_b32 s{sWin}, s{sWin}, 15
s_lshl_b32 s{sJ}, {C}, {12 if ilv else 15}
s_add_u32 s{sWin}, s{sWin}, s{sJ}
; rho*4096 : rho = (g + 2b) & 7
s_lshl_b32 s{sRho}, {B}, 1
s_add_u32 s{sRho}, s{sRho}, {G}
s_and_b32 s{sRho}, s{sRho}, {7 if rot else 0}
s_lshl_b32 s{sRho}, s{sRho}, 12""".split("\n")
    def grp(j_, ldsbase):
        if ilv:
            return [f"s_add_u32 s{sJ}, s{sRho}, {j_*4096}", f"s_and_b32 s{sJ}, s{sJ}, 0x7fff", f"s_add_u32 m0, s{sJ}, {ldsbase}", f"s_lshl_b32 s{sJ}, s{sJ}, 3", f"s_add_u32 s{sK}, s{sWin}, s{sJ}"]
        return [f"s_add_u32 s{sJ}, s{sRho}, {j_*4096}", f"s_and_b32 s{sJ}, s{sJ}, 0x7fff", f"s_add_u32 m0, s{sJ}, {ldsbase}", f"s_add_u32 s{sK}, s{sWin}, s{sJ}"]
    for i in range(32):
        pre = list(kpre) if i == 0 else []
        if i % 4 == 0: pre += grp(i // 4, KL)
        seq.append((pre, f"buffer_load_dwordx4 v{vK+i%4}, s[12:15], s{sK} offen offset:{(i%4)*1024}{nt} lds"))
    vpre = f"""s_mov_b32 s19, s23
s_mov_b32 s18, s14
; V voffset: (l>>4)*256 + ((l&15) ^ ((l>>4)<<1))*16 ; odd: ^128 ; WO: (l>>4)*1024 + same piece
v_xor_b32 v{t2}, v{t1}, v{t3}
v_lshlrev_b32 v{t2}, 4, v{t2}
v_lshl_add_u32 v{vV}, v{t0}, 8, v{t2}
v_xor_b32 v{vV+1}, 0x80, v{vV}
v_lshl_add_u32 v{vWO}, v{t0}, 10, v{t2}
v_xor_b32 v{vWO+1}, 0x80, v{vWO}
s_mov_b32 s27, s23
s_mov_b32 s26, s22
; WO soff = p<<16 + cg*256 ; p = g*8 + r/4 ; cg = r&3
s_lshr_b32 s{lT}, {R}, 2
s_lshl_b32 s{sWO}, {G}, 3
s_add_u32 s{sWO}, s{sWO}, s{lT}
s_lshl_b32 s{sWO}, s{sWO}, 8
s_and_b32 s{lT}, {R}, 3
s_add_u32 s{sWO}, s{sWO}, s{lT}
s_lshl_b32 s{sWO}, s{sWO}, 8""".split("\n")
    for i in range(32):
        pre = list(vpre) if i == 0 else []
        if i % 4 == 0: pre += grp(i // 4, VL)
        seq.append((pre, f"buffer_load_dwordx4 v{vV+(i&1)}, s[16:19], s{sK} offen offset:{(i%4)*1024}{nt} lds"))
    for i in range(16):
        pre = []
        if i == 0: pre += [f"s_mov_b32 m0, {WO}", "s_nop 0"]
        elif i % 4 == 0: pre.append("s_add_u32 m0, m0, 4096")
        if i: pre.append(f"s_add_u32 s{sWO}, s{sWO}, {4096 - 1024 if i % 4 else 4096 + 3072}")
        seq.append((pre, f"buffer_load_dwordx4 v{vWO+((i>>1)&1)}, s[24:27], s{sWO} offen offset:{(i%4)*1024}{nt} lds"))
    T = len(seq); assert T == 97
    def emit(k):
        pre, ld = seq[k]
        for p in pre: a(p)
        a(ld)
    for k in range(17): emit(k)
    ST_("L: wq issued")
    pre17, ld17 = seq[17]
    for p in pre17: a(p)
    n0 = 17 + kx
    if kx > 0:
        if hold: a(f"s_waitcnt vmcnt({17 - hold})")
        a(ld17)
        for k in range(18, n0):
            if n1p and k >= n1p: a(f"s_waitcnt vmcnt({n1p - 1})")
            emit(k)
    else:
        seq[17] = ([], ld17)
    ST_("L: K issued")
    lfl = lv(4, 4)
    a(f"v_mov_b32 v{t2}, {FL}")
    a(f"s_waitcnt vmcnt({n0 - 17})\ns_barrier")
    ST_("L: wq landed")
    def lwait(name, off):
        a(f"""L_{name}:
ds_read_b128 v[{lfl}:{lfl+3}], v{t2} offset:{off}
s_waitcnt lgkmcnt(0)
v_and_b32 v{lfl}, v{lfl}, v{lfl+1}
v_and_b32 v{lfl+2}, v{lfl+2}, v{lfl+3}
v_and_b32 v{lfl}, v{lfl}, v{lfl+2}
v_cmp_eq_u32 vcc, 0, v{lfl}
s_cbranch_vccnz L_{name}""")
    vFA = lv()
    a(f"v_mov_b32 v{vFA}, {FL}")
    def lwait(name, off):
        a(f"""L_{name}:
ds_read_b128 v[{lfl}:{lfl+3}], v{vFA} offset:{off}
s_waitcnt lgkmcnt(0)
v_and_b32 v{lfl}, v{lfl}, v{lfl+1}
v_and_b32 v{lfl+2}, v{lfl+2}, v{lfl+3}
v_and_b32 v{lfl}, v{lfl}, v{lfl+2}
v_cmp_eq_u32 vcc, 0, v{lfl}
s_cbranch_vccnz L_{name}""")
    lwait("qi", F_QI)
    n1 = 49 + nmid
    for k in range(n0, n1):
        if n2: a(f"s_waitcnt vmcnt({n2 - 1})")
        emit(k)
    assert lgo <= n1 and n1 <= T
    a(f"s_waitcnt vmcnt({n1 - lgo})")
    a(f"ds_write_b32 v{vLF}, v{vOne} offset:{F_GO}")
    lwait("gi", F_GI)
    for k in range(n1, T):
        if k == 81 and holdwo: lwait("gok", F_GOK)
        if n3: a(f"s_waitcnt vmcnt({n3 - 1})")
        emit(k)
    if lgo < 49: a(f"s_waitcnt vmcnt({T - 49})\nds_write_b32 v{vLF}, v{vOne} offset:{F_K}")
    for cnt, f in ((81, F_V), (97, F_W)):
        a(f"s_waitcnt vmcnt({T - cnt})\nds_write_b32 v{vLF}, v{vOne} offset:{f}")
    ST_("L: all landed")
    if stamp: a("s_branch L_fin")
    else: a("s_endpgm")
    a("L_compute:")
    g = va(); n16 = va(); n4 = va()
    sQB = sa(); sOB = sa(); sEp = sa(); sTag = sa(); vPT = va()
    a(f"""
s_mov_b32 s31, s23
s_mov_b32 s30, {WS_BYTES}
s_mov_b32 s35, s23
s_movk_i32 s34, 0x1000
s_lshl_b32 s{sQB}, {G}, 4
s_add_u32 s{sQB}, s{sQB}, {B}
s_lshl_b32 s{sQB}, s{sQB}, 11
s_xor_b32 s{sT}, {C}, {cqx}
s_lshl_b32 s{sT}, s{sT}, 8
s_add_u32 s{sQB}, s{sQB}, s{sT}
s_add_u32 s{sQB}, s{sQB}, {QF}
s_lshl_b32 s{sOB}, {B}, 3
s_add_u32 s{sOB}, s{sOB}, {G}
s_lshl_b32 s{sOB}, s{sOB}, 5
s_add_u32 s{sOB}, s{sOB}, {C}
s_lshl_b32 s{sOB}, s{sOB}, 9
s_add_u32 s{sOB}, s{sOB}, {OF}
""")
    vPTa = va()
    if pt in (1, 3, 7):
        a(f"""
s_mul_i32 s{sT}, {W}, 6
v_add_u32 v{t3}, s{sT}, v{l}
v_lshrrev_b32 v{t0}, 1, v{t3}
v_lshlrev_b32 v{t0}, 13, v{t0}
v_and_b32 v{t1}, 1, v{t3}
v_lshl_or_b32 v{t0}, v{t1}, 7, v{t0}
v_add_u32 v{t0}, s{sQB}, v{t0}
v_subrev_u32 v{t1}, 8, v{t3}
v_lshrrev_b32 v{t2}, 2, v{t1}
v_lshlrev_b32 v{t2}, 12, v{t2}
v_and_b32 v{t1}, 3, v{t1}
v_lshl_or_b32 v{t2}, v{t1}, 7, v{t2}
v_add_u32 v{t2}, s{sOB}, v{t2}
v_cmp_gt_u32 vcc, 8, v{t3}
v_mov_b32 v{t3}, {OOB}
s_nop 0
v_cndmask_b32 v{t0}, v{t2}, v{t0}, vcc
v_cmp_gt_u32 vcc, 6, v{l}
s_waitcnt lgkmcnt(0)
s_load_dword s{sEp}, s[28:29], 0
v_cndmask_b32 v{vPTa}, v{t3}, v{t0}, vcc
""")
        if pt != 7: a(f"buffer_load_dword v{vPT}, v{vPTa}, s[28:31], 0 offen{' nt' if pt == 3 else ''}")
    else:
        a(f"s_mov_b32 s{sT}, {WSB}\ns_waitcnt lgkmcnt(0)\ns_load_dword s{sEp}, s[28:29], s{sT}" if WSB else f"s_waitcnt lgkmcnt(0)\ns_load_dword s{sEp}, s[28:29], 0")
        if pt in (10, 11, 12):
            sD = sa(); sO1 = sa(); sO2 = sa()
            a(f"s_lshl_b32 s{sT}, {W}, 13\ns_add_u32 s{sO1}, s{sQB}, s{sT}\ns_lshl_b32 s{sT}, {W}, 12\ns_add_u32 s{sO2}, s{sOB}, s{sT}")
            stp = 128 if pt == 11 else 64
            ypt = [f"s_load_dword s{sD}, s[28:29], s{sO1} offset:{o}" for o in range(0, 256, stp)] + [f"s_load_dword s{sD}, s[28:29], s{sO2} offset:{o}" for o in range(0, 512, stp)]
            if pt == 12:
                sO3 = sT2
                sO3 = sa()
                a(f"""s_and_b32 s{sO3}, {R}, 3
s_lshl_b32 s{sO3}, s{sO3}, 6
s_lshl_b32 s{sT}, {G}, 3
s_add_u32 s{sO3}, s{sO3}, s{sT}
s_lshr_b32 s{sT}, {R}, 2
s_add_u32 s{sO3}, s{sO3}, s{sT}
s_lshl_b32 s{sO3}, s{sO3}, 2
s_add_u32 s{sO3}, s{sO3}, {W}
s_lshl_b32 s{sO3}, s{sO3}, 9
s_add_u32 s{sO3}, s{sO3}, {OX + SOFF}""")
                ypt += [f"s_load_dword s{sD}, s[28:29], s{sO3} offset:{o}" for o in range(0, 512, 64)]
        if pt in (8, 9):
            sD = sa(); sO1 = sa()
            a(f"s_lshl_b32 s{sT}, {W}, 13\ns_add_u32 s{sO1}, s{sQB}, s{sT}")
            for o in range(0, 256, 64): a(f"s_load_dword s{sD}, s[28:29], s{sO1} offset:{o}")
            a(f"s_lshl_b32 s{sT}, {W}, 12\ns_add_u32 s{sO1}, s{sOB}, s{sT}")
            for o in range(0, 512, 64): a(f"s_load_dword s{sD}, s[28:29], s{sO1} offset:{o}")
            if pt == 9:
                a(f"""s_and_b32 s{sO1}, {R}, 3
s_lshl_b32 s{sO1}, s{sO1}, 6
s_lshl_b32 s{sT}, {G}, 3
s_add_u32 s{sO1}, s{sO1}, s{sT}
s_lshr_b32 s{sT}, {R}, 2
s_add_u32 s{sO1}, s{sO1}, s{sT}
s_lshl_b32 s{sO1}, s{sO1}, 2
s_add_u32 s{sO1}, s{sO1}, {W}
s_lshl_b32 s{sO1}, s{sO1}, 9
s_add_u32 s{sO1}, s{sO1}, {OX + SOFF}""")
                ypt = [f"s_load_dword s{sD}, s[28:29], s{sO1} offset:{o}" for o in range(0, 512, 64)]
        if pt in (2, 4, 6):
            a(f"""
s_lshl_b32 s{sT}, {W}, 12
s_add_u32 s{sT}, s{sT}, s{sOB}
v_lshlrev_b32 v{t0}, 7, v{l}
v_add_u32 v{t0}, s{sT}, v{t0}
v_cmp_gt_u32 vcc, 4, v{l}
v_mov_b32 v{t3}, {OOB}
s_nop 0
v_cndmask_b32 v{vPTa}, v{t3}, v{t0}, vcc
""")
    if warm:
        a("s_mov_b64 exec, 0")
        for p in range(1, nparts):
            a(f"s_cmp_eq_u32 {W}, {p}\ns_cbranch_scc1 HOP_P{p}")
        a("s_branch HOP_P0\nL_warm_done:\ns_mov_b64 exec, -1")
    a("; WARM_START")
    sP = sa(); sCG = sa(); sR4 = sa()
    vXr = va(4); vWQr = va(); vKr = va(4); vVr = va(2); vWOr = va(2)
    vQst = va(); vG = va(); sG = sa(); vQLw = va(); vQLr = va()
    vPw = va(); vPr = va(); vSw = va(); vSr = va()
    vOst = va(); vOG = va(); sOG = sa(); vOLw = va(); vOLr = va()
    vYst = va(); sYst = sa(); vFG = va(); sFG = sa(); vOut = va()
    vFw = va(); vFr = va(); vOne_c = va()
    sCsc = sa(); sP0 = sa(); sP1 = sa(); sP2 = sa(); sU0 = sa(); sU1 = sa(); sM4 = sa(2, 2); sG1 = sa(2, 2); sCnt = sa()
    a(f"""
v_lshrrev_b32 v{g}, 4, v{l}
v_and_b32 v{n16}, 15, v{l}
v_and_b32 v{n4}, 3, v{l}
v_lshlrev_b32 v{t2}, 2, v{l}
v_mov_b32 v{t3}, 0
ds_write_b32 v{t2}, v{t3} offset:{FL}
v_add_u32 v{t2}, {JK}, v{t2}
s_lshl_b32 s{sT}, {W}, 2
s_add_u32 s{sT}, s{sT}, {FL}
v_mov_b32 v{vFw}, s{sT}
v_cmp_eq_u32 vcc, 0, v{l}
v_mov_b32 v{vFr}, {FL}
v_mov_b32 v{vOne_c}, 1
v_cndmask_b32 v{vFw}, v{t2}, v{vFw}, vcc
; p = g*8 + r/4 ; cg = r&3
s_lshr_b32 s{sR4}, {R}, 2
s_lshl_b32 s{sP}, {G}, 3
s_add_u32 s{sP}, s{sP}, s{sR4}
s_and_b32 s{sCG}, {R}, 3
v_lshlrev_b32 v{t2}, 2, v{n4}
v_xor_b32 v{t2}, v{g}, v{t2}
v_lshlrev_b32 v{t2}, 4, v{t2}
v_lshl_add_u32 v{t2}, v{n4}, 8, v{t2}
v_add_u32 v{vXr}, {XL}, v{t2}
v_xor_b32 v{vXr+1}, 64, v{vXr}
v_xor_b32 v{vXr+2}, 0x80, v{vXr}
v_xor_b32 v{vXr+3}, 0xc0, v{vXr}
v_bfe_u32 v{t0}, v{l}, 2, 2
v_lshl_add_u32 v{t2}, v{g}, 3, v{t0}
v_lshlrev_b32 v{t2}, 7, v{t2}
v_lshl_add_u32 v{t2}, v{n4}, 3, v{t2}
v_lshrrev_b32 v{t3}, 1, v{t0}
v_and_b32 v{t1}, 1, v{g}
v_lshl_or_b32 v{t3}, v{t1}, 1, v{t3}
v_xor_b32 v{t3}, {W}, v{t3}
v_lshl_add_u32 v{t2}, v{t3}, 5, v{t2}
v_add_u32 v{vWQr}, {WQ}, v{t2}
s_lshl_b32 s{sT}, {W}, 13
s_add_u32 s{sT}, s{sT}, {KL}
v_xor_b32 v{t2}, v{g}, v{n16}
v_lshlrev_b32 v{t2}, 4, v{t2}
v_lshl_add_u32 v{t2}, v{n16}, 8, v{t2}
v_add_u32 v{vKr}, s{sT}, v{t2}
v_xor_b32 v{vKr+1}, 64, v{vKr}
v_xor_b32 v{vKr+2}, 0x80, v{vKr}
v_xor_b32 v{vKr+3}, 0xc0, v{vKr}
v_lshl_add_u32 v{t2}, v{g}, 2, v{t0}
v_lshlrev_b32 v{t2}, 8, v{t2}
v_lshl_add_u32 v{t2}, v{n4}, 3, v{t2}
v_lshl_or_b32 v{t3}, v{t1}, 2, v{t0}
s_lshl_b32 s{sT}, {W}, 1
v_xor_b32 v{t3}, s{sT}, v{t3}
v_lshl_add_u32 v{t2}, v{t3}, 5, v{t2}
v_add_u32 v{vVr}, {VL}, v{t2}
v_xor_b32 v{vVr+1}, 32, v{vVr}
v_lshl_add_u32 v{t2}, v{g}, 3, v{t0}
v_lshlrev_b32 v{t2}, 8, v{t2}
v_lshl_add_u32 v{t2}, v{n4}, 3, v{t2}
v_lshl_add_u32 v{t2}, v{t3}, 5, v{t2}
v_add_u32 v{vWOr}, {WO}, v{t2}
v_xor_b32 v{vWOr+1}, 32, v{vWOr}
v_cmp_gt_u32 vcc, 4, v{n16}
v_mov_b32 v{t3}, {OOB}
s_lshl_b32 s{sT}, {W}, 6
v_lshlrev_b32 v{t2}, 4, v{g}
v_add_u32 v{t0}, s{sT}, v{t2}
v_lshl_add_u32 v{t0}, v{n16}, 13, v{t0}
v_cndmask_b32 v{vQst}, v{t3}, v{t0}, vcc
s_lshl_b32 s{sT}, {W}, 7
v_add_u32 v{t2}, s{sT}, v{t2}
v_lshl_add_u32 v{t0}, v{n16}, 12, v{t2}
v_cndmask_b32 v{vOst}, v{t3}, v{t0}, vcc
v_lshl_add_u32 v{t0}, v{n16}, 9, v{t2}
v_cndmask_b32 v{vYst}, v{t3}, v{t0}, vcc
YCOAL_ADDR
v_lshrrev_b32 v{t0}, 5, v{l}
v_and_b32 v{t1}, 31, v{l}
v_lshlrev_b32 v{t2}, 4, v{t1}
v_lshl_add_u32 v{vG}, v{t0}, 12, v{t2}
s_lshl_b32 s{sG}, {G}, 2
s_add_u32 s{sG}, s{sG}, {B}
s_lshl_b32 s{sG}, s{sG}, 4
s_add_u32 s{sG}, s{sG}, {W}
s_lshl_b32 s{sG}, s{sG}, 9
s_add_u32 s{sG}, s{sG}, {QF}
s_mul_i32 s{sT}, {W}, 320
v_lshlrev_b32 v{t2}, 3, v{t1}
v_lshl_add_u32 v{t2}, v{t0}, 2, v{t2}
v_add_u32 v{vQLw}, s{sT}, v{t2}
v_mul_u32_u24 v{t2}, 320, v{n4}
v_lshl_add_u32 v{vQLr}, v{g}, 4, v{t2}
v_lshlrev_b32 v{t2}, 6, v{n4}
v_lshl_add_u32 v{vPr}, v{g}, 4, v{t2}
s_lshl_b32 s{sT}, {W}, 8
v_add_u32 v{vPw}, s{sT}, v{vPr}
v_lshlrev_b32 v{vSr}, 4, v{n4}
s_lshl_b32 s{sT}, {W}, 2
v_add_u32 v{vSw}, s{sT}, v{vSr}
v_lshlrev_b32 v{t2}, 9, v{g}
v_lshl_add_u32 v{vOG}, v{n16}, 4, v{t2}
s_lshl_b32 s{sOG}, {W}, 3
s_add_u32 s{sOG}, s{sOG}, {G}
s_lshl_b32 s{sOG}, s{sOG}, 2
s_add_u32 s{sOG}, s{sOG}, {B}
s_lshl_b32 s{sOG}, s{sOG}, 4
s_and_b32 s{sT}, s{sR4}, 1
s_add_u32 s{sOG}, s{sOG}, s{sT}
s_lshl_b32 s{sOG}, s{sOG}, 8
s_add_u32 s{sOG}, s{sOG}, {OF}
s_mul_i32 s{sT}, {W}, 192
v_lshlrev_b32 v{t2}, 3, v{n16}
v_lshl_add_u32 v{t2}, v{g}, 1, v{t2}
v_add_u32 v{vOLw}, s{sT}, v{t2}
v_mul_u32_u24 v{t2}, 192, v{n4}
v_lshl_add_u32 v{vOLr}, v{g}, 4, v{t2}
s_lshl_b32 s{sYst}, s{sCG}, 6
s_add_u32 s{sYst}, s{sYst}, s{sP}
s_lshl_b32 s{sYst}, s{sYst}, 11
s_add_u32 s{sYst}, s{sYst}, {OX + SOFF}
v_lshrrev_b32 v{t0}, 1, v{l}
v_and_b32 v{t1}, 1, v{l}
v_lshlrev_b32 v{t2}, 4, v{t1}
v_lshl_add_u32 v{vFG}, v{t0}, 11, v{t2}
s_lshl_b32 s{sFG}, s{sCG}, 12
s_add_u32 s{sFG}, s{sFG}, s{sP}
s_lshl_b32 s{sFG}, s{sFG}, 5
s_add_u32 s{sFG}, s{sFG}, {OX + SOFF}
YCOAL_OUT
v_cmp_gt_u32 vcc, 2, v{n16}
s_mov_b32 s{sCsc}, {f32(CSC)}
s_mov_b32 s{sP0}, 0x07060503
v_cndmask_b32 v{vOut}, v{t3}, v{t2}, vcc
s_mov_b32 s{sP1}, 0x07060502
s_mov_b32 s{sP2}, 0x07060501
s_mov_b32 s{sU0}, 0x04000c0c
s_mov_b32 s{sU1}, 0x0706000c
s_mov_b32 s{sM4}, 0x000f000f
s_mov_b32 s{sM4+1}, 0x000f000f
s_waitcnt lgkmcnt(0)
s_mul_i32 s{sTag}, s{sEp}, 1664525
s_add_u32 s{sTag}, s{sTag}, 1013904223
""")
    ya = f"""; coalesced y store: lanes < 32: w*512 + l*16
s_lshl_b32 s{sT}, {W}, 9
v_lshlrev_b32 v{t0}, 4, v{l}
v_add_u32 v{t0}, s{sT}, v{t0}
v_cmp_gt_u32 s[{sM4}:{sM4+1}], 32, v{l}
v_cmp_eq_u32 s[{sG1}:{sG1+1}], 1, v{g}
s_nop 0
v_cndmask_b32 v{vYst}, v{t3}, v{t0}, s[{sM4}:{sM4+1}]""" if ycoal else ""
    yo = (f"""; out voffset: g*1024 + (cg*128 + 2p' + (l&1))*2 for lanes n16<2 ; p' = p (0..63)
s_lshl_b32 s{sT}, s{sCG}, 6
s_add_u32 s{sT}, s{sT}, s{sP}
s_lshl_b32 s{sT}, s{sT}, 2
v_lshlrev_b32 v{t2}, 1, v{t1}
v_lshl_add_u32 v{t2}, v{g}, 10, v{t2}
v_add_u32 v{t2}, s{sT}, v{t2}""" if ycoal else f"""s_lshr_b32 s{sT}, s{sP}, 4
s_lshl_b32 s{sT}, s{sT}, 2
s_add_u32 s{sT}, s{sT}, s{sCG}
s_lshl_b32 s{sT}, s{sT}, 4
s_and_b32 s{sT2}, s{sP}, 15
s_add_u32 s{sT}, s{sT}, s{sT2}
s_lshl_b32 s{sT}, s{sT}, 4
v_lshlrev_b32 v{t2}, 3, v{t1}
v_lshl_add_u32 v{t2}, v{g}, 1, v{t2}
v_add_u32 v{t2}, s{sT}, v{t2}""")
    newL = []
    for ln in a.L:
        if "YCOAL_ADDR" in ln: newL += ["    " + x for x in ya.split("\n") if x]
        elif "YCOAL_OUT" in ln: newL += ["    " + x for x in yo.split("\n")]
        else: newL.append(ln)
    a.L = newL
    A32 = va(32, 4); B16 = va(16, 4); C32 = va(32, 4); E8 = va(8, 4); F8 = va(8, 4)
    ones = va(4, 4); fl = va(4, 4); fl1 = va(); QS4 = va(4, 4); OS8 = va(8, 4); sQS = sa(); sOS = sa(); sWcN = sa.n
    a(f"""
v_mov_b32 v{ones}, 0x3f803f80
v_mov_b32 v{ones+1}, 0x3f803f80
v_mov_b32 v{ones+2}, 0x3f803f80
v_mov_b32 v{ones+3}, 0x3f803f80
v_mov_b32 v{QS4+3}, s{sTag}
v_mov_b32 v{OS8+3}, s{sTag}
v_mov_b32 v{OS8+7}, s{sTag}
v_mov_b32 v{E8+3}, s{sTag}
v_mov_b32 v{E8+7}, s{sTag}
s_add_u32 s{sQS}, s{sQB}, {0 if sameS in (1, 2) else SOFF}
s_add_u32 s{sOS}, s{sOB}, {0 if sameS in (1, 3) else SOFF}
s_mov_b32 s{sCnt}, {spin}
s_movk_i32 s{sWcN}, {wthr}
""")
    if pt == 7: a(f"buffer_load_dword v{vPT}, v{vPTa}, s[28:31], 0 offen")
    lab = [0]
    def setflag(off): a(f"ds_write_b32 v{vFw}, v{vOne_c} offset:{off}")
    colder = []
    sWc = sa()
    stage = {"flush": []}
    def waitflags(group=None, single=None):
        lab[0] += 1; L = f"L_wf{lab[0]}"
        a(f"{L}:")
        if group is not None: a(f"ds_read_b128 {rng(fl,4)}, v{vFr} offset:{group}")
        if single is not None: a(f"ds_read_b32 v{fl1}, v{vFr} offset:{single}")
        a("s_waitcnt lgkmcnt(0)")
        if group is not None:
            a(f"v_min3_u32 v{fl}, v{fl}, v{fl+1}, v{fl+2}")
            if single is not None: a(f"v_min3_u32 v{fl}, v{fl}, v{fl+3}, v{fl1}")
            else: a(f"v_min_u32 v{fl}, v{fl}, v{fl+3}")
            r = fl
        else: r = fl1
        a(f"v_cmp_eq_u32 vcc, 0, v{r}\ns_cbranch_vccz {L}d\ns_sub_u32 s{sWc}, s{sWc}, 1\ns_cbranch_scc0 {L}\ns_branch {L}f\n{L}d:")
        colder.append([f"{L}f:"] + list(stage["flush"]) + [f"s_movk_i32 s{sWc}, {wthr}", f"s_branch {L}"])
    QFL = [f"buffer_store_dwordx4 {rng(QS4,4)}, v{vQst}, s[28:31], s{sQS} offen sc1"]
    OFL = [f"buffer_store_dwordx4 {rng(OS8,4)}, v{vOst}, s[28:31], s{sOS} offen sc1", f"buffer_store_dwordx4 {rng(OS8+4,4)}, v{vOst}, s[28:31], s{sOS} offen offset:64 sc1"]
    assert sWc == sWcN
    xb = A32; wa = A32 + 16; acc = C32
    a("s_waitcnt lgkmcnt(0)\ns_barrier")
    for s in range(4):
        a(f"ds_read_b128 {rng(xb+4*s,4)}, v{vXr+s}")
        a(f"ds_read_b64_tr_b16 {rng(wa+4*s,2)}, v{vWQr} offset:{s*4096}")
        a(f"ds_read_b64_tr_b16 {rng(wa+4*s+2,2)}, v{vWQr} offset:{s*4096 + 512}")
    for s in range(4):
        a(f"s_waitcnt lgkmcnt({3*(3-s)})")
        c = "0" if s == 0 else rng(acc,4)
        a(f"v_mfma_f32_16x16x32_bf16 {rng(acc,4)}, {rng(wa+4*s,4)}, {rng(xb+4*s,4)}, {c}")
    a(f"""
s_nop 7
v_perm_b32 v{QS4}, v{acc}, v{acc+3}, s{sP0}
v_perm_b32 v{QS4+1}, v{acc+1}, v{acc+3}, s{sP1}
v_perm_b32 v{QS4+2}, v{acc+2}, v{acc+3}, s{sP2}
buffer_store_dwordx4 {rng(QS4,4)}, v{vQst}, s[28:31], s{sQB} offen
""")
    setflag(F_QI)
    stage["flush"] = QFL
    if pt in (9, 10, 11, 12):
        for x_ in ypt: a(x_)
    if pt in (2, 6): a(f"buffer_load_dword v{vPT}, v{vPTa}, s[28:31], 0 offen" + (" nt" if pt == 2 else ""))
    ST_("q published")
    gq = F8
    waitflags(single=F_GO)
    ST_("GO")
    a(f"buffer_load_dwordx4 {rng(gq,4)}, v{vG}, s[28:31], s{sG} offen sc1")
    a(f"buffer_load_dwordx4 {rng(gq+4,4)}, v{vG}, s[28:31], s{sG} offen offset:2048 sc1")
    if pt == 4: a(f"buffer_load_dword v{vPT}, v{vPTa}, s[28:31], 0 offen nt")
    setflag(F_GI)
    ka = A32
    if lgo < 49: waitflags(single=F_K)
    for t in range(2):
        for s_ in range(4):
            a(f"ds_read_b128 {rng(ka+16*t+4*s_,4)}, v{vKr+s_} offset:{t*4096}")
    sa_tmp = sa(2, 2)
    cold = []
    def poll(name, regs, vaddr, soff, first_wait, offs, flush):
        a(f"s_waitcnt vmcnt({first_wait})\nL_{name}chk:")
        for i, r in enumerate(regs):
            if i == 0: a(f"v_cmp_ne_u32 vcc, s{sTag}, v{r+3}")
            else: a(f"v_cmp_ne_u32 s[{sa_tmp}:{sa_tmp+1}], s{sTag}, v{r+3}\ns_or_b64 vcc, vcc, s[{sa_tmp}:{sa_tmp+1}]")
        a(f"s_cbranch_vccnz L_{name}retry\nL_{name}ok:")
        c = [f"L_{name}retry:", f"s_sub_u32 s{sCnt}, s{sCnt}, 1", f"s_cbranch_scc1 L_{name}ok",
             f"s_cmp_gt_u32 s{sCnt}, {spin - nf}", f"s_cbranch_scc1 L_{name}re",
             f"s_cmp_lg_u32 s{sCnt}, {spin - nf}", f"s_cbranch_scc1 L_{name}tg"] + flush + [f"L_{name}tg:"] + ([] if (sameS == 1 or (sameS == 2 and name == "q") or (sameS == 3 and name == "o")) else [f"s_xor_b32 s{soff}, s{soff}, {SOFF}"]) + [f"L_{name}re:"]
        for r, o in zip(regs, offs):
            c.append(f"buffer_load_dwordx4 {rng(r,4)}, v{vaddr}, s[28:31], s{soff} offen offset:{o} sc1")
        c += ["s_waitcnt vmcnt(0)", f"s_branch L_{name}chk"]
        cold.append((name, c))
    poll("q", [gq, gq+4], vG, sG, 1 if pt == 4 else 0, [0, 2048], QFL)
    if holdwo: setflag(F_GOK)
    ST_("q gathered")
    u = E8; qb = B16
    a(f"""
v_perm_b32 v{u}, v{gq}, v{gq+1}, s{sU0}
v_perm_b32 v{u+1}, v{gq+4}, v{gq+5}, s{sU0}
v_add_f32 v{u+4}, v{gq}, v{gq+4}
v_add_f32 v{u+6}, v{gq+2}, v{gq+6}
v_perm_b32 v{u}, v{u}, v{gq+2}, s{sU1}
v_perm_b32 v{u+1}, v{u+1}, v{gq+6}, s{sU1}
v_add_f32 v{u+5}, v{gq+1}, v{gq+5}
v_add_f32 v{u+7}, v{u}, v{u+1}
v_permlane32_swap_b32 v{u+4}, v{u+6}
s_nop 0
v_permlane32_swap_b32 v{u+5}, v{u+7}
v_add_f32 v{u+4}, v{u+4}, v{u+6}
v_add_f32 v{u+5}, v{u+5}, v{u+7}
v_cvt_pk_bf16_f32 v{u}, v{u+4}, v{u+5}
ds_write_b32 v{vQLw}, v{u} offset:{QL}
""")
    setflag(F_Q)
    waitflags(group=F_Q)
    for s in range(4):
        a(f"ds_read_b128 {rng(qb+4*s,4)}, v{vQLr} offset:{QL + s*64}")
    sc = C32
    for s in range(4):
        a(f"s_waitcnt lgkmcnt({3-s})")
        for t in range(2):
            c = "0" if s == 0 else rng(sc+4*t,4)
            a(f"v_mfma_f32_16x16x32_bf16 {rng(sc+4*t,4)}, {rng(ka+16*t+4*s,4)}, {rng(qb+4*s,4)}, {c}")
    m = va(2, 2); mt = va(); pk = E8
    sC2 = sa(2, 2)
    a(f"""
s_mov_b32 s{sC2}, s{sCsc}
s_mov_b32 s{sC2+1}, s{sCsc}
s_nop 4
v_max3_f32 v{m}, v{sc}, v{sc+1}, v{sc+2}
v_max3_f32 v{mt}, v{sc+3}, v{sc+4}, v{sc+5}
v_max3_f32 v{m}, v{m}, v{sc+6}, v{sc+7}
v_max_f32 v{m}, v{m}, v{mt}
v_mov_b32 v{mt}, v{m}
s_nop 1
v_permlane16_swap_b32 v{m}, v{mt}
v_max_f32 v{m}, v{m}, v{mt}
v_mov_b32 v{mt}, v{m}
s_nop 1
v_permlane32_swap_b32 v{m}, v{mt}
v_max_f32 v{m}, v{m}, v{mt}
v_mul_f32 v{m}, s{sCsc}, v{m}
""")
    for i in range(0, 8, 2):
        a(f"v_pk_fma_f32 v[{sc+i}:{sc+i+1}], v[{sc+i}:{sc+i+1}], s[{sC2}:{sC2+1}], v[{m}:{m+1}] op_sel_hi:[1,1,0] neg_lo:[0,0,1] neg_hi:[0,0,1]")
    a(f"s_mov_b64 exec, s[{sM4}:{sM4+1}]\nds_write_b32 v{vSw}, v{m} offset:{SL}\ns_mov_b64 exec, -1")
    for i in range(8):
        a(f"v_exp_f32 v{sc+i}, v{sc+i}")
        if i == 2: a(f"v_cvt_pk_bf16_f32 v{pk}, v{sc}, v{sc+1}")
        if i == 4: a(f"v_cvt_pk_bf16_f32 v{pk+1}, v{sc+2}, v{sc+3}")
        if i == 6: a(f"v_cvt_pk_bf16_f32 v{pk+2}, v{sc+4}, v{sc+5}")
    a(f"""
s_mov_b64 exec, s[{sM4}:{sM4+1}]
v_cvt_pk_bf16_f32 v{pk+3}, v{sc+6}, v{sc+7}
ds_write_b128 v{vPw}, {rng(pk,4)} offset:{PL}
s_mov_b64 exec, -1
""")
    setflag(F_P)
    a(f"s_mov_b32 s{sCnt}, {spin}")
    waitflags(group=F_P)
    ST_("P written")
    pb = B16; sv = F8; vaop = A32; D = C32
    lk = va(16, 4)
    M = va(); ff = va(4, 2); L = va(); Rr = va(); lse = va()
    a(f"ds_read_b128 {rng(sv,4)}, v{vSr} offset:{SL}")
    for ks in range(4):
        a(f"ds_read_b128 {rng(pb+4*ks,4)}, v{vPr} offset:{PL + ks*256}")
    a(f"ds_read_b32 v{fl1}, v{vFr} offset:{F_V}")
    a(f"""
s_waitcnt lgkmcnt(5)
v_max3_f32 v{M}, v{sv}, v{sv+1}, v{sv+2}
v_max_f32 v{M}, v{M}, v{sv+3}
v_sub_f32 v{ff}, v{sv}, v{M}
v_sub_f32 v{ff+1}, v{sv+1}, v{M}
v_sub_f32 v{ff+2}, v{sv+2}, v{M}
v_sub_f32 v{ff+3}, v{sv+3}, v{M}
""")
    for ks in range(4):
        a(f"s_waitcnt lgkmcnt({4-ks})")
        a(f"v_mfma_f32_16x16x32_bf16 {rng(lk+4*ks,4)}, {rng(ones,4)}, {rng(pb+4*ks,4)}, 0")
        a(f"v_exp_f32 v{ff+ks}, v{ff+ks}")
    def vread(ks):
        for tp in range(2):
            for e in range(2):
                a(f"ds_read_b64_tr_b16 {rng(vaop+8*ks+4*tp+2*e,2)}, v{vVr+tp} offset:{ks*8192 + e*4096}")
    def pv(ks):
        for tp in range(2):
            a(f"v_mfma_f32_16x16x32_bf16 {rng(D+8*ks+4*tp,4)}, {rng(vaop+8*ks+4*tp,4)}, {rng(pb+4*ks,4)}, 0")
    stats2 = f"""v_mul_f32 v{L}, v{ff}, v{lk}
v_fmac_f32 v{L}, v{ff+1}, v{lk+4}
v_fmac_f32 v{L}, v{ff+2}, v{lk+8}
v_fmac_f32 v{L}, v{ff+3}, v{lk+12}
v_rcp_f32 v{Rr}, v{L}
v_log_f32 v{lse}, v{L}
s_nop 0
v_mul_f32 v{ff}, v{ff}, v{Rr}
v_mul_f32 v{ff+1}, v{ff+1}, v{Rr}
v_mul_f32 v{ff+2}, v{ff+2}, v{Rr}
v_mul_f32 v{ff+3}, v{ff+3}, v{Rr}
v_add_f32 v{OS8+2}, v{lse}, v{M}
v_add_f32 v{OS8+6}, v{lse}, v{M}"""
    a(f"s_waitcnt lgkmcnt(0)\nv_cmp_ne_u32 vcc, 0, v{fl1}\ns_cbranch_vccnz L_vfast\ns_nop 3")
    a(stats2)
    waitflags(single=F_V)
    ST_("V landed")
    vread(0); vread(1); vread(2)
    a("s_branch L_vjoin\nL_vfast:")
    vread(0); vread(1); vread(2)
    a(stats2)
    a("L_vjoin:")
    a("s_waitcnt lgkmcnt(8)"); pv(0); vread(3)
    a("s_waitcnt lgkmcnt(8)"); pv(1)
    a("s_waitcnt lgkmcnt(4)"); pv(2)
    a("s_waitcnt lgkmcnt(0)"); pv(3)
    o = F8
    for ks in range(4):
        base = ff + (ks & ~1); sel = ks & 1; fr = f"v[{base}:{base+1}]"
        for tp in range(2):
            for h in range(2):
                dst = rng(o+4*tp+2*h, 2); src = rng(D+8*ks+4*tp+2*h, 2)
                if ks == 0: a(f"v_pk_mul_f32 {dst}, {src}, {fr} op_sel:[0,{sel}] op_sel_hi:[1,{sel}]")
                else: a(f"v_pk_fma_f32 {dst}, {src}, {fr}, {dst} op_sel:[0,{sel},0] op_sel_hi:[1,{sel},1]")
    og = OS8
    a(f"""
v_cvt_pk_bf16_f32 v{og}, v{o}, v{o+1}
v_cvt_pk_bf16_f32 v{og+1}, v{o+2}, v{o+3}
v_cvt_pk_bf16_f32 v{og+4}, v{o+4}, v{o+5}
v_cvt_pk_bf16_f32 v{og+5}, v{o+6}, v{o+7}
buffer_store_dwordx4 {rng(og,4)}, v{vOst}, s[28:31], s{sOB} offen
buffer_store_dwordx4 {rng(og+4,4)}, v{vOst}, s[28:31], s{sOB} offen offset:64
""")
    setflag(F_OI)
    stage["flush"] = QFL + OFL
    ST_("o published")
    gg = B16; wb = A32
    if not nooi: waitflags(group=F_OI)
    if nooi:
        waitflags(single=F_W)
        for s_ in range(2):
            for tp in range(2):
                for hh in range(2):
                    a(f"ds_read_b64_tr_b16 {rng(wb+8*s_+4*tp+2*hh,2)}, v{vWOr+tp} offset:{s_*8192 + hh*1024}")
    a(f"""
buffer_load_dwordx4 {rng(gg,4)}, v{vOG}, s[28:31], s{sOG} offen sc1
buffer_load_dwordx4 {rng(gg+4,4)}, v{vOG}, s[28:31], s{sOG} offen offset:2048 sc1
""")
    if not nooi:
        waitflags(single=F_W)
        for s in range(2):
            for tp in range(2):
                for hh in range(2):
                    a(f"ds_read_b64_tr_b16 {rng(wb+8*s+4*tp+2*hh,2)}, v{vWOr+tp} offset:{s*8192 + hh*1024}")
    poll("o", [gg, gg+4], vOG, sOG, 0, [0, 2048], QFL + OFL)
    ST_("o gathered")
    e0 = va(); e1 = va(); u = A32 + 16; S = va(); oo = A32 + 24
    a(f"""
v_max_f32 v{M}, v{gg+2}, v{gg+6}
v_mov_b32 v{mt}, v{M}
v_lshlrev_b32 v{u}, 16, v{gg}
v_and_b32 v{u+1}, 0xffff0000, v{gg}
v_permlane16_swap_b32 v{M}, v{mt}
v_lshlrev_b32 v{u+2}, 16, v{gg+1}
v_max_f32 v{M}, v{M}, v{mt}
v_mov_b32 v{mt}, v{M}
v_and_b32 v{u+3}, 0xffff0000, v{gg+1}
v_lshlrev_b32 v{u+4}, 16, v{gg+4}
v_permlane32_swap_b32 v{M}, v{mt}
v_and_b32 v{u+5}, 0xffff0000, v{gg+4}
v_max_f32 v{M}, v{M}, v{mt}
v_lshlrev_b32 v{u+6}, 16, v{gg+5}
v_sub_f32 v{e0}, v{gg+2}, v{M}
v_sub_f32 v{e1}, v{gg+6}, v{M}
v_exp_f32 v{e0}, v{e0}
v_exp_f32 v{e1}, v{e1}
v_and_b32 v{u+7}, 0xffff0000, v{gg+5}
v_add_f32 v{S}, v{e0}, v{e1}
v_mul_f32 v{oo}, v{e0}, v{u}
v_mul_f32 v{oo+1}, v{e0}, v{u+1}
v_mov_b32 v{mt}, v{S}
v_mul_f32 v{oo+2}, v{e0}, v{u+2}
v_mul_f32 v{oo+3}, v{e0}, v{u+3}
v_permlane16_swap_b32 v{S}, v{mt}
v_fmac_f32 v{oo}, v{e1}, v{u+4}
v_fmac_f32 v{oo+1}, v{e1}, v{u+5}
v_add_f32 v{S}, v{S}, v{mt}
v_fmac_f32 v{oo+2}, v{e1}, v{u+6}
v_fmac_f32 v{oo+3}, v{e1}, v{u+7}
v_mov_b32 v{mt}, v{S}
v_permlane16_swap_b32 v{oo}, v{oo+1}
s_nop 0
v_permlane16_swap_b32 v{oo+2}, v{oo+3}
v_permlane32_swap_b32 v{S}, v{mt}
v_add_f32 v{oo}, v{oo}, v{oo+1}
v_add_f32 v{oo+2}, v{oo+2}, v{oo+3}
v_add_f32 v{S}, v{S}, v{mt}
s_nop 0
v_permlane32_swap_b32 v{oo}, v{oo+2}
v_rcp_f32 v{S}, v{S}
v_add_f32 v{oo}, v{oo}, v{oo+2}
v_mul_f32 v{oo}, v{oo}, v{S}
v_cvt_pk_bf16_f32 v{oo}, v{oo}, v{oo}
ds_write_b16 v{vOLw}, v{oo} offset:{OL}
""")
    setflag(F_O)
    a(f"s_add_u32 s{sT2}, s{sFG}, 65536\ns_mov_b32 s{sCnt}, {spin}")
    waitflags(group=F_O)
    ob = B16 + 8; y = C32; yg = E8
    a(f"""
ds_read_b128 {rng(ob,4)}, v{vOLr} offset:{OL}
ds_read_b128 {rng(ob+4,4)}, v{vOLr} offset:{OL+64}
""")
    for s in range(2):
        a(f"s_waitcnt lgkmcnt({1-s})")
        for tp in range(2):
            c = "0" if s == 0 else rng(y+4*tp,4)
            if ycoal: a(f"v_mfma_f32_16x16x32_bf16 {rng(y+4*tp,4)}, {rng(ob+4*s,4)}, {rng(wb+8*s+4*tp,4)}, {c}")
            else: a(f"v_mfma_f32_16x16x32_bf16 {rng(y+4*tp,4)}, {rng(wb+8*s+4*tp,4)}, {rng(ob+4*s,4)}, {c}")
    if ycoal:
        a(f"v_mov_b32 v{E8+3}, s{sTag}\ns_nop 6")
        for r in range(4): a(f"v_cndmask_b32 v{y+r}, v{y+r}, v{y+4+r}, s[{sG1}:{sG1+1}]")
        a(f"""v_perm_b32 v{yg}, v{y}, v{y+3}, s{sP0}
v_perm_b32 v{yg+1}, v{y+1}, v{y+3}, s{sP1}
v_perm_b32 v{yg+2}, v{y+2}, v{y+3}, s{sP2}
buffer_store_dwordx4 {rng(yg,4)}, v{vYst}, s[28:31], s{sYst} offen sc1""")
    else:
        a(f"v_mov_b32 v{E8+3}, s{sTag}\nv_mov_b32 v{E8+7}, s{sTag}\ns_nop 4")
        for tp in range(2):
            a(f"""v_perm_b32 v{yg+4*tp}, v{y+4*tp}, v{y+4*tp+3}, s{sP0}
v_perm_b32 v{yg+4*tp+1}, v{y+4*tp+1}, v{y+4*tp+3}, s{sP1}
v_perm_b32 v{yg+4*tp+2}, v{y+4*tp+2}, v{y+4*tp+3}, s{sP2}
buffer_store_dwordx4 {rng(yg+4*tp,4)}, v{vYst}, s[28:31], s{sYst} offen offset:{tp*64} sc1""")
    setflag(F_YI)
    ST_("y published")
    waitflags(group=F_YI)
    if not noflush:
        for x_ in QFL + OFL: a(x_)
    if dirty:
        a(f"s_lshl_b32 s{sT}, s2, 2\ns_add_u32 s{sT}, s{sT}, {W}\ns_mul_i32 s{sT}, s{sT}, {dirty*1024}\ns_add_u32 s{sT}, s{sT}, 0x800000\nv_lshlrev_b32 v{t0}, 4, v{l}")
        for i in range(dirty):
            a(f"buffer_store_dwordx4 {rng(C32,4)}, v{t0}, s[28:31], s{sT} offen\ns_add_u32 s{sT}, s{sT}, 1024")
    z = C32 + 24
    fg = C32 + 16
    a(f"""s_cmp_lg_u32 {W}, 0
s_cbranch_scc1 L_fin
L_fpoll:
buffer_load_dwordx4 {rng(fg,4)}, v{vFG}, s[28:31], s{sFG} offen sc1
buffer_load_dwordx4 {rng(fg+4,4)}, v{vFG}, s[28:31], s{sT2} offen sc1
s_waitcnt vmcnt(0)
v_cmp_ne_u32 vcc, s{sTag}, v{fg+3}
v_cmp_ne_u32 s[{sa_tmp}:{sa_tmp+1}], s{sTag}, v{fg+7}
s_or_b64 vcc, vcc, s[{sa_tmp}:{sa_tmp+1}]
s_cbranch_vccz L_fok
{('s_sleep ' + str(fsleep)) if fsleep else 's_nop 0'}
s_sub_u32 s{sCnt}, s{sCnt}, 1
s_cbranch_scc0 L_fpoll
L_fok:""")
    ST_("final gathered")
    a(f"""
v_perm_b32 v{z+3}, v{fg}, v{fg+1}, s{sU0}
v_perm_b32 v{z+7}, v{fg+4}, v{fg+5}, s{sU0}
v_add_f32 v{z}, v{fg}, v{fg+4}
v_perm_b32 v{z+3}, v{z+3}, v{fg+2}, s{sU1}
v_perm_b32 v{z+7}, v{z+7}, v{fg+6}, s{sU1}
v_add_f32 v{z+1}, v{fg+1}, v{fg+5}
v_add_f32 v{z+2}, v{fg+2}, v{fg+6}
v_add_f32 v{z+3}, v{z+3}, v{z+7}
""")
    for ctl in ("quad_perm:[2,3,0,1]", "row_ror:4", "row_ror:8"):
        for r in range(4):
            a(f"v_add_f32_dpp v{z+r}, v{z+r}, v{z+r} {ctl} row_mask:0xf bank_mask:0xf")
    a(f"""
s_nop 0
v_permlane16_swap_b32 v{z}, v{z+1}
v_permlane16_swap_b32 v{z+2}, v{z+3}
s_nop 0
v_add_f32 v{z}, v{z}, v{z+1}
v_add_f32 v{z+2}, v{z+2}, v{z+3}
s_nop 1
v_permlane32_swap_b32 v{z}, v{z+2}
s_nop 0
v_add_f32 v{z}, v{z}, v{z+2}
v_cvt_pk_bf16_f32 v{z}, v{z}, v{z}
buffer_store_short v{z}, v{vOut}, s[32:35], 0 offen
s_cmp_lg_u32 s2, 0
s_cbranch_scc1 L_fin
v_mov_b32 v{t0}, s{sTag}
v_mov_b32 v{t1}, {WSB}
s_mov_b64 exec, 1
buffer_store_dword v{t0}, v{t1}, s[28:31], 0 offen sc1
s_mov_b64 exec, -1
L_fin:
""")
    a("s_branch L_tail" if stamp else "s_endpgm")
    for name, c in cold:
        for x_ in c: a(x_)
    a("; WARM_END")
    for c in colder:
        for x_ in c: a(x_)
    a("L_tail:")
    if stamp:
        a(f"s_mov_b32 s31, 0x20000\ns_mov_b32 s30, {WS_BYTES}")
    if amp >= 0:
        ST_("end")
        e = nst[0] - 1
        a(f"""
s_waitcnt lgkmcnt(0)
s_cmp_lg_u32 {W}, 0
s_cbranch_scc1 L_end
""")
        if ampglob:
            a(f"""
s_lshl_b32 s37, s2, 3
s_add_u32 s37, s37, {ST}
v_mov_b32 v{C32}, s{SB}
v_mov_b32 v{C32+1}, s{sTag}
v_mov_b32 v{t1}, 0
s_mov_b64 exec, 1
buffer_store_dwordx2 v[{C32}:{C32+1}], v{t1}, s[28:31], s37 offen sc1
s_mov_b64 exec, -1
""")
        a(f"""
s_cmp_lg_u32 s2, 0
s_cbranch_scc1 L_end
""")
        if ampglob:
            a(f"""
s_mov_b32 s37, {ST}
v_lshlrev_b32 v{t1}, 5, v{l}
L_ag:
buffer_load_dwordx4 v[{C32}:{C32+3}], v{t1}, s[28:31], s37 offen sc1
buffer_load_dwordx4 v[{C32+4}:{C32+7}], v{t1}, s[28:31], s37 offen offset:16 sc1
s_waitcnt vmcnt(0)
v_cmp_ne_u32 vcc, s{sTag}, v{C32+1}
v_cmp_ne_u32 s[40:41], s{sTag}, v{C32+3}
s_or_b64 vcc, vcc, s[40:41]
v_cmp_ne_u32 s[40:41], s{sTag}, v{C32+5}
s_or_b64 vcc, vcc, s[40:41]
v_cmp_ne_u32 s[40:41], s{sTag}, v{C32+7}
s_or_b64 vcc, vcc, s[40:41]
s_cbranch_vccnz L_ag
v_subrev_u32 v{C32}, s{SB}, v{C32}
v_subrev_u32 v{C32+2}, s{SB}, v{C32+2}
v_subrev_u32 v{C32+4}, s{SB}, v{C32+4}
v_subrev_u32 v{C32+6}, s{SB}, v{C32+6}
v_min_i32 v{C32}, v{C32}, v{C32+2}
v_min_i32 v{C32+4}, v{C32+4}, v{C32+6}
v_min_i32 v{C32}, v{C32}, v{C32+4}
s_nop 1
v_min_i32_dpp v{C32}, v{C32}, v{C32} row_ror:1 row_mask:0xf bank_mask:0xf
s_nop 1
v_min_i32_dpp v{C32}, v{C32}, v{C32} row_ror:2 row_mask:0xf bank_mask:0xf
s_nop 1
v_min_i32_dpp v{C32}, v{C32}, v{C32} row_ror:4 row_mask:0xf bank_mask:0xf
s_nop 1
v_min_i32_dpp v{C32}, v{C32}, v{C32} row_ror:8 row_mask:0xf bank_mask:0xf
s_nop 1
v_readlane_b32 s36, v{C32}, 0
v_readlane_b32 s37, v{C32}, 16
v_readlane_b32 s38, v{C32}, 32
v_readlane_b32 s39, v{C32}, 48
s_nop 3
s_min_i32 s36, s36, s37
s_min_i32 s38, s38, s39
s_min_i32 s36, s36, s38
s_sub_u32 s37, s{SB+2*amp}, s{SB}
s_sub_u32 s37, s37, s36
s_memrealtime s[40:41]
s_waitcnt lgkmcnt(0)
s_mul_i32 s37, s37, {ampk}
s_add_u32 s37, s37, s40
""")
        else:
            a(f"""
s_sub_u32 s37, s{SB+2*amp}, s{SB}
s_mul_i32 s37, s37, {ampk}
s_add_u32 s37, s37, s{SB+2*e}
""")
        a(f"""
L_amp:
s_memrealtime s[40:41]
s_waitcnt lgkmcnt(0)
s_cmp_lt_u32 s40, s37
s_cbranch_scc1 L_amp
""")
    elif stamp:
        ST_("end")
        n = nst[0]
        a(f"""
s_waitcnt lgkmcnt(0) vmcnt(0)
s_mul_i32 s4, s2, 8
s_add_u32 s4, s4, s3
s_lshl_b32 s4, s4, 6
s_add_u32 s4, s4, {ST}
v_mov_b32 v{t1}, 0
s_mov_b64 exec, 1
""")
        for i in range(n):
            a(f"v_mov_b32 v{t0}, s{SB+2*i}\nbuffer_store_dword v{t0}, v{t1}, s[28:31], s4 offen offset:{4*i}\ns_nop 0")
    a("L_end:\ns_endpgm")
    lines = a.L
    nh = 0
    if warm:
        lines, nh, have = hops.insert(lines, nparts)
        assert have == nparts, (have, nparts)
    body = "\n".join(lines) + "\n"
    assert (not stamp) or (sa.hi <= SB and ls.hi <= SB), (sa.hi, ls.hi)
    nv = max(va.hi, lv.hi)
    s = header([f"; @launch grid=(256,1,1) block=(320,1,1) lds={LDS_BYTES}"]) + kernel_begin(KNAME) + body + RODATA + descriptor(KNAME, nv, 102 if stamp else max(sa.hi, ls.hi))
    errs = haz.check(body)
    for e in errs: print("HAZ", e)
    return s, nv, sa.hi, nh, stn
if __name__ == "__main__":
    out = sys.argv[1]
    kw = {}
    for x in sys.argv[2:]:
        k, v = x.split("=")
        if k in ("warm", "prio", "holdwo", "rot", "rotq", "ilv", "ycoal", "xnt", "xfirst"): kw[k] = (v == "1")
        elif k == "nt": kw[k] = (" " + v if v else "")
        else: kw[k] = int(v)
    s, nv, ns, nh, stn = gen(**kw)
    open(out, "w").write(s)
    print("vgprs", nv, "sgprs", ns, "hops", nh, "lds", LDS_BYTES, stn)
```

```python
import sys, struct
sys.path.insert(0, "my")
from ag import *
import haz, hops

import os
WSB = int(os.environ.get('WSB', '0'), 0)
QF = WSB + 0x10000
OF = WSB + 0x80000
OX = WSB + 0x100000
SOFF = 0x200000
ST = 0x400000
WS_BYTES = 268435456
QL = 0
PL = QL + 1280
SL = PL + 1024
OL = SL + 64
FL = 3136
JK = FL + 160
XL = 3840; WQ = XL + 1024; KL = WQ + 16384; VL = KL + 32768
import os
if os.environ.get('ALIAS', '0') == '1':
    WO = WQ; LDS_BYTES = VL + 32768
else:
    WO = VL + 32768; LDS_BYTES = WO + 16384
assert OL + 768 <= FL and JK + 416 <= XL and XL % 256 == 0 and WQ % 256 == 0
F_Q, F_P, F_O, F_GI, F_QI, F_GOK, F_OI, F_YI, F_GO, F_K, F_V, F_W = 0, 16, 32, 48, 64, 80, 96, 112, 128, 132, 136, 140
CSC = 0.08838834764831845 * 1.4426950408889634
def f32(x): return "0x%08x" % struct.unpack("<I", struct.pack("<f", x))[0]
class V:
    def __init__(s, n=0): s.n = n; s.hi = n
    def __call__(s, cnt=1, align=1):
        s.n = (s.n + align - 1) // align * align
        r = s.n; s.n += cnt; s.hi = max(s.hi, s.n)
        return r
def rng(r, n): return f"v[{r}:{r+n-1}]"
OOB = "0x7ffffff0"

def gen(stamp=False, nt=" nt", hold=0, kx=32, nmid=32, lgo=60, holdwo=False, rot=True, rotq=True, fd=1, pvp=True, lwo=0, fsleep=0, nooi=0, n1p=0, noflush=0, sameS=0, dirty=0, cqx=0, xnt=False, xfirst=False, ilv=True, ycoal=True, wthr=2000, n3=0, n2=0, N=24, spin=100000, nf=64, amp=-1, ampk=10, ampglob=0, warm=True, pt=1, nparts=4, prio=True, step=2):
    if amp >= 0: stamp = True
    a = A(); va = V(1); sa = V(36)
    l = va(); t0 = va(); t1 = va(); t2 = va(); t3 = va()
    nst = [0]; stn = []
    SB = 74 if pt == 12 else 72
    def ST_(label):
        if stamp and (stamp != 2 or label in ('entry', 'end')):
            i = nst[0]; nst[0] += 1; stn.append(label)
            assert i < (14 if pt == 12 else 15)
            a(f"s_memrealtime s[{SB+2*i}:{SB+1+2*i}]")
    W, G, R, B, C = "s3", "s4", "s5", "s6", "s7"
    sT = sa(); sT2 = sa(); sWin = sa()
    a(f"""
s_cmp_ge_u32 s2, 256
s_cbranch_scc1 L_end
s_load_dwordx2 s[20:21], s[0:1], 24
s_load_dwordx2 s[8:9], s[0:1], 0
s_load_dwordx2 s[12:13], s[0:1], 8
s_load_dwordx2 s[28:29], s[0:1], 56
s_load_dwordx2 s[16:17], s[0:1], 16
s_load_dwordx2 s[24:25], s[0:1], 32
s_load_dwordx2 s[32:33], s[0:1], 40
""")
    ST_("entry")
    a(f"""
v_lshrrev_b32 v{t0}, 6, v0
v_and_b32 v{l}, 63, v0
s_and_b32 {G}, s2, 7
v_readfirstlane_b32 {W}, v{t0}
s_lshr_b32 {R}, s2, 3
s_lshr_b32 {B}, {R}, 3
s_and_b32 {C}, {R}, 7
s_mov_b32 s23, 0x20000
v_lshrrev_b32 v{t0}, 4, v{l}
v_and_b32 v{t1}, 15, v{l}
""")
    if stamp: a(f"s_mov_b32 s31, s23\ns_mov_b32 s30, {WS_BYTES}\ns_mov_b32 s35, s23\ns_movk_i32 s34, 0x1000")
    a(f"""
s_cmp_lt_u32 {W}, 4
s_cbranch_scc1 L_compute
""")
    lv = V(va.n); ls = V(sa.n)
    vWQ = lv(2); vX = lv(); vK = lv(4); vV = lv(2); vWO = lv(2); vLF = lv(); vOne = lv()
    sWQ = ls(); sX = ls(); sK = ls(); sWO = ls(); lT = ls(); sWQb0 = ls()
    if prio: a("s_setprio 2")
    a(f"""
s_mov_b32 s22, 0x400000
v_and_b32 v{t2}, 7, v{l}
v_lshlrev_b32 v{t3}, 1, v{t0}
v_and_b32 v{vX}, 2, v{t3}
v_xor_b32 v{t2}, v{t2}, v{vX}
v_lshlrev_b32 v{t2}, 4, v{t2}
v_lshrrev_b32 v{vX}, 3, v{l}
v_lshl_add_u32 v{vWQ}, v{vX}, 13, v{t2}
v_xor_b32 v{vWQ+1}, 64, v{vWQ}
s_lshl_b32 s{sWQb0}, {G}, 3
s_xor_b32 s{lT}, {C}, {cqx}
s_add_u32 s{sWQb0}, s{sWQb0}, s{lT}
s_lshl_b32 s{sWQb0}, s{sWQb0}, 7
s_lshl_b32 s{lT}, {B}, 20
s_add_u32 s{sWQb0}, s{sWQb0}, s{lT}
s_mov_b32 s11, s23
s_movk_i32 s10, 0x1000
s_mov_b32 s15, s23
s_mov_b32 s14, 0x2000000
; x voffset: (l>>4)*1024 + ((l&15) ^ (4*(l>>4)))*16
v_lshlrev_b32 v{t2}, 2, v{t0}
v_xor_b32 v{t2}, v{t1}, v{t2}
v_lshlrev_b32 v{t2}, 4, v{t2}
v_lshl_add_u32 v{vX}, v{t0}, 10, v{t2}
s_lshl_b32 s{sX}, {B}, 8
s_waitcnt lgkmcnt(0)
""")
    seq = []
    sRho = ls(); sJ = ls(); sWQb = sWQb0
    for i in range(16):
        pre = []
        if i % 4 == 0:
            j_ = i // 4
            if rotq:
                pre += [f"s_add_u32 s{sJ}, {B}, {j_}", f"s_and_b32 s{sJ}, s{sJ}, 3", f"s_lshl_b32 s{lT}, s{sJ}, 18", f"s_add_u32 s{sWQ}, s{sWQb}, s{lT}",
                        f"s_lshl_b32 s{lT}, s{sJ}, 12", f"s_add_u32 m0, s{lT}, {WQ}"]
            else:
                pre += [f"s_add_u32 s{sWQ}, s{sWQb}, {j_ << 18}", f"s_mov_b32 m0, {WQ + j_*4096}"]
            pre.append("s_nop 0")
        else:
            pre.append(f"s_add_u32 s{sWQ}, s{sWQ}, {65536 - 1024}")
        seq.append((pre, f"buffer_load_dwordx4 v{vWQ + (i & 1)}, s[20:23], s{sWQ} offen offset:{(i%4)*1024}{nt} lds"))
    seq.append(([f"s_movk_i32 m0, {XL}", "s_nop 0"], f"buffer_load_dwordx4 v{vX}, s[8:11], s{sX} offen{' nt' if xnt else ''} lds"))
    if xfirst: seq.insert(0, seq.pop())
    kpre = f"""; K voffsets: (l>>4)*256 + ((l&15)^(l>>4))*16  ^ (64*i)
v_xor_b32 v{t2}, v{t1}, v{t0}
v_lshlrev_b32 v{t2}, 4, v{t2}
v_lshl_add_u32 v{vK}, v{t0}, 8, v{t2}
v_xor_b32 v{vK+1}, 64, v{vK}
v_xor_b32 v{vK+2}, 0x80, v{vK}
v_xor_b32 v{vK+3}, 0xc0, v{vK}
; flag address vgpr: lane0 -> FL, else JK + 4*l
v_lshlrev_b32 v{t2}, 2, v{l}
v_add_u32 v{t2}, {JK}, v{t2}
v_cmp_eq_u32 vcc, 0, v{l}
v_mov_b32 v{vLF}, {FL}
v_mov_b32 v{vOne}, 1
v_cndmask_b32 v{vLF}, v{t2}, v{vLF}, vcc
; window base = (b*8+g)<<20 + 3072*256 + c*(32768 or 4096)
s_lshl_b32 s{sWin}, {B}, 3
s_add_u32 s{sWin}, s{sWin}, {G}
s_lshl_b32 s{sWin}, s{sWin}, 5
s_add_u32 s{sWin}, s{sWin}, 24
s_lshl_b32 s{sWin}, s{sWin}, 15
s_lshl_b32 s{sJ}, {C}, {12 if ilv else 15}
s_add_u32 s{sWin}, s{sWin}, s{sJ}
; rho*4096 : rho = (g + 2b) & 7
s_lshl_b32 s{sRho}, {B}, 1
s_add_u32 s{sRho}, s{sRho}, {G}
s_and_b32 s{sRho}, s{sRho}, {7 if rot else 0}
s_lshl_b32 s{sRho}, s{sRho}, 12""".split("\n")
    def grp(j_, ldsbase):
        if ilv:
            return [f"s_add_u32 s{sJ}, s{sRho}, {j_*4096}", f"s_and_b32 s{sJ}, s{sJ}, 0x7fff", f"s_mov_b32 m0, {ldsbase + j_*4096}", f"s_lshl_b32 s{sJ}, s{sJ}, 3", f"s_add_u32 s{sK}, s{sWin}, s{sJ}"]
        return [f"s_add_u32 s{sJ}, s{sRho}, {j_*4096}", f"s_and_b32 s{sJ}, s{sJ}, 0x7fff", f"s_add_u32 m0, s{sJ}, {ldsbase}", f"s_add_u32 s{sK}, s{sWin}, s{sJ}"]
    for i in range(32):
        pre = list(kpre) if i == 0 else []
        if i % 4 == 0: pre += grp(i // 4, KL)
        seq.append((pre, f"buffer_load_dwordx4 v{vK+i%4}, s[12:15], s{sK} offen offset:{(i%4)*1024}{nt} lds"))
    vpre = f"""s_mov_b32 s19, s23
s_mov_b32 s18, s14
; V voffset: (l>>4)*256 + ((l&15) ^ ((l>>4)<<1))*16 ; odd: ^128 ; WO: (l>>4)*1024 + same piece
v_xor_b32 v{t2}, v{t1}, v{t3}
v_lshlrev_b32 v{t2}, 4, v{t2}
v_lshl_add_u32 v{vV}, v{t0}, 8, v{t2}
v_xor_b32 v{vV+1}, 0x80, v{vV}
v_lshl_add_u32 v{vWO}, v{t0}, 10, v{t2}
v_xor_b32 v{vWO+1}, 0x80, v{vWO}
s_mov_b32 s27, s23
s_mov_b32 s26, s22
; WO soff = p<<16 + cg*256 ; p = g*8 + r/4 ; cg = r&3
s_lshr_b32 s{lT}, {R}, 2
s_lshl_b32 s{sWO}, {G}, 3
s_add_u32 s{sWO}, s{sWO}, s{lT}
s_lshl_b32 s{sWO}, s{sWO}, 8
s_and_b32 s{lT}, {R}, 3
s_add_u32 s{sWO}, s{sWO}, s{lT}
s_lshl_b32 s{sWO}, s{sWO}, 8""".split("\n")
    for i in range(32):
        pre = list(vpre) if i == 0 else []
        if i % 4 == 0: pre += grp(i // 4, VL)
        seq.append((pre, f"buffer_load_dwordx4 v{vV+(i&1)}, s[16:19], s{sK} offen offset:{(i%4)*1024}{nt} lds"))
    for i in range(16):
        pre = []
        if i == 0: pre += [f"s_mov_b32 m0, {WO}", "s_nop 0"]
        elif i % 4 == 0: pre.append("s_add_u32 m0, m0, 4096")
        if i: pre.append(f"s_add_u32 s{sWO}, s{sWO}, {4096 - 1024 if i % 4 else 4096 + 3072}")
        seq.append((pre, f"buffer_load_dwordx4 v{vWO+((i>>1)&1)}, s[24:27], s{sWO} offen offset:{(i%4)*1024}{nt} lds"))
    T = len(seq); assert T == 97
    def emit(k):
        pre, ld = seq[k]
        for p in pre: a(p)
        a(ld)
    for k in range(17): emit(k)
    ST_("L: wq issued")
    pre17, ld17 = seq[17]
    for p in pre17: a(p)
    n0 = 17 + kx
    if kx > 0:
        if hold: a(f"s_waitcnt vmcnt({17 - hold})")
        a(ld17)
        for k in range(18, n0):
            if n1p and k >= n1p: a(f"s_waitcnt vmcnt({n1p - 1})")
            emit(k)
    else:
        seq[17] = ([], ld17)
    ST_("L: K issued")
    lfl = lv(4, 4)
    a(f"v_mov_b32 v{t2}, {FL}")
    a(f"s_waitcnt vmcnt({n0 - 17})\ns_barrier")
    ST_("L: wq landed")
    def lwait(name, off):
        a(f"""L_{name}:
ds_read_b128 v[{lfl}:{lfl+3}], v{t2} offset:{off}
s_waitcnt lgkmcnt(0)
v_and_b32 v{lfl}, v{lfl}, v{lfl+1}
v_and_b32 v{lfl+2}, v{lfl+2}, v{lfl+3}
v_and_b32 v{lfl}, v{lfl}, v{lfl+2}
v_cmp_eq_u32 vcc, 0, v{lfl}
s_cbranch_vccnz L_{name}""")
    vFA = lv()
    a(f"v_mov_b32 v{vFA}, {FL}")
    def lwait(name, off):
        a(f"""L_{name}:
ds_read_b128 v[{lfl}:{lfl+3}], v{vFA} offset:{off}
s_waitcnt lgkmcnt(0)
v_and_b32 v{lfl}, v{lfl}, v{lfl+1}
v_and_b32 v{lfl+2}, v{lfl+2}, v{lfl+3}
v_and_b32 v{lfl}, v{lfl}, v{lfl+2}
v_cmp_eq_u32 vcc, 0, v{lfl}
s_cbranch_vccnz L_{name}""")
    lwait("qi", F_QI)
    n1 = 49 + nmid
    for k in range(n0, n1):
        if n2: a(f"s_waitcnt vmcnt({n2 - 1})")
        emit(k)
    assert lgo <= n1 and n1 <= T
    a(f"s_waitcnt vmcnt({n1 - lgo})")
    a(f"ds_write_b32 v{vLF}, v{vOne} offset:{F_GO}")
    lwait("gi", F_GI)
    for k in range(n1, T):
        if k == 81 and holdwo: lwait("gok", F_GOK)
        if k == 81 and lwo: a(f"s_waitcnt vmcnt({81 - lwo})")
        if n3: a(f"s_waitcnt vmcnt({n3 - 1})")
        emit(k)
    if lgo < 49: a(f"s_waitcnt vmcnt({T - 49})\nds_write_b32 v{vLF}, v{vOne} offset:{F_K}")
    F_V1 = F_GOK
    tailev = ([(49 + nmid, F_V1)] if pvp else []) + [(81, F_V), (97, F_W)]
    for cnt, f in tailev:
        a(f"s_waitcnt vmcnt({T - cnt})\nds_write_b32 v{vLF}, v{vOne} offset:{f}")
    ST_("L: all landed")
    if stamp: a("s_branch L_fin")
    else: a("s_endpgm")
    a("L_compute:")
    g = va(); n16 = va(); n4 = va()
    sQB = sa(); sOB = sa(); sEp = sa(); sTag = sa(); vPT = va()
    a(f"""
s_mov_b32 s31, s23
s_mov_b32 s30, {WS_BYTES}
s_mov_b32 s35, s23
s_movk_i32 s34, 0x1000
s_lshl_b32 s{sQB}, {G}, 4
s_add_u32 s{sQB}, s{sQB}, {B}
s_lshl_b32 s{sQB}, s{sQB}, 11
s_xor_b32 s{sT}, {C}, {cqx}
s_lshl_b32 s{sT}, s{sT}, 8
s_add_u32 s{sQB}, s{sQB}, s{sT}
s_add_u32 s{sQB}, s{sQB}, {QF}
s_lshl_b32 s{sOB}, {B}, 3
s_add_u32 s{sOB}, s{sOB}, {G}
s_lshl_b32 s{sOB}, s{sOB}, 5
s_add_u32 s{sOB}, s{sOB}, {C}
s_lshl_b32 s{sOB}, s{sOB}, 9
s_add_u32 s{sOB}, s{sOB}, {OF}
""")
    vPTa = va()
    if pt in (1, 3, 7):
        a(f"""
s_mul_i32 s{sT}, {W}, 6
v_add_u32 v{t3}, s{sT}, v{l}
v_lshrrev_b32 v{t0}, 1, v{t3}
v_lshlrev_b32 v{t0}, 13, v{t0}
v_and_b32 v{t1}, 1, v{t3}
v_lshl_or_b32 v{t0}, v{t1}, 7, v{t0}
v_add_u32 v{t0}, s{sQB}, v{t0}
v_subrev_u32 v{t1}, 8, v{t3}
v_lshrrev_b32 v{t2}, 2, v{t1}
v_lshlrev_b32 v{t2}, 12, v{t2}
v_and_b32 v{t1}, 3, v{t1}
v_lshl_or_b32 v{t2}, v{t1}, 7, v{t2}
v_add_u32 v{t2}, s{sOB}, v{t2}
v_cmp_gt_u32 vcc, 8, v{t3}
v_mov_b32 v{t3}, {OOB}
s_nop 0
v_cndmask_b32 v{t0}, v{t2}, v{t0}, vcc
v_cmp_gt_u32 vcc, 6, v{l}
s_mov_b32 s{sT}, {WSB}
s_waitcnt lgkmcnt(0)
s_load_dword s{sEp}, s[28:29], s{sT}
v_cndmask_b32 v{vPTa}, v{t3}, v{t0}, vcc
""")
        if pt != 7: a(f"buffer_load_dword v{vPT}, v{vPTa}, s[28:31], 0 offen{' nt' if pt == 3 else ''}")
    else:
        a(f"s_mov_b32 s{sT}, {WSB}\ns_waitcnt lgkmcnt(0)\ns_load_dword s{sEp}, s[28:29], s{sT}" if WSB else f"s_waitcnt lgkmcnt(0)\ns_load_dword s{sEp}, s[28:29], 0")
        if pt in (10, 11, 12):
            sD = sa(); sO1 = sa(); sO2 = sa()
            a(f"s_lshl_b32 s{sT}, {W}, 13\ns_add_u32 s{sO1}, s{sQB}, s{sT}\ns_lshl_b32 s{sT}, {W}, 12\ns_add_u32 s{sO2}, s{sOB}, s{sT}")
            stp = 128 if pt == 11 else 64
            ypt = [f"s_load_dword s{sD}, s[28:29], s{sO1} offset:{o}" for o in range(0, 256, stp)] + [f"s_load_dword s{sD}, s[28:29], s{sO2} offset:{o}" for o in range(0, 512, stp)]
            if pt == 12:
                sO3 = sT2
                sO3 = sa()
                a(f"""s_and_b32 s{sO3}, {R}, 3
s_lshl_b32 s{sO3}, s{sO3}, 6
s_lshl_b32 s{sT}, {G}, 3
s_add_u32 s{sO3}, s{sO3}, s{sT}
s_lshr_b32 s{sT}, {R}, 2
s_add_u32 s{sO3}, s{sO3}, s{sT}
s_lshl_b32 s{sO3}, s{sO3}, 2
s_add_u32 s{sO3}, s{sO3}, {W}
s_lshl_b32 s{sO3}, s{sO3}, 9
s_add_u32 s{sO3}, s{sO3}, {OX + SOFF}""")
                ypt += [f"s_load_dword s{sD}, s[28:29], s{sO3} offset:{o}" for o in range(0, 512, 64)]
        if pt in (8, 9):
            sD = sa(); sO1 = sa()
            a(f"s_lshl_b32 s{sT}, {W}, 13\ns_add_u32 s{sO1}, s{sQB}, s{sT}")
            for o in range(0, 256, 64): a(f"s_load_dword s{sD}, s[28:29], s{sO1} offset:{o}")
            a(f"s_lshl_b32 s{sT}, {W}, 12\ns_add_u32 s{sO1}, s{sOB}, s{sT}")
            for o in range(0, 512, 64): a(f"s_load_dword s{sD}, s[28:29], s{sO1} offset:{o}")
            if pt == 9:
                a(f"""s_and_b32 s{sO1}, {R}, 3
s_lshl_b32 s{sO1}, s{sO1}, 6
s_lshl_b32 s{sT}, {G}, 3
s_add_u32 s{sO1}, s{sO1}, s{sT}
s_lshr_b32 s{sT}, {R}, 2
s_add_u32 s{sO1}, s{sO1}, s{sT}
s_lshl_b32 s{sO1}, s{sO1}, 2
s_add_u32 s{sO1}, s{sO1}, {W}
s_lshl_b32 s{sO1}, s{sO1}, 9
s_add_u32 s{sO1}, s{sO1}, {OX + SOFF}""")
                ypt = [f"s_load_dword s{sD}, s[28:29], s{sO1} offset:{o}" for o in range(0, 512, 64)]
        if pt in (2, 4, 6):
            a(f"""
s_lshl_b32 s{sT}, {W}, 12
s_add_u32 s{sT}, s{sT}, s{sOB}
v_lshlrev_b32 v{t0}, 7, v{l}
v_add_u32 v{t0}, s{sT}, v{t0}
v_cmp_gt_u32 vcc, 4, v{l}
v_mov_b32 v{t3}, {OOB}
s_nop 0
v_cndmask_b32 v{vPTa}, v{t3}, v{t0}, vcc
""")
    if warm:
        a("s_mov_b64 exec, 0")
        for p in range(1, nparts):
            a(f"s_cmp_eq_u32 {W}, {p}\ns_cbranch_scc1 HOP_P{p}")
        a("s_branch HOP_P0\nL_warm_done:\ns_mov_b64 exec, -1")
    a("; WARM_START")
    sP = sa(); sCG = sa(); sR4 = sa()
    vXr = va(4); vWQr = va(); vKr = va(4); vVr = va(2); vWOr = va(2)
    vQst = va(); vG = va(); sG = sa(); vQLw = va(); vQLr = va()
    vPw = va(); vPr = va(); vSw = va(); vSr = va()
    vOst = va(); vOG = va(); sOG = sa(); vOLw = va(); vOLr = va()
    vYst = va(); sYst = sa(); vFG = va(); sFG = sa(); vOut = va()
    vFw = va(); vFr = va(); vOne_c = va()
    sCsc = sa(); sP0 = sa(); sP1 = sa(); sP2 = sa(); sU0 = sa(); sU1 = sa(); sM4 = sa(2, 2); sG1 = sa(2, 2); sCnt = sa()
    a(f"""
v_lshrrev_b32 v{g}, 4, v{l}
v_and_b32 v{n16}, 15, v{l}
v_and_b32 v{n4}, 3, v{l}
v_lshlrev_b32 v{t2}, 2, v{l}
v_mov_b32 v{t3}, 0
ds_write_b32 v{t2}, v{t3} offset:{FL}
v_add_u32 v{t2}, {JK}, v{t2}
s_lshl_b32 s{sT}, {W}, 2
s_add_u32 s{sT}, s{sT}, {FL}
v_mov_b32 v{vFw}, s{sT}
v_cmp_eq_u32 vcc, 0, v{l}
v_mov_b32 v{vFr}, {FL}
v_mov_b32 v{vOne_c}, 1
v_cndmask_b32 v{vFw}, v{t2}, v{vFw}, vcc
; p = g*8 + r/4 ; cg = r&3
s_lshr_b32 s{sR4}, {R}, 2
s_lshl_b32 s{sP}, {G}, 3
s_add_u32 s{sP}, s{sP}, s{sR4}
s_and_b32 s{sCG}, {R}, 3
v_lshlrev_b32 v{t2}, 2, v{n4}
v_xor_b32 v{t2}, v{g}, v{t2}
v_lshlrev_b32 v{t2}, 4, v{t2}
v_lshl_add_u32 v{t2}, v{n4}, 8, v{t2}
v_add_u32 v{vXr}, {XL}, v{t2}
v_xor_b32 v{vXr+1}, 64, v{vXr}
v_xor_b32 v{vXr+2}, 0x80, v{vXr}
v_xor_b32 v{vXr+3}, 0xc0, v{vXr}
v_bfe_u32 v{t0}, v{l}, 2, 2
v_lshl_add_u32 v{t2}, v{g}, 3, v{t0}
v_lshlrev_b32 v{t2}, 7, v{t2}
v_lshl_add_u32 v{t2}, v{n4}, 3, v{t2}
v_lshrrev_b32 v{t3}, 1, v{t0}
v_and_b32 v{t1}, 1, v{g}
v_lshl_or_b32 v{t3}, v{t1}, 1, v{t3}
v_xor_b32 v{t3}, {W}, v{t3}
v_lshl_add_u32 v{t2}, v{t3}, 5, v{t2}
v_add_u32 v{vWQr}, {WQ}, v{t2}
s_lshl_b32 s{sT}, {W}, 13
s_add_u32 s{sT}, s{sT}, {KL}
v_xor_b32 v{t2}, v{g}, v{n16}
v_lshlrev_b32 v{t2}, 4, v{t2}
v_lshl_add_u32 v{t2}, v{n16}, 8, v{t2}
v_add_u32 v{vKr}, s{sT}, v{t2}
v_xor_b32 v{vKr+1}, 64, v{vKr}
v_xor_b32 v{vKr+2}, 0x80, v{vKr}
v_xor_b32 v{vKr+3}, 0xc0, v{vKr}
v_lshl_add_u32 v{t2}, v{g}, 2, v{t0}
v_lshlrev_b32 v{t2}, 8, v{t2}
v_lshl_add_u32 v{t2}, v{n4}, 3, v{t2}
v_lshl_or_b32 v{t3}, v{t1}, 2, v{t0}
s_lshl_b32 s{sT}, {W}, 1
v_xor_b32 v{t3}, s{sT}, v{t3}
v_lshl_add_u32 v{t2}, v{t3}, 5, v{t2}
v_add_u32 v{vVr}, {VL}, v{t2}
v_xor_b32 v{vVr+1}, 32, v{vVr}
v_lshl_add_u32 v{t2}, v{g}, 3, v{t0}
v_lshlrev_b32 v{t2}, 8, v{t2}
v_lshl_add_u32 v{t2}, v{n4}, 3, v{t2}
v_lshl_add_u32 v{t2}, v{t3}, 5, v{t2}
v_add_u32 v{vWOr}, {WO}, v{t2}
v_xor_b32 v{vWOr+1}, 32, v{vWOr}
v_cmp_gt_u32 vcc, 4, v{n16}
v_mov_b32 v{t3}, {OOB}
s_lshl_b32 s{sT}, {W}, 6
v_lshlrev_b32 v{t2}, 4, v{g}
v_add_u32 v{t0}, s{sT}, v{t2}
v_lshl_add_u32 v{t0}, v{n16}, 13, v{t0}
v_cndmask_b32 v{vQst}, v{t3}, v{t0}, vcc
s_lshl_b32 s{sT}, {W}, 7
v_add_u32 v{t2}, s{sT}, v{t2}
v_lshl_add_u32 v{t0}, v{n16}, 12, v{t2}
v_cndmask_b32 v{vOst}, v{t3}, v{t0}, vcc
v_lshl_add_u32 v{t0}, v{n16}, 9, v{t2}
v_cndmask_b32 v{vYst}, v{t3}, v{t0}, vcc
YCOAL_ADDR
v_lshrrev_b32 v{t0}, 5, v{l}
v_and_b32 v{t1}, 31, v{l}
v_lshlrev_b32 v{t2}, 4, v{t1}
v_lshl_add_u32 v{vG}, v{t0}, 12, v{t2}
s_lshl_b32 s{sG}, {G}, 2
s_add_u32 s{sG}, s{sG}, {B}
s_lshl_b32 s{sG}, s{sG}, 4
s_add_u32 s{sG}, s{sG}, {W}
s_lshl_b32 s{sG}, s{sG}, 9
s_add_u32 s{sG}, s{sG}, {QF}
s_mul_i32 s{sT}, {W}, 320
v_lshlrev_b32 v{t2}, 3, v{t1}
v_lshl_add_u32 v{t2}, v{t0}, 2, v{t2}
v_add_u32 v{vQLw}, s{sT}, v{t2}
v_mul_u32_u24 v{t2}, 320, v{n4}
v_lshl_add_u32 v{vQLr}, v{g}, 4, v{t2}
v_lshlrev_b32 v{t2}, 6, v{n4}
v_lshl_add_u32 v{vPr}, v{g}, 4, v{t2}
s_lshl_b32 s{sT}, {W}, 8
v_add_u32 v{vPw}, s{sT}, v{vPr}
v_lshlrev_b32 v{vSr}, 4, v{n4}
s_lshl_b32 s{sT}, {W}, 2
v_add_u32 v{vSw}, s{sT}, v{vSr}
v_lshlrev_b32 v{t2}, 9, v{g}
v_lshl_add_u32 v{vOG}, v{n16}, 4, v{t2}
s_lshl_b32 s{sOG}, {W}, 3
s_add_u32 s{sOG}, s{sOG}, {G}
s_lshl_b32 s{sOG}, s{sOG}, 2
s_add_u32 s{sOG}, s{sOG}, {B}
s_lshl_b32 s{sOG}, s{sOG}, 4
s_and_b32 s{sT}, s{sR4}, 1
s_add_u32 s{sOG}, s{sOG}, s{sT}
s_lshl_b32 s{sOG}, s{sOG}, 8
s_add_u32 s{sOG}, s{sOG}, {OF}
s_mul_i32 s{sT}, {W}, 192
v_lshlrev_b32 v{t2}, 3, v{n16}
v_lshl_add_u32 v{t2}, v{g}, 1, v{t2}
v_add_u32 v{vOLw}, s{sT}, v{t2}
v_mul_u32_u24 v{t2}, 192, v{n4}
v_lshl_add_u32 v{vOLr}, v{g}, 4, v{t2}
s_lshl_b32 s{sYst}, s{sCG}, 6
s_add_u32 s{sYst}, s{sYst}, s{sP}
s_lshl_b32 s{sYst}, s{sYst}, 11
s_add_u32 s{sYst}, s{sYst}, {OX + SOFF}
v_lshrrev_b32 v{t0}, 1, v{l}
v_and_b32 v{t1}, 1, v{l}
v_lshlrev_b32 v{t2}, 4, v{t1}
v_lshl_add_u32 v{vFG}, v{t0}, 11, v{t2}
s_lshl_b32 s{sFG}, s{sCG}, 12
s_add_u32 s{sFG}, s{sFG}, s{sP}
s_lshl_b32 s{sFG}, s{sFG}, 5
s_add_u32 s{sFG}, s{sFG}, {OX + SOFF}
YCOAL_OUT
v_cmp_gt_u32 vcc, 2, v{n16}
s_mov_b32 s{sCsc}, {f32(CSC)}
s_mov_b32 s{sP0}, 0x07060503
v_cndmask_b32 v{vOut}, v{t3}, v{t2}, vcc
s_mov_b32 s{sP1}, 0x07060502
s_mov_b32 s{sP2}, 0x07060501
s_mov_b32 s{sU0}, 0x04000c0c
s_mov_b32 s{sU1}, 0x0706000c
s_mov_b32 s{sM4}, 0x000f000f
s_mov_b32 s{sM4+1}, 0x000f000f
s_waitcnt lgkmcnt(0)
s_mul_i32 s{sTag}, s{sEp}, 1664525
s_add_u32 s{sTag}, s{sTag}, 1013904223
""")
    ya = f"""; coalesced y store: lanes < 32: w*512 + l*16
s_lshl_b32 s{sT}, {W}, 9
v_lshlrev_b32 v{t0}, 4, v{l}
v_add_u32 v{t0}, s{sT}, v{t0}
v_cmp_gt_u32 s[{sM4}:{sM4+1}], 32, v{l}
v_cmp_eq_u32 s[{sG1}:{sG1+1}], 1, v{g}
s_nop 0
v_cndmask_b32 v{vYst}, v{t3}, v{t0}, s[{sM4}:{sM4+1}]""" if ycoal else ""
    yo = (f"""; out voffset: g*1024 + (cg*128 + 2p' + (l&1))*2 for lanes n16<2 ; p' = p (0..63)
s_lshl_b32 s{sT}, s{sCG}, 6
s_add_u32 s{sT}, s{sT}, s{sP}
s_lshl_b32 s{sT}, s{sT}, 2
v_lshlrev_b32 v{t2}, 1, v{t1}
v_lshl_add_u32 v{t2}, v{g}, 10, v{t2}
v_add_u32 v{t2}, s{sT}, v{t2}""" if ycoal else f"""s_lshr_b32 s{sT}, s{sP}, 4
s_lshl_b32 s{sT}, s{sT}, 2
s_add_u32 s{sT}, s{sT}, s{sCG}
s_lshl_b32 s{sT}, s{sT}, 4
s_and_b32 s{sT2}, s{sP}, 15
s_add_u32 s{sT}, s{sT}, s{sT2}
s_lshl_b32 s{sT}, s{sT}, 4
v_lshlrev_b32 v{t2}, 3, v{t1}
v_lshl_add_u32 v{t2}, v{g}, 1, v{t2}
v_add_u32 v{t2}, s{sT}, v{t2}""")
    newL = []
    for ln in a.L:
        if "YCOAL_ADDR" in ln: newL += ["    " + x for x in ya.split("\n") if x]
        elif "YCOAL_OUT" in ln: newL += ["    " + x for x in yo.split("\n")]
        else: newL.append(ln)
    a.L = newL
    A32 = va(32, 4); B16 = va(16, 4); C32 = va(32, 4); E8 = va(8, 4); F8 = va(8, 4)
    ones = va(4, 4); fl = va(4, 4); fl1 = va(); QS4 = va(4, 4); OS8 = va(8, 4); sQS = sa(); sOS = sa(); sWcN = sa.n
    a(f"""
v_mov_b32 v{ones}, 0x3f803f80
v_mov_b32 v{ones+1}, 0x3f803f80
v_mov_b32 v{ones+2}, 0x3f803f80
v_mov_b32 v{ones+3}, 0x3f803f80
v_mov_b32 v{QS4+3}, s{sTag}
v_mov_b32 v{OS8+3}, s{sTag}
v_mov_b32 v{OS8+7}, s{sTag}
v_mov_b32 v{E8+3}, s{sTag}
v_mov_b32 v{E8+7}, s{sTag}
s_add_u32 s{sQS}, s{sQB}, {0 if sameS in (1, 2) else SOFF}
s_add_u32 s{sOS}, s{sOB}, {0 if sameS in (1, 3) else SOFF}
s_mov_b32 s{sCnt}, {spin}
s_movk_i32 s{sWcN}, {wthr}
""")
    if pt == 7: a(f"buffer_load_dword v{vPT}, v{vPTa}, s[28:31], 0 offen")
    lab = [0]
    def setflag(off): a(f"ds_write_b32 v{vFw}, v{vOne_c} offset:{off}")
    colder = []
    sWc = sa()
    stage = {"flush": []}
    def waitflags(group=None, single=None):
        lab[0] += 1; L = f"L_wf{lab[0]}"
        a(f"{L}:")
        if group is not None: a(f"ds_read_b128 {rng(fl,4)}, v{vFr} offset:{group}")
        if single is not None: a(f"ds_read_b32 v{fl1}, v{vFr} offset:{single}")
        a("s_waitcnt lgkmcnt(0)")
        if group is not None:
            a(f"v_min3_u32 v{fl}, v{fl}, v{fl+1}, v{fl+2}")
            if single is not None: a(f"v_min3_u32 v{fl}, v{fl}, v{fl+3}, v{fl1}")
            else: a(f"v_min_u32 v{fl}, v{fl}, v{fl+3}")
            r = fl
        else: r = fl1
        a(f"v_cmp_eq_u32 vcc, 0, v{r}\ns_cbranch_vccz {L}d\ns_sub_u32 s{sWc}, s{sWc}, 1\ns_cbranch_scc0 {L}\ns_branch {L}f\n{L}d:")
        colder.append([f"{L}f:"] + list(stage["flush"]) + [f"s_movk_i32 s{sWc}, {wthr}", f"s_branch {L}"])
    QFL = [f"buffer_store_dwordx4 {rng(QS4,4)}, v{vQst}, s[28:31], s{sQS} offen sc1"]
    OFL = [f"buffer_store_dwordx4 {rng(OS8,4)}, v{vOst}, s[28:31], s{sOS} offen sc1", f"buffer_store_dwordx4 {rng(OS8+4,4)}, v{vOst}, s[28:31], s{sOS} offen offset:64 sc1"]
    assert sWc == sWcN
    xb = A32; wa = A32 + 16; acc = C32
    a("s_waitcnt lgkmcnt(0)\ns_barrier")
    for s in range(4):
        a(f"ds_read_b128 {rng(xb+4*s,4)}, v{vXr+s}")
        a(f"ds_read_b64_tr_b16 {rng(wa+4*s,2)}, v{vWQr} offset:{s*4096}")
        a(f"ds_read_b64_tr_b16 {rng(wa+4*s+2,2)}, v{vWQr} offset:{s*4096 + 512}")
    for s in range(4):
        a(f"s_waitcnt lgkmcnt({3*(3-s)})")
        c = "0" if s == 0 else rng(acc,4)
        a(f"v_mfma_f32_16x16x32_bf16 {rng(acc,4)}, {rng(wa+4*s,4)}, {rng(xb+4*s,4)}, {c}")
    a(f"""
s_nop 7
v_perm_b32 v{QS4}, v{acc}, v{acc+3}, s{sP0}
v_perm_b32 v{QS4+1}, v{acc+1}, v{acc+3}, s{sP1}
v_perm_b32 v{QS4+2}, v{acc+2}, v{acc+3}, s{sP2}
buffer_store_dwordx4 {rng(QS4,4)}, v{vQst}, s[28:31], s{sQB} offen
""")
    setflag(F_QI)
    stage["flush"] = QFL
    if pt in (9, 10, 11, 12):
        for x_ in ypt: a(x_)
    if pt in (2, 6): a(f"buffer_load_dword v{vPT}, v{vPTa}, s[28:31], 0 offen" + (" nt" if pt == 2 else ""))
    ST_("q published")
    gq = F8
    waitflags(single=F_GO)
    ST_("GO")
    a(f"buffer_load_dwordx4 {rng(gq,4)}, v{vG}, s[28:31], s{sG} offen sc1")
    a(f"buffer_load_dwordx4 {rng(gq+4,4)}, v{vG}, s[28:31], s{sG} offen offset:2048 sc1")
    if pt == 4: a(f"buffer_load_dword v{vPT}, v{vPTa}, s[28:31], 0 offen nt")
    if pt == 13:
        dum = va(2, 2)
        a(f"buffer_load_dword v{dum}, v{vOG}, s[28:31], s{sOG} offen sc1")
        a(f"buffer_load_dword v{dum+1}, v{vOG}, s[28:31], s{sOG} offen offset:2048 sc1")
    if pt == 14:
        dum = va(2, 2)
        a(f"buffer_load_dword v{dum}, v{vOG}, s[28:31], s{sOG} offen sc1")
        a(f"buffer_load_dword v{dum+1}, v{vOG}, s[28:31], s{sOG} offen offset:2048 sc1")
        dum2 = va(2, 2)
        a(f"s_add_u32 s{sT2}, s{sFG}, 65536")
        a(f"buffer_load_dword v{dum2}, v{vFG}, s[28:31], s{sFG} offen sc1")
        a(f"buffer_load_dword v{dum2+1}, v{vFG}, s[28:31], s{sT2} offen sc1")
    setflag(F_GI)
    ka = A32
    if lgo < 49: waitflags(single=F_K)
    for t in range(2):
        for s_ in range(4):
            a(f"ds_read_b128 {rng(ka+16*t+4*s_,4)}, v{vKr+s_} offset:{t*4096}")
    sa_tmp = sa(2, 2)
    cold = []
    def poll(name, regs, vaddr, soff, first_wait, offs, flush):
        a(f"s_waitcnt vmcnt({first_wait})\nL_{name}chk:")
        for i, r in enumerate(regs):
            if i == 0: a(f"v_cmp_ne_u32 vcc, s{sTag}, v{r+3}")
            else: a(f"v_cmp_ne_u32 s[{sa_tmp}:{sa_tmp+1}], s{sTag}, v{r+3}\ns_or_b64 vcc, vcc, s[{sa_tmp}:{sa_tmp+1}]")
        a(f"s_cbranch_vccnz L_{name}retry\nL_{name}ok:")
        c = [f"L_{name}retry:", f"s_sub_u32 s{sCnt}, s{sCnt}, 1", f"s_cbranch_scc1 L_{name}ok",
             f"s_cmp_gt_u32 s{sCnt}, {spin - nf}", f"s_cbranch_scc1 L_{name}re",
             f"s_cmp_lg_u32 s{sCnt}, {spin - nf}", f"s_cbranch_scc1 L_{name}tg"] + flush + [f"L_{name}tg:"] + ([] if (sameS == 1 or (sameS == 2 and name == "q") or (sameS == 3 and name == "o")) else [f"s_xor_b32 s{soff}, s{soff}, {SOFF}"]) + [f"L_{name}re:"]
        for r, o in zip(regs, offs):
            c.append(f"buffer_load_dwordx4 {rng(r,4)}, v{vaddr}, s[28:31], s{soff} offen offset:{o} sc1")
        c += ["s_waitcnt vmcnt(0)", f"s_branch L_{name}chk"]
        cold.append((name, c))
    poll("q", [gq, gq+4], vG, sG, {4: 1, 13: 2, 14: 4}.get(pt, 0), [0, 2048], QFL)
    if holdwo: setflag(F_GOK)
    ST_("q gathered")
    u = E8; qb = B16
    a(f"""
v_perm_b32 v{u}, v{gq}, v{gq+1}, s{sU0}
v_perm_b32 v{u+1}, v{gq+4}, v{gq+5}, s{sU0}
v_add_f32 v{u+4}, v{gq}, v{gq+4}
v_add_f32 v{u+6}, v{gq+2}, v{gq+6}
v_perm_b32 v{u}, v{u}, v{gq+2}, s{sU1}
v_perm_b32 v{u+1}, v{u+1}, v{gq+6}, s{sU1}
v_add_f32 v{u+5}, v{gq+1}, v{gq+5}
v_add_f32 v{u+7}, v{u}, v{u+1}
v_permlane32_swap_b32 v{u+4}, v{u+6}
s_nop 0
v_permlane32_swap_b32 v{u+5}, v{u+7}
v_add_f32 v{u+4}, v{u+4}, v{u+6}
v_add_f32 v{u+5}, v{u+5}, v{u+7}
v_cvt_pk_bf16_f32 v{u}, v{u+4}, v{u+5}
ds_write_b32 v{vQLw}, v{u} offset:{QL}
""")
    setflag(F_Q)
    waitflags(group=F_Q)
    for s in range(4):
        a(f"ds_read_b128 {rng(qb+4*s,4)}, v{vQLr} offset:{QL + s*64}")
    sc = C32
    for s in range(4):
        a(f"s_waitcnt lgkmcnt({3-s})")
        for t in range(2):
            c = "0" if s == 0 else rng(sc+4*t,4)
            a(f"v_mfma_f32_16x16x32_bf16 {rng(sc+4*t,4)}, {rng(ka+16*t+4*s,4)}, {rng(qb+4*s,4)}, {c}")
    m = va(2, 2); mt = va(); pk = E8
    sC2 = sa(2, 2)
    a(f"""
s_mov_b32 s{sC2}, s{sCsc}
s_mov_b32 s{sC2+1}, s{sCsc}
s_nop 4
v_max3_f32 v{m}, v{sc}, v{sc+1}, v{sc+2}
v_max3_f32 v{mt}, v{sc+3}, v{sc+4}, v{sc+5}
v_max3_f32 v{m}, v{m}, v{sc+6}, v{sc+7}
v_max_f32 v{m}, v{m}, v{mt}
v_mov_b32 v{mt}, v{m}
s_nop 1
v_permlane16_swap_b32 v{m}, v{mt}
v_max_f32 v{m}, v{m}, v{mt}
v_mov_b32 v{mt}, v{m}
s_nop 1
v_permlane32_swap_b32 v{m}, v{mt}
v_max_f32 v{m}, v{m}, v{mt}
v_mul_f32 v{m}, s{sCsc}, v{m}
""")
    for i in range(0, 8, 2):
        a(f"v_pk_fma_f32 v[{sc+i}:{sc+i+1}], v[{sc+i}:{sc+i+1}], s[{sC2}:{sC2+1}], v[{m}:{m+1}] op_sel_hi:[1,1,0] neg_lo:[0,0,1] neg_hi:[0,0,1]")
    a(f"s_mov_b64 exec, s[{sM4}:{sM4+1}]\nds_write_b32 v{vSw}, v{m} offset:{SL}\ns_mov_b64 exec, -1")
    for i in range(8):
        a(f"v_exp_f32 v{sc+i}, v{sc+i}")
        if i == 2: a(f"v_cvt_pk_bf16_f32 v{pk}, v{sc}, v{sc+1}")
        if i == 4: a(f"v_cvt_pk_bf16_f32 v{pk+1}, v{sc+2}, v{sc+3}")
        if i == 6: a(f"v_cvt_pk_bf16_f32 v{pk+2}, v{sc+4}, v{sc+5}")
    a(f"""
s_mov_b64 exec, s[{sM4}:{sM4+1}]
v_cvt_pk_bf16_f32 v{pk+3}, v{sc+6}, v{sc+7}
ds_write_b128 v{vPw}, {rng(pk,4)} offset:{PL}
s_mov_b64 exec, -1
""")
    setflag(F_P)
    a(f"s_mov_b32 s{sCnt}, {spin}")
    waitflags(group=F_P)
    ST_("P written")
    pb = B16; sv = F8; vaop = A32; D = C32
    lk = va(16, 4)
    M = va(); ff = va(4, 2); L = va(); Rr = va(); lse = va()
    a(f"ds_read_b128 {rng(sv,4)}, v{vSr} offset:{SL}")
    for ks in range(4):
        a(f"ds_read_b128 {rng(pb+4*ks,4)}, v{vPr} offset:{PL + ks*256}")
    a(f"ds_read_b32 v{fl1}, v{vFr} offset:{F_V}")
    a(f"""
s_waitcnt lgkmcnt(5)
v_max3_f32 v{M}, v{sv}, v{sv+1}, v{sv+2}
v_max_f32 v{M}, v{M}, v{sv+3}
v_sub_f32 v{ff}, v{sv}, v{M}
v_sub_f32 v{ff+1}, v{sv+1}, v{M}
v_sub_f32 v{ff+2}, v{sv+2}, v{M}
v_sub_f32 v{ff+3}, v{sv+3}, v{M}
""")
    for ks in range(4):
        a(f"s_waitcnt lgkmcnt({4-ks})")
        a(f"v_mfma_f32_16x16x32_bf16 {rng(lk+4*ks,4)}, {rng(ones,4)}, {rng(pb+4*ks,4)}, 0")
        a(f"v_exp_f32 v{ff+ks}, v{ff+ks}")
    def vread(ks):
        for tp in range(2):
            for e in range(2):
                a(f"ds_read_b64_tr_b16 {rng(vaop+8*ks+4*tp+2*e,2)}, v{vVr+tp} offset:{ks*8192 + e*4096}")
    def pv(ks):
        for tp in range(2):
            a(f"v_mfma_f32_16x16x32_bf16 {rng(D+8*ks+4*tp,4)}, {rng(vaop+8*ks+4*tp,4)}, {rng(pb+4*ks,4)}, 0")
    stats2 = f"""v_mul_f32 v{L}, v{ff}, v{lk}
v_fmac_f32 v{L}, v{ff+1}, v{lk+4}
v_fmac_f32 v{L}, v{ff+2}, v{lk+8}
v_fmac_f32 v{L}, v{ff+3}, v{lk+12}
v_rcp_f32 v{Rr}, v{L}
v_log_f32 v{lse}, v{L}
s_nop 0
v_mul_f32 v{ff}, v{ff}, v{Rr}
v_mul_f32 v{ff+1}, v{ff+1}, v{Rr}
v_mul_f32 v{ff+2}, v{ff+2}, v{Rr}
v_mul_f32 v{ff+3}, v{ff+3}, v{Rr}
v_add_f32 v{OS8+2}, v{lse}, v{M}
v_add_f32 v{OS8+6}, v{lse}, v{M}"""
    o = F8
    def scale(ks):
        base = ff + (ks & ~1); sel = ks & 1; fr = f"v[{base}:{base+1}]"
        for tp in range(2):
            for h in range(2):
                dst = rng(o+4*tp+2*h, 2); src = rng(D+8*ks+4*tp+2*h, 2)
                if ks == 0: a(f"v_pk_mul_f32 {dst}, {src}, {fr} op_sel:[0,{sel}] op_sel_hi:[1,{sel}]")
                else: a(f"v_pk_fma_f32 {dst}, {src}, {fr}, {dst} op_sel:[0,{sel},0] op_sel_hi:[1,{sel},1]")
    a(f"s_waitcnt lgkmcnt(0)\nv_cmp_ne_u32 vcc, 0, v{fl1}\ns_cbranch_vccnz L_vfast\ns_nop 3")
    if pvp:
        assert nmid == 24
        F_V1 = F_GOK
        waitflags(single=F_V1)
        vread(0); vread(1); vread(2)
        a(stats2)
        a("s_waitcnt lgkmcnt(8)"); pv(0)
        a("s_waitcnt lgkmcnt(4)"); pv(1)
        a("s_waitcnt lgkmcnt(0)"); pv(2)
        a("s_nop 1")
        scale(0); scale(1); scale(2)
        waitflags(single=F_V)
        ST_("V landed")
        vread(3)
        a("s_waitcnt lgkmcnt(0)"); pv(3)
        a("s_nop 7")
        scale(3)
        a("s_branch L_vdone")
    else:
        a(stats2)
        waitflags(single=F_V)
        ST_("V landed")
        vread(0); vread(1); vread(2)
        a("s_branch L_vjoin")
    a("L_vfast:")
    vread(0); vread(1); vread(2)
    a(stats2)
    a("L_vjoin:")
    a("s_waitcnt lgkmcnt(8)"); pv(0); vread(3)
    a("s_waitcnt lgkmcnt(8)"); pv(1)
    a("s_waitcnt lgkmcnt(4)"); pv(2)
    a("s_waitcnt lgkmcnt(0)"); pv(3)
    for ks in range(4): scale(ks)
    a("L_vdone:")
    og = OS8
    a(f"""
v_cvt_pk_bf16_f32 v{og}, v{o}, v{o+1}
v_cvt_pk_bf16_f32 v{og+1}, v{o+2}, v{o+3}
v_cvt_pk_bf16_f32 v{og+4}, v{o+4}, v{o+5}
v_cvt_pk_bf16_f32 v{og+5}, v{o+6}, v{o+7}
buffer_store_dwordx4 {rng(og,4)}, v{vOst}, s[28:31], s{sOB} offen
buffer_store_dwordx4 {rng(og+4,4)}, v{vOst}, s[28:31], s{sOB} offen offset:64
""")
    setflag(F_OI)
    stage["flush"] = QFL + OFL
    ST_("o published")
    gg = B16; wb = A32
    if not nooi: waitflags(group=F_OI)
    if nooi:
        waitflags(single=F_W)
        for s_ in range(2):
            for tp in range(2):
                for hh in range(2):
                    a(f"ds_read_b64_tr_b16 {rng(wb+8*s_+4*tp+2*hh,2)}, v{vWOr+tp} offset:{s_*8192 + hh*1024}")
    a(f"""
buffer_load_dwordx4 {rng(gg,4)}, v{vOG}, s[28:31], s{sOG} offen sc1
buffer_load_dwordx4 {rng(gg+4,4)}, v{vOG}, s[28:31], s{sOG} offen offset:2048 sc1
""")
    if not nooi:
        waitflags(single=F_W)
        for s in range(2):
            for tp in range(2):
                for hh in range(2):
                    a(f"ds_read_b64_tr_b16 {rng(wb+8*s+4*tp+2*hh,2)}, v{vWOr+tp} offset:{s*8192 + hh*1024}")
    poll("o", [gg, gg+4], vOG, sOG, 0, [0, 2048], QFL + OFL)
    ST_("o gathered")
    e0 = va(); e1 = va(); u = A32 + 16; S = va(); oo = A32 + 24
    a(f"""
v_max_f32 v{M}, v{gg+2}, v{gg+6}
v_mov_b32 v{mt}, v{M}
v_lshlrev_b32 v{u}, 16, v{gg}
v_and_b32 v{u+1}, 0xffff0000, v{gg}
v_permlane16_swap_b32 v{M}, v{mt}
v_lshlrev_b32 v{u+2}, 16, v{gg+1}
v_max_f32 v{M}, v{M}, v{mt}
v_mov_b32 v{mt}, v{M}
v_and_b32 v{u+3}, 0xffff0000, v{gg+1}
v_lshlrev_b32 v{u+4}, 16, v{gg+4}
v_permlane32_swap_b32 v{M}, v{mt}
v_and_b32 v{u+5}, 0xffff0000, v{gg+4}
v_max_f32 v{M}, v{M}, v{mt}
v_lshlrev_b32 v{u+6}, 16, v{gg+5}
v_sub_f32 v{e0}, v{gg+2}, v{M}
v_sub_f32 v{e1}, v{gg+6}, v{M}
v_exp_f32 v{e0}, v{e0}
v_exp_f32 v{e1}, v{e1}
v_and_b32 v{u+7}, 0xffff0000, v{gg+5}
v_add_f32 v{S}, v{e0}, v{e1}
v_mul_f32 v{oo}, v{e0}, v{u}
v_mul_f32 v{oo+1}, v{e0}, v{u+1}
v_mov_b32 v{mt}, v{S}
v_mul_f32 v{oo+2}, v{e0}, v{u+2}
v_mul_f32 v{oo+3}, v{e0}, v{u+3}
v_permlane16_swap_b32 v{S}, v{mt}
v_fmac_f32 v{oo}, v{e1}, v{u+4}
v_fmac_f32 v{oo+1}, v{e1}, v{u+5}
v_add_f32 v{S}, v{S}, v{mt}
v_fmac_f32 v{oo+2}, v{e1}, v{u+6}
v_fmac_f32 v{oo+3}, v{e1}, v{u+7}
v_mov_b32 v{mt}, v{S}
v_permlane16_swap_b32 v{oo}, v{oo+1}
s_nop 0
v_permlane16_swap_b32 v{oo+2}, v{oo+3}
v_permlane32_swap_b32 v{S}, v{mt}
v_add_f32 v{oo}, v{oo}, v{oo+1}
v_add_f32 v{oo+2}, v{oo+2}, v{oo+3}
v_add_f32 v{S}, v{S}, v{mt}
s_nop 0
v_permlane32_swap_b32 v{oo}, v{oo+2}
v_rcp_f32 v{S}, v{S}
v_add_f32 v{oo}, v{oo}, v{oo+2}
v_mul_f32 v{oo}, v{oo}, v{S}
v_cvt_pk_bf16_f32 v{oo}, v{oo}, v{oo}
ds_write_b16 v{vOLw}, v{oo} offset:{OL}
""")
    setflag(F_O)
    a(f"s_add_u32 s{sT2}, s{sFG}, 65536\ns_mov_b32 s{sCnt}, {spin}")
    waitflags(group=F_O)
    ob = B16 + 8; y = C32; yg = E8
    a(f"""
ds_read_b128 {rng(ob,4)}, v{vOLr} offset:{OL}
ds_read_b128 {rng(ob+4,4)}, v{vOLr} offset:{OL+64}
""")
    for s in range(2):
        a(f"s_waitcnt lgkmcnt({1-s})")
        for tp in range(2):
            c = "0" if s == 0 else rng(y+4*tp,4)
            if ycoal: a(f"v_mfma_f32_16x16x32_bf16 {rng(y+4*tp,4)}, {rng(ob+4*s,4)}, {rng(wb+8*s+4*tp,4)}, {c}")
            else: a(f"v_mfma_f32_16x16x32_bf16 {rng(y+4*tp,4)}, {rng(wb+8*s+4*tp,4)}, {rng(ob+4*s,4)}, {c}")
    if ycoal:
        a(f"v_mov_b32 v{E8+3}, s{sTag}\ns_nop 6")
        for r in range(4): a(f"v_cndmask_b32 v{y+r}, v{y+r}, v{y+4+r}, s[{sG1}:{sG1+1}]")
        a(f"""v_perm_b32 v{yg}, v{y}, v{y+3}, s{sP0}
v_perm_b32 v{yg+1}, v{y+1}, v{y+3}, s{sP1}
v_perm_b32 v{yg+2}, v{y+2}, v{y+3}, s{sP2}
buffer_store_dwordx4 {rng(yg,4)}, v{vYst}, s[28:31], s{sYst} offen sc1""")
    else:
        a(f"v_mov_b32 v{E8+3}, s{sTag}\nv_mov_b32 v{E8+7}, s{sTag}\ns_nop 4")
        for tp in range(2):
            a(f"""v_perm_b32 v{yg+4*tp}, v{y+4*tp}, v{y+4*tp+3}, s{sP0}
v_perm_b32 v{yg+4*tp+1}, v{y+4*tp+1}, v{y+4*tp+3}, s{sP1}
v_perm_b32 v{yg+4*tp+2}, v{y+4*tp+2}, v{y+4*tp+3}, s{sP2}
buffer_store_dwordx4 {rng(yg+4*tp,4)}, v{vYst}, s[28:31], s{sYst} offen offset:{tp*64} sc1""")
    setflag(F_YI)
    ST_("y published")
    waitflags(group=F_YI)
    if not noflush:
        for x_ in QFL + OFL: a(x_)
    if dirty:
        a(f"s_lshl_b32 s{sT}, s2, 2\ns_add_u32 s{sT}, s{sT}, {W}\ns_mul_i32 s{sT}, s{sT}, {dirty*1024}\ns_add_u32 s{sT}, s{sT}, 0x800000\nv_lshlrev_b32 v{t0}, 4, v{l}")
        for i in range(dirty):
            a(f"buffer_store_dwordx4 {rng(C32,4)}, v{t0}, s[28:31], s{sT} offen\ns_add_u32 s{sT}, s{sT}, 1024")
    z = C32 + 24
    fg = C32 + 16
    a(f"""s_cmp_lg_u32 {W}, 0
s_cbranch_scc1 L_fin
L_fpoll:
buffer_load_dwordx4 {rng(fg,4)}, v{vFG}, s[28:31], s{sFG} offen sc1
buffer_load_dwordx4 {rng(fg+4,4)}, v{vFG}, s[28:31], s{sT2} offen sc1
s_waitcnt vmcnt(0)
v_cmp_ne_u32 vcc, s{sTag}, v{fg+3}
v_cmp_ne_u32 s[{sa_tmp}:{sa_tmp+1}], s{sTag}, v{fg+7}
s_or_b64 vcc, vcc, s[{sa_tmp}:{sa_tmp+1}]
s_cbranch_vccz L_fok
{('s_sleep ' + str(fsleep)) if fsleep else 's_nop 0'}
s_sub_u32 s{sCnt}, s{sCnt}, 1
s_cbranch_scc0 L_fpoll
L_fok:""")
    ST_("final gathered")
    a(f"""
v_perm_b32 v{z+3}, v{fg}, v{fg+1}, s{sU0}
v_perm_b32 v{z+7}, v{fg+4}, v{fg+5}, s{sU0}
v_add_f32 v{z}, v{fg}, v{fg+4}
v_perm_b32 v{z+3}, v{z+3}, v{fg+2}, s{sU1}
v_perm_b32 v{z+7}, v{z+7}, v{fg+6}, s{sU1}
v_add_f32 v{z+1}, v{fg+1}, v{fg+5}
v_add_f32 v{z+2}, v{fg+2}, v{fg+6}
v_add_f32 v{z+3}, v{z+3}, v{z+7}
""")
    for ctl in ("quad_perm:[2,3,0,1]", "row_ror:4", "row_ror:8"):
        for r in range(4):
            a(f"v_add_f32_dpp v{z+r}, v{z+r}, v{z+r} {ctl} row_mask:0xf bank_mask:0xf")
    a(f"""
s_nop 0
v_permlane16_swap_b32 v{z}, v{z+1}
v_permlane16_swap_b32 v{z+2}, v{z+3}
s_nop 0
v_add_f32 v{z}, v{z}, v{z+1}
v_add_f32 v{z+2}, v{z+2}, v{z+3}
s_nop 1
v_permlane32_swap_b32 v{z}, v{z+2}
s_nop 0
v_add_f32 v{z}, v{z}, v{z+2}
v_cvt_pk_bf16_f32 v{z}, v{z}, v{z}
buffer_store_short v{z}, v{vOut}, s[32:35], 0 offen
s_cmp_lg_u32 s2, 0
s_cbranch_scc1 L_fin
v_mov_b32 v{t0}, s{sTag}
v_mov_b32 v{t1}, {WSB}
s_mov_b64 exec, 1
buffer_store_dword v{t0}, v{t1}, s[28:31], 0 offen sc1
s_mov_b64 exec, -1
L_fin:
""")
    a("s_branch L_tail" if stamp else "s_endpgm")
    for name, c in cold:
        for x_ in c: a(x_)
    a("; WARM_END")
    for c in colder:
        for x_ in c: a(x_)
    a("L_tail:")
    if stamp:
        a(f"s_mov_b32 s31, 0x20000\ns_mov_b32 s30, {WS_BYTES}")
    if amp >= 0:
        ST_("end")
        e = nst[0] - 1
        a(f"""
s_waitcnt lgkmcnt(0)
s_cmp_lg_u32 {W}, 0
s_cbranch_scc1 L_end
""")
        if ampglob:
            a(f"""
s_lshl_b32 s37, s2, 3
s_add_u32 s37, s37, {ST}
v_mov_b32 v{C32}, s{SB}
v_mov_b32 v{C32+1}, s{sTag}
v_mov_b32 v{t1}, 0
s_mov_b64 exec, 1
buffer_store_dwordx2 v[{C32}:{C32+1}], v{t1}, s[28:31], s37 offen sc1
s_mov_b64 exec, -1
""")
        a(f"""
s_cmp_lg_u32 s2, 0
s_cbranch_scc1 L_end
""")
        if ampglob:
            a(f"""
s_mov_b32 s37, {ST}
v_lshlrev_b32 v{t1}, 5, v{l}
L_ag:
buffer_load_dwordx4 v[{C32}:{C32+3}], v{t1}, s[28:31], s37 offen sc1
buffer_load_dwordx4 v[{C32+4}:{C32+7}], v{t1}, s[28:31], s37 offen offset:16 sc1
s_waitcnt vmcnt(0)
v_cmp_ne_u32 vcc, s{sTag}, v{C32+1}
v_cmp_ne_u32 s[40:41], s{sTag}, v{C32+3}
s_or_b64 vcc, vcc, s[40:41]
v_cmp_ne_u32 s[40:41], s{sTag}, v{C32+5}
s_or_b64 vcc, vcc, s[40:41]
v_cmp_ne_u32 s[40:41], s{sTag}, v{C32+7}
s_or_b64 vcc, vcc, s[40:41]
s_cbranch_vccnz L_ag
v_subrev_u32 v{C32}, s{SB}, v{C32}
v_subrev_u32 v{C32+2}, s{SB}, v{C32+2}
v_subrev_u32 v{C32+4}, s{SB}, v{C32+4}
v_subrev_u32 v{C32+6}, s{SB}, v{C32+6}
v_min_i32 v{C32}, v{C32}, v{C32+2}
v_min_i32 v{C32+4}, v{C32+4}, v{C32+6}
v_min_i32 v{C32}, v{C32}, v{C32+4}
s_nop 1
v_min_i32_dpp v{C32}, v{C32}, v{C32} row_ror:1 row_mask:0xf bank_mask:0xf
s_nop 1
v_min_i32_dpp v{C32}, v{C32}, v{C32} row_ror:2 row_mask:0xf bank_mask:0xf
s_nop 1
v_min_i32_dpp v{C32}, v{C32}, v{C32} row_ror:4 row_mask:0xf bank_mask:0xf
s_nop 1
v_min_i32_dpp v{C32}, v{C32}, v{C32} row_ror:8 row_mask:0xf bank_mask:0xf
s_nop 1
v_readlane_b32 s36, v{C32}, 0
v_readlane_b32 s37, v{C32}, 16
v_readlane_b32 s38, v{C32}, 32
v_readlane_b32 s39, v{C32}, 48
s_nop 3
s_min_i32 s36, s36, s37
s_min_i32 s38, s38, s39
s_min_i32 s36, s36, s38
s_sub_u32 s37, s{SB+2*amp}, s{SB}
s_sub_u32 s37, s37, s36
s_memrealtime s[40:41]
s_waitcnt lgkmcnt(0)
s_mul_i32 s37, s37, {ampk}
s_add_u32 s37, s37, s40
""")
        else:
            a(f"""
s_sub_u32 s37, s{SB+2*amp}, s{SB}
s_mul_i32 s37, s37, {ampk}
s_add_u32 s37, s37, s{SB+2*e}
""")
        a(f"""
L_amp:
s_memrealtime s[40:41]
s_waitcnt lgkmcnt(0)
s_cmp_lt_u32 s40, s37
s_cbranch_scc1 L_amp
""")
    elif stamp:
        ST_("end")
        n = nst[0]
        a(f"""
s_waitcnt lgkmcnt(0) vmcnt(0)
s_mul_i32 s4, s2, 8
s_add_u32 s4, s4, s3
s_lshl_b32 s4, s4, 6
s_add_u32 s4, s4, {ST}
v_mov_b32 v{t1}, 0
s_mov_b64 exec, 1
""")
        for i in range(n):
            a(f"v_mov_b32 v{t0}, s{SB+2*i}\nbuffer_store_dword v{t0}, v{t1}, s[28:31], s4 offen offset:{4*i}\ns_nop 0")
    a("L_end:\ns_endpgm")
    lines = a.L
    nh = 0
    if warm:
        lines, nh, have = hops.insert(lines, nparts)
        assert have == nparts, (have, nparts)
    body = "\n".join(lines) + "\n"
    assert (not stamp) or (sa.hi <= SB and ls.hi <= SB), (sa.hi, ls.hi)
    nv = max(va.hi, lv.hi)
    s = header([f"; @launch grid=(256,1,1) block=(320,1,1) lds={LDS_BYTES}"]) + kernel_begin(KNAME) + body + RODATA + descriptor(KNAME, nv, 102 if stamp else max(sa.hi, ls.hi))
    errs = haz.check(body)
    for e in errs: print("HAZ", e)
    return s, nv, sa.hi, nh, stn
if __name__ == "__main__":
    out = sys.argv[1]
    kw = {}
    for x in sys.argv[2:]:
        k, v = x.split("=")
        if k in ("warm", "prio", "holdwo", "rot", "rotq", "ilv", "ycoal", "xnt", "xfirst", "pvp"): kw[k] = (v == "1")
        elif k == "nt": kw[k] = (" " + v if v else "")
        else: kw[k] = int(v)
    s, nv, ns, nh, stn = gen(**kw)
    open(out, "w").write(s)
    print("vgprs", nv, "sgprs", ns, "hops", nh, "lds", LDS_BYTES, stn)
```

```python
import sys, struct
sys.path.insert(0, "my")
from ag import *
import haz, hops

import os
WSB = int(os.environ.get('WSB', '0'), 0)
QF = WSB + 0x10000
OF = WSB + 0x80000
OX = WSB + 0x100000
SOFF = 0x200000
ST = 0x400000
WS_BYTES = 268435456
QL = 0
PL = QL + 1280
SL = PL + 1024
OL = SL + 64
FL = 3136
JK = FL + 160
XL = 3840; WQ = XL + 1024; KL = WQ + 16384; VL = KL + 32768
import os
if os.environ.get('ALIAS', '0') == '1':
    WO = WQ; LDS_BYTES = VL + 32768
else:
    WO = VL + 32768; LDS_BYTES = WO + 16384
assert OL + 768 <= FL and JK + 416 <= XL and XL % 256 == 0 and WQ % 256 == 0
F_Q, F_P, F_O, F_GI, F_QI, F_GOK, F_OI, F_YI, F_GO, F_K, F_V, F_W = 0, 16, 32, 48, 64, 80, 96, 112, 128, 132, 136, 140
CSC = 0.08838834764831845 * 1.4426950408889634
def f32(x): return "0x%08x" % struct.unpack("<I", struct.pack("<f", x))[0]
class V:
    def __init__(s, n=0): s.n = n; s.hi = n
    def __call__(s, cnt=1, align=1):
        s.n = (s.n + align - 1) // align * align
        r = s.n; s.n += cnt; s.hi = max(s.hi, s.n)
        return r
def rng(r, n): return f"v[{r}:{r+n-1}]"
OOB = "0x7ffffff0"

def gen(stamp=False, nt=" nt", hold=0, kx=32, nmid=32, lgo=60, holdwo=False, rot=True, rotq=True, fd=1, fmode=0, pvp=True, lwo=0, fsleep=0, nooi=0, n1p=0, noflush=0, sameS=0, dirty=0, cqx=0, xnt=False, xfirst=False, ilv=True, ycoal=True, wthr=2000, n3=0, n2=0, N=24, spin=100000, nf=64, amp=-1, ampk=10, ampglob=0, warm=True, pt=1, nparts=4, prio=True, step=2):
    if amp >= 0: stamp = True
    a = A(); va = V(1); sa = V(36)
    l = va(); t0 = va(); t1 = va(); t2 = va(); t3 = va()
    nst = [0]; stn = []
    SB = 74 if pt == 12 else 72
    def ST_(label):
        if stamp and (stamp != 2 or label in ('entry', 'end')):
            i = nst[0]; nst[0] += 1; stn.append(label)
            assert i < (14 if pt == 12 else 15)
            a(f"s_memrealtime s[{SB+2*i}:{SB+1+2*i}]")
    W, G, R, B, C = "s3", "s4", "s5", "s6", "s7"
    sT = sa(); sT2 = sa(); sWin = sa()
    a(f"""
s_cmp_ge_u32 s2, 256
s_cbranch_scc1 L_end
s_load_dwordx2 s[20:21], s[0:1], 24
s_load_dwordx2 s[8:9], s[0:1], 0
s_load_dwordx2 s[12:13], s[0:1], 8
s_load_dwordx2 s[28:29], s[0:1], 56
s_load_dwordx2 s[16:17], s[0:1], 16
s_load_dwordx2 s[24:25], s[0:1], 32
s_load_dwordx2 s[32:33], s[0:1], 40
""")
    ST_("entry")
    a(f"""
v_lshrrev_b32 v{t0}, 6, v0
v_and_b32 v{l}, 63, v0
s_and_b32 {G}, s2, 7
v_readfirstlane_b32 {W}, v{t0}
s_lshr_b32 {R}, s2, 3
s_lshr_b32 {B}, {R}, 3
s_and_b32 {C}, {R}, 7
s_mov_b32 s23, 0x20000
v_lshrrev_b32 v{t0}, 4, v{l}
v_and_b32 v{t1}, 15, v{l}
""")
    if stamp: a(f"s_mov_b32 s31, s23\ns_mov_b32 s30, {WS_BYTES}\ns_mov_b32 s35, s23\ns_movk_i32 s34, 0x1000")
    a(f"""
s_cmp_lt_u32 {W}, 4
s_cbranch_scc1 L_compute
""")
    lv = V(va.n); ls = V(sa.n)
    vWQ = lv(2); vX = lv(); vK = lv(4); vV = lv(2); vWO = lv(2); vLF = lv(); vOne = lv()
    sWQ = ls(); sX = ls(); sK = ls(); sWO = ls(); lT = ls(); sWQb0 = ls()
    if prio: a("s_setprio 2")
    a(f"""
s_mov_b32 s22, 0x400000
v_and_b32 v{t2}, 7, v{l}
v_lshlrev_b32 v{t3}, 1, v{t0}
v_and_b32 v{vX}, 2, v{t3}
v_xor_b32 v{t2}, v{t2}, v{vX}
v_lshlrev_b32 v{t2}, 4, v{t2}
v_lshrrev_b32 v{vX}, 3, v{l}
v_lshl_add_u32 v{vWQ}, v{vX}, 13, v{t2}
v_xor_b32 v{vWQ+1}, 64, v{vWQ}
s_lshl_b32 s{sWQb0}, {G}, 3
s_xor_b32 s{lT}, {C}, {cqx}
s_add_u32 s{sWQb0}, s{sWQb0}, s{lT}
s_lshl_b32 s{sWQb0}, s{sWQb0}, 7
s_lshl_b32 s{lT}, {B}, 20
s_add_u32 s{sWQb0}, s{sWQb0}, s{lT}
s_mov_b32 s11, s23
s_movk_i32 s10, 0x1000
s_mov_b32 s15, s23
s_mov_b32 s14, 0x2000000
; x voffset: (l>>4)*1024 + ((l&15) ^ (4*(l>>4)))*16
v_lshlrev_b32 v{t2}, 2, v{t0}
v_xor_b32 v{t2}, v{t1}, v{t2}
v_lshlrev_b32 v{t2}, 4, v{t2}
v_lshl_add_u32 v{vX}, v{t0}, 10, v{t2}
s_lshl_b32 s{sX}, {B}, 8
""")
    seq = []
    sRho = ls(); sJ = ls(); sWQb = sWQb0
    for i in range(16):
        pre = []
        if i % 4 == 0:
            j_ = i // 4
            if rotq:
                pre += [f"s_add_u32 s{sJ}, {B}, {j_}", f"s_and_b32 s{sJ}, s{sJ}, 3", f"s_lshl_b32 s{lT}, s{sJ}, 18", f"s_add_u32 s{sWQ}, s{sWQb}, s{lT}",
                        f"s_lshl_b32 s{lT}, s{sJ}, 12", f"s_add_u32 m0, s{lT}, {WQ}"]
            else:
                pre += [f"s_add_u32 s{sWQ}, s{sWQb}, {j_ << 18}", f"s_mov_b32 m0, {WQ + j_*4096}"]
            pre.append("s_nop 0")
        else:
            pre.append(f"s_add_u32 s{sWQ}, s{sWQ}, {65536 - 1024}")
        seq.append((pre, f"buffer_load_dwordx4 v{vWQ + (i & 1)}, s[20:23], s{sWQ} offen offset:{(i%4)*1024}{nt} lds"))
    seq.append(([f"s_movk_i32 m0, {XL}", "s_nop 0"], f"buffer_load_dwordx4 v{vX}, s[8:11], s{sX} offen{' nt' if xnt else ''} lds"))
    if xfirst: seq.insert(0, seq.pop())
    kpre = f"""; K voffsets: (l>>4)*256 + ((l&15)^(l>>4))*16  ^ (64*i)
v_xor_b32 v{t2}, v{t1}, v{t0}
v_lshlrev_b32 v{t2}, 4, v{t2}
v_lshl_add_u32 v{vK}, v{t0}, 8, v{t2}
v_xor_b32 v{vK+1}, 64, v{vK}
v_xor_b32 v{vK+2}, 0x80, v{vK}
v_xor_b32 v{vK+3}, 0xc0, v{vK}
; flag address vgpr: lane0 -> FL, else JK + 4*l
v_lshlrev_b32 v{t2}, 2, v{l}
v_add_u32 v{t2}, {JK}, v{t2}
v_cmp_eq_u32 vcc, 0, v{l}
v_mov_b32 v{vLF}, {FL}
v_mov_b32 v{vOne}, 1
v_cndmask_b32 v{vLF}, v{t2}, v{vLF}, vcc
; window base = (b*8+g)<<20 + 3072*256 + c*(32768 or 4096)
s_lshl_b32 s{sWin}, {B}, 3
s_add_u32 s{sWin}, s{sWin}, {G}
s_lshl_b32 s{sWin}, s{sWin}, 5
s_add_u32 s{sWin}, s{sWin}, 24
s_lshl_b32 s{sWin}, s{sWin}, 15
s_lshl_b32 s{sJ}, {C}, {12 if ilv else 15}
s_add_u32 s{sWin}, s{sWin}, s{sJ}
; rho*4096 : rho = (g + 2b) & 7
s_lshl_b32 s{sRho}, {B}, 1
s_add_u32 s{sRho}, s{sRho}, {G}
s_and_b32 s{sRho}, s{sRho}, {7 if rot else 0}
s_lshl_b32 s{sRho}, s{sRho}, 12""".split("\n")
    def grp(j_, ldsbase):
        if ilv:
            return [f"s_add_u32 s{sJ}, s{sRho}, {j_*4096}", f"s_and_b32 s{sJ}, s{sJ}, 0x7fff", f"s_mov_b32 m0, {ldsbase + j_*4096}", f"s_lshl_b32 s{sJ}, s{sJ}, 3", f"s_add_u32 s{sK}, s{sWin}, s{sJ}"]
        return [f"s_add_u32 s{sJ}, s{sRho}, {j_*4096}", f"s_and_b32 s{sJ}, s{sJ}, 0x7fff", f"s_add_u32 m0, s{sJ}, {ldsbase}", f"s_add_u32 s{sK}, s{sWin}, s{sJ}"]
    for i in range(32):
        pre = list(kpre) if i == 0 else []
        if i % 4 == 0: pre += grp(i // 4, KL)
        seq.append((pre, f"buffer_load_dwordx4 v{vK+i%4}, s[12:15], s{sK} offen offset:{(i%4)*1024}{nt} lds"))
    vpre = f"""s_mov_b32 s19, s23
s_mov_b32 s18, s14
; V voffset: (l>>4)*256 + ((l&15) ^ ((l>>4)<<1))*16 ; odd: ^128 ; WO: (l>>4)*1024 + same piece
v_xor_b32 v{t2}, v{t1}, v{t3}
v_lshlrev_b32 v{t2}, 4, v{t2}
v_lshl_add_u32 v{vV}, v{t0}, 8, v{t2}
v_xor_b32 v{vV+1}, 0x80, v{vV}
v_lshl_add_u32 v{vWO}, v{t0}, 10, v{t2}
v_xor_b32 v{vWO+1}, 0x80, v{vWO}
s_mov_b32 s27, s23
s_mov_b32 s26, s22
; WO soff = p<<16 + cg*256 ; p = g*8 + r/4 ; cg = r&3
s_lshr_b32 s{lT}, {R}, 2
s_lshl_b32 s{sWO}, {G}, 3
s_add_u32 s{sWO}, s{sWO}, s{lT}
s_lshl_b32 s{sWO}, s{sWO}, 8
s_and_b32 s{lT}, {R}, 3
s_add_u32 s{sWO}, s{sWO}, s{lT}
s_lshl_b32 s{sWO}, s{sWO}, 8""".split("\n")
    for i in range(32):
        pre = list(vpre) if i == 0 else []
        if i % 4 == 0: pre += grp(i // 4, VL)
        seq.append((pre, f"buffer_load_dwordx4 v{vV+(i&1)}, s[16:19], s{sK} offen offset:{(i%4)*1024}{nt} lds"))
    for i in range(16):
        pre = []
        if i == 0: pre += [f"s_mov_b32 m0, {WO}", "s_nop 0"]
        elif i % 4 == 0: pre.append("s_add_u32 m0, m0, 4096")
        if i: pre.append(f"s_add_u32 s{sWO}, s{sWO}, {4096 - 1024 if i % 4 else 4096 + 3072}")
        seq.append((pre, f"buffer_load_dwordx4 v{vWO+((i>>1)&1)}, s[24:27], s{sWO} offen offset:{(i%4)*1024}{nt} lds"))
    T = len(seq); assert T == 97
    def emit(k):
        pre, ld = seq[k]
        for p in pre: a(p)
        a(ld)
    for p in seq[0][0]: a(p)
    a("s_waitcnt lgkmcnt(0)")
    a(seq[0][1])
    for k in range(1, 17): emit(k)
    ST_("L: wq issued")
    pre17, ld17 = seq[17]
    for p in pre17: a(p)
    n0 = 17 + kx
    if kx > 0:
        if hold: a(f"s_waitcnt vmcnt({17 - hold})")
        a(ld17)
        for k in range(18, n0):
            if n1p and k >= n1p: a(f"s_waitcnt vmcnt({n1p - 1})")
            emit(k)
    else:
        seq[17] = ([], ld17)
    ST_("L: K issued")
    lfl = lv(4, 4)
    a(f"v_mov_b32 v{t2}, {FL}")
    a(f"s_waitcnt vmcnt({n0 - 17})\ns_barrier")
    ST_("L: wq landed")
    def lwait(name, off):
        a(f"""L_{name}:
ds_read_b128 v[{lfl}:{lfl+3}], v{t2} offset:{off}
s_waitcnt lgkmcnt(0)
v_and_b32 v{lfl}, v{lfl}, v{lfl+1}
v_and_b32 v{lfl+2}, v{lfl+2}, v{lfl+3}
v_and_b32 v{lfl}, v{lfl}, v{lfl+2}
v_cmp_eq_u32 vcc, 0, v{lfl}
s_cbranch_vccnz L_{name}""")
    vFA = lv()
    a(f"v_mov_b32 v{vFA}, {FL}")
    def lwait(name, off):
        a(f"""L_{name}:
ds_read_b128 v[{lfl}:{lfl+3}], v{vFA} offset:{off}
s_waitcnt lgkmcnt(0)
v_and_b32 v{lfl}, v{lfl}, v{lfl+1}
v_and_b32 v{lfl+2}, v{lfl+2}, v{lfl+3}
v_and_b32 v{lfl}, v{lfl}, v{lfl+2}
v_cmp_eq_u32 vcc, 0, v{lfl}
s_cbranch_vccnz L_{name}""")
    lwait("qi", F_QI)
    n1 = 49 + nmid
    for k in range(n0, n1):
        if n2: a(f"s_waitcnt vmcnt({n2 - 1})")
        emit(k)
    assert lgo <= n1 and n1 <= T
    a(f"s_waitcnt vmcnt({n1 - lgo})")
    a(f"ds_write_b32 v{vLF}, v{vOne} offset:{F_GO}")
    lwait("gi", F_GI)
    for k in range(n1, T):
        if k == 81 and holdwo: lwait("gok", F_GOK)
        if k == 81 and lwo: a(f"s_waitcnt vmcnt({81 - lwo})")
        if n3: a(f"s_waitcnt vmcnt({n3 - 1})")
        emit(k)
    if lgo < 49: a(f"s_waitcnt vmcnt({T - 49})\nds_write_b32 v{vLF}, v{vOne} offset:{F_K}")
    F_V1 = F_GOK
    tailev = ([(49 + nmid, F_V1)] if pvp else []) + [(81, F_V), (97, F_W)]
    for cnt, f in tailev:
        a(f"s_waitcnt vmcnt({T - cnt})\nds_write_b32 v{vLF}, v{vOne} offset:{f}")
    ST_("L: all landed")
    if stamp: a("s_branch L_fin")
    else: a("s_endpgm")
    a("L_compute:")
    g = va(); n16 = va(); n4 = va()
    sQB = sa(); sOB = sa(); sEp = sa(); sTag = sa(); vPT = va()
    a(f"""
s_mov_b32 s31, s23
s_mov_b32 s30, {WS_BYTES}
s_mov_b32 s35, s23
s_movk_i32 s34, 0x1000
s_lshl_b32 s{sQB}, {G}, 4
s_add_u32 s{sQB}, s{sQB}, {B}
s_lshl_b32 s{sQB}, s{sQB}, 11
s_xor_b32 s{sT}, {C}, {cqx}
s_lshl_b32 s{sT}, s{sT}, 8
s_add_u32 s{sQB}, s{sQB}, s{sT}
s_add_u32 s{sQB}, s{sQB}, {QF}
s_lshl_b32 s{sOB}, {B}, 3
s_add_u32 s{sOB}, s{sOB}, {G}
s_lshl_b32 s{sOB}, s{sOB}, 5
s_add_u32 s{sOB}, s{sOB}, {C}
s_lshl_b32 s{sOB}, s{sOB}, 9
s_add_u32 s{sOB}, s{sOB}, {OF}
""")
    vPTa = va()
    if pt in (1, 3, 7):
        a(f"""
s_mul_i32 s{sT}, {W}, 6
v_add_u32 v{t3}, s{sT}, v{l}
v_lshrrev_b32 v{t0}, 1, v{t3}
v_lshlrev_b32 v{t0}, 13, v{t0}
v_and_b32 v{t1}, 1, v{t3}
v_lshl_or_b32 v{t0}, v{t1}, 7, v{t0}
v_add_u32 v{t0}, s{sQB}, v{t0}
v_subrev_u32 v{t1}, 8, v{t3}
v_lshrrev_b32 v{t2}, 2, v{t1}
v_lshlrev_b32 v{t2}, 12, v{t2}
v_and_b32 v{t1}, 3, v{t1}
v_lshl_or_b32 v{t2}, v{t1}, 7, v{t2}
v_add_u32 v{t2}, s{sOB}, v{t2}
v_cmp_gt_u32 vcc, 8, v{t3}
v_mov_b32 v{t3}, {OOB}
s_nop 0
v_cndmask_b32 v{t0}, v{t2}, v{t0}, vcc
v_cmp_gt_u32 vcc, 6, v{l}
s_mov_b32 s{sT}, {WSB}
s_waitcnt lgkmcnt(0)
s_load_dword s{sEp}, s[28:29], s{sT}
v_cndmask_b32 v{vPTa}, v{t3}, v{t0}, vcc
""")
        if pt != 7: a(f"buffer_load_dword v{vPT}, v{vPTa}, s[28:31], 0 offen{' nt' if pt == 3 else ''}")
    else:
        a(f"s_mov_b32 s{sT}, {WSB}\ns_waitcnt lgkmcnt(0)\ns_load_dword s{sEp}, s[28:29], s{sT}" if WSB else f"s_waitcnt lgkmcnt(0)\ns_load_dword s{sEp}, s[28:29], 0")
        if pt in (10, 11, 12):
            sD = sa(); sO1 = sa(); sO2 = sa()
            a(f"s_lshl_b32 s{sT}, {W}, 13\ns_add_u32 s{sO1}, s{sQB}, s{sT}\ns_lshl_b32 s{sT}, {W}, 12\ns_add_u32 s{sO2}, s{sOB}, s{sT}")
            stp = 128 if pt == 11 else 64
            ypt = [f"s_load_dword s{sD}, s[28:29], s{sO1} offset:{o}" for o in range(0, 256, stp)] + [f"s_load_dword s{sD}, s[28:29], s{sO2} offset:{o}" for o in range(0, 512, stp)]
            if pt == 12:
                sO3 = sT2
                sO3 = sa()
                a(f"""s_and_b32 s{sO3}, {R}, 3
s_lshl_b32 s{sO3}, s{sO3}, 6
s_lshl_b32 s{sT}, {G}, 3
s_add_u32 s{sO3}, s{sO3}, s{sT}
s_lshr_b32 s{sT}, {R}, 2
s_add_u32 s{sO3}, s{sO3}, s{sT}
s_lshl_b32 s{sO3}, s{sO3}, 2
s_add_u32 s{sO3}, s{sO3}, {W}
s_lshl_b32 s{sO3}, s{sO3}, 9
s_add_u32 s{sO3}, s{sO3}, {OX + SOFF}""")
                ypt += [f"s_load_dword s{sD}, s[28:29], s{sO3} offset:{o}" for o in range(0, 512, 64)]
        if pt in (8, 9):
            sD = sa(); sO1 = sa()
            a(f"s_lshl_b32 s{sT}, {W}, 13\ns_add_u32 s{sO1}, s{sQB}, s{sT}")
            for o in range(0, 256, 64): a(f"s_load_dword s{sD}, s[28:29], s{sO1} offset:{o}")
            a(f"s_lshl_b32 s{sT}, {W}, 12\ns_add_u32 s{sO1}, s{sOB}, s{sT}")
            for o in range(0, 512, 64): a(f"s_load_dword s{sD}, s[28:29], s{sO1} offset:{o}")
            if pt == 9:
                a(f"""s_and_b32 s{sO1}, {R}, 3
s_lshl_b32 s{sO1}, s{sO1}, 6
s_lshl_b32 s{sT}, {G}, 3
s_add_u32 s{sO1}, s{sO1}, s{sT}
s_lshr_b32 s{sT}, {R}, 2
s_add_u32 s{sO1}, s{sO1}, s{sT}
s_lshl_b32 s{sO1}, s{sO1}, 2
s_add_u32 s{sO1}, s{sO1}, {W}
s_lshl_b32 s{sO1}, s{sO1}, 9
s_add_u32 s{sO1}, s{sO1}, {OX + SOFF}""")
                ypt = [f"s_load_dword s{sD}, s[28:29], s{sO1} offset:{o}" for o in range(0, 512, 64)]
        if pt in (2, 4, 6):
            a(f"""
s_lshl_b32 s{sT}, {W}, 12
s_add_u32 s{sT}, s{sT}, s{sOB}
v_lshlrev_b32 v{t0}, 7, v{l}
v_add_u32 v{t0}, s{sT}, v{t0}
v_cmp_gt_u32 vcc, 4, v{l}
v_mov_b32 v{t3}, {OOB}
s_nop 0
v_cndmask_b32 v{vPTa}, v{t3}, v{t0}, vcc
""")
    if warm:
        a("s_mov_b64 exec, 0")
        for p in range(1, nparts):
            a(f"s_cmp_eq_u32 {W}, {p}\ns_cbranch_scc1 HOP_P{p}")
        a("s_branch HOP_P0\nL_warm_done:\ns_mov_b64 exec, -1")
    a("; WARM_START")
    sP = sa(); sCG = sa(); sR4 = sa()
    vXr = va(4); vWQr = va(); vKr = va(4); vVr = va(2); vWOr = va(2)
    vQst = va(); vG = va(); sG = sa(); vQLw = va(); vQLr = va()
    vPw = va(); vPr = va(); vSw = va(); vSr = va()
    vOst = va(); vOG = va(); sOG = sa(); vOLw = va(); vOLr = va()
    vYst = va(); sYst = sa(); vFG = va(); sFG = sa(); vOut = va()
    vFw = va(); vFr = va(); vOne_c = va()
    sCsc = sa(); sP0 = sa(); sP1 = sa(); sP2 = sa(); sU0 = sa(); sU1 = sa(); sM4 = sa(2, 2); sG1 = sa(2, 2); sCnt = sa()
    a(f"""
v_lshrrev_b32 v{g}, 4, v{l}
v_and_b32 v{n16}, 15, v{l}
v_and_b32 v{n4}, 3, v{l}
v_lshlrev_b32 v{t2}, 2, v{l}
v_mov_b32 v{t3}, 0
ds_write_b32 v{t2}, v{t3} offset:{FL}
v_add_u32 v{t2}, {JK}, v{t2}
s_lshl_b32 s{sT}, {W}, 2
s_add_u32 s{sT}, s{sT}, {FL}
v_mov_b32 v{vFw}, s{sT}
v_cmp_eq_u32 vcc, 0, v{l}
v_mov_b32 v{vFr}, {FL}
v_mov_b32 v{vOne_c}, 1
v_cndmask_b32 v{vFw}, v{t2}, v{vFw}, vcc
; p = g*8 + r/4 ; cg = r&3
s_lshr_b32 s{sR4}, {R}, 2
s_lshl_b32 s{sP}, {G}, 3
s_add_u32 s{sP}, s{sP}, s{sR4}
s_and_b32 s{sCG}, {R}, 3
v_lshlrev_b32 v{t2}, 2, v{n4}
v_xor_b32 v{t2}, v{g}, v{t2}
v_lshlrev_b32 v{t2}, 4, v{t2}
v_lshl_add_u32 v{t2}, v{n4}, 8, v{t2}
v_add_u32 v{vXr}, {XL}, v{t2}
v_xor_b32 v{vXr+1}, 64, v{vXr}
v_xor_b32 v{vXr+2}, 0x80, v{vXr}
v_xor_b32 v{vXr+3}, 0xc0, v{vXr}
v_bfe_u32 v{t0}, v{l}, 2, 2
v_lshl_add_u32 v{t2}, v{g}, 3, v{t0}
v_lshlrev_b32 v{t2}, 7, v{t2}
v_lshl_add_u32 v{t2}, v{n4}, 3, v{t2}
v_lshrrev_b32 v{t3}, 1, v{t0}
v_and_b32 v{t1}, 1, v{g}
v_lshl_or_b32 v{t3}, v{t1}, 1, v{t3}
v_xor_b32 v{t3}, {W}, v{t3}
v_lshl_add_u32 v{t2}, v{t3}, 5, v{t2}
v_add_u32 v{vWQr}, {WQ}, v{t2}
s_lshl_b32 s{sT}, {W}, 13
s_add_u32 s{sT}, s{sT}, {KL}
v_xor_b32 v{t2}, v{g}, v{n16}
v_lshlrev_b32 v{t2}, 4, v{t2}
v_lshl_add_u32 v{t2}, v{n16}, 8, v{t2}
v_add_u32 v{vKr}, s{sT}, v{t2}
v_xor_b32 v{vKr+1}, 64, v{vKr}
v_xor_b32 v{vKr+2}, 0x80, v{vKr}
v_xor_b32 v{vKr+3}, 0xc0, v{vKr}
v_lshl_add_u32 v{t2}, v{g}, 2, v{t0}
v_lshlrev_b32 v{t2}, 8, v{t2}
v_lshl_add_u32 v{t2}, v{n4}, 3, v{t2}
v_lshl_or_b32 v{t3}, v{t1}, 2, v{t0}
s_lshl_b32 s{sT}, {W}, 1
v_xor_b32 v{t3}, s{sT}, v{t3}
v_lshl_add_u32 v{t2}, v{t3}, 5, v{t2}
v_add_u32 v{vVr}, {VL}, v{t2}
v_xor_b32 v{vVr+1}, 32, v{vVr}
v_lshl_add_u32 v{t2}, v{g}, 3, v{t0}
v_lshlrev_b32 v{t2}, 8, v{t2}
v_lshl_add_u32 v{t2}, v{n4}, 3, v{t2}
v_lshl_add_u32 v{t2}, v{t3}, 5, v{t2}
v_add_u32 v{vWOr}, {WO}, v{t2}
v_xor_b32 v{vWOr+1}, 32, v{vWOr}
v_cmp_gt_u32 vcc, 4, v{n16}
v_mov_b32 v{t3}, {OOB}
s_lshl_b32 s{sT}, {W}, 6
v_lshlrev_b32 v{t2}, 4, v{g}
v_add_u32 v{t0}, s{sT}, v{t2}
v_lshl_add_u32 v{t0}, v{n16}, 13, v{t0}
v_cndmask_b32 v{vQst}, v{t3}, v{t0}, vcc
s_lshl_b32 s{sT}, {W}, 7
v_add_u32 v{t2}, s{sT}, v{t2}
v_lshl_add_u32 v{t0}, v{n16}, 12, v{t2}
v_cndmask_b32 v{vOst}, v{t3}, v{t0}, vcc
v_lshl_add_u32 v{t0}, v{n16}, 9, v{t2}
v_cndmask_b32 v{vYst}, v{t3}, v{t0}, vcc
YCOAL_ADDR
v_lshrrev_b32 v{t0}, 5, v{l}
v_and_b32 v{t1}, 31, v{l}
v_lshlrev_b32 v{t2}, 4, v{t1}
v_lshl_add_u32 v{vG}, v{t0}, 12, v{t2}
s_lshl_b32 s{sG}, {G}, 2
s_add_u32 s{sG}, s{sG}, {B}
s_lshl_b32 s{sG}, s{sG}, 4
s_add_u32 s{sG}, s{sG}, {W}
s_lshl_b32 s{sG}, s{sG}, 9
s_add_u32 s{sG}, s{sG}, {QF}
s_mul_i32 s{sT}, {W}, 320
v_lshlrev_b32 v{t2}, 3, v{t1}
v_lshl_add_u32 v{t2}, v{t0}, 2, v{t2}
v_add_u32 v{vQLw}, s{sT}, v{t2}
v_mul_u32_u24 v{t2}, 320, v{n4}
v_lshl_add_u32 v{vQLr}, v{g}, 4, v{t2}
v_lshlrev_b32 v{t2}, 6, v{n4}
v_lshl_add_u32 v{vPr}, v{g}, 4, v{t2}
s_lshl_b32 s{sT}, {W}, 8
v_add_u32 v{vPw}, s{sT}, v{vPr}
v_lshlrev_b32 v{vSr}, 4, v{n4}
s_lshl_b32 s{sT}, {W}, 2
v_add_u32 v{vSw}, s{sT}, v{vSr}
v_lshlrev_b32 v{t2}, 9, v{g}
v_lshl_add_u32 v{vOG}, v{n16}, 4, v{t2}
s_lshl_b32 s{sOG}, {W}, 3
s_add_u32 s{sOG}, s{sOG}, {G}
s_lshl_b32 s{sOG}, s{sOG}, 2
s_add_u32 s{sOG}, s{sOG}, {B}
s_lshl_b32 s{sOG}, s{sOG}, 4
s_and_b32 s{sT}, s{sR4}, 1
s_add_u32 s{sOG}, s{sOG}, s{sT}
s_lshl_b32 s{sOG}, s{sOG}, 8
s_add_u32 s{sOG}, s{sOG}, {OF}
s_mul_i32 s{sT}, {W}, 192
v_lshlrev_b32 v{t2}, 3, v{n16}
v_lshl_add_u32 v{t2}, v{g}, 1, v{t2}
v_add_u32 v{vOLw}, s{sT}, v{t2}
v_mul_u32_u24 v{t2}, 192, v{n4}
v_lshl_add_u32 v{vOLr}, v{g}, 4, v{t2}
s_lshl_b32 s{sYst}, s{sCG}, 6
s_add_u32 s{sYst}, s{sYst}, s{sP}
s_lshl_b32 s{sYst}, s{sYst}, 11
s_add_u32 s{sYst}, s{sYst}, {OX + SOFF}
v_lshrrev_b32 v{t0}, 1, v{l}
v_and_b32 v{t1}, 1, v{l}
v_lshlrev_b32 v{t2}, 4, v{t1}
v_lshl_add_u32 v{vFG}, v{t0}, 11, v{t2}
s_lshl_b32 s{sFG}, s{sCG}, 12
s_add_u32 s{sFG}, s{sFG}, s{sP}
s_lshl_b32 s{sFG}, s{sFG}, 5
s_add_u32 s{sFG}, s{sFG}, {OX + SOFF}
YCOAL_OUT
v_cmp_gt_u32 vcc, 2, v{n16}
s_mov_b32 s{sCsc}, {f32(CSC)}
s_mov_b32 s{sP0}, 0x07060503
v_cndmask_b32 v{vOut}, v{t3}, v{t2}, vcc
s_mov_b32 s{sP1}, 0x07060502
s_mov_b32 s{sP2}, 0x07060501
s_mov_b32 s{sU0}, 0x04000c0c
s_mov_b32 s{sU1}, 0x0706000c
s_mov_b32 s{sM4}, 0x000f000f
s_mov_b32 s{sM4+1}, 0x000f000f
s_waitcnt lgkmcnt(0)
s_mul_i32 s{sTag}, s{sEp}, 1664525
s_add_u32 s{sTag}, s{sTag}, 1013904223
""")
    ya = f"""; coalesced y store: lanes < 32: w*512 + l*16
s_lshl_b32 s{sT}, {W}, 9
v_lshlrev_b32 v{t0}, 4, v{l}
v_add_u32 v{t0}, s{sT}, v{t0}
v_cmp_gt_u32 s[{sM4}:{sM4+1}], 32, v{l}
v_cmp_eq_u32 s[{sG1}:{sG1+1}], 1, v{g}
s_nop 0
v_cndmask_b32 v{vYst}, v{t3}, v{t0}, s[{sM4}:{sM4+1}]""" if ycoal else ""
    yo = (f"""; out voffset: g*1024 + (cg*128 + 2p' + (l&1))*2 for lanes n16<2 ; p' = p (0..63)
s_lshl_b32 s{sT}, s{sCG}, 6
s_add_u32 s{sT}, s{sT}, s{sP}
s_lshl_b32 s{sT}, s{sT}, 2
v_lshlrev_b32 v{t2}, 1, v{t1}
v_lshl_add_u32 v{t2}, v{g}, 10, v{t2}
v_add_u32 v{t2}, s{sT}, v{t2}""" if ycoal else f"""s_lshr_b32 s{sT}, s{sP}, 4
s_lshl_b32 s{sT}, s{sT}, 2
s_add_u32 s{sT}, s{sT}, s{sCG}
s_lshl_b32 s{sT}, s{sT}, 4
s_and_b32 s{sT2}, s{sP}, 15
s_add_u32 s{sT}, s{sT}, s{sT2}
s_lshl_b32 s{sT}, s{sT}, 4
v_lshlrev_b32 v{t2}, 3, v{t1}
v_lshl_add_u32 v{t2}, v{g}, 1, v{t2}
v_add_u32 v{t2}, s{sT}, v{t2}""")
    newL = []
    for ln in a.L:
        if "YCOAL_ADDR" in ln: newL += ["    " + x for x in ya.split("\n") if x]
        elif "YCOAL_OUT" in ln: newL += ["    " + x for x in yo.split("\n")]
        else: newL.append(ln)
    a.L = newL
    A32 = va(32, 4); B16 = va(16, 4); C32 = va(32, 4); E8 = va(8, 4); F8 = va(8, 4)
    ones = va(4, 4); fl = va(4, 4); fl1 = va(); QS4 = va(4, 4); OS8 = va(8, 4); sQS = sa(); sOS = sa(); sWcN = sa.n
    a(f"""
v_mov_b32 v{ones}, 0x3f803f80
v_mov_b32 v{ones+1}, 0x3f803f80
v_mov_b32 v{ones+2}, 0x3f803f80
v_mov_b32 v{ones+3}, 0x3f803f80
v_mov_b32 v{QS4+3}, s{sTag}
v_mov_b32 v{OS8+3}, s{sTag}
v_mov_b32 v{OS8+7}, s{sTag}
v_mov_b32 v{E8+3}, s{sTag}
v_mov_b32 v{E8+7}, s{sTag}
s_add_u32 s{sQS}, s{sQB}, {0 if sameS in (1, 2) else SOFF}
s_add_u32 s{sOS}, s{sOB}, {0 if sameS in (1, 3) else SOFF}
s_mov_b32 s{sCnt}, {spin}
s_movk_i32 s{sWcN}, {wthr}
""")
    if pt == 7: a(f"buffer_load_dword v{vPT}, v{vPTa}, s[28:31], 0 offen")
    lab = [0]
    def setflag(off): a(f"ds_write_b32 v{vFw}, v{vOne_c} offset:{off}")
    colder = []
    sWc = sa()
    stage = {"flush": []}
    def waitflags(group=None, single=None):
        lab[0] += 1; L = f"L_wf{lab[0]}"
        a(f"{L}:")
        if group is not None: a(f"ds_read_b128 {rng(fl,4)}, v{vFr} offset:{group}")
        if single is not None: a(f"ds_read_b32 v{fl1}, v{vFr} offset:{single}")
        a("s_waitcnt lgkmcnt(0)")
        if group is not None:
            a(f"v_min3_u32 v{fl}, v{fl}, v{fl+1}, v{fl+2}")
            if single is not None: a(f"v_min3_u32 v{fl}, v{fl}, v{fl+3}, v{fl1}")
            else: a(f"v_min_u32 v{fl}, v{fl}, v{fl+3}")
            r = fl
        else: r = fl1
        a(f"v_cmp_eq_u32 vcc, 0, v{r}\ns_cbranch_vccz {L}d\ns_sub_u32 s{sWc}, s{sWc}, 1\ns_cbranch_scc0 {L}\ns_branch {L}f\n{L}d:")
        colder.append([f"{L}f:"] + list(stage["flush"]) + [f"s_movk_i32 s{sWc}, {wthr}", f"s_branch {L}"])
    QFL = [f"buffer_store_dwordx4 {rng(QS4,4)}, v{vQst}, s[28:31], s{sQS} offen sc1"]
    OFL = [f"buffer_store_dwordx4 {rng(OS8,4)}, v{vOst}, s[28:31], s{sOS} offen sc1", f"buffer_store_dwordx4 {rng(OS8+4,4)}, v{vOst}, s[28:31], s{sOS} offen offset:64 sc1"]
    assert sWc == sWcN
    xb = A32; wa = A32 + 16; acc = C32
    a("s_waitcnt lgkmcnt(0)\ns_barrier")
    for s in range(4):
        a(f"ds_read_b128 {rng(xb+4*s,4)}, v{vXr+s}")
        a(f"ds_read_b64_tr_b16 {rng(wa+4*s,2)}, v{vWQr} offset:{s*4096}")
        a(f"ds_read_b64_tr_b16 {rng(wa+4*s+2,2)}, v{vWQr} offset:{s*4096 + 512}")
    for s in range(4):
        a(f"s_waitcnt lgkmcnt({3*(3-s)})")
        c = "0" if s == 0 else rng(acc,4)
        a(f"v_mfma_f32_16x16x32_bf16 {rng(acc,4)}, {rng(wa+4*s,4)}, {rng(xb+4*s,4)}, {c}")
    a(f"""
s_nop 7
v_perm_b32 v{QS4}, v{acc}, v{acc+3}, s{sP0}
v_perm_b32 v{QS4+1}, v{acc+1}, v{acc+3}, s{sP1}
v_perm_b32 v{QS4+2}, v{acc+2}, v{acc+3}, s{sP2}
buffer_store_dwordx4 {rng(QS4,4)}, v{vQst}, s[28:31], s{sQB} offen
""")
    setflag(F_QI)
    stage["flush"] = QFL
    if pt in (9, 10, 11, 12):
        for x_ in ypt: a(x_)
    if pt in (2, 6): a(f"buffer_load_dword v{vPT}, v{vPTa}, s[28:31], 0 offen" + (" nt" if pt == 2 else ""))
    ST_("q published")
    gq = F8
    waitflags(single=F_GO)
    ST_("GO")
    a(f"buffer_load_dwordx4 {rng(gq,4)}, v{vG}, s[28:31], s{sG} offen sc1")
    a(f"buffer_load_dwordx4 {rng(gq+4,4)}, v{vG}, s[28:31], s{sG} offen offset:2048 sc1")
    if pt == 4: a(f"buffer_load_dword v{vPT}, v{vPTa}, s[28:31], 0 offen nt")
    if pt == 13:
        dum = va(2, 2)
        a(f"buffer_load_dword v{dum}, v{vOG}, s[28:31], s{sOG} offen sc1")
        a(f"buffer_load_dword v{dum+1}, v{vOG}, s[28:31], s{sOG} offen offset:2048 sc1")
    if pt == 14:
        dum = va(2, 2)
        a(f"buffer_load_dword v{dum}, v{vOG}, s[28:31], s{sOG} offen sc1")
        a(f"buffer_load_dword v{dum+1}, v{vOG}, s[28:31], s{sOG} offen offset:2048 sc1")
        dum2 = va(2, 2)
        a(f"s_add_u32 s{sT2}, s{sFG}, 65536")
        a(f"buffer_load_dword v{dum2}, v{vFG}, s[28:31], s{sFG} offen sc1")
        a(f"buffer_load_dword v{dum2+1}, v{vFG}, s[28:31], s{sT2} offen sc1")
    setflag(F_GI)
    ka = A32
    if lgo < 49: waitflags(single=F_K)
    for t in range(2):
        for s_ in range(4):
            a(f"ds_read_b128 {rng(ka+16*t+4*s_,4)}, v{vKr+s_} offset:{t*4096}")
    sa_tmp = sa(2, 2)
    cold = []
    def poll(name, regs, vaddr, soff, first_wait, offs, flush):
        a(f"s_waitcnt vmcnt({first_wait})\nL_{name}chk:")
        for i, r in enumerate(regs):
            if i == 0: a(f"v_cmp_ne_u32 vcc, s{sTag}, v{r+3}")
            else: a(f"v_cmp_ne_u32 s[{sa_tmp}:{sa_tmp+1}], s{sTag}, v{r+3}\ns_or_b64 vcc, vcc, s[{sa_tmp}:{sa_tmp+1}]")
        a(f"s_cbranch_vccnz L_{name}retry\nL_{name}ok:")
        c = [f"L_{name}retry:", f"s_sub_u32 s{sCnt}, s{sCnt}, 1", f"s_cbranch_scc1 L_{name}ok",
             f"s_cmp_gt_u32 s{sCnt}, {spin - nf}", f"s_cbranch_scc1 L_{name}re",
             f"s_cmp_lg_u32 s{sCnt}, {spin - nf}", f"s_cbranch_scc1 L_{name}tg"] + flush + [f"L_{name}tg:"] + ([] if (sameS == 1 or (sameS == 2 and name == "q") or (sameS == 3 and name == "o")) else [f"s_xor_b32 s{soff}, s{soff}, {SOFF}"]) + [f"L_{name}re:"]
        for r, o in zip(regs, offs):
            c.append(f"buffer_load_dwordx4 {rng(r,4)}, v{vaddr}, s[28:31], s{soff} offen offset:{o} sc1")
        c += ["s_waitcnt vmcnt(0)", f"s_branch L_{name}chk"]
        cold.append((name, c))
    poll("q", [gq, gq+4], vG, sG, {4: 1, 13: 2, 14: 4}.get(pt, 0), [0, 2048], QFL)
    if holdwo: setflag(F_GOK)
    ST_("q gathered")
    u = E8; qb = B16
    a(f"""
v_perm_b32 v{u}, v{gq}, v{gq+1}, s{sU0}
v_perm_b32 v{u+1}, v{gq+4}, v{gq+5}, s{sU0}
v_add_f32 v{u+4}, v{gq}, v{gq+4}
v_add_f32 v{u+6}, v{gq+2}, v{gq+6}
v_perm_b32 v{u}, v{u}, v{gq+2}, s{sU1}
v_perm_b32 v{u+1}, v{u+1}, v{gq+6}, s{sU1}
v_add_f32 v{u+5}, v{gq+1}, v{gq+5}
v_add_f32 v{u+7}, v{u}, v{u+1}
v_permlane32_swap_b32 v{u+4}, v{u+6}
s_nop 0
v_permlane32_swap_b32 v{u+5}, v{u+7}
v_add_f32 v{u+4}, v{u+4}, v{u+6}
v_add_f32 v{u+5}, v{u+5}, v{u+7}
v_cvt_pk_bf16_f32 v{u}, v{u+4}, v{u+5}
ds_write_b32 v{vQLw}, v{u} offset:{QL}
""")
    setflag(F_Q)
    waitflags(group=F_Q)
    for s in range(4):
        a(f"ds_read_b128 {rng(qb+4*s,4)}, v{vQLr} offset:{QL + s*64}")
    sc = C32
    for s in range(4):
        a(f"s_waitcnt lgkmcnt({3-s})")
        for t in range(2):
            c = "0" if s == 0 else rng(sc+4*t,4)
            a(f"v_mfma_f32_16x16x32_bf16 {rng(sc+4*t,4)}, {rng(ka+16*t+4*s,4)}, {rng(qb+4*s,4)}, {c}")
    m = va(2, 2); mt = va(); pk = E8
    sC2 = sa(2, 2)
    a(f"""
s_mov_b32 s{sC2}, s{sCsc}
s_mov_b32 s{sC2+1}, s{sCsc}
s_nop 4
v_max3_f32 v{m}, v{sc}, v{sc+1}, v{sc+2}
v_max3_f32 v{mt}, v{sc+3}, v{sc+4}, v{sc+5}
v_max3_f32 v{m}, v{m}, v{sc+6}, v{sc+7}
v_max_f32 v{m}, v{m}, v{mt}
v_mov_b32 v{mt}, v{m}
s_nop 1
v_permlane16_swap_b32 v{m}, v{mt}
v_max_f32 v{m}, v{m}, v{mt}
v_mov_b32 v{mt}, v{m}
s_nop 1
v_permlane32_swap_b32 v{m}, v{mt}
v_max_f32 v{m}, v{m}, v{mt}
v_mul_f32 v{m}, s{sCsc}, v{m}
""")
    for i in range(0, 8, 2):
        a(f"v_pk_fma_f32 v[{sc+i}:{sc+i+1}], v[{sc+i}:{sc+i+1}], s[{sC2}:{sC2+1}], v[{m}:{m+1}] op_sel_hi:[1,1,0] neg_lo:[0,0,1] neg_hi:[0,0,1]")
    a(f"s_mov_b64 exec, s[{sM4}:{sM4+1}]\nds_write_b32 v{vSw}, v{m} offset:{SL}\ns_mov_b64 exec, -1")
    for i in range(8):
        a(f"v_exp_f32 v{sc+i}, v{sc+i}")
        if i == 2: a(f"v_cvt_pk_bf16_f32 v{pk}, v{sc}, v{sc+1}")
        if i == 4: a(f"v_cvt_pk_bf16_f32 v{pk+1}, v{sc+2}, v{sc+3}")
        if i == 6: a(f"v_cvt_pk_bf16_f32 v{pk+2}, v{sc+4}, v{sc+5}")
    a(f"""
s_mov_b64 exec, s[{sM4}:{sM4+1}]
v_cvt_pk_bf16_f32 v{pk+3}, v{sc+6}, v{sc+7}
ds_write_b128 v{vPw}, {rng(pk,4)} offset:{PL}
s_mov_b64 exec, -1
""")
    setflag(F_P)
    a(f"s_mov_b32 s{sCnt}, {spin}")
    waitflags(group=F_P)
    ST_("P written")
    pb = B16; sv = F8; vaop = A32; D = C32
    lk = va(16, 4)
    M = va(); ff = va(4, 2); L = va(); Rr = va(); lse = va()
    a(f"ds_read_b128 {rng(sv,4)}, v{vSr} offset:{SL}")
    for ks in range(4):
        a(f"ds_read_b128 {rng(pb+4*ks,4)}, v{vPr} offset:{PL + ks*256}")
    a(f"ds_read_b32 v{fl1}, v{vFr} offset:{F_V}")
    a(f"""
s_waitcnt lgkmcnt(5)
v_max3_f32 v{M}, v{sv}, v{sv+1}, v{sv+2}
v_max_f32 v{M}, v{M}, v{sv+3}
v_sub_f32 v{ff}, v{sv}, v{M}
v_sub_f32 v{ff+1}, v{sv+1}, v{M}
v_sub_f32 v{ff+2}, v{sv+2}, v{M}
v_sub_f32 v{ff+3}, v{sv+3}, v{M}
""")
    for ks in range(4):
        a(f"s_waitcnt lgkmcnt({4-ks})")
        a(f"v_mfma_f32_16x16x32_bf16 {rng(lk+4*ks,4)}, {rng(ones,4)}, {rng(pb+4*ks,4)}, 0")
        a(f"v_exp_f32 v{ff+ks}, v{ff+ks}")
    def vread(ks):
        for tp in range(2):
            for e in range(2):
                a(f"ds_read_b64_tr_b16 {rng(vaop+8*ks+4*tp+2*e,2)}, v{vVr+tp} offset:{ks*8192 + e*4096}")
    def pv(ks):
        for tp in range(2):
            a(f"v_mfma_f32_16x16x32_bf16 {rng(D+8*ks+4*tp,4)}, {rng(vaop+8*ks+4*tp,4)}, {rng(pb+4*ks,4)}, 0")
    stats2 = f"""v_mul_f32 v{L}, v{ff}, v{lk}
v_fmac_f32 v{L}, v{ff+1}, v{lk+4}
v_fmac_f32 v{L}, v{ff+2}, v{lk+8}
v_fmac_f32 v{L}, v{ff+3}, v{lk+12}
v_rcp_f32 v{Rr}, v{L}
v_log_f32 v{lse}, v{L}
s_nop 0
v_mul_f32 v{ff}, v{ff}, v{Rr}
v_mul_f32 v{ff+1}, v{ff+1}, v{Rr}
v_mul_f32 v{ff+2}, v{ff+2}, v{Rr}
v_mul_f32 v{ff+3}, v{ff+3}, v{Rr}
v_add_f32 v{OS8+2}, v{lse}, v{M}
v_add_f32 v{OS8+6}, v{lse}, v{M}"""
    o = F8
    def scale(ks):
        base = ff + (ks & ~1); sel = ks & 1; fr = f"v[{base}:{base+1}]"
        for tp in range(2):
            for h in range(2):
                dst = rng(o+4*tp+2*h, 2); src = rng(D+8*ks+4*tp+2*h, 2)
                if ks == 0: a(f"v_pk_mul_f32 {dst}, {src}, {fr} op_sel:[0,{sel}] op_sel_hi:[1,{sel}]")
                else: a(f"v_pk_fma_f32 {dst}, {src}, {fr}, {dst} op_sel:[0,{sel},0] op_sel_hi:[1,{sel},1]")
    a(f"s_waitcnt lgkmcnt(0)\nv_cmp_ne_u32 vcc, 0, v{fl1}\ns_cbranch_vccnz L_vfast\ns_nop 3")
    if pvp:
        assert nmid == 24
        F_V1 = F_GOK
        waitflags(single=F_V1)
        vread(0); vread(1); vread(2)
        a(stats2)
        a("s_waitcnt lgkmcnt(8)"); pv(0)
        a("s_waitcnt lgkmcnt(4)"); pv(1)
        a("s_waitcnt lgkmcnt(0)"); pv(2)
        a("s_nop 1")
        scale(0); scale(1); scale(2)
        waitflags(single=F_V)
        ST_("V landed")
        vread(3)
        a("s_waitcnt lgkmcnt(0)"); pv(3)
        a("s_nop 7")
        scale(3)
        a("s_branch L_vdone")
    else:
        a(stats2)
        waitflags(single=F_V)
        ST_("V landed")
        vread(0); vread(1); vread(2)
        a("s_branch L_vjoin")
    a("L_vfast:")
    vread(0); vread(1); vread(2)
    a(stats2)
    a("L_vjoin:")
    a("s_waitcnt lgkmcnt(8)"); pv(0); vread(3)
    a("s_waitcnt lgkmcnt(8)"); pv(1)
    a("s_waitcnt lgkmcnt(4)"); pv(2)
    a("s_waitcnt lgkmcnt(0)"); pv(3)
    for ks in range(4): scale(ks)
    a("L_vdone:")
    og = OS8
    a(f"""
v_cvt_pk_bf16_f32 v{og}, v{o}, v{o+1}
v_cvt_pk_bf16_f32 v{og+1}, v{o+2}, v{o+3}
v_cvt_pk_bf16_f32 v{og+4}, v{o+4}, v{o+5}
v_cvt_pk_bf16_f32 v{og+5}, v{o+6}, v{o+7}
buffer_store_dwordx4 {rng(og,4)}, v{vOst}, s[28:31], s{sOB} offen
buffer_store_dwordx4 {rng(og+4,4)}, v{vOst}, s[28:31], s{sOB} offen offset:64
""")
    setflag(F_OI)
    stage["flush"] = QFL + OFL
    ST_("o published")
    gg = B16; wb = A32
    if not nooi: waitflags(group=F_OI)
    if nooi:
        waitflags(single=F_W)
        for s_ in range(2):
            for tp in range(2):
                for hh in range(2):
                    a(f"ds_read_b64_tr_b16 {rng(wb+8*s_+4*tp+2*hh,2)}, v{vWOr+tp} offset:{s_*8192 + hh*1024}")
    a(f"""
buffer_load_dwordx4 {rng(gg,4)}, v{vOG}, s[28:31], s{sOG} offen sc1
buffer_load_dwordx4 {rng(gg+4,4)}, v{vOG}, s[28:31], s{sOG} offen offset:2048 sc1
""")
    if not nooi:
        waitflags(single=F_W)
        for s in range(2):
            for tp in range(2):
                for hh in range(2):
                    a(f"ds_read_b64_tr_b16 {rng(wb+8*s+4*tp+2*hh,2)}, v{vWOr+tp} offset:{s*8192 + hh*1024}")
    poll("o", [gg, gg+4], vOG, sOG, 0, [0, 2048], QFL + OFL)
    ST_("o gathered")
    e0 = va(); e1 = va(); u = A32 + 16; S = va(); oo = A32 + 24
    a(f"""
v_max_f32 v{M}, v{gg+2}, v{gg+6}
v_mov_b32 v{mt}, v{M}
v_lshlrev_b32 v{u}, 16, v{gg}
v_and_b32 v{u+1}, 0xffff0000, v{gg}
v_permlane16_swap_b32 v{M}, v{mt}
v_lshlrev_b32 v{u+2}, 16, v{gg+1}
v_max_f32 v{M}, v{M}, v{mt}
v_mov_b32 v{mt}, v{M}
v_and_b32 v{u+3}, 0xffff0000, v{gg+1}
v_lshlrev_b32 v{u+4}, 16, v{gg+4}
v_permlane32_swap_b32 v{M}, v{mt}
v_and_b32 v{u+5}, 0xffff0000, v{gg+4}
v_max_f32 v{M}, v{M}, v{mt}
v_lshlrev_b32 v{u+6}, 16, v{gg+5}
v_sub_f32 v{e0}, v{gg+2}, v{M}
v_sub_f32 v{e1}, v{gg+6}, v{M}
v_exp_f32 v{e0}, v{e0}
v_exp_f32 v{e1}, v{e1}
v_and_b32 v{u+7}, 0xffff0000, v{gg+5}
v_add_f32 v{S}, v{e0}, v{e1}
v_mul_f32 v{oo}, v{e0}, v{u}
v_mul_f32 v{oo+1}, v{e0}, v{u+1}
v_mov_b32 v{mt}, v{S}
v_mul_f32 v{oo+2}, v{e0}, v{u+2}
v_mul_f32 v{oo+3}, v{e0}, v{u+3}
v_permlane16_swap_b32 v{S}, v{mt}
v_fmac_f32 v{oo}, v{e1}, v{u+4}
v_fmac_f32 v{oo+1}, v{e1}, v{u+5}
v_add_f32 v{S}, v{S}, v{mt}
v_fmac_f32 v{oo+2}, v{e1}, v{u+6}
v_fmac_f32 v{oo+3}, v{e1}, v{u+7}
v_mov_b32 v{mt}, v{S}
v_permlane16_swap_b32 v{oo}, v{oo+1}
s_nop 0
v_permlane16_swap_b32 v{oo+2}, v{oo+3}
v_permlane32_swap_b32 v{S}, v{mt}
v_add_f32 v{oo}, v{oo}, v{oo+1}
v_add_f32 v{oo+2}, v{oo+2}, v{oo+3}
v_add_f32 v{S}, v{S}, v{mt}
s_nop 0
v_permlane32_swap_b32 v{oo}, v{oo+2}
v_rcp_f32 v{S}, v{S}
v_add_f32 v{oo}, v{oo}, v{oo+2}
v_mul_f32 v{oo}, v{oo}, v{S}
v_cvt_pk_bf16_f32 v{oo}, v{oo}, v{oo}
ds_write_b16 v{vOLw}, v{oo} offset:{OL}
""")
    setflag(F_O)
    a(f"s_add_u32 s{sT2}, s{sFG}, 65536\ns_mov_b32 s{sCnt}, {spin}")
    waitflags(group=F_O)
    ob = B16 + 8; y = C32; yg = E8
    a(f"""
ds_read_b128 {rng(ob,4)}, v{vOLr} offset:{OL}
ds_read_b128 {rng(ob+4,4)}, v{vOLr} offset:{OL+64}
""")
    for s in range(2):
        a(f"s_waitcnt lgkmcnt({1-s})")
        for tp in range(2):
            c = "0" if s == 0 else rng(y+4*tp,4)
            if ycoal: a(f"v_mfma_f32_16x16x32_bf16 {rng(y+4*tp,4)}, {rng(ob+4*s,4)}, {rng(wb+8*s+4*tp,4)}, {c}")
            else: a(f"v_mfma_f32_16x16x32_bf16 {rng(y+4*tp,4)}, {rng(wb+8*s+4*tp,4)}, {rng(ob+4*s,4)}, {c}")
    if ycoal:
        a(f"v_mov_b32 v{E8+3}, s{sTag}\ns_nop 6")
        for r in range(4): a(f"v_cndmask_b32 v{y+r}, v{y+r}, v{y+4+r}, s[{sG1}:{sG1+1}]")
        a(f"""v_perm_b32 v{yg}, v{y}, v{y+3}, s{sP0}
v_perm_b32 v{yg+1}, v{y+1}, v{y+3}, s{sP1}
v_perm_b32 v{yg+2}, v{y+2}, v{y+3}, s{sP2}
buffer_store_dwordx4 {rng(yg,4)}, v{vYst}, s[28:31], s{sYst} offen sc1""")
    else:
        a(f"v_mov_b32 v{E8+3}, s{sTag}\nv_mov_b32 v{E8+7}, s{sTag}\ns_nop 4")
        for tp in range(2):
            a(f"""v_perm_b32 v{yg+4*tp}, v{y+4*tp}, v{y+4*tp+3}, s{sP0}
v_perm_b32 v{yg+4*tp+1}, v{y+4*tp+1}, v{y+4*tp+3}, s{sP1}
v_perm_b32 v{yg+4*tp+2}, v{y+4*tp+2}, v{y+4*tp+3}, s{sP2}
buffer_store_dwordx4 {rng(yg+4*tp,4)}, v{vYst}, s[28:31], s{sYst} offen offset:{tp*64} sc1""")
    setflag(F_YI)
    ST_("y published")
    waitflags(group=F_YI)
    if not noflush:
        for x_ in QFL + OFL: a(x_)
    if dirty:
        a(f"s_lshl_b32 s{sT}, s2, 2\ns_add_u32 s{sT}, s{sT}, {W}\ns_mul_i32 s{sT}, s{sT}, {dirty*1024}\ns_add_u32 s{sT}, s{sT}, 0x800000\nv_lshlrev_b32 v{t0}, 4, v{l}")
        for i in range(dirty):
            a(f"buffer_store_dwordx4 {rng(C32,4)}, v{t0}, s[28:31], s{sT} offen\ns_add_u32 s{sT}, s{sT}, 1024")
    z = C32 + 24
    fg = C32 + 16
    FM = {0: ' sc1', 1: ' sc1 nt', 2: ' sc0 sc1', 3: ' sc0 sc1 nt'}[fmode]
    a(f"""s_cmp_lg_u32 {W}, 0
s_cbranch_scc1 L_fin
L_fpoll:
buffer_load_dwordx4 {rng(fg,4)}, v{vFG}, s[28:31], s{sFG} offen{FM}
buffer_load_dwordx4 {rng(fg+4,4)}, v{vFG}, s[28:31], s{sT2} offen{FM}
s_waitcnt vmcnt(0)
v_cmp_ne_u32 vcc, s{sTag}, v{fg+3}
v_cmp_ne_u32 s[{sa_tmp}:{sa_tmp+1}], s{sTag}, v{fg+7}
s_or_b64 vcc, vcc, s[{sa_tmp}:{sa_tmp+1}]
s_cbranch_vccz L_fok
{('s_sleep ' + str(fsleep)) if fsleep else 's_nop 0'}
s_sub_u32 s{sCnt}, s{sCnt}, 1
s_cbranch_scc0 L_fpoll
L_fok:""")
    ST_("final gathered")
    a(f"""
v_perm_b32 v{z+3}, v{fg}, v{fg+1}, s{sU0}
v_perm_b32 v{z+7}, v{fg+4}, v{fg+5}, s{sU0}
v_add_f32 v{z}, v{fg}, v{fg+4}
v_perm_b32 v{z+3}, v{z+3}, v{fg+2}, s{sU1}
v_perm_b32 v{z+7}, v{z+7}, v{fg+6}, s{sU1}
v_add_f32 v{z+1}, v{fg+1}, v{fg+5}
v_add_f32 v{z+2}, v{fg+2}, v{fg+6}
v_add_f32 v{z+3}, v{z+3}, v{z+7}
""")
    for ctl in ("quad_perm:[2,3,0,1]", "row_ror:4", "row_ror:8"):
        for r in range(4):
            a(f"v_add_f32_dpp v{z+r}, v{z+r}, v{z+r} {ctl} row_mask:0xf bank_mask:0xf")
    a(f"""
s_nop 0
v_permlane16_swap_b32 v{z}, v{z+1}
v_permlane16_swap_b32 v{z+2}, v{z+3}
s_nop 0
v_add_f32 v{z}, v{z}, v{z+1}
v_add_f32 v{z+2}, v{z+2}, v{z+3}
s_nop 1
v_permlane32_swap_b32 v{z}, v{z+2}
s_nop 0
v_add_f32 v{z}, v{z}, v{z+2}
v_cvt_pk_bf16_f32 v{z}, v{z}, v{z}
buffer_store_short v{z}, v{vOut}, s[32:35], 0 offen
s_cmp_lg_u32 s2, 0
s_cbranch_scc1 L_fin
v_mov_b32 v{t0}, s{sTag}
v_mov_b32 v{t1}, {WSB}
s_mov_b64 exec, 1
buffer_store_dword v{t0}, v{t1}, s[28:31], 0 offen sc1
s_mov_b64 exec, -1
L_fin:
""")
    a("s_branch L_tail" if stamp else "s_endpgm")
    for name, c in cold:
        for x_ in c: a(x_)
    a("; WARM_END")
    for c in colder:
        for x_ in c: a(x_)
    a("L_tail:")
    if stamp:
        a(f"s_mov_b32 s31, 0x20000\ns_mov_b32 s30, {WS_BYTES}")
    if amp >= 0:
        ST_("end")
        e = nst[0] - 1
        a(f"""
s_waitcnt lgkmcnt(0)
s_cmp_lg_u32 {W}, 0
s_cbranch_scc1 L_end
""")
        if ampglob:
            a(f"""
s_lshl_b32 s37, s2, 3
s_add_u32 s37, s37, {ST}
v_mov_b32 v{C32}, s{SB}
v_mov_b32 v{C32+1}, s{sTag}
v_mov_b32 v{t1}, 0
s_mov_b64 exec, 1
buffer_store_dwordx2 v[{C32}:{C32+1}], v{t1}, s[28:31], s37 offen sc1
s_mov_b64 exec, -1
""")
        a(f"""
s_cmp_lg_u32 s2, 0
s_cbranch_scc1 L_end
""")
        if ampglob:
            a(f"""
s_mov_b32 s37, {ST}
v_lshlrev_b32 v{t1}, 5, v{l}
L_ag:
buffer_load_dwordx4 v[{C32}:{C32+3}], v{t1}, s[28:31], s37 offen sc1
buffer_load_dwordx4 v[{C32+4}:{C32+7}], v{t1}, s[28:31], s37 offen offset:16 sc1
s_waitcnt vmcnt(0)
v_cmp_ne_u32 vcc, s{sTag}, v{C32+1}
v_cmp_ne_u32 s[40:41], s{sTag}, v{C32+3}
s_or_b64 vcc, vcc, s[40:41]
v_cmp_ne_u32 s[40:41], s{sTag}, v{C32+5}
s_or_b64 vcc, vcc, s[40:41]
v_cmp_ne_u32 s[40:41], s{sTag}, v{C32+7}
s_or_b64 vcc, vcc, s[40:41]
s_cbranch_vccnz L_ag
v_subrev_u32 v{C32}, s{SB}, v{C32}
v_subrev_u32 v{C32+2}, s{SB}, v{C32+2}
v_subrev_u32 v{C32+4}, s{SB}, v{C32+4}
v_subrev_u32 v{C32+6}, s{SB}, v{C32+6}
v_min_i32 v{C32}, v{C32}, v{C32+2}
v_min_i32 v{C32+4}, v{C32+4}, v{C32+6}
v_min_i32 v{C32}, v{C32}, v{C32+4}
s_nop 1
v_min_i32_dpp v{C32}, v{C32}, v{C32} row_ror:1 row_mask:0xf bank_mask:0xf
s_nop 1
v_min_i32_dpp v{C32}, v{C32}, v{C32} row_ror:2 row_mask:0xf bank_mask:0xf
s_nop 1
v_min_i32_dpp v{C32}, v{C32}, v{C32} row_ror:4 row_mask:0xf bank_mask:0xf
s_nop 1
v_min_i32_dpp v{C32}, v{C32}, v{C32} row_ror:8 row_mask:0xf bank_mask:0xf
s_nop 1
v_readlane_b32 s36, v{C32}, 0
v_readlane_b32 s37, v{C32}, 16
v_readlane_b32 s38, v{C32}, 32
v_readlane_b32 s39, v{C32}, 48
s_nop 3
s_min_i32 s36, s36, s37
s_min_i32 s38, s38, s39
s_min_i32 s36, s36, s38
s_sub_u32 s37, s{SB+2*amp}, s{SB}
s_sub_u32 s37, s37, s36
s_memrealtime s[40:41]
s_waitcnt lgkmcnt(0)
s_mul_i32 s37, s37, {ampk}
s_add_u32 s37, s37, s40
""")
        else:
            a(f"""
s_sub_u32 s37, s{SB+2*amp}, s{SB}
s_mul_i32 s37, s37, {ampk}
s_add_u32 s37, s37, s{SB+2*e}
""")
        a(f"""
L_amp:
s_memrealtime s[40:41]
s_waitcnt lgkmcnt(0)
s_cmp_lt_u32 s40, s37
s_cbranch_scc1 L_amp
""")
    elif stamp:
        ST_("end")
        n = nst[0]
        a(f"""
s_waitcnt lgkmcnt(0) vmcnt(0)
s_mul_i32 s4, s2, 8
s_add_u32 s4, s4, s3
s_lshl_b32 s4, s4, 6
s_add_u32 s4, s4, {ST}
v_mov_b32 v{t1}, 0
s_mov_b64 exec, 1
""")
        for i in range(n):
            a(f"v_mov_b32 v{t0}, s{SB+2*i}\nbuffer_store_dword v{t0}, v{t1}, s[28:31], s4 offen offset:{4*i}\ns_nop 0")
    a("L_end:\ns_endpgm")
    lines = a.L
    nh = 0
    if warm:
        lines, nh, have = hops.insert(lines, nparts)
        assert have == nparts, (have, nparts)
    body = "\n".join(lines) + "\n"
    assert (not stamp) or (sa.hi <= SB and ls.hi <= SB), (sa.hi, ls.hi)
    nv = max(va.hi, lv.hi)
    s = header([f"; @launch grid=(256,1,1) block=(320,1,1) lds={LDS_BYTES}"]) + kernel_begin(KNAME) + body + RODATA + descriptor(KNAME, nv, 102 if stamp else max(sa.hi, ls.hi))
    errs = haz.check(body)
    for e in errs: print("HAZ", e)
    return s, nv, sa.hi, nh, stn
if __name__ == "__main__":
    out = sys.argv[1]
    kw = {}
    for x in sys.argv[2:]:
        k, v = x.split("=")
        if k in ("warm", "prio", "holdwo", "rot", "rotq", "ilv", "ycoal", "xnt", "xfirst", "pvp"): kw[k] = (v == "1")
        elif k == "nt": kw[k] = (" " + v if v else "")
        else: kw[k] = int(v)
    s, nv, ns, nh, stn = gen(**kw)
    open(out, "w").write(s)
    print("vgprs", nv, "sgprs", ns, "hops", nh, "lds", LDS_BYTES, stn)
```

```python
import sys, struct
sys.path.insert(0, "my")
from ag import *
import haz, hops

import os
WSB = int(os.environ.get('WSB', '0'), 0)
QF = WSB + 0x10000
OF = WSB + 0x80000
OX = WSB + 0x100000
SOFF = 0x200000
ST = 0x400000
WS_BYTES = 268435456
QL = 0
PL = QL + 1280
SL = PL + 1024
OL = SL + 64
FL = 3136
JK = FL + 160
XL = 3840; WQ = XL + 1024; KL = WQ + 16384; VL = KL + 32768
import os
if os.environ.get('ALIAS', '0') == '1':
    WO = WQ; LDS_BYTES = VL + 32768
else:
    WO = VL + 32768; LDS_BYTES = WO + 16384
assert OL + 768 <= FL and JK + 416 <= XL and XL % 256 == 0 and WQ % 256 == 0
F_Q, F_P, F_O, F_GI, F_QI, F_GOK, F_OI, F_YI, F_GO, F_K, F_V, F_W = 0, 16, 32, 48, 64, 80, 96, 112, 128, 132, 136, 140
CSC = 0.08838834764831845 * 1.4426950408889634
def f32(x): return "0x%08x" % struct.unpack("<I", struct.pack("<f", x))[0]
class V:
    def __init__(s, n=0): s.n = n; s.hi = n
    def __call__(s, cnt=1, align=1):
        s.n = (s.n + align - 1) // align * align
        r = s.n; s.n += cnt; s.hi = max(s.hi, s.n)
        return r
def rng(r, n): return f"v[{r}:{r+n-1}]"
OOB = "0x7ffffff0"

def gen(stamp=False, nt=" nt", hold=0, kx=32, nmid=32, lgo=60, holdwo=False, rot=True, rotq=True, fd=1, warml=0, fmode=0, pvp=True, lwo=0, fsleep=0, nooi=0, n1p=0, noflush=0, sameS=0, dirty=0, cqx=0, xnt=False, xfirst=False, ilv=True, ycoal=True, wthr=2000, n3=0, n2=0, N=24, spin=100000, nf=64, amp=-1, ampk=10, ampglob=0, ampj=0, warm=True, pt=1, nparts=4, prio=True, step=2):
    if amp >= 0: stamp = True
    a = A(); va = V(1); sa = V(36)
    l = va(); t0 = va(); t1 = va(); t2 = va(); t3 = va()
    nst = [0]; stn = []
    SB = 74 if pt == 12 else 72
    def ST_(label):
        if stamp and (stamp != 2 or label in ('entry', 'end')):
            i = nst[0]; nst[0] += 1; stn.append(label)
            assert i < (14 if pt == 12 else 15)
            a(f"s_memrealtime s[{SB+2*i}:{SB+1+2*i}]")
    W, G, R, B, C = "s3", "s4", "s5", "s6", "s7"
    sT = sa(); sT2 = sa(); sWin = sa()
    a(f"""
s_cmp_ge_u32 s2, 256
s_cbranch_scc1 L_end
s_load_dwordx2 s[20:21], s[0:1], 24
s_load_dwordx2 s[8:9], s[0:1], 0
s_load_dwordx2 s[12:13], s[0:1], 8
s_load_dwordx2 s[28:29], s[0:1], 56
s_load_dwordx2 s[16:17], s[0:1], 16
s_load_dwordx2 s[24:25], s[0:1], 32
s_load_dwordx2 s[32:33], s[0:1], 40
""")
    ST_("entry")
    a(f"""
v_lshrrev_b32 v{t0}, 6, v0
v_and_b32 v{l}, 63, v0
s_and_b32 {G}, s2, 7
v_readfirstlane_b32 {W}, v{t0}
s_lshr_b32 {R}, s2, 3
s_lshr_b32 {B}, {R}, 3
s_and_b32 {C}, {R}, 7
s_mov_b32 s23, 0x20000
v_lshrrev_b32 v{t0}, 4, v{l}
v_and_b32 v{t1}, 15, v{l}
""")
    if stamp: a(f"s_mov_b32 s31, s23\ns_mov_b32 s30, {WS_BYTES}\ns_mov_b32 s35, s23\ns_movk_i32 s34, 0x1000")
    a(f"""
s_cmp_lt_u32 {W}, 4
s_cbranch_scc1 L_compute
""")
    lv = V(va.n); ls = V(sa.n)
    vWQ = lv(2); vX = lv(); vK = lv(4); vV = lv(2); vWO = lv(2); vLF = lv(); vOne = lv()
    sWQ = ls(); sX = ls(); sK = ls(); sWO = ls(); lT = ls(); sWQb0 = ls()
    if prio: a("s_setprio 2")
    a(f"""
s_mov_b32 s22, 0x400000
v_and_b32 v{t2}, 7, v{l}
v_lshlrev_b32 v{t3}, 1, v{t0}
v_and_b32 v{vX}, 2, v{t3}
v_xor_b32 v{t2}, v{t2}, v{vX}
v_lshlrev_b32 v{t2}, 4, v{t2}
v_lshrrev_b32 v{vX}, 3, v{l}
v_lshl_add_u32 v{vWQ}, v{vX}, 13, v{t2}
v_xor_b32 v{vWQ+1}, 64, v{vWQ}
s_lshl_b32 s{sWQb0}, {G}, 3
s_xor_b32 s{lT}, {C}, {cqx}
s_add_u32 s{sWQb0}, s{sWQb0}, s{lT}
s_lshl_b32 s{sWQb0}, s{sWQb0}, 7
s_lshl_b32 s{lT}, {B}, 20
s_add_u32 s{sWQb0}, s{sWQb0}, s{lT}
s_mov_b32 s11, s23
s_movk_i32 s10, 0x1000
s_mov_b32 s15, s23
s_mov_b32 s14, 0x2000000
; x voffset: (l>>4)*1024 + ((l&15) ^ (4*(l>>4)))*16
v_lshlrev_b32 v{t2}, 2, v{t0}
v_xor_b32 v{t2}, v{t1}, v{t2}
v_lshlrev_b32 v{t2}, 4, v{t2}
v_lshl_add_u32 v{vX}, v{t0}, 10, v{t2}
s_lshl_b32 s{sX}, {B}, 8
""")
    seq = []
    sRho = ls(); sJ = ls(); sWQb = sWQb0
    for i in range(16):
        pre = []
        if i % 4 == 0:
            j_ = i // 4
            if rotq:
                pre += [f"s_add_u32 s{sJ}, {B}, {j_}", f"s_and_b32 s{sJ}, s{sJ}, 3", f"s_lshl_b32 s{lT}, s{sJ}, 18", f"s_add_u32 s{sWQ}, s{sWQb}, s{lT}",
                        f"s_lshl_b32 s{lT}, s{sJ}, 12", f"s_add_u32 m0, s{lT}, {WQ}"]
            else:
                pre += [f"s_add_u32 s{sWQ}, s{sWQb}, {j_ << 18}", f"s_mov_b32 m0, {WQ + j_*4096}"]
            pre.append("s_nop 0")
        else:
            pre.append(f"s_add_u32 s{sWQ}, s{sWQ}, {65536 - 1024}")
        seq.append((pre, f"buffer_load_dwordx4 v{vWQ + (i & 1)}, s[20:23], s{sWQ} offen offset:{(i%4)*1024}{nt} lds"))
    seq.append(([f"s_movk_i32 m0, {XL}", "s_nop 0"], f"buffer_load_dwordx4 v{vX}, s[8:11], s{sX} offen{' nt' if xnt else ''} lds"))
    if xfirst: seq.insert(0, seq.pop())
    kpre = f"""; K voffsets: (l>>4)*256 + ((l&15)^(l>>4))*16  ^ (64*i)
v_xor_b32 v{t2}, v{t1}, v{t0}
v_lshlrev_b32 v{t2}, 4, v{t2}
v_lshl_add_u32 v{vK}, v{t0}, 8, v{t2}
v_xor_b32 v{vK+1}, 64, v{vK}
v_xor_b32 v{vK+2}, 0x80, v{vK}
v_xor_b32 v{vK+3}, 0xc0, v{vK}
; flag address vgpr: lane0 -> FL, else JK + 4*l
v_lshlrev_b32 v{t2}, 2, v{l}
v_add_u32 v{t2}, {JK}, v{t2}
v_cmp_eq_u32 vcc, 0, v{l}
v_mov_b32 v{vLF}, {FL}
v_mov_b32 v{vOne}, 1
v_cndmask_b32 v{vLF}, v{t2}, v{vLF}, vcc
; window base = (b*8+g)<<20 + 3072*256 + c*(32768 or 4096)
s_lshl_b32 s{sWin}, {B}, 3
s_add_u32 s{sWin}, s{sWin}, {G}
s_lshl_b32 s{sWin}, s{sWin}, 5
s_add_u32 s{sWin}, s{sWin}, 24
s_lshl_b32 s{sWin}, s{sWin}, 15
s_lshl_b32 s{sJ}, {C}, {12 if ilv else 15}
s_add_u32 s{sWin}, s{sWin}, s{sJ}
; rho*4096 : rho = (g + 2b) & 7
s_lshl_b32 s{sRho}, {B}, 1
s_add_u32 s{sRho}, s{sRho}, {G}
s_and_b32 s{sRho}, s{sRho}, {7 if rot else 0}
s_lshl_b32 s{sRho}, s{sRho}, 12""".split("\n")
    def grp(j_, ldsbase):
        if ilv:
            return [f"s_add_u32 s{sJ}, s{sRho}, {j_*4096}", f"s_and_b32 s{sJ}, s{sJ}, 0x7fff", f"s_mov_b32 m0, {ldsbase + j_*4096}", f"s_lshl_b32 s{sJ}, s{sJ}, 3", f"s_add_u32 s{sK}, s{sWin}, s{sJ}"]
        return [f"s_add_u32 s{sJ}, s{sRho}, {j_*4096}", f"s_and_b32 s{sJ}, s{sJ}, 0x7fff", f"s_add_u32 m0, s{sJ}, {ldsbase}", f"s_add_u32 s{sK}, s{sWin}, s{sJ}"]
    for i in range(32):
        pre = list(kpre) if i == 0 else []
        if i % 4 == 0: pre += grp(i // 4, KL)
        seq.append((pre, f"buffer_load_dwordx4 v{vK+i%4}, s[12:15], s{sK} offen offset:{(i%4)*1024}{nt} lds"))
    vpre = f"""s_mov_b32 s19, s23
s_mov_b32 s18, s14
; V voffset: (l>>4)*256 + ((l&15) ^ ((l>>4)<<1))*16 ; odd: ^128 ; WO: (l>>4)*1024 + same piece
v_xor_b32 v{t2}, v{t1}, v{t3}
v_lshlrev_b32 v{t2}, 4, v{t2}
v_lshl_add_u32 v{vV}, v{t0}, 8, v{t2}
v_xor_b32 v{vV+1}, 0x80, v{vV}
v_lshl_add_u32 v{vWO}, v{t0}, 10, v{t2}
v_xor_b32 v{vWO+1}, 0x80, v{vWO}
s_mov_b32 s27, s23
s_mov_b32 s26, s22
; WO soff = p<<16 + cg*256 ; p = g*8 + r/4 ; cg = r&3
s_lshr_b32 s{lT}, {R}, 2
s_lshl_b32 s{sWO}, {G}, 3
s_add_u32 s{sWO}, s{sWO}, s{lT}
s_lshl_b32 s{sWO}, s{sWO}, 8
s_and_b32 s{lT}, {R}, 3
s_add_u32 s{sWO}, s{sWO}, s{lT}
s_lshl_b32 s{sWO}, s{sWO}, 8""".split("\n")
    for i in range(32):
        pre = list(vpre) if i == 0 else []
        if i % 4 == 0: pre += grp(i // 4, VL)
        seq.append((pre, f"buffer_load_dwordx4 v{vV+(i&1)}, s[16:19], s{sK} offen offset:{(i%4)*1024}{nt} lds"))
    for i in range(16):
        pre = []
        if i == 0: pre += [f"s_mov_b32 m0, {WO}", "s_nop 0"]
        elif i % 4 == 0: pre.append("s_add_u32 m0, m0, 4096")
        if i: pre.append(f"s_add_u32 s{sWO}, s{sWO}, {4096 - 1024 if i % 4 else 4096 + 3072}")
        seq.append((pre, f"buffer_load_dwordx4 v{vWO+((i>>1)&1)}, s[24:27], s{sWO} offen offset:{(i%4)*1024}{nt} lds"))
    T = len(seq); assert T == 97
    def emit(k):
        pre, ld = seq[k]
        for p in pre: a(p)
        a(ld)
    for p in seq[0][0]: a(p)
    a("s_waitcnt lgkmcnt(0)")
    a(seq[0][1])
    for k in range(1, 17): emit(k)
    ST_("L: wq issued")
    if warml == 2: a("; LWARM_START")
    pre17, ld17 = seq[17]
    for p in pre17: a(p)
    n0 = 17 + kx
    if kx > 0:
        if hold: a(f"s_waitcnt vmcnt({17 - hold})")
        a(ld17)
        for k in range(18, n0):
            if n1p and k >= n1p: a(f"s_waitcnt vmcnt({n1p - 1})")
            emit(k)
    else:
        seq[17] = ([], ld17)
    ST_("L: K issued")
    if warml == 1: a("; LWARM_START")
    lfl = lv(4, 4)
    a(f"v_mov_b32 v{t2}, {FL}")
    a(f"s_waitcnt vmcnt({n0 - 17})\ns_barrier")
    ST_("L: wq landed")
    def lwait(name, off):
        a(f"""L_{name}:
ds_read_b128 v[{lfl}:{lfl+3}], v{t2} offset:{off}
s_waitcnt lgkmcnt(0)
v_and_b32 v{lfl}, v{lfl}, v{lfl+1}
v_and_b32 v{lfl+2}, v{lfl+2}, v{lfl+3}
v_and_b32 v{lfl}, v{lfl}, v{lfl+2}
v_cmp_eq_u32 vcc, 0, v{lfl}
s_cbranch_vccnz L_{name}""")
    vFA = lv()
    a(f"v_mov_b32 v{vFA}, {FL}")
    def lwait(name, off):
        a(f"""L_{name}:
ds_read_b128 v[{lfl}:{lfl+3}], v{vFA} offset:{off}
s_waitcnt lgkmcnt(0)
v_and_b32 v{lfl}, v{lfl}, v{lfl+1}
v_and_b32 v{lfl+2}, v{lfl+2}, v{lfl+3}
v_and_b32 v{lfl}, v{lfl}, v{lfl+2}
v_cmp_eq_u32 vcc, 0, v{lfl}
s_cbranch_vccnz L_{name}""")
    lwait("qi", F_QI)
    n1 = 49 + nmid
    for k in range(n0, n1):
        if n2: a(f"s_waitcnt vmcnt({n2 - 1})")
        emit(k)
    assert lgo <= n1 and n1 <= T
    a(f"s_waitcnt vmcnt({n1 - lgo})")
    a(f"ds_write_b32 v{vLF}, v{vOne} offset:{F_GO}")
    lwait("gi", F_GI)
    for k in range(n1, T):
        if k == 81 and holdwo: lwait("gok", F_GOK)
        if k == 81 and lwo: a(f"s_waitcnt vmcnt({81 - lwo})")
        if n3: a(f"s_waitcnt vmcnt({n3 - 1})")
        emit(k)
    if lgo < 49: a(f"s_waitcnt vmcnt({T - 49})\nds_write_b32 v{vLF}, v{vOne} offset:{F_K}")
    F_V1 = F_GOK
    tailev = ([(49 + nmid, F_V1)] if pvp else []) + [(81, F_V), (97, F_W)]
    for cnt, f in tailev:
        a(f"s_waitcnt vmcnt({T - cnt})\nds_write_b32 v{vLF}, v{vOne} offset:{f}")
    ST_("L: all landed")
    if warml: a("; LWARM_END")
    if stamp: a("s_branch L_fin")
    else: a("s_endpgm")
    a("L_compute:")
    g = va(); n16 = va(); n4 = va()
    sQB = sa(); sOB = sa(); sEp = sa(); sTag = sa(); vPT = va()
    a(f"""
s_mov_b32 s31, s23
s_mov_b32 s30, {WS_BYTES}
s_mov_b32 s35, s23
s_movk_i32 s34, 0x1000
s_lshl_b32 s{sQB}, {G}, 4
s_add_u32 s{sQB}, s{sQB}, {B}
s_lshl_b32 s{sQB}, s{sQB}, 11
s_xor_b32 s{sT}, {C}, {cqx}
s_lshl_b32 s{sT}, s{sT}, 8
s_add_u32 s{sQB}, s{sQB}, s{sT}
s_add_u32 s{sQB}, s{sQB}, {QF}
s_lshl_b32 s{sOB}, {B}, 3
s_add_u32 s{sOB}, s{sOB}, {G}
s_lshl_b32 s{sOB}, s{sOB}, 5
s_add_u32 s{sOB}, s{sOB}, {C}
s_lshl_b32 s{sOB}, s{sOB}, 9
s_add_u32 s{sOB}, s{sOB}, {OF}
""")
    vPTa = va()
    if pt in (1, 3, 7):
        a(f"""
s_mul_i32 s{sT}, {W}, 6
v_add_u32 v{t3}, s{sT}, v{l}
v_lshrrev_b32 v{t0}, 1, v{t3}
v_lshlrev_b32 v{t0}, 13, v{t0}
v_and_b32 v{t1}, 1, v{t3}
v_lshl_or_b32 v{t0}, v{t1}, 7, v{t0}
v_add_u32 v{t0}, s{sQB}, v{t0}
v_subrev_u32 v{t1}, 8, v{t3}
v_lshrrev_b32 v{t2}, 2, v{t1}
v_lshlrev_b32 v{t2}, 12, v{t2}
v_and_b32 v{t1}, 3, v{t1}
v_lshl_or_b32 v{t2}, v{t1}, 7, v{t2}
v_add_u32 v{t2}, s{sOB}, v{t2}
v_cmp_gt_u32 vcc, 8, v{t3}
v_mov_b32 v{t3}, {OOB}
s_nop 0
v_cndmask_b32 v{t0}, v{t2}, v{t0}, vcc
v_cmp_gt_u32 vcc, 6, v{l}
s_mov_b32 s{sT}, {WSB}
s_waitcnt lgkmcnt(0)
s_load_dword s{sEp}, s[28:29], s{sT}
v_cndmask_b32 v{vPTa}, v{t3}, v{t0}, vcc
""")
        if pt != 7: a(f"buffer_load_dword v{vPT}, v{vPTa}, s[28:31], 0 offen{' nt' if pt == 3 else ''}")
    else:
        a(f"s_mov_b32 s{sT}, {WSB}\ns_waitcnt lgkmcnt(0)\ns_load_dword s{sEp}, s[28:29], s{sT}" if WSB else f"s_waitcnt lgkmcnt(0)\ns_load_dword s{sEp}, s[28:29], 0")
        if pt in (10, 11, 12):
            sD = sa(); sO1 = sa(); sO2 = sa()
            a(f"s_lshl_b32 s{sT}, {W}, 13\ns_add_u32 s{sO1}, s{sQB}, s{sT}\ns_lshl_b32 s{sT}, {W}, 12\ns_add_u32 s{sO2}, s{sOB}, s{sT}")
            stp = 128 if pt == 11 else 64
            ypt = [f"s_load_dword s{sD}, s[28:29], s{sO1} offset:{o}" for o in range(0, 256, stp)] + [f"s_load_dword s{sD}, s[28:29], s{sO2} offset:{o}" for o in range(0, 512, stp)]
            if pt == 12:
                sO3 = sT2
                sO3 = sa()
                a(f"""s_and_b32 s{sO3}, {R}, 3
s_lshl_b32 s{sO3}, s{sO3}, 6
s_lshl_b32 s{sT}, {G}, 3
s_add_u32 s{sO3}, s{sO3}, s{sT}
s_lshr_b32 s{sT}, {R}, 2
s_add_u32 s{sO3}, s{sO3}, s{sT}
s_lshl_b32 s{sO3}, s{sO3}, 2
s_add_u32 s{sO3}, s{sO3}, {W}
s_lshl_b32 s{sO3}, s{sO3}, 9
s_add_u32 s{sO3}, s{sO3}, {OX + SOFF}""")
                ypt += [f"s_load_dword s{sD}, s[28:29], s{sO3} offset:{o}" for o in range(0, 512, 64)]
        if pt in (8, 9):
            sD = sa(); sO1 = sa()
            a(f"s_lshl_b32 s{sT}, {W}, 13\ns_add_u32 s{sO1}, s{sQB}, s{sT}")
            for o in range(0, 256, 64): a(f"s_load_dword s{sD}, s[28:29], s{sO1} offset:{o}")
            a(f"s_lshl_b32 s{sT}, {W}, 12\ns_add_u32 s{sO1}, s{sOB}, s{sT}")
            for o in range(0, 512, 64): a(f"s_load_dword s{sD}, s[28:29], s{sO1} offset:{o}")
            if pt == 9:
                a(f"""s_and_b32 s{sO1}, {R}, 3
s_lshl_b32 s{sO1}, s{sO1}, 6
s_lshl_b32 s{sT}, {G}, 3
s_add_u32 s{sO1}, s{sO1}, s{sT}
s_lshr_b32 s{sT}, {R}, 2
s_add_u32 s{sO1}, s{sO1}, s{sT}
s_lshl_b32 s{sO1}, s{sO1}, 2
s_add_u32 s{sO1}, s{sO1}, {W}
s_lshl_b32 s{sO1}, s{sO1}, 9
s_add_u32 s{sO1}, s{sO1}, {OX + SOFF}""")
                ypt = [f"s_load_dword s{sD}, s[28:29], s{sO1} offset:{o}" for o in range(0, 512, 64)]
        if pt in (2, 4, 6):
            a(f"""
s_lshl_b32 s{sT}, {W}, 12
s_add_u32 s{sT}, s{sT}, s{sOB}
v_lshlrev_b32 v{t0}, 7, v{l}
v_add_u32 v{t0}, s{sT}, v{t0}
v_cmp_gt_u32 vcc, 4, v{l}
v_mov_b32 v{t3}, {OOB}
s_nop 0
v_cndmask_b32 v{vPTa}, v{t3}, v{t0}, vcc
""")
    if warm:
        a("s_mov_b64 exec, 0")
        for p in range(1, nparts):
            a(f"s_cmp_eq_u32 {W}, {p}\ns_cbranch_scc1 HOP_P{p}")
        a("s_branch HOP_P0\nL_warm_done:\ns_mov_b64 exec, -1")
    a("; WARM_START")
    sP = sa(); sCG = sa(); sR4 = sa()
    vXr = va(4); vWQr = va(); vKr = va(4); vVr = va(2); vWOr = va(2)
    vQst = va(); vG = va(); sG = sa(); vQLw = va(); vQLr = va()
    vPw = va(); vPr = va(); vSw = va(); vSr = va()
    vOst = va(); vOG = va(); sOG = sa(); vOLw = va(); vOLr = va()
    vYst = va(); sYst = sa(); vFG = va(); sFG = sa(); vOut = va()
    vFw = va(); vFr = va(); vOne_c = va()
    sCsc = sa(); sP0 = sa(); sP1 = sa(); sP2 = sa(); sU0 = sa(); sU1 = sa(); sM4 = sa(2, 2); sG1 = sa(2, 2); sCnt = sa()
    a(f"""
v_lshrrev_b32 v{g}, 4, v{l}
v_and_b32 v{n16}, 15, v{l}
v_and_b32 v{n4}, 3, v{l}
v_lshlrev_b32 v{t2}, 2, v{l}
v_mov_b32 v{t3}, 0
ds_write_b32 v{t2}, v{t3} offset:{FL}
v_add_u32 v{t2}, {JK}, v{t2}
s_lshl_b32 s{sT}, {W}, 2
s_add_u32 s{sT}, s{sT}, {FL}
v_mov_b32 v{vFw}, s{sT}
v_cmp_eq_u32 vcc, 0, v{l}
v_mov_b32 v{vFr}, {FL}
v_mov_b32 v{vOne_c}, 1
v_cndmask_b32 v{vFw}, v{t2}, v{vFw}, vcc
; p = g*8 + r/4 ; cg = r&3
s_lshr_b32 s{sR4}, {R}, 2
s_lshl_b32 s{sP}, {G}, 3
s_add_u32 s{sP}, s{sP}, s{sR4}
s_and_b32 s{sCG}, {R}, 3
v_lshlrev_b32 v{t2}, 2, v{n4}
v_xor_b32 v{t2}, v{g}, v{t2}
v_lshlrev_b32 v{t2}, 4, v{t2}
v_lshl_add_u32 v{t2}, v{n4}, 8, v{t2}
v_add_u32 v{vXr}, {XL}, v{t2}
v_xor_b32 v{vXr+1}, 64, v{vXr}
v_xor_b32 v{vXr+2}, 0x80, v{vXr}
v_xor_b32 v{vXr+3}, 0xc0, v{vXr}
v_bfe_u32 v{t0}, v{l}, 2, 2
v_lshl_add_u32 v{t2}, v{g}, 3, v{t0}
v_lshlrev_b32 v{t2}, 7, v{t2}
v_lshl_add_u32 v{t2}, v{n4}, 3, v{t2}
v_lshrrev_b32 v{t3}, 1, v{t0}
v_and_b32 v{t1}, 1, v{g}
v_lshl_or_b32 v{t3}, v{t1}, 1, v{t3}
v_xor_b32 v{t3}, {W}, v{t3}
v_lshl_add_u32 v{t2}, v{t3}, 5, v{t2}
v_add_u32 v{vWQr}, {WQ}, v{t2}
s_lshl_b32 s{sT}, {W}, 13
s_add_u32 s{sT}, s{sT}, {KL}
v_xor_b32 v{t2}, v{g}, v{n16}
v_lshlrev_b32 v{t2}, 4, v{t2}
v_lshl_add_u32 v{t2}, v{n16}, 8, v{t2}
v_add_u32 v{vKr}, s{sT}, v{t2}
v_xor_b32 v{vKr+1}, 64, v{vKr}
v_xor_b32 v{vKr+2}, 0x80, v{vKr}
v_xor_b32 v{vKr+3}, 0xc0, v{vKr}
v_lshl_add_u32 v{t2}, v{g}, 2, v{t0}
v_lshlrev_b32 v{t2}, 8, v{t2}
v_lshl_add_u32 v{t2}, v{n4}, 3, v{t2}
v_lshl_or_b32 v{t3}, v{t1}, 2, v{t0}
s_lshl_b32 s{sT}, {W}, 1
v_xor_b32 v{t3}, s{sT}, v{t3}
v_lshl_add_u32 v{t2}, v{t3}, 5, v{t2}
v_add_u32 v{vVr}, {VL}, v{t2}
v_xor_b32 v{vVr+1}, 32, v{vVr}
v_lshl_add_u32 v{t2}, v{g}, 3, v{t0}
v_lshlrev_b32 v{t2}, 8, v{t2}
v_lshl_add_u32 v{t2}, v{n4}, 3, v{t2}
v_lshl_add_u32 v{t2}, v{t3}, 5, v{t2}
v_add_u32 v{vWOr}, {WO}, v{t2}
v_xor_b32 v{vWOr+1}, 32, v{vWOr}
v_cmp_gt_u32 vcc, 4, v{n16}
v_mov_b32 v{t3}, {OOB}
s_lshl_b32 s{sT}, {W}, 6
v_lshlrev_b32 v{t2}, 4, v{g}
v_add_u32 v{t0}, s{sT}, v{t2}
v_lshl_add_u32 v{t0}, v{n16}, 13, v{t0}
v_cndmask_b32 v{vQst}, v{t3}, v{t0}, vcc
s_lshl_b32 s{sT}, {W}, 7
v_add_u32 v{t2}, s{sT}, v{t2}
v_lshl_add_u32 v{t0}, v{n16}, 12, v{t2}
v_cndmask_b32 v{vOst}, v{t3}, v{t0}, vcc
v_lshl_add_u32 v{t0}, v{n16}, 9, v{t2}
v_cndmask_b32 v{vYst}, v{t3}, v{t0}, vcc
YCOAL_ADDR
v_lshrrev_b32 v{t0}, 5, v{l}
v_and_b32 v{t1}, 31, v{l}
v_lshlrev_b32 v{t2}, 4, v{t1}
v_lshl_add_u32 v{vG}, v{t0}, 12, v{t2}
s_lshl_b32 s{sG}, {G}, 2
s_add_u32 s{sG}, s{sG}, {B}
s_lshl_b32 s{sG}, s{sG}, 4
s_add_u32 s{sG}, s{sG}, {W}
s_lshl_b32 s{sG}, s{sG}, 9
s_add_u32 s{sG}, s{sG}, {QF}
s_mul_i32 s{sT}, {W}, 320
v_lshlrev_b32 v{t2}, 3, v{t1}
v_lshl_add_u32 v{t2}, v{t0}, 2, v{t2}
v_add_u32 v{vQLw}, s{sT}, v{t2}
v_mul_u32_u24 v{t2}, 320, v{n4}
v_lshl_add_u32 v{vQLr}, v{g}, 4, v{t2}
v_lshlrev_b32 v{t2}, 6, v{n4}
v_lshl_add_u32 v{vPr}, v{g}, 4, v{t2}
s_lshl_b32 s{sT}, {W}, 8
v_add_u32 v{vPw}, s{sT}, v{vPr}
v_lshlrev_b32 v{vSr}, 4, v{n4}
s_lshl_b32 s{sT}, {W}, 2
v_add_u32 v{vSw}, s{sT}, v{vSr}
v_lshlrev_b32 v{t2}, 9, v{g}
v_lshl_add_u32 v{vOG}, v{n16}, 4, v{t2}
s_lshl_b32 s{sOG}, {W}, 3
s_add_u32 s{sOG}, s{sOG}, {G}
s_lshl_b32 s{sOG}, s{sOG}, 2
s_add_u32 s{sOG}, s{sOG}, {B}
s_lshl_b32 s{sOG}, s{sOG}, 4
s_and_b32 s{sT}, s{sR4}, 1
s_add_u32 s{sOG}, s{sOG}, s{sT}
s_lshl_b32 s{sOG}, s{sOG}, 8
s_add_u32 s{sOG}, s{sOG}, {OF}
s_mul_i32 s{sT}, {W}, 192
v_lshlrev_b32 v{t2}, 3, v{n16}
v_lshl_add_u32 v{t2}, v{g}, 1, v{t2}
v_add_u32 v{vOLw}, s{sT}, v{t2}
v_mul_u32_u24 v{t2}, 192, v{n4}
v_lshl_add_u32 v{vOLr}, v{g}, 4, v{t2}
s_lshl_b32 s{sYst}, s{sCG}, 6
s_add_u32 s{sYst}, s{sYst}, s{sP}
s_lshl_b32 s{sYst}, s{sYst}, 11
s_add_u32 s{sYst}, s{sYst}, {OX + SOFF}
v_lshrrev_b32 v{t0}, 1, v{l}
v_and_b32 v{t1}, 1, v{l}
v_lshlrev_b32 v{t2}, 4, v{t1}
v_lshl_add_u32 v{vFG}, v{t0}, 11, v{t2}
s_lshl_b32 s{sFG}, s{sCG}, 12
s_add_u32 s{sFG}, s{sFG}, s{sP}
s_lshl_b32 s{sFG}, s{sFG}, 5
s_add_u32 s{sFG}, s{sFG}, {OX + SOFF}
YCOAL_OUT
v_cmp_gt_u32 vcc, 2, v{n16}
s_mov_b32 s{sCsc}, {f32(CSC)}
s_mov_b32 s{sP0}, 0x07060503
v_cndmask_b32 v{vOut}, v{t3}, v{t2}, vcc
s_mov_b32 s{sP1}, 0x07060502
s_mov_b32 s{sP2}, 0x07060501
s_mov_b32 s{sU0}, 0x04000c0c
s_mov_b32 s{sU1}, 0x0706000c
s_mov_b32 s{sM4}, 0x000f000f
s_mov_b32 s{sM4+1}, 0x000f000f
s_waitcnt lgkmcnt(0)
s_mul_i32 s{sTag}, s{sEp}, 1664525
s_add_u32 s{sTag}, s{sTag}, 1013904223
""")
    ya = f"""; coalesced y store: lanes < 32: w*512 + l*16
s_lshl_b32 s{sT}, {W}, 9
v_lshlrev_b32 v{t0}, 4, v{l}
v_add_u32 v{t0}, s{sT}, v{t0}
v_cmp_gt_u32 s[{sM4}:{sM4+1}], 32, v{l}
v_cmp_eq_u32 s[{sG1}:{sG1+1}], 1, v{g}
s_nop 0
v_cndmask_b32 v{vYst}, v{t3}, v{t0}, s[{sM4}:{sM4+1}]""" if ycoal else ""
    yo = (f"""; out voffset: g*1024 + (cg*128 + 2p' + (l&1))*2 for lanes n16<2 ; p' = p (0..63)
s_lshl_b32 s{sT}, s{sCG}, 6
s_add_u32 s{sT}, s{sT}, s{sP}
s_lshl_b32 s{sT}, s{sT}, 2
v_lshlrev_b32 v{t2}, 1, v{t1}
v_lshl_add_u32 v{t2}, v{g}, 10, v{t2}
v_add_u32 v{t2}, s{sT}, v{t2}""" if ycoal else f"""s_lshr_b32 s{sT}, s{sP}, 4
s_lshl_b32 s{sT}, s{sT}, 2
s_add_u32 s{sT}, s{sT}, s{sCG}
s_lshl_b32 s{sT}, s{sT}, 4
s_and_b32 s{sT2}, s{sP}, 15
s_add_u32 s{sT}, s{sT}, s{sT2}
s_lshl_b32 s{sT}, s{sT}, 4
v_lshlrev_b32 v{t2}, 3, v{t1}
v_lshl_add_u32 v{t2}, v{g}, 1, v{t2}
v_add_u32 v{t2}, s{sT}, v{t2}""")
    newL = []
    for ln in a.L:
        if "YCOAL_ADDR" in ln: newL += ["    " + x for x in ya.split("\n") if x]
        elif "YCOAL_OUT" in ln: newL += ["    " + x for x in yo.split("\n")]
        else: newL.append(ln)
    a.L = newL
    A32 = va(32, 4); B16 = va(16, 4); C32 = va(32, 4); E8 = va(8, 4); F8 = va(8, 4)
    ones = va(4, 4); fl = va(4, 4); fl1 = va(); QS4 = va(4, 4); OS8 = va(8, 4); sQS = sa(); sOS = sa(); sWcN = sa.n
    a(f"""
v_mov_b32 v{ones}, 0x3f803f80
v_mov_b32 v{ones+1}, 0x3f803f80
v_mov_b32 v{ones+2}, 0x3f803f80
v_mov_b32 v{ones+3}, 0x3f803f80
v_mov_b32 v{QS4+3}, s{sTag}
v_mov_b32 v{OS8+3}, s{sTag}
v_mov_b32 v{OS8+7}, s{sTag}
v_mov_b32 v{E8+3}, s{sTag}
v_mov_b32 v{E8+7}, s{sTag}
s_add_u32 s{sQS}, s{sQB}, {0 if sameS in (1, 2) else SOFF}
s_add_u32 s{sOS}, s{sOB}, {0 if sameS in (1, 3) else SOFF}
s_mov_b32 s{sCnt}, {spin}
s_movk_i32 s{sWcN}, {wthr}
""")
    if pt == 7: a(f"buffer_load_dword v{vPT}, v{vPTa}, s[28:31], 0 offen")
    lab = [0]
    def setflag(off): a(f"ds_write_b32 v{vFw}, v{vOne_c} offset:{off}")
    colder = []
    sWc = sa()
    stage = {"flush": []}
    def waitflags(group=None, single=None):
        lab[0] += 1; L = f"L_wf{lab[0]}"
        a(f"{L}:")
        if group is not None: a(f"ds_read_b128 {rng(fl,4)}, v{vFr} offset:{group}")
        if single is not None: a(f"ds_read_b32 v{fl1}, v{vFr} offset:{single}")
        a("s_waitcnt lgkmcnt(0)")
        if group is not None:
            a(f"v_min3_u32 v{fl}, v{fl}, v{fl+1}, v{fl+2}")
            if single is not None: a(f"v_min3_u32 v{fl}, v{fl}, v{fl+3}, v{fl1}")
            else: a(f"v_min_u32 v{fl}, v{fl}, v{fl+3}")
            r = fl
        else: r = fl1
        a(f"v_cmp_eq_u32 vcc, 0, v{r}\ns_cbranch_vccz {L}d\ns_sub_u32 s{sWc}, s{sWc}, 1\ns_cbranch_scc0 {L}\ns_branch {L}f\n{L}d:")
        colder.append([f"{L}f:"] + list(stage["flush"]) + [f"s_movk_i32 s{sWc}, {wthr}", f"s_branch {L}"])
    QFL = [f"buffer_store_dwordx4 {rng(QS4,4)}, v{vQst}, s[28:31], s{sQS} offen sc1"]
    OFL = [f"buffer_store_dwordx4 {rng(OS8,4)}, v{vOst}, s[28:31], s{sOS} offen sc1", f"buffer_store_dwordx4 {rng(OS8+4,4)}, v{vOst}, s[28:31], s{sOS} offen offset:64 sc1"]
    assert sWc == sWcN
    xb = A32; wa = A32 + 16; acc = C32
    a("s_waitcnt lgkmcnt(0)\ns_barrier")
    for s in range(4):
        a(f"ds_read_b128 {rng(xb+4*s,4)}, v{vXr+s}")
        a(f"ds_read_b64_tr_b16 {rng(wa+4*s,2)}, v{vWQr} offset:{s*4096}")
        a(f"ds_read_b64_tr_b16 {rng(wa+4*s+2,2)}, v{vWQr} offset:{s*4096 + 512}")
    for s in range(4):
        a(f"s_waitcnt lgkmcnt({3*(3-s)})")
        c = "0" if s == 0 else rng(acc,4)
        a(f"v_mfma_f32_16x16x32_bf16 {rng(acc,4)}, {rng(wa+4*s,4)}, {rng(xb+4*s,4)}, {c}")
    a(f"""
s_nop 7
v_perm_b32 v{QS4}, v{acc}, v{acc+3}, s{sP0}
v_perm_b32 v{QS4+1}, v{acc+1}, v{acc+3}, s{sP1}
v_perm_b32 v{QS4+2}, v{acc+2}, v{acc+3}, s{sP2}
buffer_store_dwordx4 {rng(QS4,4)}, v{vQst}, s[28:31], s{sQB} offen
""")
    setflag(F_QI)
    stage["flush"] = QFL
    if pt in (9, 10, 11, 12):
        for x_ in ypt: a(x_)
    if pt in (2, 6): a(f"buffer_load_dword v{vPT}, v{vPTa}, s[28:31], 0 offen" + (" nt" if pt == 2 else ""))
    ST_("q published")
    gq = F8
    waitflags(single=F_GO)
    ST_("GO")
    a(f"buffer_load_dwordx4 {rng(gq,4)}, v{vG}, s[28:31], s{sG} offen sc1")
    a(f"buffer_load_dwordx4 {rng(gq+4,4)}, v{vG}, s[28:31], s{sG} offen offset:2048 sc1")
    if pt == 4: a(f"buffer_load_dword v{vPT}, v{vPTa}, s[28:31], 0 offen nt")
    if pt == 13:
        dum = va(2, 2)
        a(f"buffer_load_dword v{dum}, v{vOG}, s[28:31], s{sOG} offen sc1")
        a(f"buffer_load_dword v{dum+1}, v{vOG}, s[28:31], s{sOG} offen offset:2048 sc1")
    if pt == 14:
        dum = va(2, 2)
        a(f"buffer_load_dword v{dum}, v{vOG}, s[28:31], s{sOG} offen sc1")
        a(f"buffer_load_dword v{dum+1}, v{vOG}, s[28:31], s{sOG} offen offset:2048 sc1")
        dum2 = va(2, 2)
        a(f"s_add_u32 s{sT2}, s{sFG}, 65536")
        a(f"buffer_load_dword v{dum2}, v{vFG}, s[28:31], s{sFG} offen sc1")
        a(f"buffer_load_dword v{dum2+1}, v{vFG}, s[28:31], s{sT2} offen sc1")
    setflag(F_GI)
    ka = A32
    if lgo < 49: waitflags(single=F_K)
    for t in range(2):
        for s_ in range(4):
            a(f"ds_read_b128 {rng(ka+16*t+4*s_,4)}, v{vKr+s_} offset:{t*4096}")
    sa_tmp = sa(2, 2)
    cold = []
    def poll(name, regs, vaddr, soff, first_wait, offs, flush):
        a(f"s_waitcnt vmcnt({first_wait})\nL_{name}chk:")
        for i, r in enumerate(regs):
            if i == 0: a(f"v_cmp_ne_u32 vcc, s{sTag}, v{r+3}")
            else: a(f"v_cmp_ne_u32 s[{sa_tmp}:{sa_tmp+1}], s{sTag}, v{r+3}\ns_or_b64 vcc, vcc, s[{sa_tmp}:{sa_tmp+1}]")
        a(f"s_cbranch_vccnz L_{name}retry\nL_{name}ok:")
        c = [f"L_{name}retry:", f"s_sub_u32 s{sCnt}, s{sCnt}, 1", f"s_cbranch_scc1 L_{name}ok",
             f"s_cmp_gt_u32 s{sCnt}, {spin - nf}", f"s_cbranch_scc1 L_{name}re",
             f"s_cmp_lg_u32 s{sCnt}, {spin - nf}", f"s_cbranch_scc1 L_{name}tg"] + flush + [f"L_{name}tg:"] + ([] if (sameS == 1 or (sameS == 2 and name == "q") or (sameS == 3 and name == "o")) else [f"s_xor_b32 s{soff}, s{soff}, {SOFF}"]) + [f"L_{name}re:"]
        for r, o in zip(regs, offs):
            c.append(f"buffer_load_dwordx4 {rng(r,4)}, v{vaddr}, s[28:31], s{soff} offen offset:{o} sc1")
        c += ["s_waitcnt vmcnt(0)", f"s_branch L_{name}chk"]
        cold.append((name, c))
    poll("q", [gq, gq+4], vG, sG, {4: 1, 13: 2, 14: 4}.get(pt, 0), [0, 2048], QFL)
    if holdwo: setflag(F_GOK)
    ST_("q gathered")
    u = E8; qb = B16
    a(f"""
v_perm_b32 v{u}, v{gq}, v{gq+1}, s{sU0}
v_perm_b32 v{u+1}, v{gq+4}, v{gq+5}, s{sU0}
v_add_f32 v{u+4}, v{gq}, v{gq+4}
v_add_f32 v{u+6}, v{gq+2}, v{gq+6}
v_perm_b32 v{u}, v{u}, v{gq+2}, s{sU1}
v_perm_b32 v{u+1}, v{u+1}, v{gq+6}, s{sU1}
v_add_f32 v{u+5}, v{gq+1}, v{gq+5}
v_add_f32 v{u+7}, v{u}, v{u+1}
v_permlane32_swap_b32 v{u+4}, v{u+6}
s_nop 0
v_permlane32_swap_b32 v{u+5}, v{u+7}
v_add_f32 v{u+4}, v{u+4}, v{u+6}
v_add_f32 v{u+5}, v{u+5}, v{u+7}
v_cvt_pk_bf16_f32 v{u}, v{u+4}, v{u+5}
ds_write_b32 v{vQLw}, v{u} offset:{QL}
""")
    setflag(F_Q)
    waitflags(group=F_Q)
    for s in range(4):
        a(f"ds_read_b128 {rng(qb+4*s,4)}, v{vQLr} offset:{QL + s*64}")
    sc = C32
    for s in range(4):
        a(f"s_waitcnt lgkmcnt({3-s})")
        for t in range(2):
            c = "0" if s == 0 else rng(sc+4*t,4)
            a(f"v_mfma_f32_16x16x32_bf16 {rng(sc+4*t,4)}, {rng(ka+16*t+4*s,4)}, {rng(qb+4*s,4)}, {c}")
    m = va(2, 2); mt = va(); pk = E8
    sC2 = sa(2, 2)
    a(f"""
s_mov_b32 s{sC2}, s{sCsc}
s_mov_b32 s{sC2+1}, s{sCsc}
s_nop 4
v_max3_f32 v{m}, v{sc}, v{sc+1}, v{sc+2}
v_max3_f32 v{mt}, v{sc+3}, v{sc+4}, v{sc+5}
v_max3_f32 v{m}, v{m}, v{sc+6}, v{sc+7}
v_max_f32 v{m}, v{m}, v{mt}
v_mov_b32 v{mt}, v{m}
s_nop 1
v_permlane16_swap_b32 v{m}, v{mt}
v_max_f32 v{m}, v{m}, v{mt}
v_mov_b32 v{mt}, v{m}
s_nop 1
v_permlane32_swap_b32 v{m}, v{mt}
v_max_f32 v{m}, v{m}, v{mt}
v_mul_f32 v{m}, s{sCsc}, v{m}
""")
    for i in range(0, 8, 2):
        a(f"v_pk_fma_f32 v[{sc+i}:{sc+i+1}], v[{sc+i}:{sc+i+1}], s[{sC2}:{sC2+1}], v[{m}:{m+1}] op_sel_hi:[1,1,0] neg_lo:[0,0,1] neg_hi:[0,0,1]")
    a(f"s_mov_b64 exec, s[{sM4}:{sM4+1}]\nds_write_b32 v{vSw}, v{m} offset:{SL}\ns_mov_b64 exec, -1")
    for i in range(8):
        a(f"v_exp_f32 v{sc+i}, v{sc+i}")
        if i == 2: a(f"v_cvt_pk_bf16_f32 v{pk}, v{sc}, v{sc+1}")
        if i == 4: a(f"v_cvt_pk_bf16_f32 v{pk+1}, v{sc+2}, v{sc+3}")
        if i == 6: a(f"v_cvt_pk_bf16_f32 v{pk+2}, v{sc+4}, v{sc+5}")
    a(f"""
s_mov_b64 exec, s[{sM4}:{sM4+1}]
v_cvt_pk_bf16_f32 v{pk+3}, v{sc+6}, v{sc+7}
ds_write_b128 v{vPw}, {rng(pk,4)} offset:{PL}
s_mov_b64 exec, -1
""")
    setflag(F_P)
    a(f"s_mov_b32 s{sCnt}, {spin}")
    waitflags(group=F_P)
    ST_("P written")
    pb = B16; sv = F8; vaop = A32; D = C32
    lk = va(16, 4)
    M = va(); ff = va(4, 2); L = va(); Rr = va(); lse = va()
    a(f"ds_read_b128 {rng(sv,4)}, v{vSr} offset:{SL}")
    for ks in range(4):
        a(f"ds_read_b128 {rng(pb+4*ks,4)}, v{vPr} offset:{PL + ks*256}")
    a(f"ds_read_b32 v{fl1}, v{vFr} offset:{F_V}")
    a(f"""
s_waitcnt lgkmcnt(5)
v_max3_f32 v{M}, v{sv}, v{sv+1}, v{sv+2}
v_max_f32 v{M}, v{M}, v{sv+3}
v_sub_f32 v{ff}, v{sv}, v{M}
v_sub_f32 v{ff+1}, v{sv+1}, v{M}
v_sub_f32 v{ff+2}, v{sv+2}, v{M}
v_sub_f32 v{ff+3}, v{sv+3}, v{M}
""")
    for ks in range(4):
        a(f"s_waitcnt lgkmcnt({4-ks})")
        a(f"v_mfma_f32_16x16x32_bf16 {rng(lk+4*ks,4)}, {rng(ones,4)}, {rng(pb+4*ks,4)}, 0")
        a(f"v_exp_f32 v{ff+ks}, v{ff+ks}")
    def vread(ks):
        for tp in range(2):
            for e in range(2):
                a(f"ds_read_b64_tr_b16 {rng(vaop+8*ks+4*tp+2*e,2)}, v{vVr+tp} offset:{ks*8192 + e*4096}")
    def pv(ks):
        for tp in range(2):
            a(f"v_mfma_f32_16x16x32_bf16 {rng(D+8*ks+4*tp,4)}, {rng(vaop+8*ks+4*tp,4)}, {rng(pb+4*ks,4)}, 0")
    stats2 = f"""v_mul_f32 v{L}, v{ff}, v{lk}
v_fmac_f32 v{L}, v{ff+1}, v{lk+4}
v_fmac_f32 v{L}, v{ff+2}, v{lk+8}
v_fmac_f32 v{L}, v{ff+3}, v{lk+12}
v_rcp_f32 v{Rr}, v{L}
v_log_f32 v{lse}, v{L}
s_nop 0
v_mul_f32 v{ff}, v{ff}, v{Rr}
v_mul_f32 v{ff+1}, v{ff+1}, v{Rr}
v_mul_f32 v{ff+2}, v{ff+2}, v{Rr}
v_mul_f32 v{ff+3}, v{ff+3}, v{Rr}
v_add_f32 v{OS8+2}, v{lse}, v{M}
v_add_f32 v{OS8+6}, v{lse}, v{M}"""
    o = F8
    def scale(ks):
        base = ff + (ks & ~1); sel = ks & 1; fr = f"v[{base}:{base+1}]"
        for tp in range(2):
            for h in range(2):
                dst = rng(o+4*tp+2*h, 2); src = rng(D+8*ks+4*tp+2*h, 2)
                if ks == 0: a(f"v_pk_mul_f32 {dst}, {src}, {fr} op_sel:[0,{sel}] op_sel_hi:[1,{sel}]")
                else: a(f"v_pk_fma_f32 {dst}, {src}, {fr}, {dst} op_sel:[0,{sel},0] op_sel_hi:[1,{sel},1]")
    a(f"s_waitcnt lgkmcnt(0)\nv_cmp_ne_u32 vcc, 0, v{fl1}\ns_cbranch_vccnz L_vfast\ns_nop 3")
    if pvp:
        assert nmid == 24
        F_V1 = F_GOK
        waitflags(single=F_V1)
        vread(0); vread(1); vread(2)
        a(stats2)
        a("s_waitcnt lgkmcnt(8)"); pv(0)
        a("s_waitcnt lgkmcnt(4)"); pv(1)
        a("s_waitcnt lgkmcnt(0)"); pv(2)
        a("s_nop 1")
        scale(0); scale(1); scale(2)
        waitflags(single=F_V)
        ST_("V landed")
        vread(3)
        a("s_waitcnt lgkmcnt(0)"); pv(3)
        a("s_nop 7")
        scale(3)
        a("s_branch L_vdone")
    else:
        a(stats2)
        waitflags(single=F_V)
        ST_("V landed")
        vread(0); vread(1); vread(2)
        a("s_branch L_vjoin")
    a("L_vfast:")
    vread(0); vread(1); vread(2)
    a(stats2)
    a("L_vjoin:")
    a("s_waitcnt lgkmcnt(8)"); pv(0); vread(3)
    a("s_waitcnt lgkmcnt(8)"); pv(1)
    a("s_waitcnt lgkmcnt(4)"); pv(2)
    a("s_waitcnt lgkmcnt(0)"); pv(3)
    for ks in range(4): scale(ks)
    a("L_vdone:")
    og = OS8
    a(f"""
v_cvt_pk_bf16_f32 v{og}, v{o}, v{o+1}
v_cvt_pk_bf16_f32 v{og+1}, v{o+2}, v{o+3}
v_cvt_pk_bf16_f32 v{og+4}, v{o+4}, v{o+5}
v_cvt_pk_bf16_f32 v{og+5}, v{o+6}, v{o+7}
buffer_store_dwordx4 {rng(og,4)}, v{vOst}, s[28:31], s{sOB} offen
buffer_store_dwordx4 {rng(og+4,4)}, v{vOst}, s[28:31], s{sOB} offen offset:64
""")
    setflag(F_OI)
    stage["flush"] = QFL + OFL
    ST_("o published")
    gg = B16; wb = A32
    if not nooi: waitflags(group=F_OI)
    if nooi:
        waitflags(single=F_W)
        for s_ in range(2):
            for tp in range(2):
                for hh in range(2):
                    a(f"ds_read_b64_tr_b16 {rng(wb+8*s_+4*tp+2*hh,2)}, v{vWOr+tp} offset:{s_*8192 + hh*1024}")
    a(f"""
buffer_load_dwordx4 {rng(gg,4)}, v{vOG}, s[28:31], s{sOG} offen sc1
buffer_load_dwordx4 {rng(gg+4,4)}, v{vOG}, s[28:31], s{sOG} offen offset:2048 sc1
""")
    if not nooi:
        waitflags(single=F_W)
        for s in range(2):
            for tp in range(2):
                for hh in range(2):
                    a(f"ds_read_b64_tr_b16 {rng(wb+8*s+4*tp+2*hh,2)}, v{vWOr+tp} offset:{s*8192 + hh*1024}")
    poll("o", [gg, gg+4], vOG, sOG, 0, [0, 2048], QFL + OFL)
    ST_("o gathered")
    e0 = va(); e1 = va(); u = A32 + 16; S = va(); oo = A32 + 24
    a(f"""
v_max_f32 v{M}, v{gg+2}, v{gg+6}
v_mov_b32 v{mt}, v{M}
v_lshlrev_b32 v{u}, 16, v{gg}
v_and_b32 v{u+1}, 0xffff0000, v{gg}
v_permlane16_swap_b32 v{M}, v{mt}
v_lshlrev_b32 v{u+2}, 16, v{gg+1}
v_max_f32 v{M}, v{M}, v{mt}
v_mov_b32 v{mt}, v{M}
v_and_b32 v{u+3}, 0xffff0000, v{gg+1}
v_lshlrev_b32 v{u+4}, 16, v{gg+4}
v_permlane32_swap_b32 v{M}, v{mt}
v_and_b32 v{u+5}, 0xffff0000, v{gg+4}
v_max_f32 v{M}, v{M}, v{mt}
v_lshlrev_b32 v{u+6}, 16, v{gg+5}
v_sub_f32 v{e0}, v{gg+2}, v{M}
v_sub_f32 v{e1}, v{gg+6}, v{M}
v_exp_f32 v{e0}, v{e0}
v_exp_f32 v{e1}, v{e1}
v_and_b32 v{u+7}, 0xffff0000, v{gg+5}
v_add_f32 v{S}, v{e0}, v{e1}
v_mul_f32 v{oo}, v{e0}, v{u}
v_mul_f32 v{oo+1}, v{e0}, v{u+1}
v_mov_b32 v{mt}, v{S}
v_mul_f32 v{oo+2}, v{e0}, v{u+2}
v_mul_f32 v{oo+3}, v{e0}, v{u+3}
v_permlane16_swap_b32 v{S}, v{mt}
v_fmac_f32 v{oo}, v{e1}, v{u+4}
v_fmac_f32 v{oo+1}, v{e1}, v{u+5}
v_add_f32 v{S}, v{S}, v{mt}
v_fmac_f32 v{oo+2}, v{e1}, v{u+6}
v_fmac_f32 v{oo+3}, v{e1}, v{u+7}
v_mov_b32 v{mt}, v{S}
v_permlane16_swap_b32 v{oo}, v{oo+1}
s_nop 0
v_permlane16_swap_b32 v{oo+2}, v{oo+3}
v_permlane32_swap_b32 v{S}, v{mt}
v_add_f32 v{oo}, v{oo}, v{oo+1}
v_add_f32 v{oo+2}, v{oo+2}, v{oo+3}
v_add_f32 v{S}, v{S}, v{mt}
s_nop 0
v_permlane32_swap_b32 v{oo}, v{oo+2}
v_rcp_f32 v{S}, v{S}
v_add_f32 v{oo}, v{oo}, v{oo+2}
v_mul_f32 v{oo}, v{oo}, v{S}
v_cvt_pk_bf16_f32 v{oo}, v{oo}, v{oo}
ds_write_b16 v{vOLw}, v{oo} offset:{OL}
""")
    setflag(F_O)
    a(f"s_add_u32 s{sT2}, s{sFG}, 65536\ns_mov_b32 s{sCnt}, {spin}")
    waitflags(group=F_O)
    ob = B16 + 8; y = C32; yg = E8
    a(f"""
ds_read_b128 {rng(ob,4)}, v{vOLr} offset:{OL}
ds_read_b128 {rng(ob+4,4)}, v{vOLr} offset:{OL+64}
""")
    for s in range(2):
        a(f"s_waitcnt lgkmcnt({1-s})")
        for tp in range(2):
            c = "0" if s == 0 else rng(y+4*tp,4)
            if ycoal: a(f"v_mfma_f32_16x16x32_bf16 {rng(y+4*tp,4)}, {rng(ob+4*s,4)}, {rng(wb+8*s+4*tp,4)}, {c}")
            else: a(f"v_mfma_f32_16x16x32_bf16 {rng(y+4*tp,4)}, {rng(wb+8*s+4*tp,4)}, {rng(ob+4*s,4)}, {c}")
    if ycoal:
        a(f"v_mov_b32 v{E8+3}, s{sTag}\ns_nop 6")
        for r in range(4): a(f"v_cndmask_b32 v{y+r}, v{y+r}, v{y+4+r}, s[{sG1}:{sG1+1}]")
        a(f"""v_perm_b32 v{yg}, v{y}, v{y+3}, s{sP0}
v_perm_b32 v{yg+1}, v{y+1}, v{y+3}, s{sP1}
v_perm_b32 v{yg+2}, v{y+2}, v{y+3}, s{sP2}
buffer_store_dwordx4 {rng(yg,4)}, v{vYst}, s[28:31], s{sYst} offen sc1""")
    else:
        a(f"v_mov_b32 v{E8+3}, s{sTag}\nv_mov_b32 v{E8+7}, s{sTag}\ns_nop 4")
        for tp in range(2):
            a(f"""v_perm_b32 v{yg+4*tp}, v{y+4*tp}, v{y+4*tp+3}, s{sP0}
v_perm_b32 v{yg+4*tp+1}, v{y+4*tp+1}, v{y+4*tp+3}, s{sP1}
v_perm_b32 v{yg+4*tp+2}, v{y+4*tp+2}, v{y+4*tp+3}, s{sP2}
buffer_store_dwordx4 {rng(yg+4*tp,4)}, v{vYst}, s[28:31], s{sYst} offen offset:{tp*64} sc1""")
    setflag(F_YI)
    ST_("y published")
    waitflags(group=F_YI)
    if not noflush:
        for x_ in QFL + OFL: a(x_)
    if dirty:
        a(f"s_lshl_b32 s{sT}, s2, 2\ns_add_u32 s{sT}, s{sT}, {W}\ns_mul_i32 s{sT}, s{sT}, {dirty*1024}\ns_add_u32 s{sT}, s{sT}, 0x800000\nv_lshlrev_b32 v{t0}, 4, v{l}")
        for i in range(dirty):
            a(f"buffer_store_dwordx4 {rng(C32,4)}, v{t0}, s[28:31], s{sT} offen\ns_add_u32 s{sT}, s{sT}, 1024")
    z = C32 + 24
    fg = C32 + 16
    FM = {0: ' sc1', 1: ' sc1 nt', 2: ' sc0 sc1', 3: ' sc0 sc1 nt'}[fmode]
    a(f"""s_cmp_lg_u32 {W}, 0
s_cbranch_scc1 L_fin
L_fpoll:
buffer_load_dwordx4 {rng(fg,4)}, v{vFG}, s[28:31], s{sFG} offen{FM}
buffer_load_dwordx4 {rng(fg+4,4)}, v{vFG}, s[28:31], s{sT2} offen{FM}
s_waitcnt vmcnt(0)
v_cmp_ne_u32 vcc, s{sTag}, v{fg+3}
v_cmp_ne_u32 s[{sa_tmp}:{sa_tmp+1}], s{sTag}, v{fg+7}
s_or_b64 vcc, vcc, s[{sa_tmp}:{sa_tmp+1}]
s_cbranch_vccz L_fok
{('s_sleep ' + str(fsleep)) if fsleep else 's_nop 0'}
s_sub_u32 s{sCnt}, s{sCnt}, 1
s_cbranch_scc0 L_fpoll
L_fok:""")
    ST_("final gathered")
    a(f"""
v_perm_b32 v{z+3}, v{fg}, v{fg+1}, s{sU0}
v_perm_b32 v{z+7}, v{fg+4}, v{fg+5}, s{sU0}
v_add_f32 v{z}, v{fg}, v{fg+4}
v_perm_b32 v{z+3}, v{z+3}, v{fg+2}, s{sU1}
v_perm_b32 v{z+7}, v{z+7}, v{fg+6}, s{sU1}
v_add_f32 v{z+1}, v{fg+1}, v{fg+5}
v_add_f32 v{z+2}, v{fg+2}, v{fg+6}
v_add_f32 v{z+3}, v{z+3}, v{z+7}
""")
    for ctl in ("quad_perm:[2,3,0,1]", "row_ror:4", "row_ror:8"):
        for r in range(4):
            a(f"v_add_f32_dpp v{z+r}, v{z+r}, v{z+r} {ctl} row_mask:0xf bank_mask:0xf")
    a(f"""
s_nop 0
v_permlane16_swap_b32 v{z}, v{z+1}
v_permlane16_swap_b32 v{z+2}, v{z+3}
s_nop 0
v_add_f32 v{z}, v{z}, v{z+1}
v_add_f32 v{z+2}, v{z+2}, v{z+3}
s_nop 1
v_permlane32_swap_b32 v{z}, v{z+2}
s_nop 0
v_add_f32 v{z}, v{z}, v{z+2}
v_cvt_pk_bf16_f32 v{z}, v{z}, v{z}
buffer_store_short v{z}, v{vOut}, s[32:35], 0 offen
s_cmp_lg_u32 s2, 0
s_cbranch_scc1 L_fin
v_mov_b32 v{t0}, s{sTag}
v_mov_b32 v{t1}, {WSB}
s_mov_b64 exec, 1
buffer_store_dword v{t0}, v{t1}, s[28:31], 0 offen sc1
s_mov_b64 exec, -1
L_fin:
""")
    a("s_branch L_tail" if stamp else "s_endpgm")
    for name, c in cold:
        for x_ in c: a(x_)
    a("; WARM_END")
    for c in colder:
        for x_ in c: a(x_)
    a("L_tail:")
    if stamp:
        a(f"s_mov_b32 s31, 0x20000\ns_mov_b32 s30, {WS_BYTES}")
    if amp >= 0:
        ST_("end")
        e = nst[0] - 1
        a(f"""
s_waitcnt lgkmcnt(0)
s_cmp_lg_u32 {W}, 0
s_cbranch_scc1 L_end
""")
        if ampglob:
            a(f"""
s_lshl_b32 s37, s2, 3
s_add_u32 s37, s37, {ST}
v_mov_b32 v{C32}, s{SB}
v_mov_b32 v{C32+1}, s{sTag}
v_mov_b32 v{t1}, 0
s_mov_b64 exec, 1
buffer_store_dwordx2 v[{C32}:{C32+1}], v{t1}, s[28:31], s37 offen sc1
s_mov_b64 exec, -1
""")
        a(f"""
s_cmp_lg_u32 s2, 0
s_cbranch_scc1 L_end
""")
        if ampglob:
            a(f"""
s_mov_b32 s37, {ST}
v_lshlrev_b32 v{t1}, 5, v{l}
L_ag:
buffer_load_dwordx4 v[{C32}:{C32+3}], v{t1}, s[28:31], s37 offen sc1
buffer_load_dwordx4 v[{C32+4}:{C32+7}], v{t1}, s[28:31], s37 offen offset:16 sc1
s_waitcnt vmcnt(0)
v_cmp_ne_u32 vcc, s{sTag}, v{C32+1}
v_cmp_ne_u32 s[40:41], s{sTag}, v{C32+3}
s_or_b64 vcc, vcc, s[40:41]
v_cmp_ne_u32 s[40:41], s{sTag}, v{C32+5}
s_or_b64 vcc, vcc, s[40:41]
v_cmp_ne_u32 s[40:41], s{sTag}, v{C32+7}
s_or_b64 vcc, vcc, s[40:41]
s_cbranch_vccnz L_ag
v_subrev_u32 v{C32}, s{SB}, v{C32}
v_subrev_u32 v{C32+2}, s{SB}, v{C32+2}
v_subrev_u32 v{C32+4}, s{SB}, v{C32+4}
v_subrev_u32 v{C32+6}, s{SB}, v{C32+6}
v_min_i32 v{C32}, v{C32}, v{C32+2}
v_min_i32 v{C32+4}, v{C32+4}, v{C32+6}
v_min_i32 v{C32}, v{C32}, v{C32+4}
s_nop 1
v_min_i32_dpp v{C32}, v{C32}, v{C32} row_ror:1 row_mask:0xf bank_mask:0xf
s_nop 1
v_min_i32_dpp v{C32}, v{C32}, v{C32} row_ror:2 row_mask:0xf bank_mask:0xf
s_nop 1
v_min_i32_dpp v{C32}, v{C32}, v{C32} row_ror:4 row_mask:0xf bank_mask:0xf
s_nop 1
v_min_i32_dpp v{C32}, v{C32}, v{C32} row_ror:8 row_mask:0xf bank_mask:0xf
s_nop 1
v_readlane_b32 s36, v{C32}, 0
v_readlane_b32 s37, v{C32}, 16
v_readlane_b32 s38, v{C32}, 32
v_readlane_b32 s39, v{C32}, 48
s_nop 3
s_min_i32 s36, s36, s37
s_min_i32 s38, s38, s39
s_min_i32 s36, s36, s38
s_sub_u32 s37, s{SB+2*amp}, s{SB}
s_sub_u32 s37, s37, s36
s_memrealtime s[40:41]
s_waitcnt lgkmcnt(0)
s_mul_i32 s37, s37, {ampk}
s_add_u32 s37, s37, s40
""")
        else:
            a(f"""
s_sub_u32 s37, s{SB+2*amp}, s{SB+2*ampj}
s_mul_i32 s37, s37, {ampk}
s_add_u32 s37, s37, s{SB+2*e}
""")
        a(f"""
L_amp:
s_memrealtime s[40:41]
s_waitcnt lgkmcnt(0)
s_cmp_lt_u32 s40, s37
s_cbranch_scc1 L_amp
""")
    elif stamp:
        ST_("end")
        n = nst[0]
        a(f"""
s_waitcnt lgkmcnt(0) vmcnt(0)
s_mul_i32 s4, s2, 8
s_add_u32 s4, s4, s3
s_lshl_b32 s4, s4, 6
s_add_u32 s4, s4, {ST}
v_mov_b32 v{t1}, 0
s_mov_b64 exec, 1
""")
        for i in range(n):
            a(f"v_mov_b32 v{t0}, s{SB+2*i}\nbuffer_store_dword v{t0}, v{t1}, s[28:31], s4 offen offset:{4*i}\ns_nop 0")
    a("L_end:\ns_endpgm")
    lines = a.L
    nh = 0
    if warm:
        if warml: lines, nh, have = hops.insert_multi(lines, nparts, [("; LWARM_START", "; LWARM_END"), ("; WARM_START", "; WARM_END")])
        else: lines, nh, have = hops.insert(lines, nparts)
        assert have == nparts, (have, nparts)
    body = "\n".join(lines) + "\n"
    assert (not stamp) or (sa.hi <= SB and ls.hi <= SB), (sa.hi, ls.hi)
    nv = max(va.hi, lv.hi)
    s = header([f"; @launch grid=(256,1,1) block=(320,1,1) lds={LDS_BYTES}"]) + kernel_begin(KNAME) + body + RODATA + descriptor(KNAME, nv, 102 if stamp else max(sa.hi, ls.hi))
    errs = haz.check(body)
    for e in errs: print("HAZ", e)
    return s, nv, sa.hi, nh, stn
if __name__ == "__main__":
    out = sys.argv[1]
    kw = {}
    for x in sys.argv[2:]:
        k, v = x.split("=")
        if k in ("warm", "prio", "holdwo", "rot", "rotq", "ilv", "ycoal", "xnt", "xfirst", "pvp"): kw[k] = (v == "1")
        elif k == "nt": kw[k] = (" " + v if v else "")
        else: kw[k] = int(v)
    s, nv, ns, nh, stn = gen(**kw)
    open(out, "w").write(s)
    print("vgprs", nv, "sgprs", ns, "hops", nh, "lds", LDS_BYTES, stn)
```

```python
import sys, struct
sys.path.insert(0, "my")
from ag import *
import haz, hops

import os
WSB = int(os.environ.get('WSB', '0'), 0)
QF = WSB + 0x10000
OF = WSB + 0x80000
OX = WSB + 0x100000
SOFF = 0x200000
ST = 0x400000
WS_BYTES = 268435456
QL = 0
PL = QL + 1280
SL = PL + 1024
OL = SL + 64
FL = 3136
JK = FL + 160
XL = 3840; WQ = XL + 1024; KL = WQ + 16384; VL = KL + 32768
import os
if os.environ.get('ALIAS', '0') == '1':
    WO = WQ; LDS_BYTES = VL + 32768
else:
    WO = VL + 32768; LDS_BYTES = WO + 16384
assert OL + 768 <= FL and JK + 416 <= XL and XL % 256 == 0 and WQ % 256 == 0
F_Q, F_P, F_O, F_GI, F_QI, F_GOK, F_OI, F_YI, F_GO, F_K, F_V, F_W = 0, 16, 32, 48, 64, 80, 96, 112, 128, 132, 136, 140
CSC = 0.08838834764831845 * 1.4426950408889634
def f32(x): return "0x%08x" % struct.unpack("<I", struct.pack("<f", x))[0]
DOC = """;
; Sliding-window GQA decode (q-proj -> attention over the last 1024 keys -> out-proj), one launch.
; Wave 4 = loader: streams wq/x/K/V/wo tiles HBM -> LDS with LDS-DMA (nt), a bounded number in flight.
; Hand-offs between workgroups: 16-byte granules {payload, tag} in d_ws; tag = LCG(epoch word read from d_ws at entry),
; first copy alternates with the second, so the result does not depend on placement.  Step 7 uses sc1 only.
; Intra-workgroup hand-offs use LDS flag words.  The s_cbranch_execz chain (L_hopN) is only walked with EXEC = 0 by
; the idle compute waves at start to pull the code into the instruction cache; it is never taken otherwise.
"""
class V:
    def __init__(s, n=0): s.n = n; s.hi = n
    def __call__(s, cnt=1, align=1):
        s.n = (s.n + align - 1) // align * align
        r = s.n; s.n += cnt; s.hi = max(s.hi, s.n)
        return r
def rng(r, n): return f"v[{r}:{r+n-1}]"
OOB = "0x7ffffff0"

def gen(stamp=False, nt=" nt", hold=0, kx=32, nmid=32, lgo=60, holdwo=False, rot=True, rotq=True, fd=1, warml=0, fmode=0, pvp=True, lwo=0, fsleep=0, nooi=0, n1p=0, noflush=0, sameS=0, dirty=0, cqx=0, xnt=False, xfirst=False, ilv=True, ycoal=True, wthr=2000, n3=0, n2=0, N=24, spin=100000, nf=64, amp=-1, ampk=10, ampglob=0, ampj=0, warm=True, pt=1, nparts=4, prio=True, step=2):
    if amp >= 0: stamp = True
    a = A(); va = V(1); sa = V(36)
    l = va(); t0 = va(); t1 = va(); t2 = va(); t3 = va()
    nst = [0]; stn = []
    SB = 74 if pt == 12 else 72
    def ST_(label):
        if stamp and (stamp != 2 or label in ('entry', 'end')):
            i = nst[0]; nst[0] += 1; stn.append(label)
            assert i < (14 if pt == 12 else 15)
            a(f"s_memrealtime s[{SB+2*i}:{SB+1+2*i}]")
    W, G, R, B, C = "s3", "s4", "s5", "s6", "s7"
    sT = sa(); sT2 = sa(); sWin = sa()
    a(f"""
s_cmp_ge_u32 s2, 256
s_cbranch_scc1 L_end
s_load_dwordx2 s[20:21], s[0:1], 24
s_load_dwordx2 s[8:9], s[0:1], 0
s_load_dwordx2 s[12:13], s[0:1], 8
s_load_dwordx2 s[28:29], s[0:1], 56
s_load_dwordx2 s[16:17], s[0:1], 16
s_load_dwordx2 s[24:25], s[0:1], 32
s_load_dwordx2 s[32:33], s[0:1], 40
""")
    ST_("entry")
    a(f"""
v_lshrrev_b32 v{t0}, 6, v0
v_and_b32 v{l}, 63, v0
s_and_b32 {G}, s2, 7
v_readfirstlane_b32 {W}, v{t0}
s_lshr_b32 {R}, s2, 3
s_lshr_b32 {B}, {R}, 3
s_and_b32 {C}, {R}, 7
s_mov_b32 s23, 0x20000
v_lshrrev_b32 v{t0}, 4, v{l}
v_and_b32 v{t1}, 15, v{l}
""")
    if stamp: a(f"s_mov_b32 s31, s23\ns_mov_b32 s30, {WS_BYTES}\ns_mov_b32 s35, s23\ns_movk_i32 s34, 0x1000")
    a(f"""
s_cmp_lt_u32 {W}, 4
s_cbranch_scc1 L_compute
""")
    lv = V(va.n); ls = V(sa.n)
    vWQ = lv(2); vX = lv(); vK = lv(4); vV = lv(2); vWO = lv(2); vLF = lv(); vOne = lv()
    sWQ = ls(); sX = ls(); sK = ls(); sWO = ls(); lT = ls(); sWQb0 = ls()
    if prio: a("s_setprio 2")
    a(f"""
s_mov_b32 s22, 0x400000
v_and_b32 v{t2}, 7, v{l}
v_lshlrev_b32 v{t3}, 1, v{t0}
v_and_b32 v{vX}, 2, v{t3}
v_xor_b32 v{t2}, v{t2}, v{vX}
v_lshlrev_b32 v{t2}, 4, v{t2}
v_lshrrev_b32 v{vX}, 3, v{l}
v_lshl_add_u32 v{vWQ}, v{vX}, 13, v{t2}
v_xor_b32 v{vWQ+1}, 64, v{vWQ}
s_lshl_b32 s{sWQb0}, {G}, 3
s_xor_b32 s{lT}, {C}, {cqx}
s_add_u32 s{sWQb0}, s{sWQb0}, s{lT}
s_lshl_b32 s{sWQb0}, s{sWQb0}, 7
s_lshl_b32 s{lT}, {B}, 20
s_add_u32 s{sWQb0}, s{sWQb0}, s{lT}
s_mov_b32 s11, s23
s_movk_i32 s10, 0x1000
s_mov_b32 s15, s23
s_mov_b32 s14, 0x2000000
; x voffset: (l>>4)*1024 + ((l&15) ^ (4*(l>>4)))*16
v_lshlrev_b32 v{t2}, 2, v{t0}
v_xor_b32 v{t2}, v{t1}, v{t2}
v_lshlrev_b32 v{t2}, 4, v{t2}
v_lshl_add_u32 v{vX}, v{t0}, 10, v{t2}
s_lshl_b32 s{sX}, {B}, 8
""")
    seq = []
    sRho = ls(); sJ = ls(); sWQb = sWQb0
    for i in range(16):
        pre = []
        if i % 4 == 0:
            j_ = i // 4
            if rotq:
                pre += [f"s_add_u32 s{sJ}, {B}, {j_}", f"s_and_b32 s{sJ}, s{sJ}, 3", f"s_lshl_b32 s{lT}, s{sJ}, 18", f"s_add_u32 s{sWQ}, s{sWQb}, s{lT}",
                        f"s_lshl_b32 s{lT}, s{sJ}, 12", f"s_add_u32 m0, s{lT}, {WQ}"]
            else:
                pre += [f"s_add_u32 s{sWQ}, s{sWQb}, {j_ << 18}", f"s_mov_b32 m0, {WQ + j_*4096}"]
            pre.append("s_nop 0")
        else:
            pre.append(f"s_add_u32 s{sWQ}, s{sWQ}, {65536 - 1024}")
        seq.append((pre, f"buffer_load_dwordx4 v{vWQ + (i & 1)}, s[20:23], s{sWQ} offen offset:{(i%4)*1024}{nt} lds"))
    seq.append(([f"s_movk_i32 m0, {XL}", "s_nop 0"], f"buffer_load_dwordx4 v{vX}, s[8:11], s{sX} offen{' nt' if xnt else ''} lds"))
    if xfirst: seq.insert(0, seq.pop())
    kpre = f"""; K voffsets: (l>>4)*256 + ((l&15)^(l>>4))*16  ^ (64*i)
v_xor_b32 v{t2}, v{t1}, v{t0}
v_lshlrev_b32 v{t2}, 4, v{t2}
v_lshl_add_u32 v{vK}, v{t0}, 8, v{t2}
v_xor_b32 v{vK+1}, 64, v{vK}
v_xor_b32 v{vK+2}, 0x80, v{vK}
v_xor_b32 v{vK+3}, 0xc0, v{vK}
; flag address vgpr: lane0 -> FL, else JK + 4*l
v_lshlrev_b32 v{t2}, 2, v{l}
v_add_u32 v{t2}, {JK}, v{t2}
v_cmp_eq_u32 vcc, 0, v{l}
v_mov_b32 v{vLF}, {FL}
v_mov_b32 v{vOne}, 1
v_cndmask_b32 v{vLF}, v{t2}, v{vLF}, vcc
; window base = (b*8+g)<<20 + 3072*256 + c*(32768 or 4096)
s_lshl_b32 s{sWin}, {B}, 3
s_add_u32 s{sWin}, s{sWin}, {G}
s_lshl_b32 s{sWin}, s{sWin}, 5
s_add_u32 s{sWin}, s{sWin}, 24
s_lshl_b32 s{sWin}, s{sWin}, 15
s_lshl_b32 s{sJ}, {C}, {12 if ilv else 15}
s_add_u32 s{sWin}, s{sWin}, s{sJ}
; rho*4096 : rho = (g + 2b) & 7
s_lshl_b32 s{sRho}, {B}, 1
s_add_u32 s{sRho}, s{sRho}, {G}
s_and_b32 s{sRho}, s{sRho}, {7 if rot else 0}
s_lshl_b32 s{sRho}, s{sRho}, 12""".split("\n")
    def grp(j_, ldsbase):
        if ilv:
            return [f"s_add_u32 s{sJ}, s{sRho}, {j_*4096}", f"s_and_b32 s{sJ}, s{sJ}, 0x7fff", f"s_mov_b32 m0, {ldsbase + j_*4096}", f"s_lshl_b32 s{sJ}, s{sJ}, 3", f"s_add_u32 s{sK}, s{sWin}, s{sJ}"]
        return [f"s_add_u32 s{sJ}, s{sRho}, {j_*4096}", f"s_and_b32 s{sJ}, s{sJ}, 0x7fff", f"s_add_u32 m0, s{sJ}, {ldsbase}", f"s_add_u32 s{sK}, s{sWin}, s{sJ}"]
    for i in range(32):
        pre = list(kpre) if i == 0 else []
        if i % 4 == 0: pre += grp(i // 4, KL)
        seq.append((pre, f"buffer_load_dwordx4 v{vK+i%4}, s[12:15], s{sK} offen offset:{(i%4)*1024}{nt} lds"))
    vpre = f"""s_mov_b32 s19, s23
s_mov_b32 s18, s14
; V voffset: (l>>4)*256 + ((l&15) ^ ((l>>4)<<1))*16 ; odd: ^128 ; WO: (l>>4)*1024 + same piece
v_xor_b32 v{t2}, v{t1}, v{t3}
v_lshlrev_b32 v{t2}, 4, v{t2}
v_lshl_add_u32 v{vV}, v{t0}, 8, v{t2}
v_xor_b32 v{vV+1}, 0x80, v{vV}
v_lshl_add_u32 v{vWO}, v{t0}, 10, v{t2}
v_xor_b32 v{vWO+1}, 0x80, v{vWO}
s_mov_b32 s27, s23
s_mov_b32 s26, s22
; WO soff = p<<16 + cg*256 ; p = g*8 + r/4 ; cg = r&3
s_lshr_b32 s{lT}, {R}, 2
s_lshl_b32 s{sWO}, {G}, 3
s_add_u32 s{sWO}, s{sWO}, s{lT}
s_lshl_b32 s{sWO}, s{sWO}, 8
s_and_b32 s{lT}, {R}, 3
s_add_u32 s{sWO}, s{sWO}, s{lT}
s_lshl_b32 s{sWO}, s{sWO}, 8""".split("\n")
    for i in range(32):
        pre = list(vpre) if i == 0 else []
        if i % 4 == 0: pre += grp(i // 4, VL)
        seq.append((pre, f"buffer_load_dwordx4 v{vV+(i&1)}, s[16:19], s{sK} offen offset:{(i%4)*1024}{nt} lds"))
    for i in range(16):
        pre = []
        if i == 0: pre += [f"s_mov_b32 m0, {WO}", "s_nop 0"]
        elif i % 4 == 0: pre.append("s_add_u32 m0, m0, 4096")
        if i: pre.append(f"s_add_u32 s{sWO}, s{sWO}, {4096 - 1024 if i % 4 else 4096 + 3072}")
        seq.append((pre, f"buffer_load_dwordx4 v{vWO+((i>>1)&1)}, s[24:27], s{sWO} offen offset:{(i%4)*1024}{nt} lds"))
    T = len(seq); assert T == 97
    def emit(k):
        pre, ld = seq[k]
        for p in pre: a(p)
        a(ld)
    for p in seq[0][0]: a(p)
    a("s_waitcnt lgkmcnt(0)")
    a(seq[0][1])
    for k in range(1, 17): emit(k)
    ST_("L: wq issued")
    if warml == 2: a("; LWARM_START")
    pre17, ld17 = seq[17]
    for p in pre17: a(p)
    n0 = 17 + kx
    if kx > 0:
        if hold: a(f"s_waitcnt vmcnt({17 - hold})")
        a(ld17)
        for k in range(18, n0):
            if n1p and k >= n1p: a(f"s_waitcnt vmcnt({n1p - 1})")
            emit(k)
    else:
        seq[17] = ([], ld17)
    ST_("L: K issued")
    if warml == 1: a("; LWARM_START")
    lfl = lv(4, 4)
    a(f"v_mov_b32 v{t2}, {FL}")
    a(f"s_waitcnt vmcnt({n0 - 17})\ns_barrier")
    ST_("L: wq landed")
    def lwait(name, off):
        a(f"""L_{name}:
ds_read_b128 v[{lfl}:{lfl+3}], v{t2} offset:{off}
s_waitcnt lgkmcnt(0)
v_and_b32 v{lfl}, v{lfl}, v{lfl+1}
v_and_b32 v{lfl+2}, v{lfl+2}, v{lfl+3}
v_and_b32 v{lfl}, v{lfl}, v{lfl+2}
v_cmp_eq_u32 vcc, 0, v{lfl}
s_cbranch_vccnz L_{name}""")
    vFA = lv()
    a(f"v_mov_b32 v{vFA}, {FL}")
    def lwait(name, off):
        a(f"""L_{name}:
ds_read_b128 v[{lfl}:{lfl+3}], v{vFA} offset:{off}
s_waitcnt lgkmcnt(0)
v_and_b32 v{lfl}, v{lfl}, v{lfl+1}
v_and_b32 v{lfl+2}, v{lfl+2}, v{lfl+3}
v_and_b32 v{lfl}, v{lfl}, v{lfl+2}
v_cmp_eq_u32 vcc, 0, v{lfl}
s_cbranch_vccnz L_{name}""")
    lwait("qi", F_QI)
    n1 = 49 + nmid
    for k in range(n0, n1):
        if n2: a(f"s_waitcnt vmcnt({n2 - 1})")
        emit(k)
    assert lgo <= n1 and n1 <= T
    a(f"s_waitcnt vmcnt({n1 - lgo})")
    a(f"ds_write_b32 v{vLF}, v{vOne} offset:{F_GO}")
    lwait("gi", F_GI)
    for k in range(n1, T):
        if k == 81 and holdwo: lwait("gok", F_GOK)
        if k == 81 and lwo: a(f"s_waitcnt vmcnt({81 - lwo})")
        if n3: a(f"s_waitcnt vmcnt({n3 - 1})")
        emit(k)
    if lgo < 49: a(f"s_waitcnt vmcnt({T - 49})\nds_write_b32 v{vLF}, v{vOne} offset:{F_K}")
    F_V1 = F_GOK
    tailev = ([(49 + nmid, F_V1)] if pvp else []) + [(81, F_V), (97, F_W)]
    for cnt, f in tailev:
        a(f"s_waitcnt vmcnt({T - cnt})\nds_write_b32 v{vLF}, v{vOne} offset:{f}")
    ST_("L: all landed")
    if warml: a("; LWARM_END")
    if stamp: a("s_branch L_fin")
    else: a("s_endpgm")
    a("L_compute:")
    g = va(); n16 = va(); n4 = va()
    sQB = sa(); sOB = sa(); sEp = sa(); sTag = sa(); vPT = va()
    a(f"""
s_mov_b32 s31, s23
s_mov_b32 s30, {WS_BYTES}
s_mov_b32 s35, s23
s_movk_i32 s34, 0x1000
s_lshl_b32 s{sQB}, {G}, 4
s_add_u32 s{sQB}, s{sQB}, {B}
s_lshl_b32 s{sQB}, s{sQB}, 11
s_xor_b32 s{sT}, {C}, {cqx}
s_lshl_b32 s{sT}, s{sT}, 8
s_add_u32 s{sQB}, s{sQB}, s{sT}
s_add_u32 s{sQB}, s{sQB}, {QF}
s_lshl_b32 s{sOB}, {B}, 3
s_add_u32 s{sOB}, s{sOB}, {G}
s_lshl_b32 s{sOB}, s{sOB}, 5
s_add_u32 s{sOB}, s{sOB}, {C}
s_lshl_b32 s{sOB}, s{sOB}, 9
s_add_u32 s{sOB}, s{sOB}, {OF}
""")
    vPTa = va()
    if pt in (1, 3, 7):
        a(f"""
s_mul_i32 s{sT}, {W}, 6
v_add_u32 v{t3}, s{sT}, v{l}
v_lshrrev_b32 v{t0}, 1, v{t3}
v_lshlrev_b32 v{t0}, 13, v{t0}
v_and_b32 v{t1}, 1, v{t3}
v_lshl_or_b32 v{t0}, v{t1}, 7, v{t0}
v_add_u32 v{t0}, s{sQB}, v{t0}
v_subrev_u32 v{t1}, 8, v{t3}
v_lshrrev_b32 v{t2}, 2, v{t1}
v_lshlrev_b32 v{t2}, 12, v{t2}
v_and_b32 v{t1}, 3, v{t1}
v_lshl_or_b32 v{t2}, v{t1}, 7, v{t2}
v_add_u32 v{t2}, s{sOB}, v{t2}
v_cmp_gt_u32 vcc, 8, v{t3}
v_mov_b32 v{t3}, {OOB}
s_nop 0
v_cndmask_b32 v{t0}, v{t2}, v{t0}, vcc
v_cmp_gt_u32 vcc, 6, v{l}
s_mov_b32 s{sT}, {WSB}
s_waitcnt lgkmcnt(0)
s_load_dword s{sEp}, s[28:29], s{sT}
v_cndmask_b32 v{vPTa}, v{t3}, v{t0}, vcc
""")
        if pt != 7: a(f"buffer_load_dword v{vPT}, v{vPTa}, s[28:31], 0 offen{' nt' if pt == 3 else ''}")
    else:
        a(f"s_mov_b32 s{sT}, {WSB}\ns_waitcnt lgkmcnt(0)\ns_load_dword s{sEp}, s[28:29], s{sT}" if WSB else f"s_waitcnt lgkmcnt(0)\ns_load_dword s{sEp}, s[28:29], 0")
        if pt in (10, 11, 12):
            sD = sa(); sO1 = sa(); sO2 = sa()
            a(f"s_lshl_b32 s{sT}, {W}, 13\ns_add_u32 s{sO1}, s{sQB}, s{sT}\ns_lshl_b32 s{sT}, {W}, 12\ns_add_u32 s{sO2}, s{sOB}, s{sT}")
            stp = 128 if pt == 11 else 64
            ypt = [f"s_load_dword s{sD}, s[28:29], s{sO1} offset:{o}" for o in range(0, 256, stp)] + [f"s_load_dword s{sD}, s[28:29], s{sO2} offset:{o}" for o in range(0, 512, stp)]
            if pt == 12:
                sO3 = sT2
                sO3 = sa()
                a(f"""s_and_b32 s{sO3}, {R}, 3
s_lshl_b32 s{sO3}, s{sO3}, 6
s_lshl_b32 s{sT}, {G}, 3
s_add_u32 s{sO3}, s{sO3}, s{sT}
s_lshr_b32 s{sT}, {R}, 2
s_add_u32 s{sO3}, s{sO3}, s{sT}
s_lshl_b32 s{sO3}, s{sO3}, 2
s_add_u32 s{sO3}, s{sO3}, {W}
s_lshl_b32 s{sO3}, s{sO3}, 9
s_add_u32 s{sO3}, s{sO3}, {OX + SOFF}""")
                ypt += [f"s_load_dword s{sD}, s[28:29], s{sO3} offset:{o}" for o in range(0, 512, 64)]
        if pt in (8, 9):
            sD = sa(); sO1 = sa()
            a(f"s_lshl_b32 s{sT}, {W}, 13\ns_add_u32 s{sO1}, s{sQB}, s{sT}")
            for o in range(0, 256, 64): a(f"s_load_dword s{sD}, s[28:29], s{sO1} offset:{o}")
            a(f"s_lshl_b32 s{sT}, {W}, 12\ns_add_u32 s{sO1}, s{sOB}, s{sT}")
            for o in range(0, 512, 64): a(f"s_load_dword s{sD}, s[28:29], s{sO1} offset:{o}")
            if pt == 9:
                a(f"""s_and_b32 s{sO1}, {R}, 3
s_lshl_b32 s{sO1}, s{sO1}, 6
s_lshl_b32 s{sT}, {G}, 3
s_add_u32 s{sO1}, s{sO1}, s{sT}
s_lshr_b32 s{sT}, {R}, 2
s_add_u32 s{sO1}, s{sO1}, s{sT}
s_lshl_b32 s{sO1}, s{sO1}, 2
s_add_u32 s{sO1}, s{sO1}, {W}
s_lshl_b32 s{sO1}, s{sO1}, 9
s_add_u32 s{sO1}, s{sO1}, {OX + SOFF}""")
                ypt = [f"s_load_dword s{sD}, s[28:29], s{sO1} offset:{o}" for o in range(0, 512, 64)]
        if pt in (2, 4, 6):
            a(f"""
s_lshl_b32 s{sT}, {W}, 12
s_add_u32 s{sT}, s{sT}, s{sOB}
v_lshlrev_b32 v{t0}, 7, v{l}
v_add_u32 v{t0}, s{sT}, v{t0}
v_cmp_gt_u32 vcc, 4, v{l}
v_mov_b32 v{t3}, {OOB}
s_nop 0
v_cndmask_b32 v{vPTa}, v{t3}, v{t0}, vcc
""")
    if warm:
        a("s_mov_b64 exec, 0")
        for p in range(1, nparts):
            a(f"s_cmp_eq_u32 {W}, {p}\ns_cbranch_scc1 HOP_P{p}")
        a("s_branch HOP_P0\nL_warm_done:\ns_mov_b64 exec, -1")
    a("; WARM_START")
    sP = sa(); sCG = sa(); sR4 = sa()
    vXr = va(4); vWQr = va(); vKr = va(4); vVr = va(2); vWOr = va(2)
    vQst = va(); vG = va(); sG = sa(); vQLw = va(); vQLr = va()
    vPw = va(); vPr = va(); vSw = va(); vSr = va()
    vOst = va(); vOG = va(); sOG = sa(); vOLw = va(); vOLr = va()
    vYst = va(); sYst = sa(); vFG = va(); sFG = sa(); vOut = va()
    vFw = va(); vFr = va(); vOne_c = va()
    sCsc = sa(); sP0 = sa(); sP1 = sa(); sP2 = sa(); sU0 = sa(); sU1 = sa(); sM4 = sa(2, 2); sG1 = sa(2, 2); sCnt = sa()
    a(f"""
v_lshrrev_b32 v{g}, 4, v{l}
v_and_b32 v{n16}, 15, v{l}
v_and_b32 v{n4}, 3, v{l}
v_lshlrev_b32 v{t2}, 2, v{l}
v_mov_b32 v{t3}, 0
ds_write_b32 v{t2}, v{t3} offset:{FL}
v_add_u32 v{t2}, {JK}, v{t2}
s_lshl_b32 s{sT}, {W}, 2
s_add_u32 s{sT}, s{sT}, {FL}
v_mov_b32 v{vFw}, s{sT}
v_cmp_eq_u32 vcc, 0, v{l}
v_mov_b32 v{vFr}, {FL}
v_mov_b32 v{vOne_c}, 1
v_cndmask_b32 v{vFw}, v{t2}, v{vFw}, vcc
; p = g*8 + r/4 ; cg = r&3
s_lshr_b32 s{sR4}, {R}, 2
s_lshl_b32 s{sP}, {G}, 3
s_add_u32 s{sP}, s{sP}, s{sR4}
s_and_b32 s{sCG}, {R}, 3
v_lshlrev_b32 v{t2}, 2, v{n4}
v_xor_b32 v{t2}, v{g}, v{t2}
v_lshlrev_b32 v{t2}, 4, v{t2}
v_lshl_add_u32 v{t2}, v{n4}, 8, v{t2}
v_add_u32 v{vXr}, {XL}, v{t2}
v_xor_b32 v{vXr+1}, 64, v{vXr}
v_xor_b32 v{vXr+2}, 0x80, v{vXr}
v_xor_b32 v{vXr+3}, 0xc0, v{vXr}
v_bfe_u32 v{t0}, v{l}, 2, 2
v_lshl_add_u32 v{t2}, v{g}, 3, v{t0}
v_lshlrev_b32 v{t2}, 7, v{t2}
v_lshl_add_u32 v{t2}, v{n4}, 3, v{t2}
v_lshrrev_b32 v{t3}, 1, v{t0}
v_and_b32 v{t1}, 1, v{g}
v_lshl_or_b32 v{t3}, v{t1}, 1, v{t3}
v_xor_b32 v{t3}, {W}, v{t3}
v_lshl_add_u32 v{t2}, v{t3}, 5, v{t2}
v_add_u32 v{vWQr}, {WQ}, v{t2}
s_lshl_b32 s{sT}, {W}, 13
s_add_u32 s{sT}, s{sT}, {KL}
v_xor_b32 v{t2}, v{g}, v{n16}
v_lshlrev_b32 v{t2}, 4, v{t2}
v_lshl_add_u32 v{t2}, v{n16}, 8, v{t2}
v_add_u32 v{vKr}, s{sT}, v{t2}
v_xor_b32 v{vKr+1}, 64, v{vKr}
v_xor_b32 v{vKr+2}, 0x80, v{vKr}
v_xor_b32 v{vKr+3}, 0xc0, v{vKr}
v_lshl_add_u32 v{t2}, v{g}, 2, v{t0}
v_lshlrev_b32 v{t2}, 8, v{t2}
v_lshl_add_u32 v{t2}, v{n4}, 3, v{t2}
v_lshl_or_b32 v{t3}, v{t1}, 2, v{t0}
s_lshl_b32 s{sT}, {W}, 1
v_xor_b32 v{t3}, s{sT}, v{t3}
v_lshl_add_u32 v{t2}, v{t3}, 5, v{t2}
v_add_u32 v{vVr}, {VL}, v{t2}
v_xor_b32 v{vVr+1}, 32, v{vVr}
v_lshl_add_u32 v{t2}, v{g}, 3, v{t0}
v_lshlrev_b32 v{t2}, 8, v{t2}
v_lshl_add_u32 v{t2}, v{n4}, 3, v{t2}
v_lshl_add_u32 v{t2}, v{t3}, 5, v{t2}
v_add_u32 v{vWOr}, {WO}, v{t2}
v_xor_b32 v{vWOr+1}, 32, v{vWOr}
v_cmp_gt_u32 vcc, 4, v{n16}
v_mov_b32 v{t3}, {OOB}
s_lshl_b32 s{sT}, {W}, 6
v_lshlrev_b32 v{t2}, 4, v{g}
v_add_u32 v{t0}, s{sT}, v{t2}
v_lshl_add_u32 v{t0}, v{n16}, 13, v{t0}
v_cndmask_b32 v{vQst}, v{t3}, v{t0}, vcc
s_lshl_b32 s{sT}, {W}, 7
v_add_u32 v{t2}, s{sT}, v{t2}
v_lshl_add_u32 v{t0}, v{n16}, 12, v{t2}
v_cndmask_b32 v{vOst}, v{t3}, v{t0}, vcc
v_lshl_add_u32 v{t0}, v{n16}, 9, v{t2}
v_cndmask_b32 v{vYst}, v{t3}, v{t0}, vcc
YCOAL_ADDR
v_lshrrev_b32 v{t0}, 5, v{l}
v_and_b32 v{t1}, 31, v{l}
v_lshlrev_b32 v{t2}, 4, v{t1}
v_lshl_add_u32 v{vG}, v{t0}, 12, v{t2}
s_lshl_b32 s{sG}, {G}, 2
s_add_u32 s{sG}, s{sG}, {B}
s_lshl_b32 s{sG}, s{sG}, 4
s_add_u32 s{sG}, s{sG}, {W}
s_lshl_b32 s{sG}, s{sG}, 9
s_add_u32 s{sG}, s{sG}, {QF}
s_mul_i32 s{sT}, {W}, 320
v_lshlrev_b32 v{t2}, 3, v{t1}
v_lshl_add_u32 v{t2}, v{t0}, 2, v{t2}
v_add_u32 v{vQLw}, s{sT}, v{t2}
v_mul_u32_u24 v{t2}, 320, v{n4}
v_lshl_add_u32 v{vQLr}, v{g}, 4, v{t2}
v_lshlrev_b32 v{t2}, 6, v{n4}
v_lshl_add_u32 v{vPr}, v{g}, 4, v{t2}
s_lshl_b32 s{sT}, {W}, 8
v_add_u32 v{vPw}, s{sT}, v{vPr}
v_lshlrev_b32 v{vSr}, 4, v{n4}
s_lshl_b32 s{sT}, {W}, 2
v_add_u32 v{vSw}, s{sT}, v{vSr}
v_lshlrev_b32 v{t2}, 9, v{g}
v_lshl_add_u32 v{vOG}, v{n16}, 4, v{t2}
s_lshl_b32 s{sOG}, {W}, 3
s_add_u32 s{sOG}, s{sOG}, {G}
s_lshl_b32 s{sOG}, s{sOG}, 2
s_add_u32 s{sOG}, s{sOG}, {B}
s_lshl_b32 s{sOG}, s{sOG}, 4
s_and_b32 s{sT}, s{sR4}, 1
s_add_u32 s{sOG}, s{sOG}, s{sT}
s_lshl_b32 s{sOG}, s{sOG}, 8
s_add_u32 s{sOG}, s{sOG}, {OF}
s_mul_i32 s{sT}, {W}, 192
v_lshlrev_b32 v{t2}, 3, v{n16}
v_lshl_add_u32 v{t2}, v{g}, 1, v{t2}
v_add_u32 v{vOLw}, s{sT}, v{t2}
v_mul_u32_u24 v{t2}, 192, v{n4}
v_lshl_add_u32 v{vOLr}, v{g}, 4, v{t2}
s_lshl_b32 s{sYst}, s{sCG}, 6
s_add_u32 s{sYst}, s{sYst}, s{sP}
s_lshl_b32 s{sYst}, s{sYst}, 11
s_add_u32 s{sYst}, s{sYst}, {OX + SOFF}
v_lshrrev_b32 v{t0}, 1, v{l}
v_and_b32 v{t1}, 1, v{l}
v_lshlrev_b32 v{t2}, 4, v{t1}
v_lshl_add_u32 v{vFG}, v{t0}, 11, v{t2}
s_lshl_b32 s{sFG}, s{sCG}, 12
s_add_u32 s{sFG}, s{sFG}, s{sP}
s_lshl_b32 s{sFG}, s{sFG}, 5
s_add_u32 s{sFG}, s{sFG}, {OX + SOFF}
YCOAL_OUT
v_cmp_gt_u32 vcc, 2, v{n16}
s_mov_b32 s{sCsc}, {f32(CSC)}
s_mov_b32 s{sP0}, 0x07060503
v_cndmask_b32 v{vOut}, v{t3}, v{t2}, vcc
s_mov_b32 s{sP1}, 0x07060502
s_mov_b32 s{sP2}, 0x07060501
s_mov_b32 s{sU0}, 0x04000c0c
s_mov_b32 s{sU1}, 0x0706000c
s_mov_b32 s{sM4}, 0x000f000f
s_mov_b32 s{sM4+1}, 0x000f000f
s_waitcnt lgkmcnt(0)
s_mul_i32 s{sTag}, s{sEp}, 1664525
s_add_u32 s{sTag}, s{sTag}, 1013904223
""")
    ya = f"""; coalesced y store: lanes < 32: w*512 + l*16
s_lshl_b32 s{sT}, {W}, 9
v_lshlrev_b32 v{t0}, 4, v{l}
v_add_u32 v{t0}, s{sT}, v{t0}
v_cmp_gt_u32 s[{sM4}:{sM4+1}], 32, v{l}
v_cmp_eq_u32 s[{sG1}:{sG1+1}], 1, v{g}
s_nop 0
v_cndmask_b32 v{vYst}, v{t3}, v{t0}, s[{sM4}:{sM4+1}]""" if ycoal else ""
    yo = (f"""; out voffset: g*1024 + (cg*128 + 2p' + (l&1))*2 for lanes n16<2 ; p' = p (0..63)
s_lshl_b32 s{sT}, s{sCG}, 6
s_add_u32 s{sT}, s{sT}, s{sP}
s_lshl_b32 s{sT}, s{sT}, 2
v_lshlrev_b32 v{t2}, 1, v{t1}
v_lshl_add_u32 v{t2}, v{g}, 10, v{t2}
v_add_u32 v{t2}, s{sT}, v{t2}""" if ycoal else f"""s_lshr_b32 s{sT}, s{sP}, 4
s_lshl_b32 s{sT}, s{sT}, 2
s_add_u32 s{sT}, s{sT}, s{sCG}
s_lshl_b32 s{sT}, s{sT}, 4
s_and_b32 s{sT2}, s{sP}, 15
s_add_u32 s{sT}, s{sT}, s{sT2}
s_lshl_b32 s{sT}, s{sT}, 4
v_lshlrev_b32 v{t2}, 3, v{t1}
v_lshl_add_u32 v{t2}, v{g}, 1, v{t2}
v_add_u32 v{t2}, s{sT}, v{t2}""")
    newL = []
    for ln in a.L:
        if "YCOAL_ADDR" in ln: newL += ["    " + x for x in ya.split("\n") if x]
        elif "YCOAL_OUT" in ln: newL += ["    " + x for x in yo.split("\n")]
        else: newL.append(ln)
    a.L = newL
    A32 = va(32, 4); B16 = va(16, 4); C32 = va(32, 4); E8 = va(8, 4); F8 = va(8, 4)
    ones = va(4, 4); fl = va(4, 4); fl1 = va(); QS4 = va(4, 4); OS8 = va(8, 4); sQS = sa(); sOS = sa(); sWcN = sa.n
    a(f"""
v_mov_b32 v{ones}, 0x3f803f80
v_mov_b32 v{ones+1}, 0x3f803f80
v_mov_b32 v{ones+2}, 0x3f803f80
v_mov_b32 v{ones+3}, 0x3f803f80
v_mov_b32 v{QS4+3}, s{sTag}
v_mov_b32 v{OS8+3}, s{sTag}
v_mov_b32 v{OS8+7}, s{sTag}
v_mov_b32 v{E8+3}, s{sTag}
v_mov_b32 v{E8+7}, s{sTag}
s_add_u32 s{sQS}, s{sQB}, {0 if sameS in (1, 2) else SOFF}
s_add_u32 s{sOS}, s{sOB}, {0 if sameS in (1, 3) else SOFF}
s_mov_b32 s{sCnt}, {spin}
s_movk_i32 s{sWcN}, {wthr}
""")
    if pt == 7: a(f"buffer_load_dword v{vPT}, v{vPTa}, s[28:31], 0 offen")
    lab = [0]
    def setflag(off): a(f"ds_write_b32 v{vFw}, v{vOne_c} offset:{off}")
    colder = []
    sWc = sa()
    stage = {"flush": []}
    def waitflags(group=None, single=None):
        lab[0] += 1; L = f"L_wf{lab[0]}"
        a(f"{L}:")
        if group is not None: a(f"ds_read_b128 {rng(fl,4)}, v{vFr} offset:{group}")
        if single is not None: a(f"ds_read_b32 v{fl1}, v{vFr} offset:{single}")
        a("s_waitcnt lgkmcnt(0)")
        if group is not None:
            a(f"v_min3_u32 v{fl}, v{fl}, v{fl+1}, v{fl+2}")
            if single is not None: a(f"v_min3_u32 v{fl}, v{fl}, v{fl+3}, v{fl1}")
            else: a(f"v_min_u32 v{fl}, v{fl}, v{fl+3}")
            r = fl
        else: r = fl1
        a(f"v_cmp_eq_u32 vcc, 0, v{r}\ns_cbranch_vccz {L}d\ns_sub_u32 s{sWc}, s{sWc}, 1\ns_cbranch_scc0 {L}\ns_branch {L}f\n{L}d:")
        colder.append([f"{L}f:"] + list(stage["flush"]) + [f"s_movk_i32 s{sWc}, {wthr}", f"s_branch {L}"])
    QFL = [f"buffer_store_dwordx4 {rng(QS4,4)}, v{vQst}, s[28:31], s{sQS} offen sc1"]
    OFL = [f"buffer_store_dwordx4 {rng(OS8,4)}, v{vOst}, s[28:31], s{sOS} offen sc1", f"buffer_store_dwordx4 {rng(OS8+4,4)}, v{vOst}, s[28:31], s{sOS} offen offset:64 sc1"]
    assert sWc == sWcN
    xb = A32; wa = A32 + 16; acc = C32
    a("s_waitcnt lgkmcnt(0)\ns_barrier")
    for s in range(4):
        a(f"ds_read_b128 {rng(xb+4*s,4)}, v{vXr+s}")
        a(f"ds_read_b64_tr_b16 {rng(wa+4*s,2)}, v{vWQr} offset:{s*4096}")
        a(f"ds_read_b64_tr_b16 {rng(wa+4*s+2,2)}, v{vWQr} offset:{s*4096 + 512}")
    for s in range(4):
        a(f"s_waitcnt lgkmcnt({3*(3-s)})")
        c = "0" if s == 0 else rng(acc,4)
        a(f"v_mfma_f32_16x16x32_bf16 {rng(acc,4)}, {rng(wa+4*s,4)}, {rng(xb+4*s,4)}, {c}")
    a(f"""
s_nop 7
v_perm_b32 v{QS4}, v{acc}, v{acc+3}, s{sP0}
v_perm_b32 v{QS4+1}, v{acc+1}, v{acc+3}, s{sP1}
v_perm_b32 v{QS4+2}, v{acc+2}, v{acc+3}, s{sP2}
buffer_store_dwordx4 {rng(QS4,4)}, v{vQst}, s[28:31], s{sQB} offen
""")
    setflag(F_QI)
    stage["flush"] = QFL
    if pt in (9, 10, 11, 12):
        for x_ in ypt: a(x_)
    if pt in (2, 6): a(f"buffer_load_dword v{vPT}, v{vPTa}, s[28:31], 0 offen" + (" nt" if pt == 2 else ""))
    ST_("q published")
    gq = F8
    waitflags(single=F_GO)
    ST_("GO")
    a(f"buffer_load_dwordx4 {rng(gq,4)}, v{vG}, s[28:31], s{sG} offen sc1")
    a(f"buffer_load_dwordx4 {rng(gq+4,4)}, v{vG}, s[28:31], s{sG} offen offset:2048 sc1")
    if pt == 4: a(f"buffer_load_dword v{vPT}, v{vPTa}, s[28:31], 0 offen nt")
    if pt == 13:
        dum = va(2, 2)
        a(f"buffer_load_dword v{dum}, v{vOG}, s[28:31], s{sOG} offen sc1")
        a(f"buffer_load_dword v{dum+1}, v{vOG}, s[28:31], s{sOG} offen offset:2048 sc1")
    if pt == 14:
        dum = va(2, 2)
        a(f"buffer_load_dword v{dum}, v{vOG}, s[28:31], s{sOG} offen sc1")
        a(f"buffer_load_dword v{dum+1}, v{vOG}, s[28:31], s{sOG} offen offset:2048 sc1")
        dum2 = va(2, 2)
        a(f"s_add_u32 s{sT2}, s{sFG}, 65536")
        a(f"buffer_load_dword v{dum2}, v{vFG}, s[28:31], s{sFG} offen sc1")
        a(f"buffer_load_dword v{dum2+1}, v{vFG}, s[28:31], s{sT2} offen sc1")
    setflag(F_GI)
    ka = A32
    if lgo < 49: waitflags(single=F_K)
    for t in range(2):
        for s_ in range(4):
            a(f"ds_read_b128 {rng(ka+16*t+4*s_,4)}, v{vKr+s_} offset:{t*4096}")
    sa_tmp = sa(2, 2)
    cold = []
    def poll(name, regs, vaddr, soff, first_wait, offs, flush):
        a(f"s_waitcnt vmcnt({first_wait})\nL_{name}chk:")
        for i, r in enumerate(regs):
            if i == 0: a(f"v_cmp_ne_u32 vcc, s{sTag}, v{r+3}")
            else: a(f"v_cmp_ne_u32 s[{sa_tmp}:{sa_tmp+1}], s{sTag}, v{r+3}\ns_or_b64 vcc, vcc, s[{sa_tmp}:{sa_tmp+1}]")
        a(f"s_cbranch_vccnz L_{name}retry\nL_{name}ok:")
        c = [f"L_{name}retry:", f"s_sub_u32 s{sCnt}, s{sCnt}, 1", f"s_cbranch_scc1 L_{name}ok",
             f"s_cmp_gt_u32 s{sCnt}, {spin - nf}", f"s_cbranch_scc1 L_{name}re",
             f"s_cmp_lg_u32 s{sCnt}, {spin - nf}", f"s_cbranch_scc1 L_{name}tg"] + flush + [f"L_{name}tg:"] + ([] if (sameS == 1 or (sameS == 2 and name == "q") or (sameS == 3 and name == "o")) else [f"s_xor_b32 s{soff}, s{soff}, {SOFF}"]) + [f"L_{name}re:"]
        for r, o in zip(regs, offs):
            c.append(f"buffer_load_dwordx4 {rng(r,4)}, v{vaddr}, s[28:31], s{soff} offen offset:{o} sc1")
        c += ["s_waitcnt vmcnt(0)", f"s_branch L_{name}chk"]
        cold.append((name, c))
    poll("q", [gq, gq+4], vG, sG, {4: 1, 13: 2, 14: 4}.get(pt, 0), [0, 2048], QFL)
    if holdwo: setflag(F_GOK)
    ST_("q gathered")
    u = E8; qb = B16
    a(f"""
v_perm_b32 v{u}, v{gq}, v{gq+1}, s{sU0}
v_perm_b32 v{u+1}, v{gq+4}, v{gq+5}, s{sU0}
v_add_f32 v{u+4}, v{gq}, v{gq+4}
v_add_f32 v{u+6}, v{gq+2}, v{gq+6}
v_perm_b32 v{u}, v{u}, v{gq+2}, s{sU1}
v_perm_b32 v{u+1}, v{u+1}, v{gq+6}, s{sU1}
v_add_f32 v{u+5}, v{gq+1}, v{gq+5}
v_add_f32 v{u+7}, v{u}, v{u+1}
v_permlane32_swap_b32 v{u+4}, v{u+6}
s_nop 0
v_permlane32_swap_b32 v{u+5}, v{u+7}
v_add_f32 v{u+4}, v{u+4}, v{u+6}
v_add_f32 v{u+5}, v{u+5}, v{u+7}
v_cvt_pk_bf16_f32 v{u}, v{u+4}, v{u+5}
ds_write_b32 v{vQLw}, v{u} offset:{QL}
""")
    setflag(F_Q)
    waitflags(group=F_Q)
    for s in range(4):
        a(f"ds_read_b128 {rng(qb+4*s,4)}, v{vQLr} offset:{QL + s*64}")
    sc = C32
    for s in range(4):
        a(f"s_waitcnt lgkmcnt({3-s})")
        for t in range(2):
            c = "0" if s == 0 else rng(sc+4*t,4)
            a(f"v_mfma_f32_16x16x32_bf16 {rng(sc+4*t,4)}, {rng(ka+16*t+4*s,4)}, {rng(qb+4*s,4)}, {c}")
    m = va(2, 2); mt = va(); pk = E8
    sC2 = sa(2, 2)
    a(f"""
s_mov_b32 s{sC2}, s{sCsc}
s_mov_b32 s{sC2+1}, s{sCsc}
s_nop 4
v_max3_f32 v{m}, v{sc}, v{sc+1}, v{sc+2}
v_max3_f32 v{mt}, v{sc+3}, v{sc+4}, v{sc+5}
v_max3_f32 v{m}, v{m}, v{sc+6}, v{sc+7}
v_max_f32 v{m}, v{m}, v{mt}
v_mov_b32 v{mt}, v{m}
s_nop 1
v_permlane16_swap_b32 v{m}, v{mt}
v_max_f32 v{m}, v{m}, v{mt}
v_mov_b32 v{mt}, v{m}
s_nop 1
v_permlane32_swap_b32 v{m}, v{mt}
v_max_f32 v{m}, v{m}, v{mt}
v_mul_f32 v{m}, s{sCsc}, v{m}
""")
    for i in range(0, 8, 2):
        a(f"v_pk_fma_f32 v[{sc+i}:{sc+i+1}], v[{sc+i}:{sc+i+1}], s[{sC2}:{sC2+1}], v[{m}:{m+1}] op_sel_hi:[1,1,0] neg_lo:[0,0,1] neg_hi:[0,0,1]")
    a(f"s_mov_b64 exec, s[{sM4}:{sM4+1}]\nds_write_b32 v{vSw}, v{m} offset:{SL}\ns_mov_b64 exec, -1")
    for i in range(8):
        a(f"v_exp_f32 v{sc+i}, v{sc+i}")
        if i == 2: a(f"v_cvt_pk_bf16_f32 v{pk}, v{sc}, v{sc+1}")
        if i == 4: a(f"v_cvt_pk_bf16_f32 v{pk+1}, v{sc+2}, v{sc+3}")
        if i == 6: a(f"v_cvt_pk_bf16_f32 v{pk+2}, v{sc+4}, v{sc+5}")
    a(f"""
s_mov_b64 exec, s[{sM4}:{sM4+1}]
v_cvt_pk_bf16_f32 v{pk+3}, v{sc+6}, v{sc+7}
ds_write_b128 v{vPw}, {rng(pk,4)} offset:{PL}
s_mov_b64 exec, -1
""")
    setflag(F_P)
    a(f"s_mov_b32 s{sCnt}, {spin}")
    waitflags(group=F_P)
    ST_("P written")
    pb = B16; sv = F8; vaop = A32; D = C32
    lk = va(16, 4)
    M = va(); ff = va(4, 2); L = va(); Rr = va(); lse = va()
    a(f"ds_read_b128 {rng(sv,4)}, v{vSr} offset:{SL}")
    for ks in range(4):
        a(f"ds_read_b128 {rng(pb+4*ks,4)}, v{vPr} offset:{PL + ks*256}")
    a(f"ds_read_b32 v{fl1}, v{vFr} offset:{F_V}")
    a(f"""
s_waitcnt lgkmcnt(5)
v_max3_f32 v{M}, v{sv}, v{sv+1}, v{sv+2}
v_max_f32 v{M}, v{M}, v{sv+3}
v_sub_f32 v{ff}, v{sv}, v{M}
v_sub_f32 v{ff+1}, v{sv+1}, v{M}
v_sub_f32 v{ff+2}, v{sv+2}, v{M}
v_sub_f32 v{ff+3}, v{sv+3}, v{M}
""")
    for ks in range(4):
        a(f"s_waitcnt lgkmcnt({4-ks})")
        a(f"v_mfma_f32_16x16x32_bf16 {rng(lk+4*ks,4)}, {rng(ones,4)}, {rng(pb+4*ks,4)}, 0")
        a(f"v_exp_f32 v{ff+ks}, v{ff+ks}")
    def vread(ks):
        for tp in range(2):
            for e in range(2):
                a(f"ds_read_b64_tr_b16 {rng(vaop+8*ks+4*tp+2*e,2)}, v{vVr+tp} offset:{ks*8192 + e*4096}")
    def pv(ks):
        for tp in range(2):
            a(f"v_mfma_f32_16x16x32_bf16 {rng(D+8*ks+4*tp,4)}, {rng(vaop+8*ks+4*tp,4)}, {rng(pb+4*ks,4)}, 0")
    stats2 = f"""v_mul_f32 v{L}, v{ff}, v{lk}
v_fmac_f32 v{L}, v{ff+1}, v{lk+4}
v_fmac_f32 v{L}, v{ff+2}, v{lk+8}
v_fmac_f32 v{L}, v{ff+3}, v{lk+12}
v_rcp_f32 v{Rr}, v{L}
v_log_f32 v{lse}, v{L}
s_nop 0
v_mul_f32 v{ff}, v{ff}, v{Rr}
v_mul_f32 v{ff+1}, v{ff+1}, v{Rr}
v_mul_f32 v{ff+2}, v{ff+2}, v{Rr}
v_mul_f32 v{ff+3}, v{ff+3}, v{Rr}
v_add_f32 v{OS8+2}, v{lse}, v{M}
v_add_f32 v{OS8+6}, v{lse}, v{M}"""
    o = F8
    def scale(ks):
        base = ff + (ks & ~1); sel = ks & 1; fr = f"v[{base}:{base+1}]"
        for tp in range(2):
            for h in range(2):
                dst = rng(o+4*tp+2*h, 2); src = rng(D+8*ks+4*tp+2*h, 2)
                if ks == 0: a(f"v_pk_mul_f32 {dst}, {src}, {fr} op_sel:[0,{sel}] op_sel_hi:[1,{sel}]")
                else: a(f"v_pk_fma_f32 {dst}, {src}, {fr}, {dst} op_sel:[0,{sel},0] op_sel_hi:[1,{sel},1]")
    a(f"s_waitcnt lgkmcnt(0)\nv_cmp_ne_u32 vcc, 0, v{fl1}\ns_cbranch_vccnz L_vfast\ns_nop 3")
    if pvp:
        assert nmid == 24
        F_V1 = F_GOK
        waitflags(single=F_V1)
        vread(0); vread(1); vread(2)
        a(stats2)
        a("s_waitcnt lgkmcnt(8)"); pv(0)
        a("s_waitcnt lgkmcnt(4)"); pv(1)
        a("s_waitcnt lgkmcnt(0)"); pv(2)
        a("s_nop 1")
        scale(0); scale(1); scale(2)
        waitflags(single=F_V)
        ST_("V landed")
        vread(3)
        a("s_waitcnt lgkmcnt(0)"); pv(3)
        a("s_nop 7")
        scale(3)
        a("s_branch L_vdone")
    else:
        a(stats2)
        waitflags(single=F_V)
        ST_("V landed")
        vread(0); vread(1); vread(2)
        a("s_branch L_vjoin")
    a("L_vfast:")
    vread(0); vread(1); vread(2)
    a(stats2)
    a("L_vjoin:")
    a("s_waitcnt lgkmcnt(8)"); pv(0); vread(3)
    a("s_waitcnt lgkmcnt(8)"); pv(1)
    a("s_waitcnt lgkmcnt(4)"); pv(2)
    a("s_waitcnt lgkmcnt(0)"); pv(3)
    for ks in range(4): scale(ks)
    a("L_vdone:")
    og = OS8
    a(f"""
v_cvt_pk_bf16_f32 v{og}, v{o}, v{o+1}
v_cvt_pk_bf16_f32 v{og+1}, v{o+2}, v{o+3}
v_cvt_pk_bf16_f32 v{og+4}, v{o+4}, v{o+5}
v_cvt_pk_bf16_f32 v{og+5}, v{o+6}, v{o+7}
buffer_store_dwordx4 {rng(og,4)}, v{vOst}, s[28:31], s{sOB} offen
buffer_store_dwordx4 {rng(og+4,4)}, v{vOst}, s[28:31], s{sOB} offen offset:64
""")
    setflag(F_OI)
    stage["flush"] = QFL + OFL
    ST_("o published")
    gg = B16; wb = A32
    if not nooi: waitflags(group=F_OI)
    if nooi:
        waitflags(single=F_W)
        for s_ in range(2):
            for tp in range(2):
                for hh in range(2):
                    a(f"ds_read_b64_tr_b16 {rng(wb+8*s_+4*tp+2*hh,2)}, v{vWOr+tp} offset:{s_*8192 + hh*1024}")
    a(f"""
buffer_load_dwordx4 {rng(gg,4)}, v{vOG}, s[28:31], s{sOG} offen sc1
buffer_load_dwordx4 {rng(gg+4,4)}, v{vOG}, s[28:31], s{sOG} offen offset:2048 sc1
""")
    if not nooi:
        waitflags(single=F_W)
        for s in range(2):
            for tp in range(2):
                for hh in range(2):
                    a(f"ds_read_b64_tr_b16 {rng(wb+8*s+4*tp+2*hh,2)}, v{vWOr+tp} offset:{s*8192 + hh*1024}")
    poll("o", [gg, gg+4], vOG, sOG, 0, [0, 2048], QFL + OFL)
    ST_("o gathered")
    e0 = va(); e1 = va(); u = A32 + 16; S = va(); oo = A32 + 24
    a(f"""
v_max_f32 v{M}, v{gg+2}, v{gg+6}
v_mov_b32 v{mt}, v{M}
v_lshlrev_b32 v{u}, 16, v{gg}
v_and_b32 v{u+1}, 0xffff0000, v{gg}
v_permlane16_swap_b32 v{M}, v{mt}
v_lshlrev_b32 v{u+2}, 16, v{gg+1}
v_max_f32 v{M}, v{M}, v{mt}
v_mov_b32 v{mt}, v{M}
v_and_b32 v{u+3}, 0xffff0000, v{gg+1}
v_lshlrev_b32 v{u+4}, 16, v{gg+4}
v_permlane32_swap_b32 v{M}, v{mt}
v_and_b32 v{u+5}, 0xffff0000, v{gg+4}
v_max_f32 v{M}, v{M}, v{mt}
v_lshlrev_b32 v{u+6}, 16, v{gg+5}
v_sub_f32 v{e0}, v{gg+2}, v{M}
v_sub_f32 v{e1}, v{gg+6}, v{M}
v_exp_f32 v{e0}, v{e0}
v_exp_f32 v{e1}, v{e1}
v_and_b32 v{u+7}, 0xffff0000, v{gg+5}
v_add_f32 v{S}, v{e0}, v{e1}
v_mul_f32 v{oo}, v{e0}, v{u}
v_mul_f32 v{oo+1}, v{e0}, v{u+1}
v_mov_b32 v{mt}, v{S}
v_mul_f32 v{oo+2}, v{e0}, v{u+2}
v_mul_f32 v{oo+3}, v{e0}, v{u+3}
v_permlane16_swap_b32 v{S}, v{mt}
v_fmac_f32 v{oo}, v{e1}, v{u+4}
v_fmac_f32 v{oo+1}, v{e1}, v{u+5}
v_add_f32 v{S}, v{S}, v{mt}
v_fmac_f32 v{oo+2}, v{e1}, v{u+6}
v_fmac_f32 v{oo+3}, v{e1}, v{u+7}
v_mov_b32 v{mt}, v{S}
v_permlane16_swap_b32 v{oo}, v{oo+1}
s_nop 0
v_permlane16_swap_b32 v{oo+2}, v{oo+3}
v_permlane32_swap_b32 v{S}, v{mt}
v_add_f32 v{oo}, v{oo}, v{oo+1}
v_add_f32 v{oo+2}, v{oo+2}, v{oo+3}
v_add_f32 v{S}, v{S}, v{mt}
s_nop 0
v_permlane32_swap_b32 v{oo}, v{oo+2}
v_rcp_f32 v{S}, v{S}
v_add_f32 v{oo}, v{oo}, v{oo+2}
v_mul_f32 v{oo}, v{oo}, v{S}
v_cvt_pk_bf16_f32 v{oo}, v{oo}, v{oo}
ds_write_b16 v{vOLw}, v{oo} offset:{OL}
""")
    setflag(F_O)
    a(f"s_add_u32 s{sT2}, s{sFG}, 65536\ns_mov_b32 s{sCnt}, {spin}")
    waitflags(group=F_O)
    ob = B16 + 8; y = C32; yg = E8
    a(f"""
ds_read_b128 {rng(ob,4)}, v{vOLr} offset:{OL}
ds_read_b128 {rng(ob+4,4)}, v{vOLr} offset:{OL+64}
""")
    for s in range(2):
        a(f"s_waitcnt lgkmcnt({1-s})")
        for tp in range(2):
            c = "0" if s == 0 else rng(y+4*tp,4)
            if ycoal: a(f"v_mfma_f32_16x16x32_bf16 {rng(y+4*tp,4)}, {rng(ob+4*s,4)}, {rng(wb+8*s+4*tp,4)}, {c}")
            else: a(f"v_mfma_f32_16x16x32_bf16 {rng(y+4*tp,4)}, {rng(wb+8*s+4*tp,4)}, {rng(ob+4*s,4)}, {c}")
    if ycoal:
        a(f"v_mov_b32 v{E8+3}, s{sTag}\ns_nop 6")
        for r in range(4): a(f"v_cndmask_b32 v{y+r}, v{y+r}, v{y+4+r}, s[{sG1}:{sG1+1}]")
        a(f"""v_perm_b32 v{yg}, v{y}, v{y+3}, s{sP0}
v_perm_b32 v{yg+1}, v{y+1}, v{y+3}, s{sP1}
v_perm_b32 v{yg+2}, v{y+2}, v{y+3}, s{sP2}
buffer_store_dwordx4 {rng(yg,4)}, v{vYst}, s[28:31], s{sYst} offen sc1""")
    else:
        a(f"v_mov_b32 v{E8+3}, s{sTag}\nv_mov_b32 v{E8+7}, s{sTag}\ns_nop 4")
        for tp in range(2):
            a(f"""v_perm_b32 v{yg+4*tp}, v{y+4*tp}, v{y+4*tp+3}, s{sP0}
v_perm_b32 v{yg+4*tp+1}, v{y+4*tp+1}, v{y+4*tp+3}, s{sP1}
v_perm_b32 v{yg+4*tp+2}, v{y+4*tp+2}, v{y+4*tp+3}, s{sP2}
buffer_store_dwordx4 {rng(yg+4*tp,4)}, v{vYst}, s[28:31], s{sYst} offen offset:{tp*64} sc1""")
    setflag(F_YI)
    ST_("y published")
    waitflags(group=F_YI)
    if not noflush:
        for x_ in QFL + OFL: a(x_)
    if dirty:
        a(f"s_lshl_b32 s{sT}, s2, 2\ns_add_u32 s{sT}, s{sT}, {W}\ns_mul_i32 s{sT}, s{sT}, {dirty*1024}\ns_add_u32 s{sT}, s{sT}, 0x800000\nv_lshlrev_b32 v{t0}, 4, v{l}")
        for i in range(dirty):
            a(f"buffer_store_dwordx4 {rng(C32,4)}, v{t0}, s[28:31], s{sT} offen\ns_add_u32 s{sT}, s{sT}, 1024")
    z = C32 + 24
    fg = C32 + 16
    FM = {0: ' sc1', 1: ' sc1 nt', 2: ' sc0 sc1', 3: ' sc0 sc1 nt'}[fmode]
    a(f"""s_cmp_lg_u32 {W}, 0
s_cbranch_scc1 L_fin
L_fpoll:
buffer_load_dwordx4 {rng(fg,4)}, v{vFG}, s[28:31], s{sFG} offen{FM}
buffer_load_dwordx4 {rng(fg+4,4)}, v{vFG}, s[28:31], s{sT2} offen{FM}
s_waitcnt vmcnt(0)
v_cmp_ne_u32 vcc, s{sTag}, v{fg+3}
v_cmp_ne_u32 s[{sa_tmp}:{sa_tmp+1}], s{sTag}, v{fg+7}
s_or_b64 vcc, vcc, s[{sa_tmp}:{sa_tmp+1}]
s_cbranch_vccz L_fok
{('s_sleep ' + str(fsleep)) if fsleep else 's_nop 0'}
s_sub_u32 s{sCnt}, s{sCnt}, 1
s_cbranch_scc0 L_fpoll
L_fok:""")
    ST_("final gathered")
    a(f"""
v_perm_b32 v{z+3}, v{fg}, v{fg+1}, s{sU0}
v_perm_b32 v{z+7}, v{fg+4}, v{fg+5}, s{sU0}
v_add_f32 v{z}, v{fg}, v{fg+4}
v_perm_b32 v{z+3}, v{z+3}, v{fg+2}, s{sU1}
v_perm_b32 v{z+7}, v{z+7}, v{fg+6}, s{sU1}
v_add_f32 v{z+1}, v{fg+1}, v{fg+5}
v_add_f32 v{z+2}, v{fg+2}, v{fg+6}
v_add_f32 v{z+3}, v{z+3}, v{z+7}
""")
    for ctl in ("quad_perm:[2,3,0,1]", "row_ror:4", "row_ror:8"):
        for r in range(4):
            a(f"v_add_f32_dpp v{z+r}, v{z+r}, v{z+r} {ctl} row_mask:0xf bank_mask:0xf")
    a(f"""
s_nop 0
v_permlane16_swap_b32 v{z}, v{z+1}
v_permlane16_swap_b32 v{z+2}, v{z+3}
s_nop 0
v_add_f32 v{z}, v{z}, v{z+1}
v_add_f32 v{z+2}, v{z+2}, v{z+3}
s_nop 1
v_permlane32_swap_b32 v{z}, v{z+2}
s_nop 0
v_add_f32 v{z}, v{z}, v{z+2}
v_cvt_pk_bf16_f32 v{z}, v{z}, v{z}
buffer_store_short v{z}, v{vOut}, s[32:35], 0 offen
s_cmp_lg_u32 s2, 0
s_cbranch_scc1 L_fin
v_mov_b32 v{t0}, s{sTag}
v_mov_b32 v{t1}, {WSB}
s_mov_b64 exec, 1
buffer_store_dword v{t0}, v{t1}, s[28:31], 0 offen sc1
s_mov_b64 exec, -1
L_fin:
""")
    a("s_branch L_tail" if stamp else "s_endpgm")
    for name, c in cold:
        for x_ in c: a(x_)
    a("; WARM_END")
    for c in colder:
        for x_ in c: a(x_)
    a("L_tail:")
    if stamp:
        a(f"s_mov_b32 s31, 0x20000\ns_mov_b32 s30, {WS_BYTES}")
    if amp >= 0:
        ST_("end")
        e = nst[0] - 1
        a(f"""
s_waitcnt lgkmcnt(0)
s_cmp_lg_u32 {W}, 0
s_cbranch_scc1 L_end
""")
        if ampglob:
            a(f"""
s_lshl_b32 s37, s2, 3
s_add_u32 s37, s37, {ST}
v_mov_b32 v{C32}, s{SB}
v_mov_b32 v{C32+1}, s{sTag}
v_mov_b32 v{t1}, 0
s_mov_b64 exec, 1
buffer_store_dwordx2 v[{C32}:{C32+1}], v{t1}, s[28:31], s37 offen sc1
s_mov_b64 exec, -1
""")
        a(f"""
s_cmp_lg_u32 s2, 0
s_cbranch_scc1 L_end
""")
        if ampglob:
            a(f"""
s_mov_b32 s37, {ST}
v_lshlrev_b32 v{t1}, 5, v{l}
L_ag:
buffer_load_dwordx4 v[{C32}:{C32+3}], v{t1}, s[28:31], s37 offen sc1
buffer_load_dwordx4 v[{C32+4}:{C32+7}], v{t1}, s[28:31], s37 offen offset:16 sc1
s_waitcnt vmcnt(0)
v_cmp_ne_u32 vcc, s{sTag}, v{C32+1}
v_cmp_ne_u32 s[40:41], s{sTag}, v{C32+3}
s_or_b64 vcc, vcc, s[40:41]
v_cmp_ne_u32 s[40:41], s{sTag}, v{C32+5}
s_or_b64 vcc, vcc, s[40:41]
v_cmp_ne_u32 s[40:41], s{sTag}, v{C32+7}
s_or_b64 vcc, vcc, s[40:41]
s_cbranch_vccnz L_ag
v_subrev_u32 v{C32}, s{SB}, v{C32}
v_subrev_u32 v{C32+2}, s{SB}, v{C32+2}
v_subrev_u32 v{C32+4}, s{SB}, v{C32+4}
v_subrev_u32 v{C32+6}, s{SB}, v{C32+6}
v_min_i32 v{C32}, v{C32}, v{C32+2}
v_min_i32 v{C32+4}, v{C32+4}, v{C32+6}
v_min_i32 v{C32}, v{C32}, v{C32+4}
s_nop 1
v_min_i32_dpp v{C32}, v{C32}, v{C32} row_ror:1 row_mask:0xf bank_mask:0xf
s_nop 1
v_min_i32_dpp v{C32}, v{C32}, v{C32} row_ror:2 row_mask:0xf bank_mask:0xf
s_nop 1
v_min_i32_dpp v{C32}, v{C32}, v{C32} row_ror:4 row_mask:0xf bank_mask:0xf
s_nop 1
v_min_i32_dpp v{C32}, v{C32}, v{C32} row_ror:8 row_mask:0xf bank_mask:0xf
s_nop 1
v_readlane_b32 s36, v{C32}, 0
v_readlane_b32 s37, v{C32}, 16
v_readlane_b32 s38, v{C32}, 32
v_readlane_b32 s39, v{C32}, 48
s_nop 3
s_min_i32 s36, s36, s37
s_min_i32 s38, s38, s39
s_min_i32 s36, s36, s38
s_sub_u32 s37, s{SB+2*amp}, s{SB}
s_sub_u32 s37, s37, s36
s_memrealtime s[40:41]
s_waitcnt lgkmcnt(0)
s_mul_i32 s37, s37, {ampk}
s_add_u32 s37, s37, s40
""")
        else:
            a(f"""
s_sub_u32 s37, s{SB+2*amp}, s{SB+2*ampj}
s_mul_i32 s37, s37, {ampk}
s_add_u32 s37, s37, s{SB+2*e}
""")
        a(f"""
L_amp:
s_memrealtime s[40:41]
s_waitcnt lgkmcnt(0)
s_cmp_lt_u32 s40, s37
s_cbranch_scc1 L_amp
""")
    elif stamp:
        ST_("end")
        n = nst[0]
        a(f"""
s_waitcnt lgkmcnt(0) vmcnt(0)
s_mul_i32 s4, s2, 8
s_add_u32 s4, s4, s3
s_lshl_b32 s4, s4, 6
s_add_u32 s4, s4, {ST}
v_mov_b32 v{t1}, 0
s_mov_b64 exec, 1
""")
        for i in range(n):
            a(f"v_mov_b32 v{t0}, s{SB+2*i}\nbuffer_store_dword v{t0}, v{t1}, s[28:31], s4 offen offset:{4*i}\ns_nop 0")
    a("L_end:\ns_endpgm")
    lines = a.L
    nh = 0
    if warm:
        if warml: lines, nh, have = hops.insert_multi(lines, nparts, [("; LWARM_START", "; LWARM_END"), ("; WARM_START", "; WARM_END")])
        else: lines, nh, have = hops.insert(lines, nparts)
        assert have == nparts, (have, nparts)
    body = "\n".join(lines) + "\n"
    assert (not stamp) or (sa.hi <= SB and ls.hi <= SB), (sa.hi, ls.hi)
    nv = max(va.hi, lv.hi)
    s = header([f"; @launch grid=(256,1,1) block=(320,1,1) lds={LDS_BYTES}"], DOC) + kernel_begin(KNAME) + body + RODATA + descriptor(KNAME, nv, 102 if stamp else max(sa.hi, ls.hi))
    errs = haz.check(body)
    for e in errs: print("HAZ", e)
    return s, nv, sa.hi, nh, stn
if __name__ == "__main__":
    out = sys.argv[1]
    kw = {}
    for x in sys.argv[2:]:
        k, v = x.split("=")
        if k in ("warm", "prio", "holdwo", "rot", "rotq", "ilv", "ycoal", "xnt", "xfirst", "pvp"): kw[k] = (v == "1")
        elif k == "nt": kw[k] = (" " + v if v else "")
        else: kw[k] = int(v)
    s, nv, ns, nh, stn = gen(**kw)
    open(out, "w").write(s)
    print("vgprs", nv, "sgprs", ns, "hops", nh, "lds", LDS_BYTES, stn)
```

```python
import sys, struct
sys.path.insert(0, "my")
from ag import *
import haz, hops

import os
WSB = int(os.environ.get('WSB', '0'), 0)
QF = WSB + 0x10000
OF = WSB + 0x80000
OX = WSB + 0x100000
SOFF = 0x200000
ST = 0x400000
WS_BYTES = 268435456
QL = 0
PL = QL + 1280
SL = PL + 1024
OL = SL + 64
FL = 3136
JK = FL + 160
XL = 3840; WQ = XL + 1024; KL = WQ + 16384; VL = KL + 32768
import os
if os.environ.get('ALIAS', '0') == '1':
    WO = WQ; LDS_BYTES = VL + 32768
else:
    WO = VL + 32768; LDS_BYTES = WO + 16384
assert OL + 768 <= FL and JK + 416 <= XL and XL % 256 == 0 and WQ % 256 == 0
F_Q, F_P, F_O, F_GI, F_QI, F_GOK, F_OI, F_YI, F_GO, F_K, F_V, F_W = 0, 16, 32, 48, 64, 80, 96, 112, 128, 132, 136, 140
CSC = 0.08838834764831845 * 1.4426950408889634
def f32(x): return "0x%08x" % struct.unpack("<I", struct.pack("<f", x))[0]
DOC = """;
; Sliding-window GQA decode (q-proj -> attention over the last 1024 keys -> out-proj), one launch.
; Wave 4 = loader: streams wq/x/K/V/wo tiles HBM -> LDS with LDS-DMA (nt), a bounded number in flight.
; Hand-offs between workgroups: 16-byte granules {payload, tag} in d_ws; tag = LCG(epoch word read from d_ws at entry),
; first copy alternates with the second, so the result does not depend on placement.  Step 7 uses sc1 only.
; Intra-workgroup hand-offs use LDS flag words.  The s_cbranch_execz chain (L_hopN) is only walked with EXEC = 0 by
; the idle compute waves at start to pull the code into the instruction cache; it is never taken otherwise.
"""
class V:
    def __init__(s, n=0): s.n = n; s.hi = n
    def __call__(s, cnt=1, align=1):
        s.n = (s.n + align - 1) // align * align
        r = s.n; s.n += cnt; s.hi = max(s.hi, s.n)
        return r
def rng(r, n): return f"v[{r}:{r+n-1}]"
OOB = "0x7ffffff0"

def gen(stamp=False, nt=" nt", hold=0, kx=32, nmid=32, lgo=60, holdwo=False, rot=True, rotq=True, fd=1, b0e=0, gmin=0, warml=0, fmode=0, pvp=True, lwo=0, fsleep=0, nooi=0, n1p=0, noflush=0, sameS=0, dirty=0, cqx=0, xnt=False, xfirst=False, ilv=True, ycoal=True, wthr=2000, n3=0, n2=0, N=24, spin=100000, nf=64, amp=-1, ampk=10, ampglob=0, ampj=0, ampw=0, warm=True, pt=1, nparts=4, prio=True, step=2):
    if amp >= 0: stamp = True
    a = A(); va = V(1); sa = V(36)
    l = va(); t0 = va(); t1 = va(); t2 = va(); t3 = va()
    nst = [0]; stn = []
    SB = 74 if (pt == 12 or gmin) else 72
    def ST_(label):
        if stamp and (stamp != 2 or label in ('entry', 'end', 'end2')):
            i = nst[0]; nst[0] += 1; stn.append(label)
            assert i < (14 if (pt == 12 or gmin) else 15)
            a(f"s_memrealtime s[{SB+2*i}:{SB+1+2*i}]")
    W, G, R, B, C = "s3", "s4", "s5", "s6", "s7"
    sT = sa(); sT2 = sa(); sWin = sa()
    a(f"""
s_cmp_ge_u32 s2, 256
s_cbranch_scc1 L_end
s_load_dwordx2 s[20:21], s[0:1], 24
s_load_dwordx2 s[8:9], s[0:1], 0
s_load_dwordx2 s[12:13], s[0:1], 8
s_load_dwordx2 s[28:29], s[0:1], 56
s_load_dwordx2 s[16:17], s[0:1], 16
s_load_dwordx2 s[24:25], s[0:1], 32
s_load_dwordx2 s[32:33], s[0:1], 40
""")
    ST_("entry")
    a(f"""
v_lshrrev_b32 v{t0}, 6, v0
v_and_b32 v{l}, 63, v0
s_and_b32 {G}, s2, 7
v_readfirstlane_b32 {W}, v{t0}
s_lshr_b32 {R}, s2, 3
s_lshr_b32 {B}, {R}, 3
s_and_b32 {C}, {R}, 7
s_mov_b32 s23, 0x20000
v_lshrrev_b32 v{t0}, 4, v{l}
v_and_b32 v{t1}, 15, v{l}
""")
    if stamp: a(f"s_mov_b32 s31, s23\ns_mov_b32 s30, {WS_BYTES}\ns_mov_b32 s35, s23\ns_movk_i32 s34, 0x1000")
    a(f"""
s_cmp_lt_u32 {W}, 4
s_cbranch_scc1 L_compute
""")
    lv = V(va.n); ls = V(sa.n)
    vWQ = lv(2); vX = lv(); vK = lv(4); vV = lv(2); vWO = lv(2); vLF = lv(); vOne = lv()
    sWQ = ls(); sX = ls(); sK = ls(); sWO = ls(); lT = ls(); sWQb0 = ls()
    if prio: a("s_setprio 2")
    a(f"""
s_mov_b32 s22, 0x400000
v_and_b32 v{t2}, 7, v{l}
v_lshlrev_b32 v{t3}, 1, v{t0}
v_and_b32 v{vX}, 2, v{t3}
v_xor_b32 v{t2}, v{t2}, v{vX}
v_lshlrev_b32 v{t2}, 4, v{t2}
v_lshrrev_b32 v{vX}, 3, v{l}
v_lshl_add_u32 v{vWQ}, v{vX}, 13, v{t2}
v_xor_b32 v{vWQ+1}, 64, v{vWQ}
s_lshl_b32 s{sWQb0}, {G}, 3
s_xor_b32 s{lT}, {C}, {cqx}
s_add_u32 s{sWQb0}, s{sWQb0}, s{lT}
s_lshl_b32 s{sWQb0}, s{sWQb0}, 7
s_lshl_b32 s{lT}, {B}, 20
s_add_u32 s{sWQb0}, s{sWQb0}, s{lT}
s_mov_b32 s11, s23
s_movk_i32 s10, 0x1000
s_mov_b32 s15, s23
s_mov_b32 s14, 0x2000000
; x voffset: (l>>4)*1024 + ((l&15) ^ (4*(l>>4)))*16
v_lshlrev_b32 v{t2}, 2, v{t0}
v_xor_b32 v{t2}, v{t1}, v{t2}
v_lshlrev_b32 v{t2}, 4, v{t2}
v_lshl_add_u32 v{vX}, v{t0}, 10, v{t2}
s_lshl_b32 s{sX}, {B}, 8
""")
    seq = []
    sRho = ls(); sJ = ls(); sWQb = sWQb0
    for i in range(16):
        pre = []
        if i % 4 == 0:
            j_ = i // 4
            if rotq:
                pre += [f"s_add_u32 s{sJ}, {B}, {j_}", f"s_and_b32 s{sJ}, s{sJ}, 3", f"s_lshl_b32 s{lT}, s{sJ}, 18", f"s_add_u32 s{sWQ}, s{sWQb}, s{lT}",
                        f"s_lshl_b32 s{lT}, s{sJ}, 12", f"s_add_u32 m0, s{lT}, {WQ}"]
            else:
                pre += [f"s_add_u32 s{sWQ}, s{sWQb}, {j_ << 18}", f"s_mov_b32 m0, {WQ + j_*4096}"]
            pre.append("s_nop 0")
        else:
            pre.append(f"s_add_u32 s{sWQ}, s{sWQ}, {65536 - 1024}")
        seq.append((pre, f"buffer_load_dwordx4 v{vWQ + (i & 1)}, s[20:23], s{sWQ} offen offset:{(i%4)*1024}{nt} lds"))
    seq.append(([f"s_movk_i32 m0, {XL}", "s_nop 0"], f"buffer_load_dwordx4 v{vX}, s[8:11], s{sX} offen{' nt' if xnt else ''} lds"))
    if xfirst: seq.insert(0, seq.pop())
    kpre = f"""; K voffsets: (l>>4)*256 + ((l&15)^(l>>4))*16  ^ (64*i)
v_xor_b32 v{t2}, v{t1}, v{t0}
v_lshlrev_b32 v{t2}, 4, v{t2}
v_lshl_add_u32 v{vK}, v{t0}, 8, v{t2}
v_xor_b32 v{vK+1}, 64, v{vK}
v_xor_b32 v{vK+2}, 0x80, v{vK}
v_xor_b32 v{vK+3}, 0xc0, v{vK}
; flag address vgpr: lane0 -> FL, else JK + 4*l
v_lshlrev_b32 v{t2}, 2, v{l}
v_add_u32 v{t2}, {JK}, v{t2}
v_cmp_eq_u32 vcc, 0, v{l}
v_mov_b32 v{vLF}, {FL}
v_mov_b32 v{vOne}, 1
v_cndmask_b32 v{vLF}, v{t2}, v{vLF}, vcc
; window base = (b*8+g)<<20 + 3072*256 + c*(32768 or 4096)
s_lshl_b32 s{sWin}, {B}, 3
s_add_u32 s{sWin}, s{sWin}, {G}
s_lshl_b32 s{sWin}, s{sWin}, 5
s_add_u32 s{sWin}, s{sWin}, 24
s_lshl_b32 s{sWin}, s{sWin}, 15
s_lshl_b32 s{sJ}, {C}, {12 if ilv else 15}
s_add_u32 s{sWin}, s{sWin}, s{sJ}
; rho*4096 : rho = (g + 2b) & 7
s_lshl_b32 s{sRho}, {B}, 1
s_add_u32 s{sRho}, s{sRho}, {G}
s_and_b32 s{sRho}, s{sRho}, {7 if rot else 0}
s_lshl_b32 s{sRho}, s{sRho}, 12""".split("\n")
    def grp(j_, ldsbase):
        if ilv:
            return [f"s_add_u32 s{sJ}, s{sRho}, {j_*4096}", f"s_and_b32 s{sJ}, s{sJ}, 0x7fff", f"s_mov_b32 m0, {ldsbase + j_*4096}", f"s_lshl_b32 s{sJ}, s{sJ}, 3", f"s_add_u32 s{sK}, s{sWin}, s{sJ}"]
        return [f"s_add_u32 s{sJ}, s{sRho}, {j_*4096}", f"s_and_b32 s{sJ}, s{sJ}, 0x7fff", f"s_add_u32 m0, s{sJ}, {ldsbase}", f"s_add_u32 s{sK}, s{sWin}, s{sJ}"]
    for i in range(32):
        pre = list(kpre) if i == 0 else []
        if i % 4 == 0: pre += grp(i // 4, KL)
        seq.append((pre, f"buffer_load_dwordx4 v{vK+i%4}, s[12:15], s{sK} offen offset:{(i%4)*1024}{nt} lds"))
    vpre = f"""s_mov_b32 s19, s23
s_mov_b32 s18, s14
; V voffset: (l>>4)*256 + ((l&15) ^ ((l>>4)<<1))*16 ; odd: ^128 ; WO: (l>>4)*1024 + same piece
v_xor_b32 v{t2}, v{t1}, v{t3}
v_lshlrev_b32 v{t2}, 4, v{t2}
v_lshl_add_u32 v{vV}, v{t0}, 8, v{t2}
v_xor_b32 v{vV+1}, 0x80, v{vV}
v_lshl_add_u32 v{vWO}, v{t0}, 10, v{t2}
v_xor_b32 v{vWO+1}, 0x80, v{vWO}
s_mov_b32 s27, s23
s_mov_b32 s26, s22
; WO soff = p<<16 + cg*256 ; p = g*8 + r/4 ; cg = r&3
s_lshr_b32 s{lT}, {R}, 2
s_lshl_b32 s{sWO}, {G}, 3
s_add_u32 s{sWO}, s{sWO}, s{lT}
s_lshl_b32 s{sWO}, s{sWO}, 8
s_and_b32 s{lT}, {R}, 3
s_add_u32 s{sWO}, s{sWO}, s{lT}
s_lshl_b32 s{sWO}, s{sWO}, 8""".split("\n")
    for i in range(32):
        pre = list(vpre) if i == 0 else []
        if i % 4 == 0: pre += grp(i // 4, VL)
        seq.append((pre, f"buffer_load_dwordx4 v{vV+(i&1)}, s[16:19], s{sK} offen offset:{(i%4)*1024}{nt} lds"))
    for i in range(16):
        pre = []
        if i == 0: pre += [f"s_mov_b32 m0, {WO}", "s_nop 0"]
        elif i % 4 == 0: pre.append("s_add_u32 m0, m0, 4096")
        if i: pre.append(f"s_add_u32 s{sWO}, s{sWO}, {4096 - 1024 if i % 4 else 4096 + 3072}")
        seq.append((pre, f"buffer_load_dwordx4 v{vWO+((i>>1)&1)}, s[24:27], s{sWO} offen offset:{(i%4)*1024}{nt} lds"))
    T = len(seq); assert T == 97
    def emit(k):
        pre, ld = seq[k]
        for p in pre: a(p)
        a(ld)
    for p in seq[0][0]: a(p)
    a("s_waitcnt lgkmcnt(0)")
    a(seq[0][1])
    for k in range(1, 17): emit(k)
    ST_("L: wq issued")
    if warml == 2: a("; LWARM_START")
    pre17, ld17 = seq[17]
    for p in pre17: a(p)
    n0 = 17 + kx
    if kx > 0:
        if hold: a(f"s_waitcnt vmcnt({17 - hold})")
        a(ld17)
        b0done = False
        for k in range(18, n0):
            if n1p and k >= n1p: a(f"s_waitcnt vmcnt({n1p - 1})")
            if b0e and n1p and not b0done and k - (n1p - 1) >= 17:
                a("s_barrier"); b0done = True
            emit(k)
    else:
        seq[17] = ([], ld17)
    ST_("L: K issued")
    if warml == 1: a("; LWARM_START")
    lfl = lv(4, 4)
    a(f"v_mov_b32 v{t2}, {FL}")
    if not (b0e and kx > 0 and b0done): a(f"s_waitcnt vmcnt({n0 - 17})\ns_barrier")
    ST_("L: wq landed")
    def lwait(name, off):
        a(f"""L_{name}:
ds_read_b128 v[{lfl}:{lfl+3}], v{t2} offset:{off}
s_waitcnt lgkmcnt(0)
v_and_b32 v{lfl}, v{lfl}, v{lfl+1}
v_and_b32 v{lfl+2}, v{lfl+2}, v{lfl+3}
v_and_b32 v{lfl}, v{lfl}, v{lfl+2}
v_cmp_eq_u32 vcc, 0, v{lfl}
s_cbranch_vccnz L_{name}""")
    vFA = lv()
    a(f"v_mov_b32 v{vFA}, {FL}")
    def lwait(name, off):
        a(f"""L_{name}:
ds_read_b128 v[{lfl}:{lfl+3}], v{vFA} offset:{off}
s_waitcnt lgkmcnt(0)
v_and_b32 v{lfl}, v{lfl}, v{lfl+1}
v_and_b32 v{lfl+2}, v{lfl+2}, v{lfl+3}
v_and_b32 v{lfl}, v{lfl}, v{lfl+2}
v_cmp_eq_u32 vcc, 0, v{lfl}
s_cbranch_vccnz L_{name}""")
    lwait("qi", F_QI)
    n1 = 49 + nmid
    for k in range(n0, n1):
        if n2: a(f"s_waitcnt vmcnt({n2 - 1})")
        emit(k)
    assert lgo <= n1 and n1 <= T
    a(f"s_waitcnt vmcnt({n1 - lgo})")
    a(f"ds_write_b32 v{vLF}, v{vOne} offset:{F_GO}")
    lwait("gi", F_GI)
    for k in range(n1, T):
        if k == 81 and holdwo: lwait("gok", F_GOK)
        if k == 81 and lwo: a(f"s_waitcnt vmcnt({81 - lwo})")
        if n3: a(f"s_waitcnt vmcnt({n3 - 1})")
        emit(k)
    if lgo < 49: a(f"s_waitcnt vmcnt({T - 49})\nds_write_b32 v{vLF}, v{vOne} offset:{F_K}")
    F_V1 = F_GOK
    tailev = ([(49 + nmid, F_V1)] if pvp else []) + [(81, F_V), (97, F_W)]
    for cnt, f in tailev:
        a(f"s_waitcnt vmcnt({T - cnt})\nds_write_b32 v{vLF}, v{vOne} offset:{f}")
    ST_("L: all landed")
    if warml: a("; LWARM_END")
    if stamp: a("s_branch L_fin")
    else: a("s_endpgm")
    a("L_compute:")
    g = va(); n16 = va(); n4 = va()
    sQB = sa(); sOB = sa(); sEp = sa(); sTag = sa(); vPT = va()
    a(f"""
s_mov_b32 s31, s23
s_mov_b32 s30, {WS_BYTES}
s_mov_b32 s35, s23
s_movk_i32 s34, 0x1000
s_lshl_b32 s{sQB}, {G}, 4
s_add_u32 s{sQB}, s{sQB}, {B}
s_lshl_b32 s{sQB}, s{sQB}, 11
s_xor_b32 s{sT}, {C}, {cqx}
s_lshl_b32 s{sT}, s{sT}, 8
s_add_u32 s{sQB}, s{sQB}, s{sT}
s_add_u32 s{sQB}, s{sQB}, {QF}
s_lshl_b32 s{sOB}, {B}, 3
s_add_u32 s{sOB}, s{sOB}, {G}
s_lshl_b32 s{sOB}, s{sOB}, 5
s_add_u32 s{sOB}, s{sOB}, {C}
s_lshl_b32 s{sOB}, s{sOB}, 9
s_add_u32 s{sOB}, s{sOB}, {OF}
""")
    vPTa = va()
    if pt in (1, 3, 7):
        a(f"""
s_mul_i32 s{sT}, {W}, 6
v_add_u32 v{t3}, s{sT}, v{l}
v_lshrrev_b32 v{t0}, 1, v{t3}
v_lshlrev_b32 v{t0}, 13, v{t0}
v_and_b32 v{t1}, 1, v{t3}
v_lshl_or_b32 v{t0}, v{t1}, 7, v{t0}
v_add_u32 v{t0}, s{sQB}, v{t0}
v_subrev_u32 v{t1}, 8, v{t3}
v_lshrrev_b32 v{t2}, 2, v{t1}
v_lshlrev_b32 v{t2}, 12, v{t2}
v_and_b32 v{t1}, 3, v{t1}
v_lshl_or_b32 v{t2}, v{t1}, 7, v{t2}
v_add_u32 v{t2}, s{sOB}, v{t2}
v_cmp_gt_u32 vcc, 8, v{t3}
v_mov_b32 v{t3}, {OOB}
s_nop 0
v_cndmask_b32 v{t0}, v{t2}, v{t0}, vcc
v_cmp_gt_u32 vcc, 6, v{l}
s_mov_b32 s{sT}, {WSB}
s_waitcnt lgkmcnt(0)
s_load_dword s{sEp}, s[28:29], s{sT}
v_cndmask_b32 v{vPTa}, v{t3}, v{t0}, vcc
""")
        if pt != 7: a(f"buffer_load_dword v{vPT}, v{vPTa}, s[28:31], 0 offen{' nt' if pt == 3 else ''}")
    else:
        a(f"s_mov_b32 s{sT}, {WSB}\ns_waitcnt lgkmcnt(0)\ns_load_dword s{sEp}, s[28:29], s{sT}" if WSB else f"s_waitcnt lgkmcnt(0)\ns_load_dword s{sEp}, s[28:29], 0")
        if pt in (10, 11, 12):
            sD = sa(); sO1 = sa(); sO2 = sa()
            a(f"s_lshl_b32 s{sT}, {W}, 13\ns_add_u32 s{sO1}, s{sQB}, s{sT}\ns_lshl_b32 s{sT}, {W}, 12\ns_add_u32 s{sO2}, s{sOB}, s{sT}")
            stp = 128 if pt == 11 else 64
            ypt = [f"s_load_dword s{sD}, s[28:29], s{sO1} offset:{o}" for o in range(0, 256, stp)] + [f"s_load_dword s{sD}, s[28:29], s{sO2} offset:{o}" for o in range(0, 512, stp)]
            if pt == 12:
                sO3 = sT2
                sO3 = sa()
                a(f"""s_and_b32 s{sO3}, {R}, 3
s_lshl_b32 s{sO3}, s{sO3}, 6
s_lshl_b32 s{sT}, {G}, 3
s_add_u32 s{sO3}, s{sO3}, s{sT}
s_lshr_b32 s{sT}, {R}, 2
s_add_u32 s{sO3}, s{sO3}, s{sT}
s_lshl_b32 s{sO3}, s{sO3}, 2
s_add_u32 s{sO3}, s{sO3}, {W}
s_lshl_b32 s{sO3}, s{sO3}, 9
s_add_u32 s{sO3}, s{sO3}, {OX + SOFF}""")
                ypt += [f"s_load_dword s{sD}, s[28:29], s{sO3} offset:{o}" for o in range(0, 512, 64)]
        if pt in (8, 9):
            sD = sa(); sO1 = sa()
            a(f"s_lshl_b32 s{sT}, {W}, 13\ns_add_u32 s{sO1}, s{sQB}, s{sT}")
            for o in range(0, 256, 64): a(f"s_load_dword s{sD}, s[28:29], s{sO1} offset:{o}")
            a(f"s_lshl_b32 s{sT}, {W}, 12\ns_add_u32 s{sO1}, s{sOB}, s{sT}")
            for o in range(0, 512, 64): a(f"s_load_dword s{sD}, s[28:29], s{sO1} offset:{o}")
            if pt == 9:
                a(f"""s_and_b32 s{sO1}, {R}, 3
s_lshl_b32 s{sO1}, s{sO1}, 6
s_lshl_b32 s{sT}, {G}, 3
s_add_u32 s{sO1}, s{sO1}, s{sT}
s_lshr_b32 s{sT}, {R}, 2
s_add_u32 s{sO1}, s{sO1}, s{sT}
s_lshl_b32 s{sO1}, s{sO1}, 2
s_add_u32 s{sO1}, s{sO1}, {W}
s_lshl_b32 s{sO1}, s{sO1}, 9
s_add_u32 s{sO1}, s{sO1}, {OX + SOFF}""")
                ypt = [f"s_load_dword s{sD}, s[28:29], s{sO1} offset:{o}" for o in range(0, 512, 64)]
        if pt in (2, 4, 6):
            a(f"""
s_lshl_b32 s{sT}, {W}, 12
s_add_u32 s{sT}, s{sT}, s{sOB}
v_lshlrev_b32 v{t0}, 7, v{l}
v_add_u32 v{t0}, s{sT}, v{t0}
v_cmp_gt_u32 vcc, 4, v{l}
v_mov_b32 v{t3}, {OOB}
s_nop 0
v_cndmask_b32 v{vPTa}, v{t3}, v{t0}, vcc
""")
    if warm:
        a("s_mov_b64 exec, 0")
        for p in range(1, nparts):
            a(f"s_cmp_eq_u32 {W}, {p}\ns_cbranch_scc1 HOP_P{p}")
        a("s_branch HOP_P0\nL_warm_done:\ns_mov_b64 exec, -1")
    a("; WARM_START")
    sP = sa(); sCG = sa(); sR4 = sa()
    vXr = va(4); vWQr = va(); vKr = va(4); vVr = va(2); vWOr = va(2)
    vQst = va(); vG = va(); sG = sa(); vQLw = va(); vQLr = va()
    vPw = va(); vPr = va(); vSw = va(); vSr = va()
    vOst = va(); vOG = va(); sOG = sa(); vOLw = va(); vOLr = va()
    vYst = va(); sYst = sa(); vFG = va(); sFG = sa(); vOut = va()
    vFw = va(); vFr = va(); vOne_c = va()
    sCsc = sa(); sP0 = sa(); sP1 = sa(); sP2 = sa(); sU0 = sa(); sU1 = sa(); sM4 = sa(2, 2); sG1 = sa(2, 2); sCnt = sa()
    a(f"""
v_lshrrev_b32 v{g}, 4, v{l}
v_and_b32 v{n16}, 15, v{l}
v_and_b32 v{n4}, 3, v{l}
v_lshlrev_b32 v{t2}, 2, v{l}
v_mov_b32 v{t3}, 0
ds_write_b32 v{t2}, v{t3} offset:{FL}
v_add_u32 v{t2}, {JK}, v{t2}
s_lshl_b32 s{sT}, {W}, 2
s_add_u32 s{sT}, s{sT}, {FL}
v_mov_b32 v{vFw}, s{sT}
v_cmp_eq_u32 vcc, 0, v{l}
v_mov_b32 v{vFr}, {FL}
v_mov_b32 v{vOne_c}, 1
v_cndmask_b32 v{vFw}, v{t2}, v{vFw}, vcc
; p = g*8 + r/4 ; cg = r&3
s_lshr_b32 s{sR4}, {R}, 2
s_lshl_b32 s{sP}, {G}, 3
s_add_u32 s{sP}, s{sP}, s{sR4}
s_and_b32 s{sCG}, {R}, 3
v_lshlrev_b32 v{t2}, 2, v{n4}
v_xor_b32 v{t2}, v{g}, v{t2}
v_lshlrev_b32 v{t2}, 4, v{t2}
v_lshl_add_u32 v{t2}, v{n4}, 8, v{t2}
v_add_u32 v{vXr}, {XL}, v{t2}
v_xor_b32 v{vXr+1}, 64, v{vXr}
v_xor_b32 v{vXr+2}, 0x80, v{vXr}
v_xor_b32 v{vXr+3}, 0xc0, v{vXr}
v_bfe_u32 v{t0}, v{l}, 2, 2
v_lshl_add_u32 v{t2}, v{g}, 3, v{t0}
v_lshlrev_b32 v{t2}, 7, v{t2}
v_lshl_add_u32 v{t2}, v{n4}, 3, v{t2}
v_lshrrev_b32 v{t3}, 1, v{t0}
v_and_b32 v{t1}, 1, v{g}
v_lshl_or_b32 v{t3}, v{t1}, 1, v{t3}
v_xor_b32 v{t3}, {W}, v{t3}
v_lshl_add_u32 v{t2}, v{t3}, 5, v{t2}
v_add_u32 v{vWQr}, {WQ}, v{t2}
s_lshl_b32 s{sT}, {W}, 13
s_add_u32 s{sT}, s{sT}, {KL}
v_xor_b32 v{t2}, v{g}, v{n16}
v_lshlrev_b32 v{t2}, 4, v{t2}
v_lshl_add_u32 v{t2}, v{n16}, 8, v{t2}
v_add_u32 v{vKr}, s{sT}, v{t2}
v_xor_b32 v{vKr+1}, 64, v{vKr}
v_xor_b32 v{vKr+2}, 0x80, v{vKr}
v_xor_b32 v{vKr+3}, 0xc0, v{vKr}
v_lshl_add_u32 v{t2}, v{g}, 2, v{t0}
v_lshlrev_b32 v{t2}, 8, v{t2}
v_lshl_add_u32 v{t2}, v{n4}, 3, v{t2}
v_lshl_or_b32 v{t3}, v{t1}, 2, v{t0}
s_lshl_b32 s{sT}, {W}, 1
v_xor_b32 v{t3}, s{sT}, v{t3}
v_lshl_add_u32 v{t2}, v{t3}, 5, v{t2}
v_add_u32 v{vVr}, {VL}, v{t2}
v_xor_b32 v{vVr+1}, 32, v{vVr}
v_lshl_add_u32 v{t2}, v{g}, 3, v{t0}
v_lshlrev_b32 v{t2}, 8, v{t2}
v_lshl_add_u32 v{t2}, v{n4}, 3, v{t2}
v_lshl_add_u32 v{t2}, v{t3}, 5, v{t2}
v_add_u32 v{vWOr}, {WO}, v{t2}
v_xor_b32 v{vWOr+1}, 32, v{vWOr}
v_cmp_gt_u32 vcc, 4, v{n16}
v_mov_b32 v{t3}, {OOB}
s_lshl_b32 s{sT}, {W}, 6
v_lshlrev_b32 v{t2}, 4, v{g}
v_add_u32 v{t0}, s{sT}, v{t2}
v_lshl_add_u32 v{t0}, v{n16}, 13, v{t0}
v_cndmask_b32 v{vQst}, v{t3}, v{t0}, vcc
s_lshl_b32 s{sT}, {W}, 7
v_add_u32 v{t2}, s{sT}, v{t2}
v_lshl_add_u32 v{t0}, v{n16}, 12, v{t2}
v_cndmask_b32 v{vOst}, v{t3}, v{t0}, vcc
v_lshl_add_u32 v{t0}, v{n16}, 9, v{t2}
v_cndmask_b32 v{vYst}, v{t3}, v{t0}, vcc
YCOAL_ADDR
v_lshrrev_b32 v{t0}, 5, v{l}
v_and_b32 v{t1}, 31, v{l}
v_lshlrev_b32 v{t2}, 4, v{t1}
v_lshl_add_u32 v{vG}, v{t0}, 12, v{t2}
s_lshl_b32 s{sG}, {G}, 2
s_add_u32 s{sG}, s{sG}, {B}
s_lshl_b32 s{sG}, s{sG}, 4
s_add_u32 s{sG}, s{sG}, {W}
s_lshl_b32 s{sG}, s{sG}, 9
s_add_u32 s{sG}, s{sG}, {QF}
s_mul_i32 s{sT}, {W}, 320
v_lshlrev_b32 v{t2}, 3, v{t1}
v_lshl_add_u32 v{t2}, v{t0}, 2, v{t2}
v_add_u32 v{vQLw}, s{sT}, v{t2}
v_mul_u32_u24 v{t2}, 320, v{n4}
v_lshl_add_u32 v{vQLr}, v{g}, 4, v{t2}
v_lshlrev_b32 v{t2}, 6, v{n4}
v_lshl_add_u32 v{vPr}, v{g}, 4, v{t2}
s_lshl_b32 s{sT}, {W}, 8
v_add_u32 v{vPw}, s{sT}, v{vPr}
v_lshlrev_b32 v{vSr}, 4, v{n4}
s_lshl_b32 s{sT}, {W}, 2
v_add_u32 v{vSw}, s{sT}, v{vSr}
v_lshlrev_b32 v{t2}, 9, v{g}
v_lshl_add_u32 v{vOG}, v{n16}, 4, v{t2}
s_lshl_b32 s{sOG}, {W}, 3
s_add_u32 s{sOG}, s{sOG}, {G}
s_lshl_b32 s{sOG}, s{sOG}, 2
s_add_u32 s{sOG}, s{sOG}, {B}
s_lshl_b32 s{sOG}, s{sOG}, 4
s_and_b32 s{sT}, s{sR4}, 1
s_add_u32 s{sOG}, s{sOG}, s{sT}
s_lshl_b32 s{sOG}, s{sOG}, 8
s_add_u32 s{sOG}, s{sOG}, {OF}
s_mul_i32 s{sT}, {W}, 192
v_lshlrev_b32 v{t2}, 3, v{n16}
v_lshl_add_u32 v{t2}, v{g}, 1, v{t2}
v_add_u32 v{vOLw}, s{sT}, v{t2}
v_mul_u32_u24 v{t2}, 192, v{n4}
v_lshl_add_u32 v{vOLr}, v{g}, 4, v{t2}
s_lshl_b32 s{sYst}, s{sCG}, 6
s_add_u32 s{sYst}, s{sYst}, s{sP}
s_lshl_b32 s{sYst}, s{sYst}, 11
s_add_u32 s{sYst}, s{sYst}, {OX + SOFF}
v_lshrrev_b32 v{t0}, 1, v{l}
v_and_b32 v{t1}, 1, v{l}
v_lshlrev_b32 v{t2}, 4, v{t1}
v_lshl_add_u32 v{vFG}, v{t0}, 11, v{t2}
s_lshl_b32 s{sFG}, s{sCG}, 12
s_add_u32 s{sFG}, s{sFG}, s{sP}
s_lshl_b32 s{sFG}, s{sFG}, 5
s_add_u32 s{sFG}, s{sFG}, {OX + SOFF}
YCOAL_OUT
v_cmp_gt_u32 vcc, 2, v{n16}
s_mov_b32 s{sCsc}, {f32(CSC)}
s_mov_b32 s{sP0}, 0x07060503
v_cndmask_b32 v{vOut}, v{t3}, v{t2}, vcc
s_mov_b32 s{sP1}, 0x07060502
s_mov_b32 s{sP2}, 0x07060501
s_mov_b32 s{sU0}, 0x04000c0c
s_mov_b32 s{sU1}, 0x0706000c
s_mov_b32 s{sM4}, 0x000f000f
s_mov_b32 s{sM4+1}, 0x000f000f
s_waitcnt lgkmcnt(0)
s_mul_i32 s{sTag}, s{sEp}, 1664525
s_add_u32 s{sTag}, s{sTag}, 1013904223
""")
    ya = f"""; coalesced y store: lanes < 32: w*512 + l*16
s_lshl_b32 s{sT}, {W}, 9
v_lshlrev_b32 v{t0}, 4, v{l}
v_add_u32 v{t0}, s{sT}, v{t0}
v_cmp_gt_u32 s[{sM4}:{sM4+1}], 32, v{l}
v_cmp_eq_u32 s[{sG1}:{sG1+1}], 1, v{g}
s_nop 0
v_cndmask_b32 v{vYst}, v{t3}, v{t0}, s[{sM4}:{sM4+1}]""" if ycoal else ""
    yo = (f"""; out voffset: g*1024 + (cg*128 + 2p' + (l&1))*2 for lanes n16<2 ; p' = p (0..63)
s_lshl_b32 s{sT}, s{sCG}, 6
s_add_u32 s{sT}, s{sT}, s{sP}
s_lshl_b32 s{sT}, s{sT}, 2
v_lshlrev_b32 v{t2}, 1, v{t1}
v_lshl_add_u32 v{t2}, v{g}, 10, v{t2}
v_add_u32 v{t2}, s{sT}, v{t2}""" if ycoal else f"""s_lshr_b32 s{sT}, s{sP}, 4
s_lshl_b32 s{sT}, s{sT}, 2
s_add_u32 s{sT}, s{sT}, s{sCG}
s_lshl_b32 s{sT}, s{sT}, 4
s_and_b32 s{sT2}, s{sP}, 15
s_add_u32 s{sT}, s{sT}, s{sT2}
s_lshl_b32 s{sT}, s{sT}, 4
v_lshlrev_b32 v{t2}, 3, v{t1}
v_lshl_add_u32 v{t2}, v{g}, 1, v{t2}
v_add_u32 v{t2}, s{sT}, v{t2}""")
    newL = []
    for ln in a.L:
        if "YCOAL_ADDR" in ln: newL += ["    " + x for x in ya.split("\n") if x]
        elif "YCOAL_OUT" in ln: newL += ["    " + x for x in yo.split("\n")]
        else: newL.append(ln)
    a.L = newL
    A32 = va(32, 4); B16 = va(16, 4); C32 = va(32, 4); E8 = va(8, 4); F8 = va(8, 4)
    ones = va(4, 4); fl = va(4, 4); fl1 = va(); QS4 = va(4, 4); OS8 = va(8, 4); sQS = sa(); sOS = sa(); sWcN = sa.n
    a(f"""
v_mov_b32 v{ones}, 0x3f803f80
v_mov_b32 v{ones+1}, 0x3f803f80
v_mov_b32 v{ones+2}, 0x3f803f80
v_mov_b32 v{ones+3}, 0x3f803f80
v_mov_b32 v{QS4+3}, s{sTag}
v_mov_b32 v{OS8+3}, s{sTag}
v_mov_b32 v{OS8+7}, s{sTag}
v_mov_b32 v{E8+3}, s{sTag}
v_mov_b32 v{E8+7}, s{sTag}
s_add_u32 s{sQS}, s{sQB}, {0 if sameS in (1, 2) else SOFF}
s_add_u32 s{sOS}, s{sOB}, {0 if sameS in (1, 3) else SOFF}
s_mov_b32 s{sCnt}, {spin}
s_movk_i32 s{sWcN}, {wthr}
""")
    if pt == 7: a(f"buffer_load_dword v{vPT}, v{vPTa}, s[28:31], 0 offen")
    lab = [0]
    def setflag(off): a(f"ds_write_b32 v{vFw}, v{vOne_c} offset:{off}")
    colder = []
    sWc = sa()
    stage = {"flush": []}
    def waitflags(group=None, single=None):
        lab[0] += 1; L = f"L_wf{lab[0]}"
        a(f"{L}:")
        if group is not None: a(f"ds_read_b128 {rng(fl,4)}, v{vFr} offset:{group}")
        if single is not None: a(f"ds_read_b32 v{fl1}, v{vFr} offset:{single}")
        a("s_waitcnt lgkmcnt(0)")
        if group is not None:
            a(f"v_min3_u32 v{fl}, v{fl}, v{fl+1}, v{fl+2}")
            if single is not None: a(f"v_min3_u32 v{fl}, v{fl}, v{fl+3}, v{fl1}")
            else: a(f"v_min_u32 v{fl}, v{fl}, v{fl+3}")
            r = fl
        else: r = fl1
        a(f"v_cmp_eq_u32 vcc, 0, v{r}\ns_cbranch_vccz {L}d\ns_sub_u32 s{sWc}, s{sWc}, 1\ns_cbranch_scc0 {L}\ns_branch {L}f\n{L}d:")
        colder.append([f"{L}f:"] + list(stage["flush"]) + [f"s_movk_i32 s{sWc}, {wthr}", f"s_branch {L}"])
    QFL = [f"buffer_store_dwordx4 {rng(QS4,4)}, v{vQst}, s[28:31], s{sQS} offen sc1"]
    OFL = [f"buffer_store_dwordx4 {rng(OS8,4)}, v{vOst}, s[28:31], s{sOS} offen sc1", f"buffer_store_dwordx4 {rng(OS8+4,4)}, v{vOst}, s[28:31], s{sOS} offen offset:64 sc1"]
    assert sWc == sWcN
    xb = A32; wa = A32 + 16; acc = C32
    a("s_waitcnt lgkmcnt(0)\ns_barrier")
    for s in range(4):
        a(f"ds_read_b128 {rng(xb+4*s,4)}, v{vXr+s}")
        a(f"ds_read_b64_tr_b16 {rng(wa+4*s,2)}, v{vWQr} offset:{s*4096}")
        a(f"ds_read_b64_tr_b16 {rng(wa+4*s+2,2)}, v{vWQr} offset:{s*4096 + 512}")
    for s in range(4):
        a(f"s_waitcnt lgkmcnt({3*(3-s)})")
        c = "0" if s == 0 else rng(acc,4)
        a(f"v_mfma_f32_16x16x32_bf16 {rng(acc,4)}, {rng(wa+4*s,4)}, {rng(xb+4*s,4)}, {c}")
    a(f"""
s_nop 7
v_perm_b32 v{QS4}, v{acc}, v{acc+3}, s{sP0}
v_perm_b32 v{QS4+1}, v{acc+1}, v{acc+3}, s{sP1}
v_perm_b32 v{QS4+2}, v{acc+2}, v{acc+3}, s{sP2}
buffer_store_dwordx4 {rng(QS4,4)}, v{vQst}, s[28:31], s{sQB} offen
""")
    setflag(F_QI)
    stage["flush"] = QFL
    if pt in (9, 10, 11, 12):
        for x_ in ypt: a(x_)
    if pt in (2, 6): a(f"buffer_load_dword v{vPT}, v{vPTa}, s[28:31], 0 offen" + (" nt" if pt == 2 else ""))
    ST_("q published")
    gq = F8
    if gmin:
        sGm = sa()
        a(f"""s_movk_i32 s{sGm}, {gmin}
L_gom:
ds_read_b32 v{fl1}, v{vFr} offset:{F_GO}
s_waitcnt lgkmcnt(0)
s_sub_u32 s{sGm}, s{sGm}, 1
s_cbranch_scc0 L_gom""")
    waitflags(single=F_GO)
    ST_("GO")
    a(f"buffer_load_dwordx4 {rng(gq,4)}, v{vG}, s[28:31], s{sG} offen sc1")
    a(f"buffer_load_dwordx4 {rng(gq+4,4)}, v{vG}, s[28:31], s{sG} offen offset:2048 sc1")
    if pt == 4: a(f"buffer_load_dword v{vPT}, v{vPTa}, s[28:31], 0 offen nt")
    if pt == 13:
        dum = va(2, 2)
        a(f"buffer_load_dword v{dum}, v{vOG}, s[28:31], s{sOG} offen sc1")
        a(f"buffer_load_dword v{dum+1}, v{vOG}, s[28:31], s{sOG} offen offset:2048 sc1")
    if pt == 14:
        dum = va(2, 2)
        a(f"buffer_load_dword v{dum}, v{vOG}, s[28:31], s{sOG} offen sc1")
        a(f"buffer_load_dword v{dum+1}, v{vOG}, s[28:31], s{sOG} offen offset:2048 sc1")
        dum2 = va(2, 2)
        a(f"s_add_u32 s{sT2}, s{sFG}, 65536")
        a(f"buffer_load_dword v{dum2}, v{vFG}, s[28:31], s{sFG} offen sc1")
        a(f"buffer_load_dword v{dum2+1}, v{vFG}, s[28:31], s{sT2} offen sc1")
    setflag(F_GI)
    ka = A32
    if lgo < 49: waitflags(single=F_K)
    for t in range(2):
        for s_ in range(4):
            a(f"ds_read_b128 {rng(ka+16*t+4*s_,4)}, v{vKr+s_} offset:{t*4096}")
    sa_tmp = sa(2, 2)
    cold = []
    def poll(name, regs, vaddr, soff, first_wait, offs, flush):
        a(f"s_waitcnt vmcnt({first_wait})\nL_{name}chk:")
        for i, r in enumerate(regs):
            if i == 0: a(f"v_cmp_ne_u32 vcc, s{sTag}, v{r+3}")
            else: a(f"v_cmp_ne_u32 s[{sa_tmp}:{sa_tmp+1}], s{sTag}, v{r+3}\ns_or_b64 vcc, vcc, s[{sa_tmp}:{sa_tmp+1}]")
        a(f"s_cbranch_vccnz L_{name}retry\nL_{name}ok:")
        c = [f"L_{name}retry:", f"s_sub_u32 s{sCnt}, s{sCnt}, 1", f"s_cbranch_scc1 L_{name}ok",
             f"s_cmp_gt_u32 s{sCnt}, {spin - nf}", f"s_cbranch_scc1 L_{name}re",
             f"s_cmp_lg_u32 s{sCnt}, {spin - nf}", f"s_cbranch_scc1 L_{name}tg"] + flush + [f"L_{name}tg:"] + ([] if (sameS == 1 or (sameS == 2 and name == "q") or (sameS == 3 and name == "o")) else [f"s_xor_b32 s{soff}, s{soff}, {SOFF}"]) + [f"L_{name}re:"]
        for r, o in zip(regs, offs):
            c.append(f"buffer_load_dwordx4 {rng(r,4)}, v{vaddr}, s[28:31], s{soff} offen offset:{o} sc1")
        c += ["s_waitcnt vmcnt(0)", f"s_branch L_{name}chk"]
        cold.append((name, c))
    poll("q", [gq, gq+4], vG, sG, {4: 1, 13: 2, 14: 4}.get(pt, 0), [0, 2048], QFL)
    if holdwo: setflag(F_GOK)
    ST_("q gathered")
    u = E8; qb = B16
    a(f"""
v_perm_b32 v{u}, v{gq}, v{gq+1}, s{sU0}
v_perm_b32 v{u+1}, v{gq+4}, v{gq+5}, s{sU0}
v_add_f32 v{u+4}, v{gq}, v{gq+4}
v_add_f32 v{u+6}, v{gq+2}, v{gq+6}
v_perm_b32 v{u}, v{u}, v{gq+2}, s{sU1}
v_perm_b32 v{u+1}, v{u+1}, v{gq+6}, s{sU1}
v_add_f32 v{u+5}, v{gq+1}, v{gq+5}
v_add_f32 v{u+7}, v{u}, v{u+1}
v_permlane32_swap_b32 v{u+4}, v{u+6}
s_nop 0
v_permlane32_swap_b32 v{u+5}, v{u+7}
v_add_f32 v{u+4}, v{u+4}, v{u+6}
v_add_f32 v{u+5}, v{u+5}, v{u+7}
v_cvt_pk_bf16_f32 v{u}, v{u+4}, v{u+5}
ds_write_b32 v{vQLw}, v{u} offset:{QL}
""")
    setflag(F_Q)
    waitflags(group=F_Q)
    for s in range(4):
        a(f"ds_read_b128 {rng(qb+4*s,4)}, v{vQLr} offset:{QL + s*64}")
    sc = C32
    for s in range(4):
        a(f"s_waitcnt lgkmcnt({3-s})")
        for t in range(2):
            c = "0" if s == 0 else rng(sc+4*t,4)
            a(f"v_mfma_f32_16x16x32_bf16 {rng(sc+4*t,4)}, {rng(ka+16*t+4*s,4)}, {rng(qb+4*s,4)}, {c}")
    m = va(2, 2); mt = va(); pk = E8
    sC2 = sa(2, 2)
    a(f"""
s_mov_b32 s{sC2}, s{sCsc}
s_mov_b32 s{sC2+1}, s{sCsc}
s_nop 4
v_max3_f32 v{m}, v{sc}, v{sc+1}, v{sc+2}
v_max3_f32 v{mt}, v{sc+3}, v{sc+4}, v{sc+5}
v_max3_f32 v{m}, v{m}, v{sc+6}, v{sc+7}
v_max_f32 v{m}, v{m}, v{mt}
v_mov_b32 v{mt}, v{m}
s_nop 1
v_permlane16_swap_b32 v{m}, v{mt}
v_max_f32 v{m}, v{m}, v{mt}
v_mov_b32 v{mt}, v{m}
s_nop 1
v_permlane32_swap_b32 v{m}, v{mt}
v_max_f32 v{m}, v{m}, v{mt}
v_mul_f32 v{m}, s{sCsc}, v{m}
""")
    for i in range(0, 8, 2):
        a(f"v_pk_fma_f32 v[{sc+i}:{sc+i+1}], v[{sc+i}:{sc+i+1}], s[{sC2}:{sC2+1}], v[{m}:{m+1}] op_sel_hi:[1,1,0] neg_lo:[0,0,1] neg_hi:[0,0,1]")
    a(f"s_mov_b64 exec, s[{sM4}:{sM4+1}]\nds_write_b32 v{vSw}, v{m} offset:{SL}\ns_mov_b64 exec, -1")
    for i in range(8):
        a(f"v_exp_f32 v{sc+i}, v{sc+i}")
        if i == 2: a(f"v_cvt_pk_bf16_f32 v{pk}, v{sc}, v{sc+1}")
        if i == 4: a(f"v_cvt_pk_bf16_f32 v{pk+1}, v{sc+2}, v{sc+3}")
        if i == 6: a(f"v_cvt_pk_bf16_f32 v{pk+2}, v{sc+4}, v{sc+5}")
    a(f"""
s_mov_b64 exec, s[{sM4}:{sM4+1}]
v_cvt_pk_bf16_f32 v{pk+3}, v{sc+6}, v{sc+7}
ds_write_b128 v{vPw}, {rng(pk,4)} offset:{PL}
s_mov_b64 exec, -1
""")
    setflag(F_P)
    a(f"s_mov_b32 s{sCnt}, {spin}")
    waitflags(group=F_P)
    ST_("P written")
    pb = B16; sv = F8; vaop = A32; D = C32
    lk = va(16, 4)
    M = va(); ff = va(4, 2); L = va(); Rr = va(); lse = va()
    a(f"ds_read_b128 {rng(sv,4)}, v{vSr} offset:{SL}")
    for ks in range(4):
        a(f"ds_read_b128 {rng(pb+4*ks,4)}, v{vPr} offset:{PL + ks*256}")
    a(f"ds_read_b32 v{fl1}, v{vFr} offset:{F_V}")
    a(f"""
s_waitcnt lgkmcnt(5)
v_max3_f32 v{M}, v{sv}, v{sv+1}, v{sv+2}
v_max_f32 v{M}, v{M}, v{sv+3}
v_sub_f32 v{ff}, v{sv}, v{M}
v_sub_f32 v{ff+1}, v{sv+1}, v{M}
v_sub_f32 v{ff+2}, v{sv+2}, v{M}
v_sub_f32 v{ff+3}, v{sv+3}, v{M}
""")
    for ks in range(4):
        a(f"s_waitcnt lgkmcnt({4-ks})")
        a(f"v_mfma_f32_16x16x32_bf16 {rng(lk+4*ks,4)}, {rng(ones,4)}, {rng(pb+4*ks,4)}, 0")
        a(f"v_exp_f32 v{ff+ks}, v{ff+ks}")
    def vread(ks):
        for tp in range(2):
            for e in range(2):
                a(f"ds_read_b64_tr_b16 {rng(vaop+8*ks+4*tp+2*e,2)}, v{vVr+tp} offset:{ks*8192 + e*4096}")
    def pv(ks):
        for tp in range(2):
            a(f"v_mfma_f32_16x16x32_bf16 {rng(D+8*ks+4*tp,4)}, {rng(vaop+8*ks+4*tp,4)}, {rng(pb+4*ks,4)}, 0")
    stats2 = f"""v_mul_f32 v{L}, v{ff}, v{lk}
v_fmac_f32 v{L}, v{ff+1}, v{lk+4}
v_fmac_f32 v{L}, v{ff+2}, v{lk+8}
v_fmac_f32 v{L}, v{ff+3}, v{lk+12}
v_rcp_f32 v{Rr}, v{L}
v_log_f32 v{lse}, v{L}
s_nop 0
v_mul_f32 v{ff}, v{ff}, v{Rr}
v_mul_f32 v{ff+1}, v{ff+1}, v{Rr}
v_mul_f32 v{ff+2}, v{ff+2}, v{Rr}
v_mul_f32 v{ff+3}, v{ff+3}, v{Rr}
v_add_f32 v{OS8+2}, v{lse}, v{M}
v_add_f32 v{OS8+6}, v{lse}, v{M}"""
    o = F8
    def scale(ks):
        base = ff + (ks & ~1); sel = ks & 1; fr = f"v[{base}:{base+1}]"
        for tp in range(2):
            for h in range(2):
                dst = rng(o+4*tp+2*h, 2); src = rng(D+8*ks+4*tp+2*h, 2)
                if ks == 0: a(f"v_pk_mul_f32 {dst}, {src}, {fr} op_sel:[0,{sel}] op_sel_hi:[1,{sel}]")
                else: a(f"v_pk_fma_f32 {dst}, {src}, {fr}, {dst} op_sel:[0,{sel},0] op_sel_hi:[1,{sel},1]")
    a(f"s_waitcnt lgkmcnt(0)\nv_cmp_ne_u32 vcc, 0, v{fl1}\ns_cbranch_vccnz L_vfast\ns_nop 3")
    if pvp:
        assert nmid == 24
        F_V1 = F_GOK
        waitflags(single=F_V1)
        vread(0); vread(1); vread(2)
        a(stats2)
        a("s_waitcnt lgkmcnt(8)"); pv(0)
        a("s_waitcnt lgkmcnt(4)"); pv(1)
        a("s_waitcnt lgkmcnt(0)"); pv(2)
        a("s_nop 1")
        scale(0); scale(1); scale(2)
        waitflags(single=F_V)
        ST_("V landed")
        vread(3)
        a("s_waitcnt lgkmcnt(0)"); pv(3)
        a("s_nop 7")
        scale(3)
        a("s_branch L_vdone")
    else:
        a(stats2)
        waitflags(single=F_V)
        ST_("V landed")
        vread(0); vread(1); vread(2)
        a("s_branch L_vjoin")
    a("L_vfast:")
    vread(0); vread(1); vread(2)
    a(stats2)
    a("L_vjoin:")
    a("s_waitcnt lgkmcnt(8)"); pv(0); vread(3)
    a("s_waitcnt lgkmcnt(8)"); pv(1)
    a("s_waitcnt lgkmcnt(4)"); pv(2)
    a("s_waitcnt lgkmcnt(0)"); pv(3)
    for ks in range(4): scale(ks)
    a("L_vdone:")
    og = OS8
    a(f"""
v_cvt_pk_bf16_f32 v{og}, v{o}, v{o+1}
v_cvt_pk_bf16_f32 v{og+1}, v{o+2}, v{o+3}
v_cvt_pk_bf16_f32 v{og+4}, v{o+4}, v{o+5}
v_cvt_pk_bf16_f32 v{og+5}, v{o+6}, v{o+7}
buffer_store_dwordx4 {rng(og,4)}, v{vOst}, s[28:31], s{sOB} offen
buffer_store_dwordx4 {rng(og+4,4)}, v{vOst}, s[28:31], s{sOB} offen offset:64
""")
    setflag(F_OI)
    stage["flush"] = QFL + OFL
    ST_("o published")
    gg = B16; wb = A32
    if not nooi: waitflags(group=F_OI)
    if nooi:
        waitflags(single=F_W)
        for s_ in range(2):
            for tp in range(2):
                for hh in range(2):
                    a(f"ds_read_b64_tr_b16 {rng(wb+8*s_+4*tp+2*hh,2)}, v{vWOr+tp} offset:{s_*8192 + hh*1024}")
    a(f"""
buffer_load_dwordx4 {rng(gg,4)}, v{vOG}, s[28:31], s{sOG} offen sc1
buffer_load_dwordx4 {rng(gg+4,4)}, v{vOG}, s[28:31], s{sOG} offen offset:2048 sc1
""")
    if not nooi:
        waitflags(single=F_W)
        for s in range(2):
            for tp in range(2):
                for hh in range(2):
                    a(f"ds_read_b64_tr_b16 {rng(wb+8*s+4*tp+2*hh,2)}, v{vWOr+tp} offset:{s*8192 + hh*1024}")
    poll("o", [gg, gg+4], vOG, sOG, 0, [0, 2048], QFL + OFL)
    ST_("o gathered")
    e0 = va(); e1 = va(); u = A32 + 16; S = va(); oo = A32 + 24
    a(f"""
v_max_f32 v{M}, v{gg+2}, v{gg+6}
v_mov_b32 v{mt}, v{M}
v_lshlrev_b32 v{u}, 16, v{gg}
v_and_b32 v{u+1}, 0xffff0000, v{gg}
v_permlane16_swap_b32 v{M}, v{mt}
v_lshlrev_b32 v{u+2}, 16, v{gg+1}
v_max_f32 v{M}, v{M}, v{mt}
v_mov_b32 v{mt}, v{M}
v_and_b32 v{u+3}, 0xffff0000, v{gg+1}
v_lshlrev_b32 v{u+4}, 16, v{gg+4}
v_permlane32_swap_b32 v{M}, v{mt}
v_and_b32 v{u+5}, 0xffff0000, v{gg+4}
v_max_f32 v{M}, v{M}, v{mt}
v_lshlrev_b32 v{u+6}, 16, v{gg+5}
v_sub_f32 v{e0}, v{gg+2}, v{M}
v_sub_f32 v{e1}, v{gg+6}, v{M}
v_exp_f32 v{e0}, v{e0}
v_exp_f32 v{e1}, v{e1}
v_and_b32 v{u+7}, 0xffff0000, v{gg+5}
v_add_f32 v{S}, v{e0}, v{e1}
v_mul_f32 v{oo}, v{e0}, v{u}
v_mul_f32 v{oo+1}, v{e0}, v{u+1}
v_mov_b32 v{mt}, v{S}
v_mul_f32 v{oo+2}, v{e0}, v{u+2}
v_mul_f32 v{oo+3}, v{e0}, v{u+3}
v_permlane16_swap_b32 v{S}, v{mt}
v_fmac_f32 v{oo}, v{e1}, v{u+4}
v_fmac_f32 v{oo+1}, v{e1}, v{u+5}
v_add_f32 v{S}, v{S}, v{mt}
v_fmac_f32 v{oo+2}, v{e1}, v{u+6}
v_fmac_f32 v{oo+3}, v{e1}, v{u+7}
v_mov_b32 v{mt}, v{S}
v_permlane16_swap_b32 v{oo}, v{oo+1}
s_nop 0
v_permlane16_swap_b32 v{oo+2}, v{oo+3}
v_permlane32_swap_b32 v{S}, v{mt}
v_add_f32 v{oo}, v{oo}, v{oo+1}
v_add_f32 v{oo+2}, v{oo+2}, v{oo+3}
v_add_f32 v{S}, v{S}, v{mt}
s_nop 0
v_permlane32_swap_b32 v{oo}, v{oo+2}
v_rcp_f32 v{S}, v{S}
v_add_f32 v{oo}, v{oo}, v{oo+2}
v_mul_f32 v{oo}, v{oo}, v{S}
v_cvt_pk_bf16_f32 v{oo}, v{oo}, v{oo}
ds_write_b16 v{vOLw}, v{oo} offset:{OL}
""")
    setflag(F_O)
    a(f"s_add_u32 s{sT2}, s{sFG}, 65536\ns_mov_b32 s{sCnt}, {spin}")
    waitflags(group=F_O)
    ob = B16 + 8; y = C32; yg = E8
    a(f"""
ds_read_b128 {rng(ob,4)}, v{vOLr} offset:{OL}
ds_read_b128 {rng(ob+4,4)}, v{vOLr} offset:{OL+64}
""")
    for s in range(2):
        a(f"s_waitcnt lgkmcnt({1-s})")
        for tp in range(2):
            c = "0" if s == 0 else rng(y+4*tp,4)
            if ycoal: a(f"v_mfma_f32_16x16x32_bf16 {rng(y+4*tp,4)}, {rng(ob+4*s,4)}, {rng(wb+8*s+4*tp,4)}, {c}")
            else: a(f"v_mfma_f32_16x16x32_bf16 {rng(y+4*tp,4)}, {rng(wb+8*s+4*tp,4)}, {rng(ob+4*s,4)}, {c}")
    if ycoal:
        a(f"v_mov_b32 v{E8+3}, s{sTag}\ns_nop 6")
        for r in range(4): a(f"v_cndmask_b32 v{y+r}, v{y+r}, v{y+4+r}, s[{sG1}:{sG1+1}]")
        a(f"""v_perm_b32 v{yg}, v{y}, v{y+3}, s{sP0}
v_perm_b32 v{yg+1}, v{y+1}, v{y+3}, s{sP1}
v_perm_b32 v{yg+2}, v{y+2}, v{y+3}, s{sP2}
buffer_store_dwordx4 {rng(yg,4)}, v{vYst}, s[28:31], s{sYst} offen sc1""")
    else:
        a(f"v_mov_b32 v{E8+3}, s{sTag}\nv_mov_b32 v{E8+7}, s{sTag}\ns_nop 4")
        for tp in range(2):
            a(f"""v_perm_b32 v{yg+4*tp}, v{y+4*tp}, v{y+4*tp+3}, s{sP0}
v_perm_b32 v{yg+4*tp+1}, v{y+4*tp+1}, v{y+4*tp+3}, s{sP1}
v_perm_b32 v{yg+4*tp+2}, v{y+4*tp+2}, v{y+4*tp+3}, s{sP2}
buffer_store_dwordx4 {rng(yg+4*tp,4)}, v{vYst}, s[28:31], s{sYst} offen offset:{tp*64} sc1""")
    setflag(F_YI)
    ST_("y published")
    waitflags(group=F_YI)
    if not noflush:
        for x_ in QFL + OFL: a(x_)
    if dirty:
        a(f"s_lshl_b32 s{sT}, s2, 2\ns_add_u32 s{sT}, s{sT}, {W}\ns_mul_i32 s{sT}, s{sT}, {dirty*1024}\ns_add_u32 s{sT}, s{sT}, 0x800000\nv_lshlrev_b32 v{t0}, 4, v{l}")
        for i in range(dirty):
            a(f"buffer_store_dwordx4 {rng(C32,4)}, v{t0}, s[28:31], s{sT} offen\ns_add_u32 s{sT}, s{sT}, 1024")
    z = C32 + 24
    fg = C32 + 16
    FM = {0: ' sc1', 1: ' sc1 nt', 2: ' sc0 sc1', 3: ' sc0 sc1 nt'}[fmode]
    a(f"""s_cmp_lg_u32 {W}, 0
s_cbranch_scc1 L_fin
L_fpoll:
buffer_load_dwordx4 {rng(fg,4)}, v{vFG}, s[28:31], s{sFG} offen{FM}
buffer_load_dwordx4 {rng(fg+4,4)}, v{vFG}, s[28:31], s{sT2} offen{FM}
s_waitcnt vmcnt(0)
v_cmp_ne_u32 vcc, s{sTag}, v{fg+3}
v_cmp_ne_u32 s[{sa_tmp}:{sa_tmp+1}], s{sTag}, v{fg+7}
s_or_b64 vcc, vcc, s[{sa_tmp}:{sa_tmp+1}]
s_cbranch_vccz L_fok
{('s_sleep ' + str(fsleep)) if fsleep else 's_nop 0'}
s_sub_u32 s{sCnt}, s{sCnt}, 1
s_cbranch_scc0 L_fpoll
L_fok:""")
    ST_("final gathered")
    a(f"""
v_perm_b32 v{z+3}, v{fg}, v{fg+1}, s{sU0}
v_perm_b32 v{z+7}, v{fg+4}, v{fg+5}, s{sU0}
v_add_f32 v{z}, v{fg}, v{fg+4}
v_perm_b32 v{z+3}, v{z+3}, v{fg+2}, s{sU1}
v_perm_b32 v{z+7}, v{z+7}, v{fg+6}, s{sU1}
v_add_f32 v{z+1}, v{fg+1}, v{fg+5}
v_add_f32 v{z+2}, v{fg+2}, v{fg+6}
v_add_f32 v{z+3}, v{z+3}, v{z+7}
""")
    for ctl in ("quad_perm:[2,3,0,1]", "row_ror:4", "row_ror:8"):
        for r in range(4):
            a(f"v_add_f32_dpp v{z+r}, v{z+r}, v{z+r} {ctl} row_mask:0xf bank_mask:0xf")
    a(f"""
s_nop 0
v_permlane16_swap_b32 v{z}, v{z+1}
v_permlane16_swap_b32 v{z+2}, v{z+3}
s_nop 0
v_add_f32 v{z}, v{z}, v{z+1}
v_add_f32 v{z+2}, v{z+2}, v{z+3}
s_nop 1
v_permlane32_swap_b32 v{z}, v{z+2}
s_nop 0
v_add_f32 v{z}, v{z}, v{z+2}
v_cvt_pk_bf16_f32 v{z}, v{z}, v{z}
buffer_store_short v{z}, v{vOut}, s[32:35], 0 offen
s_cmp_lg_u32 s2, 0
s_cbranch_scc1 L_fin
v_mov_b32 v{t0}, s{sTag}
v_mov_b32 v{t1}, {WSB}
s_mov_b64 exec, 1
buffer_store_dword v{t0}, v{t1}, s[28:31], 0 offen sc1
s_mov_b64 exec, -1
L_fin:
""")
    a("s_branch L_tail" if stamp else "s_endpgm")
    for name, c in cold:
        for x_ in c: a(x_)
    a("; WARM_END")
    for c in colder:
        for x_ in c: a(x_)
    a("L_tail:")
    if stamp:
        a(f"s_mov_b32 s31, 0x20000\ns_mov_b32 s30, {WS_BYTES}")
    if amp >= 0:
        ST_("end")
        e = nst[0] - 1
        a(f"""
s_waitcnt lgkmcnt(0)
s_cmp_lg_u32 {W}, {ampw}
s_cbranch_scc1 L_end
""")
        if ampglob:
            a(f"""
s_lshl_b32 s37, s2, 3
s_add_u32 s37, s37, {ST}
v_mov_b32 v{C32}, s{SB}
v_mov_b32 v{C32+1}, s{sTag}
v_mov_b32 v{t1}, 0
s_mov_b64 exec, 1
buffer_store_dwordx2 v[{C32}:{C32+1}], v{t1}, s[28:31], s37 offen sc1
s_mov_b64 exec, -1
""")
        a(f"""
s_cmp_lg_u32 s2, 0
s_cbranch_scc1 L_end
""")
        if ampglob:
            a(f"""
s_mov_b32 s37, {ST}
v_lshlrev_b32 v{t1}, 5, v{l}
L_ag:
buffer_load_dwordx4 v[{C32}:{C32+3}], v{t1}, s[28:31], s37 offen sc1
buffer_load_dwordx4 v[{C32+4}:{C32+7}], v{t1}, s[28:31], s37 offen offset:16 sc1
s_waitcnt vmcnt(0)
v_cmp_ne_u32 vcc, s{sTag}, v{C32+1}
v_cmp_ne_u32 s[40:41], s{sTag}, v{C32+3}
s_or_b64 vcc, vcc, s[40:41]
v_cmp_ne_u32 s[40:41], s{sTag}, v{C32+5}
s_or_b64 vcc, vcc, s[40:41]
v_cmp_ne_u32 s[40:41], s{sTag}, v{C32+7}
s_or_b64 vcc, vcc, s[40:41]
s_cbranch_vccnz L_ag
v_subrev_u32 v{C32}, s{SB}, v{C32}
v_subrev_u32 v{C32+2}, s{SB}, v{C32+2}
v_subrev_u32 v{C32+4}, s{SB}, v{C32+4}
v_subrev_u32 v{C32+6}, s{SB}, v{C32+6}
v_min_i32 v{C32}, v{C32}, v{C32+2}
v_min_i32 v{C32+4}, v{C32+4}, v{C32+6}
v_min_i32 v{C32}, v{C32}, v{C32+4}
s_nop 1
v_min_i32_dpp v{C32}, v{C32}, v{C32} row_ror:1 row_mask:0xf bank_mask:0xf
s_nop 1
v_min_i32_dpp v{C32}, v{C32}, v{C32} row_ror:2 row_mask:0xf bank_mask:0xf
s_nop 1
v_min_i32_dpp v{C32}, v{C32}, v{C32} row_ror:4 row_mask:0xf bank_mask:0xf
s_nop 1
v_min_i32_dpp v{C32}, v{C32}, v{C32} row_ror:8 row_mask:0xf bank_mask:0xf
s_nop 1
v_readlane_b32 s36, v{C32}, 0
v_readlane_b32 s37, v{C32}, 16
v_readlane_b32 s38, v{C32}, 32
v_readlane_b32 s39, v{C32}, 48
s_nop 3
s_min_i32 s36, s36, s37
s_min_i32 s38, s38, s39
s_min_i32 s36, s36, s38
s_sub_u32 s37, s{SB+2*amp}, s{SB}
s_sub_u32 s37, s37, s36
s_memrealtime s[40:41]
s_waitcnt lgkmcnt(0)
s_mul_i32 s37, s37, {ampk}
s_add_u32 s37, s37, s40
""")
        else:
            a(f"""
s_sub_u32 s37, s{SB+2*amp}, s{SB+2*ampj}
s_mul_i32 s37, s37, {ampk}
s_add_u32 s37, s37, s{SB+2*e}
""")
        a(f"""
L_amp:
s_memrealtime s[40:41]
s_waitcnt lgkmcnt(0)
s_cmp_lt_u32 s40, s37
s_cbranch_scc1 L_amp
""")
    elif stamp:
        ST_("end")
        if stamp == 2:
            a("s_waitcnt vmcnt(0)")
            ST_("end2")
        n = nst[0]
        a(f"""
s_waitcnt lgkmcnt(0) vmcnt(0)
s_mul_i32 s4, s2, 8
s_add_u32 s4, s4, s3
s_lshl_b32 s4, s4, 6
s_add_u32 s4, s4, {ST}
v_mov_b32 v{t1}, 0
s_mov_b64 exec, 1
""")
        for i in range(n):
            a(f"v_mov_b32 v{t0}, s{SB+2*i}\nbuffer_store_dword v{t0}, v{t1}, s[28:31], s4 offen offset:{4*i}\ns_nop 0")
    a("L_end:\ns_endpgm")
    lines = a.L
    nh = 0
    if warm:
        if warml: lines, nh, have = hops.insert_multi(lines, nparts, [("; LWARM_START", "; LWARM_END"), ("; WARM_START", "; WARM_END")])
        else: lines, nh, have = hops.insert(lines, nparts)
        assert have == nparts, (have, nparts)
    body = "\n".join(lines) + "\n"
    assert (not stamp) or (sa.hi <= SB and ls.hi <= SB), (sa.hi, ls.hi)
    nv = max(va.hi, lv.hi)
    s = header([f"; @launch grid=(256,1,1) block=(320,1,1) lds={LDS_BYTES}"], DOC) + kernel_begin(KNAME) + body + RODATA + descriptor(KNAME, nv, 102 if stamp else max(sa.hi, ls.hi))
    errs = haz.check(body)
    for e in errs: print("HAZ", e)
    return s, nv, sa.hi, nh, stn
if __name__ == "__main__":
    out = sys.argv[1]
    kw = {}
    for x in sys.argv[2:]:
        k, v = x.split("=")
        if k in ("warm", "prio", "holdwo", "rot", "rotq", "ilv", "ycoal", "xnt", "xfirst", "pvp"): kw[k] = (v == "1")
        elif k == "nt": kw[k] = (" " + v if v else "")
        else: kw[k] = int(v)
    s, nv, ns, nh, stn = gen(**kw)
    open(out, "w").write(s)
    print("vgprs", nv, "sgprs", ns, "hops", nh, "lds", LDS_BYTES, stn)
```

```python
import sys, struct
sys.path.insert(0, "my")
from ag import *
import haz, hops

import os
WSB = int(os.environ.get('WSB', '0'), 0)
QF = WSB + 0x10000
OF = WSB + 0x80000
OX = WSB + 0x100000
SOFF = 0x200000
ST = 0x400000
WS_BYTES = 268435456
QL = 0
PL = QL + 1280
SL = PL + 1024
OL = SL + 64
FL = 3136
JK = FL + 160
XL = 3840; WQ = XL + 1024; KL = WQ + 16384; VL = KL + 32768
import os
if os.environ.get('ALIAS', '0') == '1':
    WO = WQ; LDS_BYTES = VL + 32768
else:
    WO = VL + 32768; LDS_BYTES = WO + 16384
assert OL + 768 <= FL and JK + 416 <= XL and XL % 256 == 0 and WQ % 256 == 0
F_Q, F_P, F_O, F_GI, F_QI, F_GOK, F_OI, F_YI, F_GO, F_K, F_V, F_W = 0, 16, 32, 48, 64, 80, 96, 112, 128, 132, 136, 140
CSC = 0.08838834764831845 * 1.4426950408889634
def f32(x): return "0x%08x" % struct.unpack("<I", struct.pack("<f", x))[0]
DOC = """;
; Sliding-window GQA decode (q-proj -> attention over the last 1024 keys -> out-proj), one launch.
; Wave 4 = loader: streams wq/x/K/V/wo tiles HBM -> LDS with LDS-DMA (nt), a bounded number in flight.
; Hand-offs between workgroups: 16-byte granules {payload, tag} in d_ws; tag = LCG(epoch word read from d_ws at entry),
; first copy alternates with the second, so the result does not depend on placement.  Step 7 uses sc1 only.
; Intra-workgroup hand-offs use LDS flag words.  The s_cbranch_execz chain (L_hopN) is only walked with EXEC = 0 by
; the idle compute waves at start to pull the code into the instruction cache; it is never taken otherwise.
"""
class V:
    def __init__(s, n=0): s.n = n; s.hi = n
    def __call__(s, cnt=1, align=1):
        s.n = (s.n + align - 1) // align * align
        r = s.n; s.n += cnt; s.hi = max(s.hi, s.n)
        return r
def rng(r, n): return f"v[{r}:{r+n-1}]"
OOB = "0x7ffffff0"

def gen(stamp=False, nt=" nt", hold=0, kx=32, nmid=32, lgo=60, holdwo=False, rot=True, rotq=True, fd=1, compact=0, b0e=0, gmin=0, warml=0, fmode=0, pvp=True, lwo=0, fsleep=0, nooi=0, n1p=0, noflush=0, sameS=0, dirty=0, cqx=0, xnt=False, xfirst=False, ilv=True, ycoal=True, wthr=2000, n3=0, n2=0, N=24, spin=100000, nf=64, amp=-1, ampk=10, ampglob=0, ampj=0, ampw=0, warm=True, pt=1, nparts=4, prio=True, step=2):
    if amp >= 0: stamp = True
    a = A(); va = V(1); sa = V(36)
    l = va(); t0 = va(); t1 = va(); t2 = va(); t3 = va()
    nst = [0]; stn = []
    SB = 74 if (pt == 12 or gmin) else 72
    def ST_(label):
        if stamp and (stamp != 2 or label in ('entry', 'end', 'end2')):
            i = nst[0]; nst[0] += 1; stn.append(label)
            assert i < (14 if (pt == 12 or gmin) else 15)
            a(f"s_memrealtime s[{SB+2*i}:{SB+1+2*i}]")
    W, G, R, B, C = "s3", "s4", "s5", "s6", "s7"
    sT = sa(); sT2 = sa(); sWin = sa()
    if compact:
        a(f"""
s_cmp_ge_u32 s2, 256
s_cbranch_scc1 L_end
s_load_dwordx2 s[20:21], s[0:1], 24
s_load_dwordx2 s[8:9], s[0:1], 0
s_load_dwordx2 s[12:13], s[0:1], 8
""")
        if stamp: a("s_load_dwordx2 s[28:29], s[0:1], 56")
    else:
        a(f"""
s_cmp_ge_u32 s2, 256
s_cbranch_scc1 L_end
s_load_dwordx2 s[20:21], s[0:1], 24
s_load_dwordx2 s[8:9], s[0:1], 0
s_load_dwordx2 s[12:13], s[0:1], 8
s_load_dwordx2 s[28:29], s[0:1], 56
s_load_dwordx2 s[16:17], s[0:1], 16
s_load_dwordx2 s[24:25], s[0:1], 32
s_load_dwordx2 s[32:33], s[0:1], 40
""")
    ST_("entry")
    a(f"""
v_lshrrev_b32 v{t0}, 6, v0
v_and_b32 v{l}, 63, v0
s_and_b32 {G}, s2, 7
v_readfirstlane_b32 {W}, v{t0}
s_lshr_b32 {R}, s2, 3
s_lshr_b32 {B}, {R}, 3
s_and_b32 {C}, {R}, 7
s_mov_b32 s23, 0x20000
v_lshrrev_b32 v{t0}, 4, v{l}
v_and_b32 v{t1}, 15, v{l}
""")
    if stamp: a(f"s_mov_b32 s31, s23\ns_mov_b32 s30, {WS_BYTES}\ns_mov_b32 s35, s23\ns_movk_i32 s34, 0x1000")
    a(f"""
s_cmp_lt_u32 {W}, 4
s_cbranch_scc1 L_compute
""")
    lv = V(va.n); ls = V(sa.n)
    vWQ = lv(2); vX = lv(); vK = lv(4); vV = lv(2); vWO = lv(2); vLF = lv(); vOne = lv()
    sWQ = ls(); sX = ls(); sK = ls(); sWO = ls(); lT = ls(); sWQb0 = ls()
    sRho = ls(); sJ = ls(); sC1 = ls(); sC2 = ls(); sR = ls(); sM = ls()
    if prio: a("s_setprio 2")
    if compact:
        assert kx == 32 and n1p == 24 and b0e and ilv and rot
        a(f"""
s_mov_b32 s22, 0x400000
v_and_b32 v{t2}, 7, v{l}
v_lshlrev_b32 v{t3}, 1, v{t0}
v_and_b32 v{vX}, 2, v{t3}
v_xor_b32 v{t2}, v{t2}, v{vX}
v_lshlrev_b32 v{t2}, 4, v{t2}
v_lshrrev_b32 v{vX}, 3, v{l}
v_lshl_add_u32 v{vWQ}, v{vX}, 13, v{t2}
v_xor_b32 v{vWQ+1}, 64, v{vWQ}
s_lshl_b32 s{sWQ}, {G}, 3
s_add_u32 s{sWQ}, s{sWQ}, {C}
s_lshl_b32 s{sWQ}, s{sWQ}, 7
s_lshl_b32 s{lT}, {B}, 20
s_add_u32 s{sWQ}, s{sWQ}, s{lT}
s_mov_b32 s{sC1}, 64512
s_add_u32 s{sC2}, s{sC1}, 0x1000
s_movk_i32 m0, {WQ}
s_waitcnt lgkmcnt(0)
L_lwq:
buffer_load_dwordx4 v{vWQ}, s[20:23], s{sWQ} offen{nt} lds
s_add_u32 s{sWQ}, s{sWQ}, s{sC1}
buffer_load_dwordx4 v{vWQ+1}, s[20:23], s{sWQ} offen offset:1024{nt} lds
s_add_u32 s{sWQ}, s{sWQ}, s{sC1}
buffer_load_dwordx4 v{vWQ}, s[20:23], s{sWQ} offen offset:2048{nt} lds
s_add_u32 s{sWQ}, s{sWQ}, s{sC1}
buffer_load_dwordx4 v{vWQ+1}, s[20:23], s{sWQ} offen offset:3072{nt} lds
s_add_u32 s{sWQ}, s{sWQ}, s{sC2}
s_addk_i32 m0, 0x1000
s_cmp_lg_u32 m0, {WQ + 16384}
s_cbranch_scc1 L_lwq
s_mov_b32 s11, s23
s_movk_i32 s10, 0x1000
v_lshlrev_b32 v{t2}, 2, v{t0}
v_xor_b32 v{t2}, v{t1}, v{t2}
v_lshlrev_b32 v{t2}, 4, v{t2}
v_lshl_add_u32 v{vX}, v{t0}, 10, v{t2}
s_lshl_b32 s{sX}, {B}, 8
s_movk_i32 m0, {XL}
s_load_dwordx2 s[16:17], s[0:1], 16
buffer_load_dwordx4 v{vX}, s[8:11], s{sX} offen lds
s_load_dwordx2 s[24:25], s[0:1], 32
""")
        ST_("L: wq issued")
        a(f"""
s_mov_b32 s15, s23
s_mov_b32 s14, 0x2000000
v_xor_b32 v{t2}, v{t1}, v{t0}
v_lshlrev_b32 v{t2}, 4, v{t2}
v_lshl_add_u32 v{vK}, v{t0}, 8, v{t2}
v_xor_b32 v{vK+1}, 64, v{vK}
v_xor_b32 v{vK+2}, 0x80, v{vK}
v_xor_b32 v{vK+3}, 0xc0, v{vK}
s_lshl_b32 s{sWin}, {B}, 3
s_add_u32 s{sWin}, s{sWin}, {G}
s_lshl_b32 s{sWin}, s{sWin}, 5
s_add_u32 s{sWin}, s{sWin}, 24
s_lshl_b32 s{sWin}, s{sWin}, 3
s_add_u32 s{sWin}, s{sWin}, {C}
s_lshl_b32 s{sWin}, s{sWin}, 12
s_lshl_b32 s{sRho}, {B}, 1
s_add_u32 s{sRho}, s{sRho}, {G}
s_and_b32 s{sRho}, s{sRho}, 7
s_lshl_b32 s{sRho}, s{sRho}, 12
s_lshl_b32 s{sR}, s{sRho}, 3
s_mov_b32 s{sM}, 0x38000
s_movk_i32 m0, {KL}
L_lk:
s_add_u32 s{sK}, s{sWin}, s{sR}
s_waitcnt vmcnt({n1p - 1})
buffer_load_dwordx4 v{vK}, s[12:15], s{sK} offen{nt} lds
s_waitcnt vmcnt({n1p - 1})
buffer_load_dwordx4 v{vK+1}, s[12:15], s{sK} offen offset:1024{nt} lds
s_waitcnt vmcnt({n1p - 1})
buffer_load_dwordx4 v{vK+2}, s[12:15], s{sK} offen offset:2048{nt} lds
s_waitcnt vmcnt({n1p - 1})
buffer_load_dwordx4 v{vK+3}, s[12:15], s{sK} offen offset:3072{nt} lds
s_add_u32 s{sR}, s{sR}, 0x8000
s_and_b32 s{sR}, s{sR}, s{sM}
s_addk_i32 m0, 0x1000
s_cmp_lg_u32 m0, {KL + 6*4096}
s_cbranch_scc1 L_lk1
s_waitcnt vmcnt({n1p - 1})
s_barrier
L_lk1:
s_cmp_lg_u32 m0, {KL + 8*4096}
s_cbranch_scc1 L_lk
v_lshlrev_b32 v{t2}, 2, v{l}
v_add_u32 v{t2}, {JK}, v{t2}
v_cmp_eq_u32 vcc, 0, v{l}
v_mov_b32 v{vLF}, {FL}
v_mov_b32 v{vOne}, 1
v_cndmask_b32 v{vLF}, v{t2}, v{vLF}, vcc
""")
    else:
        a(f"""
s_mov_b32 s22, 0x400000
v_and_b32 v{t2}, 7, v{l}
v_lshlrev_b32 v{t3}, 1, v{t0}
v_and_b32 v{vX}, 2, v{t3}
v_xor_b32 v{t2}, v{t2}, v{vX}
v_lshlrev_b32 v{t2}, 4, v{t2}
v_lshrrev_b32 v{vX}, 3, v{l}
v_lshl_add_u32 v{vWQ}, v{vX}, 13, v{t2}
v_xor_b32 v{vWQ+1}, 64, v{vWQ}
s_lshl_b32 s{sWQb0}, {G}, 3
s_xor_b32 s{lT}, {C}, {cqx}
s_add_u32 s{sWQb0}, s{sWQb0}, s{lT}
s_lshl_b32 s{sWQb0}, s{sWQb0}, 7
s_lshl_b32 s{lT}, {B}, 20
s_add_u32 s{sWQb0}, s{sWQb0}, s{lT}
s_mov_b32 s11, s23
s_movk_i32 s10, 0x1000
s_mov_b32 s15, s23
s_mov_b32 s14, 0x2000000
; x voffset: (l>>4)*1024 + ((l&15) ^ (4*(l>>4)))*16
v_lshlrev_b32 v{t2}, 2, v{t0}
v_xor_b32 v{t2}, v{t1}, v{t2}
v_lshlrev_b32 v{t2}, 4, v{t2}
v_lshl_add_u32 v{vX}, v{t0}, 10, v{t2}
s_lshl_b32 s{sX}, {B}, 8
""")
    seq = []
    sWQb = sWQb0
    for i in range(16):
        pre = []
        if i % 4 == 0:
            j_ = i // 4
            if rotq:
                pre += [f"s_add_u32 s{sJ}, {B}, {j_}", f"s_and_b32 s{sJ}, s{sJ}, 3", f"s_lshl_b32 s{lT}, s{sJ}, 18", f"s_add_u32 s{sWQ}, s{sWQb}, s{lT}",
                        f"s_lshl_b32 s{lT}, s{sJ}, 12", f"s_add_u32 m0, s{lT}, {WQ}"]
            else:
                pre += [f"s_add_u32 s{sWQ}, s{sWQb}, {j_ << 18}", f"s_mov_b32 m0, {WQ + j_*4096}"]
            pre.append("s_nop 0")
        else:
            pre.append(f"s_add_u32 s{sWQ}, s{sWQ}, {65536 - 1024}")
        seq.append((pre, f"buffer_load_dwordx4 v{vWQ + (i & 1)}, s[20:23], s{sWQ} offen offset:{(i%4)*1024}{nt} lds"))
    seq.append(([f"s_movk_i32 m0, {XL}", "s_nop 0"], f"buffer_load_dwordx4 v{vX}, s[8:11], s{sX} offen{' nt' if xnt else ''} lds"))
    if xfirst: seq.insert(0, seq.pop())
    kpre = f"""; K voffsets: (l>>4)*256 + ((l&15)^(l>>4))*16  ^ (64*i)
v_xor_b32 v{t2}, v{t1}, v{t0}
v_lshlrev_b32 v{t2}, 4, v{t2}
v_lshl_add_u32 v{vK}, v{t0}, 8, v{t2}
v_xor_b32 v{vK+1}, 64, v{vK}
v_xor_b32 v{vK+2}, 0x80, v{vK}
v_xor_b32 v{vK+3}, 0xc0, v{vK}
; flag address vgpr: lane0 -> FL, else JK + 4*l
v_lshlrev_b32 v{t2}, 2, v{l}
v_add_u32 v{t2}, {JK}, v{t2}
v_cmp_eq_u32 vcc, 0, v{l}
v_mov_b32 v{vLF}, {FL}
v_mov_b32 v{vOne}, 1
v_cndmask_b32 v{vLF}, v{t2}, v{vLF}, vcc
; window base = (b*8+g)<<20 + 3072*256 + c*(32768 or 4096)
s_lshl_b32 s{sWin}, {B}, 3
s_add_u32 s{sWin}, s{sWin}, {G}
s_lshl_b32 s{sWin}, s{sWin}, 5
s_add_u32 s{sWin}, s{sWin}, 24
s_lshl_b32 s{sWin}, s{sWin}, 15
s_lshl_b32 s{sJ}, {C}, {12 if ilv else 15}
s_add_u32 s{sWin}, s{sWin}, s{sJ}
; rho*4096 : rho = (g + 2b) & 7
s_lshl_b32 s{sRho}, {B}, 1
s_add_u32 s{sRho}, s{sRho}, {G}
s_and_b32 s{sRho}, s{sRho}, {7 if rot else 0}
s_lshl_b32 s{sRho}, s{sRho}, 12""".split("\n")
    def grp(j_, ldsbase):
        if ilv:
            return [f"s_add_u32 s{sJ}, s{sRho}, {j_*4096}", f"s_and_b32 s{sJ}, s{sJ}, 0x7fff", f"s_mov_b32 m0, {ldsbase + j_*4096}", f"s_lshl_b32 s{sJ}, s{sJ}, 3", f"s_add_u32 s{sK}, s{sWin}, s{sJ}"]
        return [f"s_add_u32 s{sJ}, s{sRho}, {j_*4096}", f"s_and_b32 s{sJ}, s{sJ}, 0x7fff", f"s_add_u32 m0, s{sJ}, {ldsbase}", f"s_add_u32 s{sK}, s{sWin}, s{sJ}"]
    for i in range(32):
        pre = list(kpre) if i == 0 else []
        if i % 4 == 0: pre += grp(i // 4, KL)
        seq.append((pre, f"buffer_load_dwordx4 v{vK+i%4}, s[12:15], s{sK} offen offset:{(i%4)*1024}{nt} lds"))
    vpre = f"""s_mov_b32 s19, s23
s_mov_b32 s18, s14
; V voffset: (l>>4)*256 + ((l&15) ^ ((l>>4)<<1))*16 ; odd: ^128 ; WO: (l>>4)*1024 + same piece
v_xor_b32 v{t2}, v{t1}, v{t3}
v_lshlrev_b32 v{t2}, 4, v{t2}
v_lshl_add_u32 v{vV}, v{t0}, 8, v{t2}
v_xor_b32 v{vV+1}, 0x80, v{vV}
v_lshl_add_u32 v{vWO}, v{t0}, 10, v{t2}
v_xor_b32 v{vWO+1}, 0x80, v{vWO}
s_mov_b32 s27, s23
s_mov_b32 s26, s22
; WO soff = p<<16 + cg*256 ; p = g*8 + r/4 ; cg = r&3
s_lshr_b32 s{lT}, {R}, 2
s_lshl_b32 s{sWO}, {G}, 3
s_add_u32 s{sWO}, s{sWO}, s{lT}
s_lshl_b32 s{sWO}, s{sWO}, 8
s_and_b32 s{lT}, {R}, 3
s_add_u32 s{sWO}, s{sWO}, s{lT}
s_lshl_b32 s{sWO}, s{sWO}, 8""".split("\n")
    for i in range(32):
        pre = list(vpre) if i == 0 else []
        if i % 4 == 0: pre += grp(i // 4, VL)
        seq.append((pre, f"buffer_load_dwordx4 v{vV+(i&1)}, s[16:19], s{sK} offen offset:{(i%4)*1024}{nt} lds"))
    for i in range(16):
        pre = []
        if i == 0: pre += [f"s_mov_b32 m0, {WO}", "s_nop 0"]
        elif i % 4 == 0: pre.append("s_add_u32 m0, m0, 4096")
        if i: pre.append(f"s_add_u32 s{sWO}, s{sWO}, {4096 - 1024 if i % 4 else 4096 + 3072}")
        seq.append((pre, f"buffer_load_dwordx4 v{vWO+((i>>1)&1)}, s[24:27], s{sWO} offen offset:{(i%4)*1024}{nt} lds"))
    T = len(seq); assert T == 97
    def emit(k):
        pre, ld = seq[k]
        for p in pre: a(p)
        a(ld)
    n0 = 17 + kx
    b0done = False
    if compact:
        b0done = True
    else:
        for p in seq[0][0]: a(p)
        a("s_waitcnt lgkmcnt(0)")
        a(seq[0][1])
        for k in range(1, 17): emit(k)
        ST_("L: wq issued")
        if warml == 2: a("; LWARM_START")
        pre17, ld17 = seq[17]
        for p in pre17: a(p)
        if kx > 0:
            if hold: a(f"s_waitcnt vmcnt({17 - hold})")
            a(ld17)
            for k in range(18, n0):
                if n1p and k >= n1p: a(f"s_waitcnt vmcnt({n1p - 1})")
                if b0e and n1p and not b0done and k - (n1p - 1) >= 17:
                    a("s_barrier"); b0done = True
                emit(k)
        else:
            seq[17] = ([], ld17)
    ST_("L: K issued")
    if warml == 1: a("; LWARM_START")
    lfl = lv(4, 4)
    a(f"v_mov_b32 v{t2}, {FL}")
    if not (b0e and kx > 0 and b0done): a(f"s_waitcnt vmcnt({n0 - 17})\ns_barrier")
    ST_("L: wq landed")
    def lwait(name, off):
        a(f"""L_{name}:
ds_read_b128 v[{lfl}:{lfl+3}], v{t2} offset:{off}
s_waitcnt lgkmcnt(0)
v_and_b32 v{lfl}, v{lfl}, v{lfl+1}
v_and_b32 v{lfl+2}, v{lfl+2}, v{lfl+3}
v_and_b32 v{lfl}, v{lfl}, v{lfl+2}
v_cmp_eq_u32 vcc, 0, v{lfl}
s_cbranch_vccnz L_{name}""")
    vFA = lv()
    a(f"v_mov_b32 v{vFA}, {FL}")
    def lwait(name, off):
        a(f"""L_{name}:
ds_read_b128 v[{lfl}:{lfl+3}], v{vFA} offset:{off}
s_waitcnt lgkmcnt(0)
v_and_b32 v{lfl}, v{lfl}, v{lfl+1}
v_and_b32 v{lfl+2}, v{lfl+2}, v{lfl+3}
v_and_b32 v{lfl}, v{lfl}, v{lfl+2}
v_cmp_eq_u32 vcc, 0, v{lfl}
s_cbranch_vccnz L_{name}""")
    lwait("qi", F_QI)
    n1 = 49 + nmid
    for k in range(n0, n1):
        if n2: a(f"s_waitcnt vmcnt({n2 - 1})")
        emit(k)
    assert lgo <= n1 and n1 <= T
    a(f"s_waitcnt vmcnt({n1 - lgo})")
    a(f"ds_write_b32 v{vLF}, v{vOne} offset:{F_GO}")
    lwait("gi", F_GI)
    for k in range(n1, T):
        if k == 81 and holdwo: lwait("gok", F_GOK)
        if k == 81 and lwo: a(f"s_waitcnt vmcnt({81 - lwo})")
        if n3: a(f"s_waitcnt vmcnt({n3 - 1})")
        emit(k)
    if lgo < 49: a(f"s_waitcnt vmcnt({T - 49})\nds_write_b32 v{vLF}, v{vOne} offset:{F_K}")
    F_V1 = F_GOK
    tailev = ([(49 + nmid, F_V1)] if pvp else []) + [(81, F_V), (97, F_W)]
    for cnt, f in tailev:
        a(f"s_waitcnt vmcnt({T - cnt})\nds_write_b32 v{vLF}, v{vOne} offset:{f}")
    ST_("L: all landed")
    if warml: a("; LWARM_END")
    if stamp: a("s_branch L_fin")
    else: a("s_endpgm")
    a("L_compute:")
    if compact:
        if not stamp: a("s_load_dwordx2 s[28:29], s[0:1], 56")
        a("s_load_dwordx2 s[32:33], s[0:1], 40")
    g = va(); n16 = va(); n4 = va()
    sQB = sa(); sOB = sa(); sEp = sa(); sTag = sa(); vPT = va()
    a(f"""
s_mov_b32 s31, s23
s_mov_b32 s30, {WS_BYTES}
s_mov_b32 s35, s23
s_movk_i32 s34, 0x1000
s_lshl_b32 s{sQB}, {G}, 4
s_add_u32 s{sQB}, s{sQB}, {B}
s_lshl_b32 s{sQB}, s{sQB}, 11
s_xor_b32 s{sT}, {C}, {cqx}
s_lshl_b32 s{sT}, s{sT}, 8
s_add_u32 s{sQB}, s{sQB}, s{sT}
s_add_u32 s{sQB}, s{sQB}, {QF}
s_lshl_b32 s{sOB}, {B}, 3
s_add_u32 s{sOB}, s{sOB}, {G}
s_lshl_b32 s{sOB}, s{sOB}, 5
s_add_u32 s{sOB}, s{sOB}, {C}
s_lshl_b32 s{sOB}, s{sOB}, 9
s_add_u32 s{sOB}, s{sOB}, {OF}
""")
    vPTa = va()
    if pt in (1, 3, 7):
        a(f"""
s_mul_i32 s{sT}, {W}, 6
v_add_u32 v{t3}, s{sT}, v{l}
v_lshrrev_b32 v{t0}, 1, v{t3}
v_lshlrev_b32 v{t0}, 13, v{t0}
v_and_b32 v{t1}, 1, v{t3}
v_lshl_or_b32 v{t0}, v{t1}, 7, v{t0}
v_add_u32 v{t0}, s{sQB}, v{t0}
v_subrev_u32 v{t1}, 8, v{t3}
v_lshrrev_b32 v{t2}, 2, v{t1}
v_lshlrev_b32 v{t2}, 12, v{t2}
v_and_b32 v{t1}, 3, v{t1}
v_lshl_or_b32 v{t2}, v{t1}, 7, v{t2}
v_add_u32 v{t2}, s{sOB}, v{t2}
v_cmp_gt_u32 vcc, 8, v{t3}
v_mov_b32 v{t3}, {OOB}
s_nop 0
v_cndmask_b32 v{t0}, v{t2}, v{t0}, vcc
v_cmp_gt_u32 vcc, 6, v{l}
s_mov_b32 s{sT}, {WSB}
s_waitcnt lgkmcnt(0)
s_load_dword s{sEp}, s[28:29], s{sT}
v_cndmask_b32 v{vPTa}, v{t3}, v{t0}, vcc
""")
        if pt != 7: a(f"buffer_load_dword v{vPT}, v{vPTa}, s[28:31], 0 offen{' nt' if pt == 3 else ''}")
    else:
        a(f"s_mov_b32 s{sT}, {WSB}\ns_waitcnt lgkmcnt(0)\ns_load_dword s{sEp}, s[28:29], s{sT}" if WSB else f"s_waitcnt lgkmcnt(0)\ns_load_dword s{sEp}, s[28:29], 0")
        if pt in (10, 11, 12):
            sD = sa(); sO1 = sa(); sO2 = sa()
            a(f"s_lshl_b32 s{sT}, {W}, 13\ns_add_u32 s{sO1}, s{sQB}, s{sT}\ns_lshl_b32 s{sT}, {W}, 12\ns_add_u32 s{sO2}, s{sOB}, s{sT}")
            stp = 128 if pt == 11 else 64
            ypt = [f"s_load_dword s{sD}, s[28:29], s{sO1} offset:{o}" for o in range(0, 256, stp)] + [f"s_load_dword s{sD}, s[28:29], s{sO2} offset:{o}" for o in range(0, 512, stp)]
            if pt == 12:
                sO3 = sT2
                sO3 = sa()
                a(f"""s_and_b32 s{sO3}, {R}, 3
s_lshl_b32 s{sO3}, s{sO3}, 6
s_lshl_b32 s{sT}, {G}, 3
s_add_u32 s{sO3}, s{sO3}, s{sT}
s_lshr_b32 s{sT}, {R}, 2
s_add_u32 s{sO3}, s{sO3}, s{sT}
s_lshl_b32 s{sO3}, s{sO3}, 2
s_add_u32 s{sO3}, s{sO3}, {W}
s_lshl_b32 s{sO3}, s{sO3}, 9
s_add_u32 s{sO3}, s{sO3}, {OX + SOFF}""")
                ypt += [f"s_load_dword s{sD}, s[28:29], s{sO3} offset:{o}" for o in range(0, 512, 64)]
        if pt in (8, 9):
            sD = sa(); sO1 = sa()
            a(f"s_lshl_b32 s{sT}, {W}, 13\ns_add_u32 s{sO1}, s{sQB}, s{sT}")
            for o in range(0, 256, 64): a(f"s_load_dword s{sD}, s[28:29], s{sO1} offset:{o}")
            a(f"s_lshl_b32 s{sT}, {W}, 12\ns_add_u32 s{sO1}, s{sOB}, s{sT}")
            for o in range(0, 512, 64): a(f"s_load_dword s{sD}, s[28:29], s{sO1} offset:{o}")
            if pt == 9:
                a(f"""s_and_b32 s{sO1}, {R}, 3
s_lshl_b32 s{sO1}, s{sO1}, 6
s_lshl_b32 s{sT}, {G}, 3
s_add_u32 s{sO1}, s{sO1}, s{sT}
s_lshr_b32 s{sT}, {R}, 2
s_add_u32 s{sO1}, s{sO1}, s{sT}
s_lshl_b32 s{sO1}, s{sO1}, 2
s_add_u32 s{sO1}, s{sO1}, {W}
s_lshl_b32 s{sO1}, s{sO1}, 9
s_add_u32 s{sO1}, s{sO1}, {OX + SOFF}""")
                ypt = [f"s_load_dword s{sD}, s[28:29], s{sO1} offset:{o}" for o in range(0, 512, 64)]
        if pt in (2, 4, 6):
            a(f"""
s_lshl_b32 s{sT}, {W}, 12
s_add_u32 s{sT}, s{sT}, s{sOB}
v_lshlrev_b32 v{t0}, 7, v{l}
v_add_u32 v{t0}, s{sT}, v{t0}
v_cmp_gt_u32 vcc, 4, v{l}
v_mov_b32 v{t3}, {OOB}
s_nop 0
v_cndmask_b32 v{vPTa}, v{t3}, v{t0}, vcc
""")
    if warm:
        a("s_mov_b64 exec, 0")
        for p in range(1, nparts):
            a(f"s_cmp_eq_u32 {W}, {p}\ns_cbranch_scc1 HOP_P{p}")
        a("s_branch HOP_P0\nL_warm_done:\ns_mov_b64 exec, -1")
    a("; WARM_START")
    sP = sa(); sCG = sa(); sR4 = sa()
    vXr = va(4); vWQr = va(); vKr = va(4); vVr = va(2); vWOr = va(2)
    vQst = va(); vG = va(); sG = sa(); vQLw = va(); vQLr = va()
    vPw = va(); vPr = va(); vSw = va(); vSr = va()
    vOst = va(); vOG = va(); sOG = sa(); vOLw = va(); vOLr = va()
    vYst = va(); sYst = sa(); vFG = va(); sFG = sa(); vOut = va()
    vFw = va(); vFr = va(); vOne_c = va()
    sCsc = sa(); sP0 = sa(); sP1 = sa(); sP2 = sa(); sU0 = sa(); sU1 = sa(); sM4 = sa(2, 2); sG1 = sa(2, 2); sCnt = sa()
    a(f"""
v_lshrrev_b32 v{g}, 4, v{l}
v_and_b32 v{n16}, 15, v{l}
v_and_b32 v{n4}, 3, v{l}
v_lshlrev_b32 v{t2}, 2, v{l}
v_mov_b32 v{t3}, 0
ds_write_b32 v{t2}, v{t3} offset:{FL}
v_add_u32 v{t2}, {JK}, v{t2}
s_lshl_b32 s{sT}, {W}, 2
s_add_u32 s{sT}, s{sT}, {FL}
v_mov_b32 v{vFw}, s{sT}
v_cmp_eq_u32 vcc, 0, v{l}
v_mov_b32 v{vFr}, {FL}
v_mov_b32 v{vOne_c}, 1
v_cndmask_b32 v{vFw}, v{t2}, v{vFw}, vcc
; p = g*8 + r/4 ; cg = r&3
s_lshr_b32 s{sR4}, {R}, 2
s_lshl_b32 s{sP}, {G}, 3
s_add_u32 s{sP}, s{sP}, s{sR4}
s_and_b32 s{sCG}, {R}, 3
v_lshlrev_b32 v{t2}, 2, v{n4}
v_xor_b32 v{t2}, v{g}, v{t2}
v_lshlrev_b32 v{t2}, 4, v{t2}
v_lshl_add_u32 v{t2}, v{n4}, 8, v{t2}
v_add_u32 v{vXr}, {XL}, v{t2}
v_xor_b32 v{vXr+1}, 64, v{vXr}
v_xor_b32 v{vXr+2}, 0x80, v{vXr}
v_xor_b32 v{vXr+3}, 0xc0, v{vXr}
v_bfe_u32 v{t0}, v{l}, 2, 2
v_lshl_add_u32 v{t2}, v{g}, 3, v{t0}
v_lshlrev_b32 v{t2}, 7, v{t2}
v_lshl_add_u32 v{t2}, v{n4}, 3, v{t2}
v_lshrrev_b32 v{t3}, 1, v{t0}
v_and_b32 v{t1}, 1, v{g}
v_lshl_or_b32 v{t3}, v{t1}, 1, v{t3}
v_xor_b32 v{t3}, {W}, v{t3}
v_lshl_add_u32 v{t2}, v{t3}, 5, v{t2}
v_add_u32 v{vWQr}, {WQ}, v{t2}
s_lshl_b32 s{sT}, {W}, 13
s_add_u32 s{sT}, s{sT}, {KL}
v_xor_b32 v{t2}, v{g}, v{n16}
v_lshlrev_b32 v{t2}, 4, v{t2}
v_lshl_add_u32 v{t2}, v{n16}, 8, v{t2}
v_add_u32 v{vKr}, s{sT}, v{t2}
v_xor_b32 v{vKr+1}, 64, v{vKr}
v_xor_b32 v{vKr+2}, 0x80, v{vKr}
v_xor_b32 v{vKr+3}, 0xc0, v{vKr}
v_lshl_add_u32 v{t2}, v{g}, 2, v{t0}
v_lshlrev_b32 v{t2}, 8, v{t2}
v_lshl_add_u32 v{t2}, v{n4}, 3, v{t2}
v_lshl_or_b32 v{t3}, v{t1}, 2, v{t0}
s_lshl_b32 s{sT}, {W}, 1
v_xor_b32 v{t3}, s{sT}, v{t3}
v_lshl_add_u32 v{t2}, v{t3}, 5, v{t2}
v_add_u32 v{vVr}, {VL}, v{t2}
v_xor_b32 v{vVr+1}, 32, v{vVr}
v_lshl_add_u32 v{t2}, v{g}, 3, v{t0}
v_lshlrev_b32 v{t2}, 8, v{t2}
v_lshl_add_u32 v{t2}, v{n4}, 3, v{t2}
v_lshl_add_u32 v{t2}, v{t3}, 5, v{t2}
v_add_u32 v{vWOr}, {WO}, v{t2}
v_xor_b32 v{vWOr+1}, 32, v{vWOr}
v_cmp_gt_u32 vcc, 4, v{n16}
v_mov_b32 v{t3}, {OOB}
s_lshl_b32 s{sT}, {W}, 6
v_lshlrev_b32 v{t2}, 4, v{g}
v_add_u32 v{t0}, s{sT}, v{t2}
v_lshl_add_u32 v{t0}, v{n16}, 13, v{t0}
v_cndmask_b32 v{vQst}, v{t3}, v{t0}, vcc
s_lshl_b32 s{sT}, {W}, 7
v_add_u32 v{t2}, s{sT}, v{t2}
v_lshl_add_u32 v{t0}, v{n16}, 12, v{t2}
v_cndmask_b32 v{vOst}, v{t3}, v{t0}, vcc
v_lshl_add_u32 v{t0}, v{n16}, 9, v{t2}
v_cndmask_b32 v{vYst}, v{t3}, v{t0}, vcc
YCOAL_ADDR
v_lshrrev_b32 v{t0}, 5, v{l}
v_and_b32 v{t1}, 31, v{l}
v_lshlrev_b32 v{t2}, 4, v{t1}
v_lshl_add_u32 v{vG}, v{t0}, 12, v{t2}
s_lshl_b32 s{sG}, {G}, 2
s_add_u32 s{sG}, s{sG}, {B}
s_lshl_b32 s{sG}, s{sG}, 4
s_add_u32 s{sG}, s{sG}, {W}
s_lshl_b32 s{sG}, s{sG}, 9
s_add_u32 s{sG}, s{sG}, {QF}
s_mul_i32 s{sT}, {W}, 320
v_lshlrev_b32 v{t2}, 3, v{t1}
v_lshl_add_u32 v{t2}, v{t0}, 2, v{t2}
v_add_u32 v{vQLw}, s{sT}, v{t2}
v_mul_u32_u24 v{t2}, 320, v{n4}
v_lshl_add_u32 v{vQLr}, v{g}, 4, v{t2}
v_lshlrev_b32 v{t2}, 6, v{n4}
v_lshl_add_u32 v{vPr}, v{g}, 4, v{t2}
s_lshl_b32 s{sT}, {W}, 8
v_add_u32 v{vPw}, s{sT}, v{vPr}
v_lshlrev_b32 v{vSr}, 4, v{n4}
s_lshl_b32 s{sT}, {W}, 2
v_add_u32 v{vSw}, s{sT}, v{vSr}
v_lshlrev_b32 v{t2}, 9, v{g}
v_lshl_add_u32 v{vOG}, v{n16}, 4, v{t2}
s_lshl_b32 s{sOG}, {W}, 3
s_add_u32 s{sOG}, s{sOG}, {G}
s_lshl_b32 s{sOG}, s{sOG}, 2
s_add_u32 s{sOG}, s{sOG}, {B}
s_lshl_b32 s{sOG}, s{sOG}, 4
s_and_b32 s{sT}, s{sR4}, 1
s_add_u32 s{sOG}, s{sOG}, s{sT}
s_lshl_b32 s{sOG}, s{sOG}, 8
s_add_u32 s{sOG}, s{sOG}, {OF}
s_mul_i32 s{sT}, {W}, 192
v_lshlrev_b32 v{t2}, 3, v{n16}
v_lshl_add_u32 v{t2}, v{g}, 1, v{t2}
v_add_u32 v{vOLw}, s{sT}, v{t2}
v_mul_u32_u24 v{t2}, 192, v{n4}
v_lshl_add_u32 v{vOLr}, v{g}, 4, v{t2}
s_lshl_b32 s{sYst}, s{sCG}, 6
s_add_u32 s{sYst}, s{sYst}, s{sP}
s_lshl_b32 s{sYst}, s{sYst}, 11
s_add_u32 s{sYst}, s{sYst}, {OX + SOFF}
v_lshrrev_b32 v{t0}, 1, v{l}
v_and_b32 v{t1}, 1, v{l}
v_lshlrev_b32 v{t2}, 4, v{t1}
v_lshl_add_u32 v{vFG}, v{t0}, 11, v{t2}
s_lshl_b32 s{sFG}, s{sCG}, 12
s_add_u32 s{sFG}, s{sFG}, s{sP}
s_lshl_b32 s{sFG}, s{sFG}, 5
s_add_u32 s{sFG}, s{sFG}, {OX + SOFF}
YCOAL_OUT
v_cmp_gt_u32 vcc, 2, v{n16}
s_mov_b32 s{sCsc}, {f32(CSC)}
s_mov_b32 s{sP0}, 0x07060503
v_cndmask_b32 v{vOut}, v{t3}, v{t2}, vcc
s_mov_b32 s{sP1}, 0x07060502
s_mov_b32 s{sP2}, 0x07060501
s_mov_b32 s{sU0}, 0x04000c0c
s_mov_b32 s{sU1}, 0x0706000c
s_mov_b32 s{sM4}, 0x000f000f
s_mov_b32 s{sM4+1}, 0x000f000f
s_waitcnt lgkmcnt(0)
s_mul_i32 s{sTag}, s{sEp}, 1664525
s_add_u32 s{sTag}, s{sTag}, 1013904223
""")
    ya = f"""; coalesced y store: lanes < 32: w*512 + l*16
s_lshl_b32 s{sT}, {W}, 9
v_lshlrev_b32 v{t0}, 4, v{l}
v_add_u32 v{t0}, s{sT}, v{t0}
v_cmp_gt_u32 s[{sM4}:{sM4+1}], 32, v{l}
v_cmp_eq_u32 s[{sG1}:{sG1+1}], 1, v{g}
s_nop 0
v_cndmask_b32 v{vYst}, v{t3}, v{t0}, s[{sM4}:{sM4+1}]""" if ycoal else ""
    yo = (f"""; out voffset: g*1024 + (cg*128 + 2p' + (l&1))*2 for lanes n16<2 ; p' = p (0..63)
s_lshl_b32 s{sT}, s{sCG}, 6
s_add_u32 s{sT}, s{sT}, s{sP}
s_lshl_b32 s{sT}, s{sT}, 2
v_lshlrev_b32 v{t2}, 1, v{t1}
v_lshl_add_u32 v{t2}, v{g}, 10, v{t2}
v_add_u32 v{t2}, s{sT}, v{t2}""" if ycoal else f"""s_lshr_b32 s{sT}, s{sP}, 4
s_lshl_b32 s{sT}, s{sT}, 2
s_add_u32 s{sT}, s{sT}, s{sCG}
s_lshl_b32 s{sT}, s{sT}, 4
s_and_b32 s{sT2}, s{sP}, 15
s_add_u32 s{sT}, s{sT}, s{sT2}
s_lshl_b32 s{sT}, s{sT}, 4
v_lshlrev_b32 v{t2}, 3, v{t1}
v_lshl_add_u32 v{t2}, v{g}, 1, v{t2}
v_add_u32 v{t2}, s{sT}, v{t2}""")
    newL = []
    for ln in a.L:
        if "YCOAL_ADDR" in ln: newL += ["    " + x for x in ya.split("\n") if x]
        elif "YCOAL_OUT" in ln: newL += ["    " + x for x in yo.split("\n")]
        else: newL.append(ln)
    a.L = newL
    A32 = va(32, 4); B16 = va(16, 4); C32 = va(32, 4); E8 = va(8, 4); F8 = va(8, 4)
    ones = va(4, 4); fl = va(4, 4); fl1 = va(); QS4 = va(4, 4); OS8 = va(8, 4); sQS = sa(); sOS = sa(); sWcN = sa.n
    a(f"""
v_mov_b32 v{ones}, 0x3f803f80
v_mov_b32 v{ones+1}, 0x3f803f80
v_mov_b32 v{ones+2}, 0x3f803f80
v_mov_b32 v{ones+3}, 0x3f803f80
v_mov_b32 v{QS4+3}, s{sTag}
v_mov_b32 v{OS8+3}, s{sTag}
v_mov_b32 v{OS8+7}, s{sTag}
v_mov_b32 v{E8+3}, s{sTag}
v_mov_b32 v{E8+7}, s{sTag}
s_add_u32 s{sQS}, s{sQB}, {0 if sameS in (1, 2) else SOFF}
s_add_u32 s{sOS}, s{sOB}, {0 if sameS in (1, 3) else SOFF}
s_mov_b32 s{sCnt}, {spin}
s_movk_i32 s{sWcN}, {wthr}
""")
    if pt == 7: a(f"buffer_load_dword v{vPT}, v{vPTa}, s[28:31], 0 offen")
    lab = [0]
    def setflag(off): a(f"ds_write_b32 v{vFw}, v{vOne_c} offset:{off}")
    colder = []
    sWc = sa()
    stage = {"flush": []}
    def waitflags(group=None, single=None):
        lab[0] += 1; L = f"L_wf{lab[0]}"
        a(f"{L}:")
        if group is not None: a(f"ds_read_b128 {rng(fl,4)}, v{vFr} offset:{group}")
        if single is not None: a(f"ds_read_b32 v{fl1}, v{vFr} offset:{single}")
        a("s_waitcnt lgkmcnt(0)")
        if group is not None:
            a(f"v_min3_u32 v{fl}, v{fl}, v{fl+1}, v{fl+2}")
            if single is not None: a(f"v_min3_u32 v{fl}, v{fl}, v{fl+3}, v{fl1}")
            else: a(f"v_min_u32 v{fl}, v{fl}, v{fl+3}")
            r = fl
        else: r = fl1
        a(f"v_cmp_eq_u32 vcc, 0, v{r}\ns_cbranch_vccz {L}d\ns_sub_u32 s{sWc}, s{sWc}, 1\ns_cbranch_scc0 {L}\ns_branch {L}f\n{L}d:")
        colder.append([f"{L}f:"] + list(stage["flush"]) + [f"s_movk_i32 s{sWc}, {wthr}", f"s_branch {L}"])
    QFL = [f"buffer_store_dwordx4 {rng(QS4,4)}, v{vQst}, s[28:31], s{sQS} offen sc1"]
    OFL = [f"buffer_store_dwordx4 {rng(OS8,4)}, v{vOst}, s[28:31], s{sOS} offen sc1", f"buffer_store_dwordx4 {rng(OS8+4,4)}, v{vOst}, s[28:31], s{sOS} offen offset:64 sc1"]
    assert sWc == sWcN
    xb = A32; wa = A32 + 16; acc = C32
    a("s_waitcnt lgkmcnt(0)\ns_barrier")
    for s in range(4):
        a(f"ds_read_b128 {rng(xb+4*s,4)}, v{vXr+s}")
        a(f"ds_read_b64_tr_b16 {rng(wa+4*s,2)}, v{vWQr} offset:{s*4096}")
        a(f"ds_read_b64_tr_b16 {rng(wa+4*s+2,2)}, v{vWQr} offset:{s*4096 + 512}")
    for s in range(4):
        a(f"s_waitcnt lgkmcnt({3*(3-s)})")
        c = "0" if s == 0 else rng(acc,4)
        a(f"v_mfma_f32_16x16x32_bf16 {rng(acc,4)}, {rng(wa+4*s,4)}, {rng(xb+4*s,4)}, {c}")
    a(f"""
s_nop 7
v_perm_b32 v{QS4}, v{acc}, v{acc+3}, s{sP0}
v_perm_b32 v{QS4+1}, v{acc+1}, v{acc+3}, s{sP1}
v_perm_b32 v{QS4+2}, v{acc+2}, v{acc+3}, s{sP2}
buffer_store_dwordx4 {rng(QS4,4)}, v{vQst}, s[28:31], s{sQB} offen
""")
    setflag(F_QI)
    stage["flush"] = QFL
    if pt in (9, 10, 11, 12):
        for x_ in ypt: a(x_)
    if pt in (2, 6): a(f"buffer_load_dword v{vPT}, v{vPTa}, s[28:31], 0 offen" + (" nt" if pt == 2 else ""))
    ST_("q published")
    gq = F8
    if gmin:
        sGm = sa()
        a(f"""s_movk_i32 s{sGm}, {gmin}
L_gom:
ds_read_b32 v{fl1}, v{vFr} offset:{F_GO}
s_waitcnt lgkmcnt(0)
s_sub_u32 s{sGm}, s{sGm}, 1
s_cbranch_scc0 L_gom""")
    waitflags(single=F_GO)
    ST_("GO")
    a(f"buffer_load_dwordx4 {rng(gq,4)}, v{vG}, s[28:31], s{sG} offen sc1")
    a(f"buffer_load_dwordx4 {rng(gq+4,4)}, v{vG}, s[28:31], s{sG} offen offset:2048 sc1")
    if pt == 4: a(f"buffer_load_dword v{vPT}, v{vPTa}, s[28:31], 0 offen nt")
    if pt == 13:
        dum = va(2, 2)
        a(f"buffer_load_dword v{dum}, v{vOG}, s[28:31], s{sOG} offen sc1")
        a(f"buffer_load_dword v{dum+1}, v{vOG}, s[28:31], s{sOG} offen offset:2048 sc1")
    if pt == 14:
        dum = va(2, 2)
        a(f"buffer_load_dword v{dum}, v{vOG}, s[28:31], s{sOG} offen sc1")
        a(f"buffer_load_dword v{dum+1}, v{vOG}, s[28:31], s{sOG} offen offset:2048 sc1")
        dum2 = va(2, 2)
        a(f"s_add_u32 s{sT2}, s{sFG}, 65536")
        a(f"buffer_load_dword v{dum2}, v{vFG}, s[28:31], s{sFG} offen sc1")
        a(f"buffer_load_dword v{dum2+1}, v{vFG}, s[28:31], s{sT2} offen sc1")
    setflag(F_GI)
    ka = A32
    if lgo < 49: waitflags(single=F_K)
    for t in range(2):
        for s_ in range(4):
            a(f"ds_read_b128 {rng(ka+16*t+4*s_,4)}, v{vKr+s_} offset:{t*4096}")
    sa_tmp = sa(2, 2)
    cold = []
    def poll(name, regs, vaddr, soff, first_wait, offs, flush):
        a(f"s_waitcnt vmcnt({first_wait})\nL_{name}chk:")
        for i, r in enumerate(regs):
            if i == 0: a(f"v_cmp_ne_u32 vcc, s{sTag}, v{r+3}")
            else: a(f"v_cmp_ne_u32 s[{sa_tmp}:{sa_tmp+1}], s{sTag}, v{r+3}\ns_or_b64 vcc, vcc, s[{sa_tmp}:{sa_tmp+1}]")
        a(f"s_cbranch_vccnz L_{name}retry\nL_{name}ok:")
        c = [f"L_{name}retry:", f"s_sub_u32 s{sCnt}, s{sCnt}, 1", f"s_cbranch_scc1 L_{name}ok",
             f"s_cmp_gt_u32 s{sCnt}, {spin - nf}", f"s_cbranch_scc1 L_{name}re",
             f"s_cmp_lg_u32 s{sCnt}, {spin - nf}", f"s_cbranch_scc1 L_{name}tg"] + flush + [f"L_{name}tg:"] + ([] if (sameS == 1 or (sameS == 2 and name == "q") or (sameS == 3 and name == "o")) else [f"s_xor_b32 s{soff}, s{soff}, {SOFF}"]) + [f"L_{name}re:"]
        for r, o in zip(regs, offs):
            c.append(f"buffer_load_dwordx4 {rng(r,4)}, v{vaddr}, s[28:31], s{soff} offen offset:{o} sc1")
        c += ["s_waitcnt vmcnt(0)", f"s_branch L_{name}chk"]
        cold.append((name, c))
    poll("q", [gq, gq+4], vG, sG, {4: 1, 13: 2, 14: 4}.get(pt, 0), [0, 2048], QFL)
    if holdwo: setflag(F_GOK)
    ST_("q gathered")
    u = E8; qb = B16
    a(f"""
v_perm_b32 v{u}, v{gq}, v{gq+1}, s{sU0}
v_perm_b32 v{u+1}, v{gq+4}, v{gq+5}, s{sU0}
v_add_f32 v{u+4}, v{gq}, v{gq+4}
v_add_f32 v{u+6}, v{gq+2}, v{gq+6}
v_perm_b32 v{u}, v{u}, v{gq+2}, s{sU1}
v_perm_b32 v{u+1}, v{u+1}, v{gq+6}, s{sU1}
v_add_f32 v{u+5}, v{gq+1}, v{gq+5}
v_add_f32 v{u+7}, v{u}, v{u+1}
v_permlane32_swap_b32 v{u+4}, v{u+6}
s_nop 0
v_permlane32_swap_b32 v{u+5}, v{u+7}
v_add_f32 v{u+4}, v{u+4}, v{u+6}
v_add_f32 v{u+5}, v{u+5}, v{u+7}
v_cvt_pk_bf16_f32 v{u}, v{u+4}, v{u+5}
ds_write_b32 v{vQLw}, v{u} offset:{QL}
""")
    setflag(F_Q)
    waitflags(group=F_Q)
    for s in range(4):
        a(f"ds_read_b128 {rng(qb+4*s,4)}, v{vQLr} offset:{QL + s*64}")
    sc = C32
    for s in range(4):
        a(f"s_waitcnt lgkmcnt({3-s})")
        for t in range(2):
            c = "0" if s == 0 else rng(sc+4*t,4)
            a(f"v_mfma_f32_16x16x32_bf16 {rng(sc+4*t,4)}, {rng(ka+16*t+4*s,4)}, {rng(qb+4*s,4)}, {c}")
    m = va(2, 2); mt = va(); pk = E8
    sC2 = sa(2, 2)
    a(f"""
s_mov_b32 s{sC2}, s{sCsc}
s_mov_b32 s{sC2+1}, s{sCsc}
s_nop 4
v_max3_f32 v{m}, v{sc}, v{sc+1}, v{sc+2}
v_max3_f32 v{mt}, v{sc+3}, v{sc+4}, v{sc+5}
v_max3_f32 v{m}, v{m}, v{sc+6}, v{sc+7}
v_max_f32 v{m}, v{m}, v{mt}
v_mov_b32 v{mt}, v{m}
s_nop 1
v_permlane16_swap_b32 v{m}, v{mt}
v_max_f32 v{m}, v{m}, v{mt}
v_mov_b32 v{mt}, v{m}
s_nop 1
v_permlane32_swap_b32 v{m}, v{mt}
v_max_f32 v{m}, v{m}, v{mt}
v_mul_f32 v{m}, s{sCsc}, v{m}
""")
    for i in range(0, 8, 2):
        a(f"v_pk_fma_f32 v[{sc+i}:{sc+i+1}], v[{sc+i}:{sc+i+1}], s[{sC2}:{sC2+1}], v[{m}:{m+1}] op_sel_hi:[1,1,0] neg_lo:[0,0,1] neg_hi:[0,0,1]")
    a(f"s_mov_b64 exec, s[{sM4}:{sM4+1}]\nds_write_b32 v{vSw}, v{m} offset:{SL}\ns_mov_b64 exec, -1")
    for i in range(8):
        a(f"v_exp_f32 v{sc+i}, v{sc+i}")
        if i == 2: a(f"v_cvt_pk_bf16_f32 v{pk}, v{sc}, v{sc+1}")
        if i == 4: a(f"v_cvt_pk_bf16_f32 v{pk+1}, v{sc+2}, v{sc+3}")
        if i == 6: a(f"v_cvt_pk_bf16_f32 v{pk+2}, v{sc+4}, v{sc+5}")
    a(f"""
s_mov_b64 exec, s[{sM4}:{sM4+1}]
v_cvt_pk_bf16_f32 v{pk+3}, v{sc+6}, v{sc+7}
ds_write_b128 v{vPw}, {rng(pk,4)} offset:{PL}
s_mov_b64 exec, -1
""")
    setflag(F_P)
    a(f"s_mov_b32 s{sCnt}, {spin}")
    waitflags(group=F_P)
    ST_("P written")
    pb = B16; sv = F8; vaop = A32; D = C32
    lk = va(16, 4)
    M = va(); ff = va(4, 2); L = va(); Rr = va(); lse = va()
    a(f"ds_read_b128 {rng(sv,4)}, v{vSr} offset:{SL}")
    for ks in range(4):
        a(f"ds_read_b128 {rng(pb+4*ks,4)}, v{vPr} offset:{PL + ks*256}")
    a(f"ds_read_b32 v{fl1}, v{vFr} offset:{F_V}")
    a(f"""
s_waitcnt lgkmcnt(5)
v_max3_f32 v{M}, v{sv}, v{sv+1}, v{sv+2}
v_max_f32 v{M}, v{M}, v{sv+3}
v_sub_f32 v{ff}, v{sv}, v{M}
v_sub_f32 v{ff+1}, v{sv+1}, v{M}
v_sub_f32 v{ff+2}, v{sv+2}, v{M}
v_sub_f32 v{ff+3}, v{sv+3}, v{M}
""")
    for ks in range(4):
        a(f"s_waitcnt lgkmcnt({4-ks})")
        a(f"v_mfma_f32_16x16x32_bf16 {rng(lk+4*ks,4)}, {rng(ones,4)}, {rng(pb+4*ks,4)}, 0")
        a(f"v_exp_f32 v{ff+ks}, v{ff+ks}")
    def vread(ks):
        for tp in range(2):
            for e in range(2):
                a(f"ds_read_b64_tr_b16 {rng(vaop+8*ks+4*tp+2*e,2)}, v{vVr+tp} offset:{ks*8192 + e*4096}")
    def pv(ks):
        for tp in range(2):
            a(f"v_mfma_f32_16x16x32_bf16 {rng(D+8*ks+4*tp,4)}, {rng(vaop+8*ks+4*tp,4)}, {rng(pb+4*ks,4)}, 0")
    stats2 = f"""v_mul_f32 v{L}, v{ff}, v{lk}
v_fmac_f32 v{L}, v{ff+1}, v{lk+4}
v_fmac_f32 v{L}, v{ff+2}, v{lk+8}
v_fmac_f32 v{L}, v{ff+3}, v{lk+12}
v_rcp_f32 v{Rr}, v{L}
v_log_f32 v{lse}, v{L}
s_nop 0
v_mul_f32 v{ff}, v{ff}, v{Rr}
v_mul_f32 v{ff+1}, v{ff+1}, v{Rr}
v_mul_f32 v{ff+2}, v{ff+2}, v{Rr}
v_mul_f32 v{ff+3}, v{ff+3}, v{Rr}
v_add_f32 v{OS8+2}, v{lse}, v{M}
v_add_f32 v{OS8+6}, v{lse}, v{M}"""
    o = F8
    def scale(ks):
        base = ff + (ks & ~1); sel = ks & 1; fr = f"v[{base}:{base+1}]"
        for tp in range(2):
            for h in range(2):
                dst = rng(o+4*tp+2*h, 2); src = rng(D+8*ks+4*tp+2*h, 2)
                if ks == 0: a(f"v_pk_mul_f32 {dst}, {src}, {fr} op_sel:[0,{sel}] op_sel_hi:[1,{sel}]")
                else: a(f"v_pk_fma_f32 {dst}, {src}, {fr}, {dst} op_sel:[0,{sel},0] op_sel_hi:[1,{sel},1]")
    a(f"s_waitcnt lgkmcnt(0)\nv_cmp_ne_u32 vcc, 0, v{fl1}\ns_cbranch_vccnz L_vfast\ns_nop 3")
    if pvp:
        assert nmid == 24
        F_V1 = F_GOK
        waitflags(single=F_V1)
        vread(0); vread(1); vread(2)
        a(stats2)
        a("s_waitcnt lgkmcnt(8)"); pv(0)
        a("s_waitcnt lgkmcnt(4)"); pv(1)
        a("s_waitcnt lgkmcnt(0)"); pv(2)
        a("s_nop 1")
        scale(0); scale(1); scale(2)
        waitflags(single=F_V)
        ST_("V landed")
        vread(3)
        a("s_waitcnt lgkmcnt(0)"); pv(3)
        a("s_nop 7")
        scale(3)
        a("s_branch L_vdone")
    else:
        a(stats2)
        waitflags(single=F_V)
        ST_("V landed")
        vread(0); vread(1); vread(2)
        a("s_branch L_vjoin")
    a("L_vfast:")
    vread(0); vread(1); vread(2)
    a(stats2)
    a("L_vjoin:")
    a("s_waitcnt lgkmcnt(8)"); pv(0); vread(3)
    a("s_waitcnt lgkmcnt(8)"); pv(1)
    a("s_waitcnt lgkmcnt(4)"); pv(2)
    a("s_waitcnt lgkmcnt(0)"); pv(3)
    for ks in range(4): scale(ks)
    a("L_vdone:")
    og = OS8
    a(f"""
v_cvt_pk_bf16_f32 v{og}, v{o}, v{o+1}
v_cvt_pk_bf16_f32 v{og+1}, v{o+2}, v{o+3}
v_cvt_pk_bf16_f32 v{og+4}, v{o+4}, v{o+5}
v_cvt_pk_bf16_f32 v{og+5}, v{o+6}, v{o+7}
buffer_store_dwordx4 {rng(og,4)}, v{vOst}, s[28:31], s{sOB} offen
buffer_store_dwordx4 {rng(og+4,4)}, v{vOst}, s[28:31], s{sOB} offen offset:64
""")
    setflag(F_OI)
    stage["flush"] = QFL + OFL
    ST_("o published")
    gg = B16; wb = A32
    if not nooi: waitflags(group=F_OI)
    if nooi:
        waitflags(single=F_W)
        for s_ in range(2):
            for tp in range(2):
                for hh in range(2):
                    a(f"ds_read_b64_tr_b16 {rng(wb+8*s_+4*tp+2*hh,2)}, v{vWOr+tp} offset:{s_*8192 + hh*1024}")
    a(f"""
buffer_load_dwordx4 {rng(gg,4)}, v{vOG}, s[28:31], s{sOG} offen sc1
buffer_load_dwordx4 {rng(gg+4,4)}, v{vOG}, s[28:31], s{sOG} offen offset:2048 sc1
""")
    if not nooi:
        waitflags(single=F_W)
        for s in range(2):
            for tp in range(2):
                for hh in range(2):
                    a(f"ds_read_b64_tr_b16 {rng(wb+8*s+4*tp+2*hh,2)}, v{vWOr+tp} offset:{s*8192 + hh*1024}")
    poll("o", [gg, gg+4], vOG, sOG, 0, [0, 2048], QFL + OFL)
    ST_("o gathered")
    e0 = va(); e1 = va(); u = A32 + 16; S = va(); oo = A32 + 24
    a(f"""
v_max_f32 v{M}, v{gg+2}, v{gg+6}
v_mov_b32 v{mt}, v{M}
v_lshlrev_b32 v{u}, 16, v{gg}
v_and_b32 v{u+1}, 0xffff0000, v{gg}
v_permlane16_swap_b32 v{M}, v{mt}
v_lshlrev_b32 v{u+2}, 16, v{gg+1}
v_max_f32 v{M}, v{M}, v{mt}
v_mov_b32 v{mt}, v{M}
v_and_b32 v{u+3}, 0xffff0000, v{gg+1}
v_lshlrev_b32 v{u+4}, 16, v{gg+4}
v_permlane32_swap_b32 v{M}, v{mt}
v_and_b32 v{u+5}, 0xffff0000, v{gg+4}
v_max_f32 v{M}, v{M}, v{mt}
v_lshlrev_b32 v{u+6}, 16, v{gg+5}
v_sub_f32 v{e0}, v{gg+2}, v{M}
v_sub_f32 v{e1}, v{gg+6}, v{M}
v_exp_f32 v{e0}, v{e0}
v_exp_f32 v{e1}, v{e1}
v_and_b32 v{u+7}, 0xffff0000, v{gg+5}
v_add_f32 v{S}, v{e0}, v{e1}
v_mul_f32 v{oo}, v{e0}, v{u}
v_mul_f32 v{oo+1}, v{e0}, v{u+1}
v_mov_b32 v{mt}, v{S}
v_mul_f32 v{oo+2}, v{e0}, v{u+2}
v_mul_f32 v{oo+3}, v{e0}, v{u+3}
v_permlane16_swap_b32 v{S}, v{mt}
v_fmac_f32 v{oo}, v{e1}, v{u+4}
v_fmac_f32 v{oo+1}, v{e1}, v{u+5}
v_add_f32 v{S}, v{S}, v{mt}
v_fmac_f32 v{oo+2}, v{e1}, v{u+6}
v_fmac_f32 v{oo+3}, v{e1}, v{u+7}
v_mov_b32 v{mt}, v{S}
v_permlane16_swap_b32 v{oo}, v{oo+1}
s_nop 0
v_permlane16_swap_b32 v{oo+2}, v{oo+3}
v_permlane32_swap_b32 v{S}, v{mt}
v_add_f32 v{oo}, v{oo}, v{oo+1}
v_add_f32 v{oo+2}, v{oo+2}, v{oo+3}
v_add_f32 v{S}, v{S}, v{mt}
s_nop 0
v_permlane32_swap_b32 v{oo}, v{oo+2}
v_rcp_f32 v{S}, v{S}
v_add_f32 v{oo}, v{oo}, v{oo+2}
v_mul_f32 v{oo}, v{oo}, v{S}
v_cvt_pk_bf16_f32 v{oo}, v{oo}, v{oo}
ds_write_b16 v{vOLw}, v{oo} offset:{OL}
""")
    setflag(F_O)
    a(f"s_add_u32 s{sT2}, s{sFG}, 65536\ns_mov_b32 s{sCnt}, {spin}")
    waitflags(group=F_O)
    ob = B16 + 8; y = C32; yg = E8
    a(f"""
ds_read_b128 {rng(ob,4)}, v{vOLr} offset:{OL}
ds_read_b128 {rng(ob+4,4)}, v{vOLr} offset:{OL+64}
""")
    for s in range(2):
        a(f"s_waitcnt lgkmcnt({1-s})")
        for tp in range(2):
            c = "0" if s == 0 else rng(y+4*tp,4)
            if ycoal: a(f"v_mfma_f32_16x16x32_bf16 {rng(y+4*tp,4)}, {rng(ob+4*s,4)}, {rng(wb+8*s+4*tp,4)}, {c}")
            else: a(f"v_mfma_f32_16x16x32_bf16 {rng(y+4*tp,4)}, {rng(wb+8*s+4*tp,4)}, {rng(ob+4*s,4)}, {c}")
    if ycoal:
        a(f"v_mov_b32 v{E8+3}, s{sTag}\ns_nop 6")
        for r in range(4): a(f"v_cndmask_b32 v{y+r}, v{y+r}, v{y+4+r}, s[{sG1}:{sG1+1}]")
        a(f"""v_perm_b32 v{yg}, v{y}, v{y+3}, s{sP0}
v_perm_b32 v{yg+1}, v{y+1}, v{y+3}, s{sP1}
v_perm_b32 v{yg+2}, v{y+2}, v{y+3}, s{sP2}
buffer_store_dwordx4 {rng(yg,4)}, v{vYst}, s[28:31], s{sYst} offen sc1""")
    else:
        a(f"v_mov_b32 v{E8+3}, s{sTag}\nv_mov_b32 v{E8+7}, s{sTag}\ns_nop 4")
        for tp in range(2):
            a(f"""v_perm_b32 v{yg+4*tp}, v{y+4*tp}, v{y+4*tp+3}, s{sP0}
v_perm_b32 v{yg+4*tp+1}, v{y+4*tp+1}, v{y+4*tp+3}, s{sP1}
v_perm_b32 v{yg+4*tp+2}, v{y+4*tp+2}, v{y+4*tp+3}, s{sP2}
buffer_store_dwordx4 {rng(yg+4*tp,4)}, v{vYst}, s[28:31], s{sYst} offen offset:{tp*64} sc1""")
    setflag(F_YI)
    ST_("y published")
    waitflags(group=F_YI)
    if not noflush:
        for x_ in QFL + OFL: a(x_)
    if dirty:
        a(f"s_lshl_b32 s{sT}, s2, 2\ns_add_u32 s{sT}, s{sT}, {W}\ns_mul_i32 s{sT}, s{sT}, {dirty*1024}\ns_add_u32 s{sT}, s{sT}, 0x800000\nv_lshlrev_b32 v{t0}, 4, v{l}")
        for i in range(dirty):
            a(f"buffer_store_dwordx4 {rng(C32,4)}, v{t0}, s[28:31], s{sT} offen\ns_add_u32 s{sT}, s{sT}, 1024")
    z = C32 + 24
    fg = C32 + 16
    FM = {0: ' sc1', 1: ' sc1 nt', 2: ' sc0 sc1', 3: ' sc0 sc1 nt'}[fmode]
    a(f"""s_cmp_lg_u32 {W}, 0
s_cbranch_scc1 L_fin
L_fpoll:
buffer_load_dwordx4 {rng(fg,4)}, v{vFG}, s[28:31], s{sFG} offen{FM}
buffer_load_dwordx4 {rng(fg+4,4)}, v{vFG}, s[28:31], s{sT2} offen{FM}
s_waitcnt vmcnt(0)
v_cmp_ne_u32 vcc, s{sTag}, v{fg+3}
v_cmp_ne_u32 s[{sa_tmp}:{sa_tmp+1}], s{sTag}, v{fg+7}
s_or_b64 vcc, vcc, s[{sa_tmp}:{sa_tmp+1}]
s_cbranch_vccz L_fok
{('s_sleep ' + str(fsleep)) if fsleep else 's_nop 0'}
s_sub_u32 s{sCnt}, s{sCnt}, 1
s_cbranch_scc0 L_fpoll
L_fok:""")
    ST_("final gathered")
    a(f"""
v_perm_b32 v{z+3}, v{fg}, v{fg+1}, s{sU0}
v_perm_b32 v{z+7}, v{fg+4}, v{fg+5}, s{sU0}
v_add_f32 v{z}, v{fg}, v{fg+4}
v_perm_b32 v{z+3}, v{z+3}, v{fg+2}, s{sU1}
v_perm_b32 v{z+7}, v{z+7}, v{fg+6}, s{sU1}
v_add_f32 v{z+1}, v{fg+1}, v{fg+5}
v_add_f32 v{z+2}, v{fg+2}, v{fg+6}
v_add_f32 v{z+3}, v{z+3}, v{z+7}
""")
    for ctl in ("quad_perm:[2,3,0,1]", "row_ror:4", "row_ror:8"):
        for r in range(4):
            a(f"v_add_f32_dpp v{z+r}, v{z+r}, v{z+r} {ctl} row_mask:0xf bank_mask:0xf")
    a(f"""
s_nop 0
v_permlane16_swap_b32 v{z}, v{z+1}
v_permlane16_swap_b32 v{z+2}, v{z+3}
s_nop 0
v_add_f32 v{z}, v{z}, v{z+1}
v_add_f32 v{z+2}, v{z+2}, v{z+3}
s_nop 1
v_permlane32_swap_b32 v{z}, v{z+2}
s_nop 0
v_add_f32 v{z}, v{z}, v{z+2}
v_cvt_pk_bf16_f32 v{z}, v{z}, v{z}
buffer_store_short v{z}, v{vOut}, s[32:35], 0 offen
s_cmp_lg_u32 s2, 0
s_cbranch_scc1 L_fin
v_mov_b32 v{t0}, s{sTag}
v_mov_b32 v{t1}, {WSB}
s_mov_b64 exec, 1
buffer_store_dword v{t0}, v{t1}, s[28:31], 0 offen sc1
s_mov_b64 exec, -1
L_fin:
""")
    a("s_branch L_tail" if stamp else "s_endpgm")
    for name, c in cold:
        for x_ in c: a(x_)
    a("; WARM_END")
    for c in colder:
        for x_ in c: a(x_)
    a("L_tail:")
    if stamp:
        a(f"s_mov_b32 s31, 0x20000\ns_mov_b32 s30, {WS_BYTES}")
    if amp >= 0:
        ST_("end")
        e = nst[0] - 1
        a(f"""
s_waitcnt lgkmcnt(0)
s_cmp_lg_u32 {W}, {ampw}
s_cbranch_scc1 L_end
""")
        if ampglob:
            a(f"""
s_lshl_b32 s37, s2, 3
s_add_u32 s37, s37, {ST}
v_mov_b32 v{C32}, s{SB}
v_mov_b32 v{C32+1}, s{sTag}
v_mov_b32 v{t1}, 0
s_mov_b64 exec, 1
buffer_store_dwordx2 v[{C32}:{C32+1}], v{t1}, s[28:31], s37 offen sc1
s_mov_b64 exec, -1
""")
        a(f"""
s_cmp_lg_u32 s2, 0
s_cbranch_scc1 L_end
""")
        if ampglob:
            a(f"""
s_mov_b32 s37, {ST}
v_lshlrev_b32 v{t1}, 5, v{l}
L_ag:
buffer_load_dwordx4 v[{C32}:{C32+3}], v{t1}, s[28:31], s37 offen sc1
buffer_load_dwordx4 v[{C32+4}:{C32+7}], v{t1}, s[28:31], s37 offen offset:16 sc1
s_waitcnt vmcnt(0)
v_cmp_ne_u32 vcc, s{sTag}, v{C32+1}
v_cmp_ne_u32 s[40:41], s{sTag}, v{C32+3}
s_or_b64 vcc, vcc, s[40:41]
v_cmp_ne_u32 s[40:41], s{sTag}, v{C32+5}
s_or_b64 vcc, vcc, s[40:41]
v_cmp_ne_u32 s[40:41], s{sTag}, v{C32+7}
s_or_b64 vcc, vcc, s[40:41]
s_cbranch_vccnz L_ag
v_subrev_u32 v{C32}, s{SB}, v{C32}
v_subrev_u32 v{C32+2}, s{SB}, v{C32+2}
v_subrev_u32 v{C32+4}, s{SB}, v{C32+4}
v_subrev_u32 v{C32+6}, s{SB}, v{C32+6}
v_min_i32 v{C32}, v{C32}, v{C32+2}
v_min_i32 v{C32+4}, v{C32+4}, v{C32+6}
v_min_i32 v{C32}, v{C32}, v{C32+4}
s_nop 1
v_min_i32_dpp v{C32}, v{C32}, v{C32} row_ror:1 row_mask:0xf bank_mask:0xf
s_nop 1
v_min_i32_dpp v{C32}, v{C32}, v{C32} row_ror:2 row_mask:0xf bank_mask:0xf
s_nop 1
v_min_i32_dpp v{C32}, v{C32}, v{C32} row_ror:4 row_mask:0xf bank_mask:0xf
s_nop 1
v_min_i32_dpp v{C32}, v{C32}, v{C32} row_ror:8 row_mask:0xf bank_mask:0xf
s_nop 1
v_readlane_b32 s36, v{C32}, 0
v_readlane_b32 s37, v{C32}, 16
v_readlane_b32 s38, v{C32}, 32
v_readlane_b32 s39, v{C32}, 48
s_nop 3
s_min_i32 s36, s36, s37
s_min_i32 s38, s38, s39
s_min_i32 s36, s36, s38
s_sub_u32 s37, s{SB+2*amp}, s{SB}
s_sub_u32 s37, s37, s36
s_memrealtime s[40:41]
s_waitcnt lgkmcnt(0)
s_mul_i32 s37, s37, {ampk}
s_add_u32 s37, s37, s40
""")
        else:
            a(f"""
s_sub_u32 s37, s{SB+2*amp}, s{SB+2*ampj}
s_mul_i32 s37, s37, {ampk}
s_add_u32 s37, s37, s{SB+2*e}
""")
        a(f"""
L_amp:
s_memrealtime s[40:41]
s_waitcnt lgkmcnt(0)
s_cmp_lt_u32 s40, s37
s_cbranch_scc1 L_amp
""")
    elif stamp:
        ST_("end")
        if stamp == 2:
            a("s_waitcnt vmcnt(0)")
            ST_("end2")
        n = nst[0]
        a(f"""
s_waitcnt lgkmcnt(0) vmcnt(0)
s_mul_i32 s4, s2, 8
s_add_u32 s4, s4, s3
s_lshl_b32 s4, s4, 6
s_add_u32 s4, s4, {ST}
v_mov_b32 v{t1}, 0
s_mov_b64 exec, 1
""")
        for i in range(n):
            a(f"v_mov_b32 v{t0}, s{SB+2*i}\nbuffer_store_dword v{t0}, v{t1}, s[28:31], s4 offen offset:{4*i}\ns_nop 0")
    a("L_end:\ns_endpgm")
    lines = a.L
    nh = 0
    if warm:
        if warml: lines, nh, have = hops.insert_multi(lines, nparts, [("; LWARM_START", "; LWARM_END"), ("; WARM_START", "; WARM_END")])
        else: lines, nh, have = hops.insert(lines, nparts)
        assert have == nparts, (have, nparts)
    body = "\n".join(lines) + "\n"
    assert (not stamp) or (sa.hi <= SB and ls.hi <= SB), (sa.hi, ls.hi)
    nv = max(va.hi, lv.hi)
    s = header([f"; @launch grid=(256,1,1) block=(320,1,1) lds={LDS_BYTES}"], DOC) + kernel_begin(KNAME) + body + RODATA + descriptor(KNAME, nv, 102 if stamp else max(sa.hi, ls.hi))
    errs = haz.check(body)
    for e in errs: print("HAZ", e)
    return s, nv, sa.hi, nh, stn
if __name__ == "__main__":
    out = sys.argv[1]
    kw = {}
    for x in sys.argv[2:]:
        k, v = x.split("=")
        if k in ("warm", "prio", "holdwo", "rot", "rotq", "ilv", "ycoal", "xnt", "xfirst", "pvp"): kw[k] = (v == "1")
        elif k == "nt": kw[k] = (" " + v if v else "")
        else: kw[k] = int(v)
    s, nv, ns, nh, stn = gen(**kw)
    open(out, "w").write(s)
    print("vgprs", nv, "sgprs", ns, "hops", nh, "lds", LDS_BYTES, stn)
```

```python
import sys, struct
sys.path.insert(0, "my")
from ag import *
import haz, hops

import os
WSB = int(os.environ.get('WSB', '0'), 0)
QF = WSB + 0x10000
OF = WSB + 0x80000
OX = WSB + 0x100000
SOFF = 0x200000
ST = 0x400000
WS_BYTES = 268435456
QL = 0
PL = QL + 1280
SL = PL + 1024
OL = SL + 64
FL = 3136
JK = FL + 160
XL = 3840; WQ = XL + 1024; KL = WQ + 16384; VL = KL + 32768
import os
if os.environ.get('ALIAS', '0') == '1':
    WO = WQ; LDS_BYTES = VL + 32768
else:
    WO = VL + 32768; LDS_BYTES = WO + 16384
assert OL + 768 <= FL and JK + 416 <= XL and XL % 256 == 0 and WQ % 256 == 0
F_Q, F_P, F_O, F_GI, F_QI, F_GOK, F_OI, F_YI, F_GO, F_K, F_V, F_W = 0, 16, 32, 48, 64, 80, 96, 112, 128, 132, 136, 140
CSC = 0.08838834764831845 * 1.4426950408889634
def f32(x): return "0x%08x" % struct.unpack("<I", struct.pack("<f", x))[0]
DOC = """;
; Sliding-window GQA decode (q-proj -> attention over the last 1024 keys -> out-proj), one launch.
; Wave 4 = loader: streams wq/x/K/V/wo tiles HBM -> LDS with LDS-DMA (nt), a bounded number in flight.
; Hand-offs between workgroups: 16-byte granules {payload, tag} in d_ws; tag = LCG(epoch word read from d_ws at entry),
; first copy alternates with the second, so the result does not depend on placement.  Step 7 uses sc1 only.
; Intra-workgroup hand-offs use LDS flag words.  The s_cbranch_execz chain (L_hopN) is only walked with EXEC = 0 by
; the idle compute waves at start to pull the code into the instruction cache; it is never taken otherwise.
"""
class V:
    def __init__(s, n=0): s.n = n; s.hi = n
    def __call__(s, cnt=1, align=1):
        s.n = (s.n + align - 1) // align * align
        r = s.n; s.n += cnt; s.hi = max(s.hi, s.n)
        return r
def rng(r, n): return f"v[{r}:{r+n-1}]"
OOB = "0x7ffffff0"

def gen(stamp=False, nt=" nt", hold=0, kx=32, nmid=32, lgo=60, holdwo=False, rot=True, rotq=True, fd=1, shift=0, lshift=0, compact=0, b0e=0, gmin=0, warml=0, fmode=0, pvp=True, lwo=0, fsleep=0, nooi=0, n1p=0, noflush=0, sameS=0, dirty=0, cqx=0, xnt=False, xfirst=False, ilv=True, ycoal=True, wthr=2000, n3=0, n2=0, N=24, spin=100000, nf=64, amp=-1, ampk=10, ampglob=0, ampmin=0, ampj=0, ampw=0, warm=True, pt=1, nparts=4, prio=True, step=2):
    if amp >= 0: stamp = 2 if ampmin else True
    a = A(); va = V(1); sa = V(36)
    l = va(); t0 = va(); t1 = va(); t2 = va(); t3 = va()
    nst = [0]; stn = []
    SB = 74 if (pt == 12 or gmin) else 72
    def ST_(label):
        if stamp and (stamp != 2 or label in ('entry', 'end', 'end2')):
            i = nst[0]; nst[0] += 1; stn.append(label)
            assert i < (14 if (pt == 12 or gmin) else 15)
            a(f"s_memrealtime s[{SB+2*i}:{SB+1+2*i}]")
    W, G, R, B, C = "s3", "s4", "s5", "s6", "s7"
    sT = sa(); sT2 = sa(); sWin = sa()
    ST_("entry")
    if compact:
        a(f"""
s_cmp_ge_u32 s2, 256
s_cbranch_scc1 L_end
s_load_dwordx2 s[20:21], s[0:1], 24
s_load_dwordx2 s[8:9], s[0:1], 0
s_load_dwordx2 s[12:13], s[0:1], 8
""")
        if stamp: a("s_load_dwordx2 s[28:29], s[0:1], 56\ns_load_dwordx2 s[32:33], s[0:1], 40")
    else:
        a(f"""
s_cmp_ge_u32 s2, 256
s_cbranch_scc1 L_end
s_load_dwordx2 s[20:21], s[0:1], 24
s_load_dwordx2 s[8:9], s[0:1], 0
s_load_dwordx2 s[12:13], s[0:1], 8
s_load_dwordx2 s[28:29], s[0:1], 56
s_load_dwordx2 s[16:17], s[0:1], 16
s_load_dwordx2 s[24:25], s[0:1], 32
s_load_dwordx2 s[32:33], s[0:1], 40
""")
    a(f"""
v_lshrrev_b32 v{t0}, 6, v0
v_and_b32 v{l}, 63, v0
s_and_b32 {G}, s2, 7
v_readfirstlane_b32 {W}, v{t0}
s_lshr_b32 {R}, s2, 3
s_lshr_b32 {B}, {R}, 3
s_and_b32 {C}, {R}, 7
s_mov_b32 s23, 0x20000
v_lshrrev_b32 v{t0}, 4, v{l}
v_and_b32 v{t1}, 15, v{l}
""")
    if stamp: a(f"s_mov_b32 s31, s23\ns_mov_b32 s30, {WS_BYTES}\ns_mov_b32 s35, s23\ns_movk_i32 s34, 0x1000")
    a(f"""
s_cmp_lt_u32 {W}, 4
s_cbranch_scc1 L_compute
""")
    for _ in range(lshift // 4): a("s_nop 0")
    lv = V(va.n); ls = V(sa.n)
    vWQ = lv(2); vX = lv(); vK = lv(4); vV = lv(2); vWO = lv(2); vLF = lv(); vOne = lv()
    sWQ = ls(); sX = ls(); sK = ls(); sWO = ls(); lT = ls(); sWQb0 = ls()
    sRho = ls(); sJ = ls(); sC1 = ls(); sC2 = ls(); sR = ls(); sM = ls()
    if prio: a("s_setprio 2")
    if compact:
        assert kx == 32 and n1p == 24 and b0e and ilv and rot
        a(f"""
s_mov_b32 s22, 0x400000
v_and_b32 v{t2}, 7, v{l}
v_lshlrev_b32 v{t3}, 1, v{t0}
v_and_b32 v{vX}, 2, v{t3}
v_xor_b32 v{t2}, v{t2}, v{vX}
v_lshlrev_b32 v{t2}, 4, v{t2}
v_lshrrev_b32 v{vX}, 3, v{l}
v_lshl_add_u32 v{vWQ}, v{vX}, 13, v{t2}
v_xor_b32 v{vWQ+1}, 64, v{vWQ}
s_lshl_b32 s{sWQb0}, {G}, 3
s_add_u32 s{sWQb0}, s{sWQb0}, {C}
s_lshl_b32 s{sWQb0}, s{sWQb0}, 7
s_lshl_b32 s{lT}, {B}, 20
s_add_u32 s{sWQb0}, s{sWQb0}, s{lT}
s_mov_b32 s{sC1}, 64512
s_mov_b32 s{sC2}, 0xc0000
s_lshl_b32 s{sR}, {B}, 18
s_mov_b32 s{sM}, s{sR}
s_add_u32 s{sWQ}, s{sWQb0}, s{sR}
s_lshr_b32 s{lT}, s{sR}, 6
s_add_u32 m0, s{lT}, {WQ}
s_waitcnt lgkmcnt(0)
L_lwq:
buffer_load_dwordx4 v{vWQ}, s[20:23], s{sWQ} offen{nt} lds
s_add_u32 s{sWQ}, s{sWQ}, s{sC1}
buffer_load_dwordx4 v{vWQ+1}, s[20:23], s{sWQ} offen offset:1024{nt} lds
s_add_u32 s{sWQ}, s{sWQ}, s{sC1}
buffer_load_dwordx4 v{vWQ}, s[20:23], s{sWQ} offen offset:2048{nt} lds
s_add_u32 s{sWQ}, s{sWQ}, s{sC1}
buffer_load_dwordx4 v{vWQ+1}, s[20:23], s{sWQ} offen offset:3072{nt} lds
s_add_u32 s{sR}, s{sR}, 0x40000
s_and_b32 s{sR}, s{sR}, s{sC2}
s_add_u32 s{sWQ}, s{sWQb0}, s{sR}
s_lshr_b32 s{lT}, s{sR}, 6
s_add_u32 m0, s{lT}, {WQ}
s_cmp_lg_u32 s{sR}, s{sM}
s_cbranch_scc1 L_lwq
s_mov_b32 s11, s23
s_movk_i32 s10, 0x1000
v_lshlrev_b32 v{t2}, 2, v{t0}
v_xor_b32 v{t2}, v{t1}, v{t2}
v_lshlrev_b32 v{t2}, 4, v{t2}
v_lshl_add_u32 v{vX}, v{t0}, 10, v{t2}
s_lshl_b32 s{sX}, {B}, 8
s_movk_i32 m0, {XL}
s_load_dwordx2 s[16:17], s[0:1], 16
buffer_load_dwordx4 v{vX}, s[8:11], s{sX} offen lds
s_load_dwordx2 s[24:25], s[0:1], 32
""")
        ST_("L: wq issued")
        a(f"""
s_mov_b32 s15, s23
s_mov_b32 s14, 0x2000000
v_xor_b32 v{t2}, v{t1}, v{t0}
v_lshlrev_b32 v{t2}, 4, v{t2}
v_lshl_add_u32 v{vK}, v{t0}, 8, v{t2}
v_xor_b32 v{vK+1}, 64, v{vK}
v_xor_b32 v{vK+2}, 0x80, v{vK}
v_xor_b32 v{vK+3}, 0xc0, v{vK}
s_lshl_b32 s{sWin}, {B}, 3
s_add_u32 s{sWin}, s{sWin}, {G}
s_lshl_b32 s{sWin}, s{sWin}, 5
s_add_u32 s{sWin}, s{sWin}, 24
s_lshl_b32 s{sWin}, s{sWin}, 3
s_add_u32 s{sWin}, s{sWin}, {C}
s_lshl_b32 s{sWin}, s{sWin}, 12
s_lshl_b32 s{sRho}, {B}, 1
s_add_u32 s{sRho}, s{sRho}, {G}
s_and_b32 s{sRho}, s{sRho}, 7
s_lshl_b32 s{sRho}, s{sRho}, 12
s_lshl_b32 s{sR}, s{sRho}, 3
s_mov_b32 s{sM}, 0x38000
s_movk_i32 m0, {KL}
L_lk:
s_add_u32 s{sK}, s{sWin}, s{sR}
s_waitcnt vmcnt({n1p - 1})
buffer_load_dwordx4 v{vK}, s[12:15], s{sK} offen{nt} lds
s_waitcnt vmcnt({n1p - 1})
buffer_load_dwordx4 v{vK+1}, s[12:15], s{sK} offen offset:1024{nt} lds
s_waitcnt vmcnt({n1p - 1})
buffer_load_dwordx4 v{vK+2}, s[12:15], s{sK} offen offset:2048{nt} lds
s_waitcnt vmcnt({n1p - 1})
buffer_load_dwordx4 v{vK+3}, s[12:15], s{sK} offen offset:3072{nt} lds
s_add_u32 s{sR}, s{sR}, 0x8000
s_and_b32 s{sR}, s{sR}, s{sM}
s_addk_i32 m0, 0x1000
s_cmp_lg_u32 m0, {KL + 6*4096}
s_cbranch_scc1 L_lk1
s_waitcnt vmcnt({n1p - 1})
s_barrier
L_lk1:
s_cmp_lg_u32 m0, {KL + 8*4096}
s_cbranch_scc1 L_lk
v_lshlrev_b32 v{t2}, 2, v{l}
v_add_u32 v{t2}, {JK}, v{t2}
v_cmp_eq_u32 vcc, 0, v{l}
v_mov_b32 v{vLF}, {FL}
v_mov_b32 v{vOne}, 1
v_cndmask_b32 v{vLF}, v{t2}, v{vLF}, vcc
""")
    else:
        a(f"""
s_mov_b32 s22, 0x400000
v_and_b32 v{t2}, 7, v{l}
v_lshlrev_b32 v{t3}, 1, v{t0}
v_and_b32 v{vX}, 2, v{t3}
v_xor_b32 v{t2}, v{t2}, v{vX}
v_lshlrev_b32 v{t2}, 4, v{t2}
v_lshrrev_b32 v{vX}, 3, v{l}
v_lshl_add_u32 v{vWQ}, v{vX}, 13, v{t2}
v_xor_b32 v{vWQ+1}, 64, v{vWQ}
s_lshl_b32 s{sWQb0}, {G}, 3
s_xor_b32 s{lT}, {C}, {cqx}
s_add_u32 s{sWQb0}, s{sWQb0}, s{lT}
s_lshl_b32 s{sWQb0}, s{sWQb0}, 7
s_lshl_b32 s{lT}, {B}, 20
s_add_u32 s{sWQb0}, s{sWQb0}, s{lT}
s_mov_b32 s11, s23
s_movk_i32 s10, 0x1000
s_mov_b32 s15, s23
s_mov_b32 s14, 0x2000000
; x voffset: (l>>4)*1024 + ((l&15) ^ (4*(l>>4)))*16
v_lshlrev_b32 v{t2}, 2, v{t0}
v_xor_b32 v{t2}, v{t1}, v{t2}
v_lshlrev_b32 v{t2}, 4, v{t2}
v_lshl_add_u32 v{vX}, v{t0}, 10, v{t2}
s_lshl_b32 s{sX}, {B}, 8
""")
    seq = []
    sWQb = sWQb0
    for i in range(16):
        pre = []
        if i % 4 == 0:
            j_ = i // 4
            if rotq:
                pre += [f"s_add_u32 s{sJ}, {B}, {j_}", f"s_and_b32 s{sJ}, s{sJ}, 3", f"s_lshl_b32 s{lT}, s{sJ}, 18", f"s_add_u32 s{sWQ}, s{sWQb}, s{lT}",
                        f"s_lshl_b32 s{lT}, s{sJ}, 12", f"s_add_u32 m0, s{lT}, {WQ}"]
            else:
                pre += [f"s_add_u32 s{sWQ}, s{sWQb}, {j_ << 18}", f"s_mov_b32 m0, {WQ + j_*4096}"]
            pre.append("s_nop 0")
        else:
            pre.append(f"s_add_u32 s{sWQ}, s{sWQ}, {65536 - 1024}")
        seq.append((pre, f"buffer_load_dwordx4 v{vWQ + (i & 1)}, s[20:23], s{sWQ} offen offset:{(i%4)*1024}{nt} lds"))
    seq.append(([f"s_movk_i32 m0, {XL}", "s_nop 0"], f"buffer_load_dwordx4 v{vX}, s[8:11], s{sX} offen{' nt' if xnt else ''} lds"))
    if xfirst: seq.insert(0, seq.pop())
    kpre = f"""; K voffsets: (l>>4)*256 + ((l&15)^(l>>4))*16  ^ (64*i)
v_xor_b32 v{t2}, v{t1}, v{t0}
v_lshlrev_b32 v{t2}, 4, v{t2}
v_lshl_add_u32 v{vK}, v{t0}, 8, v{t2}
v_xor_b32 v{vK+1}, 64, v{vK}
v_xor_b32 v{vK+2}, 0x80, v{vK}
v_xor_b32 v{vK+3}, 0xc0, v{vK}
; flag address vgpr: lane0 -> FL, else JK + 4*l
v_lshlrev_b32 v{t2}, 2, v{l}
v_add_u32 v{t2}, {JK}, v{t2}
v_cmp_eq_u32 vcc, 0, v{l}
v_mov_b32 v{vLF}, {FL}
v_mov_b32 v{vOne}, 1
v_cndmask_b32 v{vLF}, v{t2}, v{vLF}, vcc
; window base = (b*8+g)<<20 + 3072*256 + c*(32768 or 4096)
s_lshl_b32 s{sWin}, {B}, 3
s_add_u32 s{sWin}, s{sWin}, {G}
s_lshl_b32 s{sWin}, s{sWin}, 5
s_add_u32 s{sWin}, s{sWin}, 24
s_lshl_b32 s{sWin}, s{sWin}, 15
s_lshl_b32 s{sJ}, {C}, {12 if ilv else 15}
s_add_u32 s{sWin}, s{sWin}, s{sJ}
; rho*4096 : rho = (g + 2b) & 7
s_lshl_b32 s{sRho}, {B}, 1
s_add_u32 s{sRho}, s{sRho}, {G}
s_and_b32 s{sRho}, s{sRho}, {7 if rot else 0}
s_lshl_b32 s{sRho}, s{sRho}, 12""".split("\n")
    def grp(j_, ldsbase):
        if ilv:
            return [f"s_add_u32 s{sJ}, s{sRho}, {j_*4096}", f"s_and_b32 s{sJ}, s{sJ}, 0x7fff", f"s_mov_b32 m0, {ldsbase + j_*4096}", f"s_lshl_b32 s{sJ}, s{sJ}, 3", f"s_add_u32 s{sK}, s{sWin}, s{sJ}"]
        return [f"s_add_u32 s{sJ}, s{sRho}, {j_*4096}", f"s_and_b32 s{sJ}, s{sJ}, 0x7fff", f"s_add_u32 m0, s{sJ}, {ldsbase}", f"s_add_u32 s{sK}, s{sWin}, s{sJ}"]
    for i in range(32):
        pre = list(kpre) if i == 0 else []
        if i % 4 == 0: pre += grp(i // 4, KL)
        seq.append((pre, f"buffer_load_dwordx4 v{vK+i%4}, s[12:15], s{sK} offen offset:{(i%4)*1024}{nt} lds"))
    vpre = f"""s_mov_b32 s19, s23
s_mov_b32 s18, s14
; V voffset: (l>>4)*256 + ((l&15) ^ ((l>>4)<<1))*16 ; odd: ^128 ; WO: (l>>4)*1024 + same piece
v_xor_b32 v{t2}, v{t1}, v{t3}
v_lshlrev_b32 v{t2}, 4, v{t2}
v_lshl_add_u32 v{vV}, v{t0}, 8, v{t2}
v_xor_b32 v{vV+1}, 0x80, v{vV}
v_lshl_add_u32 v{vWO}, v{t0}, 10, v{t2}
v_xor_b32 v{vWO+1}, 0x80, v{vWO}
s_mov_b32 s27, s23
s_mov_b32 s26, s22
; WO soff = p<<16 + cg*256 ; p = g*8 + r/4 ; cg = r&3
s_lshr_b32 s{lT}, {R}, 2
s_lshl_b32 s{sWO}, {G}, 3
s_add_u32 s{sWO}, s{sWO}, s{lT}
s_lshl_b32 s{sWO}, s{sWO}, 8
s_and_b32 s{lT}, {R}, 3
s_add_u32 s{sWO}, s{sWO}, s{lT}
s_lshl_b32 s{sWO}, s{sWO}, 8""".split("\n")
    for i in range(32):
        pre = list(vpre) if i == 0 else []
        if i % 4 == 0: pre += grp(i // 4, VL)
        seq.append((pre, f"buffer_load_dwordx4 v{vV+(i&1)}, s[16:19], s{sK} offen offset:{(i%4)*1024}{nt} lds"))
    for i in range(16):
        pre = []
        if i == 0: pre += [f"s_mov_b32 m0, {WO}", "s_nop 0"]
        elif i % 4 == 0: pre.append("s_add_u32 m0, m0, 4096")
        if i: pre.append(f"s_add_u32 s{sWO}, s{sWO}, {4096 - 1024 if i % 4 else 4096 + 3072}")
        seq.append((pre, f"buffer_load_dwordx4 v{vWO+((i>>1)&1)}, s[24:27], s{sWO} offen offset:{(i%4)*1024}{nt} lds"))
    T = len(seq); assert T == 97
    def emit(k):
        pre, ld = seq[k]
        for p in pre: a(p)
        a(ld)
    n0 = 17 + kx
    b0done = False
    if compact:
        b0done = True
    else:
        for p in seq[0][0]: a(p)
        a("s_waitcnt lgkmcnt(0)")
        a(seq[0][1])
        for k in range(1, 17): emit(k)
        ST_("L: wq issued")
        if warml == 2: a("; LWARM_START")
        pre17, ld17 = seq[17]
        for p in pre17: a(p)
        if kx > 0:
            if hold: a(f"s_waitcnt vmcnt({17 - hold})")
            a(ld17)
            for k in range(18, n0):
                if n1p and k >= n1p: a(f"s_waitcnt vmcnt({n1p - 1})")
                if b0e and n1p and not b0done and k - (n1p - 1) >= 17:
                    a("s_barrier"); b0done = True
                emit(k)
        else:
            seq[17] = ([], ld17)
    ST_("L: K issued")
    if warml == 1: a("; LWARM_START")
    lfl = lv(4, 4)
    a(f"v_mov_b32 v{t2}, {FL}")
    if not (b0e and kx > 0 and b0done): a(f"s_waitcnt vmcnt({n0 - 17})\ns_barrier")
    ST_("L: wq landed")
    def lwait(name, off):
        a(f"""L_{name}:
ds_read_b128 v[{lfl}:{lfl+3}], v{t2} offset:{off}
s_waitcnt lgkmcnt(0)
v_and_b32 v{lfl}, v{lfl}, v{lfl+1}
v_and_b32 v{lfl+2}, v{lfl+2}, v{lfl+3}
v_and_b32 v{lfl}, v{lfl}, v{lfl+2}
v_cmp_eq_u32 vcc, 0, v{lfl}
s_cbranch_vccnz L_{name}""")
    vFA = lv()
    a(f"v_mov_b32 v{vFA}, {FL}")
    def lwait(name, off):
        a(f"""L_{name}:
ds_read_b128 v[{lfl}:{lfl+3}], v{vFA} offset:{off}
s_waitcnt lgkmcnt(0)
v_and_b32 v{lfl}, v{lfl}, v{lfl+1}
v_and_b32 v{lfl+2}, v{lfl+2}, v{lfl+3}
v_and_b32 v{lfl}, v{lfl}, v{lfl+2}
v_cmp_eq_u32 vcc, 0, v{lfl}
s_cbranch_vccnz L_{name}""")
    lwait("qi", F_QI)
    n1 = 49 + nmid
    for k in range(n0, n1):
        if n2: a(f"s_waitcnt vmcnt({n2 - 1})")
        emit(k)
    assert lgo <= n1 and n1 <= T
    a(f"s_waitcnt vmcnt({n1 - lgo})")
    a(f"ds_write_b32 v{vLF}, v{vOne} offset:{F_GO}")
    lwait("gi", F_GI)
    for k in range(n1, T):
        if k == 81 and holdwo: lwait("gok", F_GOK)
        if k == 81 and lwo: a(f"s_waitcnt vmcnt({81 - lwo})")
        if n3: a(f"s_waitcnt vmcnt({n3 - 1})")
        emit(k)
    if lgo < 49: a(f"s_waitcnt vmcnt({T - 49})\nds_write_b32 v{vLF}, v{vOne} offset:{F_K}")
    F_V1 = F_GOK
    tailev = ([(49 + nmid, F_V1)] if pvp else []) + [(81, F_V), (97, F_W)]
    for cnt, f in tailev:
        a(f"s_waitcnt vmcnt({T - cnt})\nds_write_b32 v{vLF}, v{vOne} offset:{f}")
    ST_("L: all landed")
    if warml: a("; LWARM_END")
    if stamp: a("s_branch L_fin")
    else: a("s_endpgm")
    for _ in range(shift // 4): a("s_nop 0")
    a("L_compute:")
    if compact:
        if not stamp: a("s_load_dwordx2 s[28:29], s[0:1], 56\ns_load_dwordx2 s[32:33], s[0:1], 40")
    g = va(); n16 = va(); n4 = va()
    sQB = sa(); sOB = sa(); sEp = sa(); sTag = sa(); vPT = va()
    a(f"""
s_mov_b32 s31, s23
s_mov_b32 s30, {WS_BYTES}
s_mov_b32 s35, s23
s_movk_i32 s34, 0x1000
s_lshl_b32 s{sQB}, {G}, 4
s_add_u32 s{sQB}, s{sQB}, {B}
s_lshl_b32 s{sQB}, s{sQB}, 11
s_xor_b32 s{sT}, {C}, {cqx}
s_lshl_b32 s{sT}, s{sT}, 8
s_add_u32 s{sQB}, s{sQB}, s{sT}
s_add_u32 s{sQB}, s{sQB}, {QF}
s_lshl_b32 s{sOB}, {B}, 3
s_add_u32 s{sOB}, s{sOB}, {G}
s_lshl_b32 s{sOB}, s{sOB}, 5
s_add_u32 s{sOB}, s{sOB}, {C}
s_lshl_b32 s{sOB}, s{sOB}, 9
s_add_u32 s{sOB}, s{sOB}, {OF}
""")
    vPTa = va()
    if pt in (1, 3, 7):
        a(f"""
s_mul_i32 s{sT}, {W}, 6
v_add_u32 v{t3}, s{sT}, v{l}
v_lshrrev_b32 v{t0}, 1, v{t3}
v_lshlrev_b32 v{t0}, 13, v{t0}
v_and_b32 v{t1}, 1, v{t3}
v_lshl_or_b32 v{t0}, v{t1}, 7, v{t0}
v_add_u32 v{t0}, s{sQB}, v{t0}
v_subrev_u32 v{t1}, 8, v{t3}
v_lshrrev_b32 v{t2}, 2, v{t1}
v_lshlrev_b32 v{t2}, 12, v{t2}
v_and_b32 v{t1}, 3, v{t1}
v_lshl_or_b32 v{t2}, v{t1}, 7, v{t2}
v_add_u32 v{t2}, s{sOB}, v{t2}
v_cmp_gt_u32 vcc, 8, v{t3}
v_mov_b32 v{t3}, {OOB}
s_nop 0
v_cndmask_b32 v{t0}, v{t2}, v{t0}, vcc
v_cmp_gt_u32 vcc, 6, v{l}
s_mov_b32 s{sT}, {WSB}
s_waitcnt lgkmcnt(0)
s_load_dword s{sEp}, s[28:29], s{sT}
v_cndmask_b32 v{vPTa}, v{t3}, v{t0}, vcc
""")
        if pt != 7: a(f"buffer_load_dword v{vPT}, v{vPTa}, s[28:31], 0 offen{' nt' if pt == 3 else ''}")
    else:
        a(f"s_mov_b32 s{sT}, {WSB}\ns_waitcnt lgkmcnt(0)\ns_load_dword s{sEp}, s[28:29], s{sT}" if WSB else f"s_waitcnt lgkmcnt(0)\ns_load_dword s{sEp}, s[28:29], 0")
        if pt in (10, 11, 12):
            sD = sa(); sO1 = sa(); sO2 = sa()
            a(f"s_lshl_b32 s{sT}, {W}, 13\ns_add_u32 s{sO1}, s{sQB}, s{sT}\ns_lshl_b32 s{sT}, {W}, 12\ns_add_u32 s{sO2}, s{sOB}, s{sT}")
            stp = 128 if pt == 11 else 64
            ypt = [f"s_load_dword s{sD}, s[28:29], s{sO1} offset:{o}" for o in range(0, 256, stp)] + [f"s_load_dword s{sD}, s[28:29], s{sO2} offset:{o}" for o in range(0, 512, stp)]
            if pt == 12:
                sO3 = sT2
                sO3 = sa()
                a(f"""s_and_b32 s{sO3}, {R}, 3
s_lshl_b32 s{sO3}, s{sO3}, 6
s_lshl_b32 s{sT}, {G}, 3
s_add_u32 s{sO3}, s{sO3}, s{sT}
s_lshr_b32 s{sT}, {R}, 2
s_add_u32 s{sO3}, s{sO3}, s{sT}
s_lshl_b32 s{sO3}, s{sO3}, 2
s_add_u32 s{sO3}, s{sO3}, {W}
s_lshl_b32 s{sO3}, s{sO3}, 9
s_add_u32 s{sO3}, s{sO3}, {OX + SOFF}""")
                ypt += [f"s_load_dword s{sD}, s[28:29], s{sO3} offset:{o}" for o in range(0, 512, 64)]
        if pt in (8, 9):
            sD = sa(); sO1 = sa()
            a(f"s_lshl_b32 s{sT}, {W}, 13\ns_add_u32 s{sO1}, s{sQB}, s{sT}")
            for o in range(0, 256, 64): a(f"s_load_dword s{sD}, s[28:29], s{sO1} offset:{o}")
            a(f"s_lshl_b32 s{sT}, {W}, 12\ns_add_u32 s{sO1}, s{sOB}, s{sT}")
            for o in range(0, 512, 64): a(f"s_load_dword s{sD}, s[28:29], s{sO1} offset:{o}")
            if pt == 9:
                a(f"""s_and_b32 s{sO1}, {R}, 3
s_lshl_b32 s{sO1}, s{sO1}, 6
s_lshl_b32 s{sT}, {G}, 3
s_add_u32 s{sO1}, s{sO1}, s{sT}
s_lshr_b32 s{sT}, {R}, 2
s_add_u32 s{sO1}, s{sO1}, s{sT}
s_lshl_b32 s{sO1}, s{sO1}, 2
s_add_u32 s{sO1}, s{sO1}, {W}
s_lshl_b32 s{sO1}, s{sO1}, 9
s_add_u32 s{sO1}, s{sO1}, {OX + SOFF}""")
                ypt = [f"s_load_dword s{sD}, s[28:29], s{sO1} offset:{o}" for o in range(0, 512, 64)]
        if pt in (2, 4, 6):
            a(f"""
s_lshl_b32 s{sT}, {W}, 12
s_add_u32 s{sT}, s{sT}, s{sOB}
v_lshlrev_b32 v{t0}, 7, v{l}
v_add_u32 v{t0}, s{sT}, v{t0}
v_cmp_gt_u32 vcc, 4, v{l}
v_mov_b32 v{t3}, {OOB}
s_nop 0
v_cndmask_b32 v{vPTa}, v{t3}, v{t0}, vcc
""")
    if warm:
        a("s_mov_b64 exec, 0")
        for p in range(1, nparts):
            a(f"s_cmp_eq_u32 {W}, {p}\ns_cbranch_scc1 HOP_P{p}")
        a("s_branch HOP_P0\nL_warm_done:\ns_mov_b64 exec, -1")
    a("; WARM_START")
    sP = sa(); sCG = sa(); sR4 = sa()
    vXr = va(4); vWQr = va(); vKr = va(4); vVr = va(2); vWOr = va(2)
    vQst = va(); vG = va(); sG = sa(); vQLw = va(); vQLr = va()
    vPw = va(); vPr = va(); vSw = va(); vSr = va()
    vOst = va(); vOG = va(); sOG = sa(); vOLw = va(); vOLr = va()
    vYst = va(); sYst = sa(); vFG = va(); sFG = sa(); vOut = va()
    vFw = va(); vFr = va(); vOne_c = va()
    sCsc = sa(); sP0 = sa(); sP1 = sa(); sP2 = sa(); sU0 = sa(); sU1 = sa(); sM4 = sa(2, 2); sG1 = sa(2, 2); sCnt = sa()
    a(f"""
v_lshrrev_b32 v{g}, 4, v{l}
v_and_b32 v{n16}, 15, v{l}
v_and_b32 v{n4}, 3, v{l}
v_lshlrev_b32 v{t2}, 2, v{l}
v_mov_b32 v{t3}, 0
ds_write_b32 v{t2}, v{t3} offset:{FL}
v_add_u32 v{t2}, {JK}, v{t2}
s_lshl_b32 s{sT}, {W}, 2
s_add_u32 s{sT}, s{sT}, {FL}
v_mov_b32 v{vFw}, s{sT}
v_cmp_eq_u32 vcc, 0, v{l}
v_mov_b32 v{vFr}, {FL}
v_mov_b32 v{vOne_c}, 1
v_cndmask_b32 v{vFw}, v{t2}, v{vFw}, vcc
; p = g*8 + r/4 ; cg = r&3
s_lshr_b32 s{sR4}, {R}, 2
s_lshl_b32 s{sP}, {G}, 3
s_add_u32 s{sP}, s{sP}, s{sR4}
s_and_b32 s{sCG}, {R}, 3
v_lshlrev_b32 v{t2}, 2, v{n4}
v_xor_b32 v{t2}, v{g}, v{t2}
v_lshlrev_b32 v{t2}, 4, v{t2}
v_lshl_add_u32 v{t2}, v{n4}, 8, v{t2}
v_add_u32 v{vXr}, {XL}, v{t2}
v_xor_b32 v{vXr+1}, 64, v{vXr}
v_xor_b32 v{vXr+2}, 0x80, v{vXr}
v_xor_b32 v{vXr+3}, 0xc0, v{vXr}
v_bfe_u32 v{t0}, v{l}, 2, 2
v_lshl_add_u32 v{t2}, v{g}, 3, v{t0}
v_lshlrev_b32 v{t2}, 7, v{t2}
v_lshl_add_u32 v{t2}, v{n4}, 3, v{t2}
v_lshrrev_b32 v{t3}, 1, v{t0}
v_and_b32 v{t1}, 1, v{g}
v_lshl_or_b32 v{t3}, v{t1}, 1, v{t3}
v_xor_b32 v{t3}, {W}, v{t3}
v_lshl_add_u32 v{t2}, v{t3}, 5, v{t2}
v_add_u32 v{vWQr}, {WQ}, v{t2}
s_lshl_b32 s{sT}, {W}, 13
s_add_u32 s{sT}, s{sT}, {KL}
v_xor_b32 v{t2}, v{g}, v{n16}
v_lshlrev_b32 v{t2}, 4, v{t2}
v_lshl_add_u32 v{t2}, v{n16}, 8, v{t2}
v_add_u32 v{vKr}, s{sT}, v{t2}
v_xor_b32 v{vKr+1}, 64, v{vKr}
v_xor_b32 v{vKr+2}, 0x80, v{vKr}
v_xor_b32 v{vKr+3}, 0xc0, v{vKr}
v_lshl_add_u32 v{t2}, v{g}, 2, v{t0}
v_lshlrev_b32 v{t2}, 8, v{t2}
v_lshl_add_u32 v{t2}, v{n4}, 3, v{t2}
v_lshl_or_b32 v{t3}, v{t1}, 2, v{t0}
s_lshl_b32 s{sT}, {W}, 1
v_xor_b32 v{t3}, s{sT}, v{t3}
v_lshl_add_u32 v{t2}, v{t3}, 5, v{t2}
v_add_u32 v{vVr}, {VL}, v{t2}
v_xor_b32 v{vVr+1}, 32, v{vVr}
v_lshl_add_u32 v{t2}, v{g}, 3, v{t0}
v_lshlrev_b32 v{t2}, 8, v{t2}
v_lshl_add_u32 v{t2}, v{n4}, 3, v{t2}
v_lshl_add_u32 v{t2}, v{t3}, 5, v{t2}
v_add_u32 v{vWOr}, {WO}, v{t2}
v_xor_b32 v{vWOr+1}, 32, v{vWOr}
v_cmp_gt_u32 vcc, 4, v{n16}
v_mov_b32 v{t3}, {OOB}
s_lshl_b32 s{sT}, {W}, 6
v_lshlrev_b32 v{t2}, 4, v{g}
v_add_u32 v{t0}, s{sT}, v{t2}
v_lshl_add_u32 v{t0}, v{n16}, 13, v{t0}
v_cndmask_b32 v{vQst}, v{t3}, v{t0}, vcc
s_lshl_b32 s{sT}, {W}, 7
v_add_u32 v{t2}, s{sT}, v{t2}
v_lshl_add_u32 v{t0}, v{n16}, 12, v{t2}
v_cndmask_b32 v{vOst}, v{t3}, v{t0}, vcc
v_lshl_add_u32 v{t0}, v{n16}, 9, v{t2}
v_cndmask_b32 v{vYst}, v{t3}, v{t0}, vcc
YCOAL_ADDR
v_lshrrev_b32 v{t0}, 5, v{l}
v_and_b32 v{t1}, 31, v{l}
v_lshlrev_b32 v{t2}, 4, v{t1}
v_lshl_add_u32 v{vG}, v{t0}, 12, v{t2}
s_lshl_b32 s{sG}, {G}, 2
s_add_u32 s{sG}, s{sG}, {B}
s_lshl_b32 s{sG}, s{sG}, 4
s_add_u32 s{sG}, s{sG}, {W}
s_lshl_b32 s{sG}, s{sG}, 9
s_add_u32 s{sG}, s{sG}, {QF}
s_mul_i32 s{sT}, {W}, 320
v_lshlrev_b32 v{t2}, 3, v{t1}
v_lshl_add_u32 v{t2}, v{t0}, 2, v{t2}
v_add_u32 v{vQLw}, s{sT}, v{t2}
v_mul_u32_u24 v{t2}, 320, v{n4}
v_lshl_add_u32 v{vQLr}, v{g}, 4, v{t2}
v_lshlrev_b32 v{t2}, 6, v{n4}
v_lshl_add_u32 v{vPr}, v{g}, 4, v{t2}
s_lshl_b32 s{sT}, {W}, 8
v_add_u32 v{vPw}, s{sT}, v{vPr}
v_lshlrev_b32 v{vSr}, 4, v{n4}
s_lshl_b32 s{sT}, {W}, 2
v_add_u32 v{vSw}, s{sT}, v{vSr}
v_lshlrev_b32 v{t2}, 9, v{g}
v_lshl_add_u32 v{vOG}, v{n16}, 4, v{t2}
s_lshl_b32 s{sOG}, {W}, 3
s_add_u32 s{sOG}, s{sOG}, {G}
s_lshl_b32 s{sOG}, s{sOG}, 2
s_add_u32 s{sOG}, s{sOG}, {B}
s_lshl_b32 s{sOG}, s{sOG}, 4
s_and_b32 s{sT}, s{sR4}, 1
s_add_u32 s{sOG}, s{sOG}, s{sT}
s_lshl_b32 s{sOG}, s{sOG}, 8
s_add_u32 s{sOG}, s{sOG}, {OF}
s_mul_i32 s{sT}, {W}, 192
v_lshlrev_b32 v{t2}, 3, v{n16}
v_lshl_add_u32 v{t2}, v{g}, 1, v{t2}
v_add_u32 v{vOLw}, s{sT}, v{t2}
v_mul_u32_u24 v{t2}, 192, v{n4}
v_lshl_add_u32 v{vOLr}, v{g}, 4, v{t2}
s_lshl_b32 s{sYst}, s{sCG}, 6
s_add_u32 s{sYst}, s{sYst}, s{sP}
s_lshl_b32 s{sYst}, s{sYst}, 11
s_add_u32 s{sYst}, s{sYst}, {OX + SOFF}
v_lshrrev_b32 v{t0}, 1, v{l}
v_and_b32 v{t1}, 1, v{l}
v_lshlrev_b32 v{t2}, 4, v{t1}
v_lshl_add_u32 v{vFG}, v{t0}, 11, v{t2}
s_lshl_b32 s{sFG}, s{sCG}, 12
s_add_u32 s{sFG}, s{sFG}, s{sP}
s_lshl_b32 s{sFG}, s{sFG}, 5
s_add_u32 s{sFG}, s{sFG}, {OX + SOFF}
YCOAL_OUT
v_cmp_gt_u32 vcc, 2, v{n16}
s_mov_b32 s{sCsc}, {f32(CSC)}
s_mov_b32 s{sP0}, 0x07060503
v_cndmask_b32 v{vOut}, v{t3}, v{t2}, vcc
s_mov_b32 s{sP1}, 0x07060502
s_mov_b32 s{sP2}, 0x07060501
s_mov_b32 s{sU0}, 0x04000c0c
s_mov_b32 s{sU1}, 0x0706000c
s_mov_b32 s{sM4}, 0x000f000f
s_mov_b32 s{sM4+1}, 0x000f000f
s_waitcnt lgkmcnt(0)
s_mul_i32 s{sTag}, s{sEp}, 1664525
s_add_u32 s{sTag}, s{sTag}, 1013904223
""")
    ya = f"""; coalesced y store: lanes < 32: w*512 + l*16
s_lshl_b32 s{sT}, {W}, 9
v_lshlrev_b32 v{t0}, 4, v{l}
v_add_u32 v{t0}, s{sT}, v{t0}
v_cmp_gt_u32 s[{sM4}:{sM4+1}], 32, v{l}
v_cmp_eq_u32 s[{sG1}:{sG1+1}], 1, v{g}
s_nop 0
v_cndmask_b32 v{vYst}, v{t3}, v{t0}, s[{sM4}:{sM4+1}]""" if ycoal else ""
    yo = (f"""; out voffset: g*1024 + (cg*128 + 2p' + (l&1))*2 for lanes n16<2 ; p' = p (0..63)
s_lshl_b32 s{sT}, s{sCG}, 6
s_add_u32 s{sT}, s{sT}, s{sP}
s_lshl_b32 s{sT}, s{sT}, 2
v_lshlrev_b32 v{t2}, 1, v{t1}
v_lshl_add_u32 v{t2}, v{g}, 10, v{t2}
v_add_u32 v{t2}, s{sT}, v{t2}""" if ycoal else f"""s_lshr_b32 s{sT}, s{sP}, 4
s_lshl_b32 s{sT}, s{sT}, 2
s_add_u32 s{sT}, s{sT}, s{sCG}
s_lshl_b32 s{sT}, s{sT}, 4
s_and_b32 s{sT2}, s{sP}, 15
s_add_u32 s{sT}, s{sT}, s{sT2}
s_lshl_b32 s{sT}, s{sT}, 4
v_lshlrev_b32 v{t2}, 3, v{t1}
v_lshl_add_u32 v{t2}, v{g}, 1, v{t2}
v_add_u32 v{t2}, s{sT}, v{t2}""")
    newL = []
    for ln in a.L:
        if "YCOAL_ADDR" in ln: newL += ["    " + x for x in ya.split("\n") if x]
        elif "YCOAL_OUT" in ln: newL += ["    " + x for x in yo.split("\n")]
        else: newL.append(ln)
    a.L = newL
    A32 = va(32, 4); B16 = va(16, 4); C32 = va(32, 4); E8 = va(8, 4); F8 = va(8, 4)
    ones = va(4, 4); fl = va(4, 4); fl1 = va(); QS4 = va(4, 4); OS8 = va(8, 4); sQS = sa(); sOS = sa(); sWcN = sa.n
    a(f"""
v_mov_b32 v{ones}, 0x3f803f80
v_mov_b32 v{ones+1}, 0x3f803f80
v_mov_b32 v{ones+2}, 0x3f803f80
v_mov_b32 v{ones+3}, 0x3f803f80
v_mov_b32 v{QS4+3}, s{sTag}
v_mov_b32 v{OS8+3}, s{sTag}
v_mov_b32 v{OS8+7}, s{sTag}
v_mov_b32 v{E8+3}, s{sTag}
v_mov_b32 v{E8+7}, s{sTag}
s_add_u32 s{sQS}, s{sQB}, {0 if sameS in (1, 2) else SOFF}
s_add_u32 s{sOS}, s{sOB}, {0 if sameS in (1, 3) else SOFF}
s_mov_b32 s{sCnt}, {spin}
s_movk_i32 s{sWcN}, {wthr}
""")
    if pt == 7: a(f"buffer_load_dword v{vPT}, v{vPTa}, s[28:31], 0 offen")
    lab = [0]
    def setflag(off): a(f"ds_write_b32 v{vFw}, v{vOne_c} offset:{off}")
    colder = []
    sWc = sa()
    stage = {"flush": []}
    def waitflags(group=None, single=None):
        lab[0] += 1; L = f"L_wf{lab[0]}"
        a(f"{L}:")
        if group is not None: a(f"ds_read_b128 {rng(fl,4)}, v{vFr} offset:{group}")
        if single is not None: a(f"ds_read_b32 v{fl1}, v{vFr} offset:{single}")
        a("s_waitcnt lgkmcnt(0)")
        if group is not None:
            a(f"v_min3_u32 v{fl}, v{fl}, v{fl+1}, v{fl+2}")
            if single is not None: a(f"v_min3_u32 v{fl}, v{fl}, v{fl+3}, v{fl1}")
            else: a(f"v_min_u32 v{fl}, v{fl}, v{fl+3}")
            r = fl
        else: r = fl1
        a(f"v_cmp_eq_u32 vcc, 0, v{r}\ns_cbranch_vccz {L}d\ns_sub_u32 s{sWc}, s{sWc}, 1\ns_cbranch_scc0 {L}\ns_branch {L}f\n{L}d:")
        colder.append([f"{L}f:"] + list(stage["flush"]) + [f"s_movk_i32 s{sWc}, {wthr}", f"s_branch {L}"])
    QFL = [f"buffer_store_dwordx4 {rng(QS4,4)}, v{vQst}, s[28:31], s{sQS} offen sc1"]
    OFL = [f"buffer_store_dwordx4 {rng(OS8,4)}, v{vOst}, s[28:31], s{sOS} offen sc1", f"buffer_store_dwordx4 {rng(OS8+4,4)}, v{vOst}, s[28:31], s{sOS} offen offset:64 sc1"]
    assert sWc == sWcN
    xb = A32; wa = A32 + 16; acc = C32
    a("s_waitcnt lgkmcnt(0)\ns_barrier")
    for s in range(4):
        a(f"ds_read_b128 {rng(xb+4*s,4)}, v{vXr+s}")
        a(f"ds_read_b64_tr_b16 {rng(wa+4*s,2)}, v{vWQr} offset:{s*4096}")
        a(f"ds_read_b64_tr_b16 {rng(wa+4*s+2,2)}, v{vWQr} offset:{s*4096 + 512}")
    for s in range(4):
        a(f"s_waitcnt lgkmcnt({3*(3-s)})")
        c = "0" if s == 0 else rng(acc,4)
        a(f"v_mfma_f32_16x16x32_bf16 {rng(acc,4)}, {rng(wa+4*s,4)}, {rng(xb+4*s,4)}, {c}")
    a(f"""
s_nop 7
v_perm_b32 v{QS4}, v{acc}, v{acc+3}, s{sP0}
v_perm_b32 v{QS4+1}, v{acc+1}, v{acc+3}, s{sP1}
v_perm_b32 v{QS4+2}, v{acc+2}, v{acc+3}, s{sP2}
buffer_store_dwordx4 {rng(QS4,4)}, v{vQst}, s[28:31], s{sQB} offen
""")
    setflag(F_QI)
    stage["flush"] = QFL
    if pt in (9, 10, 11, 12):
        for x_ in ypt: a(x_)
    if pt in (2, 6): a(f"buffer_load_dword v{vPT}, v{vPTa}, s[28:31], 0 offen" + (" nt" if pt == 2 else ""))
    ST_("q published")
    gq = F8
    if gmin:
        sGm = sa()
        a(f"""s_movk_i32 s{sGm}, {gmin}
L_gom:
ds_read_b32 v{fl1}, v{vFr} offset:{F_GO}
s_waitcnt lgkmcnt(0)
s_sub_u32 s{sGm}, s{sGm}, 1
s_cbranch_scc0 L_gom""")
    waitflags(single=F_GO)
    ST_("GO")
    a(f"buffer_load_dwordx4 {rng(gq,4)}, v{vG}, s[28:31], s{sG} offen sc1")
    a(f"buffer_load_dwordx4 {rng(gq+4,4)}, v{vG}, s[28:31], s{sG} offen offset:2048 sc1")
    if pt == 4: a(f"buffer_load_dword v{vPT}, v{vPTa}, s[28:31], 0 offen nt")
    if pt == 13:
        dum = va(2, 2)
        a(f"buffer_load_dword v{dum}, v{vOG}, s[28:31], s{sOG} offen sc1")
        a(f"buffer_load_dword v{dum+1}, v{vOG}, s[28:31], s{sOG} offen offset:2048 sc1")
    if pt == 14:
        dum = va(2, 2)
        a(f"buffer_load_dword v{dum}, v{vOG}, s[28:31], s{sOG} offen sc1")
        a(f"buffer_load_dword v{dum+1}, v{vOG}, s[28:31], s{sOG} offen offset:2048 sc1")
        dum2 = va(2, 2)
        a(f"s_add_u32 s{sT2}, s{sFG}, 65536")
        a(f"buffer_load_dword v{dum2}, v{vFG}, s[28:31], s{sFG} offen sc1")
        a(f"buffer_load_dword v{dum2+1}, v{vFG}, s[28:31], s{sT2} offen sc1")
    setflag(F_GI)
    ka = A32
    if lgo < 49: waitflags(single=F_K)
    for t in range(2):
        for s_ in range(4):
            a(f"ds_read_b128 {rng(ka+16*t+4*s_,4)}, v{vKr+s_} offset:{t*4096}")
    sa_tmp = sa(2, 2)
    cold = []
    def poll(name, regs, vaddr, soff, first_wait, offs, flush):
        a(f"s_waitcnt vmcnt({first_wait})\nL_{name}chk:")
        for i, r in enumerate(regs):
            if i == 0: a(f"v_cmp_ne_u32 vcc, s{sTag}, v{r+3}")
            else: a(f"v_cmp_ne_u32 s[{sa_tmp}:{sa_tmp+1}], s{sTag}, v{r+3}\ns_or_b64 vcc, vcc, s[{sa_tmp}:{sa_tmp+1}]")
        a(f"s_cbranch_vccnz L_{name}retry\nL_{name}ok:")
        c = [f"L_{name}retry:", f"s_sub_u32 s{sCnt}, s{sCnt}, 1", f"s_cbranch_scc1 L_{name}ok",
             f"s_cmp_gt_u32 s{sCnt}, {spin - nf}", f"s_cbranch_scc1 L_{name}re",
             f"s_cmp_lg_u32 s{sCnt}, {spin - nf}", f"s_cbranch_scc1 L_{name}tg"] + flush + [f"L_{name}tg:"] + ([] if (sameS == 1 or (sameS == 2 and name == "q") or (sameS == 3 and name == "o")) else [f"s_xor_b32 s{soff}, s{soff}, {SOFF}"]) + [f"L_{name}re:"]
        for r, o in zip(regs, offs):
            c.append(f"buffer_load_dwordx4 {rng(r,4)}, v{vaddr}, s[28:31], s{soff} offen offset:{o} sc1")
        c += ["s_waitcnt vmcnt(0)", f"s_branch L_{name}chk"]
        cold.append((name, c))
    poll("q", [gq, gq+4], vG, sG, {4: 1, 13: 2, 14: 4}.get(pt, 0), [0, 2048], QFL)
    if holdwo: setflag(F_GOK)
    ST_("q gathered")
    u = E8; qb = B16
    a(f"""
v_perm_b32 v{u}, v{gq}, v{gq+1}, s{sU0}
v_perm_b32 v{u+1}, v{gq+4}, v{gq+5}, s{sU0}
v_add_f32 v{u+4}, v{gq}, v{gq+4}
v_add_f32 v{u+6}, v{gq+2}, v{gq+6}
v_perm_b32 v{u}, v{u}, v{gq+2}, s{sU1}
v_perm_b32 v{u+1}, v{u+1}, v{gq+6}, s{sU1}
v_add_f32 v{u+5}, v{gq+1}, v{gq+5}
v_add_f32 v{u+7}, v{u}, v{u+1}
v_permlane32_swap_b32 v{u+4}, v{u+6}
s_nop 0
v_permlane32_swap_b32 v{u+5}, v{u+7}
v_add_f32 v{u+4}, v{u+4}, v{u+6}
v_add_f32 v{u+5}, v{u+5}, v{u+7}
v_cvt_pk_bf16_f32 v{u}, v{u+4}, v{u+5}
ds_write_b32 v{vQLw}, v{u} offset:{QL}
""")
    setflag(F_Q)
    waitflags(group=F_Q)
    for s in range(4):
        a(f"ds_read_b128 {rng(qb+4*s,4)}, v{vQLr} offset:{QL + s*64}")
    sc = C32
    for s in range(4):
        a(f"s_waitcnt lgkmcnt({3-s})")
        for t in range(2):
            c = "0" if s == 0 else rng(sc+4*t,4)
            a(f"v_mfma_f32_16x16x32_bf16 {rng(sc+4*t,4)}, {rng(ka+16*t+4*s,4)}, {rng(qb+4*s,4)}, {c}")
    m = va(2, 2); mt = va(); pk = E8
    sC2 = sa(2, 2)
    a(f"""
s_mov_b32 s{sC2}, s{sCsc}
s_mov_b32 s{sC2+1}, s{sCsc}
s_nop 4
v_max3_f32 v{m}, v{sc}, v{sc+1}, v{sc+2}
v_max3_f32 v{mt}, v{sc+3}, v{sc+4}, v{sc+5}
v_max3_f32 v{m}, v{m}, v{sc+6}, v{sc+7}
v_max_f32 v{m}, v{m}, v{mt}
v_mov_b32 v{mt}, v{m}
s_nop 1
v_permlane16_swap_b32 v{m}, v{mt}
v_max_f32 v{m}, v{m}, v{mt}
v_mov_b32 v{mt}, v{m}
s_nop 1
v_permlane32_swap_b32 v{m}, v{mt}
v_max_f32 v{m}, v{m}, v{mt}
v_mul_f32 v{m}, s{sCsc}, v{m}
""")
    for i in range(0, 8, 2):
        a(f"v_pk_fma_f32 v[{sc+i}:{sc+i+1}], v[{sc+i}:{sc+i+1}], s[{sC2}:{sC2+1}], v[{m}:{m+1}] op_sel_hi:[1,1,0] neg_lo:[0,0,1] neg_hi:[0,0,1]")
    a(f"s_mov_b64 exec, s[{sM4}:{sM4+1}]\nds_write_b32 v{vSw}, v{m} offset:{SL}\ns_mov_b64 exec, -1")
    for i in range(8):
        a(f"v_exp_f32 v{sc+i}, v{sc+i}")
        if i == 2: a(f"v_cvt_pk_bf16_f32 v{pk}, v{sc}, v{sc+1}")
        if i == 4: a(f"v_cvt_pk_bf16_f32 v{pk+1}, v{sc+2}, v{sc+3}")
        if i == 6: a(f"v_cvt_pk_bf16_f32 v{pk+2}, v{sc+4}, v{sc+5}")
    a(f"""
s_mov_b64 exec, s[{sM4}:{sM4+1}]
v_cvt_pk_bf16_f32 v{pk+3}, v{sc+6}, v{sc+7}
ds_write_b128 v{vPw}, {rng(pk,4)} offset:{PL}
s_mov_b64 exec, -1
""")
    setflag(F_P)
    a(f"s_mov_b32 s{sCnt}, {spin}")
    waitflags(group=F_P)
    ST_("P written")
    pb = B16; sv = F8; vaop = A32; D = C32
    lk = va(16, 4)
    M = va(); ff = va(4, 2); L = va(); Rr = va(); lse = va()
    a(f"ds_read_b128 {rng(sv,4)}, v{vSr} offset:{SL}")
    for ks in range(4):
        a(f"ds_read_b128 {rng(pb+4*ks,4)}, v{vPr} offset:{PL + ks*256}")
    a(f"ds_read_b32 v{fl1}, v{vFr} offset:{F_V}")
    a(f"""
s_waitcnt lgkmcnt(5)
v_max3_f32 v{M}, v{sv}, v{sv+1}, v{sv+2}
v_max_f32 v{M}, v{M}, v{sv+3}
v_sub_f32 v{ff}, v{sv}, v{M}
v_sub_f32 v{ff+1}, v{sv+1}, v{M}
v_sub_f32 v{ff+2}, v{sv+2}, v{M}
v_sub_f32 v{ff+3}, v{sv+3}, v{M}
""")
    for ks in range(4):
        a(f"s_waitcnt lgkmcnt({4-ks})")
        a(f"v_mfma_f32_16x16x32_bf16 {rng(lk+4*ks,4)}, {rng(ones,4)}, {rng(pb+4*ks,4)}, 0")
        a(f"v_exp_f32 v{ff+ks}, v{ff+ks}")
    def vread(ks):
        for tp in range(2):
            for e in range(2):
                a(f"ds_read_b64_tr_b16 {rng(vaop+8*ks+4*tp+2*e,2)}, v{vVr+tp} offset:{ks*8192 + e*4096}")
    def pv(ks):
        for tp in range(2):
            a(f"v_mfma_f32_16x16x32_bf16 {rng(D+8*ks+4*tp,4)}, {rng(vaop+8*ks+4*tp,4)}, {rng(pb+4*ks,4)}, 0")
    stats2 = f"""v_mul_f32 v{L}, v{ff}, v{lk}
v_fmac_f32 v{L}, v{ff+1}, v{lk+4}
v_fmac_f32 v{L}, v{ff+2}, v{lk+8}
v_fmac_f32 v{L}, v{ff+3}, v{lk+12}
v_rcp_f32 v{Rr}, v{L}
v_log_f32 v{lse}, v{L}
s_nop 0
v_mul_f32 v{ff}, v{ff}, v{Rr}
v_mul_f32 v{ff+1}, v{ff+1}, v{Rr}
v_mul_f32 v{ff+2}, v{ff+2}, v{Rr}
v_mul_f32 v{ff+3}, v{ff+3}, v{Rr}
v_add_f32 v{OS8+2}, v{lse}, v{M}
v_add_f32 v{OS8+6}, v{lse}, v{M}"""
    o = F8
    def scale(ks):
        base = ff + (ks & ~1); sel = ks & 1; fr = f"v[{base}:{base+1}]"
        for tp in range(2):
            for h in range(2):
                dst = rng(o+4*tp+2*h, 2); src = rng(D+8*ks+4*tp+2*h, 2)
                if ks == 0: a(f"v_pk_mul_f32 {dst}, {src}, {fr} op_sel:[0,{sel}] op_sel_hi:[1,{sel}]")
                else: a(f"v_pk_fma_f32 {dst}, {src}, {fr}, {dst} op_sel:[0,{sel},0] op_sel_hi:[1,{sel},1]")
    a(f"s_waitcnt lgkmcnt(0)\nv_cmp_ne_u32 vcc, 0, v{fl1}\ns_cbranch_vccnz L_vfast\ns_nop 3")
    if pvp:
        assert nmid == 24
        F_V1 = F_GOK
        waitflags(single=F_V1)
        vread(0); vread(1); vread(2)
        a(stats2)
        a("s_waitcnt lgkmcnt(8)"); pv(0)
        a("s_waitcnt lgkmcnt(4)"); pv(1)
        a("s_waitcnt lgkmcnt(0)"); pv(2)
        a("s_nop 1")
        scale(0); scale(1); scale(2)
        waitflags(single=F_V)
        ST_("V landed")
        vread(3)
        a("s_waitcnt lgkmcnt(0)"); pv(3)
        a("s_nop 7")
        scale(3)
        a("s_branch L_vdone")
    else:
        a(stats2)
        waitflags(single=F_V)
        ST_("V landed")
        vread(0); vread(1); vread(2)
        a("s_branch L_vjoin")
    a("L_vfast:")
    vread(0); vread(1); vread(2)
    a(stats2)
    a("L_vjoin:")
    a("s_waitcnt lgkmcnt(8)"); pv(0); vread(3)
    a("s_waitcnt lgkmcnt(8)"); pv(1)
    a("s_waitcnt lgkmcnt(4)"); pv(2)
    a("s_waitcnt lgkmcnt(0)"); pv(3)
    for ks in range(4): scale(ks)
    a("L_vdone:")
    og = OS8
    a(f"""
v_cvt_pk_bf16_f32 v{og}, v{o}, v{o+1}
v_cvt_pk_bf16_f32 v{og+1}, v{o+2}, v{o+3}
v_cvt_pk_bf16_f32 v{og+4}, v{o+4}, v{o+5}
v_cvt_pk_bf16_f32 v{og+5}, v{o+6}, v{o+7}
buffer_store_dwordx4 {rng(og,4)}, v{vOst}, s[28:31], s{sOB} offen
buffer_store_dwordx4 {rng(og+4,4)}, v{vOst}, s[28:31], s{sOB} offen offset:64
""")
    setflag(F_OI)
    stage["flush"] = QFL + OFL
    ST_("o published")
    gg = B16; wb = A32
    if not nooi: waitflags(group=F_OI)
    if nooi:
        waitflags(single=F_W)
        for s_ in range(2):
            for tp in range(2):
                for hh in range(2):
                    a(f"ds_read_b64_tr_b16 {rng(wb+8*s_+4*tp+2*hh,2)}, v{vWOr+tp} offset:{s_*8192 + hh*1024}")
    a(f"""
buffer_load_dwordx4 {rng(gg,4)}, v{vOG}, s[28:31], s{sOG} offen sc1
buffer_load_dwordx4 {rng(gg+4,4)}, v{vOG}, s[28:31], s{sOG} offen offset:2048 sc1
""")
    if not nooi:
        waitflags(single=F_W)
        for s in range(2):
            for tp in range(2):
                for hh in range(2):
                    a(f"ds_read_b64_tr_b16 {rng(wb+8*s+4*tp+2*hh,2)}, v{vWOr+tp} offset:{s*8192 + hh*1024}")
    poll("o", [gg, gg+4], vOG, sOG, 0, [0, 2048], QFL + OFL)
    ST_("o gathered")
    e0 = va(); e1 = va(); u = A32 + 16; S = va(); oo = A32 + 24
    a(f"""
v_max_f32 v{M}, v{gg+2}, v{gg+6}
v_mov_b32 v{mt}, v{M}
v_lshlrev_b32 v{u}, 16, v{gg}
v_and_b32 v{u+1}, 0xffff0000, v{gg}
v_permlane16_swap_b32 v{M}, v{mt}
v_lshlrev_b32 v{u+2}, 16, v{gg+1}
v_max_f32 v{M}, v{M}, v{mt}
v_mov_b32 v{mt}, v{M}
v_and_b32 v{u+3}, 0xffff0000, v{gg+1}
v_lshlrev_b32 v{u+4}, 16, v{gg+4}
v_permlane32_swap_b32 v{M}, v{mt}
v_and_b32 v{u+5}, 0xffff0000, v{gg+4}
v_max_f32 v{M}, v{M}, v{mt}
v_lshlrev_b32 v{u+6}, 16, v{gg+5}
v_sub_f32 v{e0}, v{gg+2}, v{M}
v_sub_f32 v{e1}, v{gg+6}, v{M}
v_exp_f32 v{e0}, v{e0}
v_exp_f32 v{e1}, v{e1}
v_and_b32 v{u+7}, 0xffff0000, v{gg+5}
v_add_f32 v{S}, v{e0}, v{e1}
v_mul_f32 v{oo}, v{e0}, v{u}
v_mul_f32 v{oo+1}, v{e0}, v{u+1}
v_mov_b32 v{mt}, v{S}
v_mul_f32 v{oo+2}, v{e0}, v{u+2}
v_mul_f32 v{oo+3}, v{e0}, v{u+3}
v_permlane16_swap_b32 v{S}, v{mt}
v_fmac_f32 v{oo}, v{e1}, v{u+4}
v_fmac_f32 v{oo+1}, v{e1}, v{u+5}
v_add_f32 v{S}, v{S}, v{mt}
v_fmac_f32 v{oo+2}, v{e1}, v{u+6}
v_fmac_f32 v{oo+3}, v{e1}, v{u+7}
v_mov_b32 v{mt}, v{S}
v_permlane16_swap_b32 v{oo}, v{oo+1}
s_nop 0
v_permlane16_swap_b32 v{oo+2}, v{oo+3}
v_permlane32_swap_b32 v{S}, v{mt}
v_add_f32 v{oo}, v{oo}, v{oo+1}
v_add_f32 v{oo+2}, v{oo+2}, v{oo+3}
v_add_f32 v{S}, v{S}, v{mt}
s_nop 0
v_permlane32_swap_b32 v{oo}, v{oo+2}
v_rcp_f32 v{S}, v{S}
v_add_f32 v{oo}, v{oo}, v{oo+2}
v_mul_f32 v{oo}, v{oo}, v{S}
v_cvt_pk_bf16_f32 v{oo}, v{oo}, v{oo}
ds_write_b16 v{vOLw}, v{oo} offset:{OL}
""")
    setflag(F_O)
    a(f"s_add_u32 s{sT2}, s{sFG}, 65536\ns_mov_b32 s{sCnt}, {spin}")
    waitflags(group=F_O)
    ob = B16 + 8; y = C32; yg = E8
    a(f"""
ds_read_b128 {rng(ob,4)}, v{vOLr} offset:{OL}
ds_read_b128 {rng(ob+4,4)}, v{vOLr} offset:{OL+64}
""")
    for s in range(2):
        a(f"s_waitcnt lgkmcnt({1-s})")
        for tp in range(2):
            c = "0" if s == 0 else rng(y+4*tp,4)
            if ycoal: a(f"v_mfma_f32_16x16x32_bf16 {rng(y+4*tp,4)}, {rng(ob+4*s,4)}, {rng(wb+8*s+4*tp,4)}, {c}")
            else: a(f"v_mfma_f32_16x16x32_bf16 {rng(y+4*tp,4)}, {rng(wb+8*s+4*tp,4)}, {rng(ob+4*s,4)}, {c}")
    if ycoal:
        a(f"v_mov_b32 v{E8+3}, s{sTag}\ns_nop 6")
        for r in range(4): a(f"v_cndmask_b32 v{y+r}, v{y+r}, v{y+4+r}, s[{sG1}:{sG1+1}]")
        a(f"""v_perm_b32 v{yg}, v{y}, v{y+3}, s{sP0}
v_perm_b32 v{yg+1}, v{y+1}, v{y+3}, s{sP1}
v_perm_b32 v{yg+2}, v{y+2}, v{y+3}, s{sP2}
buffer_store_dwordx4 {rng(yg,4)}, v{vYst}, s[28:31], s{sYst} offen sc1""")
    else:
        a(f"v_mov_b32 v{E8+3}, s{sTag}\nv_mov_b32 v{E8+7}, s{sTag}\ns_nop 4")
        for tp in range(2):
            a(f"""v_perm_b32 v{yg+4*tp}, v{y+4*tp}, v{y+4*tp+3}, s{sP0}
v_perm_b32 v{yg+4*tp+1}, v{y+4*tp+1}, v{y+4*tp+3}, s{sP1}
v_perm_b32 v{yg+4*tp+2}, v{y+4*tp+2}, v{y+4*tp+3}, s{sP2}
buffer_store_dwordx4 {rng(yg+4*tp,4)}, v{vYst}, s[28:31], s{sYst} offen offset:{tp*64} sc1""")
    setflag(F_YI)
    ST_("y published")
    waitflags(group=F_YI)
    if not noflush:
        for x_ in QFL + OFL: a(x_)
    if dirty:
        a(f"s_lshl_b32 s{sT}, s2, 2\ns_add_u32 s{sT}, s{sT}, {W}\ns_mul_i32 s{sT}, s{sT}, {dirty*1024}\ns_add_u32 s{sT}, s{sT}, 0x800000\nv_lshlrev_b32 v{t0}, 4, v{l}")
        for i in range(dirty):
            a(f"buffer_store_dwordx4 {rng(C32,4)}, v{t0}, s[28:31], s{sT} offen\ns_add_u32 s{sT}, s{sT}, 1024")
    z = C32 + 24
    fg = C32 + 16
    FM = {0: ' sc1', 1: ' sc1 nt', 2: ' sc0 sc1', 3: ' sc0 sc1 nt'}[fmode]
    a(f"""s_cmp_lg_u32 {W}, 0
s_cbranch_scc1 L_fin
L_fpoll:
buffer_load_dwordx4 {rng(fg,4)}, v{vFG}, s[28:31], s{sFG} offen{FM}
buffer_load_dwordx4 {rng(fg+4,4)}, v{vFG}, s[28:31], s{sT2} offen{FM}
s_waitcnt vmcnt(0)
v_cmp_ne_u32 vcc, s{sTag}, v{fg+3}
v_cmp_ne_u32 s[{sa_tmp}:{sa_tmp+1}], s{sTag}, v{fg+7}
s_or_b64 vcc, vcc, s[{sa_tmp}:{sa_tmp+1}]
s_cbranch_vccz L_fok
{('s_sleep ' + str(fsleep)) if fsleep else 's_nop 0'}
s_sub_u32 s{sCnt}, s{sCnt}, 1
s_cbranch_scc0 L_fpoll
L_fok:""")
    ST_("final gathered")
    a(f"""
v_perm_b32 v{z+3}, v{fg}, v{fg+1}, s{sU0}
v_perm_b32 v{z+7}, v{fg+4}, v{fg+5}, s{sU0}
v_add_f32 v{z}, v{fg}, v{fg+4}
v_perm_b32 v{z+3}, v{z+3}, v{fg+2}, s{sU1}
v_perm_b32 v{z+7}, v{z+7}, v{fg+6}, s{sU1}
v_add_f32 v{z+1}, v{fg+1}, v{fg+5}
v_add_f32 v{z+2}, v{fg+2}, v{fg+6}
v_add_f32 v{z+3}, v{z+3}, v{z+7}
""")
    for ctl in ("quad_perm:[2,3,0,1]", "row_ror:4", "row_ror:8"):
        for r in range(4):
            a(f"v_add_f32_dpp v{z+r}, v{z+r}, v{z+r} {ctl} row_mask:0xf bank_mask:0xf")
    a(f"""
s_nop 0
v_permlane16_swap_b32 v{z}, v{z+1}
v_permlane16_swap_b32 v{z+2}, v{z+3}
s_nop 0
v_add_f32 v{z}, v{z}, v{z+1}
v_add_f32 v{z+2}, v{z+2}, v{z+3}
s_nop 1
v_permlane32_swap_b32 v{z}, v{z+2}
s_nop 0
v_add_f32 v{z}, v{z}, v{z+2}
v_cvt_pk_bf16_f32 v{z}, v{z}, v{z}
buffer_store_short v{z}, v{vOut}, s[32:35], 0 offen
s_cmp_lg_u32 s2, 0
s_cbranch_scc1 L_fin
v_mov_b32 v{t0}, s{sTag}
v_mov_b32 v{t1}, {WSB}
s_mov_b64 exec, 1
buffer_store_dword v{t0}, v{t1}, s[28:31], 0 offen sc1
s_mov_b64 exec, -1
L_fin:
""")
    a("s_branch L_tail" if stamp else "s_endpgm")
    for name, c in cold:
        for x_ in c: a(x_)
    a("; WARM_END")
    for c in colder:
        for x_ in c: a(x_)
    a("L_tail:")
    if stamp:
        a(f"s_mov_b32 s31, 0x20000\ns_mov_b32 s30, {WS_BYTES}")
    if amp >= 0:
        ST_("end")
        e = nst[0] - 1
        a(f"""
s_waitcnt lgkmcnt(0)
s_cmp_lg_u32 {W}, {ampw}
s_cbranch_scc1 L_end
""")
        if ampglob:
            a(f"""
s_lshl_b32 s37, s2, 3
s_add_u32 s37, s37, {ST}
v_mov_b32 v{C32}, s{SB}
v_mov_b32 v{C32+1}, s{sTag}
v_mov_b32 v{t1}, 0
s_mov_b64 exec, 1
buffer_store_dwordx2 v[{C32}:{C32+1}], v{t1}, s[28:31], s37 offen sc1
s_mov_b64 exec, -1
""")
        a(f"""
s_cmp_lg_u32 s2, 0
s_cbranch_scc1 L_end
""")
        if ampglob:
            a(f"""
s_mov_b32 s37, {ST}
v_lshlrev_b32 v{t1}, 5, v{l}
L_ag:
buffer_load_dwordx4 v[{C32}:{C32+3}], v{t1}, s[28:31], s37 offen sc1
buffer_load_dwordx4 v[{C32+4}:{C32+7}], v{t1}, s[28:31], s37 offen offset:16 sc1
s_waitcnt vmcnt(0)
v_cmp_ne_u32 vcc, s{sTag}, v{C32+1}
v_cmp_ne_u32 s[40:41], s{sTag}, v{C32+3}
s_or_b64 vcc, vcc, s[40:41]
v_cmp_ne_u32 s[40:41], s{sTag}, v{C32+5}
s_or_b64 vcc, vcc, s[40:41]
v_cmp_ne_u32 s[40:41], s{sTag}, v{C32+7}
s_or_b64 vcc, vcc, s[40:41]
s_cbranch_vccnz L_ag
v_subrev_u32 v{C32}, s{SB}, v{C32}
v_subrev_u32 v{C32+2}, s{SB}, v{C32+2}
v_subrev_u32 v{C32+4}, s{SB}, v{C32+4}
v_subrev_u32 v{C32+6}, s{SB}, v{C32+6}
v_min_i32 v{C32}, v{C32}, v{C32+2}
v_min_i32 v{C32+4}, v{C32+4}, v{C32+6}
v_min_i32 v{C32}, v{C32}, v{C32+4}
s_nop 1
v_min_i32_dpp v{C32}, v{C32}, v{C32} row_ror:1 row_mask:0xf bank_mask:0xf
s_nop 1
v_min_i32_dpp v{C32}, v{C32}, v{C32} row_ror:2 row_mask:0xf bank_mask:0xf
s_nop 1
v_min_i32_dpp v{C32}, v{C32}, v{C32} row_ror:4 row_mask:0xf bank_mask:0xf
s_nop 1
v_min_i32_dpp v{C32}, v{C32}, v{C32} row_ror:8 row_mask:0xf bank_mask:0xf
s_nop 1
v_readlane_b32 s36, v{C32}, 0
v_readlane_b32 s37, v{C32}, 16
v_readlane_b32 s38, v{C32}, 32
v_readlane_b32 s39, v{C32}, 48
s_nop 3
s_min_i32 s36, s36, s37
s_min_i32 s38, s38, s39
s_min_i32 s36, s36, s38
s_sub_u32 s37, s{SB+2*amp}, s{SB}
s_sub_u32 s37, s37, s36
s_memrealtime s[40:41]
s_waitcnt lgkmcnt(0)
s_mul_i32 s37, s37, {ampk}
s_add_u32 s37, s37, s40
""")
        else:
            a(f"""
s_sub_u32 s37, s{SB+2*amp}, s{SB+2*ampj}
s_mul_i32 s37, s37, {ampk}
s_add_u32 s37, s37, s{SB+2*e}
""")
        a(f"""
L_amp:
s_memrealtime s[40:41]
s_waitcnt lgkmcnt(0)
s_cmp_lt_u32 s40, s37
s_cbranch_scc1 L_amp
""")
    elif stamp:
        ST_("end")
        if stamp == 2:
            a("s_waitcnt vmcnt(0)")
            ST_("end2")
        n = nst[0]
        a(f"""
s_waitcnt lgkmcnt(0) vmcnt(0)
s_mul_i32 s4, s2, 8
s_add_u32 s4, s4, s3
s_lshl_b32 s4, s4, 6
s_add_u32 s4, s4, {ST}
v_mov_b32 v{t1}, 0
s_mov_b64 exec, 1
""")
        for i in range(n):
            a(f"v_mov_b32 v{t0}, s{SB+2*i}\nbuffer_store_dword v{t0}, v{t1}, s[28:31], s4 offen offset:{4*i}\ns_nop 0")
    a("L_end:\ns_endpgm")
    lines = a.L
    nh = 0
    if warm:
        if warml: lines, nh, have = hops.insert_multi(lines, nparts, [("; LWARM_START", "; LWARM_END"), ("; WARM_START", "; WARM_END")])
        else: lines, nh, have = hops.insert(lines, nparts)
        assert have == nparts, (have, nparts)
    body = "\n".join(lines) + "\n"
    assert (not stamp) or (sa.hi <= SB and ls.hi <= SB), (sa.hi, ls.hi)
    nv = max(va.hi, lv.hi)
    s = header([f"; @launch grid=(256,1,1) block=(320,1,1) lds={LDS_BYTES}"], DOC) + kernel_begin(KNAME) + body + RODATA + descriptor(KNAME, nv, 102 if stamp else max(sa.hi, ls.hi))
    errs = haz.check(body)
    for e in errs: print("HAZ", e)
    return s, nv, sa.hi, nh, stn
if __name__ == "__main__":
    out = sys.argv[1]
    kw = {}
    for x in sys.argv[2:]:
        k, v = x.split("=")
        if k in ("warm", "prio", "holdwo", "rot", "rotq", "ilv", "ycoal", "xnt", "xfirst", "pvp"): kw[k] = (v == "1")
        elif k == "nt": kw[k] = (" " + v if v else "")
        else: kw[k] = int(v)
    s, nv, ns, nh, stn = gen(**kw)
    open(out, "w").write(s)
    print("vgprs", nv, "sgprs", ns, "hops", nh, "lds", LDS_BYTES, stn)
```

```python
import sys, struct
sys.path.insert(0, "my")
from ag import *
import haz, hops

import os
WSB = int(os.environ.get('WSB', '0'), 0)
QF = WSB + 0x10000
OF = WSB + 0x80000
OX = WSB + 0x100000
SOFF = 0x200000
ST = 0x400000
WS_BYTES = 268435456
QL = 0
PL = QL + 1280
SL = PL + 1024
OL = SL + 64
FL = 3136
JK = FL + 160
XL = 3840; WQ = XL + 1024; KL = WQ + 16384; VL = KL + 32768
import os
if os.environ.get('ALIAS', '0') == '1':
    WO = WQ; LDS_BYTES = VL + 32768
else:
    WO = VL + 32768; LDS_BYTES = WO + 16384
assert OL + 768 <= FL and JK + 416 <= XL and XL % 256 == 0 and WQ % 256 == 0
F_Q, F_P, F_O, F_GI, F_QI, F_GOK, F_OI, F_YI, F_GO, F_K, F_V, F_W = 0, 16, 32, 48, 64, 80, 96, 112, 128, 132, 136, 140
CSC = 0.08838834764831845 * 1.4426950408889634
def f32(x): return "0x%08x" % struct.unpack("<I", struct.pack("<f", x))[0]
DOC = """;
; Sliding-window GQA decode (q-proj -> attention over the last 1024 keys -> out-proj), one launch.
; Wave 4 = loader: streams wq/x/K/V/wo tiles HBM -> LDS with LDS-DMA (nt), a bounded number in flight.
; Hand-offs between workgroups: 16-byte granules {payload, tag} in d_ws; tag = LCG(epoch word read from d_ws at entry),
; first copy alternates with the second, so the result does not depend on placement.  Step 7 uses sc1 only.
; Intra-workgroup hand-offs use LDS flag words.  The s_cbranch_execz chain (L_hopN) is only walked with EXEC = 0 by
; the idle compute waves at start to pull the code into the instruction cache; it is never taken otherwise.
"""
class V:
    def __init__(s, n=0): s.n = n; s.hi = n
    def __call__(s, cnt=1, align=1):
        s.n = (s.n + align - 1) // align * align
        r = s.n; s.n += cnt; s.hi = max(s.hi, s.n)
        return r
def rng(r, n): return f"v[{r}:{r+n-1}]"
OOB = "0x7ffffff0"

def gen(stamp=False, nt=" nt", hold=0, kx=32, nmid=32, lgo=60, holdwo=False, rot=True, rotq=True, fd=1, shift=0, lshift=0, compact=0, b0e=0, gmin=0, warml=0, fmode=0, pvp=True, lwo=0, fsleep=0, nooi=0, n1p=0, noflush=0, sameS=0, dirty=0, cqx=0, xnt=False, xfirst=False, ilv=True, ycoal=True, wthr=2000, n3=0, n2=0, N=24, spin=100000, nf=64, amp=-1, ampk=10, ampglob=0, ampmin=0, ampj=0, ampw=0, warm=True, pt=1, nparts=4, prio=True, step=2):
    if amp >= 0: stamp = 2 if ampmin else True
    a = A(); va = V(1); sa = V(36)
    l = va(); t0 = va(); t1 = va(); t2 = va(); t3 = va()
    nst = [0]; stn = []
    SB = 74 if (pt == 12 or gmin) else 72
    def ST_(label):
        if stamp and (stamp != 2 or label in ('entry', 'end', 'end2')):
            i = nst[0]; nst[0] += 1; stn.append(label)
            assert i < (14 if (pt == 12 or gmin) else 15)
            a(f"s_memrealtime s[{SB+2*i}:{SB+1+2*i}]")
    W, G, R, B, C = "s3", "s4", "s5", "s6", "s7"
    sT = sa(); sT2 = sa(); sWin = sa()
    ST_("entry")
    if compact:
        a(f"""
s_cmp_ge_u32 s2, 256
s_cbranch_scc1 L_end
s_load_dwordx2 s[20:21], s[0:1], 24
s_load_dwordx2 s[8:9], s[0:1], 0
s_load_dwordx2 s[12:13], s[0:1], 8
""")
        if stamp: a("s_load_dwordx2 s[28:29], s[0:1], 56\ns_load_dwordx2 s[32:33], s[0:1], 40")
    else:
        a(f"""
s_cmp_ge_u32 s2, 256
s_cbranch_scc1 L_end
s_load_dwordx2 s[20:21], s[0:1], 24
s_load_dwordx2 s[8:9], s[0:1], 0
s_load_dwordx2 s[12:13], s[0:1], 8
s_load_dwordx2 s[28:29], s[0:1], 56
s_load_dwordx2 s[16:17], s[0:1], 16
s_load_dwordx2 s[24:25], s[0:1], 32
s_load_dwordx2 s[32:33], s[0:1], 40
""")
    a(f"""
v_lshrrev_b32 v{t0}, 6, v0
v_and_b32 v{l}, 63, v0
s_and_b32 {G}, s2, 7
v_readfirstlane_b32 {W}, v{t0}
s_lshr_b32 {R}, s2, 3
s_lshr_b32 {B}, {R}, 3
s_and_b32 {C}, {R}, 7
s_mov_b32 s23, 0x20000
v_lshrrev_b32 v{t0}, 4, v{l}
v_and_b32 v{t1}, 15, v{l}
""")
    if stamp: a(f"s_mov_b32 s31, s23\ns_mov_b32 s30, {WS_BYTES}\ns_mov_b32 s35, s23\ns_movk_i32 s34, 0x1000")
    a(f"""
s_cmp_lt_u32 {W}, 4
s_cbranch_scc1 L_compute
""")
    for _ in range(lshift // 4): a("s_nop 0")
    lv = V(va.n); ls = V(sa.n)
    vWQ = lv(2); vX = lv(); vK = lv(4); vV = lv(2); vWO = lv(2); vLF = lv(); vOne = lv()
    sWQ = ls(); sX = ls(); sK = ls(); sWO = ls(); lT = ls(); sWQb0 = ls()
    sRho = ls(); sJ = ls(); sC1 = ls(); sC2 = ls(); sR = ls(); sM = ls()
    if prio: a("s_setprio 2")
    if compact:
        assert kx == 32 and n1p == 24 and b0e and ilv and rot
        a(f"""
s_mov_b32 s22, 0x400000
v_and_b32 v{t2}, 7, v{l}
v_lshlrev_b32 v{t3}, 1, v{t0}
v_and_b32 v{vX}, 2, v{t3}
v_xor_b32 v{t2}, v{t2}, v{vX}
v_lshlrev_b32 v{t2}, 4, v{t2}
v_lshrrev_b32 v{vX}, 3, v{l}
v_lshl_add_u32 v{vWQ}, v{vX}, 13, v{t2}
v_xor_b32 v{vWQ+1}, 64, v{vWQ}
s_lshl_b32 s{sWQb0}, {G}, 3
s_add_u32 s{sWQb0}, s{sWQb0}, {C}
s_lshl_b32 s{sWQb0}, s{sWQb0}, 7
s_lshl_b32 s{lT}, {B}, 20
s_add_u32 s{sWQb0}, s{sWQb0}, s{lT}
s_mov_b32 s{sC1}, 64512
s_mov_b32 s{sC2}, 0xc0000
s_lshl_b32 s{sR}, {B}, 18
s_mov_b32 s{sM}, s{sR}
s_add_u32 s{sWQ}, s{sWQb0}, s{sR}
s_lshr_b32 s{lT}, s{sR}, 6
s_add_u32 m0, s{lT}, {WQ}
s_waitcnt lgkmcnt(0)
L_lwq:
buffer_load_dwordx4 v{vWQ}, s[20:23], s{sWQ} offen{nt} lds
s_add_u32 s{sWQ}, s{sWQ}, s{sC1}
buffer_load_dwordx4 v{vWQ+1}, s[20:23], s{sWQ} offen offset:1024{nt} lds
s_add_u32 s{sWQ}, s{sWQ}, s{sC1}
buffer_load_dwordx4 v{vWQ}, s[20:23], s{sWQ} offen offset:2048{nt} lds
s_add_u32 s{sWQ}, s{sWQ}, s{sC1}
buffer_load_dwordx4 v{vWQ+1}, s[20:23], s{sWQ} offen offset:3072{nt} lds
s_add_u32 s{sR}, s{sR}, 0x40000
s_and_b32 s{sR}, s{sR}, s{sC2}
s_add_u32 s{sWQ}, s{sWQb0}, s{sR}
s_lshr_b32 s{lT}, s{sR}, 6
s_add_u32 m0, s{lT}, {WQ}
s_cmp_lg_u32 s{sR}, s{sM}
s_cbranch_scc1 L_lwq
s_mov_b32 s11, s23
s_movk_i32 s10, 0x1000
v_lshlrev_b32 v{t2}, 2, v{t0}
v_xor_b32 v{t2}, v{t1}, v{t2}
v_lshlrev_b32 v{t2}, 4, v{t2}
v_lshl_add_u32 v{vX}, v{t0}, 10, v{t2}
s_lshl_b32 s{sX}, {B}, 8
s_movk_i32 m0, {XL}
s_load_dwordx2 s[16:17], s[0:1], 16
buffer_load_dwordx4 v{vX}, s[8:11], s{sX} offen lds
s_load_dwordx2 s[24:25], s[0:1], 32
""")
        ST_("L: wq issued")
        a(f"""
s_mov_b32 s15, s23
s_mov_b32 s14, 0x2000000
v_xor_b32 v{t2}, v{t1}, v{t0}
v_lshlrev_b32 v{t2}, 4, v{t2}
v_lshl_add_u32 v{vK}, v{t0}, 8, v{t2}
v_xor_b32 v{vK+1}, 64, v{vK}
v_xor_b32 v{vK+2}, 0x80, v{vK}
v_xor_b32 v{vK+3}, 0xc0, v{vK}
s_lshl_b32 s{sWin}, {B}, 3
s_add_u32 s{sWin}, s{sWin}, {G}
s_lshl_b32 s{sWin}, s{sWin}, 5
s_add_u32 s{sWin}, s{sWin}, 24
s_lshl_b32 s{sWin}, s{sWin}, 3
s_add_u32 s{sWin}, s{sWin}, {C}
s_lshl_b32 s{sWin}, s{sWin}, 12
s_lshl_b32 s{sRho}, {B}, 1
s_add_u32 s{sRho}, s{sRho}, {G}
s_and_b32 s{sRho}, s{sRho}, 7
s_lshl_b32 s{sRho}, s{sRho}, 12
s_lshl_b32 s{sR}, s{sRho}, 3
s_mov_b32 s{sM}, 0x38000
s_movk_i32 m0, {KL}
L_lk:
s_add_u32 s{sK}, s{sWin}, s{sR}
s_waitcnt vmcnt({n1p - 1})
buffer_load_dwordx4 v{vK}, s[12:15], s{sK} offen{nt} lds
s_waitcnt vmcnt({n1p - 1})
buffer_load_dwordx4 v{vK+1}, s[12:15], s{sK} offen offset:1024{nt} lds
s_waitcnt vmcnt({n1p - 1})
buffer_load_dwordx4 v{vK+2}, s[12:15], s{sK} offen offset:2048{nt} lds
s_waitcnt vmcnt({n1p - 1})
buffer_load_dwordx4 v{vK+3}, s[12:15], s{sK} offen offset:3072{nt} lds
s_add_u32 s{sR}, s{sR}, 0x8000
s_and_b32 s{sR}, s{sR}, s{sM}
s_addk_i32 m0, 0x1000
s_cmp_lg_u32 m0, {KL + 6*4096}
s_cbranch_scc1 L_lk1
s_waitcnt vmcnt({n1p - 1})
s_barrier
L_lk1:
s_cmp_lg_u32 m0, {KL + 8*4096}
s_cbranch_scc1 L_lk
v_lshlrev_b32 v{t2}, 2, v{l}
v_add_u32 v{t2}, {JK}, v{t2}
v_cmp_eq_u32 vcc, 0, v{l}
v_mov_b32 v{vLF}, {FL}
v_mov_b32 v{vOne}, 1
v_cndmask_b32 v{vLF}, v{t2}, v{vLF}, vcc
""")
    else:
        a(f"""
s_mov_b32 s22, 0x400000
v_and_b32 v{t2}, 7, v{l}
v_lshlrev_b32 v{t3}, 1, v{t0}
v_and_b32 v{vX}, 2, v{t3}
v_xor_b32 v{t2}, v{t2}, v{vX}
v_lshlrev_b32 v{t2}, 4, v{t2}
v_lshrrev_b32 v{vX}, 3, v{l}
v_lshl_add_u32 v{vWQ}, v{vX}, 13, v{t2}
v_xor_b32 v{vWQ+1}, 64, v{vWQ}
s_lshl_b32 s{sWQb0}, {G}, 3
s_xor_b32 s{lT}, {C}, {cqx}
s_add_u32 s{sWQb0}, s{sWQb0}, s{lT}
s_lshl_b32 s{sWQb0}, s{sWQb0}, 7
s_lshl_b32 s{lT}, {B}, 20
s_add_u32 s{sWQb0}, s{sWQb0}, s{lT}
s_mov_b32 s11, s23
s_movk_i32 s10, 0x1000
s_mov_b32 s15, s23
s_mov_b32 s14, 0x2000000
; x voffset: (l>>4)*1024 + ((l&15) ^ (4*(l>>4)))*16
v_lshlrev_b32 v{t2}, 2, v{t0}
v_xor_b32 v{t2}, v{t1}, v{t2}
v_lshlrev_b32 v{t2}, 4, v{t2}
v_lshl_add_u32 v{vX}, v{t0}, 10, v{t2}
s_lshl_b32 s{sX}, {B}, 8
""")
    seq = []
    sWQb = sWQb0
    for i in range(16):
        pre = []
        if i % 4 == 0:
            j_ = i // 4
            if rotq:
                pre += [f"s_add_u32 s{sJ}, {B}, {j_}", f"s_and_b32 s{sJ}, s{sJ}, 3", f"s_lshl_b32 s{lT}, s{sJ}, 18", f"s_add_u32 s{sWQ}, s{sWQb}, s{lT}",
                        f"s_lshl_b32 s{lT}, s{sJ}, 12", f"s_add_u32 m0, s{lT}, {WQ}"]
            else:
                pre += [f"s_add_u32 s{sWQ}, s{sWQb}, {j_ << 18}", f"s_mov_b32 m0, {WQ + j_*4096}"]
            pre.append("s_nop 0")
        else:
            pre.append(f"s_add_u32 s{sWQ}, s{sWQ}, {65536 - 1024}")
        seq.append((pre, f"buffer_load_dwordx4 v{vWQ + (i & 1)}, s[20:23], s{sWQ} offen offset:{(i%4)*1024}{nt} lds"))
    seq.append(([f"s_movk_i32 m0, {XL}", "s_nop 0"], f"buffer_load_dwordx4 v{vX}, s[8:11], s{sX} offen{' nt' if xnt else ''} lds"))
    if xfirst: seq.insert(0, seq.pop())
    kpre = f"""; K voffsets: (l>>4)*256 + ((l&15)^(l>>4))*16  ^ (64*i)
v_xor_b32 v{t2}, v{t1}, v{t0}
v_lshlrev_b32 v{t2}, 4, v{t2}
v_lshl_add_u32 v{vK}, v{t0}, 8, v{t2}
v_xor_b32 v{vK+1}, 64, v{vK}
v_xor_b32 v{vK+2}, 0x80, v{vK}
v_xor_b32 v{vK+3}, 0xc0, v{vK}
; flag address vgpr: lane0 -> FL, else JK + 4*l
v_lshlrev_b32 v{t2}, 2, v{l}
v_add_u32 v{t2}, {JK}, v{t2}
v_cmp_eq_u32 vcc, 0, v{l}
v_mov_b32 v{vLF}, {FL}
v_mov_b32 v{vOne}, 1
v_cndmask_b32 v{vLF}, v{t2}, v{vLF}, vcc
; window base = (b*8+g)<<20 + 3072*256 + c*(32768 or 4096)
s_lshl_b32 s{sWin}, {B}, 3
s_add_u32 s{sWin}, s{sWin}, {G}
s_lshl_b32 s{sWin}, s{sWin}, 5
s_add_u32 s{sWin}, s{sWin}, 24
s_lshl_b32 s{sWin}, s{sWin}, 15
s_lshl_b32 s{sJ}, {C}, {12 if ilv else 15}
s_add_u32 s{sWin}, s{sWin}, s{sJ}
; rho*4096 : rho = (g + 2b) & 7
s_lshl_b32 s{sRho}, {B}, 1
s_add_u32 s{sRho}, s{sRho}, {G}
s_and_b32 s{sRho}, s{sRho}, {7 if rot else 0}
s_lshl_b32 s{sRho}, s{sRho}, 12""".split("\n")
    def grp(j_, ldsbase):
        if ilv:
            return [f"s_add_u32 s{sJ}, s{sRho}, {j_*4096}", f"s_and_b32 s{sJ}, s{sJ}, 0x7fff", f"s_mov_b32 m0, {ldsbase + j_*4096}", f"s_lshl_b32 s{sJ}, s{sJ}, 3", f"s_add_u32 s{sK}, s{sWin}, s{sJ}"]
        return [f"s_add_u32 s{sJ}, s{sRho}, {j_*4096}", f"s_and_b32 s{sJ}, s{sJ}, 0x7fff", f"s_add_u32 m0, s{sJ}, {ldsbase}", f"s_add_u32 s{sK}, s{sWin}, s{sJ}"]
    for i in range(32):
        pre = list(kpre) if i == 0 else []
        if i % 4 == 0: pre += grp(i // 4, KL)
        seq.append((pre, f"buffer_load_dwordx4 v{vK+i%4}, s[12:15], s{sK} offen offset:{(i%4)*1024}{nt} lds"))
    vpre = f"""s_mov_b32 s19, s23
s_mov_b32 s18, s14
; V voffset: (l>>4)*256 + ((l&15) ^ ((l>>4)<<1))*16 ; odd: ^128 ; WO: (l>>4)*1024 + same piece
v_xor_b32 v{t2}, v{t1}, v{t3}
v_lshlrev_b32 v{t2}, 4, v{t2}
v_lshl_add_u32 v{vV}, v{t0}, 8, v{t2}
v_xor_b32 v{vV+1}, 0x80, v{vV}
v_lshl_add_u32 v{vWO}, v{t0}, 10, v{t2}
v_xor_b32 v{vWO+1}, 0x80, v{vWO}
s_mov_b32 s27, s23
s_mov_b32 s26, s22
; WO soff = p<<16 + cg*256 ; p = g*8 + r/4 ; cg = r&3
s_lshr_b32 s{lT}, {R}, 2
s_lshl_b32 s{sWO}, {G}, 3
s_add_u32 s{sWO}, s{sWO}, s{lT}
s_lshl_b32 s{sWO}, s{sWO}, 8
s_and_b32 s{lT}, {R}, 3
s_add_u32 s{sWO}, s{sWO}, s{lT}
s_lshl_b32 s{sWO}, s{sWO}, 8""".split("\n")
    for i in range(32):
        pre = list(vpre) if i == 0 else []
        if i % 4 == 0: pre += grp(i // 4, VL)
        seq.append((pre, f"buffer_load_dwordx4 v{vV+(i&1)}, s[16:19], s{sK} offen offset:{(i%4)*1024}{nt} lds"))
    for i in range(16):
        pre = []
        if i == 0: pre += [f"s_mov_b32 m0, {WO}", "s_nop 0"]
        elif i % 4 == 0: pre.append("s_add_u32 m0, m0, 4096")
        if i: pre.append(f"s_add_u32 s{sWO}, s{sWO}, {4096 - 1024 if i % 4 else 4096 + 3072}")
        seq.append((pre, f"buffer_load_dwordx4 v{vWO+((i>>1)&1)}, s[24:27], s{sWO} offen offset:{(i%4)*1024}{nt} lds"))
    T = len(seq); assert T == 97
    def emit(k):
        pre, ld = seq[k]
        for p in pre: a(p)
        a(ld)
    n0 = 17 + kx
    b0done = False
    if compact:
        b0done = True
    else:
        for p in seq[0][0]: a(p)
        a("s_waitcnt lgkmcnt(0)")
        a(seq[0][1])
        for k in range(1, 17): emit(k)
        ST_("L: wq issued")
        if warml == 2: a("; LWARM_START")
        pre17, ld17 = seq[17]
        for p in pre17: a(p)
        if kx > 0:
            if hold: a(f"s_waitcnt vmcnt({17 - hold})")
            a(ld17)
            for k in range(18, n0):
                if n1p and k >= n1p: a(f"s_waitcnt vmcnt({n1p - 1})")
                if b0e and n1p and not b0done and k - (n1p - 1) >= 17:
                    a("s_barrier"); b0done = True
                emit(k)
        else:
            seq[17] = ([], ld17)
    ST_("L: K issued")
    if warml == 1: a("; LWARM_START")
    lfl = lv(4, 4)
    a(f"v_mov_b32 v{t2}, {FL}")
    if not (b0e and kx > 0 and b0done): a(f"s_waitcnt vmcnt({n0 - 17})\ns_barrier")
    ST_("L: wq landed")
    def lwait(name, off):
        a(f"""L_{name}:
ds_read_b128 v[{lfl}:{lfl+3}], v{t2} offset:{off}
s_waitcnt lgkmcnt(0)
v_and_b32 v{lfl}, v{lfl}, v{lfl+1}
v_and_b32 v{lfl+2}, v{lfl+2}, v{lfl+3}
v_and_b32 v{lfl}, v{lfl}, v{lfl+2}
v_cmp_eq_u32 vcc, 0, v{lfl}
s_cbranch_vccnz L_{name}""")
    vFA = lv()
    a(f"v_mov_b32 v{vFA}, {FL}")
    def lwait(name, off):
        a(f"""L_{name}:
ds_read_b128 v[{lfl}:{lfl+3}], v{vFA} offset:{off}
s_waitcnt lgkmcnt(0)
v_and_b32 v{lfl}, v{lfl}, v{lfl+1}
v_and_b32 v{lfl+2}, v{lfl+2}, v{lfl+3}
v_and_b32 v{lfl}, v{lfl}, v{lfl+2}
v_cmp_eq_u32 vcc, 0, v{lfl}
s_cbranch_vccnz L_{name}""")
    lwait("qi", F_QI)
    n1 = 49 + nmid
    for k in range(n0, n1):
        if n2: a(f"s_waitcnt vmcnt({n2 - 1})")
        emit(k)
    assert lgo <= n1 and n1 <= T
    a(f"s_waitcnt vmcnt({n1 - lgo})")
    a(f"ds_write_b32 v{vLF}, v{vOne} offset:{F_GO}")
    lwait("gi", F_GI)
    for k in range(n1, T):
        if k == 81 and holdwo: lwait("gok", F_GOK)
        if k == 81 and lwo: a(f"s_waitcnt vmcnt({81 - lwo})")
        if n3: a(f"s_waitcnt vmcnt({n3 - 1})")
        emit(k)
    if lgo < 49: a(f"s_waitcnt vmcnt({T - 49})\nds_write_b32 v{vLF}, v{vOne} offset:{F_K}")
    F_V1 = F_GOK
    tailev = ([(49 + nmid, F_V1)] if pvp else []) + [(81, F_V), (97, F_W)]
    for cnt, f in tailev:
        a(f"s_waitcnt vmcnt({T - cnt})\nds_write_b32 v{vLF}, v{vOne} offset:{f}")
    ST_("L: all landed")
    if warml: a("; LWARM_END")
    if stamp: a("s_branch L_fin")
    else: a("s_endpgm")
    for _ in range(shift // 4): a("s_nop 0")
    a("L_compute:")
    if compact:
        if not stamp: a("s_load_dwordx2 s[28:29], s[0:1], 56\ns_load_dwordx2 s[32:33], s[0:1], 40")
    g = va(); n16 = va(); n4 = va()
    sQB = sa(); sOB = sa(); sEp = sa(); sTag = sa(); vPT = va()
    a(f"""
s_mov_b32 s31, s23
s_mov_b32 s30, {WS_BYTES}
s_mov_b32 s35, s23
s_movk_i32 s34, 0x1000
s_lshl_b32 s{sQB}, {G}, 4
s_add_u32 s{sQB}, s{sQB}, {B}
s_lshl_b32 s{sQB}, s{sQB}, 11
s_xor_b32 s{sT}, {C}, {cqx}
s_lshl_b32 s{sT}, s{sT}, 8
s_add_u32 s{sQB}, s{sQB}, s{sT}
s_add_u32 s{sQB}, s{sQB}, {QF}
s_lshl_b32 s{sOB}, {B}, 3
s_add_u32 s{sOB}, s{sOB}, {G}
s_lshl_b32 s{sOB}, s{sOB}, 5
s_add_u32 s{sOB}, s{sOB}, {C}
s_lshl_b32 s{sOB}, s{sOB}, 9
s_add_u32 s{sOB}, s{sOB}, {OF}
""")
    vPTa = va()
    if pt in (1, 3, 7):
        a(f"""
s_mul_i32 s{sT}, {W}, 6
v_add_u32 v{t3}, s{sT}, v{l}
v_lshrrev_b32 v{t0}, 1, v{t3}
v_lshlrev_b32 v{t0}, 13, v{t0}
v_and_b32 v{t1}, 1, v{t3}
v_lshl_or_b32 v{t0}, v{t1}, 7, v{t0}
v_add_u32 v{t0}, s{sQB}, v{t0}
v_subrev_u32 v{t1}, 8, v{t3}
v_lshrrev_b32 v{t2}, 2, v{t1}
v_lshlrev_b32 v{t2}, 12, v{t2}
v_and_b32 v{t1}, 3, v{t1}
v_lshl_or_b32 v{t2}, v{t1}, 7, v{t2}
v_add_u32 v{t2}, s{sOB}, v{t2}
v_cmp_gt_u32 vcc, 8, v{t3}
v_mov_b32 v{t3}, {OOB}
s_nop 0
v_cndmask_b32 v{t0}, v{t2}, v{t0}, vcc
v_cmp_gt_u32 vcc, 6, v{l}
s_mov_b32 s{sT}, {WSB}
s_waitcnt lgkmcnt(0)
s_load_dword s{sEp}, s[28:29], s{sT}
v_cndmask_b32 v{vPTa}, v{t3}, v{t0}, vcc
""")
        if pt != 7: a(f"buffer_load_dword v{vPT}, v{vPTa}, s[28:31], 0 offen{' nt' if pt == 3 else ''}")
    else:
        a(f"s_mov_b32 s{sT}, {WSB}\ns_waitcnt lgkmcnt(0)\ns_load_dword s{sEp}, s[28:29], s{sT}" if WSB else f"s_waitcnt lgkmcnt(0)\ns_load_dword s{sEp}, s[28:29], 0")
        if pt in (10, 11, 12):
            sD = sa(); sO1 = sa(); sO2 = sa()
            a(f"s_lshl_b32 s{sT}, {W}, 13\ns_add_u32 s{sO1}, s{sQB}, s{sT}\ns_lshl_b32 s{sT}, {W}, 12\ns_add_u32 s{sO2}, s{sOB}, s{sT}")
            stp = 128 if pt == 11 else 64
            ypt = [f"s_load_dword s{sD}, s[28:29], s{sO1} offset:{o}" for o in range(0, 256, stp)] + [f"s_load_dword s{sD}, s[28:29], s{sO2} offset:{o}" for o in range(0, 512, stp)]
            if pt == 12:
                sO3 = sT2
                sO3 = sa()
                a(f"""s_and_b32 s{sO3}, {R}, 3
s_lshl_b32 s{sO3}, s{sO3}, 6
s_lshl_b32 s{sT}, {G}, 3
s_add_u32 s{sO3}, s{sO3}, s{sT}
s_lshr_b32 s{sT}, {R}, 2
s_add_u32 s{sO3}, s{sO3}, s{sT}
s_lshl_b32 s{sO3}, s{sO3}, 2
s_add_u32 s{sO3}, s{sO3}, {W}
s_lshl_b32 s{sO3}, s{sO3}, 9
s_add_u32 s{sO3}, s{sO3}, {OX + SOFF}""")
                ypt += [f"s_load_dword s{sD}, s[28:29], s{sO3} offset:{o}" for o in range(0, 512, 64)]
        if pt in (8, 9):
            sD = sa(); sO1 = sa()
            a(f"s_lshl_b32 s{sT}, {W}, 13\ns_add_u32 s{sO1}, s{sQB}, s{sT}")
            for o in range(0, 256, 64): a(f"s_load_dword s{sD}, s[28:29], s{sO1} offset:{o}")
            a(f"s_lshl_b32 s{sT}, {W}, 12\ns_add_u32 s{sO1}, s{sOB}, s{sT}")
            for o in range(0, 512, 64): a(f"s_load_dword s{sD}, s[28:29], s{sO1} offset:{o}")
            if pt == 9:
                a(f"""s_and_b32 s{sO1}, {R}, 3
s_lshl_b32 s{sO1}, s{sO1}, 6
s_lshl_b32 s{sT}, {G}, 3
s_add_u32 s{sO1}, s{sO1}, s{sT}
s_lshr_b32 s{sT}, {R}, 2
s_add_u32 s{sO1}, s{sO1}, s{sT}
s_lshl_b32 s{sO1}, s{sO1}, 2
s_add_u32 s{sO1}, s{sO1}, {W}
s_lshl_b32 s{sO1}, s{sO1}, 9
s_add_u32 s{sO1}, s{sO1}, {OX + SOFF}""")
                ypt = [f"s_load_dword s{sD}, s[28:29], s{sO1} offset:{o}" for o in range(0, 512, 64)]
        if pt in (2, 4, 6):
            a(f"""
s_lshl_b32 s{sT}, {W}, 12
s_add_u32 s{sT}, s{sT}, s{sOB}
v_lshlrev_b32 v{t0}, 7, v{l}
v_add_u32 v{t0}, s{sT}, v{t0}
v_cmp_gt_u32 vcc, 4, v{l}
v_mov_b32 v{t3}, {OOB}
s_nop 0
v_cndmask_b32 v{vPTa}, v{t3}, v{t0}, vcc
""")
    if warm:
        a("s_mov_b64 exec, 0")
        for p in range(1, nparts):
            a(f"s_cmp_eq_u32 {W}, {p}\ns_cbranch_scc1 HOP_P{p}")
        a("s_branch HOP_P0\nL_warm_done:\ns_mov_b64 exec, -1")
    a("; WARM_START")
    sP = sa(); sCG = sa(); sR4 = sa()
    vXr = va(4); vWQr = va(); vKr = va(4); vVr = va(2); vWOr = va(2)
    vQst = va(); vG = va(); sG = sa(); vQLw = va(); vQLr = va()
    vPw = va(); vPr = va(); vSw = va(); vSr = va()
    vOst = va(); vOG = va(); sOG = sa(); vOLw = va(); vOLr = va()
    vYst = va(); sYst = sa(); vFG = va(); sFG = sa(); vOut = va()
    vFw = va(); vFr = va(); vOne_c = va()
    sCsc = sa(); sP0 = sa(); sP1 = sa(); sP2 = sa(); sU0 = sa(); sU1 = sa(); sM4 = sa(2, 2); sG1 = sa(2, 2); sCnt = sa()
    a(f"""
v_lshrrev_b32 v{g}, 4, v{l}
v_and_b32 v{n16}, 15, v{l}
v_and_b32 v{n4}, 3, v{l}
v_lshlrev_b32 v{t2}, 2, v{l}
v_mov_b32 v{t3}, 0
ds_write_b32 v{t2}, v{t3} offset:{FL}
v_add_u32 v{t2}, {JK}, v{t2}
s_lshl_b32 s{sT}, {W}, 2
s_add_u32 s{sT}, s{sT}, {FL}
v_mov_b32 v{vFw}, s{sT}
v_cmp_eq_u32 vcc, 0, v{l}
v_mov_b32 v{vFr}, {FL}
v_mov_b32 v{vOne_c}, 1
v_cndmask_b32 v{vFw}, v{t2}, v{vFw}, vcc
; p = g*8 + r/4 ; cg = r&3
s_lshr_b32 s{sR4}, {R}, 2
s_lshl_b32 s{sP}, {G}, 3
s_add_u32 s{sP}, s{sP}, s{sR4}
s_and_b32 s{sCG}, {R}, 3
v_lshlrev_b32 v{t2}, 2, v{n4}
v_xor_b32 v{t2}, v{g}, v{t2}
v_lshlrev_b32 v{t2}, 4, v{t2}
v_lshl_add_u32 v{t2}, v{n4}, 8, v{t2}
v_add_u32 v{vXr}, {XL}, v{t2}
v_xor_b32 v{vXr+1}, 64, v{vXr}
v_xor_b32 v{vXr+2}, 0x80, v{vXr}
v_xor_b32 v{vXr+3}, 0xc0, v{vXr}
v_bfe_u32 v{t0}, v{l}, 2, 2
v_lshl_add_u32 v{t2}, v{g}, 3, v{t0}
v_lshlrev_b32 v{t2}, 7, v{t2}
v_lshl_add_u32 v{t2}, v{n4}, 3, v{t2}
v_lshrrev_b32 v{t3}, 1, v{t0}
v_and_b32 v{t1}, 1, v{g}
v_lshl_or_b32 v{t3}, v{t1}, 1, v{t3}
v_xor_b32 v{t3}, {W}, v{t3}
v_lshl_add_u32 v{t2}, v{t3}, 5, v{t2}
v_add_u32 v{vWQr}, {WQ}, v{t2}
s_lshl_b32 s{sT}, {W}, 13
s_add_u32 s{sT}, s{sT}, {KL}
v_xor_b32 v{t2}, v{g}, v{n16}
v_lshlrev_b32 v{t2}, 4, v{t2}
v_lshl_add_u32 v{t2}, v{n16}, 8, v{t2}
v_add_u32 v{vKr}, s{sT}, v{t2}
v_xor_b32 v{vKr+1}, 64, v{vKr}
v_xor_b32 v{vKr+2}, 0x80, v{vKr}
v_xor_b32 v{vKr+3}, 0xc0, v{vKr}
v_lshl_add_u32 v{t2}, v{g}, 2, v{t0}
v_lshlrev_b32 v{t2}, 8, v{t2}
v_lshl_add_u32 v{t2}, v{n4}, 3, v{t2}
v_lshl_or_b32 v{t3}, v{t1}, 2, v{t0}
s_lshl_b32 s{sT}, {W}, 1
v_xor_b32 v{t3}, s{sT}, v{t3}
v_lshl_add_u32 v{t2}, v{t3}, 5, v{t2}
v_add_u32 v{vVr}, {VL}, v{t2}
v_xor_b32 v{vVr+1}, 32, v{vVr}
v_lshl_add_u32 v{t2}, v{g}, 3, v{t0}
v_lshlrev_b32 v{t2}, 8, v{t2}
v_lshl_add_u32 v{t2}, v{n4}, 3, v{t2}
v_lshl_add_u32 v{t2}, v{t3}, 5, v{t2}
v_add_u32 v{vWOr}, {WO}, v{t2}
v_xor_b32 v{vWOr+1}, 32, v{vWOr}
v_cmp_gt_u32 vcc, 4, v{n16}
v_mov_b32 v{t3}, {OOB}
s_lshl_b32 s{sT}, {W}, 6
v_lshlrev_b32 v{t2}, 4, v{g}
v_add_u32 v{t0}, s{sT}, v{t2}
v_lshl_add_u32 v{t0}, v{n16}, 13, v{t0}
v_cndmask_b32 v{vQst}, v{t3}, v{t0}, vcc
s_lshl_b32 s{sT}, {W}, 7
v_add_u32 v{t2}, s{sT}, v{t2}
v_lshl_add_u32 v{t0}, v{n16}, 12, v{t2}
v_cndmask_b32 v{vOst}, v{t3}, v{t0}, vcc
v_lshl_add_u32 v{t0}, v{n16}, 9, v{t2}
v_cndmask_b32 v{vYst}, v{t3}, v{t0}, vcc
YCOAL_ADDR
v_lshrrev_b32 v{t0}, 5, v{l}
v_and_b32 v{t1}, 31, v{l}
v_lshlrev_b32 v{t2}, 4, v{t1}
v_lshl_add_u32 v{vG}, v{t0}, 12, v{t2}
s_lshl_b32 s{sG}, {G}, 2
s_add_u32 s{sG}, s{sG}, {B}
s_lshl_b32 s{sG}, s{sG}, 4
s_add_u32 s{sG}, s{sG}, {W}
s_lshl_b32 s{sG}, s{sG}, 9
s_add_u32 s{sG}, s{sG}, {QF}
s_mul_i32 s{sT}, {W}, 320
v_lshlrev_b32 v{t2}, 3, v{t1}
v_lshl_add_u32 v{t2}, v{t0}, 2, v{t2}
v_add_u32 v{vQLw}, s{sT}, v{t2}
v_mul_u32_u24 v{t2}, 320, v{n4}
v_lshl_add_u32 v{vQLr}, v{g}, 4, v{t2}
v_lshlrev_b32 v{t2}, 6, v{n4}
v_lshl_add_u32 v{vPr}, v{g}, 4, v{t2}
s_lshl_b32 s{sT}, {W}, 8
v_add_u32 v{vPw}, s{sT}, v{vPr}
v_lshlrev_b32 v{vSr}, 4, v{n4}
s_lshl_b32 s{sT}, {W}, 2
v_add_u32 v{vSw}, s{sT}, v{vSr}
v_lshlrev_b32 v{t2}, 9, v{g}
v_lshl_add_u32 v{vOG}, v{n16}, 4, v{t2}
s_lshl_b32 s{sOG}, {W}, 3
s_add_u32 s{sOG}, s{sOG}, {G}
s_lshl_b32 s{sOG}, s{sOG}, 2
s_add_u32 s{sOG}, s{sOG}, {B}
s_lshl_b32 s{sOG}, s{sOG}, 4
s_and_b32 s{sT}, s{sR4}, 1
s_add_u32 s{sOG}, s{sOG}, s{sT}
s_lshl_b32 s{sOG}, s{sOG}, 8
s_add_u32 s{sOG}, s{sOG}, {OF}
s_mul_i32 s{sT}, {W}, 192
v_lshlrev_b32 v{t2}, 3, v{n16}
v_lshl_add_u32 v{t2}, v{g}, 1, v{t2}
v_add_u32 v{vOLw}, s{sT}, v{t2}
v_mul_u32_u24 v{t2}, 192, v{n4}
v_lshl_add_u32 v{vOLr}, v{g}, 4, v{t2}
s_lshl_b32 s{sYst}, s{sCG}, 6
s_add_u32 s{sYst}, s{sYst}, s{sP}
s_lshl_b32 s{sYst}, s{sYst}, 11
s_add_u32 s{sYst}, s{sYst}, {OX + SOFF}
v_lshrrev_b32 v{t0}, 1, v{l}
v_and_b32 v{t1}, 1, v{l}
v_lshlrev_b32 v{t2}, 4, v{t1}
v_lshl_add_u32 v{vFG}, v{t0}, 11, v{t2}
s_lshl_b32 s{sFG}, s{sCG}, 12
s_add_u32 s{sFG}, s{sFG}, s{sP}
s_lshl_b32 s{sFG}, s{sFG}, 5
s_add_u32 s{sFG}, s{sFG}, {OX + SOFF}
YCOAL_OUT
v_cmp_gt_u32 vcc, 2, v{n16}
s_mov_b32 s{sCsc}, {f32(CSC)}
s_mov_b32 s{sP0}, 0x07060503
v_cndmask_b32 v{vOut}, v{t3}, v{t2}, vcc
s_mov_b32 s{sP1}, 0x07060502
s_mov_b32 s{sP2}, 0x07060501
s_mov_b32 s{sU0}, 0x04000c0c
s_mov_b32 s{sU1}, 0x0706000c
s_mov_b32 s{sM4}, 0x000f000f
s_mov_b32 s{sM4+1}, 0x000f000f
s_waitcnt lgkmcnt(0)
s_mul_i32 s{sTag}, s{sEp}, 1664525
s_add_u32 s{sTag}, s{sTag}, 1013904223
""")
    ya = f"""; coalesced y store: lanes < 32: w*512 + l*16
s_lshl_b32 s{sT}, {W}, 9
v_lshlrev_b32 v{t0}, 4, v{l}
v_add_u32 v{t0}, s{sT}, v{t0}
v_cmp_gt_u32 s[{sM4}:{sM4+1}], 32, v{l}
v_cmp_eq_u32 s[{sG1}:{sG1+1}], 1, v{g}
s_nop 0
v_cndmask_b32 v{vYst}, v{t3}, v{t0}, s[{sM4}:{sM4+1}]""" if ycoal else ""
    yo = (f"""; out voffset: g*1024 + (cg*128 + 2p' + (l&1))*2 for lanes n16<2 ; p' = p (0..63)
s_lshl_b32 s{sT}, s{sCG}, 6
s_add_u32 s{sT}, s{sT}, s{sP}
s_lshl_b32 s{sT}, s{sT}, 2
v_lshlrev_b32 v{t2}, 1, v{t1}
v_lshl_add_u32 v{t2}, v{g}, 10, v{t2}
v_add_u32 v{t2}, s{sT}, v{t2}""" if ycoal else f"""s_lshr_b32 s{sT}, s{sP}, 4
s_lshl_b32 s{sT}, s{sT}, 2
s_add_u32 s{sT}, s{sT}, s{sCG}
s_lshl_b32 s{sT}, s{sT}, 4
s_and_b32 s{sT2}, s{sP}, 15
s_add_u32 s{sT}, s{sT}, s{sT2}
s_lshl_b32 s{sT}, s{sT}, 4
v_lshlrev_b32 v{t2}, 3, v{t1}
v_lshl_add_u32 v{t2}, v{g}, 1, v{t2}
v_add_u32 v{t2}, s{sT}, v{t2}""")
    newL = []
    for ln in a.L:
        if "YCOAL_ADDR" in ln: newL += ["    " + x for x in ya.split("\n") if x]
        elif "YCOAL_OUT" in ln: newL += ["    " + x for x in yo.split("\n")]
        else: newL.append(ln)
    a.L = newL
    A32 = va(32, 4); B16 = va(16, 4); C32 = va(32, 4); E8 = va(8, 4); F8 = va(8, 4)
    ones = va(4, 4); fl = va(4, 4); fl1 = va(); QS4 = va(4, 4); OS8 = va(8, 4); sQS = sa(); sOS = sa(); sWcN = sa.n
    a(f"""
v_mov_b32 v{ones}, 0x3f803f80
v_mov_b32 v{ones+1}, 0x3f803f80
v_mov_b32 v{ones+2}, 0x3f803f80
v_mov_b32 v{ones+3}, 0x3f803f80
v_mov_b32 v{QS4+3}, s{sTag}
v_mov_b32 v{OS8+3}, s{sTag}
v_mov_b32 v{OS8+7}, s{sTag}
v_mov_b32 v{E8+3}, s{sTag}
v_mov_b32 v{E8+7}, s{sTag}
s_add_u32 s{sQS}, s{sQB}, {0 if sameS in (1, 2) else SOFF}
s_add_u32 s{sOS}, s{sOB}, {0 if sameS in (1, 3) else SOFF}
s_mov_b32 s{sCnt}, {spin}
s_movk_i32 s{sWcN}, {wthr}
""")
    if pt == 7: a(f"buffer_load_dword v{vPT}, v{vPTa}, s[28:31], 0 offen")
    lab = [0]
    def setflag(off): a(f"ds_write_b32 v{vFw}, v{vOne_c} offset:{off}")
    colder = []
    sWc = sa()
    stage = {"flush": []}
    def waitflags(group=None, single=None):
        lab[0] += 1; L = f"L_wf{lab[0]}"
        a(f"{L}:")
        if group is not None: a(f"ds_read_b128 {rng(fl,4)}, v{vFr} offset:{group}")
        if single is not None: a(f"ds_read_b32 v{fl1}, v{vFr} offset:{single}")
        a("s_waitcnt lgkmcnt(0)")
        if group is not None:
            a(f"v_min3_u32 v{fl}, v{fl}, v{fl+1}, v{fl+2}")
            if single is not None: a(f"v_min3_u32 v{fl}, v{fl}, v{fl+3}, v{fl1}")
            else: a(f"v_min_u32 v{fl}, v{fl}, v{fl+3}")
            r = fl
        else: r = fl1
        a(f"v_cmp_eq_u32 vcc, 0, v{r}\ns_cbranch_vccz {L}d\ns_sub_u32 s{sWc}, s{sWc}, 1\ns_cbranch_scc0 {L}\ns_branch {L}f\n{L}d:")
        colder.append([f"{L}f:"] + list(stage["flush"]) + [f"s_movk_i32 s{sWc}, {wthr}", f"s_branch {L}"])
    QFL = [f"buffer_store_dwordx4 {rng(QS4,4)}, v{vQst}, s[28:31], s{sQS} offen sc1"]
    OFL = [f"buffer_store_dwordx4 {rng(OS8,4)}, v{vOst}, s[28:31], s{sOS} offen sc1", f"buffer_store_dwordx4 {rng(OS8+4,4)}, v{vOst}, s[28:31], s{sOS} offen offset:64 sc1"]
    assert sWc == sWcN
    xb = A32; wa = A32 + 16; acc = C32
    a("s_waitcnt lgkmcnt(0)\ns_barrier")
    for s in range(4):
        a(f"ds_read_b128 {rng(xb+4*s,4)}, v{vXr+s}")
        a(f"ds_read_b64_tr_b16 {rng(wa+4*s,2)}, v{vWQr} offset:{s*4096}")
        a(f"ds_read_b64_tr_b16 {rng(wa+4*s+2,2)}, v{vWQr} offset:{s*4096 + 512}")
    for s in range(4):
        a(f"s_waitcnt lgkmcnt({3*(3-s)})")
        c = "0" if s == 0 else rng(acc,4)
        a(f"v_mfma_f32_16x16x32_bf16 {rng(acc,4)}, {rng(wa+4*s,4)}, {rng(xb+4*s,4)}, {c}")
    a(f"""
s_nop 7
v_perm_b32 v{QS4}, v{acc}, v{acc+3}, s{sP0}
v_perm_b32 v{QS4+1}, v{acc+1}, v{acc+3}, s{sP1}
v_perm_b32 v{QS4+2}, v{acc+2}, v{acc+3}, s{sP2}
buffer_store_dwordx4 {rng(QS4,4)}, v{vQst}, s[28:31], s{sQB} offen
""")
    setflag(F_QI)
    stage["flush"] = QFL
    if pt in (9, 10, 11, 12):
        for x_ in ypt: a(x_)
    if pt in (2, 6): a(f"buffer_load_dword v{vPT}, v{vPTa}, s[28:31], 0 offen" + (" nt" if pt == 2 else ""))
    ST_("q published")
    gq = F8
    if gmin:
        sGm = sa()
        a(f"""s_movk_i32 s{sGm}, {gmin}
L_gom:
ds_read_b32 v{fl1}, v{vFr} offset:{F_GO}
s_waitcnt lgkmcnt(0)
s_sub_u32 s{sGm}, s{sGm}, 1
s_cbranch_scc0 L_gom""")
    waitflags(single=F_GO)
    ST_("GO")
    a(f"buffer_load_dwordx4 {rng(gq,4)}, v{vG}, s[28:31], s{sG} offen sc1")
    a(f"buffer_load_dwordx4 {rng(gq+4,4)}, v{vG}, s[28:31], s{sG} offen offset:2048 sc1")
    if pt == 4: a(f"buffer_load_dword v{vPT}, v{vPTa}, s[28:31], 0 offen nt")
    if pt == 13:
        dum = va(2, 2)
        a(f"buffer_load_dword v{dum}, v{vOG}, s[28:31], s{sOG} offen sc1")
        a(f"buffer_load_dword v{dum+1}, v{vOG}, s[28:31], s{sOG} offen offset:2048 sc1")
    if pt == 14:
        dum = va(2, 2)
        a(f"buffer_load_dword v{dum}, v{vOG}, s[28:31], s{sOG} offen sc1")
        a(f"buffer_load_dword v{dum+1}, v{vOG}, s[28:31], s{sOG} offen offset:2048 sc1")
        dum2 = va(2, 2)
        a(f"s_add_u32 s{sT2}, s{sFG}, 65536")
        a(f"buffer_load_dword v{dum2}, v{vFG}, s[28:31], s{sFG} offen sc1")
        a(f"buffer_load_dword v{dum2+1}, v{vFG}, s[28:31], s{sT2} offen sc1")
    setflag(F_GI)
    ka = A32
    if lgo < 49: waitflags(single=F_K)
    for t in range(2):
        for s_ in range(4):
            a(f"ds_read_b128 {rng(ka+16*t+4*s_,4)}, v{vKr+s_} offset:{t*4096}")
    sa_tmp = sa(2, 2)
    cold = []
    def poll(name, regs, vaddr, soff, first_wait, offs, flush):
        a(f"s_waitcnt vmcnt({first_wait})\nL_{name}chk:")
        for i, r in enumerate(regs):
            if i == 0: a(f"v_cmp_ne_u32 vcc, s{sTag}, v{r+3}")
            else: a(f"v_cmp_ne_u32 s[{sa_tmp}:{sa_tmp+1}], s{sTag}, v{r+3}\ns_or_b64 vcc, vcc, s[{sa_tmp}:{sa_tmp+1}]")
        a(f"s_cbranch_vccnz L_{name}retry\nL_{name}ok:")
        c = [f"L_{name}retry:", f"s_sub_u32 s{sCnt}, s{sCnt}, 1", f"s_cbranch_scc1 L_{name}ok",
             f"s_cmp_gt_u32 s{sCnt}, {spin - nf}", f"s_cbranch_scc1 L_{name}re",
             f"s_cmp_lg_u32 s{sCnt}, {spin - nf}", f"s_cbranch_scc1 L_{name}tg"] + flush + [f"L_{name}tg:"] + ([] if (sameS == 1 or (sameS == 2 and name == "q") or (sameS == 3 and name == "o")) else [f"s_xor_b32 s{soff}, s{soff}, {SOFF}"]) + [f"L_{name}re:"]
        for r, o in zip(regs, offs):
            c.append(f"buffer_load_dwordx4 {rng(r,4)}, v{vaddr}, s[28:31], s{soff} offen offset:{o} sc1")
        c += ["s_waitcnt vmcnt(0)", f"s_branch L_{name}chk"]
        cold.append((name, c))
    poll("q", [gq, gq+4], vG, sG, {4: 1, 13: 2, 14: 4}.get(pt, 0), [0, 2048], QFL)
    if holdwo: setflag(F_GOK)
    ST_("q gathered")
    u = E8; qb = B16
    a(f"""
v_perm_b32 v{u}, v{gq}, v{gq+1}, s{sU0}
v_perm_b32 v{u+1}, v{gq+4}, v{gq+5}, s{sU0}
v_add_f32 v{u+4}, v{gq}, v{gq+4}
v_add_f32 v{u+6}, v{gq+2}, v{gq+6}
v_perm_b32 v{u}, v{u}, v{gq+2}, s{sU1}
v_perm_b32 v{u+1}, v{u+1}, v{gq+6}, s{sU1}
v_add_f32 v{u+5}, v{gq+1}, v{gq+5}
v_add_f32 v{u+7}, v{u}, v{u+1}
v_permlane32_swap_b32 v{u+4}, v{u+6}
s_nop 0
v_permlane32_swap_b32 v{u+5}, v{u+7}
v_add_f32 v{u+4}, v{u+4}, v{u+6}
v_add_f32 v{u+5}, v{u+5}, v{u+7}
v_cvt_pk_bf16_f32 v{u}, v{u+4}, v{u+5}
ds_write_b32 v{vQLw}, v{u} offset:{QL}
""")
    setflag(F_Q)
    waitflags(group=F_Q)
    for s in range(4):
        a(f"ds_read_b128 {rng(qb+4*s,4)}, v{vQLr} offset:{QL + s*64}")
    sc = C32
    for s in range(4):
        a(f"s_waitcnt lgkmcnt({3-s})")
        for t in range(2):
            c = "0" if s == 0 else rng(sc+4*t,4)
            a(f"v_mfma_f32_16x16x32_bf16 {rng(sc+4*t,4)}, {rng(ka+16*t+4*s,4)}, {rng(qb+4*s,4)}, {c}")
    m = va(2, 2); mt = va(); pk = E8
    sC2 = sa(2, 2)
    a(f"""
s_mov_b32 s{sC2}, s{sCsc}
s_mov_b32 s{sC2+1}, s{sCsc}
s_nop 4
v_max3_f32 v{m}, v{sc}, v{sc+1}, v{sc+2}
v_max3_f32 v{mt}, v{sc+3}, v{sc+4}, v{sc+5}
v_max3_f32 v{m}, v{m}, v{sc+6}, v{sc+7}
v_max_f32 v{m}, v{m}, v{mt}
v_mov_b32 v{mt}, v{m}
s_nop 1
v_permlane16_swap_b32 v{m}, v{mt}
v_max_f32 v{m}, v{m}, v{mt}
v_mov_b32 v{mt}, v{m}
s_nop 1
v_permlane32_swap_b32 v{m}, v{mt}
v_max_f32 v{m}, v{m}, v{mt}
v_mul_f32 v{m}, s{sCsc}, v{m}
""")
    for i in range(0, 8, 2):
        a(f"v_pk_fma_f32 v[{sc+i}:{sc+i+1}], v[{sc+i}:{sc+i+1}], s[{sC2}:{sC2+1}], v[{m}:{m+1}] op_sel_hi:[1,1,0] neg_lo:[0,0,1] neg_hi:[0,0,1]")
    a(f"s_mov_b64 exec, s[{sM4}:{sM4+1}]\nds_write_b32 v{vSw}, v{m} offset:{SL}\ns_mov_b64 exec, -1")
    for i in range(8):
        a(f"v_exp_f32 v{sc+i}, v{sc+i}")
        if i == 2: a(f"v_cvt_pk_bf16_f32 v{pk}, v{sc}, v{sc+1}")
        if i == 4: a(f"v_cvt_pk_bf16_f32 v{pk+1}, v{sc+2}, v{sc+3}")
        if i == 6: a(f"v_cvt_pk_bf16_f32 v{pk+2}, v{sc+4}, v{sc+5}")
    a(f"""
s_mov_b64 exec, s[{sM4}:{sM4+1}]
v_cvt_pk_bf16_f32 v{pk+3}, v{sc+6}, v{sc+7}
ds_write_b128 v{vPw}, {rng(pk,4)} offset:{PL}
s_mov_b64 exec, -1
""")
    setflag(F_P)
    a(f"s_mov_b32 s{sCnt}, {spin}")
    waitflags(group=F_P)
    ST_("P written")
    pb = B16; sv = F8; vaop = A32; D = C32
    lk = va(16, 4)
    M = va(); ff = va(4, 2); L = va(); Rr = va(); lse = va()
    a(f"ds_read_b128 {rng(sv,4)}, v{vSr} offset:{SL}")
    for ks in range(4):
        a(f"ds_read_b128 {rng(pb+4*ks,4)}, v{vPr} offset:{PL + ks*256}")
    a(f"ds_read_b32 v{fl1}, v{vFr} offset:{F_V}")
    a(f"""
s_waitcnt lgkmcnt(5)
v_max3_f32 v{M}, v{sv}, v{sv+1}, v{sv+2}
v_max_f32 v{M}, v{M}, v{sv+3}
v_sub_f32 v{ff}, v{sv}, v{M}
v_sub_f32 v{ff+1}, v{sv+1}, v{M}
v_sub_f32 v{ff+2}, v{sv+2}, v{M}
v_sub_f32 v{ff+3}, v{sv+3}, v{M}
""")
    for ks in range(4):
        a(f"s_waitcnt lgkmcnt({4-ks})")
        a(f"v_mfma_f32_16x16x32_bf16 {rng(lk+4*ks,4)}, {rng(ones,4)}, {rng(pb+4*ks,4)}, 0")
        a(f"v_exp_f32 v{ff+ks}, v{ff+ks}")
    def vread(ks):
        for tp in range(2):
            for e in range(2):
                a(f"ds_read_b64_tr_b16 {rng(vaop+8*ks+4*tp+2*e,2)}, v{vVr+tp} offset:{ks*8192 + e*4096}")
    def pv(ks):
        for tp in range(2):
            a(f"v_mfma_f32_16x16x32_bf16 {rng(D+8*ks+4*tp,4)}, {rng(vaop+8*ks+4*tp,4)}, {rng(pb+4*ks,4)}, 0")
    stats2 = f"""v_mul_f32 v{L}, v{ff}, v{lk}
v_fmac_f32 v{L}, v{ff+1}, v{lk+4}
v_fmac_f32 v{L}, v{ff+2}, v{lk+8}
v_fmac_f32 v{L}, v{ff+3}, v{lk+12}
v_rcp_f32 v{Rr}, v{L}
v_log_f32 v{lse}, v{L}
s_nop 0
v_mul_f32 v{ff}, v{ff}, v{Rr}
v_mul_f32 v{ff+1}, v{ff+1}, v{Rr}
v_mul_f32 v{ff+2}, v{ff+2}, v{Rr}
v_mul_f32 v{ff+3}, v{ff+3}, v{Rr}
v_add_f32 v{OS8+2}, v{lse}, v{M}
v_add_f32 v{OS8+6}, v{lse}, v{M}"""
    o = F8
    def scale(ks):
        base = ff + (ks & ~1); sel = ks & 1; fr = f"v[{base}:{base+1}]"
        for tp in range(2):
            for h in range(2):
                dst = rng(o+4*tp+2*h, 2); src = rng(D+8*ks+4*tp+2*h, 2)
                if ks == 0: a(f"v_pk_mul_f32 {dst}, {src}, {fr} op_sel:[0,{sel}] op_sel_hi:[1,{sel}]")
                else: a(f"v_pk_fma_f32 {dst}, {src}, {fr}, {dst} op_sel:[0,{sel},0] op_sel_hi:[1,{sel},1]")
    a(f"s_waitcnt lgkmcnt(0)\nv_cmp_ne_u32 vcc, 0, v{fl1}\ns_cbranch_vccnz L_vfast\ns_nop 3")
    if pvp:
        assert nmid == 24
        F_V1 = F_GOK
        waitflags(single=F_V1)
        vread(0); vread(1); vread(2)
        a(stats2)
        a("s_waitcnt lgkmcnt(8)"); pv(0)
        a("s_waitcnt lgkmcnt(4)"); pv(1)
        a("s_waitcnt lgkmcnt(0)"); pv(2)
        a("s_nop 1")
        scale(0); scale(1); scale(2)
        waitflags(single=F_V)
        ST_("V landed")
        vread(3)
        a("s_waitcnt lgkmcnt(0)"); pv(3)
        a("s_nop 7")
        scale(3)
        a("s_branch L_vdone")
    else:
        a(stats2)
        waitflags(single=F_V)
        ST_("V landed")
        vread(0); vread(1); vread(2)
        a("s_branch L_vjoin")
    a("L_vfast:")
    vread(0); vread(1); vread(2)
    a(stats2)
    a("L_vjoin:")
    a("s_waitcnt lgkmcnt(8)"); pv(0); vread(3)
    a("s_waitcnt lgkmcnt(8)"); pv(1)
    a("s_waitcnt lgkmcnt(4)"); pv(2)
    a("s_waitcnt lgkmcnt(0)"); pv(3)
    for ks in range(4): scale(ks)
    a("L_vdone:")
    og = OS8
    a(f"""
v_cvt_pk_bf16_f32 v{og}, v{o}, v{o+1}
v_cvt_pk_bf16_f32 v{og+1}, v{o+2}, v{o+3}
v_cvt_pk_bf16_f32 v{og+4}, v{o+4}, v{o+5}
v_cvt_pk_bf16_f32 v{og+5}, v{o+6}, v{o+7}
buffer_store_dwordx4 {rng(og,4)}, v{vOst}, s[28:31], s{sOB} offen
buffer_store_dwordx4 {rng(og+4,4)}, v{vOst}, s[28:31], s{sOB} offen offset:64
""")
    setflag(F_OI)
    stage["flush"] = QFL + OFL
    ST_("o published")
    gg = B16; wb = A32
    if not nooi: waitflags(group=F_OI)
    if nooi:
        waitflags(single=F_W)
        for s_ in range(2):
            for tp in range(2):
                for hh in range(2):
                    a(f"ds_read_b64_tr_b16 {rng(wb+8*s_+4*tp+2*hh,2)}, v{vWOr+tp} offset:{s_*8192 + hh*1024}")
    a(f"""
buffer_load_dwordx4 {rng(gg,4)}, v{vOG}, s[28:31], s{sOG} offen sc1
buffer_load_dwordx4 {rng(gg+4,4)}, v{vOG}, s[28:31], s{sOG} offen offset:2048 sc1
""")
    if not nooi:
        waitflags(single=F_W)
        for s in range(2):
            for tp in range(2):
                for hh in range(2):
                    a(f"ds_read_b64_tr_b16 {rng(wb+8*s+4*tp+2*hh,2)}, v{vWOr+tp} offset:{s*8192 + hh*1024}")
    poll("o", [gg, gg+4], vOG, sOG, 0, [0, 2048], QFL + OFL)
    ST_("o gathered")
    e0 = va(); e1 = va(); u = A32 + 16; S = va(); oo = A32 + 24
    a(f"""
v_max_f32 v{M}, v{gg+2}, v{gg+6}
v_mov_b32 v{mt}, v{M}
v_lshlrev_b32 v{u}, 16, v{gg}
v_and_b32 v{u+1}, 0xffff0000, v{gg}
v_permlane16_swap_b32 v{M}, v{mt}
v_lshlrev_b32 v{u+2}, 16, v{gg+1}
v_max_f32 v{M}, v{M}, v{mt}
v_mov_b32 v{mt}, v{M}
v_and_b32 v{u+3}, 0xffff0000, v{gg+1}
v_lshlrev_b32 v{u+4}, 16, v{gg+4}
v_permlane32_swap_b32 v{M}, v{mt}
v_and_b32 v{u+5}, 0xffff0000, v{gg+4}
v_max_f32 v{M}, v{M}, v{mt}
v_lshlrev_b32 v{u+6}, 16, v{gg+5}
v_sub_f32 v{e0}, v{gg+2}, v{M}
v_sub_f32 v{e1}, v{gg+6}, v{M}
v_exp_f32 v{e0}, v{e0}
v_exp_f32 v{e1}, v{e1}
v_and_b32 v{u+7}, 0xffff0000, v{gg+5}
v_add_f32 v{S}, v{e0}, v{e1}
v_mul_f32 v{oo}, v{e0}, v{u}
v_mul_f32 v{oo+1}, v{e0}, v{u+1}
v_mov_b32 v{mt}, v{S}
v_mul_f32 v{oo+2}, v{e0}, v{u+2}
v_mul_f32 v{oo+3}, v{e0}, v{u+3}
v_permlane16_swap_b32 v{S}, v{mt}
v_fmac_f32 v{oo}, v{e1}, v{u+4}
v_fmac_f32 v{oo+1}, v{e1}, v{u+5}
v_add_f32 v{S}, v{S}, v{mt}
v_fmac_f32 v{oo+2}, v{e1}, v{u+6}
v_fmac_f32 v{oo+3}, v{e1}, v{u+7}
v_mov_b32 v{mt}, v{S}
v_permlane16_swap_b32 v{oo}, v{oo+1}
s_nop 0
v_permlane16_swap_b32 v{oo+2}, v{oo+3}
v_permlane32_swap_b32 v{S}, v{mt}
v_add_f32 v{oo}, v{oo}, v{oo+1}
v_add_f32 v{oo+2}, v{oo+2}, v{oo+3}
v_add_f32 v{S}, v{S}, v{mt}
s_nop 0
v_permlane32_swap_b32 v{oo}, v{oo+2}
v_rcp_f32 v{S}, v{S}
v_add_f32 v{oo}, v{oo}, v{oo+2}
v_mul_f32 v{oo}, v{oo}, v{S}
v_cvt_pk_bf16_f32 v{oo}, v{oo}, v{oo}
ds_write_b16 v{vOLw}, v{oo} offset:{OL}
""")
    setflag(F_O)
    a(f"s_add_u32 s{sT2}, s{sFG}, 65536\ns_mov_b32 s{sCnt}, {spin}")
    waitflags(group=F_O)
    ob = B16 + 8; y = C32; yg = E8
    a(f"""
ds_read_b128 {rng(ob,4)}, v{vOLr} offset:{OL}
ds_read_b128 {rng(ob+4,4)}, v{vOLr} offset:{OL+64}
""")
    for s in range(2):
        a(f"s_waitcnt lgkmcnt({1-s})")
        for tp in range(2):
            c = "0" if s == 0 else rng(y+4*tp,4)
            if ycoal: a(f"v_mfma_f32_16x16x32_bf16 {rng(y+4*tp,4)}, {rng(ob+4*s,4)}, {rng(wb+8*s+4*tp,4)}, {c}")
            else: a(f"v_mfma_f32_16x16x32_bf16 {rng(y+4*tp,4)}, {rng(wb+8*s+4*tp,4)}, {rng(ob+4*s,4)}, {c}")
    if ycoal:
        a(f"v_mov_b32 v{E8+3}, s{sTag}\ns_nop 6")
        for r in range(4): a(f"v_cndmask_b32 v{y+r}, v{y+r}, v{y+4+r}, s[{sG1}:{sG1+1}]")
        a(f"""v_perm_b32 v{yg}, v{y}, v{y+3}, s{sP0}
v_perm_b32 v{yg+1}, v{y+1}, v{y+3}, s{sP1}
v_perm_b32 v{yg+2}, v{y+2}, v{y+3}, s{sP2}
buffer_store_dwordx4 {rng(yg,4)}, v{vYst}, s[28:31], s{sYst} offen sc1""")
    else:
        a(f"v_mov_b32 v{E8+3}, s{sTag}\nv_mov_b32 v{E8+7}, s{sTag}\ns_nop 4")
        for tp in range(2):
            a(f"""v_perm_b32 v{yg+4*tp}, v{y+4*tp}, v{y+4*tp+3}, s{sP0}
v_perm_b32 v{yg+4*tp+1}, v{y+4*tp+1}, v{y+4*tp+3}, s{sP1}
v_perm_b32 v{yg+4*tp+2}, v{y+4*tp+2}, v{y+4*tp+3}, s{sP2}
buffer_store_dwordx4 {rng(yg+4*tp,4)}, v{vYst}, s[28:31], s{sYst} offen offset:{tp*64} sc1""")
    setflag(F_YI)
    ST_("y published")
    waitflags(group=F_YI)
    if not noflush:
        for x_ in QFL + OFL: a(x_)
    if dirty:
        a(f"s_lshl_b32 s{sT}, s2, 2\ns_add_u32 s{sT}, s{sT}, {W}\ns_mul_i32 s{sT}, s{sT}, {dirty*1024}\ns_add_u32 s{sT}, s{sT}, 0x800000\nv_lshlrev_b32 v{t0}, 4, v{l}")
        for i in range(dirty):
            a(f"buffer_store_dwordx4 {rng(C32,4)}, v{t0}, s[28:31], s{sT} offen\ns_add_u32 s{sT}, s{sT}, 1024")
    z = C32 + 24
    fg = C32 + 16
    FM = {0: ' sc1', 1: ' sc1 nt', 2: ' sc0 sc1', 3: ' sc0 sc1 nt'}[fmode]
    a(f"""s_cmp_lg_u32 {W}, 0
s_cbranch_scc1 L_fin
L_fpoll:
buffer_load_dwordx4 {rng(fg,4)}, v{vFG}, s[28:31], s{sFG} offen{FM}
buffer_load_dwordx4 {rng(fg+4,4)}, v{vFG}, s[28:31], s{sT2} offen{FM}
s_waitcnt vmcnt(0)
v_cmp_ne_u32 vcc, s{sTag}, v{fg+3}
v_cmp_ne_u32 s[{sa_tmp}:{sa_tmp+1}], s{sTag}, v{fg+7}
s_or_b64 vcc, vcc, s[{sa_tmp}:{sa_tmp+1}]
s_cbranch_vccz L_fok
{('s_sleep ' + str(fsleep)) if fsleep else 's_nop 0'}
s_sub_u32 s{sCnt}, s{sCnt}, 1
s_cbranch_scc0 L_fpoll
L_fok:""")
    ST_("final gathered")
    a(f"""
v_perm_b32 v{z+3}, v{fg}, v{fg+1}, s{sU0}
v_perm_b32 v{z+7}, v{fg+4}, v{fg+5}, s{sU0}
v_add_f32 v{z}, v{fg}, v{fg+4}
v_perm_b32 v{z+3}, v{z+3}, v{fg+2}, s{sU1}
v_perm_b32 v{z+7}, v{z+7}, v{fg+6}, s{sU1}
v_add_f32 v{z+1}, v{fg+1}, v{fg+5}
v_add_f32 v{z+2}, v{fg+2}, v{fg+6}
v_add_f32 v{z+3}, v{z+3}, v{z+7}
""")
    for ctl in ("quad_perm:[2,3,0,1]", "row_ror:4", "row_ror:8"):
        for r in range(4):
            a(f"v_add_f32_dpp v{z+r}, v{z+r}, v{z+r} {ctl} row_mask:0xf bank_mask:0xf")
    a(f"""
s_nop 0
v_permlane16_swap_b32 v{z}, v{z+1}
v_permlane16_swap_b32 v{z+2}, v{z+3}
s_nop 0
v_add_f32 v{z}, v{z}, v{z+1}
v_add_f32 v{z+2}, v{z+2}, v{z+3}
s_nop 1
v_permlane32_swap_b32 v{z}, v{z+2}
s_nop 0
v_add_f32 v{z}, v{z}, v{z+2}
v_cvt_pk_bf16_f32 v{z}, v{z}, v{z}
buffer_store_short v{z}, v{vOut}, s[32:35], 0 offen
s_cmp_lg_u32 s2, 0
s_cbranch_scc1 L_fin
v_mov_b32 v{t0}, s{sTag}
v_mov_b32 v{t1}, {WSB}
s_mov_b64 exec, 1
buffer_store_dword v{t0}, v{t1}, s[28:31], 0 offen sc1
s_mov_b64 exec, -1
L_fin:
""")
    a("s_branch L_tail" if stamp else "s_endpgm")
    for name, c in cold:
        for x_ in c: a(x_)
    a("; WARM_END")
    for c in colder:
        for x_ in c: a(x_)
    a("L_tail:")
    if stamp:
        a(f"s_mov_b32 s31, 0x20000\ns_mov_b32 s30, {WS_BYTES}")
    if amp >= 0:
        ST_("end")
        e = nst[0] - 1
        a(f"""
s_waitcnt lgkmcnt(0)
s_cmp_lg_u32 {W}, {ampw}
s_cbranch_scc1 L_end
""")
        if ampglob:
            a(f"""
s_lshl_b32 s37, s2, 3
s_add_u32 s37, s37, {ST}
v_mov_b32 v{C32}, s{SB}
v_mov_b32 v{C32+1}, s{sTag}
v_mov_b32 v{t1}, 0
s_mov_b64 exec, 1
buffer_store_dwordx2 v[{C32}:{C32+1}], v{t1}, s[28:31], s37 offen sc1
s_mov_b64 exec, -1
""")
        a(f"""
s_cmp_lg_u32 s2, 0
s_cbranch_scc1 L_end
""")
        OP, OPD, SOP = ('v_add_u32', 'v_add_u32_dpp', 's_add_i32') if ampglob == 2 else ('v_min_i32', 'v_min_i32_dpp', 's_min_i32')
        SHR = 's_ashr_i32 s36, s36, 8' if ampglob == 2 else 's_nop 0'
        if ampglob:
            a(f"""
s_mov_b32 s37, {ST}
v_lshlrev_b32 v{t1}, 5, v{l}
L_ag:
buffer_load_dwordx4 v[{C32}:{C32+3}], v{t1}, s[28:31], s37 offen sc1
buffer_load_dwordx4 v[{C32+4}:{C32+7}], v{t1}, s[28:31], s37 offen offset:16 sc1
s_waitcnt vmcnt(0)
v_cmp_ne_u32 vcc, s{sTag}, v{C32+1}
v_cmp_ne_u32 s[40:41], s{sTag}, v{C32+3}
s_or_b64 vcc, vcc, s[40:41]
v_cmp_ne_u32 s[40:41], s{sTag}, v{C32+5}
s_or_b64 vcc, vcc, s[40:41]
v_cmp_ne_u32 s[40:41], s{sTag}, v{C32+7}
s_or_b64 vcc, vcc, s[40:41]
s_cbranch_vccnz L_ag
v_subrev_u32 v{C32}, s{SB}, v{C32}
v_subrev_u32 v{C32+2}, s{SB}, v{C32+2}
v_subrev_u32 v{C32+4}, s{SB}, v{C32+4}
v_subrev_u32 v{C32+6}, s{SB}, v{C32+6}
{OP} v{C32}, v{C32}, v{C32+2}
{OP} v{C32+4}, v{C32+4}, v{C32+6}
{OP} v{C32}, v{C32}, v{C32+4}
s_nop 1
{OPD} v{C32}, v{C32}, v{C32} row_ror:1 row_mask:0xf bank_mask:0xf
s_nop 1
{OPD} v{C32}, v{C32}, v{C32} row_ror:2 row_mask:0xf bank_mask:0xf
s_nop 1
{OPD} v{C32}, v{C32}, v{C32} row_ror:4 row_mask:0xf bank_mask:0xf
s_nop 1
{OPD} v{C32}, v{C32}, v{C32} row_ror:8 row_mask:0xf bank_mask:0xf
s_nop 1
v_readlane_b32 s36, v{C32}, 0
v_readlane_b32 s37, v{C32}, 16
v_readlane_b32 s38, v{C32}, 32
v_readlane_b32 s39, v{C32}, 48
s_nop 3
{SOP} s36, s36, s37
{SOP} s38, s38, s39
{SOP} s36, s36, s38
{SHR}
s_sub_u32 s37, s{SB+2*amp}, s{SB}
s_sub_u32 s37, s37, s36
s_memrealtime s[40:41]
s_waitcnt lgkmcnt(0)
s_mul_i32 s37, s37, {ampk}
s_add_u32 s37, s37, s40
""")
        else:
            a(f"""
s_sub_u32 s37, s{SB+2*amp}, s{SB+2*ampj}
s_mul_i32 s37, s37, {ampk}
s_add_u32 s37, s37, s{SB+2*e}
""")
        a(f"""
L_amp:
s_memrealtime s[40:41]
s_waitcnt lgkmcnt(0)
s_cmp_lt_u32 s40, s37
s_cbranch_scc1 L_amp
""")
    elif stamp:
        ST_("end")
        if stamp == 2:
            a("s_waitcnt vmcnt(0)")
            ST_("end2")
        n = nst[0]
        a(f"""
s_waitcnt lgkmcnt(0) vmcnt(0)
s_mul_i32 s4, s2, 8
s_add_u32 s4, s4, s3
s_lshl_b32 s4, s4, 6
s_add_u32 s4, s4, {ST}
v_mov_b32 v{t1}, 0
s_mov_b64 exec, 1
""")
        for i in range(n):
            a(f"v_mov_b32 v{t0}, s{SB+2*i}\nbuffer_store_dword v{t0}, v{t1}, s[28:31], s4 offen offset:{4*i}\ns_nop 0")
    a("L_end:\ns_endpgm")
    lines = a.L
    nh = 0
    if warm:
        if warml: lines, nh, have = hops.insert_multi(lines, nparts, [("; LWARM_START", "; LWARM_END"), ("; WARM_START", "; WARM_END")])
        else: lines, nh, have = hops.insert(lines, nparts)
        assert have == nparts, (have, nparts)
    body = "\n".join(lines) + "\n"
    assert (not stamp) or (sa.hi <= SB and ls.hi <= SB), (sa.hi, ls.hi)
    nv = max(va.hi, lv.hi)
    s = header([f"; @launch grid=(256,1,1) block=(320,1,1) lds={LDS_BYTES}"], DOC) + kernel_begin(KNAME) + body + RODATA + descriptor(KNAME, nv, 102 if stamp else max(sa.hi, ls.hi))
    errs = haz.check(body)
    for e in errs: print("HAZ", e)
    return s, nv, sa.hi, nh, stn
if __name__ == "__main__":
    out = sys.argv[1]
    kw = {}
    for x in sys.argv[2:]:
        k, v = x.split("=")
        if k in ("warm", "prio", "holdwo", "rot", "rotq", "ilv", "ycoal", "xnt", "xfirst", "pvp"): kw[k] = (v == "1")
        elif k == "nt": kw[k] = (" " + v if v else "")
        else: kw[k] = int(v)
    s, nv, ns, nh, stn = gen(**kw)
    open(out, "w").write(s)
    print("vgprs", nv, "sgprs", ns, "hops", nh, "lds", LDS_BYTES, stn)
```

```python
import sys, struct
sys.path.insert(0, "my")
from ag import *
import haz, hops

import os
WSB = int(os.environ.get('WSB', '0'), 0)
QF = WSB + 0x10000
OF = WSB + 0x80000
OX = WSB + 0x100000
SOFF = 0x200000
ST = 0x400000
WS_BYTES = 268435456
QL = 0
PL = QL + 1280
SL = PL + 1024
OL = SL + 64
FL = 3136
JK = FL + 160
XL = 3840; WQ = XL + 1024; KL = WQ + 16384; VL = KL + 32768
import os
if os.environ.get('ALIAS', '0') == '1':
    WO = WQ; LDS_BYTES = VL + 32768
else:
    WO = VL + 32768; LDS_BYTES = WO + 16384
assert OL + 768 <= FL and JK + 416 <= XL and XL % 256 == 0 and WQ % 256 == 0
F_Q, F_P, F_O, F_GI, F_QI, F_GOK, F_OI, F_YI, F_GO, F_K, F_V, F_W = 0, 16, 32, 48, 64, 80, 96, 112, 128, 132, 136, 140
CSC = 0.08838834764831845 * 1.4426950408889634
def f32(x): return "0x%08x" % struct.unpack("<I", struct.pack("<f", x))[0]
DOC = """;
; Sliding-window GQA decode (q-proj -> attention over the last 1024 keys -> out-proj), one launch.
; Wave 4 = loader: streams wq/x/K/V/wo tiles HBM -> LDS with LDS-DMA (nt), a bounded number in flight.
; Hand-offs between workgroups: 16-byte granules {payload, tag} in d_ws; tag = LCG(epoch word read from d_ws at entry),
; first copy alternates with the second, so the result does not depend on placement.  Step 7 uses sc1 only.
; Intra-workgroup hand-offs use LDS flag words.  The s_cbranch_execz chain (L_hopN) is only walked with EXEC = 0 by
; the idle compute waves at start to pull the code into the instruction cache; it is never taken otherwise.
"""
class V:
    def __init__(s, n=0): s.n = n; s.hi = n
    def __call__(s, cnt=1, align=1):
        s.n = (s.n + align - 1) // align * align
        r = s.n; s.n += cnt; s.hi = max(s.hi, s.n)
        return r
def rng(r, n): return f"v[{r}:{r+n-1}]"
OOB = "0x7ffffff0"

def gen(stamp=False, nt=" nt", hold=0, kx=32, nmid=32, lgo=60, holdwo=False, rot=True, rotq=True, fd=1, rot1k=0, shift=0, lshift=0, compact=0, b0e=0, gmin=0, warml=0, fmode=0, pvp=True, lwo=0, fsleep=0, nooi=0, n1p=0, noflush=0, sameS=0, dirty=0, cqx=0, xnt=False, xfirst=False, ilv=True, ycoal=True, wthr=2000, n3=0, n2=0, N=24, spin=100000, nf=64, amp=-1, ampk=10, ampglob=0, ampmin=0, ampj=0, ampw=0, warm=True, pt=1, nparts=4, prio=True, step=2):
    if amp >= 0: stamp = 2 if ampmin else True
    a = A(); va = V(1); sa = V(36)
    l = va(); t0 = va(); t1 = va(); t2 = va(); t3 = va()
    nst = [0]; stn = []
    SB = 74 if (pt == 12 or gmin) else 72
    def ST_(label):
        if stamp and (stamp != 2 or label in ('entry', 'end', 'end2')):
            i = nst[0]; nst[0] += 1; stn.append(label)
            assert i < (14 if (pt == 12 or gmin) else 15)
            a(f"s_memrealtime s[{SB+2*i}:{SB+1+2*i}]")
    W, G, R, B, C = "s3", "s4", "s5", "s6", "s7"
    sT = sa(); sT2 = sa(); sWin = sa()
    ST_("entry")
    if compact:
        a(f"""
s_cmp_ge_u32 s2, 256
s_cbranch_scc1 L_end
s_load_dwordx2 s[20:21], s[0:1], 24
s_load_dwordx2 s[8:9], s[0:1], 0
s_load_dwordx2 s[12:13], s[0:1], 8
""")
        if stamp: a("s_load_dwordx2 s[28:29], s[0:1], 56\ns_load_dwordx2 s[32:33], s[0:1], 40")
    else:
        a(f"""
s_cmp_ge_u32 s2, 256
s_cbranch_scc1 L_end
s_load_dwordx2 s[20:21], s[0:1], 24
s_load_dwordx2 s[8:9], s[0:1], 0
s_load_dwordx2 s[12:13], s[0:1], 8
s_load_dwordx2 s[28:29], s[0:1], 56
s_load_dwordx2 s[16:17], s[0:1], 16
s_load_dwordx2 s[24:25], s[0:1], 32
s_load_dwordx2 s[32:33], s[0:1], 40
""")
    a(f"""
v_lshrrev_b32 v{t0}, 6, v0
v_and_b32 v{l}, 63, v0
s_and_b32 {G}, s2, 7
v_readfirstlane_b32 {W}, v{t0}
s_lshr_b32 {R}, s2, 3
s_lshr_b32 {B}, {R}, 3
s_and_b32 {C}, {R}, 7
s_mov_b32 s23, 0x20000
v_lshrrev_b32 v{t0}, 4, v{l}
v_and_b32 v{t1}, 15, v{l}
""")
    if stamp: a(f"s_mov_b32 s31, s23\ns_mov_b32 s30, {WS_BYTES}\ns_mov_b32 s35, s23\ns_movk_i32 s34, 0x1000")
    a(f"""
s_cmp_lt_u32 {W}, 4
s_cbranch_scc1 L_compute
""")
    for _ in range(lshift // 4): a("s_nop 0")
    lv = V(va.n); ls = V(sa.n)
    vWQ = lv(2); vX = lv(); vK = lv(4); vV = lv(2); vWO = lv(2); vLF = lv(); vOne = lv()
    sWQ = ls(); sX = ls(); sK = ls(); sWO = ls(); lT = ls(); sWQb0 = ls()
    sRho = ls(); sJ = ls(); sC1 = ls(); sC2 = ls(); sR = ls(); sM = ls()
    if prio: a("s_setprio 2")
    if compact:
        assert kx == 32 and n1p == 24 and b0e and ilv and rot
        a(f"""
s_mov_b32 s22, 0x400000
v_and_b32 v{t2}, 7, v{l}
v_lshlrev_b32 v{t3}, 1, v{t0}
v_and_b32 v{vX}, 2, v{t3}
v_xor_b32 v{t2}, v{t2}, v{vX}
v_lshlrev_b32 v{t2}, 4, v{t2}
v_lshrrev_b32 v{vX}, 3, v{l}
v_lshl_add_u32 v{vWQ}, v{vX}, 13, v{t2}
v_xor_b32 v{vWQ+1}, 64, v{vWQ}
s_lshl_b32 s{sWQb0}, {G}, 3
s_add_u32 s{sWQb0}, s{sWQb0}, {C}
s_lshl_b32 s{sWQb0}, s{sWQb0}, 7
s_lshl_b32 s{lT}, {B}, 20
s_add_u32 s{sWQb0}, s{sWQb0}, s{lT}
s_mov_b32 s{sC1}, 64512
s_mov_b32 s{sC2}, 0xc0000
s_lshl_b32 s{sR}, {B}, 18
s_mov_b32 s{sM}, s{sR}
s_add_u32 s{sWQ}, s{sWQb0}, s{sR}
s_lshr_b32 s{lT}, s{sR}, 6
s_add_u32 m0, s{lT}, {WQ}
s_waitcnt lgkmcnt(0)
L_lwq:
buffer_load_dwordx4 v{vWQ}, s[20:23], s{sWQ} offen{nt} lds
s_add_u32 s{sWQ}, s{sWQ}, s{sC1}
buffer_load_dwordx4 v{vWQ+1}, s[20:23], s{sWQ} offen offset:1024{nt} lds
s_add_u32 s{sWQ}, s{sWQ}, s{sC1}
buffer_load_dwordx4 v{vWQ}, s[20:23], s{sWQ} offen offset:2048{nt} lds
s_add_u32 s{sWQ}, s{sWQ}, s{sC1}
buffer_load_dwordx4 v{vWQ+1}, s[20:23], s{sWQ} offen offset:3072{nt} lds
s_add_u32 s{sR}, s{sR}, 0x40000
s_and_b32 s{sR}, s{sR}, s{sC2}
s_add_u32 s{sWQ}, s{sWQb0}, s{sR}
s_lshr_b32 s{lT}, s{sR}, 6
s_add_u32 m0, s{lT}, {WQ}
s_cmp_lg_u32 s{sR}, s{sM}
s_cbranch_scc1 L_lwq
s_mov_b32 s11, s23
s_movk_i32 s10, 0x1000
v_lshlrev_b32 v{t2}, 2, v{t0}
v_xor_b32 v{t2}, v{t1}, v{t2}
v_lshlrev_b32 v{t2}, 4, v{t2}
v_lshl_add_u32 v{vX}, v{t0}, 10, v{t2}
s_lshl_b32 s{sX}, {B}, 8
s_movk_i32 m0, {XL}
s_load_dwordx2 s[16:17], s[0:1], 16
buffer_load_dwordx4 v{vX}, s[8:11], s{sX} offen lds
s_load_dwordx2 s[24:25], s[0:1], 32
""")
        ST_("L: wq issued")
        a(f"""
s_mov_b32 s15, s23
s_mov_b32 s14, 0x2000000
v_xor_b32 v{t2}, v{t1}, v{t0}
v_lshlrev_b32 v{t2}, 4, v{t2}
v_lshl_add_u32 v{vK}, v{t0}, 8, v{t2}
v_xor_b32 v{vK+1}, 64, v{vK}
v_xor_b32 v{vK+2}, 0x80, v{vK}
v_xor_b32 v{vK+3}, 0xc0, v{vK}
s_lshl_b32 s{sWin}, {B}, 3
s_add_u32 s{sWin}, s{sWin}, {G}
s_lshl_b32 s{sWin}, s{sWin}, 5
s_add_u32 s{sWin}, s{sWin}, 24
s_lshl_b32 s{sWin}, s{sWin}, 3
s_add_u32 s{sWin}, s{sWin}, {C}
s_lshl_b32 s{sWin}, s{sWin}, 12
s_lshl_b32 s{sRho}, {B}, 1
s_add_u32 s{sRho}, s{sRho}, {G}
s_and_b32 s{sRho}, s{sRho}, 7
s_lshl_b32 s{sRho}, s{sRho}, 12
s_lshl_b32 s{sR}, s{sRho}, 3
s_mov_b32 s{sM}, 0x38000
s_movk_i32 m0, {KL}
L_lk:
s_add_u32 s{sK}, s{sWin}, s{sR}
s_waitcnt vmcnt({n1p - 1})
buffer_load_dwordx4 v{vK}, s[12:15], s{sK} offen{nt} lds
s_waitcnt vmcnt({n1p - 1})
buffer_load_dwordx4 v{vK+1}, s[12:15], s{sK} offen offset:1024{nt} lds
s_waitcnt vmcnt({n1p - 1})
buffer_load_dwordx4 v{vK+2}, s[12:15], s{sK} offen offset:2048{nt} lds
s_waitcnt vmcnt({n1p - 1})
buffer_load_dwordx4 v{vK+3}, s[12:15], s{sK} offen offset:3072{nt} lds
s_add_u32 s{sR}, s{sR}, 0x8000
s_and_b32 s{sR}, s{sR}, s{sM}
s_addk_i32 m0, 0x1000
s_cmp_lg_u32 m0, {KL + 6*4096}
s_cbranch_scc1 L_lk1
s_waitcnt vmcnt({n1p - 1})
s_barrier
L_lk1:
s_cmp_lg_u32 m0, {KL + 8*4096}
s_cbranch_scc1 L_lk
v_lshlrev_b32 v{t2}, 2, v{l}
v_add_u32 v{t2}, {JK}, v{t2}
v_cmp_eq_u32 vcc, 0, v{l}
v_mov_b32 v{vLF}, {FL}
v_mov_b32 v{vOne}, 1
v_cndmask_b32 v{vLF}, v{t2}, v{vLF}, vcc
""")
    else:
        a(f"""
s_mov_b32 s22, 0x400000
v_and_b32 v{t2}, 7, v{l}
v_lshlrev_b32 v{t3}, 1, v{t0}
v_and_b32 v{vX}, 2, v{t3}
v_xor_b32 v{t2}, v{t2}, v{vX}
v_lshlrev_b32 v{t2}, 4, v{t2}
v_lshrrev_b32 v{vX}, 3, v{l}
v_lshl_add_u32 v{vWQ}, v{vX}, 13, v{t2}
v_xor_b32 v{vWQ+1}, 64, v{vWQ}
s_lshl_b32 s{sWQb0}, {G}, 3
s_xor_b32 s{lT}, {C}, {cqx}
s_add_u32 s{sWQb0}, s{sWQb0}, s{lT}
s_lshl_b32 s{sWQb0}, s{sWQb0}, 7
s_lshl_b32 s{lT}, {B}, 20
s_add_u32 s{sWQb0}, s{sWQb0}, s{lT}
s_mov_b32 s11, s23
s_movk_i32 s10, 0x1000
s_mov_b32 s15, s23
s_mov_b32 s14, 0x2000000
; x voffset: (l>>4)*1024 + ((l&15) ^ (4*(l>>4)))*16
v_lshlrev_b32 v{t2}, 2, v{t0}
v_xor_b32 v{t2}, v{t1}, v{t2}
v_lshlrev_b32 v{t2}, 4, v{t2}
v_lshl_add_u32 v{vX}, v{t0}, 10, v{t2}
s_lshl_b32 s{sX}, {B}, 8
""")
    seq = []
    sWQb = sWQb0
    for i in range(16):
        pre = []
        if i % 4 == 0:
            j_ = i // 4
            if rotq:
                pre += [f"s_add_u32 s{sJ}, {B}, {j_}", f"s_and_b32 s{sJ}, s{sJ}, 3", f"s_lshl_b32 s{lT}, s{sJ}, 18", f"s_add_u32 s{sWQ}, s{sWQb}, s{lT}",
                        f"s_lshl_b32 s{lT}, s{sJ}, 12", f"s_add_u32 m0, s{lT}, {WQ}"]
            else:
                pre += [f"s_add_u32 s{sWQ}, s{sWQb}, {j_ << 18}", f"s_mov_b32 m0, {WQ + j_*4096}"]
            pre.append("s_nop 0")
        else:
            pre.append(f"s_add_u32 s{sWQ}, s{sWQ}, {65536 - 1024}")
        seq.append((pre, f"buffer_load_dwordx4 v{vWQ + (i & 1)}, s[20:23], s{sWQ} offen offset:{(i%4)*1024}{nt} lds"))
    seq.append(([f"s_movk_i32 m0, {XL}", "s_nop 0"], f"buffer_load_dwordx4 v{vX}, s[8:11], s{sX} offen{' nt' if xnt else ''} lds"))
    if xfirst: seq.insert(0, seq.pop())
    kpre = f"""; K voffsets: (l>>4)*256 + ((l&15)^(l>>4))*16  ^ (64*i)
v_xor_b32 v{t2}, v{t1}, v{t0}
v_lshlrev_b32 v{t2}, 4, v{t2}
v_lshl_add_u32 v{vK}, v{t0}, 8, v{t2}
v_xor_b32 v{vK+1}, 64, v{vK}
v_xor_b32 v{vK+2}, 0x80, v{vK}
v_xor_b32 v{vK+3}, 0xc0, v{vK}
; flag address vgpr: lane0 -> FL, else JK + 4*l
v_lshlrev_b32 v{t2}, 2, v{l}
v_add_u32 v{t2}, {JK}, v{t2}
v_cmp_eq_u32 vcc, 0, v{l}
v_mov_b32 v{vLF}, {FL}
v_mov_b32 v{vOne}, 1
v_cndmask_b32 v{vLF}, v{t2}, v{vLF}, vcc
; window base = (b*8+g)<<20 + 3072*256 + c*(32768 or 4096)
s_lshl_b32 s{sWin}, {B}, 3
s_add_u32 s{sWin}, s{sWin}, {G}
s_lshl_b32 s{sWin}, s{sWin}, 5
s_add_u32 s{sWin}, s{sWin}, 24
s_lshl_b32 s{sWin}, s{sWin}, 15
s_lshl_b32 s{sJ}, {C}, {12 if ilv else 15}
s_add_u32 s{sWin}, s{sWin}, s{sJ}
; rho*4096 : rho = (g + 2b) & 7   (rot1k: rho1*1024, rho1 = (b*8 + g)*M & 31)
s_lshl_b32 s{sRho}, {B}, {3 if rot1k else 1}
s_add_u32 s{sRho}, s{sRho}, {G}
s_mul_i32 s{sRho}, s{sRho}, {rot1k if rot1k else 1}
s_and_b32 s{sRho}, s{sRho}, {(31 if rot1k else 7) if rot else 0}
s_lshl_b32 s{sRho}, s{sRho}, {10 if rot1k else 12}""".split("\n")
    def grp(j_, ldsbase):
        if ilv:
            return [f"s_add_u32 s{sJ}, s{sRho}, {j_*4096}", f"s_and_b32 s{sJ}, s{sJ}, 0x7fff", f"s_mov_b32 m0, {ldsbase + j_*4096}", f"s_lshl_b32 s{sJ}, s{sJ}, 3", f"s_add_u32 s{sK}, s{sWin}, s{sJ}"]
        return [f"s_add_u32 s{sJ}, s{sRho}, {j_*4096}", f"s_and_b32 s{sJ}, s{sJ}, 0x7fff", f"s_add_u32 m0, s{sJ}, {ldsbase}", f"s_add_u32 s{sK}, s{sWin}, s{sJ}"]
    def fine(i, ldsbase):
        pre = []
        if i % 4 == 0: pre.append(f"s_mov_b32 m0, {ldsbase + i*1024}")
        pre += [f"s_add_u32 s{sJ}, s{sRho}, {i*1024}", f"s_and_b32 s{sJ}, s{sJ}, 0x7fff", f"s_add_u32 s{sK}, s{sWin}, s{sJ}"]
        if i % 4: pre.append(f"s_sub_u32 s{sK}, s{sK}, {(i%4)*1024}")
        return pre
    for i in range(32):
        pre = list(kpre) if i == 0 else []
        if rot1k: pre += fine(i, KL)
        elif i % 4 == 0: pre += grp(i // 4, KL)
        seq.append((pre, f"buffer_load_dwordx4 v{vK+i%4}, s[12:15], s{sK} offen offset:{(i%4)*1024}{nt} lds"))
    vpre = f"""s_mov_b32 s19, s23
s_mov_b32 s18, s14
; V voffset: (l>>4)*256 + ((l&15) ^ ((l>>4)<<1))*16 ; odd: ^128 ; WO: (l>>4)*1024 + same piece
v_xor_b32 v{t2}, v{t1}, v{t3}
v_lshlrev_b32 v{t2}, 4, v{t2}
v_lshl_add_u32 v{vV}, v{t0}, 8, v{t2}
v_xor_b32 v{vV+1}, 0x80, v{vV}
v_lshl_add_u32 v{vWO}, v{t0}, 10, v{t2}
v_xor_b32 v{vWO+1}, 0x80, v{vWO}
s_mov_b32 s27, s23
s_mov_b32 s26, s22
; WO soff = p<<16 + cg*256 ; p = g*8 + r/4 ; cg = r&3
s_lshr_b32 s{lT}, {R}, 2
s_lshl_b32 s{sWO}, {G}, 3
s_add_u32 s{sWO}, s{sWO}, s{lT}
s_lshl_b32 s{sWO}, s{sWO}, 8
s_and_b32 s{lT}, {R}, 3
s_add_u32 s{sWO}, s{sWO}, s{lT}
s_lshl_b32 s{sWO}, s{sWO}, 8""".split("\n")
    for i in range(32):
        pre = list(vpre) if i == 0 else []
        if rot1k: pre += fine(i, VL)
        elif i % 4 == 0: pre += grp(i // 4, VL)
        seq.append((pre, f"buffer_load_dwordx4 v{vV+(i&1)}, s[16:19], s{sK} offen offset:{(i%4)*1024}{nt} lds"))
    for i in range(16):
        pre = []
        if i == 0: pre += [f"s_mov_b32 m0, {WO}", "s_nop 0"]
        elif i % 4 == 0: pre.append("s_add_u32 m0, m0, 4096")
        if i: pre.append(f"s_add_u32 s{sWO}, s{sWO}, {4096 - 1024 if i % 4 else 4096 + 3072}")
        seq.append((pre, f"buffer_load_dwordx4 v{vWO+((i>>1)&1)}, s[24:27], s{sWO} offen offset:{(i%4)*1024}{nt} lds"))
    T = len(seq); assert T == 97
    def emit(k):
        pre, ld = seq[k]
        for p in pre: a(p)
        a(ld)
    n0 = 17 + kx
    b0done = False
    if compact:
        b0done = True
    else:
        for p in seq[0][0]: a(p)
        a("s_waitcnt lgkmcnt(0)")
        a(seq[0][1])
        for k in range(1, 17): emit(k)
        ST_("L: wq issued")
        if warml == 2: a("; LWARM_START")
        pre17, ld17 = seq[17]
        for p in pre17: a(p)
        if kx > 0:
            if hold: a(f"s_waitcnt vmcnt({17 - hold})")
            a(ld17)
            for k in range(18, n0):
                if n1p and k >= n1p: a(f"s_waitcnt vmcnt({n1p - 1})")
                if b0e and n1p and not b0done and k - (n1p - 1) >= 17:
                    a("s_barrier"); b0done = True
                emit(k)
        else:
            seq[17] = ([], ld17)
    ST_("L: K issued")
    if warml == 1: a("; LWARM_START")
    lfl = lv(4, 4)
    a(f"v_mov_b32 v{t2}, {FL}")
    if not (b0e and kx > 0 and b0done): a(f"s_waitcnt vmcnt({n0 - 17})\ns_barrier")
    ST_("L: wq landed")
    def lwait(name, off):
        a(f"""L_{name}:
ds_read_b128 v[{lfl}:{lfl+3}], v{t2} offset:{off}
s_waitcnt lgkmcnt(0)
v_and_b32 v{lfl}, v{lfl}, v{lfl+1}
v_and_b32 v{lfl+2}, v{lfl+2}, v{lfl+3}
v_and_b32 v{lfl}, v{lfl}, v{lfl+2}
v_cmp_eq_u32 vcc, 0, v{lfl}
s_cbranch_vccnz L_{name}""")
    vFA = lv()
    a(f"v_mov_b32 v{vFA}, {FL}")
    def lwait(name, off):
        a(f"""L_{name}:
ds_read_b128 v[{lfl}:{lfl+3}], v{vFA} offset:{off}
s_waitcnt lgkmcnt(0)
v_and_b32 v{lfl}, v{lfl}, v{lfl+1}
v_and_b32 v{lfl+2}, v{lfl+2}, v{lfl+3}
v_and_b32 v{lfl}, v{lfl}, v{lfl+2}
v_cmp_eq_u32 vcc, 0, v{lfl}
s_cbranch_vccnz L_{name}""")
    lwait("qi", F_QI)
    n1 = 49 + nmid
    for k in range(n0, n1):
        if n2: a(f"s_waitcnt vmcnt({n2 - 1})")
        emit(k)
    assert lgo <= n1 and n1 <= T
    a(f"s_waitcnt vmcnt({n1 - lgo})")
    a(f"ds_write_b32 v{vLF}, v{vOne} offset:{F_GO}")
    lwait("gi", F_GI)
    for k in range(n1, T):
        if k == 81 and holdwo: lwait("gok", F_GOK)
        if k == 81 and lwo: a(f"s_waitcnt vmcnt({81 - lwo})")
        if n3: a(f"s_waitcnt vmcnt({n3 - 1})")
        emit(k)
    if lgo < 49: a(f"s_waitcnt vmcnt({T - 49})\nds_write_b32 v{vLF}, v{vOne} offset:{F_K}")
    F_V1 = F_GOK
    tailev = ([(49 + nmid, F_V1)] if pvp else []) + [(81, F_V), (97, F_W)]
    for cnt, f in tailev:
        a(f"s_waitcnt vmcnt({T - cnt})\nds_write_b32 v{vLF}, v{vOne} offset:{f}")
    ST_("L: all landed")
    if warml: a("; LWARM_END")
    if stamp: a("s_branch L_fin")
    else: a("s_endpgm")
    for _ in range(shift // 4): a("s_nop 0")
    a("L_compute:")
    if compact:
        if not stamp: a("s_load_dwordx2 s[28:29], s[0:1], 56\ns_load_dwordx2 s[32:33], s[0:1], 40")
    g = va(); n16 = va(); n4 = va()
    sQB = sa(); sOB = sa(); sEp = sa(); sTag = sa(); vPT = va()
    a(f"""
s_mov_b32 s31, s23
s_mov_b32 s30, {WS_BYTES}
s_mov_b32 s35, s23
s_movk_i32 s34, 0x1000
s_lshl_b32 s{sQB}, {G}, 4
s_add_u32 s{sQB}, s{sQB}, {B}
s_lshl_b32 s{sQB}, s{sQB}, 11
s_xor_b32 s{sT}, {C}, {cqx}
s_lshl_b32 s{sT}, s{sT}, 8
s_add_u32 s{sQB}, s{sQB}, s{sT}
s_add_u32 s{sQB}, s{sQB}, {QF}
s_lshl_b32 s{sOB}, {B}, 3
s_add_u32 s{sOB}, s{sOB}, {G}
s_lshl_b32 s{sOB}, s{sOB}, 5
s_add_u32 s{sOB}, s{sOB}, {C}
s_lshl_b32 s{sOB}, s{sOB}, 9
s_add_u32 s{sOB}, s{sOB}, {OF}
""")
    vPTa = va()
    if pt in (1, 3, 7):
        a(f"""
s_mul_i32 s{sT}, {W}, 6
v_add_u32 v{t3}, s{sT}, v{l}
v_lshrrev_b32 v{t0}, 1, v{t3}
v_lshlrev_b32 v{t0}, 13, v{t0}
v_and_b32 v{t1}, 1, v{t3}
v_lshl_or_b32 v{t0}, v{t1}, 7, v{t0}
v_add_u32 v{t0}, s{sQB}, v{t0}
v_subrev_u32 v{t1}, 8, v{t3}
v_lshrrev_b32 v{t2}, 2, v{t1}
v_lshlrev_b32 v{t2}, 12, v{t2}
v_and_b32 v{t1}, 3, v{t1}
v_lshl_or_b32 v{t2}, v{t1}, 7, v{t2}
v_add_u32 v{t2}, s{sOB}, v{t2}
v_cmp_gt_u32 vcc, 8, v{t3}
v_mov_b32 v{t3}, {OOB}
s_nop 0
v_cndmask_b32 v{t0}, v{t2}, v{t0}, vcc
v_cmp_gt_u32 vcc, 6, v{l}
s_mov_b32 s{sT}, {WSB}
s_waitcnt lgkmcnt(0)
s_load_dword s{sEp}, s[28:29], s{sT}
v_cndmask_b32 v{vPTa}, v{t3}, v{t0}, vcc
""")
        if pt != 7: a(f"buffer_load_dword v{vPT}, v{vPTa}, s[28:31], 0 offen{' nt' if pt == 3 else ''}")
    else:
        a(f"s_mov_b32 s{sT}, {WSB}\ns_waitcnt lgkmcnt(0)\ns_load_dword s{sEp}, s[28:29], s{sT}" if WSB else f"s_waitcnt lgkmcnt(0)\ns_load_dword s{sEp}, s[28:29], 0")
        if pt in (10, 11, 12):
            sD = sa(); sO1 = sa(); sO2 = sa()
            a(f"s_lshl_b32 s{sT}, {W}, 13\ns_add_u32 s{sO1}, s{sQB}, s{sT}\ns_lshl_b32 s{sT}, {W}, 12\ns_add_u32 s{sO2}, s{sOB}, s{sT}")
            stp = 128 if pt == 11 else 64
            ypt = [f"s_load_dword s{sD}, s[28:29], s{sO1} offset:{o}" for o in range(0, 256, stp)] + [f"s_load_dword s{sD}, s[28:29], s{sO2} offset:{o}" for o in range(0, 512, stp)]
            if pt == 12:
                sO3 = sT2
                sO3 = sa()
                a(f"""s_and_b32 s{sO3}, {R}, 3
s_lshl_b32 s{sO3}, s{sO3}, 6
s_lshl_b32 s{sT}, {G}, 3
s_add_u32 s{sO3}, s{sO3}, s{sT}
s_lshr_b32 s{sT}, {R}, 2
s_add_u32 s{sO3}, s{sO3}, s{sT}
s_lshl_b32 s{sO3}, s{sO3}, 2
s_add_u32 s{sO3}, s{sO3}, {W}
s_lshl_b32 s{sO3}, s{sO3}, 9
s_add_u32 s{sO3}, s{sO3}, {OX + SOFF}""")
                ypt += [f"s_load_dword s{sD}, s[28:29], s{sO3} offset:{o}" for o in range(0, 512, 64)]
        if pt in (8, 9):
            sD = sa(); sO1 = sa()
            a(f"s_lshl_b32 s{sT}, {W}, 13\ns_add_u32 s{sO1}, s{sQB}, s{sT}")
            for o in range(0, 256, 64): a(f"s_load_dword s{sD}, s[28:29], s{sO1} offset:{o}")
            a(f"s_lshl_b32 s{sT}, {W}, 12\ns_add_u32 s{sO1}, s{sOB}, s{sT}")
            for o in range(0, 512, 64): a(f"s_load_dword s{sD}, s[28:29], s{sO1} offset:{o}")
            if pt == 9:
                a(f"""s_and_b32 s{sO1}, {R}, 3
s_lshl_b32 s{sO1}, s{sO1}, 6
s_lshl_b32 s{sT}, {G}, 3
s_add_u32 s{sO1}, s{sO1}, s{sT}
s_lshr_b32 s{sT}, {R}, 2
s_add_u32 s{sO1}, s{sO1}, s{sT}
s_lshl_b32 s{sO1}, s{sO1}, 2
s_add_u32 s{sO1}, s{sO1}, {W}
s_lshl_b32 s{sO1}, s{sO1}, 9
s_add_u32 s{sO1}, s{sO1}, {OX + SOFF}""")
                ypt = [f"s_load_dword s{sD}, s[28:29], s{sO1} offset:{o}" for o in range(0, 512, 64)]
        if pt in (2, 4, 6):
            a(f"""
s_lshl_b32 s{sT}, {W}, 12
s_add_u32 s{sT}, s{sT}, s{sOB}
v_lshlrev_b32 v{t0}, 7, v{l}
v_add_u32 v{t0}, s{sT}, v{t0}
v_cmp_gt_u32 vcc, 4, v{l}
v_mov_b32 v{t3}, {OOB}
s_nop 0
v_cndmask_b32 v{vPTa}, v{t3}, v{t0}, vcc
""")
    if warm:
        a("s_mov_b64 exec, 0")
        for p in range(1, nparts):
            a(f"s_cmp_eq_u32 {W}, {p}\ns_cbranch_scc1 HOP_P{p}")
        a("s_branch HOP_P0\nL_warm_done:\ns_mov_b64 exec, -1")
    a("; WARM_START")
    sP = sa(); sCG = sa(); sR4 = sa()
    vXr = va(4); vWQr = va(); vKr = va(4); vVr = va(2); vWOr = va(2)
    vQst = va(); vG = va(); sG = sa(); vQLw = va(); vQLr = va()
    vPw = va(); vPr = va(); vSw = va(); vSr = va()
    vOst = va(); vOG = va(); sOG = sa(); vOLw = va(); vOLr = va()
    vYst = va(); sYst = sa(); vFG = va(); sFG = sa(); vOut = va()
    vFw = va(); vFr = va(); vOne_c = va()
    sCsc = sa(); sP0 = sa(); sP1 = sa(); sP2 = sa(); sU0 = sa(); sU1 = sa(); sM4 = sa(2, 2); sG1 = sa(2, 2); sCnt = sa()
    a(f"""
v_lshrrev_b32 v{g}, 4, v{l}
v_and_b32 v{n16}, 15, v{l}
v_and_b32 v{n4}, 3, v{l}
v_lshlrev_b32 v{t2}, 2, v{l}
v_mov_b32 v{t3}, 0
ds_write_b32 v{t2}, v{t3} offset:{FL}
v_add_u32 v{t2}, {JK}, v{t2}
s_lshl_b32 s{sT}, {W}, 2
s_add_u32 s{sT}, s{sT}, {FL}
v_mov_b32 v{vFw}, s{sT}
v_cmp_eq_u32 vcc, 0, v{l}
v_mov_b32 v{vFr}, {FL}
v_mov_b32 v{vOne_c}, 1
v_cndmask_b32 v{vFw}, v{t2}, v{vFw}, vcc
; p = g*8 + r/4 ; cg = r&3
s_lshr_b32 s{sR4}, {R}, 2
s_lshl_b32 s{sP}, {G}, 3
s_add_u32 s{sP}, s{sP}, s{sR4}
s_and_b32 s{sCG}, {R}, 3
v_lshlrev_b32 v{t2}, 2, v{n4}
v_xor_b32 v{t2}, v{g}, v{t2}
v_lshlrev_b32 v{t2}, 4, v{t2}
v_lshl_add_u32 v{t2}, v{n4}, 8, v{t2}
v_add_u32 v{vXr}, {XL}, v{t2}
v_xor_b32 v{vXr+1}, 64, v{vXr}
v_xor_b32 v{vXr+2}, 0x80, v{vXr}
v_xor_b32 v{vXr+3}, 0xc0, v{vXr}
v_bfe_u32 v{t0}, v{l}, 2, 2
v_lshl_add_u32 v{t2}, v{g}, 3, v{t0}
v_lshlrev_b32 v{t2}, 7, v{t2}
v_lshl_add_u32 v{t2}, v{n4}, 3, v{t2}
v_lshrrev_b32 v{t3}, 1, v{t0}
v_and_b32 v{t1}, 1, v{g}
v_lshl_or_b32 v{t3}, v{t1}, 1, v{t3}
v_xor_b32 v{t3}, {W}, v{t3}
v_lshl_add_u32 v{t2}, v{t3}, 5, v{t2}
v_add_u32 v{vWQr}, {WQ}, v{t2}
s_lshl_b32 s{sT}, {W}, 13
s_add_u32 s{sT}, s{sT}, {KL}
v_xor_b32 v{t2}, v{g}, v{n16}
v_lshlrev_b32 v{t2}, 4, v{t2}
v_lshl_add_u32 v{t2}, v{n16}, 8, v{t2}
v_add_u32 v{vKr}, s{sT}, v{t2}
v_xor_b32 v{vKr+1}, 64, v{vKr}
v_xor_b32 v{vKr+2}, 0x80, v{vKr}
v_xor_b32 v{vKr+3}, 0xc0, v{vKr}
v_lshl_add_u32 v{t2}, v{g}, 2, v{t0}
v_lshlrev_b32 v{t2}, 8, v{t2}
v_lshl_add_u32 v{t2}, v{n4}, 3, v{t2}
v_lshl_or_b32 v{t3}, v{t1}, 2, v{t0}
s_lshl_b32 s{sT}, {W}, 1
v_xor_b32 v{t3}, s{sT}, v{t3}
v_lshl_add_u32 v{t2}, v{t3}, 5, v{t2}
v_add_u32 v{vVr}, {VL}, v{t2}
v_xor_b32 v{vVr+1}, 32, v{vVr}
v_lshl_add_u32 v{t2}, v{g}, 3, v{t0}
v_lshlrev_b32 v{t2}, 8, v{t2}
v_lshl_add_u32 v{t2}, v{n4}, 3, v{t2}
v_lshl_add_u32 v{t2}, v{t3}, 5, v{t2}
v_add_u32 v{vWOr}, {WO}, v{t2}
v_xor_b32 v{vWOr+1}, 32, v{vWOr}
v_cmp_gt_u32 vcc, 4, v{n16}
v_mov_b32 v{t3}, {OOB}
s_lshl_b32 s{sT}, {W}, 6
v_lshlrev_b32 v{t2}, 4, v{g}
v_add_u32 v{t0}, s{sT}, v{t2}
v_lshl_add_u32 v{t0}, v{n16}, 13, v{t0}
v_cndmask_b32 v{vQst}, v{t3}, v{t0}, vcc
s_lshl_b32 s{sT}, {W}, 7
v_add_u32 v{t2}, s{sT}, v{t2}
v_lshl_add_u32 v{t0}, v{n16}, 12, v{t2}
v_cndmask_b32 v{vOst}, v{t3}, v{t0}, vcc
v_lshl_add_u32 v{t0}, v{n16}, 9, v{t2}
v_cndmask_b32 v{vYst}, v{t3}, v{t0}, vcc
YCOAL_ADDR
v_lshrrev_b32 v{t0}, 5, v{l}
v_and_b32 v{t1}, 31, v{l}
v_lshlrev_b32 v{t2}, 4, v{t1}
v_lshl_add_u32 v{vG}, v{t0}, 12, v{t2}
s_lshl_b32 s{sG}, {G}, 2
s_add_u32 s{sG}, s{sG}, {B}
s_lshl_b32 s{sG}, s{sG}, 4
s_add_u32 s{sG}, s{sG}, {W}
s_lshl_b32 s{sG}, s{sG}, 9
s_add_u32 s{sG}, s{sG}, {QF}
s_mul_i32 s{sT}, {W}, 320
v_lshlrev_b32 v{t2}, 3, v{t1}
v_lshl_add_u32 v{t2}, v{t0}, 2, v{t2}
v_add_u32 v{vQLw}, s{sT}, v{t2}
v_mul_u32_u24 v{t2}, 320, v{n4}
v_lshl_add_u32 v{vQLr}, v{g}, 4, v{t2}
v_lshlrev_b32 v{t2}, 6, v{n4}
v_lshl_add_u32 v{vPr}, v{g}, 4, v{t2}
s_lshl_b32 s{sT}, {W}, 8
v_add_u32 v{vPw}, s{sT}, v{vPr}
v_lshlrev_b32 v{vSr}, 4, v{n4}
s_lshl_b32 s{sT}, {W}, 2
v_add_u32 v{vSw}, s{sT}, v{vSr}
v_lshlrev_b32 v{t2}, 9, v{g}
v_lshl_add_u32 v{vOG}, v{n16}, 4, v{t2}
s_lshl_b32 s{sOG}, {W}, 3
s_add_u32 s{sOG}, s{sOG}, {G}
s_lshl_b32 s{sOG}, s{sOG}, 2
s_add_u32 s{sOG}, s{sOG}, {B}
s_lshl_b32 s{sOG}, s{sOG}, 4
s_and_b32 s{sT}, s{sR4}, 1
s_add_u32 s{sOG}, s{sOG}, s{sT}
s_lshl_b32 s{sOG}, s{sOG}, 8
s_add_u32 s{sOG}, s{sOG}, {OF}
s_mul_i32 s{sT}, {W}, 192
v_lshlrev_b32 v{t2}, 3, v{n16}
v_lshl_add_u32 v{t2}, v{g}, 1, v{t2}
v_add_u32 v{vOLw}, s{sT}, v{t2}
v_mul_u32_u24 v{t2}, 192, v{n4}
v_lshl_add_u32 v{vOLr}, v{g}, 4, v{t2}
s_lshl_b32 s{sYst}, s{sCG}, 6
s_add_u32 s{sYst}, s{sYst}, s{sP}
s_lshl_b32 s{sYst}, s{sYst}, 11
s_add_u32 s{sYst}, s{sYst}, {OX + SOFF}
v_lshrrev_b32 v{t0}, 1, v{l}
v_and_b32 v{t1}, 1, v{l}
v_lshlrev_b32 v{t2}, 4, v{t1}
v_lshl_add_u32 v{vFG}, v{t0}, 11, v{t2}
s_lshl_b32 s{sFG}, s{sCG}, 12
s_add_u32 s{sFG}, s{sFG}, s{sP}
s_lshl_b32 s{sFG}, s{sFG}, 5
s_add_u32 s{sFG}, s{sFG}, {OX + SOFF}
YCOAL_OUT
v_cmp_gt_u32 vcc, 2, v{n16}
s_mov_b32 s{sCsc}, {f32(CSC)}
s_mov_b32 s{sP0}, 0x07060503
v_cndmask_b32 v{vOut}, v{t3}, v{t2}, vcc
s_mov_b32 s{sP1}, 0x07060502
s_mov_b32 s{sP2}, 0x07060501
s_mov_b32 s{sU0}, 0x04000c0c
s_mov_b32 s{sU1}, 0x0706000c
s_mov_b32 s{sM4}, 0x000f000f
s_mov_b32 s{sM4+1}, 0x000f000f
s_waitcnt lgkmcnt(0)
s_mul_i32 s{sTag}, s{sEp}, 1664525
s_add_u32 s{sTag}, s{sTag}, 1013904223
""")
    ya = f"""; coalesced y store: lanes < 32: w*512 + l*16
s_lshl_b32 s{sT}, {W}, 9
v_lshlrev_b32 v{t0}, 4, v{l}
v_add_u32 v{t0}, s{sT}, v{t0}
v_cmp_gt_u32 s[{sM4}:{sM4+1}], 32, v{l}
v_cmp_eq_u32 s[{sG1}:{sG1+1}], 1, v{g}
s_nop 0
v_cndmask_b32 v{vYst}, v{t3}, v{t0}, s[{sM4}:{sM4+1}]""" if ycoal else ""
    yo = (f"""; out voffset: g*1024 + (cg*128 + 2p' + (l&1))*2 for lanes n16<2 ; p' = p (0..63)
s_lshl_b32 s{sT}, s{sCG}, 6
s_add_u32 s{sT}, s{sT}, s{sP}
s_lshl_b32 s{sT}, s{sT}, 2
v_lshlrev_b32 v{t2}, 1, v{t1}
v_lshl_add_u32 v{t2}, v{g}, 10, v{t2}
v_add_u32 v{t2}, s{sT}, v{t2}""" if ycoal else f"""s_lshr_b32 s{sT}, s{sP}, 4
s_lshl_b32 s{sT}, s{sT}, 2
s_add_u32 s{sT}, s{sT}, s{sCG}
s_lshl_b32 s{sT}, s{sT}, 4
s_and_b32 s{sT2}, s{sP}, 15
s_add_u32 s{sT}, s{sT}, s{sT2}
s_lshl_b32 s{sT}, s{sT}, 4
v_lshlrev_b32 v{t2}, 3, v{t1}
v_lshl_add_u32 v{t2}, v{g}, 1, v{t2}
v_add_u32 v{t2}, s{sT}, v{t2}""")
    newL = []
    for ln in a.L:
        if "YCOAL_ADDR" in ln: newL += ["    " + x for x in ya.split("\n") if x]
        elif "YCOAL_OUT" in ln: newL += ["    " + x for x in yo.split("\n")]
        else: newL.append(ln)
    a.L = newL
    A32 = va(32, 4); B16 = va(16, 4); C32 = va(32, 4); E8 = va(8, 4); F8 = va(8, 4)
    ones = va(4, 4); fl = va(4, 4); fl1 = va(); QS4 = va(4, 4); OS8 = va(8, 4); sQS = sa(); sOS = sa(); sWcN = sa.n
    a(f"""
v_mov_b32 v{ones}, 0x3f803f80
v_mov_b32 v{ones+1}, 0x3f803f80
v_mov_b32 v{ones+2}, 0x3f803f80
v_mov_b32 v{ones+3}, 0x3f803f80
v_mov_b32 v{QS4+3}, s{sTag}
v_mov_b32 v{OS8+3}, s{sTag}
v_mov_b32 v{OS8+7}, s{sTag}
v_mov_b32 v{E8+3}, s{sTag}
v_mov_b32 v{E8+7}, s{sTag}
s_add_u32 s{sQS}, s{sQB}, {0 if sameS in (1, 2) else SOFF}
s_add_u32 s{sOS}, s{sOB}, {0 if sameS in (1, 3) else SOFF}
s_mov_b32 s{sCnt}, {spin}
s_movk_i32 s{sWcN}, {wthr}
""")
    if pt == 7: a(f"buffer_load_dword v{vPT}, v{vPTa}, s[28:31], 0 offen")
    lab = [0]
    def setflag(off): a(f"ds_write_b32 v{vFw}, v{vOne_c} offset:{off}")
    colder = []
    sWc = sa()
    stage = {"flush": []}
    def waitflags(group=None, single=None):
        lab[0] += 1; L = f"L_wf{lab[0]}"
        a(f"{L}:")
        if group is not None: a(f"ds_read_b128 {rng(fl,4)}, v{vFr} offset:{group}")
        if single is not None: a(f"ds_read_b32 v{fl1}, v{vFr} offset:{single}")
        a("s_waitcnt lgkmcnt(0)")
        if group is not None:
            a(f"v_min3_u32 v{fl}, v{fl}, v{fl+1}, v{fl+2}")
            if single is not None: a(f"v_min3_u32 v{fl}, v{fl}, v{fl+3}, v{fl1}")
            else: a(f"v_min_u32 v{fl}, v{fl}, v{fl+3}")
            r = fl
        else: r = fl1
        a(f"v_cmp_eq_u32 vcc, 0, v{r}\ns_cbranch_vccz {L}d\ns_sub_u32 s{sWc}, s{sWc}, 1\ns_cbranch_scc0 {L}\ns_branch {L}f\n{L}d:")
        colder.append([f"{L}f:"] + list(stage["flush"]) + [f"s_movk_i32 s{sWc}, {wthr}", f"s_branch {L}"])
    QFL = [f"buffer_store_dwordx4 {rng(QS4,4)}, v{vQst}, s[28:31], s{sQS} offen sc1"]
    OFL = [f"buffer_store_dwordx4 {rng(OS8,4)}, v{vOst}, s[28:31], s{sOS} offen sc1", f"buffer_store_dwordx4 {rng(OS8+4,4)}, v{vOst}, s[28:31], s{sOS} offen offset:64 sc1"]
    assert sWc == sWcN
    xb = A32; wa = A32 + 16; acc = C32
    a("s_waitcnt lgkmcnt(0)\ns_barrier")
    for s in range(4):
        a(f"ds_read_b128 {rng(xb+4*s,4)}, v{vXr+s}")
        a(f"ds_read_b64_tr_b16 {rng(wa+4*s,2)}, v{vWQr} offset:{s*4096}")
        a(f"ds_read_b64_tr_b16 {rng(wa+4*s+2,2)}, v{vWQr} offset:{s*4096 + 512}")
    for s in range(4):
        a(f"s_waitcnt lgkmcnt({3*(3-s)})")
        c = "0" if s == 0 else rng(acc,4)
        a(f"v_mfma_f32_16x16x32_bf16 {rng(acc,4)}, {rng(wa+4*s,4)}, {rng(xb+4*s,4)}, {c}")
    a(f"""
s_nop 7
v_perm_b32 v{QS4}, v{acc}, v{acc+3}, s{sP0}
v_perm_b32 v{QS4+1}, v{acc+1}, v{acc+3}, s{sP1}
v_perm_b32 v{QS4+2}, v{acc+2}, v{acc+3}, s{sP2}
buffer_store_dwordx4 {rng(QS4,4)}, v{vQst}, s[28:31], s{sQB} offen
""")
    setflag(F_QI)
    stage["flush"] = QFL
    if pt in (9, 10, 11, 12):
        for x_ in ypt: a(x_)
    if pt in (2, 6): a(f"buffer_load_dword v{vPT}, v{vPTa}, s[28:31], 0 offen" + (" nt" if pt == 2 else ""))
    ST_("q published")
    gq = F8
    if gmin:
        sGm = sa()
        a(f"""s_movk_i32 s{sGm}, {gmin}
L_gom:
ds_read_b32 v{fl1}, v{vFr} offset:{F_GO}
s_waitcnt lgkmcnt(0)
s_sub_u32 s{sGm}, s{sGm}, 1
s_cbranch_scc0 L_gom""")
    waitflags(single=F_GO)
    ST_("GO")
    a(f"buffer_load_dwordx4 {rng(gq,4)}, v{vG}, s[28:31], s{sG} offen sc1")
    a(f"buffer_load_dwordx4 {rng(gq+4,4)}, v{vG}, s[28:31], s{sG} offen offset:2048 sc1")
    if pt == 4: a(f"buffer_load_dword v{vPT}, v{vPTa}, s[28:31], 0 offen nt")
    if pt == 13:
        dum = va(2, 2)
        a(f"buffer_load_dword v{dum}, v{vOG}, s[28:31], s{sOG} offen sc1")
        a(f"buffer_load_dword v{dum+1}, v{vOG}, s[28:31], s{sOG} offen offset:2048 sc1")
    if pt == 14:
        dum = va(2, 2)
        a(f"buffer_load_dword v{dum}, v{vOG}, s[28:31], s{sOG} offen sc1")
        a(f"buffer_load_dword v{dum+1}, v{vOG}, s[28:31], s{sOG} offen offset:2048 sc1")
        dum2 = va(2, 2)
        a(f"s_add_u32 s{sT2}, s{sFG}, 65536")
        a(f"buffer_load_dword v{dum2}, v{vFG}, s[28:31], s{sFG} offen sc1")
        a(f"buffer_load_dword v{dum2+1}, v{vFG}, s[28:31], s{sT2} offen sc1")
    setflag(F_GI)
    ka = A32
    if lgo < 49: waitflags(single=F_K)
    for t in range(2):
        for s_ in range(4):
            a(f"ds_read_b128 {rng(ka+16*t+4*s_,4)}, v{vKr+s_} offset:{t*4096}")
    sa_tmp = sa(2, 2)
    cold = []
    def poll(name, regs, vaddr, soff, first_wait, offs, flush):
        a(f"s_waitcnt vmcnt({first_wait})\nL_{name}chk:")
        for i, r in enumerate(regs):
            if i == 0: a(f"v_cmp_ne_u32 vcc, s{sTag}, v{r+3}")
            else: a(f"v_cmp_ne_u32 s[{sa_tmp}:{sa_tmp+1}], s{sTag}, v{r+3}\ns_or_b64 vcc, vcc, s[{sa_tmp}:{sa_tmp+1}]")
        a(f"s_cbranch_vccnz L_{name}retry\nL_{name}ok:")
        c = [f"L_{name}retry:", f"s_sub_u32 s{sCnt}, s{sCnt}, 1", f"s_cbranch_scc1 L_{name}ok",
             f"s_cmp_gt_u32 s{sCnt}, {spin - nf}", f"s_cbranch_scc1 L_{name}re",
             f"s_cmp_lg_u32 s{sCnt}, {spin - nf}", f"s_cbranch_scc1 L_{name}tg"] + flush + [f"L_{name}tg:"] + ([] if (sameS == 1 or (sameS == 2 and name == "q") or (sameS == 3 and name == "o")) else [f"s_xor_b32 s{soff}, s{soff}, {SOFF}"]) + [f"L_{name}re:"]
        for r, o in zip(regs, offs):
            c.append(f"buffer_load_dwordx4 {rng(r,4)}, v{vaddr}, s[28:31], s{soff} offen offset:{o} sc1")
        c += ["s_waitcnt vmcnt(0)", f"s_branch L_{name}chk"]
        cold.append((name, c))
    poll("q", [gq, gq+4], vG, sG, {4: 1, 13: 2, 14: 4}.get(pt, 0), [0, 2048], QFL)
    if holdwo: setflag(F_GOK)
    ST_("q gathered")
    u = E8; qb = B16
    a(f"""
v_perm_b32 v{u}, v{gq}, v{gq+1}, s{sU0}
v_perm_b32 v{u+1}, v{gq+4}, v{gq+5}, s{sU0}
v_add_f32 v{u+4}, v{gq}, v{gq+4}
v_add_f32 v{u+6}, v{gq+2}, v{gq+6}
v_perm_b32 v{u}, v{u}, v{gq+2}, s{sU1}
v_perm_b32 v{u+1}, v{u+1}, v{gq+6}, s{sU1}
v_add_f32 v{u+5}, v{gq+1}, v{gq+5}
v_add_f32 v{u+7}, v{u}, v{u+1}
v_permlane32_swap_b32 v{u+4}, v{u+6}
s_nop 0
v_permlane32_swap_b32 v{u+5}, v{u+7}
v_add_f32 v{u+4}, v{u+4}, v{u+6}
v_add_f32 v{u+5}, v{u+5}, v{u+7}
v_cvt_pk_bf16_f32 v{u}, v{u+4}, v{u+5}
ds_write_b32 v{vQLw}, v{u} offset:{QL}
""")
    setflag(F_Q)
    waitflags(group=F_Q)
    for s in range(4):
        a(f"ds_read_b128 {rng(qb+4*s,4)}, v{vQLr} offset:{QL + s*64}")
    sc = C32
    for s in range(4):
        a(f"s_waitcnt lgkmcnt({3-s})")
        for t in range(2):
            c = "0" if s == 0 else rng(sc+4*t,4)
            a(f"v_mfma_f32_16x16x32_bf16 {rng(sc+4*t,4)}, {rng(ka+16*t+4*s,4)}, {rng(qb+4*s,4)}, {c}")
    m = va(2, 2); mt = va(); pk = E8
    sC2 = sa(2, 2)
    a(f"""
s_mov_b32 s{sC2}, s{sCsc}
s_mov_b32 s{sC2+1}, s{sCsc}
s_nop 4
v_max3_f32 v{m}, v{sc}, v{sc+1}, v{sc+2}
v_max3_f32 v{mt}, v{sc+3}, v{sc+4}, v{sc+5}
v_max3_f32 v{m}, v{m}, v{sc+6}, v{sc+7}
v_max_f32 v{m}, v{m}, v{mt}
v_mov_b32 v{mt}, v{m}
s_nop 1
v_permlane16_swap_b32 v{m}, v{mt}
v_max_f32 v{m}, v{m}, v{mt}
v_mov_b32 v{mt}, v{m}
s_nop 1
v_permlane32_swap_b32 v{m}, v{mt}
v_max_f32 v{m}, v{m}, v{mt}
v_mul_f32 v{m}, s{sCsc}, v{m}
""")
    for i in range(0, 8, 2):
        a(f"v_pk_fma_f32 v[{sc+i}:{sc+i+1}], v[{sc+i}:{sc+i+1}], s[{sC2}:{sC2+1}], v[{m}:{m+1}] op_sel_hi:[1,1,0] neg_lo:[0,0,1] neg_hi:[0,0,1]")
    a(f"s_mov_b64 exec, s[{sM4}:{sM4+1}]\nds_write_b32 v{vSw}, v{m} offset:{SL}\ns_mov_b64 exec, -1")
    for i in range(8):
        a(f"v_exp_f32 v{sc+i}, v{sc+i}")
        if i == 2: a(f"v_cvt_pk_bf16_f32 v{pk}, v{sc}, v{sc+1}")
        if i == 4: a(f"v_cvt_pk_bf16_f32 v{pk+1}, v{sc+2}, v{sc+3}")
        if i == 6: a(f"v_cvt_pk_bf16_f32 v{pk+2}, v{sc+4}, v{sc+5}")
    a(f"""
s_mov_b64 exec, s[{sM4}:{sM4+1}]
v_cvt_pk_bf16_f32 v{pk+3}, v{sc+6}, v{sc+7}
ds_write_b128 v{vPw}, {rng(pk,4)} offset:{PL}
s_mov_b64 exec, -1
""")
    setflag(F_P)
    a(f"s_mov_b32 s{sCnt}, {spin}")
    waitflags(group=F_P)
    ST_("P written")
    pb = B16; sv = F8; vaop = A32; D = C32
    lk = va(16, 4)
    M = va(); ff = va(4, 2); L = va(); Rr = va(); lse = va()
    a(f"ds_read_b128 {rng(sv,4)}, v{vSr} offset:{SL}")
    for ks in range(4):
        a(f"ds_read_b128 {rng(pb+4*ks,4)}, v{vPr} offset:{PL + ks*256}")
    a(f"ds_read_b32 v{fl1}, v{vFr} offset:{F_V}")
    a(f"""
s_waitcnt lgkmcnt(5)
v_max3_f32 v{M}, v{sv}, v{sv+1}, v{sv+2}
v_max_f32 v{M}, v{M}, v{sv+3}
v_sub_f32 v{ff}, v{sv}, v{M}
v_sub_f32 v{ff+1}, v{sv+1}, v{M}
v_sub_f32 v{ff+2}, v{sv+2}, v{M}
v_sub_f32 v{ff+3}, v{sv+3}, v{M}
""")
    for ks in range(4):
        a(f"s_waitcnt lgkmcnt({4-ks})")
        a(f"v_mfma_f32_16x16x32_bf16 {rng(lk+4*ks,4)}, {rng(ones,4)}, {rng(pb+4*ks,4)}, 0")
        a(f"v_exp_f32 v{ff+ks}, v{ff+ks}")
    def vread(ks):
        for tp in range(2):
            for e in range(2):
                a(f"ds_read_b64_tr_b16 {rng(vaop+8*ks+4*tp+2*e,2)}, v{vVr+tp} offset:{ks*8192 + e*4096}")
    def pv(ks):
        for tp in range(2):
            a(f"v_mfma_f32_16x16x32_bf16 {rng(D+8*ks+4*tp,4)}, {rng(vaop+8*ks+4*tp,4)}, {rng(pb+4*ks,4)}, 0")
    stats2 = f"""v_mul_f32 v{L}, v{ff}, v{lk}
v_fmac_f32 v{L}, v{ff+1}, v{lk+4}
v_fmac_f32 v{L}, v{ff+2}, v{lk+8}
v_fmac_f32 v{L}, v{ff+3}, v{lk+12}
v_rcp_f32 v{Rr}, v{L}
v_log_f32 v{lse}, v{L}
s_nop 0
v_mul_f32 v{ff}, v{ff}, v{Rr}
v_mul_f32 v{ff+1}, v{ff+1}, v{Rr}
v_mul_f32 v{ff+2}, v{ff+2}, v{Rr}
v_mul_f32 v{ff+3}, v{ff+3}, v{Rr}
v_add_f32 v{OS8+2}, v{lse}, v{M}
v_add_f32 v{OS8+6}, v{lse}, v{M}"""
    o = F8
    def scale(ks):
        base = ff + (ks & ~1); sel = ks & 1; fr = f"v[{base}:{base+1}]"
        for tp in range(2):
            for h in range(2):
                dst = rng(o+4*tp+2*h, 2); src = rng(D+8*ks+4*tp+2*h, 2)
                if ks == 0: a(f"v_pk_mul_f32 {dst}, {src}, {fr} op_sel:[0,{sel}] op_sel_hi:[1,{sel}]")
                else: a(f"v_pk_fma_f32 {dst}, {src}, {fr}, {dst} op_sel:[0,{sel},0] op_sel_hi:[1,{sel},1]")
    a(f"s_waitcnt lgkmcnt(0)\nv_cmp_ne_u32 vcc, 0, v{fl1}\ns_cbranch_vccnz L_vfast\ns_nop 3")
    if pvp:
        assert nmid == 24
        F_V1 = F_GOK
        waitflags(single=F_V1)
        vread(0); vread(1); vread(2)
        a(stats2)
        a("s_waitcnt lgkmcnt(8)"); pv(0)
        a("s_waitcnt lgkmcnt(4)"); pv(1)
        a("s_waitcnt lgkmcnt(0)"); pv(2)
        a("s_nop 1")
        scale(0); scale(1); scale(2)
        waitflags(single=F_V)
        ST_("V landed")
        vread(3)
        a("s_waitcnt lgkmcnt(0)"); pv(3)
        a("s_nop 7")
        scale(3)
        a("s_branch L_vdone")
    else:
        a(stats2)
        waitflags(single=F_V)
        ST_("V landed")
        vread(0); vread(1); vread(2)
        a("s_branch L_vjoin")
    a("L_vfast:")
    vread(0); vread(1); vread(2)
    a(stats2)
    a("L_vjoin:")
    a("s_waitcnt lgkmcnt(8)"); pv(0); vread(3)
    a("s_waitcnt lgkmcnt(8)"); pv(1)
    a("s_waitcnt lgkmcnt(4)"); pv(2)
    a("s_waitcnt lgkmcnt(0)"); pv(3)
    for ks in range(4): scale(ks)
    a("L_vdone:")
    og = OS8
    a(f"""
v_cvt_pk_bf16_f32 v{og}, v{o}, v{o+1}
v_cvt_pk_bf16_f32 v{og+1}, v{o+2}, v{o+3}
v_cvt_pk_bf16_f32 v{og+4}, v{o+4}, v{o+5}
v_cvt_pk_bf16_f32 v{og+5}, v{o+6}, v{o+7}
buffer_store_dwordx4 {rng(og,4)}, v{vOst}, s[28:31], s{sOB} offen
buffer_store_dwordx4 {rng(og+4,4)}, v{vOst}, s[28:31], s{sOB} offen offset:64
""")
    setflag(F_OI)
    stage["flush"] = QFL + OFL
    ST_("o published")
    gg = B16; wb = A32
    if not nooi: waitflags(group=F_OI)
    if nooi:
        waitflags(single=F_W)
        for s_ in range(2):
            for tp in range(2):
                for hh in range(2):
                    a(f"ds_read_b64_tr_b16 {rng(wb+8*s_+4*tp+2*hh,2)}, v{vWOr+tp} offset:{s_*8192 + hh*1024}")
    a(f"""
buffer_load_dwordx4 {rng(gg,4)}, v{vOG}, s[28:31], s{sOG} offen sc1
buffer_load_dwordx4 {rng(gg+4,4)}, v{vOG}, s[28:31], s{sOG} offen offset:2048 sc1
""")
    if not nooi:
        waitflags(single=F_W)
        for s in range(2):
            for tp in range(2):
                for hh in range(2):
                    a(f"ds_read_b64_tr_b16 {rng(wb+8*s+4*tp+2*hh,2)}, v{vWOr+tp} offset:{s*8192 + hh*1024}")
    poll("o", [gg, gg+4], vOG, sOG, 0, [0, 2048], QFL + OFL)
    ST_("o gathered")
    e0 = va(); e1 = va(); u = A32 + 16; S = va(); oo = A32 + 24
    a(f"""
v_max_f32 v{M}, v{gg+2}, v{gg+6}
v_mov_b32 v{mt}, v{M}
v_lshlrev_b32 v{u}, 16, v{gg}
v_and_b32 v{u+1}, 0xffff0000, v{gg}
v_permlane16_swap_b32 v{M}, v{mt}
v_lshlrev_b32 v{u+2}, 16, v{gg+1}
v_max_f32 v{M}, v{M}, v{mt}
v_mov_b32 v{mt}, v{M}
v_and_b32 v{u+3}, 0xffff0000, v{gg+1}
v_lshlrev_b32 v{u+4}, 16, v{gg+4}
v_permlane32_swap_b32 v{M}, v{mt}
v_and_b32 v{u+5}, 0xffff0000, v{gg+4}
v_max_f32 v{M}, v{M}, v{mt}
v_lshlrev_b32 v{u+6}, 16, v{gg+5}
v_sub_f32 v{e0}, v{gg+2}, v{M}
v_sub_f32 v{e1}, v{gg+6}, v{M}
v_exp_f32 v{e0}, v{e0}
v_exp_f32 v{e1}, v{e1}
v_and_b32 v{u+7}, 0xffff0000, v{gg+5}
v_add_f32 v{S}, v{e0}, v{e1}
v_mul_f32 v{oo}, v{e0}, v{u}
v_mul_f32 v{oo+1}, v{e0}, v{u+1}
v_mov_b32 v{mt}, v{S}
v_mul_f32 v{oo+2}, v{e0}, v{u+2}
v_mul_f32 v{oo+3}, v{e0}, v{u+3}
v_permlane16_swap_b32 v{S}, v{mt}
v_fmac_f32 v{oo}, v{e1}, v{u+4}
v_fmac_f32 v{oo+1}, v{e1}, v{u+5}
v_add_f32 v{S}, v{S}, v{mt}
v_fmac_f32 v{oo+2}, v{e1}, v{u+6}
v_fmac_f32 v{oo+3}, v{e1}, v{u+7}
v_mov_b32 v{mt}, v{S}
v_permlane16_swap_b32 v{oo}, v{oo+1}
s_nop 0
v_permlane16_swap_b32 v{oo+2}, v{oo+3}
v_permlane32_swap_b32 v{S}, v{mt}
v_add_f32 v{oo}, v{oo}, v{oo+1}
v_add_f32 v{oo+2}, v{oo+2}, v{oo+3}
v_add_f32 v{S}, v{S}, v{mt}
s_nop 0
v_permlane32_swap_b32 v{oo}, v{oo+2}
v_rcp_f32 v{S}, v{S}
v_add_f32 v{oo}, v{oo}, v{oo+2}
v_mul_f32 v{oo}, v{oo}, v{S}
v_cvt_pk_bf16_f32 v{oo}, v{oo}, v{oo}
ds_write_b16 v{vOLw}, v{oo} offset:{OL}
""")
    setflag(F_O)
    a(f"s_add_u32 s{sT2}, s{sFG}, 65536\ns_mov_b32 s{sCnt}, {spin}")
    waitflags(group=F_O)
    ob = B16 + 8; y = C32; yg = E8
    a(f"""
ds_read_b128 {rng(ob,4)}, v{vOLr} offset:{OL}
ds_read_b128 {rng(ob+4,4)}, v{vOLr} offset:{OL+64}
""")
    for s in range(2):
        a(f"s_waitcnt lgkmcnt({1-s})")
        for tp in range(2):
            c = "0" if s == 0 else rng(y+4*tp,4)
            if ycoal: a(f"v_mfma_f32_16x16x32_bf16 {rng(y+4*tp,4)}, {rng(ob+4*s,4)}, {rng(wb+8*s+4*tp,4)}, {c}")
            else: a(f"v_mfma_f32_16x16x32_bf16 {rng(y+4*tp,4)}, {rng(wb+8*s+4*tp,4)}, {rng(ob+4*s,4)}, {c}")
    if ycoal:
        a(f"v_mov_b32 v{E8+3}, s{sTag}\ns_nop 6")
        for r in range(4): a(f"v_cndmask_b32 v{y+r}, v{y+r}, v{y+4+r}, s[{sG1}:{sG1+1}]")
        a(f"""v_perm_b32 v{yg}, v{y}, v{y+3}, s{sP0}
v_perm_b32 v{yg+1}, v{y+1}, v{y+3}, s{sP1}
v_perm_b32 v{yg+2}, v{y+2}, v{y+3}, s{sP2}
buffer_store_dwordx4 {rng(yg,4)}, v{vYst}, s[28:31], s{sYst} offen sc1""")
    else:
        a(f"v_mov_b32 v{E8+3}, s{sTag}\nv_mov_b32 v{E8+7}, s{sTag}\ns_nop 4")
        for tp in range(2):
            a(f"""v_perm_b32 v{yg+4*tp}, v{y+4*tp}, v{y+4*tp+3}, s{sP0}
v_perm_b32 v{yg+4*tp+1}, v{y+4*tp+1}, v{y+4*tp+3}, s{sP1}
v_perm_b32 v{yg+4*tp+2}, v{y+4*tp+2}, v{y+4*tp+3}, s{sP2}
buffer_store_dwordx4 {rng(yg+4*tp,4)}, v{vYst}, s[28:31], s{sYst} offen offset:{tp*64} sc1""")
    setflag(F_YI)
    ST_("y published")
    waitflags(group=F_YI)
    if not noflush:
        for x_ in QFL + OFL: a(x_)
    if dirty:
        a(f"s_lshl_b32 s{sT}, s2, 2\ns_add_u32 s{sT}, s{sT}, {W}\ns_mul_i32 s{sT}, s{sT}, {dirty*1024}\ns_add_u32 s{sT}, s{sT}, 0x800000\nv_lshlrev_b32 v{t0}, 4, v{l}")
        for i in range(dirty):
            a(f"buffer_store_dwordx4 {rng(C32,4)}, v{t0}, s[28:31], s{sT} offen\ns_add_u32 s{sT}, s{sT}, 1024")
    z = C32 + 24
    fg = C32 + 16
    FM = {0: ' sc1', 1: ' sc1 nt', 2: ' sc0 sc1', 3: ' sc0 sc1 nt'}[fmode]
    a(f"""s_cmp_lg_u32 {W}, 0
s_cbranch_scc1 L_fin
L_fpoll:
buffer_load_dwordx4 {rng(fg,4)}, v{vFG}, s[28:31], s{sFG} offen{FM}
buffer_load_dwordx4 {rng(fg+4,4)}, v{vFG}, s[28:31], s{sT2} offen{FM}
s_waitcnt vmcnt(0)
v_cmp_ne_u32 vcc, s{sTag}, v{fg+3}
v_cmp_ne_u32 s[{sa_tmp}:{sa_tmp+1}], s{sTag}, v{fg+7}
s_or_b64 vcc, vcc, s[{sa_tmp}:{sa_tmp+1}]
s_cbranch_vccz L_fok
{('s_sleep ' + str(fsleep)) if fsleep else 's_nop 0'}
s_sub_u32 s{sCnt}, s{sCnt}, 1
s_cbranch_scc0 L_fpoll
L_fok:""")
    ST_("final gathered")
    a(f"""
v_perm_b32 v{z+3}, v{fg}, v{fg+1}, s{sU0}
v_perm_b32 v{z+7}, v{fg+4}, v{fg+5}, s{sU0}
v_add_f32 v{z}, v{fg}, v{fg+4}
v_perm_b32 v{z+3}, v{z+3}, v{fg+2}, s{sU1}
v_perm_b32 v{z+7}, v{z+7}, v{fg+6}, s{sU1}
v_add_f32 v{z+1}, v{fg+1}, v{fg+5}
v_add_f32 v{z+2}, v{fg+2}, v{fg+6}
v_add_f32 v{z+3}, v{z+3}, v{z+7}
""")
    for ctl in ("quad_perm:[2,3,0,1]", "row_ror:4", "row_ror:8"):
        for r in range(4):
            a(f"v_add_f32_dpp v{z+r}, v{z+r}, v{z+r} {ctl} row_mask:0xf bank_mask:0xf")
    a(f"""
s_nop 0
v_permlane16_swap_b32 v{z}, v{z+1}
v_permlane16_swap_b32 v{z+2}, v{z+3}
s_nop 0
v_add_f32 v{z}, v{z}, v{z+1}
v_add_f32 v{z+2}, v{z+2}, v{z+3}
s_nop 1
v_permlane32_swap_b32 v{z}, v{z+2}
s_nop 0
v_add_f32 v{z}, v{z}, v{z+2}
v_cvt_pk_bf16_f32 v{z}, v{z}, v{z}
buffer_store_short v{z}, v{vOut}, s[32:35], 0 offen
s_cmp_lg_u32 s2, 0
s_cbranch_scc1 L_fin
v_mov_b32 v{t0}, s{sTag}
v_mov_b32 v{t1}, {WSB}
s_mov_b64 exec, 1
buffer_store_dword v{t0}, v{t1}, s[28:31], 0 offen sc1
s_mov_b64 exec, -1
L_fin:
""")
    a("s_branch L_tail" if stamp else "s_endpgm")
    for name, c in cold:
        for x_ in c: a(x_)
    a("; WARM_END")
    for c in colder:
        for x_ in c: a(x_)
    a("L_tail:")
    if stamp:
        a(f"s_mov_b32 s31, 0x20000\ns_mov_b32 s30, {WS_BYTES}")
    if amp >= 0:
        ST_("end")
        e = nst[0] - 1
        a(f"""
s_waitcnt lgkmcnt(0)
s_cmp_lg_u32 {W}, {ampw}
s_cbranch_scc1 L_end
""")
        if ampglob:
            a(f"""
s_lshl_b32 s37, s2, 3
s_add_u32 s37, s37, {ST}
v_mov_b32 v{C32}, s{SB}
v_mov_b32 v{C32+1}, s{sTag}
v_mov_b32 v{t1}, 0
s_mov_b64 exec, 1
buffer_store_dwordx2 v[{C32}:{C32+1}], v{t1}, s[28:31], s37 offen sc1
s_mov_b64 exec, -1
""")
        a(f"""
s_cmp_lg_u32 s2, 0
s_cbranch_scc1 L_end
""")
        OP, OPD, SOP = ('v_add_u32', 'v_add_u32_dpp', 's_add_i32') if ampglob == 2 else ('v_min_i32', 'v_min_i32_dpp', 's_min_i32')
        SHR = 's_ashr_i32 s36, s36, 8' if ampglob == 2 else 's_nop 0'
        if ampglob:
            a(f"""
s_mov_b32 s37, {ST}
v_lshlrev_b32 v{t1}, 5, v{l}
L_ag:
buffer_load_dwordx4 v[{C32}:{C32+3}], v{t1}, s[28:31], s37 offen sc1
buffer_load_dwordx4 v[{C32+4}:{C32+7}], v{t1}, s[28:31], s37 offen offset:16 sc1
s_waitcnt vmcnt(0)
v_cmp_ne_u32 vcc, s{sTag}, v{C32+1}
v_cmp_ne_u32 s[40:41], s{sTag}, v{C32+3}
s_or_b64 vcc, vcc, s[40:41]
v_cmp_ne_u32 s[40:41], s{sTag}, v{C32+5}
s_or_b64 vcc, vcc, s[40:41]
v_cmp_ne_u32 s[40:41], s{sTag}, v{C32+7}
s_or_b64 vcc, vcc, s[40:41]
s_cbranch_vccnz L_ag
v_subrev_u32 v{C32}, s{SB}, v{C32}
v_subrev_u32 v{C32+2}, s{SB}, v{C32+2}
v_subrev_u32 v{C32+4}, s{SB}, v{C32+4}
v_subrev_u32 v{C32+6}, s{SB}, v{C32+6}
{OP} v{C32}, v{C32}, v{C32+2}
{OP} v{C32+4}, v{C32+4}, v{C32+6}
{OP} v{C32}, v{C32}, v{C32+4}
s_nop 1
{OPD} v{C32}, v{C32}, v{C32} row_ror:1 row_mask:0xf bank_mask:0xf
s_nop 1
{OPD} v{C32}, v{C32}, v{C32} row_ror:2 row_mask:0xf bank_mask:0xf
s_nop 1
{OPD} v{C32}, v{C32}, v{C32} row_ror:4 row_mask:0xf bank_mask:0xf
s_nop 1
{OPD} v{C32}, v{C32}, v{C32} row_ror:8 row_mask:0xf bank_mask:0xf
s_nop 1
v_readlane_b32 s36, v{C32}, 0
v_readlane_b32 s37, v{C32}, 16
v_readlane_b32 s38, v{C32}, 32
v_readlane_b32 s39, v{C32}, 48
s_nop 3
{SOP} s36, s36, s37
{SOP} s38, s38, s39
{SOP} s36, s36, s38
{SHR}
s_sub_u32 s37, s{SB+2*amp}, s{SB}
s_sub_u32 s37, s37, s36
s_memrealtime s[40:41]
s_waitcnt lgkmcnt(0)
s_mul_i32 s37, s37, {ampk}
s_add_u32 s37, s37, s40
""")
        else:
            a(f"""
s_sub_u32 s37, s{SB+2*amp}, s{SB+2*ampj}
s_mul_i32 s37, s37, {ampk}
s_add_u32 s37, s37, s{SB+2*e}
""")
        a(f"""
L_amp:
s_memrealtime s[40:41]
s_waitcnt lgkmcnt(0)
s_cmp_lt_u32 s40, s37
s_cbranch_scc1 L_amp
""")
    elif stamp:
        ST_("end")
        if stamp == 2:
            a("s_waitcnt vmcnt(0)")
            ST_("end2")
        n = nst[0]
        a(f"""
s_waitcnt lgkmcnt(0) vmcnt(0)
s_mul_i32 s4, s2, 8
s_add_u32 s4, s4, s3
s_lshl_b32 s4, s4, 6
s_add_u32 s4, s4, {ST}
v_mov_b32 v{t1}, 0
s_mov_b64 exec, 1
""")
        for i in range(n):
            a(f"v_mov_b32 v{t0}, s{SB+2*i}\nbuffer_store_dword v{t0}, v{t1}, s[28:31], s4 offen offset:{4*i}\ns_nop 0")
    a("L_end:\ns_endpgm")
    lines = a.L
    nh = 0
    if warm:
        if warml: lines, nh, have = hops.insert_multi(lines, nparts, [("; LWARM_START", "; LWARM_END"), ("; WARM_START", "; WARM_END")])
        else: lines, nh, have = hops.insert(lines, nparts)
        assert have == nparts, (have, nparts)
    body = "\n".join(lines) + "\n"
    assert (not stamp) or (sa.hi <= SB and ls.hi <= SB), (sa.hi, ls.hi)
    nv = max(va.hi, lv.hi)
    s = header([f"; @launch grid=(256,1,1) block=(320,1,1) lds={LDS_BYTES}"], DOC) + kernel_begin(KNAME) + body + RODATA + descriptor(KNAME, nv, 102 if stamp else max(sa.hi, ls.hi))
    errs = haz.check(body)
    for e in errs: print("HAZ", e)
    return s, nv, sa.hi, nh, stn
if __name__ == "__main__":
    out = sys.argv[1]
    kw = {}
    for x in sys.argv[2:]:
        k, v = x.split("=")
        if k in ("warm", "prio", "holdwo", "rot", "rotq", "ilv", "ycoal", "xnt", "xfirst", "pvp"): kw[k] = (v == "1")
        elif k == "nt": kw[k] = (" " + v if v else "")
        else: kw[k] = int(v)
    s, nv, ns, nh, stn = gen(**kw)
    open(out, "w").write(s)
    print("vgprs", nv, "sgprs", ns, "hops", nh, "lds", LDS_BYTES, stn)
```

```python
import sys, struct
sys.path.insert(0, "my")
from ag import *
import haz, hops

import os
WSB = int(os.environ.get('WSB', '0'), 0)
QF = WSB + 0x10000
OF = WSB + 0x80000
OX = WSB + 0x100000
SOFF = 0x200000
ST = 0x400000
WS_BYTES = 268435456
QL = 0
PL = QL + 1280
SL = PL + 1024
OL = SL + 64
FL = 3136
JK = FL + 160
XL = 3840; WQ = XL + 1024; KL = WQ + 16384; VL = KL + 32768
import os
if os.environ.get('ALIAS', '0') == '1':
    WO = WQ; LDS_BYTES = VL + 32768
else:
    WO = VL + 32768; LDS_BYTES = WO + 16384
assert OL + 768 <= FL and JK + 416 <= XL and XL % 256 == 0 and WQ % 256 == 0
F_Q, F_P, F_O, F_GI, F_QI, F_GOK, F_OI, F_YI, F_GO, F_K, F_V, F_W = 0, 16, 32, 48, 64, 80, 96, 112, 128, 132, 136, 140
CSC = 0.08838834764831845 * 1.4426950408889634
def f32(x): return "0x%08x" % struct.unpack("<I", struct.pack("<f", x))[0]
DOC = """;
; Sliding-window GQA decode (q-proj -> attention over the last 1024 keys -> out-proj), one launch.
; Wave 4 = loader: streams wq/x/K/V/wo tiles HBM -> LDS with LDS-DMA (nt), a bounded number in flight.
; Hand-offs between workgroups: 16-byte granules {payload, tag} in d_ws; tag = LCG(epoch word read from d_ws at entry),
; first copy alternates with the second, so the result does not depend on placement.  Step 7 uses sc1 only.
; Intra-workgroup hand-offs use LDS flag words.  The s_cbranch_execz chain (L_hopN) is only walked with EXEC = 0 by
; the idle compute waves at start to pull the code into the instruction cache; it is never taken otherwise.
"""
class V:
    def __init__(s, n=0): s.n = n; s.hi = n
    def __call__(s, cnt=1, align=1):
        s.n = (s.n + align - 1) // align * align
        r = s.n; s.n += cnt; s.hi = max(s.hi, s.n)
        return r
def rng(r, n): return f"v[{r}:{r+n-1}]"
OOB = "0x7ffffff0"

def gen(stamp=False, nt=" nt", hold=0, kx=32, nmid=32, lgo=60, holdwo=False, rot=True, rotq=True, fd=1, warm2=0, wstride=128, rot1k=0, shift=0, lshift=0, compact=0, b0e=0, gmin=0, warml=0, fmode=0, pvp=True, lwo=0, fsleep=0, nooi=0, n1p=0, noflush=0, sameS=0, dirty=0, cqx=0, xnt=False, xfirst=False, ilv=True, ycoal=True, wthr=2000, n3=0, n2=0, N=24, spin=100000, nf=64, amp=-1, ampk=10, ampglob=0, ampmin=0, ampj=0, ampw=0, warm=True, pt=1, nparts=4, prio=True, step=2):
    if amp >= 0: stamp = 2 if ampmin else True
    a = A(); va = V(1); sa = V(36)
    l = va(); t0 = va(); t1 = va(); t2 = va(); t3 = va()
    nst = [0]; stn = []
    SB = 74 if (pt == 12 or gmin) else 72
    def ST_(label):
        if stamp and (stamp != 2 or label in ('entry', 'end', 'end2')):
            i = nst[0]; nst[0] += 1; stn.append(label)
            assert i < (14 if (pt == 12 or gmin) else 15)
            a(f"s_memrealtime s[{SB+2*i}:{SB+1+2*i}]")
    W, G, R, B, C = "s3", "s4", "s5", "s6", "s7"
    sT = sa(); sT2 = sa(); sWin = sa()
    ST_("entry")
    if compact:
        a(f"""
s_cmp_ge_u32 s2, 256
s_cbranch_scc1 L_end
s_load_dwordx2 s[20:21], s[0:1], 24
s_load_dwordx2 s[8:9], s[0:1], 0
s_load_dwordx2 s[12:13], s[0:1], 8
""")
        if stamp: a("s_load_dwordx2 s[28:29], s[0:1], 56\ns_load_dwordx2 s[32:33], s[0:1], 40")
    else:
        a(f"""
s_cmp_ge_u32 s2, 256
s_cbranch_scc1 L_end
s_load_dwordx2 s[20:21], s[0:1], 24
s_load_dwordx2 s[8:9], s[0:1], 0
s_load_dwordx2 s[12:13], s[0:1], 8
s_load_dwordx2 s[28:29], s[0:1], 56
s_load_dwordx2 s[16:17], s[0:1], 16
s_load_dwordx2 s[24:25], s[0:1], 32
s_load_dwordx2 s[32:33], s[0:1], 40
""")
    a(f"""
v_lshrrev_b32 v{t0}, 6, v0
v_and_b32 v{l}, 63, v0
s_and_b32 {G}, s2, 7
v_readfirstlane_b32 {W}, v{t0}
s_lshr_b32 {R}, s2, 3
s_lshr_b32 {B}, {R}, 3
s_and_b32 {C}, {R}, 7
s_mov_b32 s23, 0x20000
v_lshrrev_b32 v{t0}, 4, v{l}
v_and_b32 v{t1}, 15, v{l}
""")
    if stamp: a(f"s_mov_b32 s31, s23\ns_mov_b32 s30, {WS_BYTES}\ns_mov_b32 s35, s23\ns_movk_i32 s34, 0x1000")
    a(f"""
s_cmp_lt_u32 {W}, 4
s_cbranch_scc1 L_compute
""")
    for _ in range(lshift // 4): a("s_nop 0")
    lv = V(va.n); ls = V(sa.n)
    vWQ = lv(2); vX = lv(); vK = lv(4); vV = lv(2); vWO = lv(2); vLF = lv(); vOne = lv()
    sWQ = ls(); sX = ls(); sK = ls(); sWO = ls(); lT = ls(); sWQb0 = ls()
    sRho = ls(); sJ = ls(); sC1 = ls(); sC2 = ls(); sR = ls(); sM = ls()
    if prio: a("s_setprio 2")
    if compact:
        assert kx == 32 and n1p == 24 and b0e and ilv and rot
        a(f"""
s_mov_b32 s22, 0x400000
v_and_b32 v{t2}, 7, v{l}
v_lshlrev_b32 v{t3}, 1, v{t0}
v_and_b32 v{vX}, 2, v{t3}
v_xor_b32 v{t2}, v{t2}, v{vX}
v_lshlrev_b32 v{t2}, 4, v{t2}
v_lshrrev_b32 v{vX}, 3, v{l}
v_lshl_add_u32 v{vWQ}, v{vX}, 13, v{t2}
v_xor_b32 v{vWQ+1}, 64, v{vWQ}
s_lshl_b32 s{sWQb0}, {G}, 3
s_add_u32 s{sWQb0}, s{sWQb0}, {C}
s_lshl_b32 s{sWQb0}, s{sWQb0}, 7
s_lshl_b32 s{lT}, {B}, 20
s_add_u32 s{sWQb0}, s{sWQb0}, s{lT}
s_mov_b32 s{sC1}, 64512
s_mov_b32 s{sC2}, 0xc0000
s_lshl_b32 s{sR}, {B}, 18
s_mov_b32 s{sM}, s{sR}
s_add_u32 s{sWQ}, s{sWQb0}, s{sR}
s_lshr_b32 s{lT}, s{sR}, 6
s_add_u32 m0, s{lT}, {WQ}
s_waitcnt lgkmcnt(0)
L_lwq:
buffer_load_dwordx4 v{vWQ}, s[20:23], s{sWQ} offen{nt} lds
s_add_u32 s{sWQ}, s{sWQ}, s{sC1}
buffer_load_dwordx4 v{vWQ+1}, s[20:23], s{sWQ} offen offset:1024{nt} lds
s_add_u32 s{sWQ}, s{sWQ}, s{sC1}
buffer_load_dwordx4 v{vWQ}, s[20:23], s{sWQ} offen offset:2048{nt} lds
s_add_u32 s{sWQ}, s{sWQ}, s{sC1}
buffer_load_dwordx4 v{vWQ+1}, s[20:23], s{sWQ} offen offset:3072{nt} lds
s_add_u32 s{sR}, s{sR}, 0x40000
s_and_b32 s{sR}, s{sR}, s{sC2}
s_add_u32 s{sWQ}, s{sWQb0}, s{sR}
s_lshr_b32 s{lT}, s{sR}, 6
s_add_u32 m0, s{lT}, {WQ}
s_cmp_lg_u32 s{sR}, s{sM}
s_cbranch_scc1 L_lwq
s_mov_b32 s11, s23
s_movk_i32 s10, 0x1000
v_lshlrev_b32 v{t2}, 2, v{t0}
v_xor_b32 v{t2}, v{t1}, v{t2}
v_lshlrev_b32 v{t2}, 4, v{t2}
v_lshl_add_u32 v{vX}, v{t0}, 10, v{t2}
s_lshl_b32 s{sX}, {B}, 8
s_movk_i32 m0, {XL}
s_load_dwordx2 s[16:17], s[0:1], 16
buffer_load_dwordx4 v{vX}, s[8:11], s{sX} offen lds
s_load_dwordx2 s[24:25], s[0:1], 32
""")
        ST_("L: wq issued")
        a(f"""
s_mov_b32 s15, s23
s_mov_b32 s14, 0x2000000
v_xor_b32 v{t2}, v{t1}, v{t0}
v_lshlrev_b32 v{t2}, 4, v{t2}
v_lshl_add_u32 v{vK}, v{t0}, 8, v{t2}
v_xor_b32 v{vK+1}, 64, v{vK}
v_xor_b32 v{vK+2}, 0x80, v{vK}
v_xor_b32 v{vK+3}, 0xc0, v{vK}
s_lshl_b32 s{sWin}, {B}, 3
s_add_u32 s{sWin}, s{sWin}, {G}
s_lshl_b32 s{sWin}, s{sWin}, 5
s_add_u32 s{sWin}, s{sWin}, 24
s_lshl_b32 s{sWin}, s{sWin}, 3
s_add_u32 s{sWin}, s{sWin}, {C}
s_lshl_b32 s{sWin}, s{sWin}, 12
s_lshl_b32 s{sRho}, {B}, 1
s_add_u32 s{sRho}, s{sRho}, {G}
s_and_b32 s{sRho}, s{sRho}, 7
s_lshl_b32 s{sRho}, s{sRho}, 12
s_lshl_b32 s{sR}, s{sRho}, 3
s_mov_b32 s{sM}, 0x38000
s_movk_i32 m0, {KL}
L_lk:
s_add_u32 s{sK}, s{sWin}, s{sR}
s_waitcnt vmcnt({n1p - 1})
buffer_load_dwordx4 v{vK}, s[12:15], s{sK} offen{nt} lds
s_waitcnt vmcnt({n1p - 1})
buffer_load_dwordx4 v{vK+1}, s[12:15], s{sK} offen offset:1024{nt} lds
s_waitcnt vmcnt({n1p - 1})
buffer_load_dwordx4 v{vK+2}, s[12:15], s{sK} offen offset:2048{nt} lds
s_waitcnt vmcnt({n1p - 1})
buffer_load_dwordx4 v{vK+3}, s[12:15], s{sK} offen offset:3072{nt} lds
s_add_u32 s{sR}, s{sR}, 0x8000
s_and_b32 s{sR}, s{sR}, s{sM}
s_addk_i32 m0, 0x1000
s_cmp_lg_u32 m0, {KL + 6*4096}
s_cbranch_scc1 L_lk1
s_waitcnt vmcnt({n1p - 1})
s_barrier
L_lk1:
s_cmp_lg_u32 m0, {KL + 8*4096}
s_cbranch_scc1 L_lk
v_lshlrev_b32 v{t2}, 2, v{l}
v_add_u32 v{t2}, {JK}, v{t2}
v_cmp_eq_u32 vcc, 0, v{l}
v_mov_b32 v{vLF}, {FL}
v_mov_b32 v{vOne}, 1
v_cndmask_b32 v{vLF}, v{t2}, v{vLF}, vcc
""")
    else:
        a(f"""
s_mov_b32 s22, 0x400000
v_and_b32 v{t2}, 7, v{l}
v_lshlrev_b32 v{t3}, 1, v{t0}
v_and_b32 v{vX}, 2, v{t3}
v_xor_b32 v{t2}, v{t2}, v{vX}
v_lshlrev_b32 v{t2}, 4, v{t2}
v_lshrrev_b32 v{vX}, 3, v{l}
v_lshl_add_u32 v{vWQ}, v{vX}, 13, v{t2}
v_xor_b32 v{vWQ+1}, 64, v{vWQ}
s_lshl_b32 s{sWQb0}, {G}, 3
s_xor_b32 s{lT}, {C}, {cqx}
s_add_u32 s{sWQb0}, s{sWQb0}, s{lT}
s_lshl_b32 s{sWQb0}, s{sWQb0}, 7
s_lshl_b32 s{lT}, {B}, 20
s_add_u32 s{sWQb0}, s{sWQb0}, s{lT}
s_mov_b32 s11, s23
s_movk_i32 s10, 0x1000
s_mov_b32 s15, s23
s_mov_b32 s14, 0x2000000
; x voffset: (l>>4)*1024 + ((l&15) ^ (4*(l>>4)))*16
v_lshlrev_b32 v{t2}, 2, v{t0}
v_xor_b32 v{t2}, v{t1}, v{t2}
v_lshlrev_b32 v{t2}, 4, v{t2}
v_lshl_add_u32 v{vX}, v{t0}, 10, v{t2}
s_lshl_b32 s{sX}, {B}, 8
""")
    seq = []
    sWQb = sWQb0
    for i in range(16):
        pre = []
        if i % 4 == 0:
            j_ = i // 4
            if rotq:
                pre += [f"s_add_u32 s{sJ}, {B}, {j_}", f"s_and_b32 s{sJ}, s{sJ}, 3", f"s_lshl_b32 s{lT}, s{sJ}, 18", f"s_add_u32 s{sWQ}, s{sWQb}, s{lT}",
                        f"s_lshl_b32 s{lT}, s{sJ}, 12", f"s_add_u32 m0, s{lT}, {WQ}"]
            else:
                pre += [f"s_add_u32 s{sWQ}, s{sWQb}, {j_ << 18}", f"s_mov_b32 m0, {WQ + j_*4096}"]
            pre.append("s_nop 0")
        else:
            pre.append(f"s_add_u32 s{sWQ}, s{sWQ}, {65536 - 1024}")
        seq.append((pre, f"buffer_load_dwordx4 v{vWQ + (i & 1)}, s[20:23], s{sWQ} offen offset:{(i%4)*1024}{nt} lds"))
    seq.append(([f"s_movk_i32 m0, {XL}", "s_nop 0"], f"buffer_load_dwordx4 v{vX}, s[8:11], s{sX} offen{' nt' if xnt else ''} lds"))
    if xfirst: seq.insert(0, seq.pop())
    kpre = f"""; K voffsets: (l>>4)*256 + ((l&15)^(l>>4))*16  ^ (64*i)
v_xor_b32 v{t2}, v{t1}, v{t0}
v_lshlrev_b32 v{t2}, 4, v{t2}
v_lshl_add_u32 v{vK}, v{t0}, 8, v{t2}
v_xor_b32 v{vK+1}, 64, v{vK}
v_xor_b32 v{vK+2}, 0x80, v{vK}
v_xor_b32 v{vK+3}, 0xc0, v{vK}
; flag address vgpr: lane0 -> FL, else JK + 4*l
v_lshlrev_b32 v{t2}, 2, v{l}
v_add_u32 v{t2}, {JK}, v{t2}
v_cmp_eq_u32 vcc, 0, v{l}
v_mov_b32 v{vLF}, {FL}
v_mov_b32 v{vOne}, 1
v_cndmask_b32 v{vLF}, v{t2}, v{vLF}, vcc
; window base = (b*8+g)<<20 + 3072*256 + c*(32768 or 4096)
s_lshl_b32 s{sWin}, {B}, 3
s_add_u32 s{sWin}, s{sWin}, {G}
s_lshl_b32 s{sWin}, s{sWin}, 5
s_add_u32 s{sWin}, s{sWin}, 24
s_lshl_b32 s{sWin}, s{sWin}, 15
s_lshl_b32 s{sJ}, {C}, {12 if ilv else 15}
s_add_u32 s{sWin}, s{sWin}, s{sJ}
; rho*4096 : rho = (g + 2b) & 7   (rot1k: rho1*1024, rho1 = (b*8 + g)*M & 31)
s_lshl_b32 s{sRho}, {B}, {3 if rot1k else 1}
s_add_u32 s{sRho}, s{sRho}, {G}
s_mul_i32 s{sRho}, s{sRho}, {rot1k if rot1k else 1}
s_and_b32 s{sRho}, s{sRho}, {(31 if rot1k else 7) if rot else 0}
s_lshl_b32 s{sRho}, s{sRho}, {10 if rot1k else 12}""".split("\n")
    def grp(j_, ldsbase):
        if ilv:
            return [f"s_add_u32 s{sJ}, s{sRho}, {j_*4096}", f"s_and_b32 s{sJ}, s{sJ}, 0x7fff", f"s_mov_b32 m0, {ldsbase + j_*4096}", f"s_lshl_b32 s{sJ}, s{sJ}, 3", f"s_add_u32 s{sK}, s{sWin}, s{sJ}"]
        return [f"s_add_u32 s{sJ}, s{sRho}, {j_*4096}", f"s_and_b32 s{sJ}, s{sJ}, 0x7fff", f"s_add_u32 m0, s{sJ}, {ldsbase}", f"s_add_u32 s{sK}, s{sWin}, s{sJ}"]
    def fine(i, ldsbase):
        pre = []
        if i % 4 == 0: pre.append(f"s_mov_b32 m0, {ldsbase + i*1024}")
        pre += [f"s_add_u32 s{sJ}, s{sRho}, {i*1024}", f"s_and_b32 s{sJ}, s{sJ}, 0x7fff", f"s_add_u32 s{sK}, s{sWin}, s{sJ}"]
        if i % 4: pre.append(f"s_sub_u32 s{sK}, s{sK}, {(i%4)*1024}")
        return pre
    for i in range(32):
        pre = list(kpre) if i == 0 else []
        if rot1k: pre += fine(i, KL)
        elif i % 4 == 0: pre += grp(i // 4, KL)
        seq.append((pre, f"buffer_load_dwordx4 v{vK+i%4}, s[12:15], s{sK} offen offset:{(i%4)*1024}{nt} lds"))
    vpre = f"""s_mov_b32 s19, s23
s_mov_b32 s18, s14
; V voffset: (l>>4)*256 + ((l&15) ^ ((l>>4)<<1))*16 ; odd: ^128 ; WO: (l>>4)*1024 + same piece
v_xor_b32 v{t2}, v{t1}, v{t3}
v_lshlrev_b32 v{t2}, 4, v{t2}
v_lshl_add_u32 v{vV}, v{t0}, 8, v{t2}
v_xor_b32 v{vV+1}, 0x80, v{vV}
v_lshl_add_u32 v{vWO}, v{t0}, 10, v{t2}
v_xor_b32 v{vWO+1}, 0x80, v{vWO}
s_mov_b32 s27, s23
s_mov_b32 s26, s22
; WO soff = p<<16 + cg*256 ; p = g*8 + r/4 ; cg = r&3
s_lshr_b32 s{lT}, {R}, 2
s_lshl_b32 s{sWO}, {G}, 3
s_add_u32 s{sWO}, s{sWO}, s{lT}
s_lshl_b32 s{sWO}, s{sWO}, 8
s_and_b32 s{lT}, {R}, 3
s_add_u32 s{sWO}, s{sWO}, s{lT}
s_lshl_b32 s{sWO}, s{sWO}, 8""".split("\n")
    for i in range(32):
        pre = list(vpre) if i == 0 else []
        if rot1k: pre += fine(i, VL)
        elif i % 4 == 0: pre += grp(i // 4, VL)
        seq.append((pre, f"buffer_load_dwordx4 v{vV+(i&1)}, s[16:19], s{sK} offen offset:{(i%4)*1024}{nt} lds"))
    for i in range(16):
        pre = []
        if i == 0: pre += [f"s_mov_b32 m0, {WO}", "s_nop 0"]
        elif i % 4 == 0: pre.append("s_add_u32 m0, m0, 4096")
        if i: pre.append(f"s_add_u32 s{sWO}, s{sWO}, {4096 - 1024 if i % 4 else 4096 + 3072}")
        seq.append((pre, f"buffer_load_dwordx4 v{vWO+((i>>1)&1)}, s[24:27], s{sWO} offen offset:{(i%4)*1024}{nt} lds"))
    T = len(seq); assert T == 97
    def emit(k):
        pre, ld = seq[k]
        for p in pre: a(p)
        a(ld)
    n0 = 17 + kx
    b0done = False
    if compact:
        b0done = True
    else:
        for p in seq[0][0]: a(p)
        a("s_waitcnt lgkmcnt(0)")
        a(seq[0][1])
        for k in range(1, 17): emit(k)
        ST_("L: wq issued")
        if warml == 2: a("; LWARM_START")
        pre17, ld17 = seq[17]
        for p in pre17: a(p)
        if kx > 0:
            if hold: a(f"s_waitcnt vmcnt({17 - hold})")
            a(ld17)
            for k in range(18, n0):
                if n1p and k >= n1p: a(f"s_waitcnt vmcnt({n1p - 1})")
                if b0e and n1p and not b0done and k - (n1p - 1) >= 17:
                    a("s_barrier"); b0done = True
                emit(k)
        else:
            seq[17] = ([], ld17)
    ST_("L: K issued")
    if warml == 1: a("; LWARM_START")
    lfl = lv(4, 4)
    a(f"v_mov_b32 v{t2}, {FL}")
    if not (b0e and kx > 0 and b0done): a(f"s_waitcnt vmcnt({n0 - 17})\ns_barrier")
    ST_("L: wq landed")
    def lwait(name, off):
        a(f"""L_{name}:
ds_read_b128 v[{lfl}:{lfl+3}], v{t2} offset:{off}
s_waitcnt lgkmcnt(0)
v_and_b32 v{lfl}, v{lfl}, v{lfl+1}
v_and_b32 v{lfl+2}, v{lfl+2}, v{lfl+3}
v_and_b32 v{lfl}, v{lfl}, v{lfl+2}
v_cmp_eq_u32 vcc, 0, v{lfl}
s_cbranch_vccnz L_{name}""")
    vFA = lv()
    a(f"v_mov_b32 v{vFA}, {FL}")
    def lwait(name, off):
        a(f"""L_{name}:
ds_read_b128 v[{lfl}:{lfl+3}], v{vFA} offset:{off}
s_waitcnt lgkmcnt(0)
v_and_b32 v{lfl}, v{lfl}, v{lfl+1}
v_and_b32 v{lfl+2}, v{lfl+2}, v{lfl+3}
v_and_b32 v{lfl}, v{lfl}, v{lfl+2}
v_cmp_eq_u32 vcc, 0, v{lfl}
s_cbranch_vccnz L_{name}""")
    lwait("qi", F_QI)
    n1 = 49 + nmid
    for k in range(n0, n1):
        if n2: a(f"s_waitcnt vmcnt({n2 - 1})")
        emit(k)
    assert lgo <= n1 and n1 <= T
    a(f"s_waitcnt vmcnt({n1 - lgo})")
    a(f"ds_write_b32 v{vLF}, v{vOne} offset:{F_GO}")
    lwait("gi", F_GI)
    for k in range(n1, T):
        if k == 81 and holdwo: lwait("gok", F_GOK)
        if k == 81 and lwo: a(f"s_waitcnt vmcnt({81 - lwo})")
        if n3: a(f"s_waitcnt vmcnt({n3 - 1})")
        emit(k)
    if lgo < 49: a(f"s_waitcnt vmcnt({T - 49})\nds_write_b32 v{vLF}, v{vOne} offset:{F_K}")
    F_V1 = F_GOK
    tailev = ([(49 + nmid, F_V1)] if pvp else []) + [(81, F_V), (97, F_W)]
    for cnt, f in tailev:
        a(f"s_waitcnt vmcnt({T - cnt})\nds_write_b32 v{vLF}, v{vOne} offset:{f}")
    ST_("L: all landed")
    if warml: a("; LWARM_END")
    if stamp: a("s_branch L_fin")
    else: a("s_endpgm")
    for _ in range(shift // 4): a("s_nop 0")
    a("L_compute:")
    if compact:
        if not stamp: a("s_load_dwordx2 s[28:29], s[0:1], 56\ns_load_dwordx2 s[32:33], s[0:1], 40")
    g = va(); n16 = va(); n4 = va()
    sQB = sa(); sOB = sa(); sEp = sa(); sTag = sa(); vPT = va()
    a(f"""
s_mov_b32 s31, s23
s_mov_b32 s30, {WS_BYTES}
s_mov_b32 s35, s23
s_movk_i32 s34, 0x1000
s_lshl_b32 s{sQB}, {G}, 4
s_add_u32 s{sQB}, s{sQB}, {B}
s_lshl_b32 s{sQB}, s{sQB}, 11
s_xor_b32 s{sT}, {C}, {cqx}
s_lshl_b32 s{sT}, s{sT}, 8
s_add_u32 s{sQB}, s{sQB}, s{sT}
s_add_u32 s{sQB}, s{sQB}, {QF}
s_lshl_b32 s{sOB}, {B}, 3
s_add_u32 s{sOB}, s{sOB}, {G}
s_lshl_b32 s{sOB}, s{sOB}, 5
s_add_u32 s{sOB}, s{sOB}, {C}
s_lshl_b32 s{sOB}, s{sOB}, 9
s_add_u32 s{sOB}, s{sOB}, {OF}
""")
    vPTa = va()
    if pt in (1, 3, 7):
        a(f"""
s_mul_i32 s{sT}, {W}, 6
v_add_u32 v{t3}, s{sT}, v{l}
v_lshrrev_b32 v{t0}, 1, v{t3}
v_lshlrev_b32 v{t0}, 13, v{t0}
v_and_b32 v{t1}, 1, v{t3}
v_lshl_or_b32 v{t0}, v{t1}, 7, v{t0}
v_add_u32 v{t0}, s{sQB}, v{t0}
v_subrev_u32 v{t1}, 8, v{t3}
v_lshrrev_b32 v{t2}, 2, v{t1}
v_lshlrev_b32 v{t2}, 12, v{t2}
v_and_b32 v{t1}, 3, v{t1}
v_lshl_or_b32 v{t2}, v{t1}, 7, v{t2}
v_add_u32 v{t2}, s{sOB}, v{t2}
v_cmp_gt_u32 vcc, 8, v{t3}
v_mov_b32 v{t3}, {OOB}
s_nop 0
v_cndmask_b32 v{t0}, v{t2}, v{t0}, vcc
v_cmp_gt_u32 vcc, 6, v{l}
s_mov_b32 s{sT}, {WSB}
s_waitcnt lgkmcnt(0)
s_load_dword s{sEp}, s[28:29], s{sT}
v_cndmask_b32 v{vPTa}, v{t3}, v{t0}, vcc
""")
        if pt != 7: a(f"buffer_load_dword v{vPT}, v{vPTa}, s[28:31], 0 offen{' nt' if pt == 3 else ''}")
    else:
        a(f"s_mov_b32 s{sT}, {WSB}\ns_waitcnt lgkmcnt(0)\ns_load_dword s{sEp}, s[28:29], s{sT}" if WSB else f"s_waitcnt lgkmcnt(0)\ns_load_dword s{sEp}, s[28:29], 0")
        if pt in (10, 11, 12):
            sD = sa(); sO1 = sa(); sO2 = sa()
            a(f"s_lshl_b32 s{sT}, {W}, 13\ns_add_u32 s{sO1}, s{sQB}, s{sT}\ns_lshl_b32 s{sT}, {W}, 12\ns_add_u32 s{sO2}, s{sOB}, s{sT}")
            stp = 128 if pt == 11 else 64
            ypt = [f"s_load_dword s{sD}, s[28:29], s{sO1} offset:{o}" for o in range(0, 256, stp)] + [f"s_load_dword s{sD}, s[28:29], s{sO2} offset:{o}" for o in range(0, 512, stp)]
            if pt == 12:
                sO3 = sT2
                sO3 = sa()
                a(f"""s_and_b32 s{sO3}, {R}, 3
s_lshl_b32 s{sO3}, s{sO3}, 6
s_lshl_b32 s{sT}, {G}, 3
s_add_u32 s{sO3}, s{sO3}, s{sT}
s_lshr_b32 s{sT}, {R}, 2
s_add_u32 s{sO3}, s{sO3}, s{sT}
s_lshl_b32 s{sO3}, s{sO3}, 2
s_add_u32 s{sO3}, s{sO3}, {W}
s_lshl_b32 s{sO3}, s{sO3}, 9
s_add_u32 s{sO3}, s{sO3}, {OX + SOFF}""")
                ypt += [f"s_load_dword s{sD}, s[28:29], s{sO3} offset:{o}" for o in range(0, 512, 64)]
        if pt in (8, 9):
            sD = sa(); sO1 = sa()
            a(f"s_lshl_b32 s{sT}, {W}, 13\ns_add_u32 s{sO1}, s{sQB}, s{sT}")
            for o in range(0, 256, 64): a(f"s_load_dword s{sD}, s[28:29], s{sO1} offset:{o}")
            a(f"s_lshl_b32 s{sT}, {W}, 12\ns_add_u32 s{sO1}, s{sOB}, s{sT}")
            for o in range(0, 512, 64): a(f"s_load_dword s{sD}, s[28:29], s{sO1} offset:{o}")
            if pt == 9:
                a(f"""s_and_b32 s{sO1}, {R}, 3
s_lshl_b32 s{sO1}, s{sO1}, 6
s_lshl_b32 s{sT}, {G}, 3
s_add_u32 s{sO1}, s{sO1}, s{sT}
s_lshr_b32 s{sT}, {R}, 2
s_add_u32 s{sO1}, s{sO1}, s{sT}
s_lshl_b32 s{sO1}, s{sO1}, 2
s_add_u32 s{sO1}, s{sO1}, {W}
s_lshl_b32 s{sO1}, s{sO1}, 9
s_add_u32 s{sO1}, s{sO1}, {OX + SOFF}""")
                ypt = [f"s_load_dword s{sD}, s[28:29], s{sO1} offset:{o}" for o in range(0, 512, 64)]
        if pt in (2, 4, 6):
            a(f"""
s_lshl_b32 s{sT}, {W}, 12
s_add_u32 s{sT}, s{sT}, s{sOB}
v_lshlrev_b32 v{t0}, 7, v{l}
v_add_u32 v{t0}, s{sT}, v{t0}
v_cmp_gt_u32 vcc, 4, v{l}
v_mov_b32 v{t3}, {OOB}
s_nop 0
v_cndmask_b32 v{vPTa}, v{t3}, v{t0}, vcc
""")
    if warm and warm2:
        if warm2 != 3:
            a("s_mov_b64 exec, 0")
            for p in range(1, nparts):
                a(f"s_cmp_eq_u32 {W}, {p}\ns_cbranch_scc1 HOPA_P{p}")
            a("s_branch HOPA_P0\nL_warm_doneA:\ns_mov_b64 exec, -1")
    elif warm:
        a("s_mov_b64 exec, 0")
        for p in range(1, nparts):
            a(f"s_cmp_eq_u32 {W}, {p}\ns_cbranch_scc1 HOP_P{p}")
        a("s_branch HOP_P0\nL_warm_done:\ns_mov_b64 exec, -1")
    a("; WARM_START")
    sP = sa(); sCG = sa(); sR4 = sa()
    vXr = va(4); vWQr = va(); vKr = va(4); vVr = va(2); vWOr = va(2)
    vQst = va(); vG = va(); sG = sa(); vQLw = va(); vQLr = va()
    vPw = va(); vPr = va(); vSw = va(); vSr = va()
    vOst = va(); vOG = va(); sOG = sa(); vOLw = va(); vOLr = va()
    vYst = va(); sYst = sa(); vFG = va(); sFG = sa(); vOut = va()
    vFw = va(); vFr = va(); vOne_c = va()
    sCsc = sa(); sP0 = sa(); sP1 = sa(); sP2 = sa(); sU0 = sa(); sU1 = sa(); sM4 = sa(2, 2); sG1 = sa(2, 2); sCnt = sa()
    a(f"""
v_lshrrev_b32 v{g}, 4, v{l}
v_and_b32 v{n16}, 15, v{l}
v_and_b32 v{n4}, 3, v{l}
v_lshlrev_b32 v{t2}, 2, v{l}
v_mov_b32 v{t3}, 0
ds_write_b32 v{t2}, v{t3} offset:{FL}
v_add_u32 v{t2}, {JK}, v{t2}
s_lshl_b32 s{sT}, {W}, 2
s_add_u32 s{sT}, s{sT}, {FL}
v_mov_b32 v{vFw}, s{sT}
v_cmp_eq_u32 vcc, 0, v{l}
v_mov_b32 v{vFr}, {FL}
v_mov_b32 v{vOne_c}, 1
v_cndmask_b32 v{vFw}, v{t2}, v{vFw}, vcc
; p = g*8 + r/4 ; cg = r&3
s_lshr_b32 s{sR4}, {R}, 2
s_lshl_b32 s{sP}, {G}, 3
s_add_u32 s{sP}, s{sP}, s{sR4}
s_and_b32 s{sCG}, {R}, 3
v_lshlrev_b32 v{t2}, 2, v{n4}
v_xor_b32 v{t2}, v{g}, v{t2}
v_lshlrev_b32 v{t2}, 4, v{t2}
v_lshl_add_u32 v{t2}, v{n4}, 8, v{t2}
v_add_u32 v{vXr}, {XL}, v{t2}
v_xor_b32 v{vXr+1}, 64, v{vXr}
v_xor_b32 v{vXr+2}, 0x80, v{vXr}
v_xor_b32 v{vXr+3}, 0xc0, v{vXr}
v_bfe_u32 v{t0}, v{l}, 2, 2
v_lshl_add_u32 v{t2}, v{g}, 3, v{t0}
v_lshlrev_b32 v{t2}, 7, v{t2}
v_lshl_add_u32 v{t2}, v{n4}, 3, v{t2}
v_lshrrev_b32 v{t3}, 1, v{t0}
v_and_b32 v{t1}, 1, v{g}
v_lshl_or_b32 v{t3}, v{t1}, 1, v{t3}
v_xor_b32 v{t3}, {W}, v{t3}
v_lshl_add_u32 v{t2}, v{t3}, 5, v{t2}
v_add_u32 v{vWQr}, {WQ}, v{t2}
s_lshl_b32 s{sT}, {W}, 13
s_add_u32 s{sT}, s{sT}, {KL}
v_xor_b32 v{t2}, v{g}, v{n16}
v_lshlrev_b32 v{t2}, 4, v{t2}
v_lshl_add_u32 v{t2}, v{n16}, 8, v{t2}
v_add_u32 v{vKr}, s{sT}, v{t2}
v_xor_b32 v{vKr+1}, 64, v{vKr}
v_xor_b32 v{vKr+2}, 0x80, v{vKr}
v_xor_b32 v{vKr+3}, 0xc0, v{vKr}
v_lshl_add_u32 v{t2}, v{g}, 2, v{t0}
v_lshlrev_b32 v{t2}, 8, v{t2}
v_lshl_add_u32 v{t2}, v{n4}, 3, v{t2}
v_lshl_or_b32 v{t3}, v{t1}, 2, v{t0}
s_lshl_b32 s{sT}, {W}, 1
v_xor_b32 v{t3}, s{sT}, v{t3}
v_lshl_add_u32 v{t2}, v{t3}, 5, v{t2}
v_add_u32 v{vVr}, {VL}, v{t2}
v_xor_b32 v{vVr+1}, 32, v{vVr}
v_lshl_add_u32 v{t2}, v{g}, 3, v{t0}
v_lshlrev_b32 v{t2}, 8, v{t2}
v_lshl_add_u32 v{t2}, v{n4}, 3, v{t2}
v_lshl_add_u32 v{t2}, v{t3}, 5, v{t2}
v_add_u32 v{vWOr}, {WO}, v{t2}
v_xor_b32 v{vWOr+1}, 32, v{vWOr}
v_cmp_gt_u32 vcc, 4, v{n16}
v_mov_b32 v{t3}, {OOB}
s_lshl_b32 s{sT}, {W}, 6
v_lshlrev_b32 v{t2}, 4, v{g}
v_add_u32 v{t0}, s{sT}, v{t2}
v_lshl_add_u32 v{t0}, v{n16}, 13, v{t0}
v_cndmask_b32 v{vQst}, v{t3}, v{t0}, vcc
s_lshl_b32 s{sT}, {W}, 7
v_add_u32 v{t2}, s{sT}, v{t2}
v_lshl_add_u32 v{t0}, v{n16}, 12, v{t2}
v_cndmask_b32 v{vOst}, v{t3}, v{t0}, vcc
v_lshl_add_u32 v{t0}, v{n16}, 9, v{t2}
v_cndmask_b32 v{vYst}, v{t3}, v{t0}, vcc
YCOAL_ADDR
v_lshrrev_b32 v{t0}, 5, v{l}
v_and_b32 v{t1}, 31, v{l}
v_lshlrev_b32 v{t2}, 4, v{t1}
v_lshl_add_u32 v{vG}, v{t0}, 12, v{t2}
s_lshl_b32 s{sG}, {G}, 2
s_add_u32 s{sG}, s{sG}, {B}
s_lshl_b32 s{sG}, s{sG}, 4
s_add_u32 s{sG}, s{sG}, {W}
s_lshl_b32 s{sG}, s{sG}, 9
s_add_u32 s{sG}, s{sG}, {QF}
s_mul_i32 s{sT}, {W}, 320
v_lshlrev_b32 v{t2}, 3, v{t1}
v_lshl_add_u32 v{t2}, v{t0}, 2, v{t2}
v_add_u32 v{vQLw}, s{sT}, v{t2}
v_mul_u32_u24 v{t2}, 320, v{n4}
v_lshl_add_u32 v{vQLr}, v{g}, 4, v{t2}
v_lshlrev_b32 v{t2}, 6, v{n4}
v_lshl_add_u32 v{vPr}, v{g}, 4, v{t2}
s_lshl_b32 s{sT}, {W}, 8
v_add_u32 v{vPw}, s{sT}, v{vPr}
v_lshlrev_b32 v{vSr}, 4, v{n4}
s_lshl_b32 s{sT}, {W}, 2
v_add_u32 v{vSw}, s{sT}, v{vSr}
v_lshlrev_b32 v{t2}, 9, v{g}
v_lshl_add_u32 v{vOG}, v{n16}, 4, v{t2}
s_lshl_b32 s{sOG}, {W}, 3
s_add_u32 s{sOG}, s{sOG}, {G}
s_lshl_b32 s{sOG}, s{sOG}, 2
s_add_u32 s{sOG}, s{sOG}, {B}
s_lshl_b32 s{sOG}, s{sOG}, 4
s_and_b32 s{sT}, s{sR4}, 1
s_add_u32 s{sOG}, s{sOG}, s{sT}
s_lshl_b32 s{sOG}, s{sOG}, 8
s_add_u32 s{sOG}, s{sOG}, {OF}
s_mul_i32 s{sT}, {W}, 192
v_lshlrev_b32 v{t2}, 3, v{n16}
v_lshl_add_u32 v{t2}, v{g}, 1, v{t2}
v_add_u32 v{vOLw}, s{sT}, v{t2}
v_mul_u32_u24 v{t2}, 192, v{n4}
v_lshl_add_u32 v{vOLr}, v{g}, 4, v{t2}
s_lshl_b32 s{sYst}, s{sCG}, 6
s_add_u32 s{sYst}, s{sYst}, s{sP}
s_lshl_b32 s{sYst}, s{sYst}, 11
s_add_u32 s{sYst}, s{sYst}, {OX + SOFF}
v_lshrrev_b32 v{t0}, 1, v{l}
v_and_b32 v{t1}, 1, v{l}
v_lshlrev_b32 v{t2}, 4, v{t1}
v_lshl_add_u32 v{vFG}, v{t0}, 11, v{t2}
s_lshl_b32 s{sFG}, s{sCG}, 12
s_add_u32 s{sFG}, s{sFG}, s{sP}
s_lshl_b32 s{sFG}, s{sFG}, 5
s_add_u32 s{sFG}, s{sFG}, {OX + SOFF}
YCOAL_OUT
v_cmp_gt_u32 vcc, 2, v{n16}
s_mov_b32 s{sCsc}, {f32(CSC)}
s_mov_b32 s{sP0}, 0x07060503
v_cndmask_b32 v{vOut}, v{t3}, v{t2}, vcc
s_mov_b32 s{sP1}, 0x07060502
s_mov_b32 s{sP2}, 0x07060501
s_mov_b32 s{sU0}, 0x04000c0c
s_mov_b32 s{sU1}, 0x0706000c
s_mov_b32 s{sM4}, 0x000f000f
s_mov_b32 s{sM4+1}, 0x000f000f
s_waitcnt lgkmcnt(0)
s_mul_i32 s{sTag}, s{sEp}, 1664525
s_add_u32 s{sTag}, s{sTag}, 1013904223
""")
    ya = f"""; coalesced y store: lanes < 32: w*512 + l*16
s_lshl_b32 s{sT}, {W}, 9
v_lshlrev_b32 v{t0}, 4, v{l}
v_add_u32 v{t0}, s{sT}, v{t0}
v_cmp_gt_u32 s[{sM4}:{sM4+1}], 32, v{l}
v_cmp_eq_u32 s[{sG1}:{sG1+1}], 1, v{g}
s_nop 0
v_cndmask_b32 v{vYst}, v{t3}, v{t0}, s[{sM4}:{sM4+1}]""" if ycoal else ""
    yo = (f"""; out voffset: g*1024 + (cg*128 + 2p' + (l&1))*2 for lanes n16<2 ; p' = p (0..63)
s_lshl_b32 s{sT}, s{sCG}, 6
s_add_u32 s{sT}, s{sT}, s{sP}
s_lshl_b32 s{sT}, s{sT}, 2
v_lshlrev_b32 v{t2}, 1, v{t1}
v_lshl_add_u32 v{t2}, v{g}, 10, v{t2}
v_add_u32 v{t2}, s{sT}, v{t2}""" if ycoal else f"""s_lshr_b32 s{sT}, s{sP}, 4
s_lshl_b32 s{sT}, s{sT}, 2
s_add_u32 s{sT}, s{sT}, s{sCG}
s_lshl_b32 s{sT}, s{sT}, 4
s_and_b32 s{sT2}, s{sP}, 15
s_add_u32 s{sT}, s{sT}, s{sT2}
s_lshl_b32 s{sT}, s{sT}, 4
v_lshlrev_b32 v{t2}, 3, v{t1}
v_lshl_add_u32 v{t2}, v{g}, 1, v{t2}
v_add_u32 v{t2}, s{sT}, v{t2}""")
    newL = []
    for ln in a.L:
        if "YCOAL_ADDR" in ln: newL += ["    " + x for x in ya.split("\n") if x]
        elif "YCOAL_OUT" in ln: newL += ["    " + x for x in yo.split("\n")]
        else: newL.append(ln)
    a.L = newL
    A32 = va(32, 4); B16 = va(16, 4); C32 = va(32, 4); E8 = va(8, 4); F8 = va(8, 4)
    ones = va(4, 4); fl = va(4, 4); fl1 = va(); QS4 = va(4, 4); OS8 = va(8, 4); sQS = sa(); sOS = sa(); sWcN = sa.n
    a(f"""
v_mov_b32 v{ones}, 0x3f803f80
v_mov_b32 v{ones+1}, 0x3f803f80
v_mov_b32 v{ones+2}, 0x3f803f80
v_mov_b32 v{ones+3}, 0x3f803f80
v_mov_b32 v{QS4+3}, s{sTag}
v_mov_b32 v{OS8+3}, s{sTag}
v_mov_b32 v{OS8+7}, s{sTag}
v_mov_b32 v{E8+3}, s{sTag}
v_mov_b32 v{E8+7}, s{sTag}
s_add_u32 s{sQS}, s{sQB}, {0 if sameS in (1, 2) else SOFF}
s_add_u32 s{sOS}, s{sOB}, {0 if sameS in (1, 3) else SOFF}
s_mov_b32 s{sCnt}, {spin}
s_movk_i32 s{sWcN}, {wthr}
""")
    if pt == 7: a(f"buffer_load_dword v{vPT}, v{vPTa}, s[28:31], 0 offen")
    lab = [0]
    def setflag(off): a(f"ds_write_b32 v{vFw}, v{vOne_c} offset:{off}")
    colder = []
    sWc = sa()
    stage = {"flush": []}
    def waitflags(group=None, single=None):
        lab[0] += 1; L = f"L_wf{lab[0]}"
        a(f"{L}:")
        if group is not None: a(f"ds_read_b128 {rng(fl,4)}, v{vFr} offset:{group}")
        if single is not None: a(f"ds_read_b32 v{fl1}, v{vFr} offset:{single}")
        a("s_waitcnt lgkmcnt(0)")
        if group is not None:
            a(f"v_min3_u32 v{fl}, v{fl}, v{fl+1}, v{fl+2}")
            if single is not None: a(f"v_min3_u32 v{fl}, v{fl}, v{fl+3}, v{fl1}")
            else: a(f"v_min_u32 v{fl}, v{fl}, v{fl+3}")
            r = fl
        else: r = fl1
        a(f"v_cmp_eq_u32 vcc, 0, v{r}\ns_cbranch_vccz {L}d\ns_sub_u32 s{sWc}, s{sWc}, 1\ns_cbranch_scc0 {L}\ns_branch {L}f\n{L}d:")
        colder.append([f"{L}f:"] + list(stage["flush"]) + [f"s_movk_i32 s{sWc}, {wthr}", f"s_branch {L}"])
    QFL = [f"buffer_store_dwordx4 {rng(QS4,4)}, v{vQst}, s[28:31], s{sQS} offen sc1"]
    OFL = [f"buffer_store_dwordx4 {rng(OS8,4)}, v{vOst}, s[28:31], s{sOS} offen sc1", f"buffer_store_dwordx4 {rng(OS8+4,4)}, v{vOst}, s[28:31], s{sOS} offen offset:64 sc1"]
    assert sWc == sWcN
    xb = A32; wa = A32 + 16; acc = C32
    a("s_waitcnt lgkmcnt(0)\ns_barrier")
    for s in range(4):
        a(f"ds_read_b128 {rng(xb+4*s,4)}, v{vXr+s}")
        a(f"ds_read_b64_tr_b16 {rng(wa+4*s,2)}, v{vWQr} offset:{s*4096}")
        a(f"ds_read_b64_tr_b16 {rng(wa+4*s+2,2)}, v{vWQr} offset:{s*4096 + 512}")
    for s in range(4):
        a(f"s_waitcnt lgkmcnt({3*(3-s)})")
        c = "0" if s == 0 else rng(acc,4)
        a(f"v_mfma_f32_16x16x32_bf16 {rng(acc,4)}, {rng(wa+4*s,4)}, {rng(xb+4*s,4)}, {c}")
    a(f"""
s_nop 7
v_perm_b32 v{QS4}, v{acc}, v{acc+3}, s{sP0}
v_perm_b32 v{QS4+1}, v{acc+1}, v{acc+3}, s{sP1}
v_perm_b32 v{QS4+2}, v{acc+2}, v{acc+3}, s{sP2}
buffer_store_dwordx4 {rng(QS4,4)}, v{vQst}, s[28:31], s{sQB} offen
""")
    setflag(F_QI)
    stage["flush"] = QFL
    if pt in (9, 10, 11, 12):
        for x_ in ypt: a(x_)
    if pt in (2, 6): a(f"buffer_load_dword v{vPT}, v{vPTa}, s[28:31], 0 offen" + (" nt" if pt == 2 else ""))
    ST_("q published")
    if warm and warm2:
        a("; WARM_MID")
        a("s_mov_b64 exec, 0")
        for p in range(1, nparts):
            a(f"s_cmp_eq_u32 {W}, {p}\ns_cbranch_scc1 HOPB_P{p}")
        a("s_branch HOPB_P0\nL_warm_doneB:\ns_mov_b64 exec, -1")
        a("; WARM_MID2")
    gq = F8
    if gmin:
        sGm = sa()
        a(f"""s_movk_i32 s{sGm}, {gmin}
L_gom:
ds_read_b32 v{fl1}, v{vFr} offset:{F_GO}
s_waitcnt lgkmcnt(0)
s_sub_u32 s{sGm}, s{sGm}, 1
s_cbranch_scc0 L_gom""")
    waitflags(single=F_GO)
    ST_("GO")
    a(f"buffer_load_dwordx4 {rng(gq,4)}, v{vG}, s[28:31], s{sG} offen sc1")
    a(f"buffer_load_dwordx4 {rng(gq+4,4)}, v{vG}, s[28:31], s{sG} offen offset:2048 sc1")
    if pt == 4: a(f"buffer_load_dword v{vPT}, v{vPTa}, s[28:31], 0 offen nt")
    if pt == 13:
        dum = va(2, 2)
        a(f"buffer_load_dword v{dum}, v{vOG}, s[28:31], s{sOG} offen sc1")
        a(f"buffer_load_dword v{dum+1}, v{vOG}, s[28:31], s{sOG} offen offset:2048 sc1")
    if pt == 14:
        dum = va(2, 2)
        a(f"buffer_load_dword v{dum}, v{vOG}, s[28:31], s{sOG} offen sc1")
        a(f"buffer_load_dword v{dum+1}, v{vOG}, s[28:31], s{sOG} offen offset:2048 sc1")
        dum2 = va(2, 2)
        a(f"s_add_u32 s{sT2}, s{sFG}, 65536")
        a(f"buffer_load_dword v{dum2}, v{vFG}, s[28:31], s{sFG} offen sc1")
        a(f"buffer_load_dword v{dum2+1}, v{vFG}, s[28:31], s{sT2} offen sc1")
    setflag(F_GI)
    ka = A32
    if lgo < 49: waitflags(single=F_K)
    for t in range(2):
        for s_ in range(4):
            a(f"ds_read_b128 {rng(ka+16*t+4*s_,4)}, v{vKr+s_} offset:{t*4096}")
    sa_tmp = sa(2, 2)
    cold = []
    def poll(name, regs, vaddr, soff, first_wait, offs, flush):
        a(f"s_waitcnt vmcnt({first_wait})\nL_{name}chk:")
        for i, r in enumerate(regs):
            if i == 0: a(f"v_cmp_ne_u32 vcc, s{sTag}, v{r+3}")
            else: a(f"v_cmp_ne_u32 s[{sa_tmp}:{sa_tmp+1}], s{sTag}, v{r+3}\ns_or_b64 vcc, vcc, s[{sa_tmp}:{sa_tmp+1}]")
        a(f"s_cbranch_vccnz L_{name}retry\nL_{name}ok:")
        c = [f"L_{name}retry:", f"s_sub_u32 s{sCnt}, s{sCnt}, 1", f"s_cbranch_scc1 L_{name}ok",
             f"s_cmp_gt_u32 s{sCnt}, {spin - nf}", f"s_cbranch_scc1 L_{name}re",
             f"s_cmp_lg_u32 s{sCnt}, {spin - nf}", f"s_cbranch_scc1 L_{name}tg"] + flush + [f"L_{name}tg:"] + ([] if (sameS == 1 or (sameS == 2 and name == "q") or (sameS == 3 and name == "o")) else [f"s_xor_b32 s{soff}, s{soff}, {SOFF}"]) + [f"L_{name}re:"]
        for r, o in zip(regs, offs):
            c.append(f"buffer_load_dwordx4 {rng(r,4)}, v{vaddr}, s[28:31], s{soff} offen offset:{o} sc1")
        c += ["s_waitcnt vmcnt(0)", f"s_branch L_{name}chk"]
        cold.append((name, c))
    poll("q", [gq, gq+4], vG, sG, {4: 1, 13: 2, 14: 4}.get(pt, 0), [0, 2048], QFL)
    if holdwo: setflag(F_GOK)
    ST_("q gathered")
    u = E8; qb = B16
    a(f"""
v_perm_b32 v{u}, v{gq}, v{gq+1}, s{sU0}
v_perm_b32 v{u+1}, v{gq+4}, v{gq+5}, s{sU0}
v_add_f32 v{u+4}, v{gq}, v{gq+4}
v_add_f32 v{u+6}, v{gq+2}, v{gq+6}
v_perm_b32 v{u}, v{u}, v{gq+2}, s{sU1}
v_perm_b32 v{u+1}, v{u+1}, v{gq+6}, s{sU1}
v_add_f32 v{u+5}, v{gq+1}, v{gq+5}
v_add_f32 v{u+7}, v{u}, v{u+1}
v_permlane32_swap_b32 v{u+4}, v{u+6}
s_nop 0
v_permlane32_swap_b32 v{u+5}, v{u+7}
v_add_f32 v{u+4}, v{u+4}, v{u+6}
v_add_f32 v{u+5}, v{u+5}, v{u+7}
v_cvt_pk_bf16_f32 v{u}, v{u+4}, v{u+5}
ds_write_b32 v{vQLw}, v{u} offset:{QL}
""")
    setflag(F_Q)
    waitflags(group=F_Q)
    for s in range(4):
        a(f"ds_read_b128 {rng(qb+4*s,4)}, v{vQLr} offset:{QL + s*64}")
    sc = C32
    for s in range(4):
        a(f"s_waitcnt lgkmcnt({3-s})")
        for t in range(2):
            c = "0" if s == 0 else rng(sc+4*t,4)
            a(f"v_mfma_f32_16x16x32_bf16 {rng(sc+4*t,4)}, {rng(ka+16*t+4*s,4)}, {rng(qb+4*s,4)}, {c}")
    m = va(2, 2); mt = va(); pk = E8
    sC2 = sa(2, 2)
    a(f"""
s_mov_b32 s{sC2}, s{sCsc}
s_mov_b32 s{sC2+1}, s{sCsc}
s_nop 4
v_max3_f32 v{m}, v{sc}, v{sc+1}, v{sc+2}
v_max3_f32 v{mt}, v{sc+3}, v{sc+4}, v{sc+5}
v_max3_f32 v{m}, v{m}, v{sc+6}, v{sc+7}
v_max_f32 v{m}, v{m}, v{mt}
v_mov_b32 v{mt}, v{m}
s_nop 1
v_permlane16_swap_b32 v{m}, v{mt}
v_max_f32 v{m}, v{m}, v{mt}
v_mov_b32 v{mt}, v{m}
s_nop 1
v_permlane32_swap_b32 v{m}, v{mt}
v_max_f32 v{m}, v{m}, v{mt}
v_mul_f32 v{m}, s{sCsc}, v{m}
""")
    for i in range(0, 8, 2):
        a(f"v_pk_fma_f32 v[{sc+i}:{sc+i+1}], v[{sc+i}:{sc+i+1}], s[{sC2}:{sC2+1}], v[{m}:{m+1}] op_sel_hi:[1,1,0] neg_lo:[0,0,1] neg_hi:[0,0,1]")
    a(f"s_mov_b64 exec, s[{sM4}:{sM4+1}]\nds_write_b32 v{vSw}, v{m} offset:{SL}\ns_mov_b64 exec, -1")
    for i in range(8):
        a(f"v_exp_f32 v{sc+i}, v{sc+i}")
        if i == 2: a(f"v_cvt_pk_bf16_f32 v{pk}, v{sc}, v{sc+1}")
        if i == 4: a(f"v_cvt_pk_bf16_f32 v{pk+1}, v{sc+2}, v{sc+3}")
        if i == 6: a(f"v_cvt_pk_bf16_f32 v{pk+2}, v{sc+4}, v{sc+5}")
    a(f"""
s_mov_b64 exec, s[{sM4}:{sM4+1}]
v_cvt_pk_bf16_f32 v{pk+3}, v{sc+6}, v{sc+7}
ds_write_b128 v{vPw}, {rng(pk,4)} offset:{PL}
s_mov_b64 exec, -1
""")
    setflag(F_P)
    a(f"s_mov_b32 s{sCnt}, {spin}")
    waitflags(group=F_P)
    ST_("P written")
    pb = B16; sv = F8; vaop = A32; D = C32
    lk = va(16, 4)
    M = va(); ff = va(4, 2); L = va(); Rr = va(); lse = va()
    a(f"ds_read_b128 {rng(sv,4)}, v{vSr} offset:{SL}")
    for ks in range(4):
        a(f"ds_read_b128 {rng(pb+4*ks,4)}, v{vPr} offset:{PL + ks*256}")
    a(f"ds_read_b32 v{fl1}, v{vFr} offset:{F_V}")
    a(f"""
s_waitcnt lgkmcnt(5)
v_max3_f32 v{M}, v{sv}, v{sv+1}, v{sv+2}
v_max_f32 v{M}, v{M}, v{sv+3}
v_sub_f32 v{ff}, v{sv}, v{M}
v_sub_f32 v{ff+1}, v{sv+1}, v{M}
v_sub_f32 v{ff+2}, v{sv+2}, v{M}
v_sub_f32 v{ff+3}, v{sv+3}, v{M}
""")
    for ks in range(4):
        a(f"s_waitcnt lgkmcnt({4-ks})")
        a(f"v_mfma_f32_16x16x32_bf16 {rng(lk+4*ks,4)}, {rng(ones,4)}, {rng(pb+4*ks,4)}, 0")
        a(f"v_exp_f32 v{ff+ks}, v{ff+ks}")
    def vread(ks):
        for tp in range(2):
            for e in range(2):
                a(f"ds_read_b64_tr_b16 {rng(vaop+8*ks+4*tp+2*e,2)}, v{vVr+tp} offset:{ks*8192 + e*4096}")
    def pv(ks):
        for tp in range(2):
            a(f"v_mfma_f32_16x16x32_bf16 {rng(D+8*ks+4*tp,4)}, {rng(vaop+8*ks+4*tp,4)}, {rng(pb+4*ks,4)}, 0")
    stats2 = f"""v_mul_f32 v{L}, v{ff}, v{lk}
v_fmac_f32 v{L}, v{ff+1}, v{lk+4}
v_fmac_f32 v{L}, v{ff+2}, v{lk+8}
v_fmac_f32 v{L}, v{ff+3}, v{lk+12}
v_rcp_f32 v{Rr}, v{L}
v_log_f32 v{lse}, v{L}
s_nop 0
v_mul_f32 v{ff}, v{ff}, v{Rr}
v_mul_f32 v{ff+1}, v{ff+1}, v{Rr}
v_mul_f32 v{ff+2}, v{ff+2}, v{Rr}
v_mul_f32 v{ff+3}, v{ff+3}, v{Rr}
v_add_f32 v{OS8+2}, v{lse}, v{M}
v_add_f32 v{OS8+6}, v{lse}, v{M}"""
    o = F8
    def scale(ks):
        base = ff + (ks & ~1); sel = ks & 1; fr = f"v[{base}:{base+1}]"
        for tp in range(2):
            for h in range(2):
                dst = rng(o+4*tp+2*h, 2); src = rng(D+8*ks+4*tp+2*h, 2)
                if ks == 0: a(f"v_pk_mul_f32 {dst}, {src}, {fr} op_sel:[0,{sel}] op_sel_hi:[1,{sel}]")
                else: a(f"v_pk_fma_f32 {dst}, {src}, {fr}, {dst} op_sel:[0,{sel},0] op_sel_hi:[1,{sel},1]")
    a(f"s_waitcnt lgkmcnt(0)\nv_cmp_ne_u32 vcc, 0, v{fl1}\ns_cbranch_vccnz L_vfast\ns_nop 3")
    if pvp:
        assert nmid == 24
        F_V1 = F_GOK
        waitflags(single=F_V1)
        vread(0); vread(1); vread(2)
        a(stats2)
        a("s_waitcnt lgkmcnt(8)"); pv(0)
        a("s_waitcnt lgkmcnt(4)"); pv(1)
        a("s_waitcnt lgkmcnt(0)"); pv(2)
        a("s_nop 1")
        scale(0); scale(1); scale(2)
        waitflags(single=F_V)
        ST_("V landed")
        vread(3)
        a("s_waitcnt lgkmcnt(0)"); pv(3)
        a("s_nop 7")
        scale(3)
        a("s_branch L_vdone")
    else:
        a(stats2)
        waitflags(single=F_V)
        ST_("V landed")
        vread(0); vread(1); vread(2)
        a("s_branch L_vjoin")
    a("L_vfast:")
    vread(0); vread(1); vread(2)
    a(stats2)
    a("L_vjoin:")
    a("s_waitcnt lgkmcnt(8)"); pv(0); vread(3)
    a("s_waitcnt lgkmcnt(8)"); pv(1)
    a("s_waitcnt lgkmcnt(4)"); pv(2)
    a("s_waitcnt lgkmcnt(0)"); pv(3)
    for ks in range(4): scale(ks)
    a("L_vdone:")
    og = OS8
    a(f"""
v_cvt_pk_bf16_f32 v{og}, v{o}, v{o+1}
v_cvt_pk_bf16_f32 v{og+1}, v{o+2}, v{o+3}
v_cvt_pk_bf16_f32 v{og+4}, v{o+4}, v{o+5}
v_cvt_pk_bf16_f32 v{og+5}, v{o+6}, v{o+7}
buffer_store_dwordx4 {rng(og,4)}, v{vOst}, s[28:31], s{sOB} offen
buffer_store_dwordx4 {rng(og+4,4)}, v{vOst}, s[28:31], s{sOB} offen offset:64
""")
    setflag(F_OI)
    stage["flush"] = QFL + OFL
    ST_("o published")
    gg = B16; wb = A32
    if not nooi: waitflags(group=F_OI)
    if nooi:
        waitflags(single=F_W)
        for s_ in range(2):
            for tp in range(2):
                for hh in range(2):
                    a(f"ds_read_b64_tr_b16 {rng(wb+8*s_+4*tp+2*hh,2)}, v{vWOr+tp} offset:{s_*8192 + hh*1024}")
    a(f"""
buffer_load_dwordx4 {rng(gg,4)}, v{vOG}, s[28:31], s{sOG} offen sc1
buffer_load_dwordx4 {rng(gg+4,4)}, v{vOG}, s[28:31], s{sOG} offen offset:2048 sc1
""")
    if not nooi:
        waitflags(single=F_W)
        for s in range(2):
            for tp in range(2):
                for hh in range(2):
                    a(f"ds_read_b64_tr_b16 {rng(wb+8*s+4*tp+2*hh,2)}, v{vWOr+tp} offset:{s*8192 + hh*1024}")
    poll("o", [gg, gg+4], vOG, sOG, 0, [0, 2048], QFL + OFL)
    ST_("o gathered")
    e0 = va(); e1 = va(); u = A32 + 16; S = va(); oo = A32 + 24
    a(f"""
v_max_f32 v{M}, v{gg+2}, v{gg+6}
v_mov_b32 v{mt}, v{M}
v_lshlrev_b32 v{u}, 16, v{gg}
v_and_b32 v{u+1}, 0xffff0000, v{gg}
v_permlane16_swap_b32 v{M}, v{mt}
v_lshlrev_b32 v{u+2}, 16, v{gg+1}
v_max_f32 v{M}, v{M}, v{mt}
v_mov_b32 v{mt}, v{M}
v_and_b32 v{u+3}, 0xffff0000, v{gg+1}
v_lshlrev_b32 v{u+4}, 16, v{gg+4}
v_permlane32_swap_b32 v{M}, v{mt}
v_and_b32 v{u+5}, 0xffff0000, v{gg+4}
v_max_f32 v{M}, v{M}, v{mt}
v_lshlrev_b32 v{u+6}, 16, v{gg+5}
v_sub_f32 v{e0}, v{gg+2}, v{M}
v_sub_f32 v{e1}, v{gg+6}, v{M}
v_exp_f32 v{e0}, v{e0}
v_exp_f32 v{e1}, v{e1}
v_and_b32 v{u+7}, 0xffff0000, v{gg+5}
v_add_f32 v{S}, v{e0}, v{e1}
v_mul_f32 v{oo}, v{e0}, v{u}
v_mul_f32 v{oo+1}, v{e0}, v{u+1}
v_mov_b32 v{mt}, v{S}
v_mul_f32 v{oo+2}, v{e0}, v{u+2}
v_mul_f32 v{oo+3}, v{e0}, v{u+3}
v_permlane16_swap_b32 v{S}, v{mt}
v_fmac_f32 v{oo}, v{e1}, v{u+4}
v_fmac_f32 v{oo+1}, v{e1}, v{u+5}
v_add_f32 v{S}, v{S}, v{mt}
v_fmac_f32 v{oo+2}, v{e1}, v{u+6}
v_fmac_f32 v{oo+3}, v{e1}, v{u+7}
v_mov_b32 v{mt}, v{S}
v_permlane16_swap_b32 v{oo}, v{oo+1}
s_nop 0
v_permlane16_swap_b32 v{oo+2}, v{oo+3}
v_permlane32_swap_b32 v{S}, v{mt}
v_add_f32 v{oo}, v{oo}, v{oo+1}
v_add_f32 v{oo+2}, v{oo+2}, v{oo+3}
v_add_f32 v{S}, v{S}, v{mt}
s_nop 0
v_permlane32_swap_b32 v{oo}, v{oo+2}
v_rcp_f32 v{S}, v{S}
v_add_f32 v{oo}, v{oo}, v{oo+2}
v_mul_f32 v{oo}, v{oo}, v{S}
v_cvt_pk_bf16_f32 v{oo}, v{oo}, v{oo}
ds_write_b16 v{vOLw}, v{oo} offset:{OL}
""")
    setflag(F_O)
    a(f"s_add_u32 s{sT2}, s{sFG}, 65536\ns_mov_b32 s{sCnt}, {spin}")
    waitflags(group=F_O)
    ob = B16 + 8; y = C32; yg = E8
    a(f"""
ds_read_b128 {rng(ob,4)}, v{vOLr} offset:{OL}
ds_read_b128 {rng(ob+4,4)}, v{vOLr} offset:{OL+64}
""")
    for s in range(2):
        a(f"s_waitcnt lgkmcnt({1-s})")
        for tp in range(2):
            c = "0" if s == 0 else rng(y+4*tp,4)
            if ycoal: a(f"v_mfma_f32_16x16x32_bf16 {rng(y+4*tp,4)}, {rng(ob+4*s,4)}, {rng(wb+8*s+4*tp,4)}, {c}")
            else: a(f"v_mfma_f32_16x16x32_bf16 {rng(y+4*tp,4)}, {rng(wb+8*s+4*tp,4)}, {rng(ob+4*s,4)}, {c}")
    if ycoal:
        a(f"v_mov_b32 v{E8+3}, s{sTag}\ns_nop 6")
        for r in range(4): a(f"v_cndmask_b32 v{y+r}, v{y+r}, v{y+4+r}, s[{sG1}:{sG1+1}]")
        a(f"""v_perm_b32 v{yg}, v{y}, v{y+3}, s{sP0}
v_perm_b32 v{yg+1}, v{y+1}, v{y+3}, s{sP1}
v_perm_b32 v{yg+2}, v{y+2}, v{y+3}, s{sP2}
buffer_store_dwordx4 {rng(yg,4)}, v{vYst}, s[28:31], s{sYst} offen sc1""")
    else:
        a(f"v_mov_b32 v{E8+3}, s{sTag}\nv_mov_b32 v{E8+7}, s{sTag}\ns_nop 4")
        for tp in range(2):
            a(f"""v_perm_b32 v{yg+4*tp}, v{y+4*tp}, v{y+4*tp+3}, s{sP0}
v_perm_b32 v{yg+4*tp+1}, v{y+4*tp+1}, v{y+4*tp+3}, s{sP1}
v_perm_b32 v{yg+4*tp+2}, v{y+4*tp+2}, v{y+4*tp+3}, s{sP2}
buffer_store_dwordx4 {rng(yg+4*tp,4)}, v{vYst}, s[28:31], s{sYst} offen offset:{tp*64} sc1""")
    setflag(F_YI)
    ST_("y published")
    waitflags(group=F_YI)
    if not noflush:
        for x_ in QFL + OFL: a(x_)
    if dirty:
        a(f"s_lshl_b32 s{sT}, s2, 2\ns_add_u32 s{sT}, s{sT}, {W}\ns_mul_i32 s{sT}, s{sT}, {dirty*1024}\ns_add_u32 s{sT}, s{sT}, 0x800000\nv_lshlrev_b32 v{t0}, 4, v{l}")
        for i in range(dirty):
            a(f"buffer_store_dwordx4 {rng(C32,4)}, v{t0}, s[28:31], s{sT} offen\ns_add_u32 s{sT}, s{sT}, 1024")
    z = C32 + 24
    fg = C32 + 16
    FM = {0: ' sc1', 1: ' sc1 nt', 2: ' sc0 sc1', 3: ' sc0 sc1 nt'}[fmode]
    a(f"""s_cmp_lg_u32 {W}, 0
s_cbranch_scc1 L_fin
L_fpoll:
buffer_load_dwordx4 {rng(fg,4)}, v{vFG}, s[28:31], s{sFG} offen{FM}
buffer_load_dwordx4 {rng(fg+4,4)}, v{vFG}, s[28:31], s{sT2} offen{FM}
s_waitcnt vmcnt(0)
v_cmp_ne_u32 vcc, s{sTag}, v{fg+3}
v_cmp_ne_u32 s[{sa_tmp}:{sa_tmp+1}], s{sTag}, v{fg+7}
s_or_b64 vcc, vcc, s[{sa_tmp}:{sa_tmp+1}]
s_cbranch_vccz L_fok
{('s_sleep ' + str(fsleep)) if fsleep else 's_nop 0'}
s_sub_u32 s{sCnt}, s{sCnt}, 1
s_cbranch_scc0 L_fpoll
L_fok:""")
    ST_("final gathered")
    a(f"""
v_perm_b32 v{z+3}, v{fg}, v{fg+1}, s{sU0}
v_perm_b32 v{z+7}, v{fg+4}, v{fg+5}, s{sU0}
v_add_f32 v{z}, v{fg}, v{fg+4}
v_perm_b32 v{z+3}, v{z+3}, v{fg+2}, s{sU1}
v_perm_b32 v{z+7}, v{z+7}, v{fg+6}, s{sU1}
v_add_f32 v{z+1}, v{fg+1}, v{fg+5}
v_add_f32 v{z+2}, v{fg+2}, v{fg+6}
v_add_f32 v{z+3}, v{z+3}, v{z+7}
""")
    for ctl in ("quad_perm:[2,3,0,1]", "row_ror:4", "row_ror:8"):
        for r in range(4):
            a(f"v_add_f32_dpp v{z+r}, v{z+r}, v{z+r} {ctl} row_mask:0xf bank_mask:0xf")
    a(f"""
s_nop 0
v_permlane16_swap_b32 v{z}, v{z+1}
v_permlane16_swap_b32 v{z+2}, v{z+3}
s_nop 0
v_add_f32 v{z}, v{z}, v{z+1}
v_add_f32 v{z+2}, v{z+2}, v{z+3}
s_nop 1
v_permlane32_swap_b32 v{z}, v{z+2}
s_nop 0
v_add_f32 v{z}, v{z}, v{z+2}
v_cvt_pk_bf16_f32 v{z}, v{z}, v{z}
buffer_store_short v{z}, v{vOut}, s[32:35], 0 offen
s_cmp_lg_u32 s2, 0
s_cbranch_scc1 L_fin
v_mov_b32 v{t0}, s{sTag}
v_mov_b32 v{t1}, {WSB}
s_mov_b64 exec, 1
buffer_store_dword v{t0}, v{t1}, s[28:31], 0 offen sc1
s_mov_b64 exec, -1
L_fin:
""")
    a("s_branch L_tail" if stamp else "s_endpgm")
    for name, c in cold:
        for x_ in c: a(x_)
    a("; WARM_END")
    for c in colder:
        for x_ in c: a(x_)
    a("L_tail:")
    if stamp:
        a(f"s_mov_b32 s31, 0x20000\ns_mov_b32 s30, {WS_BYTES}")
    if amp >= 0:
        ST_("end")
        e = nst[0] - 1
        a(f"""
s_waitcnt lgkmcnt(0)
s_cmp_lg_u32 {W}, {ampw}
s_cbranch_scc1 L_end
""")
        if ampglob:
            a(f"""
s_lshl_b32 s37, s2, 3
s_add_u32 s37, s37, {ST}
v_mov_b32 v{C32}, s{SB}
v_mov_b32 v{C32+1}, s{sTag}
v_mov_b32 v{t1}, 0
s_mov_b64 exec, 1
buffer_store_dwordx2 v[{C32}:{C32+1}], v{t1}, s[28:31], s37 offen sc1
s_mov_b64 exec, -1
""")
        a(f"""
s_cmp_lg_u32 s2, 0
s_cbranch_scc1 L_end
""")
        OP, OPD, SOP = ('v_add_u32', 'v_add_u32_dpp', 's_add_i32') if ampglob == 2 else ('v_min_i32', 'v_min_i32_dpp', 's_min_i32')
        SHR = 's_ashr_i32 s36, s36, 8' if ampglob == 2 else 's_nop 0'
        if ampglob:
            a(f"""
s_mov_b32 s37, {ST}
v_lshlrev_b32 v{t1}, 5, v{l}
L_ag:
buffer_load_dwordx4 v[{C32}:{C32+3}], v{t1}, s[28:31], s37 offen sc1
buffer_load_dwordx4 v[{C32+4}:{C32+7}], v{t1}, s[28:31], s37 offen offset:16 sc1
s_waitcnt vmcnt(0)
v_cmp_ne_u32 vcc, s{sTag}, v{C32+1}
v_cmp_ne_u32 s[40:41], s{sTag}, v{C32+3}
s_or_b64 vcc, vcc, s[40:41]
v_cmp_ne_u32 s[40:41], s{sTag}, v{C32+5}
s_or_b64 vcc, vcc, s[40:41]
v_cmp_ne_u32 s[40:41], s{sTag}, v{C32+7}
s_or_b64 vcc, vcc, s[40:41]
s_cbranch_vccnz L_ag
v_subrev_u32 v{C32}, s{SB}, v{C32}
v_subrev_u32 v{C32+2}, s{SB}, v{C32+2}
v_subrev_u32 v{C32+4}, s{SB}, v{C32+4}
v_subrev_u32 v{C32+6}, s{SB}, v{C32+6}
{OP} v{C32}, v{C32}, v{C32+2}
{OP} v{C32+4}, v{C32+4}, v{C32+6}
{OP} v{C32}, v{C32}, v{C32+4}
s_nop 1
{OPD} v{C32}, v{C32}, v{C32} row_ror:1 row_mask:0xf bank_mask:0xf
s_nop 1
{OPD} v{C32}, v{C32}, v{C32} row_ror:2 row_mask:0xf bank_mask:0xf
s_nop 1
{OPD} v{C32}, v{C32}, v{C32} row_ror:4 row_mask:0xf bank_mask:0xf
s_nop 1
{OPD} v{C32}, v{C32}, v{C32} row_ror:8 row_mask:0xf bank_mask:0xf
s_nop 1
v_readlane_b32 s36, v{C32}, 0
v_readlane_b32 s37, v{C32}, 16
v_readlane_b32 s38, v{C32}, 32
v_readlane_b32 s39, v{C32}, 48
s_nop 3
{SOP} s36, s36, s37
{SOP} s38, s38, s39
{SOP} s36, s36, s38
{SHR}
s_sub_u32 s37, s{SB+2*amp}, s{SB}
s_sub_u32 s37, s37, s36
s_memrealtime s[40:41]
s_waitcnt lgkmcnt(0)
s_mul_i32 s37, s37, {ampk}
s_add_u32 s37, s37, s40
""")
        else:
            a(f"""
s_sub_u32 s37, s{SB+2*amp}, s{SB+2*ampj}
s_mul_i32 s37, s37, {ampk}
s_add_u32 s37, s37, s{SB+2*e}
""")
        a(f"""
L_amp:
s_memrealtime s[40:41]
s_waitcnt lgkmcnt(0)
s_cmp_lt_u32 s40, s37
s_cbranch_scc1 L_amp
""")
    elif stamp:
        ST_("end")
        if stamp == 2:
            a("s_waitcnt vmcnt(0)")
            ST_("end2")
        n = nst[0]
        a(f"""
s_waitcnt lgkmcnt(0) vmcnt(0)
s_mul_i32 s4, s2, 8
s_add_u32 s4, s4, s3
s_lshl_b32 s4, s4, 6
s_add_u32 s4, s4, {ST}
v_mov_b32 v{t1}, 0
s_mov_b64 exec, 1
""")
        for i in range(n):
            a(f"v_mov_b32 v{t0}, s{SB+2*i}\nbuffer_store_dword v{t0}, v{t1}, s[28:31], s4 offen offset:{4*i}\ns_nop 0")
    a("L_end:\ns_endpgm")
    lines = a.L
    nh = 0
    if warm and warm2:
        if warm2 != 3:
            lines, n1_ = hops.insert_chain(lines, nparts, "; WARM_START", "; WARM_MID", "A", wstride, predef=("A", "B"))
        else: n1_ = 0
        lines, n2_ = hops.insert_chain(lines, nparts, "; WARM_MID2", "; WARM_END", "B", wstride, predef=("B",))
        nh = n1_ + n2_; have = nparts
    elif warm:
        if warml: lines, nh, have = hops.insert_multi(lines, nparts, [("; LWARM_START", "; LWARM_END"), ("; WARM_START", "; WARM_END")])
        else: lines, nh, have = hops.insert(lines, nparts)
        assert have == nparts, (have, nparts)
    body = "\n".join(lines) + "\n"
    assert (not stamp) or (sa.hi <= SB and ls.hi <= SB), (sa.hi, ls.hi)
    nv = max(va.hi, lv.hi)
    s = header([f"; @launch grid=(256,1,1) block=(320,1,1) lds={LDS_BYTES}"], DOC) + kernel_begin(KNAME) + body + RODATA + descriptor(KNAME, nv, 102 if stamp else max(sa.hi, ls.hi))
    errs = haz.check(body)
    for e in errs: print("HAZ", e)
    return s, nv, sa.hi, nh, stn
if __name__ == "__main__":
    out = sys.argv[1]
    kw = {}
    for x in sys.argv[2:]:
        k, v = x.split("=")
        if k in ("warm", "prio", "holdwo", "rot", "rotq", "ilv", "ycoal", "xnt", "xfirst", "pvp"): kw[k] = (v == "1")
        elif k == "nt": kw[k] = (" " + v if v else "")
        else: kw[k] = int(v)
    s, nv, ns, nh, stn = gen(**kw)
    open(out, "w").write(s)
    print("vgprs", nv, "sgprs", ns, "hops", nh, "lds", LDS_BYTES, stn)
```

```python
import sys, struct
sys.path.insert(0, "my")
from ag import *
import haz, hops

import os
WSB = int(os.environ.get('WSB', '0'), 0)
QF = WSB + 0x10000
OF = WSB + 0x80000
OX = WSB + 0x100000
SOFF = 0x200000
ST = 0x400000
WS_BYTES = 268435456
QL = 0
PL = QL + 1280
SL = PL + 1024
OL = SL + 64
FL = 3136
JK = FL + 160
XL = 3840; WQ = XL + 1024; KL = WQ + 16384; VL = KL + 32768
import os
if os.environ.get('ALIAS', '0') == '1':
    WO = WQ; LDS_BYTES = VL + 32768
else:
    WO = VL + 32768; LDS_BYTES = WO + 16384
assert OL + 768 <= FL and JK + 416 <= XL and XL % 256 == 0 and WQ % 256 == 0
F_Q, F_P, F_O, F_GI, F_QI, F_GOK, F_OI, F_YI, F_GO, F_K, F_V, F_W = 0, 16, 32, 48, 64, 80, 96, 112, 128, 132, 136, 140
CSC = 0.08838834764831845 * 1.4426950408889634
def f32(x): return "0x%08x" % struct.unpack("<I", struct.pack("<f", x))[0]
DOC = """;
; Sliding-window GQA decode (q-proj -> attention over the last 1024 keys -> out-proj), one launch.
; Wave 4 = loader: streams wq/x/K/V/wo tiles HBM -> LDS with LDS-DMA (nt), a bounded number in flight.
; Hand-offs between workgroups: 16-byte granules {payload, tag} in d_ws; tag = LCG(epoch word read from d_ws at entry),
; first copy alternates with the second, so the result does not depend on placement.  Step 7 uses sc1 only.
; Intra-workgroup hand-offs use LDS flag words.  The s_cbranch_execz chain (L_hopN) is only walked with EXEC = 0 by
; the idle compute waves at start to pull the code into the instruction cache; it is never taken otherwise.
"""
class V:
    def __init__(s, n=0): s.n = n; s.hi = n
    def __call__(s, cnt=1, align=1):
        s.n = (s.n + align - 1) // align * align
        r = s.n; s.n += cnt; s.hi = max(s.hi, s.n)
        return r
def rng(r, n): return f"v[{r}:{r+n-1}]"
OOB = "0x7ffffff0"

def gen(stamp=False, nt=" nt", hold=0, kx=32, nmid=32, lgo=60, holdwo=False, rot=True, rotq=True, fd=1, warm2=0, wstride=128, rot1k=0, shift=0, lshift=0, compact=0, b0e=0, gmin=0, warml=0, fmode=0, pvp=True, lwo=0, fsleep=0, nooi=0, n1p=0, noflush=0, sameS=0, dirty=0, cqx=0, xnt=False, xfirst=False, ilv=True, ycoal=True, wthr=2000, n3=0, n2=0, N=24, spin=100000, nf=64, amp=-1, ampk=10, ampglob=0, ampmin=0, ampj=0, ampw=0, warm=True, pt=1, nparts=4, prio=True, step=2):
    if amp >= 0: stamp = 2 if ampmin else True
    a = A(); va = V(1); sa = V(36)
    l = va(); t0 = va(); t1 = va(); t2 = va(); t3 = va()
    nst = [0]; stn = []
    SB = 74 if (pt == 12 or gmin) else 72
    def ST_(label):
        if stamp and (stamp != 2 or label in ('entry', 'end', 'end2')):
            i = nst[0]; nst[0] += 1; stn.append(label)
            assert i < (14 if (pt == 12 or gmin) else 15)
            a(f"s_memrealtime s[{SB+2*i}:{SB+1+2*i}]")
    W, G, R, B, C = "s3", "s4", "s5", "s6", "s7"
    sT = sa(); sT2 = sa(); sWin = sa()
    ST_("entry")
    if compact:
        a(f"""
s_cmp_ge_u32 s2, 256
s_cbranch_scc1 L_end
s_load_dwordx2 s[20:21], s[0:1], 24
s_load_dwordx2 s[8:9], s[0:1], 0
s_load_dwordx2 s[12:13], s[0:1], 8
""")
        if stamp: a("s_load_dwordx2 s[28:29], s[0:1], 56\ns_load_dwordx2 s[32:33], s[0:1], 40")
    else:
        a(f"""
s_cmp_ge_u32 s2, 256
s_cbranch_scc1 L_end
s_load_dwordx2 s[20:21], s[0:1], 24
s_load_dwordx2 s[8:9], s[0:1], 0
s_load_dwordx2 s[12:13], s[0:1], 8
s_load_dwordx2 s[28:29], s[0:1], 56
s_load_dwordx2 s[16:17], s[0:1], 16
s_load_dwordx2 s[24:25], s[0:1], 32
s_load_dwordx2 s[32:33], s[0:1], 40
""")
    a(f"""
v_lshrrev_b32 v{t0}, 6, v0
v_and_b32 v{l}, 63, v0
s_and_b32 {G}, s2, 7
v_readfirstlane_b32 {W}, v{t0}
s_lshr_b32 {R}, s2, 3
s_lshr_b32 {B}, {R}, 3
s_and_b32 {C}, {R}, 7
s_mov_b32 s23, 0x20000
v_lshrrev_b32 v{t0}, 4, v{l}
v_and_b32 v{t1}, 15, v{l}
""")
    if stamp: a(f"s_mov_b32 s31, s23\ns_mov_b32 s30, {WS_BYTES}\ns_mov_b32 s35, s23\ns_movk_i32 s34, 0x1000")
    a(f"""
s_cmp_lt_u32 {W}, 4
s_cbranch_scc1 L_compute
""")
    for _ in range(lshift // 4): a("s_nop 0")
    lv = V(va.n); ls = V(sa.n)
    vWQ = lv(2); vX = lv(); vK = lv(4); vV = lv(2); vWO = lv(2); vLF = lv(); vOne = lv()
    sWQ = ls(); sX = ls(); sK = ls(); sWO = ls(); lT = ls(); sWQb0 = ls()
    sRho = ls(); sJ = ls(); sC1 = ls(); sC2 = ls(); sR = ls(); sM = ls()
    if prio: a("s_setprio 2")
    if compact:
        if ilv:
            KW1 = f"s_lshl_b32 s{sWin}, s{sWin}, 3"; KW2 = f"s_add_u32 s{sWin}, s{sWin}, {C}"; KW3 = f"s_lshl_b32 s{sWin}, s{sWin}, 12"
            KR0 = f"s_lshl_b32 s{sR}, s{sRho}, 3"; KMASK = "0x38000"; KSTEP = "0x8000"; KM0 = f"s_movk_i32 m0, {KL}"; KM1 = "s_addk_i32 m0, 0x1000"
        else:
            KW1 = f"s_add_u32 s{sWin}, s{sWin}, {C}"; KW2 = f"s_lshl_b32 s{sWin}, s{sWin}, 15"; KW3 = "s_nop 0"
            KR0 = f"s_mov_b32 s{sR}, s{sRho}"; KMASK = "0x7fff"; KSTEP = "0x1000"; KM0 = f"s_add_u32 m0, s{sR}, {KL}"; KM1 = f"s_add_u32 m0, s{sR}, {KL}"
        assert kx % 4 == 0 and kx >= 24 and n1p == 24 and b0e and rot
        a(f"""
s_mov_b32 s22, 0x400000
v_and_b32 v{t2}, 7, v{l}
v_lshlrev_b32 v{t3}, 1, v{t0}
v_and_b32 v{vX}, 2, v{t3}
v_xor_b32 v{t2}, v{t2}, v{vX}
v_lshlrev_b32 v{t2}, 4, v{t2}
v_lshrrev_b32 v{vX}, 3, v{l}
v_lshl_add_u32 v{vWQ}, v{vX}, 13, v{t2}
v_xor_b32 v{vWQ+1}, 64, v{vWQ}
s_lshl_b32 s{sWQb0}, {G}, 3
s_add_u32 s{sWQb0}, s{sWQb0}, {C}
s_lshl_b32 s{sWQb0}, s{sWQb0}, 7
s_lshl_b32 s{lT}, {B}, 20
s_add_u32 s{sWQb0}, s{sWQb0}, s{lT}
s_mov_b32 s{sC1}, 64512
s_mov_b32 s{sC2}, 0xc0000
s_lshl_b32 s{sR}, {B}, 18
s_mov_b32 s{sM}, s{sR}
s_add_u32 s{sWQ}, s{sWQb0}, s{sR}
s_lshr_b32 s{lT}, s{sR}, 6
s_add_u32 m0, s{lT}, {WQ}
s_waitcnt lgkmcnt(0)
L_lwq:
buffer_load_dwordx4 v{vWQ}, s[20:23], s{sWQ} offen{nt} lds
s_add_u32 s{sWQ}, s{sWQ}, s{sC1}
buffer_load_dwordx4 v{vWQ+1}, s[20:23], s{sWQ} offen offset:1024{nt} lds
s_add_u32 s{sWQ}, s{sWQ}, s{sC1}
buffer_load_dwordx4 v{vWQ}, s[20:23], s{sWQ} offen offset:2048{nt} lds
s_add_u32 s{sWQ}, s{sWQ}, s{sC1}
buffer_load_dwordx4 v{vWQ+1}, s[20:23], s{sWQ} offen offset:3072{nt} lds
s_add_u32 s{sR}, s{sR}, 0x40000
s_and_b32 s{sR}, s{sR}, s{sC2}
s_add_u32 s{sWQ}, s{sWQb0}, s{sR}
s_lshr_b32 s{lT}, s{sR}, 6
s_add_u32 m0, s{lT}, {WQ}
s_cmp_lg_u32 s{sR}, s{sM}
s_cbranch_scc1 L_lwq
s_mov_b32 s11, s23
s_movk_i32 s10, 0x1000
v_lshlrev_b32 v{t2}, 2, v{t0}
v_xor_b32 v{t2}, v{t1}, v{t2}
v_lshlrev_b32 v{t2}, 4, v{t2}
v_lshl_add_u32 v{vX}, v{t0}, 10, v{t2}
s_lshl_b32 s{sX}, {B}, 8
s_movk_i32 m0, {XL}
s_load_dwordx2 s[16:17], s[0:1], 16
buffer_load_dwordx4 v{vX}, s[8:11], s{sX} offen lds
s_load_dwordx2 s[24:25], s[0:1], 32
""")
        ST_("L: wq issued")
        a(f"""
s_mov_b32 s15, s23
s_mov_b32 s14, 0x2000000
v_xor_b32 v{t2}, v{t1}, v{t0}
v_lshlrev_b32 v{t2}, 4, v{t2}
v_lshl_add_u32 v{vK}, v{t0}, 8, v{t2}
v_xor_b32 v{vK+1}, 64, v{vK}
v_xor_b32 v{vK+2}, 0x80, v{vK}
v_xor_b32 v{vK+3}, 0xc0, v{vK}
s_lshl_b32 s{sWin}, {B}, 3
s_add_u32 s{sWin}, s{sWin}, {G}
s_lshl_b32 s{sWin}, s{sWin}, 5
s_add_u32 s{sWin}, s{sWin}, 24
{KW1}
{KW2}
{KW3}
s_lshl_b32 s{sRho}, {B}, 1
s_add_u32 s{sRho}, s{sRho}, {G}
s_and_b32 s{sRho}, s{sRho}, 7
s_lshl_b32 s{sRho}, s{sRho}, 12
{KR0}
s_mov_b32 s{sM}, {KMASK}
{KM0}
s_movk_i32 s{sC1}, {kx // 4}
L_lk:
s_add_u32 s{sK}, s{sWin}, s{sR}
s_waitcnt vmcnt({n1p - 1})
buffer_load_dwordx4 v{vK}, s[12:15], s{sK} offen{nt} lds
s_waitcnt vmcnt({n1p - 1})
buffer_load_dwordx4 v{vK+1}, s[12:15], s{sK} offen offset:1024{nt} lds
s_waitcnt vmcnt({n1p - 1})
buffer_load_dwordx4 v{vK+2}, s[12:15], s{sK} offen offset:2048{nt} lds
s_waitcnt vmcnt({n1p - 1})
buffer_load_dwordx4 v{vK+3}, s[12:15], s{sK} offen offset:3072{nt} lds
s_add_u32 s{sR}, s{sR}, {KSTEP}
s_and_b32 s{sR}, s{sR}, s{sM}
{KM1}
s_sub_u32 s{sC1}, s{sC1}, 1
s_cmp_lg_u32 s{sC1}, {kx // 4 - 6}
s_cbranch_scc1 L_lk1
s_waitcnt vmcnt({n1p - 1})
s_barrier
L_lk1:
s_cmp_lg_u32 s{sC1}, 0
s_cbranch_scc1 L_lk
v_lshlrev_b32 v{t2}, 2, v{l}
v_add_u32 v{t2}, {JK}, v{t2}
v_cmp_eq_u32 vcc, 0, v{l}
v_mov_b32 v{vLF}, {FL}
v_mov_b32 v{vOne}, 1
v_cndmask_b32 v{vLF}, v{t2}, v{vLF}, vcc
""")
    else:
        a(f"""
s_mov_b32 s22, 0x400000
v_and_b32 v{t2}, 7, v{l}
v_lshlrev_b32 v{t3}, 1, v{t0}
v_and_b32 v{vX}, 2, v{t3}
v_xor_b32 v{t2}, v{t2}, v{vX}
v_lshlrev_b32 v{t2}, 4, v{t2}
v_lshrrev_b32 v{vX}, 3, v{l}
v_lshl_add_u32 v{vWQ}, v{vX}, 13, v{t2}
v_xor_b32 v{vWQ+1}, 64, v{vWQ}
s_lshl_b32 s{sWQb0}, {G}, 3
s_xor_b32 s{lT}, {C}, {cqx}
s_add_u32 s{sWQb0}, s{sWQb0}, s{lT}
s_lshl_b32 s{sWQb0}, s{sWQb0}, 7
s_lshl_b32 s{lT}, {B}, 20
s_add_u32 s{sWQb0}, s{sWQb0}, s{lT}
s_mov_b32 s11, s23
s_movk_i32 s10, 0x1000
s_mov_b32 s15, s23
s_mov_b32 s14, 0x2000000
; x voffset: (l>>4)*1024 + ((l&15) ^ (4*(l>>4)))*16
v_lshlrev_b32 v{t2}, 2, v{t0}
v_xor_b32 v{t2}, v{t1}, v{t2}
v_lshlrev_b32 v{t2}, 4, v{t2}
v_lshl_add_u32 v{vX}, v{t0}, 10, v{t2}
s_lshl_b32 s{sX}, {B}, 8
""")
    seq = []
    sWQb = sWQb0
    for i in range(16):
        pre = []
        if i % 4 == 0:
            j_ = i // 4
            if rotq:
                pre += [f"s_add_u32 s{sJ}, {B}, {j_}", f"s_and_b32 s{sJ}, s{sJ}, 3", f"s_lshl_b32 s{lT}, s{sJ}, 18", f"s_add_u32 s{sWQ}, s{sWQb}, s{lT}",
                        f"s_lshl_b32 s{lT}, s{sJ}, 12", f"s_add_u32 m0, s{lT}, {WQ}"]
            else:
                pre += [f"s_add_u32 s{sWQ}, s{sWQb}, {j_ << 18}", f"s_mov_b32 m0, {WQ + j_*4096}"]
            pre.append("s_nop 0")
        else:
            pre.append(f"s_add_u32 s{sWQ}, s{sWQ}, {65536 - 1024}")
        seq.append((pre, f"buffer_load_dwordx4 v{vWQ + (i & 1)}, s[20:23], s{sWQ} offen offset:{(i%4)*1024}{nt} lds"))
    seq.append(([f"s_movk_i32 m0, {XL}", "s_nop 0"], f"buffer_load_dwordx4 v{vX}, s[8:11], s{sX} offen{' nt' if xnt else ''} lds"))
    if xfirst: seq.insert(0, seq.pop())
    kpre = f"""; K voffsets: (l>>4)*256 + ((l&15)^(l>>4))*16  ^ (64*i)
v_xor_b32 v{t2}, v{t1}, v{t0}
v_lshlrev_b32 v{t2}, 4, v{t2}
v_lshl_add_u32 v{vK}, v{t0}, 8, v{t2}
v_xor_b32 v{vK+1}, 64, v{vK}
v_xor_b32 v{vK+2}, 0x80, v{vK}
v_xor_b32 v{vK+3}, 0xc0, v{vK}
; flag address vgpr: lane0 -> FL, else JK + 4*l
v_lshlrev_b32 v{t2}, 2, v{l}
v_add_u32 v{t2}, {JK}, v{t2}
v_cmp_eq_u32 vcc, 0, v{l}
v_mov_b32 v{vLF}, {FL}
v_mov_b32 v{vOne}, 1
v_cndmask_b32 v{vLF}, v{t2}, v{vLF}, vcc
; window base = (b*8+g)<<20 + 3072*256 + c*(32768 or 4096)
s_lshl_b32 s{sWin}, {B}, 3
s_add_u32 s{sWin}, s{sWin}, {G}
s_lshl_b32 s{sWin}, s{sWin}, 5
s_add_u32 s{sWin}, s{sWin}, 24
s_lshl_b32 s{sWin}, s{sWin}, 15
s_lshl_b32 s{sJ}, {C}, {12 if ilv else 15}
s_add_u32 s{sWin}, s{sWin}, s{sJ}
; rho*4096 : rho = (g + 2b) & 7   (rot1k: rho1*1024, rho1 = (b*8 + g)*M & 31)
s_lshl_b32 s{sRho}, {B}, {3 if rot1k else 1}
s_add_u32 s{sRho}, s{sRho}, {G}
s_mul_i32 s{sRho}, s{sRho}, {rot1k if rot1k else 1}
s_and_b32 s{sRho}, s{sRho}, {(31 if rot1k else 7) if rot else 0}
s_lshl_b32 s{sRho}, s{sRho}, {10 if rot1k else 12}""".split("\n")
    def grp(j_, ldsbase):
        if ilv:
            return [f"s_add_u32 s{sJ}, s{sRho}, {j_*4096}", f"s_and_b32 s{sJ}, s{sJ}, 0x7fff", f"s_mov_b32 m0, {ldsbase + j_*4096}", f"s_lshl_b32 s{sJ}, s{sJ}, 3", f"s_add_u32 s{sK}, s{sWin}, s{sJ}"]
        return [f"s_add_u32 s{sJ}, s{sRho}, {j_*4096}", f"s_and_b32 s{sJ}, s{sJ}, 0x7fff", f"s_add_u32 m0, s{sJ}, {ldsbase}", f"s_add_u32 s{sK}, s{sWin}, s{sJ}"]
    def fine(i, ldsbase):
        pre = []
        if i % 4 == 0: pre.append(f"s_mov_b32 m0, {ldsbase + i*1024}")
        pre += [f"s_add_u32 s{sJ}, s{sRho}, {i*1024}", f"s_and_b32 s{sJ}, s{sJ}, 0x7fff", f"s_add_u32 s{sK}, s{sWin}, s{sJ}"]
        if i % 4: pre.append(f"s_sub_u32 s{sK}, s{sK}, {(i%4)*1024}")
        return pre
    for i in range(32):
        pre = list(kpre) if i == 0 else []
        if rot1k: pre += fine(i, KL)
        elif i % 4 == 0: pre += grp(i // 4, KL)
        seq.append((pre, f"buffer_load_dwordx4 v{vK+i%4}, s[12:15], s{sK} offen offset:{(i%4)*1024}{nt} lds"))
    vpre = f"""s_mov_b32 s19, s23
s_mov_b32 s18, s14
; V voffset: (l>>4)*256 + ((l&15) ^ ((l>>4)<<1))*16 ; odd: ^128 ; WO: (l>>4)*1024 + same piece
v_xor_b32 v{t2}, v{t1}, v{t3}
v_lshlrev_b32 v{t2}, 4, v{t2}
v_lshl_add_u32 v{vV}, v{t0}, 8, v{t2}
v_xor_b32 v{vV+1}, 0x80, v{vV}
v_lshl_add_u32 v{vWO}, v{t0}, 10, v{t2}
v_xor_b32 v{vWO+1}, 0x80, v{vWO}
s_mov_b32 s27, s23
s_mov_b32 s26, s22
; WO soff = p<<16 + cg*256 ; p = g*8 + r/4 ; cg = r&3
s_lshr_b32 s{lT}, {R}, 2
s_lshl_b32 s{sWO}, {G}, 3
s_add_u32 s{sWO}, s{sWO}, s{lT}
s_lshl_b32 s{sWO}, s{sWO}, 8
s_and_b32 s{lT}, {R}, 3
s_add_u32 s{sWO}, s{sWO}, s{lT}
s_lshl_b32 s{sWO}, s{sWO}, 8""".split("\n")
    for i in range(32):
        pre = list(vpre) if i == 0 else []
        if rot1k: pre += fine(i, VL)
        elif i % 4 == 0: pre += grp(i // 4, VL)
        seq.append((pre, f"buffer_load_dwordx4 v{vV+(i&1)}, s[16:19], s{sK} offen offset:{(i%4)*1024}{nt} lds"))
    for i in range(16):
        pre = []
        if i == 0: pre += [f"s_mov_b32 m0, {WO}", "s_nop 0"]
        elif i % 4 == 0: pre.append("s_add_u32 m0, m0, 4096")
        if i: pre.append(f"s_add_u32 s{sWO}, s{sWO}, {4096 - 1024 if i % 4 else 4096 + 3072}")
        seq.append((pre, f"buffer_load_dwordx4 v{vWO+((i>>1)&1)}, s[24:27], s{sWO} offen offset:{(i%4)*1024}{nt} lds"))
    T = len(seq); assert T == 97
    def emit(k):
        pre, ld = seq[k]
        for p in pre: a(p)
        a(ld)
    n0 = 17 + kx
    b0done = False
    if compact:
        b0done = True
    else:
        for p in seq[0][0]: a(p)
        a("s_waitcnt lgkmcnt(0)")
        a(seq[0][1])
        for k in range(1, 17): emit(k)
        ST_("L: wq issued")
        if warml == 2: a("; LWARM_START")
        pre17, ld17 = seq[17]
        for p in pre17: a(p)
        if kx > 0:
            if hold: a(f"s_waitcnt vmcnt({17 - hold})")
            a(ld17)
            for k in range(18, n0):
                if n1p and k >= n1p: a(f"s_waitcnt vmcnt({n1p - 1})")
                if b0e and n1p and not b0done and k - (n1p - 1) >= 17:
                    a("s_barrier"); b0done = True
                emit(k)
        else:
            seq[17] = ([], ld17)
    ST_("L: K issued")
    if warml == 1: a("; LWARM_START")
    lfl = lv(4, 4)
    a(f"v_mov_b32 v{t2}, {FL}")
    if not (b0e and kx > 0 and b0done): a(f"s_waitcnt vmcnt({n0 - 17})\ns_barrier")
    ST_("L: wq landed")
    def lwait(name, off):
        a(f"""L_{name}:
ds_read_b128 v[{lfl}:{lfl+3}], v{t2} offset:{off}
s_waitcnt lgkmcnt(0)
v_and_b32 v{lfl}, v{lfl}, v{lfl+1}
v_and_b32 v{lfl+2}, v{lfl+2}, v{lfl+3}
v_and_b32 v{lfl}, v{lfl}, v{lfl+2}
v_cmp_eq_u32 vcc, 0, v{lfl}
s_cbranch_vccnz L_{name}""")
    vFA = lv()
    a(f"v_mov_b32 v{vFA}, {FL}")
    def lwait(name, off):
        a(f"""L_{name}:
ds_read_b128 v[{lfl}:{lfl+3}], v{vFA} offset:{off}
s_waitcnt lgkmcnt(0)
v_and_b32 v{lfl}, v{lfl}, v{lfl+1}
v_and_b32 v{lfl+2}, v{lfl+2}, v{lfl+3}
v_and_b32 v{lfl}, v{lfl}, v{lfl+2}
v_cmp_eq_u32 vcc, 0, v{lfl}
s_cbranch_vccnz L_{name}""")
    lwait("qi", F_QI)
    n1 = 49 + nmid
    for k in range(n0, n1):
        if n2: a(f"s_waitcnt vmcnt({n2 - 1})")
        emit(k)
    assert lgo <= n1 and n1 <= T
    a(f"s_waitcnt vmcnt({n1 - lgo})")
    a(f"ds_write_b32 v{vLF}, v{vOne} offset:{F_GO}")
    lwait("gi", F_GI)
    for k in range(n1, T):
        if k == 81 and holdwo: lwait("gok", F_GOK)
        if k == 81 and lwo: a(f"s_waitcnt vmcnt({81 - lwo})")
        if n3: a(f"s_waitcnt vmcnt({n3 - 1})")
        emit(k)
    if lgo < 49: a(f"s_waitcnt vmcnt({T - 49})\nds_write_b32 v{vLF}, v{vOne} offset:{F_K}")
    F_V1 = F_GOK
    tailev = ([(49 + nmid, F_V1)] if pvp else []) + [(81, F_V), (97, F_W)]
    for cnt, f in tailev:
        a(f"s_waitcnt vmcnt({T - cnt})\nds_write_b32 v{vLF}, v{vOne} offset:{f}")
    ST_("L: all landed")
    if warml: a("; LWARM_END")
    if stamp: a("s_branch L_fin")
    else: a("s_endpgm")
    for _ in range(shift // 4): a("s_nop 0")
    a("L_compute:")
    if compact:
        if not stamp: a("s_load_dwordx2 s[28:29], s[0:1], 56\ns_load_dwordx2 s[32:33], s[0:1], 40")
    g = va(); n16 = va(); n4 = va()
    sQB = sa(); sOB = sa(); sEp = sa(); sTag = sa(); vPT = va()
    a(f"""
s_mov_b32 s31, s23
s_mov_b32 s30, {WS_BYTES}
s_mov_b32 s35, s23
s_movk_i32 s34, 0x1000
s_lshl_b32 s{sQB}, {G}, 4
s_add_u32 s{sQB}, s{sQB}, {B}
s_lshl_b32 s{sQB}, s{sQB}, 11
s_xor_b32 s{sT}, {C}, {cqx}
s_lshl_b32 s{sT}, s{sT}, 8
s_add_u32 s{sQB}, s{sQB}, s{sT}
s_add_u32 s{sQB}, s{sQB}, {QF}
s_lshl_b32 s{sOB}, {B}, 3
s_add_u32 s{sOB}, s{sOB}, {G}
s_lshl_b32 s{sOB}, s{sOB}, 5
s_add_u32 s{sOB}, s{sOB}, {C}
s_lshl_b32 s{sOB}, s{sOB}, 9
s_add_u32 s{sOB}, s{sOB}, {OF}
""")
    vPTa = va()
    if pt in (1, 3, 7):
        a(f"""
s_mul_i32 s{sT}, {W}, 6
v_add_u32 v{t3}, s{sT}, v{l}
v_lshrrev_b32 v{t0}, 1, v{t3}
v_lshlrev_b32 v{t0}, 13, v{t0}
v_and_b32 v{t1}, 1, v{t3}
v_lshl_or_b32 v{t0}, v{t1}, 7, v{t0}
v_add_u32 v{t0}, s{sQB}, v{t0}
v_subrev_u32 v{t1}, 8, v{t3}
v_lshrrev_b32 v{t2}, 2, v{t1}
v_lshlrev_b32 v{t2}, 12, v{t2}
v_and_b32 v{t1}, 3, v{t1}
v_lshl_or_b32 v{t2}, v{t1}, 7, v{t2}
v_add_u32 v{t2}, s{sOB}, v{t2}
v_cmp_gt_u32 vcc, 8, v{t3}
v_mov_b32 v{t3}, {OOB}
s_nop 0
v_cndmask_b32 v{t0}, v{t2}, v{t0}, vcc
v_cmp_gt_u32 vcc, 6, v{l}
s_mov_b32 s{sT}, {WSB}
s_waitcnt lgkmcnt(0)
s_load_dword s{sEp}, s[28:29], s{sT}
v_cndmask_b32 v{vPTa}, v{t3}, v{t0}, vcc
""")
        if pt != 7: a(f"buffer_load_dword v{vPT}, v{vPTa}, s[28:31], 0 offen{' nt' if pt == 3 else ''}")
    else:
        a(f"s_mov_b32 s{sT}, {WSB}\ns_waitcnt lgkmcnt(0)\ns_load_dword s{sEp}, s[28:29], s{sT}" if WSB else f"s_waitcnt lgkmcnt(0)\ns_load_dword s{sEp}, s[28:29], 0")
        if pt in (10, 11, 12):
            sD = sa(); sO1 = sa(); sO2 = sa()
            a(f"s_lshl_b32 s{sT}, {W}, 13\ns_add_u32 s{sO1}, s{sQB}, s{sT}\ns_lshl_b32 s{sT}, {W}, 12\ns_add_u32 s{sO2}, s{sOB}, s{sT}")
            stp = 128 if pt == 11 else 64
            ypt = [f"s_load_dword s{sD}, s[28:29], s{sO1} offset:{o}" for o in range(0, 256, stp)] + [f"s_load_dword s{sD}, s[28:29], s{sO2} offset:{o}" for o in range(0, 512, stp)]
            if pt == 12:
                sO3 = sT2
                sO3 = sa()
                a(f"""s_and_b32 s{sO3}, {R}, 3
s_lshl_b32 s{sO3}, s{sO3}, 6
s_lshl_b32 s{sT}, {G}, 3
s_add_u32 s{sO3}, s{sO3}, s{sT}
s_lshr_b32 s{sT}, {R}, 2
s_add_u32 s{sO3}, s{sO3}, s{sT}
s_lshl_b32 s{sO3}, s{sO3}, 2
s_add_u32 s{sO3}, s{sO3}, {W}
s_lshl_b32 s{sO3}, s{sO3}, 9
s_add_u32 s{sO3}, s{sO3}, {OX + SOFF}""")
                ypt += [f"s_load_dword s{sD}, s[28:29], s{sO3} offset:{o}" for o in range(0, 512, 64)]
        if pt in (8, 9):
            sD = sa(); sO1 = sa()
            a(f"s_lshl_b32 s{sT}, {W}, 13\ns_add_u32 s{sO1}, s{sQB}, s{sT}")
            for o in range(0, 256, 64): a(f"s_load_dword s{sD}, s[28:29], s{sO1} offset:{o}")
            a(f"s_lshl_b32 s{sT}, {W}, 12\ns_add_u32 s{sO1}, s{sOB}, s{sT}")
            for o in range(0, 512, 64): a(f"s_load_dword s{sD}, s[28:29], s{sO1} offset:{o}")
            if pt == 9:
                a(f"""s_and_b32 s{sO1}, {R}, 3
s_lshl_b32 s{sO1}, s{sO1}, 6
s_lshl_b32 s{sT}, {G}, 3
s_add_u32 s{sO1}, s{sO1}, s{sT}
s_lshr_b32 s{sT}, {R}, 2
s_add_u32 s{sO1}, s{sO1}, s{sT}
s_lshl_b32 s{sO1}, s{sO1}, 2
s_add_u32 s{sO1}, s{sO1}, {W}
s_lshl_b32 s{sO1}, s{sO1}, 9
s_add_u32 s{sO1}, s{sO1}, {OX + SOFF}""")
                ypt = [f"s_load_dword s{sD}, s[28:29], s{sO1} offset:{o}" for o in range(0, 512, 64)]
        if pt in (2, 4, 6):
            a(f"""
s_lshl_b32 s{sT}, {W}, 12
s_add_u32 s{sT}, s{sT}, s{sOB}
v_lshlrev_b32 v{t0}, 7, v{l}
v_add_u32 v{t0}, s{sT}, v{t0}
v_cmp_gt_u32 vcc, 4, v{l}
v_mov_b32 v{t3}, {OOB}
s_nop 0
v_cndmask_b32 v{vPTa}, v{t3}, v{t0}, vcc
""")
    if warm and warm2:
        if warm2 != 3:
            a("s_mov_b64 exec, 0")
            for p in range(1, nparts):
                a(f"s_cmp_eq_u32 {W}, {p}\ns_cbranch_scc1 HOPA_P{p}")
            a("s_branch HOPA_P0\nL_warm_doneA:\ns_mov_b64 exec, -1")
    elif warm:
        a("s_mov_b64 exec, 0")
        for p in range(1, nparts):
            a(f"s_cmp_eq_u32 {W}, {p}\ns_cbranch_scc1 HOP_P{p}")
        a("s_branch HOP_P0\nL_warm_done:\ns_mov_b64 exec, -1")
    a("; WARM_START")
    sP = sa(); sCG = sa(); sR4 = sa()
    vXr = va(4); vWQr = va(); vKr = va(4); vVr = va(2); vWOr = va(2)
    vQst = va(); vG = va(); sG = sa(); vQLw = va(); vQLr = va()
    vPw = va(); vPr = va(); vSw = va(); vSr = va()
    vOst = va(); vOG = va(); sOG = sa(); vOLw = va(); vOLr = va()
    vYst = va(); sYst = sa(); vFG = va(); sFG = sa(); vOut = va()
    vFw = va(); vFr = va(); vOne_c = va()
    sCsc = sa(); sP0 = sa(); sP1 = sa(); sP2 = sa(); sU0 = sa(); sU1 = sa(); sM4 = sa(2, 2); sG1 = sa(2, 2); sCnt = sa()
    a(f"""
v_lshrrev_b32 v{g}, 4, v{l}
v_and_b32 v{n16}, 15, v{l}
v_and_b32 v{n4}, 3, v{l}
v_lshlrev_b32 v{t2}, 2, v{l}
v_mov_b32 v{t3}, 0
ds_write_b32 v{t2}, v{t3} offset:{FL}
v_add_u32 v{t2}, {JK}, v{t2}
s_lshl_b32 s{sT}, {W}, 2
s_add_u32 s{sT}, s{sT}, {FL}
v_mov_b32 v{vFw}, s{sT}
v_cmp_eq_u32 vcc, 0, v{l}
v_mov_b32 v{vFr}, {FL}
v_mov_b32 v{vOne_c}, 1
v_cndmask_b32 v{vFw}, v{t2}, v{vFw}, vcc
; p = g*8 + r/4 ; cg = r&3
s_lshr_b32 s{sR4}, {R}, 2
s_lshl_b32 s{sP}, {G}, 3
s_add_u32 s{sP}, s{sP}, s{sR4}
s_and_b32 s{sCG}, {R}, 3
v_lshlrev_b32 v{t2}, 2, v{n4}
v_xor_b32 v{t2}, v{g}, v{t2}
v_lshlrev_b32 v{t2}, 4, v{t2}
v_lshl_add_u32 v{t2}, v{n4}, 8, v{t2}
v_add_u32 v{vXr}, {XL}, v{t2}
v_xor_b32 v{vXr+1}, 64, v{vXr}
v_xor_b32 v{vXr+2}, 0x80, v{vXr}
v_xor_b32 v{vXr+3}, 0xc0, v{vXr}
v_bfe_u32 v{t0}, v{l}, 2, 2
v_lshl_add_u32 v{t2}, v{g}, 3, v{t0}
v_lshlrev_b32 v{t2}, 7, v{t2}
v_lshl_add_u32 v{t2}, v{n4}, 3, v{t2}
v_lshrrev_b32 v{t3}, 1, v{t0}
v_and_b32 v{t1}, 1, v{g}
v_lshl_or_b32 v{t3}, v{t1}, 1, v{t3}
v_xor_b32 v{t3}, {W}, v{t3}
v_lshl_add_u32 v{t2}, v{t3}, 5, v{t2}
v_add_u32 v{vWQr}, {WQ}, v{t2}
s_lshl_b32 s{sT}, {W}, 13
s_add_u32 s{sT}, s{sT}, {KL}
v_xor_b32 v{t2}, v{g}, v{n16}
v_lshlrev_b32 v{t2}, 4, v{t2}
v_lshl_add_u32 v{t2}, v{n16}, 8, v{t2}
v_add_u32 v{vKr}, s{sT}, v{t2}
v_xor_b32 v{vKr+1}, 64, v{vKr}
v_xor_b32 v{vKr+2}, 0x80, v{vKr}
v_xor_b32 v{vKr+3}, 0xc0, v{vKr}
v_lshl_add_u32 v{t2}, v{g}, 2, v{t0}
v_lshlrev_b32 v{t2}, 8, v{t2}
v_lshl_add_u32 v{t2}, v{n4}, 3, v{t2}
v_lshl_or_b32 v{t3}, v{t1}, 2, v{t0}
s_lshl_b32 s{sT}, {W}, 1
v_xor_b32 v{t3}, s{sT}, v{t3}
v_lshl_add_u32 v{t2}, v{t3}, 5, v{t2}
v_add_u32 v{vVr}, {VL}, v{t2}
v_xor_b32 v{vVr+1}, 32, v{vVr}
v_lshl_add_u32 v{t2}, v{g}, 3, v{t0}
v_lshlrev_b32 v{t2}, 8, v{t2}
v_lshl_add_u32 v{t2}, v{n4}, 3, v{t2}
v_lshl_add_u32 v{t2}, v{t3}, 5, v{t2}
v_add_u32 v{vWOr}, {WO}, v{t2}
v_xor_b32 v{vWOr+1}, 32, v{vWOr}
v_cmp_gt_u32 vcc, 4, v{n16}
v_mov_b32 v{t3}, {OOB}
s_lshl_b32 s{sT}, {W}, 6
v_lshlrev_b32 v{t2}, 4, v{g}
v_add_u32 v{t0}, s{sT}, v{t2}
v_lshl_add_u32 v{t0}, v{n16}, 13, v{t0}
v_cndmask_b32 v{vQst}, v{t3}, v{t0}, vcc
s_lshl_b32 s{sT}, {W}, 7
v_add_u32 v{t2}, s{sT}, v{t2}
v_lshl_add_u32 v{t0}, v{n16}, 12, v{t2}
v_cndmask_b32 v{vOst}, v{t3}, v{t0}, vcc
v_lshl_add_u32 v{t0}, v{n16}, 9, v{t2}
v_cndmask_b32 v{vYst}, v{t3}, v{t0}, vcc
YCOAL_ADDR
v_lshrrev_b32 v{t0}, 5, v{l}
v_and_b32 v{t1}, 31, v{l}
v_lshlrev_b32 v{t2}, 4, v{t1}
v_lshl_add_u32 v{vG}, v{t0}, 12, v{t2}
s_lshl_b32 s{sG}, {G}, 2
s_add_u32 s{sG}, s{sG}, {B}
s_lshl_b32 s{sG}, s{sG}, 4
s_add_u32 s{sG}, s{sG}, {W}
s_lshl_b32 s{sG}, s{sG}, 9
s_add_u32 s{sG}, s{sG}, {QF}
s_mul_i32 s{sT}, {W}, 320
v_lshlrev_b32 v{t2}, 3, v{t1}
v_lshl_add_u32 v{t2}, v{t0}, 2, v{t2}
v_add_u32 v{vQLw}, s{sT}, v{t2}
v_mul_u32_u24 v{t2}, 320, v{n4}
v_lshl_add_u32 v{vQLr}, v{g}, 4, v{t2}
v_lshlrev_b32 v{t2}, 6, v{n4}
v_lshl_add_u32 v{vPr}, v{g}, 4, v{t2}
s_lshl_b32 s{sT}, {W}, 8
v_add_u32 v{vPw}, s{sT}, v{vPr}
v_lshlrev_b32 v{vSr}, 4, v{n4}
s_lshl_b32 s{sT}, {W}, 2
v_add_u32 v{vSw}, s{sT}, v{vSr}
v_lshlrev_b32 v{t2}, 9, v{g}
v_lshl_add_u32 v{vOG}, v{n16}, 4, v{t2}
s_lshl_b32 s{sOG}, {W}, 3
s_add_u32 s{sOG}, s{sOG}, {G}
s_lshl_b32 s{sOG}, s{sOG}, 2
s_add_u32 s{sOG}, s{sOG}, {B}
s_lshl_b32 s{sOG}, s{sOG}, 4
s_and_b32 s{sT}, s{sR4}, 1
s_add_u32 s{sOG}, s{sOG}, s{sT}
s_lshl_b32 s{sOG}, s{sOG}, 8
s_add_u32 s{sOG}, s{sOG}, {OF}
s_mul_i32 s{sT}, {W}, 192
v_lshlrev_b32 v{t2}, 3, v{n16}
v_lshl_add_u32 v{t2}, v{g}, 1, v{t2}
v_add_u32 v{vOLw}, s{sT}, v{t2}
v_mul_u32_u24 v{t2}, 192, v{n4}
v_lshl_add_u32 v{vOLr}, v{g}, 4, v{t2}
s_lshl_b32 s{sYst}, s{sCG}, 6
s_add_u32 s{sYst}, s{sYst}, s{sP}
s_lshl_b32 s{sYst}, s{sYst}, 11
s_add_u32 s{sYst}, s{sYst}, {OX + SOFF}
v_lshrrev_b32 v{t0}, 1, v{l}
v_and_b32 v{t1}, 1, v{l}
v_lshlrev_b32 v{t2}, 4, v{t1}
v_lshl_add_u32 v{vFG}, v{t0}, 11, v{t2}
s_lshl_b32 s{sFG}, s{sCG}, 12
s_add_u32 s{sFG}, s{sFG}, s{sP}
s_lshl_b32 s{sFG}, s{sFG}, 5
s_add_u32 s{sFG}, s{sFG}, {OX + SOFF}
YCOAL_OUT
v_cmp_gt_u32 vcc, 2, v{n16}
s_mov_b32 s{sCsc}, {f32(CSC)}
s_mov_b32 s{sP0}, 0x07060503
v_cndmask_b32 v{vOut}, v{t3}, v{t2}, vcc
s_mov_b32 s{sP1}, 0x07060502
s_mov_b32 s{sP2}, 0x07060501
s_mov_b32 s{sU0}, 0x04000c0c
s_mov_b32 s{sU1}, 0x0706000c
s_mov_b32 s{sM4}, 0x000f000f
s_mov_b32 s{sM4+1}, 0x000f000f
s_waitcnt lgkmcnt(0)
s_mul_i32 s{sTag}, s{sEp}, 1664525
s_add_u32 s{sTag}, s{sTag}, 1013904223
""")
    ya = f"""; coalesced y store: lanes < 32: w*512 + l*16
s_lshl_b32 s{sT}, {W}, 9
v_lshlrev_b32 v{t0}, 4, v{l}
v_add_u32 v{t0}, s{sT}, v{t0}
v_cmp_gt_u32 s[{sM4}:{sM4+1}], 32, v{l}
v_cmp_eq_u32 s[{sG1}:{sG1+1}], 1, v{g}
s_nop 0
v_cndmask_b32 v{vYst}, v{t3}, v{t0}, s[{sM4}:{sM4+1}]""" if ycoal else ""
    yo = (f"""; out voffset: g*1024 + (cg*128 + 2p' + (l&1))*2 for lanes n16<2 ; p' = p (0..63)
s_lshl_b32 s{sT}, s{sCG}, 6
s_add_u32 s{sT}, s{sT}, s{sP}
s_lshl_b32 s{sT}, s{sT}, 2
v_lshlrev_b32 v{t2}, 1, v{t1}
v_lshl_add_u32 v{t2}, v{g}, 10, v{t2}
v_add_u32 v{t2}, s{sT}, v{t2}""" if ycoal else f"""s_lshr_b32 s{sT}, s{sP}, 4
s_lshl_b32 s{sT}, s{sT}, 2
s_add_u32 s{sT}, s{sT}, s{sCG}
s_lshl_b32 s{sT}, s{sT}, 4
s_and_b32 s{sT2}, s{sP}, 15
s_add_u32 s{sT}, s{sT}, s{sT2}
s_lshl_b32 s{sT}, s{sT}, 4
v_lshlrev_b32 v{t2}, 3, v{t1}
v_lshl_add_u32 v{t2}, v{g}, 1, v{t2}
v_add_u32 v{t2}, s{sT}, v{t2}""")
    newL = []
    for ln in a.L:
        if "YCOAL_ADDR" in ln: newL += ["    " + x for x in ya.split("\n") if x]
        elif "YCOAL_OUT" in ln: newL += ["    " + x for x in yo.split("\n")]
        else: newL.append(ln)
    a.L = newL
    A32 = va(32, 4); B16 = va(16, 4); C32 = va(32, 4); E8 = va(8, 4); F8 = va(8, 4)
    ones = va(4, 4); fl = va(4, 4); fl1 = va(); QS4 = va(4, 4); OS8 = va(8, 4); sQS = sa(); sOS = sa(); sWcN = sa.n
    a(f"""
v_mov_b32 v{ones}, 0x3f803f80
v_mov_b32 v{ones+1}, 0x3f803f80
v_mov_b32 v{ones+2}, 0x3f803f80
v_mov_b32 v{ones+3}, 0x3f803f80
v_mov_b32 v{QS4+3}, s{sTag}
v_mov_b32 v{OS8+3}, s{sTag}
v_mov_b32 v{OS8+7}, s{sTag}
v_mov_b32 v{E8+3}, s{sTag}
v_mov_b32 v{E8+7}, s{sTag}
s_add_u32 s{sQS}, s{sQB}, {0 if sameS in (1, 2) else SOFF}
s_add_u32 s{sOS}, s{sOB}, {0 if sameS in (1, 3) else SOFF}
s_mov_b32 s{sCnt}, {spin}
s_movk_i32 s{sWcN}, {wthr}
""")
    if pt == 7: a(f"buffer_load_dword v{vPT}, v{vPTa}, s[28:31], 0 offen")
    lab = [0]
    def setflag(off): a(f"ds_write_b32 v{vFw}, v{vOne_c} offset:{off}")
    colder = []
    sWc = sa()
    stage = {"flush": []}
    def waitflags(group=None, single=None):
        lab[0] += 1; L = f"L_wf{lab[0]}"
        a(f"{L}:")
        if group is not None: a(f"ds_read_b128 {rng(fl,4)}, v{vFr} offset:{group}")
        if single is not None: a(f"ds_read_b32 v{fl1}, v{vFr} offset:{single}")
        a("s_waitcnt lgkmcnt(0)")
        if group is not None:
            a(f"v_min3_u32 v{fl}, v{fl}, v{fl+1}, v{fl+2}")
            if single is not None: a(f"v_min3_u32 v{fl}, v{fl}, v{fl+3}, v{fl1}")
            else: a(f"v_min_u32 v{fl}, v{fl}, v{fl+3}")
            r = fl
        else: r = fl1
        a(f"v_cmp_eq_u32 vcc, 0, v{r}\ns_cbranch_vccz {L}d\ns_sub_u32 s{sWc}, s{sWc}, 1\ns_cbranch_scc0 {L}\ns_branch {L}f\n{L}d:")
        colder.append([f"{L}f:"] + list(stage["flush"]) + [f"s_movk_i32 s{sWc}, {wthr}", f"s_branch {L}"])
    QFL = [f"buffer_store_dwordx4 {rng(QS4,4)}, v{vQst}, s[28:31], s{sQS} offen sc1"]
    OFL = [f"buffer_store_dwordx4 {rng(OS8,4)}, v{vOst}, s[28:31], s{sOS} offen sc1", f"buffer_store_dwordx4 {rng(OS8+4,4)}, v{vOst}, s[28:31], s{sOS} offen offset:64 sc1"]
    assert sWc == sWcN
    xb = A32; wa = A32 + 16; acc = C32
    a("s_waitcnt lgkmcnt(0)\ns_barrier")
    for s in range(4):
        a(f"ds_read_b128 {rng(xb+4*s,4)}, v{vXr+s}")
        a(f"ds_read_b64_tr_b16 {rng(wa+4*s,2)}, v{vWQr} offset:{s*4096}")
        a(f"ds_read_b64_tr_b16 {rng(wa+4*s+2,2)}, v{vWQr} offset:{s*4096 + 512}")
    for s in range(4):
        a(f"s_waitcnt lgkmcnt({3*(3-s)})")
        c = "0" if s == 0 else rng(acc,4)
        a(f"v_mfma_f32_16x16x32_bf16 {rng(acc,4)}, {rng(wa+4*s,4)}, {rng(xb+4*s,4)}, {c}")
    a(f"""
s_nop 7
v_perm_b32 v{QS4}, v{acc}, v{acc+3}, s{sP0}
v_perm_b32 v{QS4+1}, v{acc+1}, v{acc+3}, s{sP1}
v_perm_b32 v{QS4+2}, v{acc+2}, v{acc+3}, s{sP2}
buffer_store_dwordx4 {rng(QS4,4)}, v{vQst}, s[28:31], s{sQB} offen
""")
    setflag(F_QI)
    stage["flush"] = QFL
    if pt in (9, 10, 11, 12):
        for x_ in ypt: a(x_)
    if pt in (2, 6): a(f"buffer_load_dword v{vPT}, v{vPTa}, s[28:31], 0 offen" + (" nt" if pt == 2 else ""))
    ST_("q published")
    if warm and warm2:
        a("; WARM_MID")
        a("s_mov_b64 exec, 0")
        for p in range(1, nparts):
            a(f"s_cmp_eq_u32 {W}, {p}\ns_cbranch_scc1 HOPB_P{p}")
        a("s_branch HOPB_P0\nL_warm_doneB:\ns_mov_b64 exec, -1")
        a("; WARM_MID2")
    gq = F8
    if gmin:
        sGm = sa()
        a(f"""s_movk_i32 s{sGm}, {gmin}
L_gom:
ds_read_b32 v{fl1}, v{vFr} offset:{F_GO}
s_waitcnt lgkmcnt(0)
s_sub_u32 s{sGm}, s{sGm}, 1
s_cbranch_scc0 L_gom""")
    waitflags(single=F_GO)
    ST_("GO")
    a(f"buffer_load_dwordx4 {rng(gq,4)}, v{vG}, s[28:31], s{sG} offen sc1")
    a(f"buffer_load_dwordx4 {rng(gq+4,4)}, v{vG}, s[28:31], s{sG} offen offset:2048 sc1")
    if pt == 4: a(f"buffer_load_dword v{vPT}, v{vPTa}, s[28:31], 0 offen nt")
    if pt == 13:
        dum = va(2, 2)
        a(f"buffer_load_dword v{dum}, v{vOG}, s[28:31], s{sOG} offen sc1")
        a(f"buffer_load_dword v{dum+1}, v{vOG}, s[28:31], s{sOG} offen offset:2048 sc1")
    if pt == 14:
        dum = va(2, 2)
        a(f"buffer_load_dword v{dum}, v{vOG}, s[28:31], s{sOG} offen sc1")
        a(f"buffer_load_dword v{dum+1}, v{vOG}, s[28:31], s{sOG} offen offset:2048 sc1")
        dum2 = va(2, 2)
        a(f"s_add_u32 s{sT2}, s{sFG}, 65536")
        a(f"buffer_load_dword v{dum2}, v{vFG}, s[28:31], s{sFG} offen sc1")
        a(f"buffer_load_dword v{dum2+1}, v{vFG}, s[28:31], s{sT2} offen sc1")
    setflag(F_GI)
    ka = A32
    if lgo < 49: waitflags(single=F_K)
    for t in range(2):
        for s_ in range(4):
            a(f"ds_read_b128 {rng(ka+16*t+4*s_,4)}, v{vKr+s_} offset:{t*4096}")
    sa_tmp = sa(2, 2)
    cold = []
    def poll(name, regs, vaddr, soff, first_wait, offs, flush):
        a(f"s_waitcnt vmcnt({first_wait})\nL_{name}chk:")
        for i, r in enumerate(regs):
            if i == 0: a(f"v_cmp_ne_u32 vcc, s{sTag}, v{r+3}")
            else: a(f"v_cmp_ne_u32 s[{sa_tmp}:{sa_tmp+1}], s{sTag}, v{r+3}\ns_or_b64 vcc, vcc, s[{sa_tmp}:{sa_tmp+1}]")
        a(f"s_cbranch_vccnz L_{name}retry\nL_{name}ok:")
        c = [f"L_{name}retry:", f"s_sub_u32 s{sCnt}, s{sCnt}, 1", f"s_cbranch_scc1 L_{name}ok",
             f"s_cmp_gt_u32 s{sCnt}, {spin - nf}", f"s_cbranch_scc1 L_{name}re",
             f"s_cmp_lg_u32 s{sCnt}, {spin - nf}", f"s_cbranch_scc1 L_{name}tg"] + flush + [f"L_{name}tg:"] + ([] if (sameS == 1 or (sameS == 2 and name == "q") or (sameS == 3 and name == "o")) else [f"s_xor_b32 s{soff}, s{soff}, {SOFF}"]) + [f"L_{name}re:"]
        for r, o in zip(regs, offs):
            c.append(f"buffer_load_dwordx4 {rng(r,4)}, v{vaddr}, s[28:31], s{soff} offen offset:{o} sc1")
        c += ["s_waitcnt vmcnt(0)", f"s_branch L_{name}chk"]
        cold.append((name, c))
    poll("q", [gq, gq+4], vG, sG, {4: 1, 13: 2, 14: 4}.get(pt, 0), [0, 2048], QFL)
    if holdwo: setflag(F_GOK)
    ST_("q gathered")
    u = E8; qb = B16
    a(f"""
v_perm_b32 v{u}, v{gq}, v{gq+1}, s{sU0}
v_perm_b32 v{u+1}, v{gq+4}, v{gq+5}, s{sU0}
v_add_f32 v{u+4}, v{gq}, v{gq+4}
v_add_f32 v{u+6}, v{gq+2}, v{gq+6}
v_perm_b32 v{u}, v{u}, v{gq+2}, s{sU1}
v_perm_b32 v{u+1}, v{u+1}, v{gq+6}, s{sU1}
v_add_f32 v{u+5}, v{gq+1}, v{gq+5}
v_add_f32 v{u+7}, v{u}, v{u+1}
v_permlane32_swap_b32 v{u+4}, v{u+6}
s_nop 0
v_permlane32_swap_b32 v{u+5}, v{u+7}
v_add_f32 v{u+4}, v{u+4}, v{u+6}
v_add_f32 v{u+5}, v{u+5}, v{u+7}
v_cvt_pk_bf16_f32 v{u}, v{u+4}, v{u+5}
ds_write_b32 v{vQLw}, v{u} offset:{QL}
""")
    setflag(F_Q)
    waitflags(group=F_Q)
    for s in range(4):
        a(f"ds_read_b128 {rng(qb+4*s,4)}, v{vQLr} offset:{QL + s*64}")
    sc = C32
    for s in range(4):
        a(f"s_waitcnt lgkmcnt({3-s})")
        for t in range(2):
            c = "0" if s == 0 else rng(sc+4*t,4)
            a(f"v_mfma_f32_16x16x32_bf16 {rng(sc+4*t,4)}, {rng(ka+16*t+4*s,4)}, {rng(qb+4*s,4)}, {c}")
    m = va(2, 2); mt = va(); pk = E8
    sC2 = sa(2, 2)
    a(f"""
s_mov_b32 s{sC2}, s{sCsc}
s_mov_b32 s{sC2+1}, s{sCsc}
s_nop 4
v_max3_f32 v{m}, v{sc}, v{sc+1}, v{sc+2}
v_max3_f32 v{mt}, v{sc+3}, v{sc+4}, v{sc+5}
v_max3_f32 v{m}, v{m}, v{sc+6}, v{sc+7}
v_max_f32 v{m}, v{m}, v{mt}
v_mov_b32 v{mt}, v{m}
s_nop 1
v_permlane16_swap_b32 v{m}, v{mt}
v_max_f32 v{m}, v{m}, v{mt}
v_mov_b32 v{mt}, v{m}
s_nop 1
v_permlane32_swap_b32 v{m}, v{mt}
v_max_f32 v{m}, v{m}, v{mt}
v_mul_f32 v{m}, s{sCsc}, v{m}
""")
    for i in range(0, 8, 2):
        a(f"v_pk_fma_f32 v[{sc+i}:{sc+i+1}], v[{sc+i}:{sc+i+1}], s[{sC2}:{sC2+1}], v[{m}:{m+1}] op_sel_hi:[1,1,0] neg_lo:[0,0,1] neg_hi:[0,0,1]")
    a(f"s_mov_b64 exec, s[{sM4}:{sM4+1}]\nds_write_b32 v{vSw}, v{m} offset:{SL}\ns_mov_b64 exec, -1")
    for i in range(8):
        a(f"v_exp_f32 v{sc+i}, v{sc+i}")
        if i == 2: a(f"v_cvt_pk_bf16_f32 v{pk}, v{sc}, v{sc+1}")
        if i == 4: a(f"v_cvt_pk_bf16_f32 v{pk+1}, v{sc+2}, v{sc+3}")
        if i == 6: a(f"v_cvt_pk_bf16_f32 v{pk+2}, v{sc+4}, v{sc+5}")
    a(f"""
s_mov_b64 exec, s[{sM4}:{sM4+1}]
v_cvt_pk_bf16_f32 v{pk+3}, v{sc+6}, v{sc+7}
ds_write_b128 v{vPw}, {rng(pk,4)} offset:{PL}
s_mov_b64 exec, -1
""")
    setflag(F_P)
    a(f"s_mov_b32 s{sCnt}, {spin}")
    waitflags(group=F_P)
    ST_("P written")
    pb = B16; sv = F8; vaop = A32; D = C32
    lk = va(16, 4)
    M = va(); ff = va(4, 2); L = va(); Rr = va(); lse = va()
    a(f"ds_read_b128 {rng(sv,4)}, v{vSr} offset:{SL}")
    for ks in range(4):
        a(f"ds_read_b128 {rng(pb+4*ks,4)}, v{vPr} offset:{PL + ks*256}")
    a(f"ds_read_b32 v{fl1}, v{vFr} offset:{F_V}")
    a(f"""
s_waitcnt lgkmcnt(5)
v_max3_f32 v{M}, v{sv}, v{sv+1}, v{sv+2}
v_max_f32 v{M}, v{M}, v{sv+3}
v_sub_f32 v{ff}, v{sv}, v{M}
v_sub_f32 v{ff+1}, v{sv+1}, v{M}
v_sub_f32 v{ff+2}, v{sv+2}, v{M}
v_sub_f32 v{ff+3}, v{sv+3}, v{M}
""")
    for ks in range(4):
        a(f"s_waitcnt lgkmcnt({4-ks})")
        a(f"v_mfma_f32_16x16x32_bf16 {rng(lk+4*ks,4)}, {rng(ones,4)}, {rng(pb+4*ks,4)}, 0")
        a(f"v_exp_f32 v{ff+ks}, v{ff+ks}")
    def vread(ks):
        for tp in range(2):
            for e in range(2):
                a(f"ds_read_b64_tr_b16 {rng(vaop+8*ks+4*tp+2*e,2)}, v{vVr+tp} offset:{ks*8192 + e*4096}")
    def pv(ks):
        for tp in range(2):
            a(f"v_mfma_f32_16x16x32_bf16 {rng(D+8*ks+4*tp,4)}, {rng(vaop+8*ks+4*tp,4)}, {rng(pb+4*ks,4)}, 0")
    stats2 = f"""v_mul_f32 v{L}, v{ff}, v{lk}
v_fmac_f32 v{L}, v{ff+1}, v{lk+4}
v_fmac_f32 v{L}, v{ff+2}, v{lk+8}
v_fmac_f32 v{L}, v{ff+3}, v{lk+12}
v_rcp_f32 v{Rr}, v{L}
v_log_f32 v{lse}, v{L}
s_nop 0
v_mul_f32 v{ff}, v{ff}, v{Rr}
v_mul_f32 v{ff+1}, v{ff+1}, v{Rr}
v_mul_f32 v{ff+2}, v{ff+2}, v{Rr}
v_mul_f32 v{ff+3}, v{ff+3}, v{Rr}
v_add_f32 v{OS8+2}, v{lse}, v{M}
v_add_f32 v{OS8+6}, v{lse}, v{M}"""
    o = F8
    def scale(ks):
        base = ff + (ks & ~1); sel = ks & 1; fr = f"v[{base}:{base+1}]"
        for tp in range(2):
            for h in range(2):
                dst = rng(o+4*tp+2*h, 2); src = rng(D+8*ks+4*tp+2*h, 2)
                if ks == 0: a(f"v_pk_mul_f32 {dst}, {src}, {fr} op_sel:[0,{sel}] op_sel_hi:[1,{sel}]")
                else: a(f"v_pk_fma_f32 {dst}, {src}, {fr}, {dst} op_sel:[0,{sel},0] op_sel_hi:[1,{sel},1]")
    a(f"s_waitcnt lgkmcnt(0)\nv_cmp_ne_u32 vcc, 0, v{fl1}\ns_cbranch_vccnz L_vfast\ns_nop 3")
    if pvp:
        assert nmid == 24
        F_V1 = F_GOK
        waitflags(single=F_V1)
        vread(0); vread(1); vread(2)
        a(stats2)
        a("s_waitcnt lgkmcnt(8)"); pv(0)
        a("s_waitcnt lgkmcnt(4)"); pv(1)
        a("s_waitcnt lgkmcnt(0)"); pv(2)
        a("s_nop 1")
        scale(0); scale(1); scale(2)
        waitflags(single=F_V)
        ST_("V landed")
        vread(3)
        a("s_waitcnt lgkmcnt(0)"); pv(3)
        a("s_nop 7")
        scale(3)
        a("s_branch L_vdone")
    else:
        a(stats2)
        waitflags(single=F_V)
        ST_("V landed")
        vread(0); vread(1); vread(2)
        a("s_branch L_vjoin")
    a("L_vfast:")
    vread(0); vread(1); vread(2)
    a(stats2)
    a("L_vjoin:")
    a("s_waitcnt lgkmcnt(8)"); pv(0); vread(3)
    a("s_waitcnt lgkmcnt(8)"); pv(1)
    a("s_waitcnt lgkmcnt(4)"); pv(2)
    a("s_waitcnt lgkmcnt(0)"); pv(3)
    for ks in range(4): scale(ks)
    a("L_vdone:")
    og = OS8
    a(f"""
v_cvt_pk_bf16_f32 v{og}, v{o}, v{o+1}
v_cvt_pk_bf16_f32 v{og+1}, v{o+2}, v{o+3}
v_cvt_pk_bf16_f32 v{og+4}, v{o+4}, v{o+5}
v_cvt_pk_bf16_f32 v{og+5}, v{o+6}, v{o+7}
buffer_store_dwordx4 {rng(og,4)}, v{vOst}, s[28:31], s{sOB} offen
buffer_store_dwordx4 {rng(og+4,4)}, v{vOst}, s[28:31], s{sOB} offen offset:64
""")
    setflag(F_OI)
    stage["flush"] = QFL + OFL
    ST_("o published")
    gg = B16; wb = A32
    if not nooi: waitflags(group=F_OI)
    if nooi:
        waitflags(single=F_W)
        for s_ in range(2):
            for tp in range(2):
                for hh in range(2):
                    a(f"ds_read_b64_tr_b16 {rng(wb+8*s_+4*tp+2*hh,2)}, v{vWOr+tp} offset:{s_*8192 + hh*1024}")
    a(f"""
buffer_load_dwordx4 {rng(gg,4)}, v{vOG}, s[28:31], s{sOG} offen sc1
buffer_load_dwordx4 {rng(gg+4,4)}, v{vOG}, s[28:31], s{sOG} offen offset:2048 sc1
""")
    if not nooi:
        waitflags(single=F_W)
        for s in range(2):
            for tp in range(2):
                for hh in range(2):
                    a(f"ds_read_b64_tr_b16 {rng(wb+8*s+4*tp+2*hh,2)}, v{vWOr+tp} offset:{s*8192 + hh*1024}")
    poll("o", [gg, gg+4], vOG, sOG, 0, [0, 2048], QFL + OFL)
    ST_("o gathered")
    e0 = va(); e1 = va(); u = A32 + 16; S = va(); oo = A32 + 24
    a(f"""
v_max_f32 v{M}, v{gg+2}, v{gg+6}
v_mov_b32 v{mt}, v{M}
v_lshlrev_b32 v{u}, 16, v{gg}
v_and_b32 v{u+1}, 0xffff0000, v{gg}
v_permlane16_swap_b32 v{M}, v{mt}
v_lshlrev_b32 v{u+2}, 16, v{gg+1}
v_max_f32 v{M}, v{M}, v{mt}
v_mov_b32 v{mt}, v{M}
v_and_b32 v{u+3}, 0xffff0000, v{gg+1}
v_lshlrev_b32 v{u+4}, 16, v{gg+4}
v_permlane32_swap_b32 v{M}, v{mt}
v_and_b32 v{u+5}, 0xffff0000, v{gg+4}
v_max_f32 v{M}, v{M}, v{mt}
v_lshlrev_b32 v{u+6}, 16, v{gg+5}
v_sub_f32 v{e0}, v{gg+2}, v{M}
v_sub_f32 v{e1}, v{gg+6}, v{M}
v_exp_f32 v{e0}, v{e0}
v_exp_f32 v{e1}, v{e1}
v_and_b32 v{u+7}, 0xffff0000, v{gg+5}
v_add_f32 v{S}, v{e0}, v{e1}
v_mul_f32 v{oo}, v{e0}, v{u}
v_mul_f32 v{oo+1}, v{e0}, v{u+1}
v_mov_b32 v{mt}, v{S}
v_mul_f32 v{oo+2}, v{e0}, v{u+2}
v_mul_f32 v{oo+3}, v{e0}, v{u+3}
v_permlane16_swap_b32 v{S}, v{mt}
v_fmac_f32 v{oo}, v{e1}, v{u+4}
v_fmac_f32 v{oo+1}, v{e1}, v{u+5}
v_add_f32 v{S}, v{S}, v{mt}
v_fmac_f32 v{oo+2}, v{e1}, v{u+6}
v_fmac_f32 v{oo+3}, v{e1}, v{u+7}
v_mov_b32 v{mt}, v{S}
v_permlane16_swap_b32 v{oo}, v{oo+1}
s_nop 0
v_permlane16_swap_b32 v{oo+2}, v{oo+3}
v_permlane32_swap_b32 v{S}, v{mt}
v_add_f32 v{oo}, v{oo}, v{oo+1}
v_add_f32 v{oo+2}, v{oo+2}, v{oo+3}
v_add_f32 v{S}, v{S}, v{mt}
s_nop 0
v_permlane32_swap_b32 v{oo}, v{oo+2}
v_rcp_f32 v{S}, v{S}
v_add_f32 v{oo}, v{oo}, v{oo+2}
v_mul_f32 v{oo}, v{oo}, v{S}
v_cvt_pk_bf16_f32 v{oo}, v{oo}, v{oo}
ds_write_b16 v{vOLw}, v{oo} offset:{OL}
""")
    setflag(F_O)
    a(f"s_add_u32 s{sT2}, s{sFG}, 65536\ns_mov_b32 s{sCnt}, {spin}")
    waitflags(group=F_O)
    ob = B16 + 8; y = C32; yg = E8
    a(f"""
ds_read_b128 {rng(ob,4)}, v{vOLr} offset:{OL}
ds_read_b128 {rng(ob+4,4)}, v{vOLr} offset:{OL+64}
""")
    for s in range(2):
        a(f"s_waitcnt lgkmcnt({1-s})")
        for tp in range(2):
            c = "0" if s == 0 else rng(y+4*tp,4)
            if ycoal: a(f"v_mfma_f32_16x16x32_bf16 {rng(y+4*tp,4)}, {rng(ob+4*s,4)}, {rng(wb+8*s+4*tp,4)}, {c}")
            else: a(f"v_mfma_f32_16x16x32_bf16 {rng(y+4*tp,4)}, {rng(wb+8*s+4*tp,4)}, {rng(ob+4*s,4)}, {c}")
    if ycoal:
        a(f"v_mov_b32 v{E8+3}, s{sTag}\ns_nop 6")
        for r in range(4): a(f"v_cndmask_b32 v{y+r}, v{y+r}, v{y+4+r}, s[{sG1}:{sG1+1}]")
        a(f"""v_perm_b32 v{yg}, v{y}, v{y+3}, s{sP0}
v_perm_b32 v{yg+1}, v{y+1}, v{y+3}, s{sP1}
v_perm_b32 v{yg+2}, v{y+2}, v{y+3}, s{sP2}
buffer_store_dwordx4 {rng(yg,4)}, v{vYst}, s[28:31], s{sYst} offen sc1""")
    else:
        a(f"v_mov_b32 v{E8+3}, s{sTag}\nv_mov_b32 v{E8+7}, s{sTag}\ns_nop 4")
        for tp in range(2):
            a(f"""v_perm_b32 v{yg+4*tp}, v{y+4*tp}, v{y+4*tp+3}, s{sP0}
v_perm_b32 v{yg+4*tp+1}, v{y+4*tp+1}, v{y+4*tp+3}, s{sP1}
v_perm_b32 v{yg+4*tp+2}, v{y+4*tp+2}, v{y+4*tp+3}, s{sP2}
buffer_store_dwordx4 {rng(yg+4*tp,4)}, v{vYst}, s[28:31], s{sYst} offen offset:{tp*64} sc1""")
    setflag(F_YI)
    ST_("y published")
    waitflags(group=F_YI)
    if not noflush:
        for x_ in QFL + OFL: a(x_)
    if dirty:
        a(f"s_lshl_b32 s{sT}, s2, 2\ns_add_u32 s{sT}, s{sT}, {W}\ns_mul_i32 s{sT}, s{sT}, {dirty*1024}\ns_add_u32 s{sT}, s{sT}, 0x800000\nv_lshlrev_b32 v{t0}, 4, v{l}")
        for i in range(dirty):
            a(f"buffer_store_dwordx4 {rng(C32,4)}, v{t0}, s[28:31], s{sT} offen\ns_add_u32 s{sT}, s{sT}, 1024")
    z = C32 + 24
    fg = C32 + 16
    FM = {0: ' sc1', 1: ' sc1 nt', 2: ' sc0 sc1', 3: ' sc0 sc1 nt'}[fmode]
    a(f"""s_cmp_lg_u32 {W}, 0
s_cbranch_scc1 L_fin
L_fpoll:
buffer_load_dwordx4 {rng(fg,4)}, v{vFG}, s[28:31], s{sFG} offen{FM}
buffer_load_dwordx4 {rng(fg+4,4)}, v{vFG}, s[28:31], s{sT2} offen{FM}
s_waitcnt vmcnt(0)
v_cmp_ne_u32 vcc, s{sTag}, v{fg+3}
v_cmp_ne_u32 s[{sa_tmp}:{sa_tmp+1}], s{sTag}, v{fg+7}
s_or_b64 vcc, vcc, s[{sa_tmp}:{sa_tmp+1}]
s_cbranch_vccz L_fok
{('s_sleep ' + str(fsleep)) if fsleep else 's_nop 0'}
s_sub_u32 s{sCnt}, s{sCnt}, 1
s_cbranch_scc0 L_fpoll
L_fok:""")
    ST_("final gathered")
    a(f"""
v_perm_b32 v{z+3}, v{fg}, v{fg+1}, s{sU0}
v_perm_b32 v{z+7}, v{fg+4}, v{fg+5}, s{sU0}
v_add_f32 v{z}, v{fg}, v{fg+4}
v_perm_b32 v{z+3}, v{z+3}, v{fg+2}, s{sU1}
v_perm_b32 v{z+7}, v{z+7}, v{fg+6}, s{sU1}
v_add_f32 v{z+1}, v{fg+1}, v{fg+5}
v_add_f32 v{z+2}, v{fg+2}, v{fg+6}
v_add_f32 v{z+3}, v{z+3}, v{z+7}
""")
    for ctl in ("quad_perm:[2,3,0,1]", "row_ror:4", "row_ror:8"):
        for r in range(4):
            a(f"v_add_f32_dpp v{z+r}, v{z+r}, v{z+r} {ctl} row_mask:0xf bank_mask:0xf")
    a(f"""
s_nop 0
v_permlane16_swap_b32 v{z}, v{z+1}
v_permlane16_swap_b32 v{z+2}, v{z+3}
s_nop 0
v_add_f32 v{z}, v{z}, v{z+1}
v_add_f32 v{z+2}, v{z+2}, v{z+3}
s_nop 1
v_permlane32_swap_b32 v{z}, v{z+2}
s_nop 0
v_add_f32 v{z}, v{z}, v{z+2}
v_cvt_pk_bf16_f32 v{z}, v{z}, v{z}
buffer_store_short v{z}, v{vOut}, s[32:35], 0 offen
s_cmp_lg_u32 s2, 0
s_cbranch_scc1 L_fin
v_mov_b32 v{t0}, s{sTag}
v_mov_b32 v{t1}, {WSB}
s_mov_b64 exec, 1
buffer_store_dword v{t0}, v{t1}, s[28:31], 0 offen sc1
s_mov_b64 exec, -1
L_fin:
""")
    a("s_branch L_tail" if stamp else "s_endpgm")
    for name, c in cold:
        for x_ in c: a(x_)
    a("; WARM_END")
    for c in colder:
        for x_ in c: a(x_)
    a("L_tail:")
    if stamp:
        a(f"s_mov_b32 s31, 0x20000\ns_mov_b32 s30, {WS_BYTES}")
    if amp >= 0:
        ST_("end")
        e = nst[0] - 1
        a(f"""
s_waitcnt lgkmcnt(0)
s_cmp_lg_u32 {W}, {ampw}
s_cbranch_scc1 L_end
""")
        if ampglob:
            a(f"""
s_lshl_b32 s37, s2, 3
s_add_u32 s37, s37, {ST}
v_mov_b32 v{C32}, s{SB}
v_mov_b32 v{C32+1}, s{sTag}
v_mov_b32 v{t1}, 0
s_mov_b64 exec, 1
buffer_store_dwordx2 v[{C32}:{C32+1}], v{t1}, s[28:31], s37 offen sc1
s_mov_b64 exec, -1
""")
        a(f"""
s_cmp_lg_u32 s2, 0
s_cbranch_scc1 L_end
""")
        OP, OPD, SOP = ('v_add_u32', 'v_add_u32_dpp', 's_add_i32') if ampglob == 2 else ('v_min_i32', 'v_min_i32_dpp', 's_min_i32')
        SHR = 's_ashr_i32 s36, s36, 8' if ampglob == 2 else 's_nop 0'
        if ampglob:
            a(f"""
s_mov_b32 s37, {ST}
v_lshlrev_b32 v{t1}, 5, v{l}
L_ag:
buffer_load_dwordx4 v[{C32}:{C32+3}], v{t1}, s[28:31], s37 offen sc1
buffer_load_dwordx4 v[{C32+4}:{C32+7}], v{t1}, s[28:31], s37 offen offset:16 sc1
s_waitcnt vmcnt(0)
v_cmp_ne_u32 vcc, s{sTag}, v{C32+1}
v_cmp_ne_u32 s[40:41], s{sTag}, v{C32+3}
s_or_b64 vcc, vcc, s[40:41]
v_cmp_ne_u32 s[40:41], s{sTag}, v{C32+5}
s_or_b64 vcc, vcc, s[40:41]
v_cmp_ne_u32 s[40:41], s{sTag}, v{C32+7}
s_or_b64 vcc, vcc, s[40:41]
s_cbranch_vccnz L_ag
v_subrev_u32 v{C32}, s{SB}, v{C32}
v_subrev_u32 v{C32+2}, s{SB}, v{C32+2}
v_subrev_u32 v{C32+4}, s{SB}, v{C32+4}
v_subrev_u32 v{C32+6}, s{SB}, v{C32+6}
{OP} v{C32}, v{C32}, v{C32+2}
{OP} v{C32+4}, v{C32+4}, v{C32+6}
{OP} v{C32}, v{C32}, v{C32+4}
s_nop 1
{OPD} v{C32}, v{C32}, v{C32} row_ror:1 row_mask:0xf bank_mask:0xf
s_nop 1
{OPD} v{C32}, v{C32}, v{C32} row_ror:2 row_mask:0xf bank_mask:0xf
s_nop 1
{OPD} v{C32}, v{C32}, v{C32} row_ror:4 row_mask:0xf bank_mask:0xf
s_nop 1
{OPD} v{C32}, v{C32}, v{C32} row_ror:8 row_mask:0xf bank_mask:0xf
s_nop 1
v_readlane_b32 s36, v{C32}, 0
v_readlane_b32 s37, v{C32}, 16
v_readlane_b32 s38, v{C32}, 32
v_readlane_b32 s39, v{C32}, 48
s_nop 3
{SOP} s36, s36, s37
{SOP} s38, s38, s39
{SOP} s36, s36, s38
{SHR}
s_sub_u32 s37, s{SB+2*amp}, s{SB}
s_sub_u32 s37, s37, s36
s_memrealtime s[40:41]
s_waitcnt lgkmcnt(0)
s_mul_i32 s37, s37, {ampk}
s_add_u32 s37, s37, s40
""")
        else:
            a(f"""
s_sub_u32 s37, s{SB+2*amp}, s{SB+2*ampj}
s_mul_i32 s37, s37, {ampk}
s_add_u32 s37, s37, s{SB+2*e}
""")
        a(f"""
L_amp:
s_memrealtime s[40:41]
s_waitcnt lgkmcnt(0)
s_cmp_lt_u32 s40, s37
s_cbranch_scc1 L_amp
""")
    elif stamp:
        ST_("end")
        if stamp == 2:
            a("s_waitcnt vmcnt(0)")
            ST_("end2")
        n = nst[0]
        a(f"""
s_waitcnt lgkmcnt(0) vmcnt(0)
s_mul_i32 s4, s2, 8
s_add_u32 s4, s4, s3
s_lshl_b32 s4, s4, 6
s_add_u32 s4, s4, {ST}
v_mov_b32 v{t1}, 0
s_mov_b64 exec, 1
""")
        for i in range(n):
            a(f"v_mov_b32 v{t0}, s{SB+2*i}\nbuffer_store_dword v{t0}, v{t1}, s[28:31], s4 offen offset:{4*i}\ns_nop 0")
    a("L_end:\ns_endpgm")
    lines = a.L
    nh = 0
    if warm and warm2:
        if warm2 != 3:
            lines, n1_ = hops.insert_chain(lines, nparts, "; WARM_START", "; WARM_MID", "A", wstride, predef=("A", "B"))
        else: n1_ = 0
        lines, n2_ = hops.insert_chain(lines, nparts, "; WARM_MID2", "; WARM_END", "B", wstride, predef=("B",))
        nh = n1_ + n2_; have = nparts
    elif warm:
        if warml: lines, nh, have = hops.insert_multi(lines, nparts, [("; LWARM_START", "; LWARM_END"), ("; WARM_START", "; WARM_END")])
        else: lines, nh, have = hops.insert(lines, nparts)
        assert have == nparts, (have, nparts)
    body = "\n".join(lines) + "\n"
    assert (not stamp) or (sa.hi <= SB and ls.hi <= SB), (sa.hi, ls.hi)
    nv = max(va.hi, lv.hi)
    s = header([f"; @launch grid=(256,1,1) block=(320,1,1) lds={LDS_BYTES}"], DOC) + kernel_begin(KNAME) + body + RODATA + descriptor(KNAME, nv, 102 if stamp else max(sa.hi, ls.hi))
    errs = haz.check(body)
    for e in errs: print("HAZ", e)
    return s, nv, sa.hi, nh, stn
if __name__ == "__main__":
    out = sys.argv[1]
    kw = {}
    for x in sys.argv[2:]:
        k, v = x.split("=")
        if k in ("warm", "prio", "holdwo", "rot", "rotq", "ilv", "ycoal", "xnt", "xfirst", "pvp"): kw[k] = (v == "1")
        elif k == "nt": kw[k] = (" " + v if v else "")
        else: kw[k] = int(v)
    s, nv, ns, nh, stn = gen(**kw)
    open(out, "w").write(s)
    print("vgprs", nv, "sgprs", ns, "hops", nh, "lds", LDS_BYTES, stn)
```

```python
import sys, struct
sys.path.insert(0, "my")
from ag import *
import haz, hops

import os
WSB = int(os.environ.get('WSB', '0'), 0)
QF = WSB + 0x10000
OF = WSB + 0x80000
OX = WSB + 0x100000
SOFF = 0x200000
ST = 0x400000
WS_BYTES = 268435456
QL = 0
PL = QL + 1280
SL = PL + 1024
OL = SL + 64
FL = 3136
JK = FL + 160
XL = 3840; WQ = XL + 1024; KL = WQ + 16384; VL = KL + 32768
import os
if os.environ.get('ALIAS', '0') == '1':
    WO = WQ; LDS_BYTES = VL + 32768
else:
    WO = VL + 32768; LDS_BYTES = WO + 16384
assert OL + 768 <= FL and JK + 416 <= XL and XL % 256 == 0 and WQ % 256 == 0
F_Q, F_P, F_O, F_GI, F_QI, F_GOK, F_OI, F_YI, F_GO, F_K, F_V, F_W = 0, 16, 32, 48, 64, 80, 96, 112, 128, 132, 136, 140
CSC = 0.08838834764831845 * 1.4426950408889634
def f32(x): return "0x%08x" % struct.unpack("<I", struct.pack("<f", x))[0]
DOC = """;
; Sliding-window GQA decode (q-proj -> attention over the last 1024 keys -> out-proj), one launch.
; Wave 4 = loader: streams wq/x/K/V/wo tiles HBM -> LDS with LDS-DMA (nt), a bounded number in flight.
; Hand-offs between workgroups: 16-byte granules {payload, tag} in d_ws; tag = LCG(epoch word read from d_ws at entry),
; first copy alternates with the second, so the result does not depend on placement.  Step 7 uses sc1 only.
; Intra-workgroup hand-offs use LDS flag words.  The vector memory path of a CU completes in order, so the loader
; places the q stores and the q gather at chosen points of its stream and bounds the loads in flight.
; write, and walk the s_cbranch_execz chain (L_hB_N) with EXEC = 0 to pull the rest of the code into the
"""
class V:
    def __init__(s, n=0): s.n = n; s.hi = n
    def __call__(s, cnt=1, align=1):
        s.n = (s.n + align - 1) // align * align
        r = s.n; s.n += cnt; s.hi = max(s.hi, s.n)
        return r
def rng(r, n): return f"v[{r}:{r+n-1}]"
OOB = "0x7ffffff0"

def gen(stamp=False, nt=" nt", hold=0, kx=32, nmid=32, lgo=60, holdwo=False, rot=True, rotq=True, fd=1, defer=0, warm2=0, wstride=128, rot1k=0, shift=0, lshift=0, compact=0, b0e=0, gmin=0, warml=0, fmode=0, pvp=True, lwo=0, fsleep=0, nooi=0, n1p=0, noflush=0, sameS=0, dirty=0, cqx=0, xnt=False, xfirst=False, ilv=True, ycoal=True, wthr=2000, n3=0, n2=0, N=24, spin=100000, nf=64, amp=-1, ampk=10, ampglob=0, ampmin=0, ampj=0, ampw=0, warm=True, pt=1, nparts=4, prio=True, step=2):
    if amp >= 0: stamp = 2 if ampmin else True
    a = A(); va = V(1); sa = V(36)
    l = va(); t0 = va(); t1 = va(); t2 = va(); t3 = va()
    nst = [0]; stn = []
    SB = 74 if (pt == 12 or gmin) else 72
    def ST_(label):
        if stamp and (stamp != 2 or label in ('entry', 'end', 'end2')):
            i = nst[0]; nst[0] += 1; stn.append(label)
            assert i < (14 if (pt == 12 or gmin) else 15)
            a(f"s_memrealtime s[{SB+2*i}:{SB+1+2*i}]")
    W, G, R, B, C = "s3", "s4", "s5", "s6", "s7"
    sT = sa(); sT2 = sa(); sWin = sa()
    ST_("entry")
    if compact:
        a(f"""
s_cmp_ge_u32 s2, 256
s_cbranch_scc1 L_end
s_load_dwordx2 s[20:21], s[0:1], 24
s_load_dwordx2 s[8:9], s[0:1], 0
s_load_dwordx2 s[12:13], s[0:1], 8
""")
        if stamp: a("s_load_dwordx2 s[28:29], s[0:1], 56\ns_load_dwordx2 s[32:33], s[0:1], 40")
    else:
        a(f"""
s_cmp_ge_u32 s2, 256
s_cbranch_scc1 L_end
s_load_dwordx2 s[20:21], s[0:1], 24
s_load_dwordx2 s[8:9], s[0:1], 0
s_load_dwordx2 s[12:13], s[0:1], 8
s_load_dwordx2 s[28:29], s[0:1], 56
s_load_dwordx2 s[16:17], s[0:1], 16
s_load_dwordx2 s[24:25], s[0:1], 32
s_load_dwordx2 s[32:33], s[0:1], 40
""")
    a(f"""
v_lshrrev_b32 v{t0}, 6, v0
v_and_b32 v{l}, 63, v0
s_and_b32 {G}, s2, 7
v_readfirstlane_b32 {W}, v{t0}
s_lshr_b32 {R}, s2, 3
s_lshr_b32 {B}, {R}, 3
s_and_b32 {C}, {R}, 7
s_mov_b32 s23, 0x20000
v_lshrrev_b32 v{t0}, 4, v{l}
v_and_b32 v{t1}, 15, v{l}
""")
    if stamp: a(f"s_mov_b32 s31, s23\ns_mov_b32 s30, {WS_BYTES}\ns_mov_b32 s35, s23\ns_movk_i32 s34, 0x1000")
    a(f"""
s_cmp_lt_u32 {W}, 4
s_cbranch_scc1 L_compute
""")
    for _ in range(lshift // 4): a("s_nop 0")
    lv = V(va.n); ls = V(sa.n)
    vWQ = lv(2); vX = lv(); vK = lv(4); vV = lv(2); vWO = lv(2); vLF = lv(); vOne = lv()
    sWQ = ls(); sX = ls(); sK = ls(); sWO = ls(); lT = ls(); sWQb0 = ls()
    sRho = ls(); sJ = ls(); sC1 = ls(); sC2 = ls(); sR = ls(); sM = ls()
    if prio: a("s_setprio 2")
    if compact:
        if ilv:
            KW1 = f"s_lshl_b32 s{sWin}, s{sWin}, 3"; KW2 = f"s_add_u32 s{sWin}, s{sWin}, {C}"; KW3 = f"s_lshl_b32 s{sWin}, s{sWin}, 12"
            KR0 = f"s_lshl_b32 s{sR}, s{sRho}, 3"; KMASK = "0x38000"; KSTEP = "0x8000"; KM0 = f"s_movk_i32 m0, {KL}"; KM1 = "s_addk_i32 m0, 0x1000"
        else:
            KW1 = f"s_add_u32 s{sWin}, s{sWin}, {C}"; KW2 = f"s_lshl_b32 s{sWin}, s{sWin}, 15"; KW3 = "s_nop 0"
            KR0 = f"s_mov_b32 s{sR}, s{sRho}"; KMASK = "0x7fff"; KSTEP = "0x1000"; KM0 = f"s_add_u32 m0, s{sR}, {KL}"; KM1 = f"s_add_u32 m0, s{sR}, {KL}"
        assert kx % 4 == 0 and kx >= 24 and n1p == 24 and b0e and rot
        a(f"""
s_mov_b32 s22, 0x400000
v_and_b32 v{t2}, 7, v{l}
v_lshlrev_b32 v{t3}, 1, v{t0}
v_and_b32 v{vX}, 2, v{t3}
v_xor_b32 v{t2}, v{t2}, v{vX}
v_lshlrev_b32 v{t2}, 4, v{t2}
v_lshrrev_b32 v{vX}, 3, v{l}
v_lshl_add_u32 v{vWQ}, v{vX}, 13, v{t2}
v_xor_b32 v{vWQ+1}, 64, v{vWQ}
s_lshl_b32 s{sWQb0}, {G}, 3
s_add_u32 s{sWQb0}, s{sWQb0}, {C}
s_lshl_b32 s{sWQb0}, s{sWQb0}, 7
s_lshl_b32 s{lT}, {B}, 20
s_add_u32 s{sWQb0}, s{sWQb0}, s{lT}
s_mov_b32 s{sC1}, 64512
s_mov_b32 s{sC2}, 0xc0000
s_lshl_b32 s{sR}, {B}, 18
s_mov_b32 s{sM}, s{sR}
s_add_u32 s{sWQ}, s{sWQb0}, s{sR}
s_lshr_b32 s{lT}, s{sR}, 6
s_add_u32 m0, s{lT}, {WQ}
s_waitcnt lgkmcnt(0)
L_lwq:
buffer_load_dwordx4 v{vWQ}, s[20:23], s{sWQ} offen{nt} lds
s_add_u32 s{sWQ}, s{sWQ}, s{sC1}
buffer_load_dwordx4 v{vWQ+1}, s[20:23], s{sWQ} offen offset:1024{nt} lds
s_add_u32 s{sWQ}, s{sWQ}, s{sC1}
buffer_load_dwordx4 v{vWQ}, s[20:23], s{sWQ} offen offset:2048{nt} lds
s_add_u32 s{sWQ}, s{sWQ}, s{sC1}
buffer_load_dwordx4 v{vWQ+1}, s[20:23], s{sWQ} offen offset:3072{nt} lds
s_add_u32 s{sR}, s{sR}, 0x40000
s_and_b32 s{sR}, s{sR}, s{sC2}
s_add_u32 s{sWQ}, s{sWQb0}, s{sR}
s_lshr_b32 s{lT}, s{sR}, 6
s_add_u32 m0, s{lT}, {WQ}
s_cmp_lg_u32 s{sR}, s{sM}
s_cbranch_scc1 L_lwq
s_mov_b32 s11, s23
s_movk_i32 s10, 0x1000
v_lshlrev_b32 v{t2}, 2, v{t0}
v_xor_b32 v{t2}, v{t1}, v{t2}
v_lshlrev_b32 v{t2}, 4, v{t2}
v_lshl_add_u32 v{vX}, v{t0}, 10, v{t2}
s_lshl_b32 s{sX}, {B}, 8
s_movk_i32 m0, {XL}
s_load_dwordx2 s[16:17], s[0:1], 16
buffer_load_dwordx4 v{vX}, s[8:11], s{sX} offen lds
s_load_dwordx2 s[24:25], s[0:1], 32
""")
        ST_("L: wq issued")
        a(f"""
s_mov_b32 s15, s23
s_mov_b32 s14, 0x2000000
v_xor_b32 v{t2}, v{t1}, v{t0}
v_lshlrev_b32 v{t2}, 4, v{t2}
v_lshl_add_u32 v{vK}, v{t0}, 8, v{t2}
v_xor_b32 v{vK+1}, 64, v{vK}
v_xor_b32 v{vK+2}, 0x80, v{vK}
v_xor_b32 v{vK+3}, 0xc0, v{vK}
s_lshl_b32 s{sWin}, {B}, 3
s_add_u32 s{sWin}, s{sWin}, {G}
s_lshl_b32 s{sWin}, s{sWin}, 5
s_add_u32 s{sWin}, s{sWin}, 24
{KW1}
{KW2}
{KW3}
s_lshl_b32 s{sRho}, {B}, 1
s_add_u32 s{sRho}, s{sRho}, {G}
s_and_b32 s{sRho}, s{sRho}, 7
s_lshl_b32 s{sRho}, s{sRho}, 12
{KR0}
s_mov_b32 s{sM}, {KMASK}
{KM0}
s_movk_i32 s{sC1}, {kx // 4}
L_lk:
s_add_u32 s{sK}, s{sWin}, s{sR}
s_waitcnt vmcnt({n1p - 1})
buffer_load_dwordx4 v{vK}, s[12:15], s{sK} offen{nt} lds
s_waitcnt vmcnt({n1p - 1})
buffer_load_dwordx4 v{vK+1}, s[12:15], s{sK} offen offset:1024{nt} lds
s_waitcnt vmcnt({n1p - 1})
buffer_load_dwordx4 v{vK+2}, s[12:15], s{sK} offen offset:2048{nt} lds
s_waitcnt vmcnt({n1p - 1})
buffer_load_dwordx4 v{vK+3}, s[12:15], s{sK} offen offset:3072{nt} lds
s_add_u32 s{sR}, s{sR}, {KSTEP}
s_and_b32 s{sR}, s{sR}, s{sM}
{KM1}
s_sub_u32 s{sC1}, s{sC1}, 1
s_cmp_lg_u32 s{sC1}, {kx // 4 - 6}
s_cbranch_scc1 L_lk1
s_waitcnt vmcnt({n1p - 1})
s_barrier
L_lk1:
s_cmp_lg_u32 s{sC1}, 0
s_cbranch_scc1 L_lk
v_lshlrev_b32 v{t2}, 2, v{l}
v_add_u32 v{t2}, {JK}, v{t2}
v_cmp_eq_u32 vcc, 0, v{l}
v_mov_b32 v{vLF}, {FL}
v_mov_b32 v{vOne}, 1
v_cndmask_b32 v{vLF}, v{t2}, v{vLF}, vcc
""")
    else:
        a(f"""
s_mov_b32 s22, 0x400000
v_and_b32 v{t2}, 7, v{l}
v_lshlrev_b32 v{t3}, 1, v{t0}
v_and_b32 v{vX}, 2, v{t3}
v_xor_b32 v{t2}, v{t2}, v{vX}
v_lshlrev_b32 v{t2}, 4, v{t2}
v_lshrrev_b32 v{vX}, 3, v{l}
v_lshl_add_u32 v{vWQ}, v{vX}, 13, v{t2}
v_xor_b32 v{vWQ+1}, 64, v{vWQ}
s_lshl_b32 s{sWQb0}, {G}, 3
s_xor_b32 s{lT}, {C}, {cqx}
s_add_u32 s{sWQb0}, s{sWQb0}, s{lT}
s_lshl_b32 s{sWQb0}, s{sWQb0}, 7
s_lshl_b32 s{lT}, {B}, 20
s_add_u32 s{sWQb0}, s{sWQb0}, s{lT}
s_mov_b32 s11, s23
s_movk_i32 s10, 0x1000
s_mov_b32 s15, s23
s_mov_b32 s14, 0x2000000
; x voffset: (l>>4)*1024 + ((l&15) ^ (4*(l>>4)))*16
v_lshlrev_b32 v{t2}, 2, v{t0}
v_xor_b32 v{t2}, v{t1}, v{t2}
v_lshlrev_b32 v{t2}, 4, v{t2}
v_lshl_add_u32 v{vX}, v{t0}, 10, v{t2}
s_lshl_b32 s{sX}, {B}, 8
""")
    seq = []
    sWQb = sWQb0
    for i in range(16):
        pre = []
        if i % 4 == 0:
            j_ = i // 4
            if rotq:
                pre += [f"s_add_u32 s{sJ}, {B}, {j_}", f"s_and_b32 s{sJ}, s{sJ}, 3", f"s_lshl_b32 s{lT}, s{sJ}, 18", f"s_add_u32 s{sWQ}, s{sWQb}, s{lT}",
                        f"s_lshl_b32 s{lT}, s{sJ}, 12", f"s_add_u32 m0, s{lT}, {WQ}"]
            else:
                pre += [f"s_add_u32 s{sWQ}, s{sWQb}, {j_ << 18}", f"s_mov_b32 m0, {WQ + j_*4096}"]
            pre.append("s_nop 0")
        else:
            pre.append(f"s_add_u32 s{sWQ}, s{sWQ}, {65536 - 1024}")
        seq.append((pre, f"buffer_load_dwordx4 v{vWQ + (i & 1)}, s[20:23], s{sWQ} offen offset:{(i%4)*1024}{nt} lds"))
    seq.append(([f"s_movk_i32 m0, {XL}", "s_nop 0"], f"buffer_load_dwordx4 v{vX}, s[8:11], s{sX} offen{' nt' if xnt else ''} lds"))
    if xfirst: seq.insert(0, seq.pop())
    kpre = f"""; K voffsets: (l>>4)*256 + ((l&15)^(l>>4))*16  ^ (64*i)
v_xor_b32 v{t2}, v{t1}, v{t0}
v_lshlrev_b32 v{t2}, 4, v{t2}
v_lshl_add_u32 v{vK}, v{t0}, 8, v{t2}
v_xor_b32 v{vK+1}, 64, v{vK}
v_xor_b32 v{vK+2}, 0x80, v{vK}
v_xor_b32 v{vK+3}, 0xc0, v{vK}
; flag address vgpr: lane0 -> FL, else JK + 4*l
v_lshlrev_b32 v{t2}, 2, v{l}
v_add_u32 v{t2}, {JK}, v{t2}
v_cmp_eq_u32 vcc, 0, v{l}
v_mov_b32 v{vLF}, {FL}
v_mov_b32 v{vOne}, 1
v_cndmask_b32 v{vLF}, v{t2}, v{vLF}, vcc
; window base = (b*8+g)<<20 + 3072*256 + c*(32768 or 4096)
s_lshl_b32 s{sWin}, {B}, 3
s_add_u32 s{sWin}, s{sWin}, {G}
s_lshl_b32 s{sWin}, s{sWin}, 5
s_add_u32 s{sWin}, s{sWin}, 24
s_lshl_b32 s{sWin}, s{sWin}, 15
s_lshl_b32 s{sJ}, {C}, {12 if ilv else 15}
s_add_u32 s{sWin}, s{sWin}, s{sJ}
; rho*4096 : rho = (g + 2b) & 7   (rot1k: rho1*1024, rho1 = (b*8 + g)*M & 31)
s_lshl_b32 s{sRho}, {B}, {3 if rot1k else 1}
s_add_u32 s{sRho}, s{sRho}, {G}
s_mul_i32 s{sRho}, s{sRho}, {rot1k if rot1k else 1}
s_and_b32 s{sRho}, s{sRho}, {(31 if rot1k else 7) if rot else 0}
s_lshl_b32 s{sRho}, s{sRho}, {10 if rot1k else 12}""".split("\n")
    def grp(j_, ldsbase):
        if ilv:
            return [f"s_add_u32 s{sJ}, s{sRho}, {j_*4096}", f"s_and_b32 s{sJ}, s{sJ}, 0x7fff", f"s_mov_b32 m0, {ldsbase + j_*4096}", f"s_lshl_b32 s{sJ}, s{sJ}, 3", f"s_add_u32 s{sK}, s{sWin}, s{sJ}"]
        return [f"s_add_u32 s{sJ}, s{sRho}, {j_*4096}", f"s_and_b32 s{sJ}, s{sJ}, 0x7fff", f"s_add_u32 m0, s{sJ}, {ldsbase}", f"s_add_u32 s{sK}, s{sWin}, s{sJ}"]
    def fine(i, ldsbase):
        pre = []
        if i % 4 == 0: pre.append(f"s_mov_b32 m0, {ldsbase + i*1024}")
        pre += [f"s_add_u32 s{sJ}, s{sRho}, {i*1024}", f"s_and_b32 s{sJ}, s{sJ}, 0x7fff", f"s_add_u32 s{sK}, s{sWin}, s{sJ}"]
        if i % 4: pre.append(f"s_sub_u32 s{sK}, s{sK}, {(i%4)*1024}")
        return pre
    for i in range(32):
        pre = list(kpre) if i == 0 else []
        if rot1k: pre += fine(i, KL)
        elif i % 4 == 0: pre += grp(i // 4, KL)
        seq.append((pre, f"buffer_load_dwordx4 v{vK+i%4}, s[12:15], s{sK} offen offset:{(i%4)*1024}{nt} lds"))
    vpre = f"""s_mov_b32 s19, s23
s_mov_b32 s18, s14
; V voffset: (l>>4)*256 + ((l&15) ^ ((l>>4)<<1))*16 ; odd: ^128 ; WO: (l>>4)*1024 + same piece
v_xor_b32 v{t2}, v{t1}, v{t3}
v_lshlrev_b32 v{t2}, 4, v{t2}
v_lshl_add_u32 v{vV}, v{t0}, 8, v{t2}
v_xor_b32 v{vV+1}, 0x80, v{vV}
v_lshl_add_u32 v{vWO}, v{t0}, 10, v{t2}
v_xor_b32 v{vWO+1}, 0x80, v{vWO}
s_mov_b32 s27, s23
s_mov_b32 s26, s22
; WO soff = p<<16 + cg*256 ; p = g*8 + r/4 ; cg = r&3
s_lshr_b32 s{lT}, {R}, 2
s_lshl_b32 s{sWO}, {G}, 3
s_add_u32 s{sWO}, s{sWO}, s{lT}
s_lshl_b32 s{sWO}, s{sWO}, 8
s_and_b32 s{lT}, {R}, 3
s_add_u32 s{sWO}, s{sWO}, s{lT}
s_lshl_b32 s{sWO}, s{sWO}, 8""".split("\n")
    for i in range(32):
        pre = list(vpre) if i == 0 else []
        if rot1k: pre += fine(i, VL)
        elif i % 4 == 0: pre += grp(i // 4, VL)
        seq.append((pre, f"buffer_load_dwordx4 v{vV+(i&1)}, s[16:19], s{sK} offen offset:{(i%4)*1024}{nt} lds"))
    for i in range(16):
        pre = []
        if i == 0: pre += [f"s_mov_b32 m0, {WO}", "s_nop 0"]
        elif i % 4 == 0: pre.append("s_add_u32 m0, m0, 4096")
        if i: pre.append(f"s_add_u32 s{sWO}, s{sWO}, {4096 - 1024 if i % 4 else 4096 + 3072}")
        seq.append((pre, f"buffer_load_dwordx4 v{vWO+((i>>1)&1)}, s[24:27], s{sWO} offen offset:{(i%4)*1024}{nt} lds"))
    T = len(seq); assert T == 97
    def emit(k):
        pre, ld = seq[k]
        for p in pre: a(p)
        a(ld)
    n0 = 17 + kx
    b0done = False
    if compact:
        b0done = True
    else:
        for p in seq[0][0]: a(p)
        a("s_waitcnt lgkmcnt(0)")
        a(seq[0][1])
        for k in range(1, 17): emit(k)
        ST_("L: wq issued")
        if warml == 2: a("; LWARM_START")
        pre17, ld17 = seq[17]
        for p in pre17: a(p)
        if kx > 0:
            if hold: a(f"s_waitcnt vmcnt({17 - hold})")
            a(ld17)
            for k in range(18, n0):
                if n1p and k >= n1p: a(f"s_waitcnt vmcnt({n1p - 1})")
                if b0e and n1p and not b0done and k - (n1p - 1) >= 17:
                    a("s_barrier"); b0done = True
                emit(k)
        else:
            seq[17] = ([], ld17)
    ST_("L: K issued")
    if warml == 1: a("; LWARM_START")
    lfl = lv(4, 4)
    a(f"v_mov_b32 v{t2}, {FL}")
    if not (b0e and kx > 0 and b0done): a(f"s_waitcnt vmcnt({n0 - 17})\ns_barrier")
    ST_("L: wq landed")
    def lwait(name, off):
        a(f"""L_{name}:
ds_read_b128 v[{lfl}:{lfl+3}], v{t2} offset:{off}
s_waitcnt lgkmcnt(0)
v_and_b32 v{lfl}, v{lfl}, v{lfl+1}
v_and_b32 v{lfl+2}, v{lfl+2}, v{lfl+3}
v_and_b32 v{lfl}, v{lfl}, v{lfl+2}
v_cmp_eq_u32 vcc, 0, v{lfl}
s_cbranch_vccnz L_{name}""")
    vFA = lv()
    a(f"v_mov_b32 v{vFA}, {FL}")
    def lwait(name, off):
        a(f"""L_{name}:
ds_read_b128 v[{lfl}:{lfl+3}], v{vFA} offset:{off}
s_waitcnt lgkmcnt(0)
v_and_b32 v{lfl}, v{lfl}, v{lfl+1}
v_and_b32 v{lfl+2}, v{lfl+2}, v{lfl+3}
v_and_b32 v{lfl}, v{lfl}, v{lfl+2}
v_cmp_eq_u32 vcc, 0, v{lfl}
s_cbranch_vccnz L_{name}""")
    lwait("qi", F_QI)
    n1 = 49 + nmid
    for k in range(n0, n1):
        if n2: a(f"s_waitcnt vmcnt({n2 - 1})")
        emit(k)
    assert lgo <= n1 and n1 <= T
    a(f"s_waitcnt vmcnt({n1 - lgo})")
    a(f"ds_write_b32 v{vLF}, v{vOne} offset:{F_GO}")
    lwait("gi", F_GI)
    for k in range(n1, T):
        if k == 81 and holdwo: lwait("gok", F_GOK)
        if k == 81 and lwo: a(f"s_waitcnt vmcnt({81 - lwo})")
        if n3: a(f"s_waitcnt vmcnt({n3 - 1})")
        emit(k)
    if lgo < 49: a(f"s_waitcnt vmcnt({T - 49})\nds_write_b32 v{vLF}, v{vOne} offset:{F_K}")
    F_V1 = F_GOK
    tailev = ([(49 + nmid, F_V1)] if pvp else []) + [(81, F_V), (97, F_W)]
    for cnt, f in tailev:
        a(f"s_waitcnt vmcnt({T - cnt})\nds_write_b32 v{vLF}, v{vOne} offset:{f}")
    ST_("L: all landed")
    if warml: a("; LWARM_END")
    if stamp: a("s_branch L_fin")
    else: a("s_endpgm")
    for _ in range(shift // 4): a("s_nop 0")
    a("L_compute:")
    if compact:
        if not stamp: a("s_load_dwordx2 s[28:29], s[0:1], 56\ns_load_dwordx2 s[32:33], s[0:1], 40")
    g = va(); n16 = va(); n4 = va()
    sQB = sa(); sOB = sa(); sEp = sa(); sTag = sa(); vPT = va()
    a(f"""
s_mov_b32 s31, s23
s_mov_b32 s30, {WS_BYTES}
s_mov_b32 s35, s23
s_movk_i32 s34, 0x1000
s_lshl_b32 s{sQB}, {G}, 4
s_add_u32 s{sQB}, s{sQB}, {B}
s_lshl_b32 s{sQB}, s{sQB}, 11
s_xor_b32 s{sT}, {C}, {cqx}
s_lshl_b32 s{sT}, s{sT}, 8
s_add_u32 s{sQB}, s{sQB}, s{sT}
s_add_u32 s{sQB}, s{sQB}, {QF}
s_lshl_b32 s{sOB}, {B}, 3
s_add_u32 s{sOB}, s{sOB}, {G}
s_lshl_b32 s{sOB}, s{sOB}, 5
s_add_u32 s{sOB}, s{sOB}, {C}
s_lshl_b32 s{sOB}, s{sOB}, 9
s_add_u32 s{sOB}, s{sOB}, {OF}
""")
    vPTa = va()
    if pt in (1, 3, 7):
        a(f"""
s_mul_i32 s{sT}, {W}, 6
v_add_u32 v{t3}, s{sT}, v{l}
v_lshrrev_b32 v{t0}, 1, v{t3}
v_lshlrev_b32 v{t0}, 13, v{t0}
v_and_b32 v{t1}, 1, v{t3}
v_lshl_or_b32 v{t0}, v{t1}, 7, v{t0}
v_add_u32 v{t0}, s{sQB}, v{t0}
v_subrev_u32 v{t1}, 8, v{t3}
v_lshrrev_b32 v{t2}, 2, v{t1}
v_lshlrev_b32 v{t2}, 12, v{t2}
v_and_b32 v{t1}, 3, v{t1}
v_lshl_or_b32 v{t2}, v{t1}, 7, v{t2}
v_add_u32 v{t2}, s{sOB}, v{t2}
v_cmp_gt_u32 vcc, 8, v{t3}
v_mov_b32 v{t3}, {OOB}
s_nop 0
v_cndmask_b32 v{t0}, v{t2}, v{t0}, vcc
v_cmp_gt_u32 vcc, 6, v{l}
s_mov_b32 s{sT}, {WSB}
s_waitcnt lgkmcnt(0)
s_load_dword s{sEp}, s[28:29], s{sT}
v_cndmask_b32 v{vPTa}, v{t3}, v{t0}, vcc
""")
        if pt != 7: a(f"buffer_load_dword v{vPT}, v{vPTa}, s[28:31], 0 offen{' nt' if pt == 3 else ''}")
    else:
        a(f"s_mov_b32 s{sT}, {WSB}\ns_waitcnt lgkmcnt(0)\ns_load_dword s{sEp}, s[28:29], s{sT}" if WSB else f"s_waitcnt lgkmcnt(0)\ns_load_dword s{sEp}, s[28:29], 0")
        if pt in (10, 11, 12, 15):
            sD = sa(); sO1 = sa(); sO2 = sa()
            a(f"s_lshl_b32 s{sT}, {W}, 13\ns_add_u32 s{sO1}, s{sQB}, s{sT}\ns_lshl_b32 s{sT}, {W}, 12\ns_add_u32 s{sO2}, s{sOB}, s{sT}")
            stp = 128 if pt == 11 else 64
            ypt = [f"s_load_dword s{sD}, s[28:29], s{sO1} offset:{o}" for o in range(0, 256, stp)] + [f"s_load_dword s{sD}, s[28:29], s{sO2} offset:{o}" for o in range(0, 512, stp)]
            if pt == 15: ypt = ypt[4:]
            if pt == 12:
                sO3 = sT2
                sO3 = sa()
                a(f"""s_and_b32 s{sO3}, {R}, 3
s_lshl_b32 s{sO3}, s{sO3}, 6
s_lshl_b32 s{sT}, {G}, 3
s_add_u32 s{sO3}, s{sO3}, s{sT}
s_lshr_b32 s{sT}, {R}, 2
s_add_u32 s{sO3}, s{sO3}, s{sT}
s_lshl_b32 s{sO3}, s{sO3}, 2
s_add_u32 s{sO3}, s{sO3}, {W}
s_lshl_b32 s{sO3}, s{sO3}, 9
s_add_u32 s{sO3}, s{sO3}, {OX + SOFF}""")
                ypt += [f"s_load_dword s{sD}, s[28:29], s{sO3} offset:{o}" for o in range(0, 512, 64)]
        if pt in (8, 9):
            sD = sa(); sO1 = sa()
            a(f"s_lshl_b32 s{sT}, {W}, 13\ns_add_u32 s{sO1}, s{sQB}, s{sT}")
            for o in range(0, 256, 64): a(f"s_load_dword s{sD}, s[28:29], s{sO1} offset:{o}")
            a(f"s_lshl_b32 s{sT}, {W}, 12\ns_add_u32 s{sO1}, s{sOB}, s{sT}")
            for o in range(0, 512, 64): a(f"s_load_dword s{sD}, s[28:29], s{sO1} offset:{o}")
            if pt == 9:
                a(f"""s_and_b32 s{sO1}, {R}, 3
s_lshl_b32 s{sO1}, s{sO1}, 6
s_lshl_b32 s{sT}, {G}, 3
s_add_u32 s{sO1}, s{sO1}, s{sT}
s_lshr_b32 s{sT}, {R}, 2
s_add_u32 s{sO1}, s{sO1}, s{sT}
s_lshl_b32 s{sO1}, s{sO1}, 2
s_add_u32 s{sO1}, s{sO1}, {W}
s_lshl_b32 s{sO1}, s{sO1}, 9
s_add_u32 s{sO1}, s{sO1}, {OX + SOFF}""")
                ypt = [f"s_load_dword s{sD}, s[28:29], s{sO1} offset:{o}" for o in range(0, 512, 64)]
        if pt in (2, 4, 6):
            a(f"""
s_lshl_b32 s{sT}, {W}, 12
s_add_u32 s{sT}, s{sT}, s{sOB}
v_lshlrev_b32 v{t0}, 7, v{l}
v_add_u32 v{t0}, s{sT}, v{t0}
v_cmp_gt_u32 vcc, 4, v{l}
v_mov_b32 v{t3}, {OOB}
s_nop 0
v_cndmask_b32 v{vPTa}, v{t3}, v{t0}, vcc
""")
    if warm and warm2:
        if warm2 != 3:
            a("s_mov_b64 exec, 0")
            for p in range(1, nparts):
                a(f"s_cmp_eq_u32 {W}, {p}\ns_cbranch_scc1 HOPA_P{p}")
            a("s_branch HOPA_P0\nL_warm_doneA:\ns_mov_b64 exec, -1")
    elif warm:
        a("s_mov_b64 exec, 0")
        for p in range(1, nparts):
            a(f"s_cmp_eq_u32 {W}, {p}\ns_cbranch_scc1 HOP_P{p}")
        a("s_branch HOP_P0\nL_warm_done:\ns_mov_b64 exec, -1")
    a("; WARM_START")
    sP = sa(); sCG = sa(); sR4 = sa()
    vXr = va(4); vWQr = va(); vKr = va(4); vVr = va(2); vWOr = va(2)
    vQst = va(); vG = va(); sG = sa(); vQLw = va(); vQLr = va()
    vPw = va(); vPr = va(); vSw = va(); vSr = va()
    vOst = va(); vOG = va(); sOG = sa(); vOLw = va(); vOLr = va()
    vYst = va(); sYst = sa(); vFG = va(); sFG = sa(); vOut = va()
    vFw = va(); vFr = va(); vOne_c = va()
    sCsc = sa(); sP0 = sa(); sP1 = sa(); sP2 = sa(); sU0 = sa(); sU1 = sa(); sM4 = sa(2, 2); sG1 = sa(2, 2); sCnt = sa()
    a(f"""
v_lshrrev_b32 v{g}, 4, v{l}
v_and_b32 v{n16}, 15, v{l}
v_and_b32 v{n4}, 3, v{l}
v_lshlrev_b32 v{t2}, 2, v{l}
v_mov_b32 v{t3}, 0
ds_write_b32 v{t2}, v{t3} offset:{FL}
v_add_u32 v{t2}, {JK}, v{t2}
s_lshl_b32 s{sT}, {W}, 2
s_add_u32 s{sT}, s{sT}, {FL}
v_mov_b32 v{vFw}, s{sT}
v_cmp_eq_u32 vcc, 0, v{l}
v_mov_b32 v{vFr}, {FL}
v_mov_b32 v{vOne_c}, 1
v_cndmask_b32 v{vFw}, v{t2}, v{vFw}, vcc
;@D1
; p = g*8 + r/4 ; cg = r&3
s_lshr_b32 s{sR4}, {R}, 2
s_lshl_b32 s{sP}, {G}, 3
s_add_u32 s{sP}, s{sP}, s{sR4}
s_and_b32 s{sCG}, {R}, 3
;@K1
v_lshlrev_b32 v{t2}, 2, v{n4}
v_xor_b32 v{t2}, v{g}, v{t2}
v_lshlrev_b32 v{t2}, 4, v{t2}
v_lshl_add_u32 v{t2}, v{n4}, 8, v{t2}
v_add_u32 v{vXr}, {XL}, v{t2}
v_xor_b32 v{vXr+1}, 64, v{vXr}
v_xor_b32 v{vXr+2}, 0x80, v{vXr}
v_xor_b32 v{vXr+3}, 0xc0, v{vXr}
v_bfe_u32 v{t0}, v{l}, 2, 2
v_lshl_add_u32 v{t2}, v{g}, 3, v{t0}
v_lshlrev_b32 v{t2}, 7, v{t2}
v_lshl_add_u32 v{t2}, v{n4}, 3, v{t2}
v_lshrrev_b32 v{t3}, 1, v{t0}
v_and_b32 v{t1}, 1, v{g}
v_lshl_or_b32 v{t3}, v{t1}, 1, v{t3}
v_xor_b32 v{t3}, {W}, v{t3}
v_lshl_add_u32 v{t2}, v{t3}, 5, v{t2}
v_add_u32 v{vWQr}, {WQ}, v{t2}
;@D2
s_lshl_b32 s{sT}, {W}, 13
s_add_u32 s{sT}, s{sT}, {KL}
v_xor_b32 v{t2}, v{g}, v{n16}
v_lshlrev_b32 v{t2}, 4, v{t2}
v_lshl_add_u32 v{t2}, v{n16}, 8, v{t2}
v_add_u32 v{vKr}, s{sT}, v{t2}
v_xor_b32 v{vKr+1}, 64, v{vKr}
v_xor_b32 v{vKr+2}, 0x80, v{vKr}
v_xor_b32 v{vKr+3}, 0xc0, v{vKr}
v_lshl_add_u32 v{t2}, v{g}, 2, v{t0}
v_lshlrev_b32 v{t2}, 8, v{t2}
v_lshl_add_u32 v{t2}, v{n4}, 3, v{t2}
v_lshl_or_b32 v{t3}, v{t1}, 2, v{t0}
s_lshl_b32 s{sT}, {W}, 1
v_xor_b32 v{t3}, s{sT}, v{t3}
v_lshl_add_u32 v{t2}, v{t3}, 5, v{t2}
v_add_u32 v{vVr}, {VL}, v{t2}
v_xor_b32 v{vVr+1}, 32, v{vVr}
v_lshl_add_u32 v{t2}, v{g}, 3, v{t0}
v_lshlrev_b32 v{t2}, 8, v{t2}
v_lshl_add_u32 v{t2}, v{n4}, 3, v{t2}
v_lshl_add_u32 v{t2}, v{t3}, 5, v{t2}
v_add_u32 v{vWOr}, {WO}, v{t2}
v_xor_b32 v{vWOr+1}, 32, v{vWOr}
;@K2
v_cmp_gt_u32 vcc, 4, v{n16}
v_mov_b32 v{t3}, {OOB}
s_lshl_b32 s{sT}, {W}, 6
v_lshlrev_b32 v{t2}, 4, v{g}
v_add_u32 v{t0}, s{sT}, v{t2}
v_lshl_add_u32 v{t0}, v{n16}, 13, v{t0}
v_cndmask_b32 v{vQst}, v{t3}, v{t0}, vcc
;@D3
s_lshl_b32 s{sT}, {W}, 7
v_add_u32 v{t2}, s{sT}, v{t2}
v_lshl_add_u32 v{t0}, v{n16}, 12, v{t2}
v_cndmask_b32 v{vOst}, v{t3}, v{t0}, vcc
v_lshl_add_u32 v{t0}, v{n16}, 9, v{t2}
v_cndmask_b32 v{vYst}, v{t3}, v{t0}, vcc
YCOAL_ADDR
v_lshrrev_b32 v{t0}, 5, v{l}
v_and_b32 v{t1}, 31, v{l}
v_lshlrev_b32 v{t2}, 4, v{t1}
v_lshl_add_u32 v{vG}, v{t0}, 12, v{t2}
s_lshl_b32 s{sG}, {G}, 2
s_add_u32 s{sG}, s{sG}, {B}
s_lshl_b32 s{sG}, s{sG}, 4
s_add_u32 s{sG}, s{sG}, {W}
s_lshl_b32 s{sG}, s{sG}, 9
s_add_u32 s{sG}, s{sG}, {QF}
s_mul_i32 s{sT}, {W}, 320
v_lshlrev_b32 v{t2}, 3, v{t1}
v_lshl_add_u32 v{t2}, v{t0}, 2, v{t2}
v_add_u32 v{vQLw}, s{sT}, v{t2}
v_mul_u32_u24 v{t2}, 320, v{n4}
v_lshl_add_u32 v{vQLr}, v{g}, 4, v{t2}
v_lshlrev_b32 v{t2}, 6, v{n4}
v_lshl_add_u32 v{vPr}, v{g}, 4, v{t2}
s_lshl_b32 s{sT}, {W}, 8
v_add_u32 v{vPw}, s{sT}, v{vPr}
v_lshlrev_b32 v{vSr}, 4, v{n4}
s_lshl_b32 s{sT}, {W}, 2
v_add_u32 v{vSw}, s{sT}, v{vSr}
v_lshlrev_b32 v{t2}, 9, v{g}
v_lshl_add_u32 v{vOG}, v{n16}, 4, v{t2}
s_lshl_b32 s{sOG}, {W}, 3
s_add_u32 s{sOG}, s{sOG}, {G}
s_lshl_b32 s{sOG}, s{sOG}, 2
s_add_u32 s{sOG}, s{sOG}, {B}
s_lshl_b32 s{sOG}, s{sOG}, 4
s_and_b32 s{sT}, s{sR4}, 1
s_add_u32 s{sOG}, s{sOG}, s{sT}
s_lshl_b32 s{sOG}, s{sOG}, 8
s_add_u32 s{sOG}, s{sOG}, {OF}
s_mul_i32 s{sT}, {W}, 192
v_lshlrev_b32 v{t2}, 3, v{n16}
v_lshl_add_u32 v{t2}, v{g}, 1, v{t2}
v_add_u32 v{vOLw}, s{sT}, v{t2}
v_mul_u32_u24 v{t2}, 192, v{n4}
v_lshl_add_u32 v{vOLr}, v{g}, 4, v{t2}
s_lshl_b32 s{sYst}, s{sCG}, 6
s_add_u32 s{sYst}, s{sYst}, s{sP}
s_lshl_b32 s{sYst}, s{sYst}, 11
s_add_u32 s{sYst}, s{sYst}, {OX + SOFF}
v_lshrrev_b32 v{t0}, 1, v{l}
v_and_b32 v{t1}, 1, v{l}
v_lshlrev_b32 v{t2}, 4, v{t1}
v_lshl_add_u32 v{vFG}, v{t0}, 11, v{t2}
s_lshl_b32 s{sFG}, s{sCG}, 12
s_add_u32 s{sFG}, s{sFG}, s{sP}
s_lshl_b32 s{sFG}, s{sFG}, 5
s_add_u32 s{sFG}, s{sFG}, {OX + SOFF}
YCOAL_OUT
v_cmp_gt_u32 vcc, 2, v{n16}
s_mov_b32 s{sCsc}, {f32(CSC)}
s_mov_b32 s{sU0}, 0x04000c0c
v_cndmask_b32 v{vOut}, v{t3}, v{t2}, vcc
s_mov_b32 s{sU1}, 0x0706000c
s_mov_b32 s{sM4}, 0x000f000f
s_mov_b32 s{sM4+1}, 0x000f000f
;@K3
s_mov_b32 s{sP0}, 0x07060503
s_mov_b32 s{sP1}, 0x07060502
s_mov_b32 s{sP2}, 0x07060501
s_waitcnt lgkmcnt(0)
s_mul_i32 s{sTag}, s{sEp}, 1664525
s_add_u32 s{sTag}, s{sTag}, 1013904223
""")
    ya = f"""; coalesced y store: lanes < 32: w*512 + l*16
s_lshl_b32 s{sT}, {W}, 9
v_lshlrev_b32 v{t0}, 4, v{l}
v_add_u32 v{t0}, s{sT}, v{t0}
v_cmp_gt_u32 s[{sM4}:{sM4+1}], 32, v{l}
v_cmp_eq_u32 s[{sG1}:{sG1+1}], 1, v{g}
s_nop 0
v_cndmask_b32 v{vYst}, v{t3}, v{t0}, s[{sM4}:{sM4+1}]""" if ycoal else ""
    yo = (f"""; out voffset: g*1024 + (cg*128 + 2p' + (l&1))*2 for lanes n16<2 ; p' = p (0..63)
s_lshl_b32 s{sT}, s{sCG}, 6
s_add_u32 s{sT}, s{sT}, s{sP}
s_lshl_b32 s{sT}, s{sT}, 2
v_lshlrev_b32 v{t2}, 1, v{t1}
v_lshl_add_u32 v{t2}, v{g}, 10, v{t2}
v_add_u32 v{t2}, s{sT}, v{t2}""" if ycoal else f"""s_lshr_b32 s{sT}, s{sP}, 4
s_lshl_b32 s{sT}, s{sT}, 2
s_add_u32 s{sT}, s{sT}, s{sCG}
s_lshl_b32 s{sT}, s{sT}, 4
s_and_b32 s{sT2}, s{sP}, 15
s_add_u32 s{sT}, s{sT}, s{sT2}
s_lshl_b32 s{sT}, s{sT}, 4
v_lshlrev_b32 v{t2}, 3, v{t1}
v_lshl_add_u32 v{t2}, v{g}, 1, v{t2}
v_add_u32 v{t2}, s{sT}, v{t2}""")
    newL = []
    for ln in a.L:
        if "YCOAL_ADDR" in ln: newL += ["    " + x for x in ya.split("\n") if x]
        elif "YCOAL_OUT" in ln: newL += ["    " + x for x in yo.split("\n")]
        else: newL.append(ln)
    a.L = newL
    A32 = va(32, 4); B16 = va(16, 4); C32 = va(32, 4); E8 = va(8, 4); F8 = va(8, 4)
    ones = va(4, 4); fl = va(4, 4); fl1 = va(); QS4 = va(4, 4); OS8 = va(8, 4); sQS = sa(); sOS = sa(); sWcN = sa.n
    a(f"""
;@D4
v_mov_b32 v{ones}, 0x3f803f80
v_mov_b32 v{ones+1}, 0x3f803f80
v_mov_b32 v{ones+2}, 0x3f803f80
v_mov_b32 v{ones+3}, 0x3f803f80
v_mov_b32 v{OS8+3}, s{sTag}
v_mov_b32 v{OS8+7}, s{sTag}
v_mov_b32 v{E8+3}, s{sTag}
v_mov_b32 v{E8+7}, s{sTag}
s_add_u32 s{sOS}, s{sOB}, {0 if sameS in (1, 3) else SOFF}
;@K4
v_mov_b32 v{QS4+3}, s{sTag}
s_add_u32 s{sQS}, s{sQB}, {0 if sameS in (1, 2) else SOFF}
s_mov_b32 s{sCnt}, {spin}
s_movk_i32 s{sWcN}, {wthr}
""")
    if pt == 7: a(f"buffer_load_dword v{vPT}, v{vPTa}, s[28:31], 0 offen")
    lab = [0]
    def setflag(off): a(f"ds_write_b32 v{vFw}, v{vOne_c} offset:{off}")
    colder = []
    sWc = sa()
    stage = {"flush": []}
    def waitflags(group=None, single=None):
        lab[0] += 1; L = f"L_wf{lab[0]}"
        a(f"{L}:")
        if group is not None: a(f"ds_read_b128 {rng(fl,4)}, v{vFr} offset:{group}")
        if single is not None: a(f"ds_read_b32 v{fl1}, v{vFr} offset:{single}")
        a("s_waitcnt lgkmcnt(0)")
        if group is not None:
            a(f"v_min3_u32 v{fl}, v{fl}, v{fl+1}, v{fl+2}")
            if single is not None: a(f"v_min3_u32 v{fl}, v{fl}, v{fl+3}, v{fl1}")
            else: a(f"v_min_u32 v{fl}, v{fl}, v{fl+3}")
            r = fl
        else: r = fl1
        a(f"v_cmp_eq_u32 vcc, 0, v{r}\ns_cbranch_vccz {L}d\ns_sub_u32 s{sWc}, s{sWc}, 1\ns_cbranch_scc0 {L}\ns_branch {L}f\n{L}d:")
        colder.append([f"{L}f:"] + list(stage["flush"]) + [f"s_movk_i32 s{sWc}, {wthr}", f"s_branch {L}"])
    QFL = [f"buffer_store_dwordx4 {rng(QS4,4)}, v{vQst}, s[28:31], s{sQS} offen sc1"]
    OFL = [f"buffer_store_dwordx4 {rng(OS8,4)}, v{vOst}, s[28:31], s{sOS} offen sc1", f"buffer_store_dwordx4 {rng(OS8+4,4)}, v{vOst}, s[28:31], s{sOS} offen offset:64 sc1"]
    assert sWc == sWcN
    xb = A32; wa = A32 + 16; acc = C32
    a("s_waitcnt lgkmcnt(0)\ns_barrier")
    for s in range(4):
        a(f"ds_read_b128 {rng(xb+4*s,4)}, v{vXr+s}")
        a(f"ds_read_b64_tr_b16 {rng(wa+4*s,2)}, v{vWQr} offset:{s*4096}")
        a(f"ds_read_b64_tr_b16 {rng(wa+4*s+2,2)}, v{vWQr} offset:{s*4096 + 512}")
    for s in range(4):
        a(f"s_waitcnt lgkmcnt({3*(3-s)})")
        c = "0" if s == 0 else rng(acc,4)
        a(f"v_mfma_f32_16x16x32_bf16 {rng(acc,4)}, {rng(wa+4*s,4)}, {rng(xb+4*s,4)}, {c}")
    a(f"""
s_nop 7
v_perm_b32 v{QS4}, v{acc}, v{acc+3}, s{sP0}
v_perm_b32 v{QS4+1}, v{acc+1}, v{acc+3}, s{sP1}
v_perm_b32 v{QS4+2}, v{acc+2}, v{acc+3}, s{sP2}
buffer_store_dwordx4 {rng(QS4,4)}, v{vQst}, s[28:31], s{sQB} offen
""")
    setflag(F_QI)
    stage["flush"] = QFL
    if pt in (9, 10, 11, 12, 15):
        for x_ in ypt: a(x_)
    if pt in (2, 6): a(f"buffer_load_dword v{vPT}, v{vPTa}, s[28:31], 0 offen" + (" nt" if pt == 2 else ""))
    ST_("q published")
    a(";@HERE")
    if warm and warm2:
        a("; WARM_MID")
        a("s_mov_b64 exec, 0")
        for p in range(1, nparts):
            a(f"s_cmp_eq_u32 {W}, {p}\ns_cbranch_scc1 HOPB_P{p}")
        a("s_branch HOPB_P0\nL_warm_doneB:\ns_mov_b64 exec, -1")
        a("; WARM_MID2")
    gq = F8
    if gmin:
        sGm = sa()
        a(f"""s_movk_i32 s{sGm}, {gmin}
L_gom:
ds_read_b32 v{fl1}, v{vFr} offset:{F_GO}
s_waitcnt lgkmcnt(0)
s_sub_u32 s{sGm}, s{sGm}, 1
s_cbranch_scc0 L_gom""")
    waitflags(single=F_GO)
    ST_("GO")
    a(f"buffer_load_dwordx4 {rng(gq,4)}, v{vG}, s[28:31], s{sG} offen sc1")
    a(f"buffer_load_dwordx4 {rng(gq+4,4)}, v{vG}, s[28:31], s{sG} offen offset:2048 sc1")
    if pt == 4: a(f"buffer_load_dword v{vPT}, v{vPTa}, s[28:31], 0 offen nt")
    if pt == 13:
        dum = va(2, 2)
        a(f"buffer_load_dword v{dum}, v{vOG}, s[28:31], s{sOG} offen sc1")
        a(f"buffer_load_dword v{dum+1}, v{vOG}, s[28:31], s{sOG} offen offset:2048 sc1")
    if pt == 14:
        dum = va(2, 2)
        a(f"buffer_load_dword v{dum}, v{vOG}, s[28:31], s{sOG} offen sc1")
        a(f"buffer_load_dword v{dum+1}, v{vOG}, s[28:31], s{sOG} offen offset:2048 sc1")
        dum2 = va(2, 2)
        a(f"s_add_u32 s{sT2}, s{sFG}, 65536")
        a(f"buffer_load_dword v{dum2}, v{vFG}, s[28:31], s{sFG} offen sc1")
        a(f"buffer_load_dword v{dum2+1}, v{vFG}, s[28:31], s{sT2} offen sc1")
    setflag(F_GI)
    ka = A32
    if lgo < 49: waitflags(single=F_K)
    for t in range(2):
        for s_ in range(4):
            a(f"ds_read_b128 {rng(ka+16*t+4*s_,4)}, v{vKr+s_} offset:{t*4096}")
    sa_tmp = sa(2, 2)
    cold = []
    def poll(name, regs, vaddr, soff, first_wait, offs, flush):
        a(f"s_waitcnt vmcnt({first_wait})\nL_{name}chk:")
        for i, r in enumerate(regs):
            if i == 0: a(f"v_cmp_ne_u32 vcc, s{sTag}, v{r+3}")
            else: a(f"v_cmp_ne_u32 s[{sa_tmp}:{sa_tmp+1}], s{sTag}, v{r+3}\ns_or_b64 vcc, vcc, s[{sa_tmp}:{sa_tmp+1}]")
        a(f"s_cbranch_vccnz L_{name}retry\nL_{name}ok:")
        c = [f"L_{name}retry:", f"s_sub_u32 s{sCnt}, s{sCnt}, 1", f"s_cbranch_scc1 L_{name}ok",
             f"s_cmp_gt_u32 s{sCnt}, {spin - nf}", f"s_cbranch_scc1 L_{name}re",
             f"s_cmp_lg_u32 s{sCnt}, {spin - nf}", f"s_cbranch_scc1 L_{name}tg"] + flush + [f"L_{name}tg:"] + ([] if (sameS == 1 or (sameS == 2 and name == "q") or (sameS == 3 and name == "o")) else [f"s_xor_b32 s{soff}, s{soff}, {SOFF}"]) + [f"L_{name}re:"]
        for r, o in zip(regs, offs):
            c.append(f"buffer_load_dwordx4 {rng(r,4)}, v{vaddr}, s[28:31], s{soff} offen offset:{o} sc1")
        c += ["s_waitcnt vmcnt(0)", f"s_branch L_{name}chk"]
        cold.append((name, c))
    poll("q", [gq, gq+4], vG, sG, {4: 1, 13: 2, 14: 4}.get(pt, 0), [0, 2048], QFL)
    if holdwo: setflag(F_GOK)
    ST_("q gathered")
    u = E8; qb = B16
    a(f"""
v_perm_b32 v{u}, v{gq}, v{gq+1}, s{sU0}
v_perm_b32 v{u+1}, v{gq+4}, v{gq+5}, s{sU0}
v_add_f32 v{u+4}, v{gq}, v{gq+4}
v_add_f32 v{u+6}, v{gq+2}, v{gq+6}
v_perm_b32 v{u}, v{u}, v{gq+2}, s{sU1}
v_perm_b32 v{u+1}, v{u+1}, v{gq+6}, s{sU1}
v_add_f32 v{u+5}, v{gq+1}, v{gq+5}
v_add_f32 v{u+7}, v{u}, v{u+1}
v_permlane32_swap_b32 v{u+4}, v{u+6}
s_nop 0
v_permlane32_swap_b32 v{u+5}, v{u+7}
v_add_f32 v{u+4}, v{u+4}, v{u+6}
v_add_f32 v{u+5}, v{u+5}, v{u+7}
v_cvt_pk_bf16_f32 v{u}, v{u+4}, v{u+5}
ds_write_b32 v{vQLw}, v{u} offset:{QL}
""")
    setflag(F_Q)
    waitflags(group=F_Q)
    for s in range(4):
        a(f"ds_read_b128 {rng(qb+4*s,4)}, v{vQLr} offset:{QL + s*64}")
    sc = C32
    for s in range(4):
        a(f"s_waitcnt lgkmcnt({3-s})")
        for t in range(2):
            c = "0" if s == 0 else rng(sc+4*t,4)
            a(f"v_mfma_f32_16x16x32_bf16 {rng(sc+4*t,4)}, {rng(ka+16*t+4*s,4)}, {rng(qb+4*s,4)}, {c}")
    m = va(2, 2); mt = va(); pk = E8
    sC2 = sa(2, 2)
    a(f"""
s_mov_b32 s{sC2}, s{sCsc}
s_mov_b32 s{sC2+1}, s{sCsc}
s_nop 4
v_max3_f32 v{m}, v{sc}, v{sc+1}, v{sc+2}
v_max3_f32 v{mt}, v{sc+3}, v{sc+4}, v{sc+5}
v_max3_f32 v{m}, v{m}, v{sc+6}, v{sc+7}
v_max_f32 v{m}, v{m}, v{mt}
v_mov_b32 v{mt}, v{m}
s_nop 1
v_permlane16_swap_b32 v{m}, v{mt}
v_max_f32 v{m}, v{m}, v{mt}
v_mov_b32 v{mt}, v{m}
s_nop 1
v_permlane32_swap_b32 v{m}, v{mt}
v_max_f32 v{m}, v{m}, v{mt}
v_mul_f32 v{m}, s{sCsc}, v{m}
""")
    for i in range(0, 8, 2):
        a(f"v_pk_fma_f32 v[{sc+i}:{sc+i+1}], v[{sc+i}:{sc+i+1}], s[{sC2}:{sC2+1}], v[{m}:{m+1}] op_sel_hi:[1,1,0] neg_lo:[0,0,1] neg_hi:[0,0,1]")
    a(f"s_mov_b64 exec, s[{sM4}:{sM4+1}]\nds_write_b32 v{vSw}, v{m} offset:{SL}\ns_mov_b64 exec, -1")
    for i in range(8):
        a(f"v_exp_f32 v{sc+i}, v{sc+i}")
        if i == 2: a(f"v_cvt_pk_bf16_f32 v{pk}, v{sc}, v{sc+1}")
        if i == 4: a(f"v_cvt_pk_bf16_f32 v{pk+1}, v{sc+2}, v{sc+3}")
        if i == 6: a(f"v_cvt_pk_bf16_f32 v{pk+2}, v{sc+4}, v{sc+5}")
    a(f"""
s_mov_b64 exec, s[{sM4}:{sM4+1}]
v_cvt_pk_bf16_f32 v{pk+3}, v{sc+6}, v{sc+7}
ds_write_b128 v{vPw}, {rng(pk,4)} offset:{PL}
s_mov_b64 exec, -1
""")
    setflag(F_P)
    a(f"s_mov_b32 s{sCnt}, {spin}")
    waitflags(group=F_P)
    ST_("P written")
    pb = B16; sv = F8; vaop = A32; D = C32
    lk = va(16, 4)
    M = va(); ff = va(4, 2); L = va(); Rr = va(); lse = va()
    a(f"ds_read_b128 {rng(sv,4)}, v{vSr} offset:{SL}")
    for ks in range(4):
        a(f"ds_read_b128 {rng(pb+4*ks,4)}, v{vPr} offset:{PL + ks*256}")
    a(f"ds_read_b32 v{fl1}, v{vFr} offset:{F_V}")
    a(f"""
s_waitcnt lgkmcnt(5)
v_max3_f32 v{M}, v{sv}, v{sv+1}, v{sv+2}
v_max_f32 v{M}, v{M}, v{sv+3}
v_sub_f32 v{ff}, v{sv}, v{M}
v_sub_f32 v{ff+1}, v{sv+1}, v{M}
v_sub_f32 v{ff+2}, v{sv+2}, v{M}
v_sub_f32 v{ff+3}, v{sv+3}, v{M}
""")
    for ks in range(4):
        a(f"s_waitcnt lgkmcnt({4-ks})")
        a(f"v_mfma_f32_16x16x32_bf16 {rng(lk+4*ks,4)}, {rng(ones,4)}, {rng(pb+4*ks,4)}, 0")
        a(f"v_exp_f32 v{ff+ks}, v{ff+ks}")
    def vread(ks):
        for tp in range(2):
            for e in range(2):
                a(f"ds_read_b64_tr_b16 {rng(vaop+8*ks+4*tp+2*e,2)}, v{vVr+tp} offset:{ks*8192 + e*4096}")
    def pv(ks):
        for tp in range(2):
            a(f"v_mfma_f32_16x16x32_bf16 {rng(D+8*ks+4*tp,4)}, {rng(vaop+8*ks+4*tp,4)}, {rng(pb+4*ks,4)}, 0")
    stats2 = f"""v_mul_f32 v{L}, v{ff}, v{lk}
v_fmac_f32 v{L}, v{ff+1}, v{lk+4}
v_fmac_f32 v{L}, v{ff+2}, v{lk+8}
v_fmac_f32 v{L}, v{ff+3}, v{lk+12}
v_rcp_f32 v{Rr}, v{L}
v_log_f32 v{lse}, v{L}
s_nop 0
v_mul_f32 v{ff}, v{ff}, v{Rr}
v_mul_f32 v{ff+1}, v{ff+1}, v{Rr}
v_mul_f32 v{ff+2}, v{ff+2}, v{Rr}
v_mul_f32 v{ff+3}, v{ff+3}, v{Rr}
v_add_f32 v{OS8+2}, v{lse}, v{M}
v_add_f32 v{OS8+6}, v{lse}, v{M}"""
    o = F8
    def scale(ks):
        base = ff + (ks & ~1); sel = ks & 1; fr = f"v[{base}:{base+1}]"
        for tp in range(2):
            for h in range(2):
                dst = rng(o+4*tp+2*h, 2); src = rng(D+8*ks+4*tp+2*h, 2)
                if ks == 0: a(f"v_pk_mul_f32 {dst}, {src}, {fr} op_sel:[0,{sel}] op_sel_hi:[1,{sel}]")
                else: a(f"v_pk_fma_f32 {dst}, {src}, {fr}, {dst} op_sel:[0,{sel},0] op_sel_hi:[1,{sel},1]")
    a(f"s_waitcnt lgkmcnt(0)\nv_cmp_ne_u32 vcc, 0, v{fl1}\ns_cbranch_vccnz L_vfast\ns_nop 3")
    if pvp:
        assert nmid == 24
        F_V1 = F_GOK
        waitflags(single=F_V1)
        vread(0); vread(1); vread(2)
        a(stats2)
        a("s_waitcnt lgkmcnt(8)"); pv(0)
        a("s_waitcnt lgkmcnt(4)"); pv(1)
        a("s_waitcnt lgkmcnt(0)"); pv(2)
        a("s_nop 1")
        scale(0); scale(1); scale(2)
        waitflags(single=F_V)
        ST_("V landed")
        vread(3)
        a("s_waitcnt lgkmcnt(0)"); pv(3)
        a("s_nop 7")
        scale(3)
        a("s_branch L_vdone")
    else:
        a(stats2)
        waitflags(single=F_V)
        ST_("V landed")
        vread(0); vread(1); vread(2)
        a("s_branch L_vjoin")
    a("L_vfast:")
    vread(0); vread(1); vread(2)
    a(stats2)
    a("L_vjoin:")
    a("s_waitcnt lgkmcnt(8)"); pv(0); vread(3)
    a("s_waitcnt lgkmcnt(8)"); pv(1)
    a("s_waitcnt lgkmcnt(4)"); pv(2)
    a("s_waitcnt lgkmcnt(0)"); pv(3)
    for ks in range(4): scale(ks)
    a("L_vdone:")
    og = OS8
    a(f"""
v_cvt_pk_bf16_f32 v{og}, v{o}, v{o+1}
v_cvt_pk_bf16_f32 v{og+1}, v{o+2}, v{o+3}
v_cvt_pk_bf16_f32 v{og+4}, v{o+4}, v{o+5}
v_cvt_pk_bf16_f32 v{og+5}, v{o+6}, v{o+7}
buffer_store_dwordx4 {rng(og,4)}, v{vOst}, s[28:31], s{sOB} offen
buffer_store_dwordx4 {rng(og+4,4)}, v{vOst}, s[28:31], s{sOB} offen offset:64
""")
    setflag(F_OI)
    stage["flush"] = QFL + OFL
    ST_("o published")
    gg = B16; wb = A32
    if not nooi: waitflags(group=F_OI)
    if nooi:
        waitflags(single=F_W)
        for s_ in range(2):
            for tp in range(2):
                for hh in range(2):
                    a(f"ds_read_b64_tr_b16 {rng(wb+8*s_+4*tp+2*hh,2)}, v{vWOr+tp} offset:{s_*8192 + hh*1024}")
    a(f"""
buffer_load_dwordx4 {rng(gg,4)}, v{vOG}, s[28:31], s{sOG} offen sc1
buffer_load_dwordx4 {rng(gg+4,4)}, v{vOG}, s[28:31], s{sOG} offen offset:2048 sc1
""")
    if not nooi:
        waitflags(single=F_W)
        for s in range(2):
            for tp in range(2):
                for hh in range(2):
                    a(f"ds_read_b64_tr_b16 {rng(wb+8*s+4*tp+2*hh,2)}, v{vWOr+tp} offset:{s*8192 + hh*1024}")
    poll("o", [gg, gg+4], vOG, sOG, 0, [0, 2048], QFL + OFL)
    ST_("o gathered")
    e0 = va(); e1 = va(); u = A32 + 16; S = va(); oo = A32 + 24
    a(f"""
v_max_f32 v{M}, v{gg+2}, v{gg+6}
v_mov_b32 v{mt}, v{M}
v_lshlrev_b32 v{u}, 16, v{gg}
v_and_b32 v{u+1}, 0xffff0000, v{gg}
v_permlane16_swap_b32 v{M}, v{mt}
v_lshlrev_b32 v{u+2}, 16, v{gg+1}
v_max_f32 v{M}, v{M}, v{mt}
v_mov_b32 v{mt}, v{M}
v_and_b32 v{u+3}, 0xffff0000, v{gg+1}
v_lshlrev_b32 v{u+4}, 16, v{gg+4}
v_permlane32_swap_b32 v{M}, v{mt}
v_and_b32 v{u+5}, 0xffff0000, v{gg+4}
v_max_f32 v{M}, v{M}, v{mt}
v_lshlrev_b32 v{u+6}, 16, v{gg+5}
v_sub_f32 v{e0}, v{gg+2}, v{M}
v_sub_f32 v{e1}, v{gg+6}, v{M}
v_exp_f32 v{e0}, v{e0}
v_exp_f32 v{e1}, v{e1}
v_and_b32 v{u+7}, 0xffff0000, v{gg+5}
v_add_f32 v{S}, v{e0}, v{e1}
v_mul_f32 v{oo}, v{e0}, v{u}
v_mul_f32 v{oo+1}, v{e0}, v{u+1}
v_mov_b32 v{mt}, v{S}
v_mul_f32 v{oo+2}, v{e0}, v{u+2}
v_mul_f32 v{oo+3}, v{e0}, v{u+3}
v_permlane16_swap_b32 v{S}, v{mt}
v_fmac_f32 v{oo}, v{e1}, v{u+4}
v_fmac_f32 v{oo+1}, v{e1}, v{u+5}
v_add_f32 v{S}, v{S}, v{mt}
v_fmac_f32 v{oo+2}, v{e1}, v{u+6}
v_fmac_f32 v{oo+3}, v{e1}, v{u+7}
v_mov_b32 v{mt}, v{S}
v_permlane16_swap_b32 v{oo}, v{oo+1}
s_nop 0
v_permlane16_swap_b32 v{oo+2}, v{oo+3}
v_permlane32_swap_b32 v{S}, v{mt}
v_add_f32 v{oo}, v{oo}, v{oo+1}
v_add_f32 v{oo+2}, v{oo+2}, v{oo+3}
v_add_f32 v{S}, v{S}, v{mt}
s_nop 0
v_permlane32_swap_b32 v{oo}, v{oo+2}
v_rcp_f32 v{S}, v{S}
v_add_f32 v{oo}, v{oo}, v{oo+2}
v_mul_f32 v{oo}, v{oo}, v{S}
v_cvt_pk_bf16_f32 v{oo}, v{oo}, v{oo}
ds_write_b16 v{vOLw}, v{oo} offset:{OL}
""")
    setflag(F_O)
    a(f"s_add_u32 s{sT2}, s{sFG}, 65536\ns_mov_b32 s{sCnt}, {spin}")
    waitflags(group=F_O)
    ob = B16 + 8; y = C32; yg = E8
    a(f"""
ds_read_b128 {rng(ob,4)}, v{vOLr} offset:{OL}
ds_read_b128 {rng(ob+4,4)}, v{vOLr} offset:{OL+64}
""")
    for s in range(2):
        a(f"s_waitcnt lgkmcnt({1-s})")
        for tp in range(2):
            c = "0" if s == 0 else rng(y+4*tp,4)
            if ycoal: a(f"v_mfma_f32_16x16x32_bf16 {rng(y+4*tp,4)}, {rng(ob+4*s,4)}, {rng(wb+8*s+4*tp,4)}, {c}")
            else: a(f"v_mfma_f32_16x16x32_bf16 {rng(y+4*tp,4)}, {rng(wb+8*s+4*tp,4)}, {rng(ob+4*s,4)}, {c}")
    if ycoal:
        a(f"v_mov_b32 v{E8+3}, s{sTag}\ns_nop 6")
        for r in range(4): a(f"v_cndmask_b32 v{y+r}, v{y+r}, v{y+4+r}, s[{sG1}:{sG1+1}]")
        a(f"""v_perm_b32 v{yg}, v{y}, v{y+3}, s{sP0}
v_perm_b32 v{yg+1}, v{y+1}, v{y+3}, s{sP1}
v_perm_b32 v{yg+2}, v{y+2}, v{y+3}, s{sP2}
buffer_store_dwordx4 {rng(yg,4)}, v{vYst}, s[28:31], s{sYst} offen sc1""")
    else:
        a(f"v_mov_b32 v{E8+3}, s{sTag}\nv_mov_b32 v{E8+7}, s{sTag}\ns_nop 4")
        for tp in range(2):
            a(f"""v_perm_b32 v{yg+4*tp}, v{y+4*tp}, v{y+4*tp+3}, s{sP0}
v_perm_b32 v{yg+4*tp+1}, v{y+4*tp+1}, v{y+4*tp+3}, s{sP1}
v_perm_b32 v{yg+4*tp+2}, v{y+4*tp+2}, v{y+4*tp+3}, s{sP2}
buffer_store_dwordx4 {rng(yg+4*tp,4)}, v{vYst}, s[28:31], s{sYst} offen offset:{tp*64} sc1""")
    setflag(F_YI)
    ST_("y published")
    waitflags(group=F_YI)
    if not noflush:
        for x_ in QFL + OFL: a(x_)
    if dirty:
        a(f"s_lshl_b32 s{sT}, s2, 2\ns_add_u32 s{sT}, s{sT}, {W}\ns_mul_i32 s{sT}, s{sT}, {dirty*1024}\ns_add_u32 s{sT}, s{sT}, 0x800000\nv_lshlrev_b32 v{t0}, 4, v{l}")
        for i in range(dirty):
            a(f"buffer_store_dwordx4 {rng(C32,4)}, v{t0}, s[28:31], s{sT} offen\ns_add_u32 s{sT}, s{sT}, 1024")
    z = C32 + 24
    fg = C32 + 16
    FM = {0: ' sc1', 1: ' sc1 nt', 2: ' sc0 sc1', 3: ' sc0 sc1 nt'}[fmode]
    a(f"""s_cmp_lg_u32 {W}, 0
s_cbranch_scc1 L_fin
L_fpoll:
buffer_load_dwordx4 {rng(fg,4)}, v{vFG}, s[28:31], s{sFG} offen{FM}
buffer_load_dwordx4 {rng(fg+4,4)}, v{vFG}, s[28:31], s{sT2} offen{FM}
s_waitcnt vmcnt(0)
v_cmp_ne_u32 vcc, s{sTag}, v{fg+3}
v_cmp_ne_u32 s[{sa_tmp}:{sa_tmp+1}], s{sTag}, v{fg+7}
s_or_b64 vcc, vcc, s[{sa_tmp}:{sa_tmp+1}]
s_cbranch_vccz L_fok
{('s_sleep ' + str(fsleep)) if fsleep else 's_nop 0'}
s_sub_u32 s{sCnt}, s{sCnt}, 1
s_cbranch_scc0 L_fpoll
L_fok:""")
    ST_("final gathered")
    a(f"""
v_perm_b32 v{z+3}, v{fg}, v{fg+1}, s{sU0}
v_perm_b32 v{z+7}, v{fg+4}, v{fg+5}, s{sU0}
v_add_f32 v{z}, v{fg}, v{fg+4}
v_perm_b32 v{z+3}, v{z+3}, v{fg+2}, s{sU1}
v_perm_b32 v{z+7}, v{z+7}, v{fg+6}, s{sU1}
v_add_f32 v{z+1}, v{fg+1}, v{fg+5}
v_add_f32 v{z+2}, v{fg+2}, v{fg+6}
v_add_f32 v{z+3}, v{z+3}, v{z+7}
""")
    for ctl in ("quad_perm:[2,3,0,1]", "row_ror:4", "row_ror:8"):
        for r in range(4):
            a(f"v_add_f32_dpp v{z+r}, v{z+r}, v{z+r} {ctl} row_mask:0xf bank_mask:0xf")
    a(f"""
s_nop 0
v_permlane16_swap_b32 v{z}, v{z+1}
v_permlane16_swap_b32 v{z+2}, v{z+3}
s_nop 0
v_add_f32 v{z}, v{z}, v{z+1}
v_add_f32 v{z+2}, v{z+2}, v{z+3}
s_nop 1
v_permlane32_swap_b32 v{z}, v{z+2}
s_nop 0
v_add_f32 v{z}, v{z}, v{z+2}
v_cvt_pk_bf16_f32 v{z}, v{z}, v{z}
buffer_store_short v{z}, v{vOut}, s[32:35], 0 offen
s_cmp_lg_u32 s2, 0
s_cbranch_scc1 L_fin
v_mov_b32 v{t0}, s{sTag}
v_mov_b32 v{t1}, {WSB}
s_mov_b64 exec, 1
buffer_store_dword v{t0}, v{t1}, s[28:31], 0 offen sc1
s_mov_b64 exec, -1
L_fin:
""")
    a("s_branch L_tail" if stamp else "s_endpgm")
    for name, c in cold:
        for x_ in c: a(x_)
    a("; WARM_END")
    for c in colder:
        for x_ in c: a(x_)
    a("L_tail:")
    if stamp:
        a(f"s_mov_b32 s31, 0x20000\ns_mov_b32 s30, {WS_BYTES}")
    if amp >= 0:
        ST_("end")
        e = nst[0] - 1
        a(f"""
s_waitcnt lgkmcnt(0)
s_cmp_lg_u32 {W}, {ampw}
s_cbranch_scc1 L_end
""")
        if ampglob:
            a(f"""
s_lshl_b32 s37, s2, 3
s_add_u32 s37, s37, {ST}
v_mov_b32 v{C32}, s{SB}
v_mov_b32 v{C32+1}, s{sTag}
v_mov_b32 v{t1}, 0
s_mov_b64 exec, 1
buffer_store_dwordx2 v[{C32}:{C32+1}], v{t1}, s[28:31], s37 offen sc1
s_mov_b64 exec, -1
""")
        a(f"""
s_cmp_lg_u32 s2, 0
s_cbranch_scc1 L_end
""")
        OP, OPD, SOP = ('v_add_u32', 'v_add_u32_dpp', 's_add_i32') if ampglob == 2 else ('v_min_i32', 'v_min_i32_dpp', 's_min_i32')
        SHR = 's_ashr_i32 s36, s36, 8' if ampglob == 2 else 's_nop 0'
        if ampglob:
            a(f"""
s_mov_b32 s37, {ST}
v_lshlrev_b32 v{t1}, 5, v{l}
L_ag:
buffer_load_dwordx4 v[{C32}:{C32+3}], v{t1}, s[28:31], s37 offen sc1
buffer_load_dwordx4 v[{C32+4}:{C32+7}], v{t1}, s[28:31], s37 offen offset:16 sc1
s_waitcnt vmcnt(0)
v_cmp_ne_u32 vcc, s{sTag}, v{C32+1}
v_cmp_ne_u32 s[40:41], s{sTag}, v{C32+3}
s_or_b64 vcc, vcc, s[40:41]
v_cmp_ne_u32 s[40:41], s{sTag}, v{C32+5}
s_or_b64 vcc, vcc, s[40:41]
v_cmp_ne_u32 s[40:41], s{sTag}, v{C32+7}
s_or_b64 vcc, vcc, s[40:41]
s_cbranch_vccnz L_ag
v_subrev_u32 v{C32}, s{SB}, v{C32}
v_subrev_u32 v{C32+2}, s{SB}, v{C32+2}
v_subrev_u32 v{C32+4}, s{SB}, v{C32+4}
v_subrev_u32 v{C32+6}, s{SB}, v{C32+6}
{OP} v{C32}, v{C32}, v{C32+2}
{OP} v{C32+4}, v{C32+4}, v{C32+6}
{OP} v{C32}, v{C32}, v{C32+4}
s_nop 1
{OPD} v{C32}, v{C32}, v{C32} row_ror:1 row_mask:0xf bank_mask:0xf
s_nop 1
{OPD} v{C32}, v{C32}, v{C32} row_ror:2 row_mask:0xf bank_mask:0xf
s_nop 1
{OPD} v{C32}, v{C32}, v{C32} row_ror:4 row_mask:0xf bank_mask:0xf
s_nop 1
{OPD} v{C32}, v{C32}, v{C32} row_ror:8 row_mask:0xf bank_mask:0xf
s_nop 1
v_readlane_b32 s36, v{C32}, 0
v_readlane_b32 s37, v{C32}, 16
v_readlane_b32 s38, v{C32}, 32
v_readlane_b32 s39, v{C32}, 48
s_nop 3
{SOP} s36, s36, s37
{SOP} s38, s38, s39
{SOP} s36, s36, s38
{SHR}
s_sub_u32 s37, s{SB+2*amp}, s{SB}
s_sub_u32 s37, s37, s36
s_memrealtime s[40:41]
s_waitcnt lgkmcnt(0)
s_mul_i32 s37, s37, {ampk}
s_add_u32 s37, s37, s40
""")
        else:
            a(f"""
s_sub_u32 s37, s{SB+2*amp}, s{SB+2*ampj}
s_mul_i32 s37, s37, {ampk}
s_add_u32 s37, s37, s{SB+2*e}
""")
        a(f"""
L_amp:
s_memrealtime s[40:41]
s_waitcnt lgkmcnt(0)
s_cmp_lt_u32 s40, s37
s_cbranch_scc1 L_amp
""")
    elif stamp:
        ST_("end")
        if stamp == 2:
            a("s_waitcnt vmcnt(0)")
            ST_("end2")
        n = nst[0]
        a(f"""
s_waitcnt lgkmcnt(0) vmcnt(0)
s_mul_i32 s4, s2, 8
s_add_u32 s4, s4, s3
s_lshl_b32 s4, s4, 6
s_add_u32 s4, s4, {ST}
v_mov_b32 v{t1}, 0
s_mov_b64 exec, 1
""")
        for i in range(n):
            a(f"v_mov_b32 v{t0}, s{SB+2*i}\nbuffer_store_dword v{t0}, v{t1}, s[28:31], s4 offen offset:{4*i}\ns_nop 0")
    a("L_end:\ns_endpgm")
    lines = a.L
    if defer:
        keep = []; dfr = {}; cur = None
        for ln in lines:
            t = ln.strip()
            if t.startswith(";@D"): cur = t[2:]; dfr[cur] = []; continue
            if t.startswith(";@K"): cur = None; continue
            if cur: dfr[cur].append(ln)
            else: keep.append(ln)
        pre2 = [f"    v_bfe_u32 v{t0}, v{l}, 2, 2", f"    v_and_b32 v{t1}, 1, v{g}"]
        pre3 = [f"    v_cmp_gt_u32 vcc, 4, v{n16}", f"    v_mov_b32 v{t3}, {OOB}", f"    v_lshlrev_b32 v{t2}, 4, v{g}"]
        body_d = ["    ; ---- remaining address set-up (runs while K is in flight)"] + dfr["D1"] + pre2 + dfr["D2"] + pre3 + dfr["D3"] + dfr["D4"]
        lines = []
        for ln in keep:
            if ln.strip() == ";@HERE": lines += body_d
            else: lines.append(ln)
    else:
        lines = [ln for ln in lines if not ln.strip().startswith(";@")]
    nh = 0
    if warm and warm2:
        if warm2 != 3:
            lines, n1_ = hops.insert_chain(lines, nparts, "; WARM_START", "; WARM_MID", "A", wstride, predef=("A", "B"))
        else: n1_ = 0
        lines, n2_ = hops.insert_chain(lines, nparts, "; WARM_MID2", "; WARM_END", "B", wstride, predef=("B",))
        nh = n1_ + n2_; have = nparts
    elif warm:
        if warml: lines, nh, have = hops.insert_multi(lines, nparts, [("; LWARM_START", "; LWARM_END"), ("; WARM_START", "; WARM_END")])
        else: lines, nh, have = hops.insert(lines, nparts)
        assert have == nparts, (have, nparts)
    body = "\n".join(lines) + "\n"
    assert (not stamp) or (sa.hi <= SB and ls.hi <= SB), (sa.hi, ls.hi)
    nv = max(va.hi, lv.hi)
    s = header([f"; @launch grid=(256,1,1) block=(320,1,1) lds={LDS_BYTES}"], DOC) + kernel_begin(KNAME) + body + RODATA + descriptor(KNAME, nv, 102 if stamp else max(sa.hi, ls.hi))
    errs = haz.check(body)
    for e in errs: print("HAZ", e)
    return s, nv, sa.hi, nh, stn
if __name__ == "__main__":
    out = sys.argv[1]
    kw = {}
    for x in sys.argv[2:]:
        k, v = x.split("=")
        if k in ("warm", "prio", "holdwo", "rot", "rotq", "ilv", "ycoal", "xnt", "xfirst", "pvp"): kw[k] = (v == "1")
        elif k == "nt": kw[k] = (" " + v if v else "")
        else: kw[k] = int(v)
    s, nv, ns, nh, stn = gen(**kw)
    open(out, "w").write(s)
    print("vgprs", nv, "sgprs", ns, "hops", nh, "lds", LDS_BYTES, stn)
```
